```python
import torch

def _softmax(x, axis=-1):
    return torch.softmax(x, dim=axis)
def _gelu(x):
    return torch.nn.functional.gelu(x, approximate="tanh")
def _silu(x):
    return torch.nn.functional.silu(x)
def _sigmoid(x):
    return torch.sigmoid(x)
def _layernorm(x, axis=-1, eps=1e-5):
    m = x.mean(dim=axis, keepdim=True)
    v = x.var(dim=axis, keepdim=True, unbiased=False)
    return (x - m) / torch.sqrt(v + eps)
def _scatter_add(tgt, idx, src, axis=0):
    return tgt.clone().index_add_(axis, idx, src)
def _segment_sum(src, seg, n):
    out = torch.zeros((n,) + src.shape[1:], dtype=src.dtype)
    return out.index_add_(0, seg, src)
def _pad(x, pw):
    flat = tuple(v for pair in reversed(pw) for v in pair)
    return torch.nn.functional.pad(x, flat)

kernel_name = 'gated_mix__ssm_conv_s4__glu_gated_bilinear__prompt'

def setup_inputs():

    _w = (lambda a: (lambda t: t.to(torch.bfloat16) if t.is_floating_point() else t)(torch.as_tensor(a)))
    def _A_setup():
        B, L, D, N = 1, 2048, 512, 128
        A_re = -(lambda _x: torch.exp(torch.as_tensor(_x)))((lambda *s: torch.randn(*s, dtype=torch.bfloat16) * 3.2)(D, N))
        A_im = torch.pi * (lambda *s: torch.randn(*s, dtype=torch.bfloat16) * 0.05)(D, N)
        B_re = (lambda *s: torch.randn(*s, dtype=torch.bfloat16) * 0.1)(D, N)
        B_im = (lambda *s: torch.randn(*s, dtype=torch.bfloat16) * 0.1)(D, N)
        C_re = (lambda *s: torch.randn(*s, dtype=torch.bfloat16) * 0.1)(D, N)
        C_im = (lambda *s: torch.randn(*s, dtype=torch.bfloat16) * 0.1)(D, N)
        log_dt = (lambda *s: torch.randn(*s, dtype=torch.bfloat16) * 0.05)(D) * 0.5 - 4.0
        Dskip = (lambda *s: torch.randn(*s, dtype=torch.bfloat16) * 0.05)(D)
        return {
            "u": _w((lambda *s: torch.randn(*s, dtype=torch.bfloat16) * 0.05)(B, L, D)),
            "A_re": _w(A_re),
            "A_im": _w(A_im),
            "B_re": _w(B_re),
            "B_im": _w(B_im),
            "C_re": _w(C_re),
            "C_im": _w(C_im),
            "log_dt": _w(log_dt),
            "Dskip": _w(Dskip),
        }
    _A_in = _A_setup()

    def _B_setup():
        B, S, D, F = 1, 2048, 512, 1792
        return {
            "x": _w((lambda *s: torch.randn(*s, dtype=torch.bfloat16) * 0.05)(B, S, D)),
            "w_gate": _w((lambda *s: torch.randn(*s, dtype=torch.bfloat16) * 0.8)(D, F) * (D ** -0.5)),
            "w_up": _w((lambda *s: torch.randn(*s, dtype=torch.bfloat16) * 0.8)(D, F) * (D ** -0.5)),
            "w_down": _w((lambda *s: torch.randn(*s, dtype=torch.bfloat16) * 0.8)(F, D) * (F ** -0.5)),
        }
    _B_in = _B_setup()

    return {
        "A_u": _A_in["u"],
        "A_A_re": _A_in["A_re"],
        "A_A_im": _A_in["A_im"],
        "A_B_re": _A_in["B_re"],
        "A_B_im": _A_in["B_im"],
        "A_C_re": _A_in["C_re"],
        "A_C_im": _A_in["C_im"],
        "A_log_dt": _A_in["log_dt"],
        "A_Dskip": _A_in["Dskip"],
        "B_x": _B_in["x"],
        "B_w_gate": _B_in["w_gate"],
        "B_w_up": _B_in["w_up"],
        "B_w_down": _B_in["w_down"],
        "gate_w": _w((lambda *s: torch.randn(*s, dtype=torch.bfloat16) * 0.05)(512) * 16.0),
    }

def reference(A_u, A_A_re, A_A_im, A_B_re, A_B_im, A_C_re, A_C_im, A_log_dt, A_Dskip, B_x, B_w_gate, B_w_up, B_w_down, gate_w):
    def _A_ref(u, A_re, A_im, B_re, B_im, C_re, C_im, log_dt, Dskip):
        Bsz, L, D = u.shape
        dt = torch.exp(log_dt)[:, None]
        A = A_re + 1j * A_im
        Bc = B_re + 1j * B_im
        Cc = C_re + 1j * C_im
        logdA = dt * A
        dB = dt * Bc
        l = (lambda x, dt: x.to(dt))(torch.arange(L), A_re.dtype)
        P = torch.exp(logdA[:, :, None] * l[None, None, :])
        K = torch.einsum("dn,dnl,dn->dl", Cc, P, dB).real
        L2 = 2 * L
        Kp = _pad(K, ((0, 0), (0, L)))
        up = (lambda x, *d: x.permute(*d))(u, 0, 2, 1)
        up = _pad(up, ((0, 0), (0, 0), (0, L)))
        Kf = (lambda x, axes=(-2,-1): torch.fft.rfft2(x.float(), dim=axes))(Kp[:, None, :], axes=(-2, -1))
        Uf = (lambda x, axes=(-2,-1): torch.fft.rfft2(x.float(), dim=axes))(up[:, :, None, :], axes=(-2, -1))
        Yf = Uf * Kf[None, :, :, :]
        y = (lambda x, s, axes=(-2,-1): torch.fft.irfft2(x, s=s, dim=axes).to(torch.bfloat16))(Yf, (1, L2), axes=(-2, -1))[:, :, 0, :L]
        y = (lambda x, *d: x.permute(*d))(y, 0, 2, 1) + u * Dskip[None, None, :]
        return y

    def _B_ref(x, w_gate, w_up, w_down):
        g = torch.einsum("bsd,df->bsf", x, w_gate)
        u = torch.einsum("bsd,df->bsf", x, w_up)
        h = g * u
        return torch.einsum("bsf,fd->bsd", h, w_down)

    x = A_u
    g = _sigmoid((x * gate_w).sum(-1, keepdims=True))
    a = _A_ref(x, A_A_re, A_A_im, A_B_re, A_B_im, A_C_re, A_C_im, A_log_dt, A_Dskip)
    b = _B_ref(x, B_w_gate, B_w_up, B_w_down)
    return g * a + (1 - g) * b
```

```python
import re
NAME = "gated_mix__ssm_conv_s4__glu_gated_bilinear__prompt_kernel"

TRANS = ("v_exp_f32", "v_log_f32", "v_rcp_f32", "v_rsq_f32", "v_sqrt_f32", "v_sin_f32", "v_cos_f32")
_reg_re = re.compile(r"^(-|abs\(|\|)?([vsa])(\d+|\[(\d+):(\d+)\])\)?\|?$")

def parse_regs(tok):
    tok = tok.strip()
    if tok == "vcc": return [("s", "vcc")]
    if tok == "exec": return [("s", "exec")]
    if tok == "m0": return [("s", "m0")]
    m = _reg_re.match(tok)
    if not m: return []
    k = m.group(2)
    if m.group(4) is not None:
        return [(k, i) for i in range(int(m.group(4)), int(m.group(5)) + 1)]
    return [(k, int(m.group(3)))]

class Ins:
    def __init__(self, text):
        self.text = text
        t = text.split(";")[0].strip()
        parts = t.split(None, 1)
        self.op = parts[0]
        rest = parts[1] if len(parts) > 1 else ""
        ops = []; depth = 0; cur = ""
        for ch in rest:
            if ch == "[" or ch == "(": depth += 1
            if ch == "]" or ch == ")": depth -= 1
            if ch == "," and depth == 0:
                ops.append(cur.strip()); cur = ""
            else:
                cur += ch
        if cur.strip(): ops.append(cur.strip())
        self.mods = ""
        if ops:
            sp = ops[-1].split(None, 1)
            ops[-1] = sp[0]
            if len(sp) > 1: self.mods = sp[1]
        self.ops = ops
        op = self.op
        self.is_mfma = op.startswith("v_mfma")
        self.is_valu = op.startswith("v_") and not self.is_mfma
        self.is_salu = op.startswith("s_")
        self.is_ds = op.startswith("ds_")
        self.is_vmem = op.startswith("buffer_") or op.startswith("global_")
        self.is_dpp = "_dpp" in op
        self.is_trans = op.replace("_e32", "").replace("_e64", "") in TRANS
        R = [parse_regs(o) for o in ops]
        self.w = []; self.r = []
        self.store_data = []
        if self.is_mfma:
            self.w = R[0]; self.a = R[1]; self.b = R[2]; self.c = R[3]
            self.r = R[1] + R[2] + R[3]
            self.passes = 8 if "32x32x16" in op else 4
        elif self.is_valu:
            if op.startswith("v_cmp"):
                self.w = R[0]; self.r = sum(R[1:], [])
            elif op.startswith("v_permlane") and "swap" in op:
                self.w = R[0] + R[1]; self.r = R[0] + R[1]
            elif op.startswith(("v_add_co", "v_sub_co", "v_addc_co", "v_subb_co")):
                self.w = R[0] + R[1]; self.r = sum(R[2:], [])
            else:
                self.w = R[0]; self.r = sum(R[1:], [])
                if op.startswith(("v_fmac", "v_writelane", "v_dot2c")) or self.is_dpp or "sdwa" in op:
                    self.r = self.r + R[0]
        elif self.is_ds:
            if op.startswith("ds_read") or op.startswith("ds_bpermute") or op.startswith("ds_swizzle"):
                self.w = R[0]; self.r = sum(R[1:], [])
            else:
                self.r = sum(R, [])
            if "addtid" in op: self.r = self.r + [("s", "m0")]
        elif self.is_vmem:
            lds = " lds" in (" " + self.mods + " ") or self.mods.endswith("lds")
            self.lds = lds or "load_lds" in op
            if op in ("buffer_inv", "buffer_wbl2"):
                pass
            elif "load" in op and not self.lds:
                self.w = R[0]; self.r = sum(R[1:], [])
                if "d16" in op: self.r = self.r + R[0]
            elif self.lds:
                self.r = sum(R, []) + [("s", "m0")]
            else:
                self.r = sum(R, [])
                if "sc0" in self.mods and "atomic" in op and op.startswith("buffer"):
                    self.w = R[0]
                if op.endswith("x3") or op.endswith("x4"):
                    self.store_data = R[0] if op.startswith("buffer") else R[1]
        elif self.is_salu:
            if op.startswith(("s_cmp", "s_cbranch", "s_branch", "s_waitcnt", "s_nop", "s_barrier", "s_endpgm", "s_setprio", "s_sleep", "s_bitcmp")):
                self.r = sum(R, [])
            else:
                self.w = R[0] if R else []; self.r = sum(R[1:], [])
                if "saveexec" in op: self.w = self.w + [("s", "exec")]
    def states(self):
        if self.op == "s_nop": return int(self.ops[0], 0) + 1
        return 1

def need(prev, cur):
    n = 0
    pw = set(prev.w); cr = set(cur.r); cw = set(cur.w)
    pwv = {x for x in pw if x[0] in "va"}
    pws = {x for x in pw if x[0] == "s"}
    if prev.is_valu:
        if cur.is_mfma and pwv & cr: n = max(n, 2)
        if cur.is_valu:
            if cur.is_dpp and pwv & cr: n = max(n, 2)
            if cur.op.startswith(("v_readlane", "v_readfirstlane")) and pwv & cr: n = max(n, 1)
            if cur.op.startswith("v_permlane") and pwv & cr: n = max(n, 2)
            if prev.is_trans and pwv & cr: n = max(n, 1)
            if "sdwa" in prev.op and pwv & (cr | cw): n = max(n, 1)
            if pws & cr:
                n = max(n, 4 if cur.op.startswith(("v_readlane", "v_writelane")) else 2)
            if prev.op.startswith("v_dot2") and pwv & (cr | cw):
                if not (cur.op == prev.op and not (pwv & set(parse_regs(cur.ops[1]) + parse_regs(cur.ops[2])))):
                    n = max(n, 3)
        if (cur.is_vmem or cur.is_ds) and prev.op.startswith("v_dot2") and pwv & cr: n = max(n, 3)
        if cur.is_vmem and pws & cr: n = max(n, 5)
        if cur.is_salu and pws & cr: n = max(n, 1)
    if prev.is_mfma:
        big = 12 if prev.passes == 8 else 8
        if cur.is_mfma:
            if pwv & set(cur.a + cur.b): n = max(n, big)
            if pwv & set(cur.c):
                if not (cur.c == prev.w and cur.passes == prev.passes): n = max(n, big - 2)
            elif pwv & cw: n = max(n, big)
        elif cur.is_valu or cur.is_vmem or cur.is_ds:
            if pwv & (cr | cw): n = max(n, big)
        if cur.is_valu and set(prev.c) & cw: n = max(n, 7 if prev.passes == 8 else 3)
    if prev.is_salu and ("s", "m0") in pw and ("s", "m0") in cr and (cur.is_vmem or cur.is_ds): n = max(n, 1)
    if prev.store_data and set(prev.store_data) & cw: n = max(n, 2)
    return n

class Asm:
    def __init__(self, auto_nop=True):
        self.lines = []
        self.nlabel = 0
        self.hist = []
        self.auto = auto_nop
        self.nops = 0
    def __call__(self, s, *args):
        if args:
            s = s % args
        for ln in s.split("\n"):
            ln = ln.strip()
            if not ln: continue
            if ln.endswith(":") or ln.startswith(".") or ln.startswith(";"):
                self.lines.append(ln)
                continue
            ins = Ins(ln)
            if self.auto:
                dist = 0; req = 0
                for p in reversed(self.hist):
                    nd = need(p, ins)
                    if nd - dist > req: req = nd - dist
                    dist += p.states()
                    if dist >= 13: break
                if req > 0:
                    nop = Ins("s_nop %d" % (req - 1))
                    self.lines.append("    s_nop %d" % (req - 1))
                    self.hist.append(nop); self.nops += 1
            self.lines.append("    " + ln)
            self.hist.append(ins)
            if len(self.hist) > 32: self.hist = self.hist[-32:]
    def label(self, base="L"):
        self.nlabel += 1
        return "%s_%d" % (base, self.nlabel)
    def c(self, s):
        self.lines.append("    ; " + s)
    def srd(self, r, base, nbytes, add=0):
        if add:
            self("s_add_u32 s%d, s%d, 0x%x", r, base, add)
            self("s_addc_u32 s%d, s%d, 0", r + 1, base + 1)
            self("s_and_b32 s%d, s%d, 0xffff", r + 1, r + 1)
        else:
            self("s_mov_b32 s%d, s%d", r, base)
            self("s_and_b32 s%d, s%d, 0xffff", r + 1, base + 1)
        self("s_mov_b32 s%d, 0x%x", r + 2, nbytes)
        self("s_mov_b32 s%d, 0x20000", r + 3)
    def text(self):
        return "\n".join(self.lines)

def vr(b, n):
    return "v[%d:%d]" % (b, b + n - 1) if n > 1 else "v%d" % b
def sr(b, n):
    return "s[%d:%d]" % (b, b + n - 1) if n > 1 else "s%d" % b

def kernel_begin(name):
    return ".globl %s\n.p2align 8\n.type %s,@function\n%s:\n" % (name, name, name)

def kernel_desc(name, vgpr, sgpr, accum):
    return (".p2align 6\n.amdhsa_kernel %s\n  .amdhsa_next_free_vgpr %d\n  .amdhsa_next_free_sgpr %d\n"
            "  .amdhsa_accum_offset %d\n  .amdhsa_group_segment_fixed_size 0\n  .amdhsa_kernarg_size 136\n"
            "  .amdhsa_user_sgpr_count 2\n  .amdhsa_user_sgpr_kernarg_segment_ptr 1\n"
            "  .amdhsa_system_sgpr_workgroup_id_x 1\n.end_amdhsa_kernel\n") % (name, vgpr, sgpr, accum)

def wrap(launch_lines, kernels):
    o = []
    o += launch_lines
    o.append('.amdgcn_target "amdgcn-amd-amdhsa--gfx950"')
    o.append(".text")
    for (n, a, v, s, ac) in kernels:
        o.append(kernel_begin(n) + a.text())
    o.append('.section .rodata,"a"')
    for (n, a, v, s, ac) in kernels:
        o.append(kernel_desc(n, v, s, ac))
    return "\n".join(o) + "\n"
```

```python
import sys
from asmlib import *

STAMP = "--stamp" in sys.argv

WS_H = 0
H_BYTES = 128 * 56 * 1024
WS_UT = 8 << 20
UT_BYTES = 2 << 20
WS_Y = 10 << 20
Y_BYTES = 2 << 20
WS_G = 12 << 20
G_BYTES = 8192
WS_ST = 13 << 20

P_U, P_ARE, P_AIM, P_BRE, P_BIM, P_CRE, P_CIM, P_LDT = 16, 18, 20, 22, 24, 26, 28, 30
P_DSK, P_BX, P_WG, P_WU, P_WD, P_GW, P_OUT, P_DBG, P_WS = 32, 34, 36, 38, 40, 42, 44, 46, 48

def prologue(a, endlabel):
    a("s_cmp_ge_u32 s2, 256")
    a("s_cbranch_scc1 %s", endlabel)
    if STAMP:
        a("s_memrealtime s[96:97]")
        a("s_memtime s[98:99]")
    a("s_load_dwordx16 s[16:31], s[0:1], 0")
    a("s_load_dwordx16 s[32:47], s[0:1], 64")
    a("s_load_dwordx2 s[48:49], s[0:1], 128")
    a("v_and_b32 v1, 63, v0")
    a("v_lshrrev_b32 v2, 6, v0")
    a("v_readfirstlane_b32 s3, v2")
    a("s_and_b32 s4, s2, 7")
    a("s_lshr_b32 s5, s2, 3")
    if STAMP:
        a("v_mov_b32 v255, 0")
    a("s_waitcnt lgkmcnt(0)")

def stamp(a, i):
    if not STAMP: return
    a("s_memtime s[94:95]")
    a("s_waitcnt lgkmcnt(0)")
    a("s_sub_u32 s94, s94, s98")
    a("v_writelane_b32 v255, s94, %d", i)

def stamp_out(a, kidx):
    if not STAMP: return
    a("s_memrealtime s[94:95]")
    a("s_waitcnt lgkmcnt(0)")
    a("v_writelane_b32 v255, s96, 14")
    a("v_writelane_b32 v255, s94, 15")
    a.srd(88, P_WS, 1 << 20, add=WS_ST)
    a("s_lshl_b32 s92, s2, 3")
    a("s_add_u32 s92, s92, s3")
    a("s_add_u32 s92, s92, %d", kidx * 2048)
    a("s_lshl_b32 s92, s92, 6")
    a("v_mbcnt_lo_u32_b32 v254, -1, 0")
    a("v_mbcnt_hi_u32_b32 v254, -1, v254")
    a("v_lshlrev_b32 v253, 2, v254")
    a("s_mov_b64 exec, 0xffff")
    a("buffer_store_dword v255, v253, s[88:91], s92 offen")

def gen_k1():
    a = Asm()
    prologue(a, "K1_end")
    a("s_cmp_ge_u32 s5, 28")
    a("s_cbranch_scc1 K1_aux")
    SX, SG, SU, SH = 52, 56, 60, 64
    a.srd(SX, P_U, 2048 * 1024)
    a.srd(SG, P_WG, 512 * 3584)
    a.srd(SU, P_WU, 512 * 3584)
    a.srd(SH, P_WS, H_BYTES, add=WS_H)
    a("s_lshr_b32 s6, s4, 1")
    a("s_lshl_b32 s6, s6, 2")
    a("s_and_b32 s7, s5, 3")
    a("s_add_u32 s6, s6, s7")
    a("s_and_b32 s7, s4, 1")
    a("s_mul_i32 s7, s7, 7")
    a("s_lshr_b32 s8, s5, 2")
    a("s_add_u32 s7, s7, s8")
    a("s_and_b32 s8, s3, 1")
    a("s_lshr_b32 s9, s3, 1")
    VX0, VX1, VW0, VW1 = 4, 5, 6, 7
    VXR = 8
    VG, VU = 12, 13
    T0, T1, T2, T3 = 14, 15, 16, 17
    a("s_lshl_b32 s10, s6, 7")
    a("s_lshl_b32 s11, s3, 4")
    a("s_add_u32 s10, s10, s11")
    a("s_lshl_b32 s10, s10, 10")
    a("v_lshrrev_b32 v%d, 3, v1", T0)
    a("v_lshlrev_b32 v%d, 10, v%d", T0, T0)
    a("v_lshrrev_b32 v%d, 4, v1", T1)
    a("v_and_b32 v%d, 7, v1", T2)
    a("v_xor_b32 v%d, v%d, v%d", T2, T2, T1)
    a("v_lshl_add_u32 v%d, v%d, 4, v%d", T0, T2, T0)
    a("v_add_u32 v%d, s10, v%d", VX0, T0)
    a("v_xor_b32 v%d, 64, v%d", VX1, VX0)
    a("v_add_u32 v%d, 0x2000, v%d", VX1, VX1)
    a("s_mul_i32 s10, s3, %d", 8 * 3584)
    a("s_lshl_b32 s11, s7, 8")
    a("s_add_u32 s10, s10, s11")
    a("v_mul_u32_u24 v%d, 3584, v%d", T0, T1)
    a("v_lshlrev_b32 v%d, 2, v%d", T2, T1)
    a("v_and_b32 v%d, 15, v1", T3)
    a("v_xor_b32 v%d, v%d, v%d", T2, T2, T3)
    a("v_lshl_add_u32 v%d, v%d, 4, v%d", T0, T2, T0)
    a("v_add_u32 v%d, s10, v%d", VW0, T0)
    a("v_add_u32 v%d, %d, v%d", VW1, 4 * 3584, VW0)
    a("s_lshl_b32 s12, s3, 11")
    LX, LG, LU = 0, 49152, 98304
    def dma(stage, j):
        slot = stage % 3
        kind = j // 2; i = j % 2
        base = [LX, LG, LU][kind] + slot * 16384 + i * 1024
        a("s_add_u32 m0, s12, %d", base)
        if kind == 0:
            a("s_mov_b32 s13, %d", stage * 128)
        else:
            a("s_mov_b32 s13, %d", stage * 64 * 3584)
        a("buffer_load_dwordx4 v%d, %s, s13 offen lds", [VX0, VW0, VW0][kind] + i, sr([SX, SG, SU][kind], 4))
    for st in range(3):
        for j in range(6):
            dma(st, j)
    a("v_and_b32 v%d, 31, v1", T0)
    a("v_lshrrev_b32 v%d, 5, v1", T1)
    a("v_bfe_u32 v%d, v1, 1, 3", T2)
    a("v_xor_b32 v%d, v%d, v%d", T2, T2, T1)
    a("v_lshlrev_b32 v%d, 7, v%d", T0, T0)
    a("v_lshl_add_u32 v%d, v%d, 4, v%d", T0, T2, T0)
    a("s_lshl_b32 s10, s8, 13")
    a("v_add_u32 v%d, s10, v%d", VXR, T0)
    for ks in range(1, 4):
        a("v_xor_b32 v%d, %d, v%d", VXR + ks, ks << 5, VXR)
    a("v_bfe_u32 v%d, v1, 2, 2", T0)
    a("v_lshl_add_u32 v%d, v%d, 3, v%d", T2, T1, T0)
    a("v_lshlrev_b32 v%d, 8, v%d", T2, T2)
    a("v_xor_b32 v%d, s9, v%d", T0, T0)
    a("v_lshl_add_u32 v%d, v%d, 6, v%d", T2, T0, T2)
    a("v_and_b32 v%d, 1, v1", T0)
    a("v_lshl_add_u32 v%d, v%d, 5, v%d", T2, T0, T2)
    a("v_bfe_u32 v%d, v1, 4, 1", T0)
    a("v_lshl_add_u32 v%d, v%d, 4, v%d", T2, T0, T2)
    a("v_bfe_u32 v%d, v1, 1, 1", T0)
    a("v_lshl_add_u32 v%d, v%d, 3, v%d", T2, T0, T2)
    a("v_add_u32 v%d, %d, v%d", VG, LG, T2)
    a("v_add_u32 v%d, %d, v%d", VU, LU, T2)
    FR = 20
    ACC = 64
    def reads(step):
        st, ks = step // 4, step % 4
        slot = st % 3
        f = FR + (step % 2) * 16
        L = []
        L.append("ds_read_b128 %s, v%d offset:%d" % (vr(f, 4), VXR + ks, LX + slot * 16384))
        for hf in range(2):
            L.append("ds_read_b64_tr_b16 %s, v%d offset:%d" % (vr(f + 8 + 2 * hf, 2), VG, slot * 16384 + ks * 4096 + hf * 1024))
        for hf in range(2):
            L.append("ds_read_b64_tr_b16 %s, v%d offset:%d" % (vr(f + 12 + 2 * hf, 2), VU, slot * 16384 + ks * 4096 + hf * 1024))
        L.append("ds_read_b128 %s, v%d offset:%d" % (vr(f + 4, 4), VXR + ks, LX + slot * 16384 + 4096))
        return L
    stamp(a, 0)
    a("s_waitcnt vmcnt(12)")
    a("s_barrier")
    stamp(a, 1)
    for r in reads(0): a(r)
    pend_dma = []
    for step in range(32):
        st, ks = step // 4, step % 4
        f = FR + (step % 2) * 16
        nxt = reads(step + 1) if step < 31 else []
        def mf(gu, tt):
            d = vr(ACC + (gu * 2 + tt) * 16, 16)
            a("v_mfma_f32_32x32x16_bf16 %s, %s, %s, %s", d, vr(f + 8 + 4 * gu, 4), vr(f + 4 * tt, 4), d if step > 0 else "0")
        a("s_waitcnt lgkmcnt(0)")
        mf(0, 0)
        for r in nxt[:3]: a(r)
        mf(1, 0)
        for r in nxt[3:]: a(r)
        mf(0, 1)
        for _ in range(2):
            if pend_dma: dma(*pend_dma.pop(0))
        mf(1, 1)
        if pend_dma: dma(*pend_dma.pop(0))
        if ks == 2 and st < 7:
            a("s_waitcnt vmcnt(%d) lgkmcnt(0)", 6 if st + 2 <= 7 else 0)
            a("s_barrier")
            if st + 3 <= 7:
                pend_dma = [(st + 3, j) for j in range(6)]
    stamp(a, 2)
    a("v_lshrrev_b32 v%d, 5, v1", T1)
    a("v_bfe_u32 v%d, v1, 4, 1", T0)
    a("v_mul_u32_u24 v%d, %d, v%d", T0, 56 * 1024, T0)
    a("v_lshl_add_u32 v%d, v%d, 9, v%d", T0, T1, T0)
    a("v_and_b32 v%d, 15, v1", T1)
    a("v_lshl_add_u32 v%d, v%d, 4, v%d", T0, T1, T0)
    a("s_lshl_b32 s10, s6, 3")
    a("s_lshl_b32 s11, s8, 2")
    a("s_add_u32 s10, s10, s11")
    a("s_mul_i32 s10, s10, 56")
    a("s_lshl_b32 s11, s7, 2")
    a("s_add_u32 s10, s10, s11")
    a("s_add_u32 s10, s10, s9")
    a("s_lshl_b32 s10, s10, 10")
    a("s_add_u32 s11, s10, %d", 2 * 56 * 1024)
    for tt in range(2):
        g = ACC + tt * 16; u = ACC + (2 + tt) * 16
        for q in range(16):
            a("v_mul_f32 v%d, v%d, v%d", g + q, g + q, u + q)
        for q in range(8):
            a("v_cvt_pk_bf16_f32 v%d, v%d, v%d", u + q, g + 2 * q, g + 2 * q + 1)
        for o in range(2):
            a("buffer_store_dwordx4 %s, v%d, %s, s%d offen offset:%d", vr(u + 4 * o, 4), T0, sr(SH, 4), 10 + tt, o * 256)
    if STAMP:
        a("s_waitcnt vmcnt(0)")
    stamp(a, 3)
    stamp_out(a, 0)
    a("s_endpgm")
    a("K1_aux:")
    SX, SUT, SGT = 52, 56, 60
    a.srd(SX, P_U, 2048 * 1024)
    a.srd(SUT, P_WS, UT_BYTES, add=WS_UT)
    a.srd(SGT, P_WS, G_BYTES, add=WS_G)
    a("s_lshl_b32 s6, s4, 2")
    a("s_add_u32 s6, s6, s5")
    a("s_sub_u32 s6, s6, 28")
    PITCH = 1040
    a("v_lshlrev_b32 v4, 4, v1")
    a("s_lshl_b32 s7, s6, 16")
    a("s_lshl_b32 s8, s3, 13")
    a("s_add_u32 s7, s7, s8")
    a("s_mul_i32 s8, s3, %d", 8 * PITCH)
    for j in range(8):
        a("s_add_u32 m0, s8, %d", j * PITCH)
        a("s_add_u32 s9, s7, %d", j * 1024)
        a("buffer_load_dwordx4 v4, %s, s9 offen lds", sr(SX, 4))
    a("v_and_b32 v5, 7, v0")
    a("v_lshlrev_b32 v5, 4, v5")
    for j in range(8):
        a("global_load_dwordx4 %s, v5, %s offset:%d", vr(32 + 4 * j, 4), sr(P_GW, 2), j * 128)
    a("v_lshrrev_b32 v6, 4, v1")
    a("v_bfe_u32 v7, v1, 2, 2")
    a("v_lshl_add_u32 v7, v7, 2, v6")
    a("v_mul_u32_u24 v7, %d, v7", PITCH)
    a("v_and_b32 v8, 3, v1")
    a("v_lshl_add_u32 v7, v8, 3, v7")
    a("s_and_b32 s9, s3, 1")
    a("s_mul_i32 s10, s9, %d", 32 * PITCH)
    a("s_lshr_b32 s11, s3, 1")
    a("s_lshl_b32 s12, s11, 8")
    a("s_add_u32 s10, s10, s12")
    a("v_add_u32 v7, s10, v7")
    a("v_bfe_u32 v8, v1, 1, 3")
    a("v_lshlrev_b32 v8, 13, v8")
    a("v_lshl_add_u32 v8, v6, 5, v8")
    a("v_and_b32 v9, 1, v1")
    a("v_lshl_add_u32 v8, v9, 4, v8")
    a("s_lshl_b32 s12, s11, 19")
    a("s_lshl_b32 s13, s6, 1")
    a("s_add_u32 s13, s13, s9")
    a("s_lshl_b32 s13, s13, 7")
    a("s_add_u32 s12, s12, s13")
    a("s_waitcnt vmcnt(8)")
    a("s_barrier")
    for j in range(8):
        for hf in range(2):
            a("ds_read_b64_tr_b16 %s, v7 offset:%d", vr(64 + 4 * j + 2 * hf, 2), hf * 16 * PITCH + j * 32)
    a("v_lshrrev_b32 v9, 3, v0")
    a("v_mul_u32_u24 v10, %d, v9", PITCH)
    a("v_add_u32 v10, v10, v5")
    for j in range(8):
        a("s_waitcnt lgkmcnt(%d)", 14 - 2 * j)
        a("s_add_u32 s13, s12, %d", j * 65536)
        a("buffer_store_dwordx4 %s, v8, %s, s13 offen", vr(64 + 4 * j, 4), sr(SUT, 4))
    for j in range(8):
        a("ds_read_b128 %s, v10 offset:%d", vr(96 + 4 * j, 4), j * 128)
    a("v_mov_b32 v11, 0")
    a("v_mov_b32 v12, 0")
    a("s_waitcnt vmcnt(8) lgkmcnt(0)")
    for j in range(32):
        a("v_dot2_f32_bf16 v%d, v%d, v%d, v%d", 11 + j % 2, 32 + j, 96 + j, 11 + j % 2)
    a("v_add_f32 v11, v11, v12")
    a("v_add_f32_dpp v11, v11, v11 quad_perm:[1,0,3,2] row_mask:0xf bank_mask:0xf")
    a("v_add_f32_dpp v11, v11, v11 quad_perm:[2,3,0,1] row_mask:0xf bank_mask:0xf")
    a("v_add_f32_dpp v11, v11, v11 row_half_mirror row_mask:0xf bank_mask:0xf")
    a("v_mul_f32 v11, 0xbfb8aa3b, v11")
    a("v_exp_f32 v11, v11")
    a("v_add_f32 v11, 1.0, v11")
    a("v_rcp_f32 v11, v11")
    a("v_lshlrev_b32 v9, 2, v9")
    a("s_lshl_b32 s13, s6, 8")
    a("v_cmp_eq_u32 vcc, 0, v5")
    a("s_and_saveexec_b64 s[14:15], vcc")
    a("buffer_store_dword v11, v9, %s, s13 offen", sr(SGT, 4))
    a("s_mov_b64 exec, s[14:15]")
    if STAMP:
        a("s_waitcnt vmcnt(0)")
    stamp(a, 3)
    stamp_out(a, 0)
    a("K1_end:")
    a("s_endpgm")
    return a

TP = 528
TCH = 62 * TP
L_TAB = 0
L_K = 2 * TCH
KCH = 64 + 4096
L_U = L_K + 2 * KCH
UCH = 512 + 4096
L_CY = L_U + 2 * UCH
CYCH = 129 * 16
K2_LDS = L_CY + 2 * CYCH

def cmul(a, d, x, y):
    a("v_pk_mul_f32 %s, %s, %s op_sel_hi:[1,0]", vr(d, 2), vr(x, 2), vr(y, 2))
    a("v_pk_fma_f32 %s, %s, %s, %s op_sel:[1,1,0] op_sel_hi:[0,1,1] neg_lo:[1,0,0]", vr(d, 2), vr(x, 2), vr(y, 2), vr(d, 2))

def gen_k2():
    a = Asm()
    prologue(a, "K2_end")
    SUT, SY = 52, 56
    a.srd(SUT, P_WS, UT_BYTES, add=WS_UT)
    a.srd(SY, P_WS, Y_BYTES, add=WS_Y)
    a("s_lshr_b32 s6, s3, 2")
    a("s_bfe_u32 s7, s3, 0x10001")
    a("s_and_b32 s8, s3, 1")
    a("s_lshl_b32 s9, s2, 1")
    a("s_add_u32 s9, s9, s6")
    a("s_lshl_b32 s10, s9, 8")
    a("s_lshl_b32 s11, s8, 7")
    a("s_add_u32 s10, s10, s11")
    a("v_lshl_add_u32 v2, v1, 1, s10")
    a("s_lshl_b32 s10, s9, 1")
    a("v_mov_b32 v3, s10")
    PR = 4
    for i in range(7):
        a("v_mov_b32 v%d, 0", PR + i)
    a("global_load_short_d16_hi v10, v3, %s", sr(P_LDT, 2))
    for i, p in enumerate([P_ARE, P_AIM, P_BRE, P_BIM, P_CRE, P_CIM]):
        a("global_load_short_d16_hi v%d, v2, %s", PR + i, sr(p, 2))
    a("v_lshlrev_b32 v11, 5, v1")
    a("s_lshl_b32 s10, s2, 13")
    a("s_and_b32 s11, s3, 3")
    a("s_lshl_b32 s12, s11, 11")
    a("s_add_u32 s10, s10, s12")
    a("s_lshl_b32 s12, s6, 4")
    a("s_add_u32 s10, s10, s12")
    a("s_mul_i32 s12, s6, %d", UCH)
    a("s_lshl_b32 s11, s11, 10")
    a("s_add_u32 s12, s12, s11")
    a("s_add_u32 m0, s12, %d", L_U + 512)
    a("buffer_load_dwordx4 v11, %s, s10 offen lds", sr(SUT, 4))
    for i in range(4):
        a("v_mov_b32 v%d, 0", 12 + i)
    a("s_mul_i32 s10, s6, %d", UCH)
    a("v_and_b32 v16, 31, v1")
    a("v_lshl_add_u32 v16, v16, 4, s10")
    a("ds_write_b128 v16, v[12:15] offset:%d", L_U) if L_U < 65536 else None
    if L_U >= 65536:
        a("v_add_u32 v16, %d, v16", L_U)
        a("ds_write_b128 v16, v[12:15]")
    a("s_mul_i32 s10, s6, %d", KCH)
    a("s_add_u32 s10, s10, %d", L_K)
    a("v_and_b32 v16, 3, v1")
    a("v_lshl_add_u32 v16, v16, 4, s10")
    a("ds_write_b128 v16, v[12:15]")
    a("s_mul_i32 s10, s6, %d", CYCH)
    a("s_add_u32 s10, s10, %d", L_CY)
    a("v_mov_b32 v16, s10")
    a("ds_write_b128 v16, v[12:15]")
    a("s_cmp_eq_u32 s7, 1")
    a("s_cselect_b64 s[14:15], -1, 0")
    a("s_mul_i32 s10, s6, %d", TCH)
    a("s_mul_i32 s11, s7, %d", 31 * TP)
    a("s_add_u32 s10, s10, s11")
    a("s_lshl_b32 s11, s8, 8")
    a("s_add_u32 s10, s10, s11")
    a("s_add_u32 m0, s10, %d", L_TAB)
    a("s_waitcnt vmcnt(1)")
    stamp(a, 0)
    a("s_mov_b32 s10, 0x3fb8aa3b")
    a("s_mov_b32 s11, 0x32a57060")
    a("v_mul_f32 v12, s10, v10")
    a("v_fma_f32 v13, v10, s10, -v12")
    a("v_fma_f32 v13, v10, s11, v13")
    a("v_exp_f32 v12, v12")
    a("v_mul_f32 v13, 0x3f317218, v13")
    a("v_fma_f32 v12, v12, v13, v12")
    a("v_cvt_pk_bf16_f32 v12, v12, v12")
    a("v_and_b32 v12, 0xffff0000, v12")
    a("v_mul_f32 v4, v12, v4")
    a("v_mul_f32 v5, v12, v5")
    a("v_mul_f32 v6, v12, v6")
    a("v_mul_f32 v7, v12, v7")
    a("v_mul_f32 v4, s10, v4")
    a("v_mul_f32 v5, 0.15915494, v5")
    W = 14
    cmul(a, W, 8, 6)
    E1, E2, E4, E8, E128, E256, E512 = 16, 18, 20, 22, 24, 26, 28
    def edirect(d, p):
        if p == 1:
            a("v_exp_f32 v10, v4")
            a("v_fract_f32 v11, v5")
        else:
            a("v_mul_f32 v10, %s, v4", p)
            a("v_mul_f32 v11, %s, v5", p)
            a("v_exp_f32 v10, v10")
            a("v_fract_f32 v11, v11")
        a("v_cos_f32 v%d, v11", d)
        a("v_sin_f32 v%d, v11", d + 1)
        a("v_mul_f32 v%d, v10, v%d", d, d)
        a("v_mul_f32 v%d, v10, v%d", d + 1, d + 1)
    edirect(E1, 1)
    edirect(E128, "0x43000000")
    cmul(a, E2, E1, E1); cmul(a, E256, E128, E128)
    cmul(a, E4, E2, E2); cmul(a, E512, E256, E256)
    cmul(a, E8, E4, E4)
    P, X0, X1, R0, R1, T = 30, 32, 34, 36, 38, 40
    a("v_cndmask_b32 v%d, v%d, v%d, s[14:15]", P, E1, E2)
    a("v_cndmask_b32 v%d, v%d, v%d, s[14:15]", P + 1, E1 + 1, E2 + 1)
    a("v_cndmask_b32 v%d, 1.0, v%d, s[14:15]", X0, E128)
    a("v_cndmask_b32 v%d, 0, v%d, s[14:15]", X0 + 1, E128 + 1)
    a("v_cndmask_b32 v%d, 1.0, v%d, s[14:15]", E256, E256)
    a("v_cndmask_b32 v%d, 0, v%d, s[14:15]", E256 + 1, E256 + 1)
    RB = 42
    cmul(a, RB, W, E256)
    tcnt = [0]
    def emit(row, x, neg):
        t = 48 + (tcnt[0] % 8); tcnt[0] += 1
        a("v_cvt_pk_bf16_f32 v%d, v%d, %sv%d", t, x, "-" if neg else "", x + 1)
        a("ds_write_addtid_b32 v%d offset:%d", t, row * TP)
    Y0, Z0, Z2 = 44, 46, 44
    rows = []
    cur = RB
    rows.append((None, RB, None, 0))
    for j in range(1, 8):
        d = R0 if j % 2 else R1
        rows.append((d, cur, P, j)); cur = d
    rows.append((Y0, RB, E512, 8))
    rows.append((R1, Y0, E4, 9))
    rows.append((R0, Y0, E8, 10))
    rows.append((Z0, Y0, E512, 11))
    rows.append((R1, Z0, E8, 12))
    rows.append((Z2, Z0, E512, 13))
    rows.append((R0, Z2, E8, 14))
    cols = [(None, X0, None, 0)]
    cur = X0
    for j in range(1, 16):
        d = X1 if j % 2 else X0
        cols.append((d, cur, E8, j)); cur = d
    for j in range(16):
        d, s, m, ri = cols[j]
        if d is not None: cmul(a, d, s, m)
        if j < 15:
            d2, s2, m2, ri2 = rows[j]
            if d2 is not None: cmul(a, d2, s2, m2)
        emit(ri, d if d is not None else s, False)
        if j < 15:
            emit(16 + ri2, d2 if d2 is not None else s2, True)
    a("s_waitcnt vmcnt(0) lgkmcnt(0)")
    a("s_barrier")
    stamp(a, 1)
    a("s_cmp_ge_u32 s3, 2")
    a("s_cbranch_scc1 K2_kdone")
    a("v_and_b32 v2, 31, v1")
    a("v_lshrrev_b32 v3, 5, v1")
    a("v_lshrrev_b32 v4, 4, v2")
    a("v_mul_u32_u24 v4, 31, v4")
    a("v_and_b32 v5, 15, v2")
    a("v_add_u32 v4, v4, v5")
    a("v_mul_u32_u24 v4, %d, v4", TP)
    a("v_lshl_add_u32 v4, v3, 4, v4")
    a("s_mul_i32 s10, s3, %d", TCH)
    a("s_add_u32 s10, s10, %d", L_TAB)
    a("v_add_u32 v4, s10, v4")
    a("v_lshrrev_b32 v5, 3, v2")
    a("v_and_b32 v6, 3, v2")
    a("v_lshl_add_u32 v5, v5, 2, v6")
    a("v_bfe_u32 v6, v2, 2, 1")
    a("v_mov_b32 v7, 0x76543210")
    a("v_mov_b32 v8, 0x43222100")
    a("v_cmp_eq_u32 vcc, 1, v6")
    a("v_cndmask_b32 v7, v7, v8, vcc")
    a("v_lshlrev_b32 v8, 2, v5")
    a("v_lshrrev_b32 v7, v8, v7")
    a("v_and_b32 v7, 15, v7")
    a("v_min_u32 v8, 14, v5")
    a("v_cmp_gt_u32 vcc, 8, v5")
    a("v_cndmask_b32 v7, v8, v7, vcc")
    a("v_mul_u32_u24 v6, 31, v6")
    a("v_add3_u32 v7, v7, v6, 16")
    a("v_mul_u32_u24 v7, %d, v7", TP)
    a("v_lshl_add_u32 v7, v3, 4, v7")
    a("v_add_u32 v7, s10, v7")
    for ks in range(16):
        a("ds_read_b128 %s, v7 offset:%d", vr(64 + 8 * ks, 4), ks * 32)
        a("ds_read_b128 %s, v4 offset:%d", vr(68 + 8 * ks, 4), ks * 32)
        if ks >= 6:
            k2 = ks - 6
            a("s_waitcnt lgkmcnt(12)")
            a("v_mfma_f32_32x32x16_bf16 v[16:31], %s, %s, %s", vr(64 + 8 * k2, 4), vr(68 + 8 * k2, 4), "v[16:31]" if k2 else "0")
    for k2 in range(10, 16):
        a("s_waitcnt lgkmcnt(%d)", 2 * (15 - k2))
        a("v_mfma_f32_32x32x16_bf16 v[16:31], %s, %s, v[16:31]", vr(64 + 8 * k2, 4), vr(68 + 8 * k2, 4))
    a("v_and_b32 v5, 1, v1")
    a("v_cmp_eq_u32 vcc, 1, v5")
    a("s_mul_i32 s10, s3, %d", KCH)
    a("s_add_u32 s10, s10, %d", L_K + 64)
    a("v_lshl_add_u32 v5, v1, 4, s10")
    D = 16
    for i in range(4):
        a("v_cvt_pk_bf16_f32 v%d, v%d, v%d", 32 + i, D + 2 * i, D + 2 * i + 1)
    a("ds_write_b128 v5, v[32:35]")
    for i, (x, y) in enumerate([(8, 8), (8, 9), (9, 9), (10, 10)]):
        a("v_cvt_pk_bf16_f32 v%d, v%d, v%d", 36 + i, D + x, D + y)
    a("ds_write_b128 v5, v[36:39] offset:1024")
    for p, (x0, x8) in enumerate([(11, 12), (13, 14)]):
        b = 40 + 4 * p
        a("v_cndmask_b32 v6, v%d, v%d, vcc", D + x0, D + x8)
        a("v_cvt_pk_bf16_f32 v%d, v%d, v%d", b, D + x0, D + x0)
        a("v_cvt_pk_bf16_f32 v%d, v%d, v%d", b + 1, D + x0, D + x0)
        a("v_cvt_pk_bf16_f32 v%d, v6, v%d", b + 2, D + x8)
        a("v_cvt_pk_bf16_f32 v%d, v%d, v%d", b + 3, D + x8, D + x8)
        a("ds_write_b128 v5, %s offset:%d", vr(b, 4), 2048 + 1024 * p)
    a("s_waitcnt lgkmcnt(0)")
    a("K2_kdone:")
    a("s_barrier")
    stamp(a, 2)
    a("s_cmp_ge_u32 s3, 4")
    a("s_cbranch_scc1 K2_idle")
    a("s_lshr_b32 s6, s3, 1")
    VA, VB, VC, VY = 2, 3, 4, 5
    a("v_lshrrev_b32 v6, 5, v1")
    a("v_lshlrev_b32 v%d, 6, v6", VA)
    a("v_and_b32 v7, 1, v1")
    a("v_lshl_add_u32 v%d, v7, 5, v%d", VA, VA)
    a("v_bfe_u32 v7, v1, 4, 1")
    a("v_lshl_add_u32 v%d, v7, 4, v%d", VA, VA)
    a("v_bfe_u32 v7, v1, 1, 1")
    a("v_lshl_add_u32 v%d, v7, 3, v%d", VA, VA)
    a("v_bfe_u32 v7, v1, 2, 2")
    a("v_lshlrev_b32 v7, 3, v7")
    a("v_sub_u32 v%d, v%d, v7", VA, VA)
    a("s_mul_i32 s10, s6, %d", KCH)
    a("s_add_u32 s10, s10, %d", L_K + 32)
    a("v_add_u32 v%d, s10, v%d", VA, VA)
    a("v_and_b32 v7, 31, v1")
    a("v_lshlrev_b32 v%d, 4, v7", VB)
    a("v_lshlrev_b32 v8, 6, v6")
    a("v_sub_u32 v%d, v%d, v8", VB, VB)
    a("s_mul_i32 s10, s6, %d", UCH)
    a("s_add_u32 s10, s10, %d", L_U + 512 - 384)
    a("v_add_u32 v%d, s10, v%d", VB, VB)
    a("v_lshrrev_b32 v7, 2, v7")
    a("v_lshl_add_u32 v7, v7, 1, v6")
    a("s_mul_i32 s10, s6, %d", CYCH)
    a("s_add_u32 s10, s10, %d", L_CY)
    a("v_lshl_add_u32 v%d, v7, 4, s10", VC)
    a("v_lshlrev_b32 v%d, 5, v7", VY)
    a("s_lshl_b32 s11, s2, 1")
    a("s_add_u32 s11, s11, s6")
    a("s_lshl_b32 s11, s11, 12")
    a("s_and_b32 s10, s3, 1")
    a("s_cmp_eq_u32 s10, 1")
    a("s_cbranch_scc1 K2_set1")
    BF = 112
    AF = 8
    AC = 24
    for si, tiles in enumerate([[0, 3, 4, 7], [1, 2, 5, 6]]):
        if si == 1: a("K2_set1:")
        sched = []
        maxd = 4 * tiles[-1] + 3
        for dl in range(maxd + 1):
            for ti, jt in enumerate(tiles):
                if dl <= 4 * jt + 3:
                    sched.append((dl, ti, jt))
        loads = []
        seenA, seenB = set(), set()
        for pos, (dl, ti, jt) in enumerate(sched):
            if dl not in seenA:
                seenA.add(dl); loads.append(("A", dl, pos))
            e = 4 * jt - dl
            if e not in seenB:
                seenB.add(e); loads.append(("B", e, pos))
        lastuseA = {}
        for pos, (dl, ti, jt) in enumerate(sched): lastuseA[dl] = pos
        def ld_instrs(kind, idx):
            if kind == "A":
                r = AF + 4 * (idx % 4)
                return ["ds_read_b64_tr_b16 %s, v%d offset:%d" % (vr(r + 2 * hf, 2), VA, 128 * idx + 32 * (1 - hf)) for hf in range(2)]
            return ["ds_read_b128 %s, v%d offset:%d" % (vr(BF + 4 * (idx + 3), 4), VB, 128 * (idx + 3))]
        issued = []
        li = 0
        LOOK = 5
        fill = []
        done_tiles = []
        def issue_upto(pos):
            nonlocal li
            while li < len(loads) and loads[li][2] <= pos + LOOK:
                kind, idx, fp = loads[li]
                if kind == "A" and idx >= 4 and lastuseA[idx - 4] >= pos:
                    break
                for ins in ld_instrs(kind, idx):
                    a(ins); issued.append((kind, idx))
                li += 1
        def recomb(ti):
            b = AC + 20 * ti
            L = []
            L.append("v_mov_b32_dpp v%d, v%d quad_perm:[1,1,3,3] row_mask:0xf bank_mask:0xf" % (b + 16, b + 15))
            for q in range(15, 0, -1):
                L.append("v_add_f32_dpp v%d, v%d, v%d quad_perm:[1,1,3,3] row_mask:0xf bank_mask:0xf" % (b + q, b + q - 1, b + q))
            L.append("v_mov_b32_dpp v%d, v%d quad_perm:[2,2,2,2] row_mask:0xf bank_mask:0xf" % (b + 18, b + 16))
            L.append("v_mov_b32_dpp v%d, v%d quad_perm:[2,2,2,2] row_mask:0xf bank_mask:0xf" % (b + 17, b + 15))
            for q in range(16, 1, -1):
                L.append("v_add_f32_dpp v%d, v%d, v%d quad_perm:[2,2,2,2] row_mask:0xf bank_mask:0xf" % (b + q, b + q - 2, b + q))
            return L
        started = set()
        hold = 0
        for pos, (dl, ti, jt) in enumerate(sched):
            issue_upto(pos)
            e = 4 * jt - dl
            lastneeded = max(i for i, k in enumerate(issued) if k == ("A", dl) or k == ("B", e))
            cnt = len(issued) - 1 - lastneeded
            a("s_waitcnt lgkmcnt(%d)", min(cnt, 15))
            d = vr(AC + 20 * ti, 16)
            a("v_mfma_f32_32x32x16_bf16 %s, %s, %s, %s", d, vr(AF + 4 * (dl % 4), 4), vr(BF + 4 * (e + 3), 4), d if ti in started else "0")
            started.add(ti)
            if hold > 0:
                hold -= 1
            else:
                for _ in range(4):
                    if fill: a(fill.pop(0))
            if dl == 4 * jt + 3:
                if not fill: hold = 2
                fill += recomb(ti)
        for f in fill: a(f)
        a("s_mov_b32 s12, 0x11111111")
        a("s_mov_b32 s13, 0x11111111")
        a("s_mov_b64 exec, s[12:13]")
        for ti, jt in enumerate(tiles):
            a("ds_write_b128 v%d, %s offset:%d", VC, vr(AC + 20 * ti + 16, 4), 256 * jt + 16)
        a("s_waitcnt lgkmcnt(0)")
        stamp(a, 3)
        a("s_barrier")
        for ti, jt in enumerate(tiles):
            a("ds_read_b128 %s, v%d offset:%d", vr(AF + 4 * ti, 4), VC, 256 * jt)
        for ti, jt in enumerate(tiles):
            b = AC + 20 * ti
            a("s_waitcnt lgkmcnt(%d)", 3 - ti)
            for q in range(3):
                a("v_add_f32 v%d, v%d, v%d", b + q, b + q, AF + 4 * ti + q)
            for q in range(8):
                a("v_cvt_pk_bf16_f32 v%d, v%d, v%d", BF + 8 * ti + q, b + 2 * q, b + 2 * q + 1)
            for o in range(2):
                a("buffer_store_dwordx4 %s, v%d, %s, s11 offen offset:%d", vr(BF + 8 * ti + 4 * o, 4), VY, sr(SY, 4), 512 * jt + 16 * o)
        a("s_mov_b64 exec, -1")
        if STAMP:
            a("s_waitcnt vmcnt(0)")
        stamp(a, 4)
        stamp_out(a, 1)
        a("s_endpgm")
    a("K2_idle:")
    a("s_barrier")
    a("K2_end:")
    a("s_endpgm")
    return a

K3_LY = 131072
K3_LR = K3_LY + 8192
K3_LDS = K3_LR + 16384
def gen_k3():
    a = Asm()
    prologue(a, "K3_end")
    SW, SH, SY, SX, SO, SGT = 52, 56, 60, 64, 68, 72
    a.srd(SW, P_WD, 1792 * 1024)
    a.srd(SH, P_WS, H_BYTES, add=WS_H)
    a.srd(SY, P_WS, Y_BYTES, add=WS_Y)
    a.srd(SX, P_U, 2048 * 1024)
    a.srd(SO, P_OUT, 2048 * 1024)
    a.srd(SGT, P_WS, G_BYTES, add=WS_G)
    a("s_lshl_b32 s6, s4, 2")
    a("s_and_b32 s7, s5, 3")
    a("s_add_u32 s6, s6, s7")
    a("s_lshr_b32 s7, s5, 2")
    a("s_lshr_b32 s8, s3, 2")
    a("s_and_b32 s9, s3, 3")
    VW = 4
    VH = 8
    VR = 10
    T0, T1, T2, T3 = 18, 19, 20, 21
    a("s_mul_i32 s10, s8, 896")
    a("s_lshl_b32 s11, s9, 5")
    a("s_add_u32 s10, s10, s11")
    a("s_lshl_b32 s10, s10, 10")
    a("s_lshl_b32 s11, s7, 7")
    a("s_add_u32 s10, s10, s11")
    a("v_lshrrev_b32 v%d, 3, v1", T0)
    a("v_lshlrev_b32 v%d, 10, v%d", T0, T0)
    a("v_bfe_u32 v%d, v1, 4, 1", T1)
    a("v_lshlrev_b32 v%d, 1, v%d", T1, T1)
    a("v_and_b32 v%d, 7, v1", T2)
    a("v_xor_b32 v%d, v%d, v%d", T2, T2, T1)
    a("v_lshl_add_u32 v%d, v%d, 4, v%d", T0, T2, T0)
    a("v_add_u32 v%d, s10, v%d", VW, T0)
    a("v_xor_b32 v%d, 64, v%d", VW + 1, VW)
    a("v_add_u32 v%d, 0x2000, v%d", VW + 1, VW + 1)
    a("v_add_u32 v%d, 0x4000, v%d", VW + 2, VW)
    a("v_add_u32 v%d, 0x4000, v%d", VW + 3, VW + 1)
    a("s_lshl_b32 s12, s3, 12")
    a("v_lshlrev_b32 v%d, 4, v1", VH)
    a("s_lshl_b32 s14, s6, 2")
    a("s_add_u32 s14, s14, s9")
    a("s_mul_i32 s14, s14, 56")
    a("s_mul_i32 s15, s8, 28")
    a("s_add_u32 s14, s14, s15")
    a("s_lshl_b32 s14, s14, 10")
    HF = 128
    vm = []
    def dma(rd, i):
        a("s_add_u32 m0, s12, %d", (rd % 4) * 32768 + i * 1024)
        a("s_mov_b32 s13, %d", rd * 131072)
        a("buffer_load_dwordx4 v%d, %s, s13 offen lds", VW + i, sr(SW, 4))
        vm.append(("W", rd))
    def hload(rd):
        a("s_add_u32 s13, s14, %d", rd * 4096)
        for j in range(4):
            a("buffer_load_dwordx4 %s, v%d, %s, s13 offen offset:%d", vr(HF + 16 * rd + 4 * j, 4), VH, sr(SH, 4), j * 1024)
            vm.append(("H", rd * 4 + j))
    for rd in range(4):
        for i in range(4): dma(rd, i)
        hload(rd)
    for rd in range(4, 7): hload(rd)
    a("v_lshrrev_b32 v%d, 3, v1", T0)
    a("v_lshlrev_b32 v%d, 12, v%d", T0, T0)
    a("v_and_b32 v%d, 7, v1", T1)
    a("v_lshl_add_u32 v%d, v%d, 4, v%d", T0, T1, T0)
    a("s_lshl_b32 s10, s7, 3")
    a("s_add_u32 s10, s10, s3")
    a("s_lshl_b32 s10, s10, 15")
    a("s_lshl_b32 s11, s6, 7")
    a("s_add_u32 s10, s10, s11")
    a("s_lshl_b32 s11, s3, 10")
    a("s_add_u32 m0, s11, %d", K3_LY)
    a("buffer_load_dwordx4 v%d, %s, s10 offen lds", T0, sr(SY, 4))
    vm.append(("Y", 0))
    VO = 22
    EU, ED, EG = 24, 28, 32
    a("v_and_b32 v%d, 15, v1", T1)
    a("v_lshrrev_b32 v%d, 4, v1", T2)
    a("v_lshlrev_b32 v%d, 3, v%d", T3, T2)
    a("v_lshl_add_u32 v%d, v%d, 10, v%d", VO, T1, T3)
    a("s_lshl_b32 s50, s6, 2")
    a("s_add_u32 s50, s50, s9")
    a("s_lshl_b32 s51, s50, 6")
    a("s_lshl_b32 s50, s50, 14")
    a("s_lshl_b32 s10, s7, 7")
    a("s_lshl_b32 s11, s8, 6")
    a("s_add_u32 s10, s10, s11")
    a("s_add_u32 s50, s50, s10")
    for m in range(2):
        a("buffer_load_dwordx2 %s, v%d, %s, s50 offen offset:%d", vr(EU + 2 * m, 2), VO, sr(SX, 4), 32 * m)
        vm.append(("E", 0))
    a("v_add_u32 v%d, s10, v%d", T3, T3)
    for m in range(2):
        a("global_load_dwordx2 %s, v%d, %s offset:%d", vr(ED + 2 * m, 2), T3, sr(P_DSK, 2), 32 * m)
        vm.append(("E", 0))
    a("v_lshlrev_b32 v%d, 2, v%d", T1, T1)
    a("buffer_load_dword v%d, v%d, %s, s51 offen", EG, T1, sr(SGT, 4))
    vm.append(("E", 0))
    a("v_bfe_u32 v%d, v1, 2, 2", T0)
    a("v_lshl_add_u32 v%d, v%d, 3, v%d", T0, T2, T0)
    a("v_lshlrev_b32 v%d, 7, v%d", T0, T0)
    a("v_and_b32 v%d, 3, v1", T1)
    a("v_lshl_add_u32 v%d, v%d, 3, v%d", T0, T1, T0)
    a("v_bfe_u32 v%d, v1, 3, 2", T1)
    a("s_lshl_b32 s10, s8, 1")
    a("v_xor_b32 v%d, s10, v%d", T1, T1)
    a("v_lshl_add_u32 v%d, v%d, 5, v%d", T0, T1, T0)
    a("s_lshl_b32 s10, s8, 14")
    a("v_add_u32 v%d, s10, v%d", VR, T0)
    for m in range(1, 4):
        a("v_xor_b32 v%d, %d, v%d", VR + m, m << 5, VR)
    for m in range(4):
        a("v_add_u32 v%d, 0x10000, v%d", VR + 4 + m, VR + m)
    VYR = 23
    a("v_lshrrev_b32 v%d, 2, v1", T0)
    a("v_lshlrev_b32 v%d, 7, v%d", T0, T0)
    a("v_and_b32 v%d, 3, v1", T1)
    a("v_lshl_add_u32 v%d, v%d, 3, v%d", T0, T1, T0)
    a("s_lshl_b32 s10, s8, 12")
    a("s_lshl_b32 s11, s9, 5")
    a("s_add_u32 s10, s10, s11")
    a("s_add_u32 s10, s10, %d", K3_LY)
    a("v_add_u32 v%d, s10, v%d", VYR, T0)
    AFR = 40
    ACC = 72
    def vmwait(tags):
        last = max(i for i, t in enumerate(vm) if t in tags)
        return len(vm) - 1 - last
    def reads(step):
        rd, ks = step // 4, step % 4
        slot = rd % 4
        f = AFR + (step % 2) * 16
        L = []
        for m in range(4):
            for hf in range(2):
                L.append("ds_read_b64_tr_b16 %s, v%d offset:%d" % (vr(f + 4 * m + 2 * hf, 2), VR + m + (4 if slot >= 2 else 0), (slot % 2) * 32768 + ks * 4096 + hf * 512))
        return L
    stamp(a, 0)
    a("s_waitcnt vmcnt(%d)", vmwait([("W", 0)]))
    a("s_barrier")
    stamp(a, 1)
    for r in reads(0): a(r)
    pend = []
    for step in range(28):
        rd, ks = step // 4, step % 4
        f = AFR + (step % 2) * 16
        nxt = reads(step + 1) if step < 27 else []
        a("s_waitcnt vmcnt(%d) lgkmcnt(0)", min(63, vmwait([("H", step)])))
        for m in range(4):
            d = vr(ACC + 4 * m, 4)
            a("v_mfma_f32_16x16x32_bf16 %s, %s, %s, %s", d, vr(f + 4 * m, 4), vr(HF + 4 * step, 4), d if step else "0")
            for r in nxt[2 * m:2 * m + 2]: a(r)
        for _ in range(2):
            if pend: dma(*pend.pop(0))
        if ks == 2 and rd < 6:
            tags = [("W", rd + 1)]
            if rd == 5: tags += [("Y", 0)]
            a("s_waitcnt vmcnt(%d) lgkmcnt(0)", vmwait(tags))
            a("s_barrier")
            if rd + 4 <= 6:
                pend = [(rd + 4, i) for i in range(4)]
    stamp(a, 2)
    EY = 34
    for m in range(2):
        a("ds_read_b64_tr_b16 %s, v%d offset:%d", vr(EY + 2 * m, 2), VYR, m * 2048)
    a("s_lshl_b32 s10, s3, 11")
    a("s_add_u32 s10, s10, %d", K3_LR)
    a("v_add_u32 v%d, s10, v%d", T0, VH)
    a("v_xor_b32 v%d, 0x2000, v%d", T1, T0)
    for m in range(2):
        a("ds_write_b128 v%d, %s offset:%d", T0, vr(ACC + 8 + 4 * m, 4), 1024 * m)
    a("s_waitcnt vmcnt(0) lgkmcnt(0)")
    a("s_barrier")
    for m in range(2):
        a("ds_read_b128 %s, v%d offset:%d", vr(ACC + 8 + 4 * m, 4), T1, 1024 * m)
    A0 = 40
    for j in range(4):
        for hi in range(2):
            o = A0 + 2 * j + hi
            if hi == 0:
                a("v_lshlrev_b32 v%d, 16, v%d", T2, EU + j)
                a("v_lshlrev_b32 v%d, 16, v%d", T3, ED + j)
                a("v_lshlrev_b32 v%d, 16, v%d", o, EY + j)
            else:
                a("v_and_b32 v%d, 0xffff0000, v%d", T2, EU + j)
                a("v_and_b32 v%d, 0xffff0000, v%d", T3, ED + j)
                a("v_and_b32 v%d, 0xffff0000, v%d", o, EY + j)
            a("v_fmac_f32 v%d, v%d, v%d", o, T2, T3)
            a("v_mul_f32 v%d, v%d, v%d", o, EG, o)
    a("v_sub_f32 v%d, 1.0, v%d", EG, EG)
    a("s_waitcnt lgkmcnt(0)")
    for q in range(8):
        a("v_add_f32 v%d, v%d, v%d", ACC + q, ACC + q, ACC + 8 + q)
        a("v_fmac_f32 v%d, v%d, v%d", A0 + q, EG, ACC + q)
    for j in range(4):
        a("v_cvt_pk_bf16_f32 v%d, v%d, v%d", 48 + j, A0 + 2 * j, A0 + 2 * j + 1)
    for m in range(2):
        a("buffer_store_dwordx2 %s, v%d, %s, s50 offen offset:%d", vr(48 + 2 * m, 2), VO, sr(SO, 4), 32 * m)
    if STAMP:
        a("s_waitcnt vmcnt(0)")
    stamp(a, 3)
    stamp_out(a, 2)
    a("K3_end:")
    a("s_endpgm")
    return a

K3_LR = 147456
K3_LDS = K3_LR + 16384
hdr = open("gated_mix__ssm_conv_s4__glu_gated_bilinear__prompt.s.ref").read().split("\n")
hdr = [l for l in hdr if l.startswith(";") and "@launch" not in l and "Override" not in l and "grid=ceil" not in l]
k1, k2, k3 = gen_k1(), gen_k2(), gen_k3()
launch = hdr + [
    "; @launch kernel=k1_kernel grid=(256,1,1) block=(512,1,1) lds=147456",
    "; @launch kernel=k2_kernel grid=(256,1,1) block=(512,1,1) lds=%d" % K2_LDS,
    "; @launch kernel=k3_kernel grid=(256,1,1) block=(512,1,1) lds=%d" % K3_LDS,
]
print(wrap(launch, [("k1_kernel", k1, 256, 102, 256), ("k2_kernel", k2, 256, 102, 256), ("k3_kernel", k3, 256, 102, 256)]))
sys.stderr.write("nops: %d %d %d\n" % (k1.nops, k2.nops, k3.nops))
```

```python
import sys
from asmlib import *

STAMP = "--stamp" in sys.argv
def opt(name, default):
    for x in sys.argv:
        if x.startswith("--%s=" % name): return int(x.split("=")[1])
    return default

WS_H = 0
WS_UT = 8 << 20
WS_Y = 10 << 20
WS_G = 12 << 20
WS_F = (12 << 20) + 0x10000
WS_ST = 13 << 20
WS_BYTES = 14 << 20
F_A, F_H, F_Y, F_E = WS_F, WS_F + 0x1000, WS_F + 0x2000, WS_F + 0x4000

P_U, P_ARE, P_AIM, P_BRE, P_BIM, P_CRE, P_CIM, P_LDT = 16, 18, 20, 22, 24, 26, 28, 30
P_DSK, P_BX, P_WG, P_WU, P_WD, P_GW, P_OUT, P_DBG, P_WS = 32, 34, 36, 38, 40, 42, 44, 46, 48
SX, SG, SU, SWS, SW, SO = 52, 56, 60, 64, 68, 72
S_NONCE = 76
S_ISAUX = 77
S_SPIN = 78
S_TB, S_DB, S_KH, S_TQ, S_HB, S_OB = 80, 81, 82, 83, 84, 85
SPINMAX = 20000

BLK = 16384
XB = [0, 1, 2]
GB = [6, 8, 4]
TABB = 2
TP = 528
L_K = 0
KCH = 64 + 4096
L_CY = 2 * KCH
CYCH = 129 * 16
L_Uc = 6 * BLK
UCH = 512 + 4096

a = Asm()

def stamp(i):
    if not STAMP: return
    a("s_memtime s[94:95]")
    a("s_memrealtime s[92:93]")
    a("s_waitcnt lgkmcnt(0)")
    a("s_sub_u32 s94, s94, s98")
    a("v_writelane_b32 v255, s94, %d", i)
    a("v_writelane_b32 v255, s92, %d", i + 16)

def stamp_out():
    if not STAMP: return
    a("s_mov_b64 exec, -1")
    a("v_writelane_b32 v255, s96, 31")
    a("s_lshl_b32 s92, s2, 3")
    a("s_add_u32 s92, s92, s3")
    a("s_lshl_b32 s92, s92, 7")
    a("s_add_u32 s92, s92, %d", WS_ST)
    a("v_mbcnt_lo_u32_b32 v254, -1, 0")
    a("v_mbcnt_hi_u32_b32 v254, -1, v254")
    a("v_lshlrev_b32 v253, 2, v254")
    a("s_mov_b64 exec, 0xffffffff")
    a("buffer_store_dword v255, v253, %s, s92 offen", sr(SWS, 4))

def cmul(d, x, y):
    return ["v_pk_mul_f32 %s, %s, %s op_sel_hi:[1,0]" % (vr(d, 2), vr(x, 2), vr(y, 2)),
            "v_pk_fma_f32 %s, %s, %s, %s op_sel:[1,1,0] op_sel_hi:[0,1,1] neg_lo:[1,0,0]" % (vr(d, 2), vr(x, 2), vr(y, 2), vr(d, 2))]

KB = 160
KP = 204
S_HFM = 14
def kgen_setup():
    a("s_lshr_b32 s10, s3, 2")
    a("s_lshl_b32 s11, s2, 1")
    a("s_add_u32 s11, s11, s10")
    a("s_and_b32 s12, s3, 1")
    a("s_lshl_b32 s13, s11, 8")
    a("s_lshl_b32 s12, s12, 7")
    a("s_add_u32 s13, s13, s12")
    a("v_lshl_add_u32 v%d, v1, 1, s13", KB + 8)
    a("s_lshl_b32 s11, s11, 1")
    a("v_mov_b32 v%d, s11", KB + 9)
    for i in range(7):
        a("v_mov_b32 v%d, 0", KB + i)
    a("global_load_short_d16_hi v%d, v%d, %s", KB + 6, KB + 9, sr(P_LDT, 2))
    for i, p in enumerate([P_ARE, P_AIM, P_BRE, P_BIM, P_CRE, P_CIM]):
        a("global_load_short_d16_hi v%d, v%d, %s", KB + i, KB + 8, sr(p, 2))
    a("s_bitcmp1_b32 s3, 1")
    a("s_cselect_b64 s[14:15], -1, 0")
    return 7

def kgen_valu():
    L = []
    A_, B_, BR, BI, CR, CI, LD, T0, T1, T2 = [KB + i for i in range(10)]
    W, E1, E2, E4, E8, E128, E256, E512, P, X0, X1, R0, R1, RB, Y0, Z0 = [KB + 10 + 2 * i for i in range(16)]
    L.append("v_mul_f32 v%d, 0x3fb8aa3b, v%d" % (T0, LD))
    L.append("v_mov_b32 v%d, 0x3fb8aa3b" % T2)
    L.append("v_fma_f32 v%d, v%d, v%d, -v%d" % (T1, LD, T2, T0))
    L.append("v_fmac_f32 v%d, 0x32a57060, v%d" % (T1, LD))
    L.append("v_exp_f32 v%d, v%d" % (T0, T0))
    L.append("v_mul_f32 v%d, 0x3f317218, v%d" % (T1, T1))
    L.append("v_fmac_f32 v%d, v%d, v%d" % (T0, T0, T1))
    L.append("v_cvt_pk_bf16_f32 v%d, v%d, v%d" % (T0, T0, T0))
    L.append("v_and_b32 v%d, 0xffff0000, v%d" % (T0, T0))
    for r in (A_, B_, BR, BI):
        L.append("v_mul_f32 v%d, v%d, v%d" % (r, T0, r))
    L.append("v_mul_f32 v%d, 0x3fb8aa3b, v%d" % (A_, A_))
    L.append("v_mul_f32 v%d, 0.15915494, v%d" % (B_, B_))
    L += cmul(W, CR, BR)
    def ed(d, p):
        if p is None:
            L.append("v_exp_f32 v%d, v%d" % (T0, A_))
            L.append("v_fract_f32 v%d, v%d" % (T1, B_))
        else:
            L.append("v_mul_f32 v%d, %s, v%d" % (T0, p, A_))
            L.append("v_mul_f32 v%d, %s, v%d" % (T1, p, B_))
            L.append("v_exp_f32 v%d, v%d" % (T0, T0))
            L.append("v_fract_f32 v%d, v%d" % (T1, T1))
        L.append("v_cos_f32 v%d, v%d" % (d, T1))
        L.append("v_sin_f32 v%d, v%d" % (d + 1, T1))
        L.append("v_mul_f32 v%d, v%d, v%d" % (d, T0, d))
        L.append("v_mul_f32 v%d, v%d, v%d" % (d + 1, T0, d + 1))
    ed(E1, None)
    ed(E128, "0x43000000")
    def il(x, y):
        o = []
        for i in range(max(len(x), len(y))):
            if i < len(x): o.append(x[i])
            if i < len(y): o.append(y[i])
        return o
    L += il(cmul(E2, E1, E1) + cmul(E4, E2, E2) + cmul(E8, E4, E4), cmul(E256, E128, E128) + cmul(E512, E256, E256))
    L.append("v_cndmask_b32 v%d, v%d, v%d, s[14:15]" % (P, E1, E2))
    L.append("v_cndmask_b32 v%d, v%d, v%d, s[14:15]" % (P + 1, E1 + 1, E2 + 1))
    L.append("v_cndmask_b32 v%d, 1.0, v%d, s[14:15]" % (X0, E128))
    L.append("v_cndmask_b32 v%d, 0, v%d, s[14:15]" % (X0 + 1, E128 + 1))
    L.append("v_cndmask_b32 v%d, 1.0, v%d, s[14:15]" % (E256, E256))
    L.append("v_cndmask_b32 v%d, 0, v%d, s[14:15]" % (E256 + 1, E256 + 1))
    L += cmul(RB, W, E256)
    rows = [(None, RB, None)]
    cur = RB
    for j in range(1, 8):
        d = R0 if j % 2 else R1
        rows.append((d, cur, P)); cur = d
    Z2 = Y0
    rows += [(Y0, RB, E512), (R1, Y0, E4), (R0, Y0, E8), (Z0, Y0, E512), (R1, Z0, E8), (Z2, Z0, E512), (R0, Z2, E8)]
    cols = [(None, X0, None)]
    cur = X0
    for j in range(1, 16):
        d = X1 if j % 2 else X0
        cols.append((d, cur, E8)); cur = d
    LC, LR = [], []
    for j, (d, s, m) in enumerate(cols):
        if d is not None: LC += cmul(d, s, m)
        x = d if d is not None else s
        LC.append("v_cvt_pk_bf16_f32 v%d, v%d, v%d" % (KP + j, x, x + 1))
    for j, (d, s, m) in enumerate(rows):
        if d is not None: LR += cmul(d, s, m)
        x = d if d is not None else s
        LR.append("v_cvt_pk_bf16_f32 v%d, v%d, -v%d" % (KP + 16 + j, x, x + 1))
    L += il(LC, LR)
    return L

def kgen_m0():
    a("s_lshr_b32 s10, s3, 1")
    a("s_lshl_b32 s10, s10, 14")
    a("s_and_b32 s11, s3, 1")
    a("s_lshl_b32 s11, s11, 8")
    a("s_add_u32 m0, s10, s11")
def kgen_writes():
    return ["ds_write_addtid_b32 v%d offset:%d" % (KP + j, TABB * BLK + j * TP) for j in range(31)]

KA0, KA1, KBa, KW = KB, KB + 1, KB + 2, KB + 3
KF = KB + 8
KD = 236
def kmfma_addr():
    L = []
    T0, T1, T2 = KB + 4, KB + 5, KB + 6
    L.append("s_lshr_b32 s10, s3, 1")
    L.append("s_lshl_b32 s10, s10, 14")
    L.append("s_add_u32 s10, s10, %d" % (TABB * BLK))
    L.append("v_and_b32 v%d, 15, v1" % T0)
    L.append("v_lshrrev_b32 v%d, 4, v1" % T1)
    L.append("v_lshlrev_b32 v%d, 4, v%d" % (T1, T1))
    L.append("v_mul_u32_u24 v%d, %d, v%d" % (T2, TP, T0))
    L.append("v_add3_u32 v%d, v%d, v%d, s10" % (KBa, T2, T1))
    def lut(v): return sum(x << (4 * i) for i, x in enumerate(v))
    l0a = lut([0, 1, 2, 3, 4, 5, 6, 7]); l0b = lut([0, 0, 1, 2, 2, 2, 3, 4])
    l1 = lut([8, 8, 8, 9, 9, 9, 10, 10]); l2 = lut([11] * 5 + [12] * 3); l3 = lut([13] * 5 + [14] * 3)
    L.append("s_bitcmp1_b32 s3, 0")
    L.append("s_cselect_b32 s11, 0x%x, 0x%x" % (l2, l0a) if False else "s_mov_b32 s11, 0x%x" % l0a)
    L.append("s_cmov_b32 s11, 0x%x" % l2)
    L.append("s_mov_b32 s12, 0x%x" % l0b)
    L.append("s_cmov_b32 s12, 0x%x" % l2)
    L.append("s_mov_b32 s13, 0x%x" % l1)
    L.append("s_cmov_b32 s13, 0x%x" % l3)
    L.append("s_cselect_b64 s[14:15], -1, 0")
    L.append("s_lshr_b32 s10, s3, 2")
    L.append("s_lshl_b32 s10, s10, 15")
    L.append("s_add_u32 s10, s10, %d" % (TABB * BLK + 16 * TP))
    L.append("v_cmp_lt_u32 vcc, 7, v%d" % T0)
    L.append("v_mov_b32 v%d, s11" % KA0)
    L.append("v_mov_b32 v%d, s12" % T2)
    L.append("v_cndmask_b32 v%d, v%d, v%d, vcc" % (KA0, KA0, T2))
    L.append("v_and_b32 v%d, 7, v1" % T2)
    L.append("v_lshlrev_b32 v%d, 2, v%d" % (T2, T2))
    L.append("v_bfe_u32 v%d, v%d, v%d, 4" % (KA0, KA0, T2))
    L.append("v_bfe_u32 v%d, s13, v%d, 4" % (KA1, T2))
    L.append("v_lshrrev_b32 v%d, 3, v%d" % (T0, T0))
    L.append("v_lshl_add_u32 v%d, v%d, 14, v%d" % (T1, T0, T1))
    L.append("v_add_u32 v%d, s10, v%d" % (T1, T1))
    L.append("v_mov_b32 v%d, %d" % (T2, TP))
    L.append("v_mad_u32_u24 v%d, v%d, v%d, v%d" % (KA0, KA0, T2, T1))
    L.append("v_mad_u32_u24 v%d, v%d, v%d, v%d" % (KA1, KA1, T2, T1))
    L.append("s_lshr_b32 s10, s3, 2")
    L.append("s_mul_i32 s10, s10, %d" % KCH)
    L.append("s_and_b32 s11, s3, 1")
    L.append("s_lshl_b32 s11, s11, 11")
    L.append("s_add_u32 s10, s10, s11")
    L.append("s_and_b32 s11, s3, 2")
    L.append("s_lshl_b32 s11, s11, 7")
    L.append("s_add_u32 s10, s10, s11")
    L.append("s_add_u32 s10, s10, %d" % (L_K + 64))
    L.append("v_and_b32 v%d, 15, v1" % T0)
    L.append("v_lshlrev_b32 v%d, 4, v%d" % (T0, T0))
    L.append("v_lshrrev_b32 v%d, 5, v1" % T1)
    L.append("v_lshl_add_u32 v%d, v%d, 9, v%d" % (T0, T1, T0))
    L.append("v_bfe_u32 v%d, v1, 4, 1" % T1)
    L.append("v_lshl_add_u32 v%d, v%d, 3, v%d" % (T0, T1, T0))
    L.append("v_add_u32 v%d, s10, v%d" % (KW, T0))
    L.append("s_and_b32 s14, s14, 0xaaaa0000")
    L.append("s_and_b32 s15, s15, 0xaaaa0000")
    return L
def kmfma_reads(ks):
    f = KF + 12 * (ks % 3)
    return ["ds_read_b128 %s, v%d offset:%d" % (vr(f, 4), KA0, ks * 64),
            "ds_read_b128 %s, v%d offset:%d" % (vr(f + 8, 4), KBa, ks * 64),
            "ds_read_b128 %s, v%d offset:%d" % (vr(f + 4, 4), KA1, ks * 64)]
def kmfma(ks, m):
    f = KF + 12 * (ks % 3)
    d = vr(KD + 4 * m, 4)
    return "v_mfma_f32_16x16x32_bf16 %s, %s, %s, %s" % (d, vr(f + 4 * m, 4), vr(f + 8, 4), d if ks else "0")
def kmfma_finish():
    for m in range(2):
        d = KD + 4 * m
        a("v_cndmask_b32 v%d, v%d, v%d, s[14:15]", d, d, d + 1)
        a("v_cvt_pk_bf16_f32 v%d, v%d, v%d", d, d, d + 1)
        a("v_cvt_pk_bf16_f32 v%d, v%d, v%d", d + 1, d + 2, d + 3)
        a("ds_write_b64 v%d, %s offset:%d", KW, vr(d, 2), 1024 * m)

def run_kmfma(fill):
    for ks in range(2):
        for r in kmfma_reads(ks): a(r)
    for ks in range(8):
        if ks + 2 < 8:
            for r in kmfma_reads(ks + 2): a(r)
        a("s_waitcnt lgkmcnt(%d)", 3 * min(2, 7 - ks))
        for m in range(2):
            a(kmfma(ks, m))
            for _ in range(4):
                if fill:
                    f = fill.pop(0)
                    a(f) if isinstance(f, str) else f()
    for f in fill:
        a(f) if isinstance(f, str) else f()
    kmfma_finish()

L_U = 7 * BLK
VUL = 244
def zero_pads():
    T = KD
    for i in range(4): a("v_mov_b32 v%d, 0", T + i)
    a("s_lshr_b32 s10, s3, 2")
    a("s_mul_i32 s11, s10, %d", UCH)
    a("s_add_u32 s11, s11, %d", L_U)
    a("v_and_b32 v%d, 31, v1", T + 4)
    a("v_lshl_add_u32 v%d, v%d, 4, s11", T + 4, T + 4)
    a("ds_write_b128 v%d, %s", T + 4, vr(T, 4))
    a("s_mul_i32 s11, s10, %d", KCH)
    a("v_and_b32 v%d, 3, v1", T + 5)
    a("v_lshl_add_u32 v%d, v%d, 4, s11", T + 5, T + 5)
    a("ds_write_b128 v%d, %s offset:%d", T + 5, vr(T, 4), L_K)
    a("s_mul_i32 s11, s10, %d", CYCH)
    a("v_mov_b32 v%d, s11", T + 6)
    a("ds_write_b128 v%d, %s offset:%d", T + 6, vr(T, 4), L_CY)
def u_load():
    a("v_lshlrev_b32 v%d, 5, v1", VUL + 4)
    a("s_lshl_b32 s10, s2, 13")
    a("s_and_b32 s11, s3, 3")
    a("s_lshl_b32 s11, s11, 11")
    a("s_add_u32 s10, s10, s11")
    a("s_lshr_b32 s11, s3, 2")
    a("s_lshl_b32 s11, s11, 4")
    a("s_add_u32 s10, s10, s11")
    a("s_add_u32 s10, s10, %d", WS_UT)
    a("buffer_load_dwordx4 %s, v%d, %s, s10 offen sc1", vr(VUL, 4), VUL + 4, sr(SWS, 4))
def u_write():
    a("s_lshr_b32 s10, s3, 2")
    a("s_mul_i32 s10, s10, %d", UCH)
    a("s_and_b32 s11, s3, 3")
    a("s_lshl_b32 s11, s11, 10")
    a("s_add_u32 s10, s10, s11")
    a("s_add_u32 s10, s10, %d", L_U + 512)
    a("v_lshl_add_u32 v%d, v1, 4, s10", VUL + 4)
    a("ds_write_b128 v%d, %s", VUL + 4, vr(VUL, 4))

VN = 250
def nonce_issue():
    a("v_mov_b32 v%d, 0", VN + 2)
    a("global_load_dwordx2 %s, v%d, %s sc1", vr(VN, 2), VN + 2, sr(P_DBG, 2))
def nonce_check():
    ok = a.label("Lnok"); lp = a.label("Lnlp")
    a("s_mov_b32 s%d, 0", S_SPIN)
    a(lp + ":")
    a("v_readfirstlane_b32 s10, v%d", VN + 1)
    a("v_readfirstlane_b32 s%d, v%d", S_NONCE, VN)
    a("s_cmp_eq_u32 s10, 1")
    a("s_cbranch_scc1 %s", ok)
    a("s_add_u32 s%d, s%d, 1", S_SPIN, S_SPIN)
    a("s_cmp_ge_u32 s%d, %d", S_SPIN, SPINMAX)
    a("s_cbranch_scc1 %s", ok)
    a("s_sleep 2")
    a("global_load_dwordx2 %s, v%d, %s sc1", vr(VN, 2), VN + 2, sr(P_DBG, 2))
    a("s_waitcnt vmcnt(0)")
    a("s_branch %s", lp)
    a(ok + ":")
def poll_issue(n, sbase):
    a("v_min_u32 v%d, %d, v1", VN + 2, n - 1)
    a("v_lshlrev_b32 v%d, 2, v%d", VN + 2, VN + 2)
    a("buffer_load_dword v%d, v%d, %s, %s offen sc1", VN - 1, VN + 2, sr(SWS, 4), sbase)
def poll_check(sbase, sleep=2):
    ok = a.label("Lpok"); lp = a.label("Lplp")
    a("s_mov_b32 s%d, 0", S_SPIN)
    a(lp + ":")
    a("v_cmp_ne_u32 vcc, s%d, v%d", S_NONCE, VN - 1)
    a("s_nop 4")
    a("s_cbranch_vccz %s", ok)
    a("s_add_u32 s%d, s%d, 1", S_SPIN, S_SPIN)
    a("s_cmp_ge_u32 s%d, %d", S_SPIN, SPINMAX)
    a("s_cbranch_scc1 %s", ok)
    a("s_sleep %d", sleep)
    a("buffer_load_dword v%d, v%d, %s, %s offen sc1", VN - 1, VN + 2, sr(SWS, 4), sbase)
    a("s_waitcnt vmcnt(0)")
    a("s_branch %s", lp)
    a(ok + ":")
def flag_store(sbase):
    a("v_mov_b32 v%d, 0", VN)
    a("v_mov_b32 v%d, s%d", VN + 1, S_NONCE)
    a("s_mov_b64 exec, 1")
    a("buffer_store_dword v%d, v%d, %s, %s offen sc1", VN + 1, VN, sr(SWS, 4), sbase)
    a("s_mov_b64 exec, -1")

WBLK = {0: (8, 9), 1: (2, 3), 2: (4, 5), 3: (6, 1), 4: (8, 9), 5: (2, 3), 6: (4, 5)}
L_Y = 0
L_R = 7 * BLK

a("s_cmp_ge_u32 s2, 256")
a("s_cbranch_scc1 L_end")
if STAMP:
    a("s_memrealtime s[96:97]")
    a("s_memtime s[98:99]")
a("s_load_dwordx16 s[16:31], s[0:1], 0")
a("s_load_dwordx16 s[32:47], s[0:1], 64")
a("s_load_dwordx2 s[48:49], s[0:1], 128")
a("v_and_b32 v1, 63, v0")
a("v_lshrrev_b32 v2, 6, v0")
a("v_readfirstlane_b32 s3, v2")
a("s_and_b32 s4, s2, 7")
a("s_lshr_b32 s5, s2, 3")
if STAMP: a("v_mov_b32 v255, 0")
a("s_lshr_b32 s6, s4, 1")
a("s_lshl_b32 s6, s6, 2")
a("s_and_b32 s7, s5, 3")
a("s_add_u32 s6, s6, s7")
a("s_and_b32 s7, s4, 1")
a("s_mul_i32 s7, s7, 7")
a("s_lshr_b32 s8, s5, 2")
a("s_add_u32 s7, s7, s8")
a("s_and_b32 s8, s3, 1")
a("s_lshr_b32 s9, s3, 1")
VX0, VX1, VW0, VW1 = 4, 5, 6, 7
VXR = 8
VWA, VWB = 10, 12
T0, T1, T2, T3 = 14, 15, 16, 17
a("s_lshl_b32 s10, s6, 7")
a("s_lshl_b32 s11, s3, 4")
a("s_add_u32 s10, s10, s11")
a("s_lshl_b32 s10, s10, 10")
a("v_lshrrev_b32 v%d, 3, v1", T0)
a("v_lshlrev_b32 v%d, 10, v%d", T0, T0)
a("v_lshrrev_b32 v%d, 4, v1", T1)
a("v_and_b32 v%d, 7, v1", T2)
a("v_xor_b32 v%d, v%d, v%d", T2, T2, T1)
a("v_lshl_add_u32 v%d, v%d, 4, v%d", T0, T2, T0)
a("v_add_u32 v%d, s10, v%d", VX0, T0)
a("v_xor_b32 v%d, 64, v%d", VX1, VX0)
a("v_add_u32 v%d, 0x2000, v%d", VX1, VX1)
a("s_mul_i32 s10, s3, %d", 8 * 3584)
a("s_lshl_b32 s11, s7, 8")
a("s_add_u32 s10, s10, s11")
a("v_mul_u32_u24 v%d, 3584, v%d", T0, T1)
a("s_lshl_b32 s11, s8, 3")
a("v_lshl_or_b32 v%d, v%d, 1, s11", T2, T1)
a("v_and_b32 v%d, 15, v1", T3)
a("v_xor_b32 v%d, v%d, v%d", T2, T2, T3)
a("v_lshl_add_u32 v%d, v%d, 4, v%d", T0, T2, T0)
a("v_add_u32 v%d, s10, v%d", VW0, T0)
a("v_add_u32 v%d, %d, v%d", VW1, 4 * 3584, VW0)
a("s_lshl_b32 s86, s3, 11")
a("s_waitcnt lgkmcnt(0)")
a.srd(SX, P_U, 2048 * 1024)
a.srd(SG, P_WG, 512 * 3584)
a.srd(SU, P_WU, 512 * 3584)
a("s_cmp_ge_u32 s5, 28")
a("s_cselect_b32 s%d, 1, 0", S_ISAUX)
a("s_cbranch_scc1 L_aux")

vm = []
def vmwait(tags):
    idx = [i for i, t in enumerate(vm) if t in tags]
    return len(vm) - 1 - max(idx)
def dma1(stage, j):
    slot = stage % 3
    kind = j // 2; i = j % 2
    base = [XB[slot], GB[slot], GB[slot] + 1][kind] * BLK + i * 1024
    a("s_add_u32 m0, s86, %d", base)
    a("s_mov_b32 s87, %d", stage * 128 if kind == 0 else stage * 64 * 3584)
    a("buffer_load_dwordx4 v%d, %s, s87 offen lds", [VX0, VW0, VW0][kind] + i, sr([SX, SG, SU][kind], 4))
    vm.append(("G1", stage))
for j in range(6): dma1(0, j)
n = kgen_setup(); vm += [("KP", 0)] * n
for j in range(6): dma1(1, j)
def common_srds():
    a.srd(SWS, P_WS, WS_BYTES)
    a.srd(SW, P_WD, 1792 * 1024)
    a.srd(SO, P_OUT, 2048 * 1024)
common_srds()
a("v_and_b32 v%d, 15, v1", T0)
a("v_bfe_u32 v%d, v1, 1, 3", T2)
a("v_xor_b32 v%d, v%d, v%d", T2, T2, T1)
a("v_lshlrev_b32 v%d, 7, v%d", T0, T0)
a("v_lshl_add_u32 v%d, v%d, 4, v%d", T0, T2, T0)
a("s_lshl_b32 s10, s8, 13")
a("v_add_u32 v%d, s10, v%d", VXR, T0)
a("v_xor_b32 v%d, 64, v%d", VXR + 1, VXR)
a("v_bfe_u32 v%d, v1, 2, 2", T0)
a("v_lshl_add_u32 v%d, v%d, 3, v%d", T0, T1, T0)
a("v_lshlrev_b32 v%d, 8, v%d", T0, T0)
a("v_bfe_u32 v%d, v1, 2, 3", T2)
a("s_lshl_b32 s10, s9, 1")
a("v_xor_b32 v%d, s10, v%d", T2, T2)
a("v_lshl_add_u32 v%d, v%d, 5, v%d", T0, T2, T0)
a("v_and_b32 v%d, 3, v1", T2)
a("v_lshl_add_u32 v%d, v%d, 3, v%d", T0, T2, T0)
a("v_add_u32 v%d, %d, v%d", VWA, 4 * BLK, T0)
a("v_xor_b32 v%d, 32, v%d", VWA + 1, VWA)
a("v_add_u32 v%d, %d, v%d", VWB, 4 * BLK, VWA)
a("v_add_u32 v%d, %d, v%d", VWB + 1, 4 * BLK, VWA + 1)
FR = 20
ACC = 84
def reads1(step):
    st, ks = step // 2, step % 2
    slot = st % 3
    f = FR + (step % 2) * 32
    L = []
    def xr(tt): return "ds_read_b128 %s, v%d offset:%d" % (vr(f + 4 * tt, 4), VXR + ks, XB[slot] * BLK + tt * 2048)
    def wr(gu, m, hf):
        blk = GB[slot] + gu
        reg, rel = (VWA, blk - 4) if blk < 8 else (VWB, blk - 8)
        return "ds_read_b64_tr_b16 %s, v%d offset:%d" % (vr(f + 16 + 4 * (gu * 2 + m) + 2 * hf, 2), reg + m, rel * BLK + ks * 8192 + hf * 1024)
    L += [wr(0, 0, 0), wr(0, 0, 1), xr(0), xr(1), xr(2), xr(3)]
    for gu, m in [(1, 0), (0, 1), (1, 1)]:
        L += [wr(gu, m, 0), wr(gu, m, 1)]
    return L
stamp(0)
a("s_waitcnt vmcnt(%d)", vmwait([("G1", 0)]))
a("s_barrier")
stamp(1)
for r in reads1(0): a(r)
pend = [(lambda j=j: dma1(2, j)) for j in range(6)]
kv = kgen_valu()
for step in range(16):
    st, ks = step // 2, step % 2
    f = FR + (step % 2) * 32
    nxt = reads1(step + 1) if step < 15 else []
    a("s_waitcnt lgkmcnt(0)")
    order = [(gu, m, tt) for (gu, m) in [(0, 0), (1, 0), (0, 1), (1, 1)] for tt in range(4)]
    for i, (gu, m, tt) in enumerate(order):
        d = vr(ACC + ((gu * 2 + m) * 4 + tt) * 4, 4)
        a("v_mfma_f32_16x16x32_bf16 %s, %s, %s, %s", d, vr(f + 16 + 4 * (gu * 2 + m), 4), vr(f + 4 * tt, 4), d if step else "0")
        slots = 2
        if nxt:
            a(nxt.pop(0)); slots = 1
        for _ in range(slots):
            if pend:
                p = pend.pop(0)
                a(p) if isinstance(p, str) else p()
            elif step >= 1 and kv: a(kv.pop(0))
    if ks == 0 and st < 7:
        assert not pend, (step, len(pend))
        tags = [("G1", st + 1)]
        if st == 0: tags.append(("KP", 0))
        if st == 4: tags.append(("N", 0))
        if st == 5: tags.append(("PA", 0))
        if st == 6: tags.append(("U", 0))
        a("s_waitcnt vmcnt(%d) lgkmcnt(0)", vmwait(tags))
        a("s_barrier")
        if st + 3 <= 7:
            pend = [(lambda j=j, s=st + 3: dma1(s, j)) for j in range(6)]
        if st == 2:
            def f_(): nonce_issue(); vm.append(("N", 0))
            pend.append(f_)
        if st == 4:
            def f_():
                nonce_check()
                a("s_mov_b32 s79, %d", F_A)
                poll_issue(32, "s79"); vm.append(("PA", 0))
            pend.insert(0, f_)
        if st == 5:
            assert not kv, len(kv)
            def f_():
                poll_check("s79")
                u_load(); vm.append(("U", 0))
                kgen_m0()
            pend = [f_] + kgen_writes()
        if st == 6:
            pend = [zero_pads, u_write] + kmfma_addr()
assert not pend, len(pend)
stamp(2)
a("s_lshl_b32 s10, s6, 3")
a("s_lshl_b32 s11, s8, 2")
a("s_add_u32 s10, s10, s11")
a("s_mul_i32 s10, s10, 56")
a("s_lshl_b32 s11, s7, 2")
a("s_add_u32 s10, s10, s11")
a("s_add_u32 s10, s10, s9")
a("s_lshl_b32 s87, s10, 10")
a("v_lshlrev_b32 v%d, 4, v1", T0)
fill = []
for tt in range(4):
    for m in range(2):
        g = ACC + (m * 4 + tt) * 4; u = ACC + ((2 + m) * 4 + tt) * 4
        for q in range(4):
            fill.append("v_mul_f32 v%d, v%d, v%d" % (g + q, g + q, u + q))
    for m in range(2):
        g = ACC + (m * 4 + tt) * 4
        for q in range(2):
            fill.append("v_cvt_pk_bf16_f32 v%d, v%d, v%d" % (FR + 4 * tt + 2 * m + q, g + 2 * q, g + 2 * q + 1))
    fill.append("buffer_store_dwordx4 %s, v%d, %s, s87 offen sc1" % (vr(FR + 4 * tt, 4), T0, sr(SWS, 4)))
    if tt < 3: fill.append("s_add_u32 s87, s87, %d" % (56 * 1024))
run_kmfma(fill)
a("s_branch L_post")

a("L_aux:")
common_srds()
a("s_lshl_b32 s6, s4, 2")
a("s_add_u32 s6, s6, s5")
a("s_sub_u32 s6, s6, 28")
PITCH = 1040
LA = 6 * BLK - 1024
assert LA + 64 * PITCH <= 10 * BLK
a("v_lshlrev_b32 v4, 4, v1")
a("s_lshl_b32 s7, s6, 16")
a("s_lshl_b32 s8, s3, 13")
a("s_add_u32 s7, s7, s8")
a("s_mul_i32 s8, s3, %d", 8 * PITCH)
for j in range(8):
    a("s_add_u32 m0, s8, %d", LA + j * PITCH)
    a("s_add_u32 s9, s7, %d", j * 1024)
    a("buffer_load_dwordx4 v4, %s, s9 offen lds", sr(SX, 4))
a("s_cmp_lg_u32 s2, 224")
a("s_cbranch_scc1 L_nononce")
a("s_cmp_lg_u32 s3, 0")
a("s_cbranch_scc1 L_nononce")
a("v_mov_b32 v5, 0")
a("s_mov_b32 s9, %d", F_E)
a("buffer_load_dword v6, v5, %s, s9 offen sc1", sr(SWS, 4))
a("s_mov_b32 s10, 0x9e3779b1")
a("s_waitcnt vmcnt(0)")
a("v_mul_lo_u32 v6, v6, s10")
a("v_add_u32 v6, 0x7f4a7c15, v6")
a("v_mov_b32 v7, 1")
a("s_mov_b64 exec, 1")
a("global_store_dwordx2 v5, v[6:7], %s sc1", sr(P_DBG, 2))
a("buffer_store_dword v6, v5, %s, s9 offen sc1", sr(SWS, 4))
a("s_mov_b64 exec, -1")
a("L_nononce:")
a("v_and_b32 v5, 7, v0")
a("v_lshlrev_b32 v5, 4, v5")
for j in range(8):
    a("global_load_dwordx4 %s, v5, %s offset:%d", vr(32 + 4 * j, 4), sr(P_GW, 2), j * 128)
kgen_setup()
a("v_lshrrev_b32 v6, 4, v1")
a("v_bfe_u32 v7, v1, 2, 2")
a("v_lshl_add_u32 v7, v7, 2, v6")
a("v_mul_u32_u24 v7, %d, v7", PITCH)
a("v_and_b32 v8, 3, v1")
a("v_lshl_add_u32 v7, v8, 3, v7")
a("s_and_b32 s9, s3, 1")
a("s_mul_i32 s10, s9, %d", 32 * PITCH)
a("s_lshr_b32 s11, s3, 1")
a("s_lshl_b32 s12, s11, 8")
a("s_add_u32 s10, s10, s12")
a("s_add_u32 s10, s10, %d", LA)
a("v_add_u32 v7, s10, v7")
a("v_bfe_u32 v8, v1, 1, 3")
a("v_lshlrev_b32 v8, 13, v8")
a("v_lshl_add_u32 v8, v6, 5, v8")
a("v_and_b32 v9, 1, v1")
a("v_lshl_add_u32 v8, v9, 4, v8")
a("s_lshl_b32 s12, s11, 19")
a("s_lshl_b32 s13, s6, 1")
a("s_add_u32 s13, s13, s9")
a("s_lshl_b32 s13, s13, 7")
a("s_add_u32 s12, s12, s13")
a("s_add_u32 s12, s12, %d", WS_UT)
a("s_waitcnt vmcnt(0)")
a("s_barrier")
for j in range(8):
    for hf in range(2):
        a("ds_read_b64_tr_b16 %s, v7 offset:%d", vr(64 + 4 * j + 2 * hf, 2), hf * 16 * PITCH + j * 32)
a("v_lshrrev_b32 v9, 3, v0")
a("v_mul_u32_u24 v10, %d, v9", PITCH)
a("v_add_u32 v10, v10, v5")
a("v_add_u32 v10, %d, v10", LA)
for j in range(8):
    a("s_waitcnt lgkmcnt(%d)", 14 - 2 * j)
    a("s_add_u32 s13, s12, %d", j * 65536)
    a("buffer_store_dwordx4 %s, v8, %s, s13 offen sc1", vr(64 + 4 * j, 4), sr(SWS, 4))
for j in range(8):
    a("ds_read_b128 %s, v10 offset:%d", vr(96 + 4 * j, 4), j * 128)
a("v_mov_b32 v11, 0")
a("v_mov_b32 v12, 0")
a("s_waitcnt lgkmcnt(0)")
for j in range(32):
    a("v_dot2_f32_bf16 v%d, v%d, v%d, v%d", 11 + j % 2, 32 + j, 96 + j, 11 + j % 2)
a("v_add_f32 v11, v11, v12")
a("v_add_f32_dpp v11, v11, v11 quad_perm:[1,0,3,2] row_mask:0xf bank_mask:0xf")
a("v_add_f32_dpp v11, v11, v11 quad_perm:[2,3,0,1] row_mask:0xf bank_mask:0xf")
a("v_add_f32_dpp v11, v11, v11 row_half_mirror row_mask:0xf bank_mask:0xf")
a("v_mul_f32 v11, 0xbfb8aa3b, v11")
a("v_exp_f32 v11, v11")
a("v_add_f32 v11, 1.0, v11")
a("v_rcp_f32 v11, v11")
a("v_lshlrev_b32 v9, 2, v9")
a("s_lshl_b32 s13, s6, 8")
a("s_add_u32 s13, s13, %d", WS_G)
a("v_cmp_eq_u32 vcc, 0, v5")
a("s_and_saveexec_b64 s[12:13], vcc") if False else None
a("s_mov_b64 exec, vcc")
a("buffer_store_dword v11, v9, %s, s13 offen sc1", sr(SWS, 4))
a("s_mov_b64 exec, -1")
nonce_issue()
a("s_waitcnt vmcnt(0)")
nonce_check()
a("s_barrier")
a("s_cmp_lg_u32 s3, 0")
a("s_cbranch_scc1 L_auxnf")
a("s_lshl_b32 s10, s6, 2")
a("s_add_u32 s10, s10, %d", F_A)
flag_store("s10")
a("L_auxnf:")
stamp(1)
for i in kgen_valu(): a(i)
kgen_m0()
for i in kgen_writes(): a(i)
a("s_mov_b32 s79, %d", F_A)
poll_issue(32, "s79")
a("s_waitcnt vmcnt(0)")
poll_check("s79", 8)
u_load()
zero_pads()
for i in kmfma_addr(): a(i)
a("s_waitcnt vmcnt(0) lgkmcnt(0)")
u_write()
a("s_barrier")
stamp(2)
run_kmfma([])

a("L_post:")
a("s_lshl_b32 s%d, s4, 2", S_TB)
a("s_and_b32 s10, s5, 3")
a("s_add_u32 s%d, s%d, s10", S_TB, S_TB)
a("s_lshr_b32 s%d, s5, 2", S_DB)
a("s_lshr_b32 s%d, s3, 2", S_KH)
a("s_and_b32 s%d, s3, 3", S_TQ)
a("s_lshl_b32 s10, s%d, 2", S_TB)
a("s_add_u32 s10, s10, s%d", S_TQ)
a("s_mul_i32 s11, s10, 56")
a("s_mul_i32 s12, s%d, 28", S_KH)
a("s_add_u32 s11, s11, s12")
a("s_lshl_b32 s%d, s11, 10", S_HB)
a("s_lshl_b32 s51, s10, 6")
a("s_add_u32 s51, s51, %d", WS_G)
a("s_lshl_b32 s10, s10, 14")
a("s_lshl_b32 s11, s%d, 7", S_DB)
a("s_lshl_b32 s12, s%d, 6", S_KH)
a("s_add_u32 s50, s11, s12")
a("s_add_u32 s%d, s10, s50", S_OB)
a("s_waitcnt lgkmcnt(0)")
a("s_barrier")
stamp(3)
a("s_cmp_ge_u32 s3, 4")
a("s_cbranch_scc1 L_help")

HF = 112
VH = 240
def hload(j0, n, vml):
    for j in range(j0, j0 + n):
        if j % 4 == 0 or j == j0:
            a("s_add_u32 s87, s%d, %d", S_HB, (j // 4) * 4096)
        a("buffer_load_dwordx4 %s, v%d, %s, s87 offen offset:%d sc1", vr(HF + 4 * j, 4), VH, sr(SWS, 4), (j % 4) * 1024)
        vml.append(("H", j))

a("s_lshr_b32 s6, s3, 1")
VA, VB, VC, VY = 2, 3, 4, 5
a("v_lshrrev_b32 v6, 5, v1")
a("v_lshlrev_b32 v%d, 6, v6", VA)
a("v_and_b32 v7, 1, v1")
a("v_lshl_add_u32 v%d, v7, 5, v%d", VA, VA)
a("v_bfe_u32 v7, v1, 4, 1")
a("v_lshl_add_u32 v%d, v7, 4, v%d", VA, VA)
a("v_bfe_u32 v7, v1, 1, 1")
a("v_lshl_add_u32 v%d, v7, 3, v%d", VA, VA)
a("v_bfe_u32 v7, v1, 2, 2")
a("v_lshlrev_b32 v7, 3, v7")
a("v_sub_u32 v%d, v%d, v7", VA, VA)
a("s_mul_i32 s10, s6, %d", KCH)
a("s_add_u32 s10, s10, %d", L_K + 32)
a("v_add_u32 v%d, s10, v%d", VA, VA)
a("v_and_b32 v7, 31, v1")
a("v_lshlrev_b32 v%d, 4, v7", VB)
a("v_lshlrev_b32 v8, 6, v6")
a("v_sub_u32 v%d, v%d, v8", VB, VB)
a("s_mul_i32 s10, s6, %d", UCH)
a("s_add_u32 s10, s10, %d", L_U + 512 - 384)
a("v_add_u32 v%d, s10, v%d", VB, VB)
a("v_lshrrev_b32 v7, 2, v7")
a("v_lshl_add_u32 v7, v7, 1, v6")
a("s_mul_i32 s10, s6, %d", CYCH)
a("s_add_u32 s10, s10, %d", L_CY)
a("v_lshl_add_u32 v%d, v7, 4, s10", VC)
a("v_lshlrev_b32 v%d, 5, v7", VY)
a("v_lshlrev_b32 v%d, 4, v1", VH)
a("s_lshl_b32 s11, s2, 1")
a("s_add_u32 s11, s11, s6")
a("s_lshl_b32 s11, s11, 12")
a("s_add_u32 s9, s11, %d", WS_Y)
a("s_bitcmp1_b32 s3, 0")
a("s_cbranch_scc1 L_set1")
BF = 112
AF = 8
AC = 28
C1POS = opt("c1pos", 16)
LOOK = opt("look", 6)
vmc = None
for si, tiles in enumerate([[0, 3, 4, 7], [1, 2, 5, 6]]):
    if si == 1: a("L_set1:")
    sched = []
    maxd = 4 * tiles[-1] + 3
    for dl in range(maxd + 1):
        for ti, jt in enumerate(tiles):
            if dl <= 4 * jt + 3: sched.append((dl, ti, jt))
    loads = []; seenA, seenB = set(), set()
    for pos, (dl, ti, jt) in enumerate(sched):
        if dl not in seenA: seenA.add(dl); loads.append(("A", dl, pos))
        e = 4 * jt - dl
        if e not in seenB: seenB.add(e); loads.append(("B", e, pos))
    lastuseA = {}
    for pos, (dl, ti, jt) in enumerate(sched): lastuseA[dl] = pos
    def ld_instrs(kind, idx):
        if kind == "A":
            r = AF + 4 * (idx % 4)
            return ["ds_read_b64_tr_b16 %s, v%d offset:%d" % (vr(r + 2 * hf, 2), VA, 128 * idx + 32 * (1 - hf)) for hf in range(2)]
        return ["ds_read_b128 %s, v%d offset:%d" % (vr(BF + 4 * (idx + 3), 4), VB, 128 * (idx + 3))]
    issued = []; li = 0; fill = []
    def recomb(ti):
        b = AC + 20 * ti
        L = []
        q1 = "quad_perm:[1,1,3,3] row_mask:0xf bank_mask:0xf"; q2 = "quad_perm:[2,2,2,2] row_mask:0xf bank_mask:0xf"
        L.append("v_mov_b32_dpp v%d, v%d %s" % (b + 16, b + 15, q1))
        for q in range(15, 0, -1):
            L.append("v_add_f32_dpp v%d, v%d, v%d %s" % (b + q, b + q - 1, b + q, q1))
        L.append("v_mov_b32_dpp v%d, v%d %s" % (b + 18, b + 16, q2))
        L.append("v_mov_b32_dpp v%d, v%d %s" % (b + 17, b + 15, q2))
        for q in range(16, 1, -1):
            L.append("v_add_f32_dpp v%d, v%d, v%d %s" % (b + q, b + q - 2, b + q, q2))
        return L
    started = set(); hold = 0; waited = -1
    for pos, (dl, ti, jt) in enumerate(sched):
        while li < len(loads) and loads[li][2] <= pos + LOOK:
            kind, idx, fp = loads[li]
            if kind == "A" and idx >= 4 and lastuseA[idx - 4] >= pos: break
            for ins in ld_instrs(kind, idx):
                a(ins); issued.append((kind, idx))
            li += 1
        e = 4 * jt - dl
        lastneeded = max(i for i, k in enumerate(issued) if k == ("A", dl) or k == ("B", e))
        if lastneeded > waited:
            cnt = min(len(issued) - 1 - lastneeded, 15)
            a("s_waitcnt lgkmcnt(%d)", cnt)
            waited = len(issued) - 1 - cnt
        d = vr(AC + 20 * ti, 16)
        a("v_mfma_f32_32x32x16_bf16 %s, %s, %s, %s", d, vr(AF + 4 * (dl % 4), 4), vr(BF + 4 * (e + 3), 4), d if ti in started else "0")
        started.add(ti)
        if pos == C1POS:
            a("s_waitcnt vmcnt(0)")
            a("s_barrier")
        if hold > 0: hold -= 1
        else:
            for _ in range(4):
                if fill: a(fill.pop(0))
        if dl == 4 * jt + 3:
            if not fill: hold = 2
            fill += recomb(ti)
    stamp(4)
    for f in fill: a(f)
    a("s_mov_b32 s12, 0x11111111")
    a("s_mov_b32 s13, 0x11111111")
    a("s_mov_b64 exec, s[12:13]")
    for ti, jt in enumerate(tiles):
        a("ds_write_b128 v%d, %s offset:%d", VC, vr(AC + 20 * ti + 16, 4), 256 * jt + 16)
    a("s_mov_b64 exec, -1")
    a("s_waitcnt lgkmcnt(0)")
    stamp(5)
    a("s_barrier")
    stamp(6)
    for ti, jt in enumerate(tiles):
        a("ds_read_b128 %s, v%d offset:%d", vr(AF + 4 * ti, 4), VC, 256 * jt)
    vmc = []
    hload(0, 8, vmc)
    a("s_mov_b64 exec, s[12:13]")
    for ti, jt in enumerate(tiles):
        b = AC + 20 * ti
        a("s_waitcnt lgkmcnt(%d)", 3 - ti)
        for q in range(3):
            a("v_add_f32 v%d, v%d, v%d", b + q, b + q, AF + 4 * ti + q)
        for q in range(8):
            a("v_cvt_pk_bf16_f32 v%d, v%d, v%d", b + q, b + 2 * q, b + 2 * q + 1)
        for o in range(2):
            a("buffer_store_dwordx4 %s, v%d, %s, s9 offen offset:%d sc1", vr(b + 4 * o, 4), VY, sr(SWS, 4), 512 * jt + 16 * o)
            vmc.append(("YS", 0))
    a("s_mov_b64 exec, -1")
    a("s_branch L_g2c")

a("L_help:")
VW = 4
a("s_lshl_b32 s10, s%d, 15", S_TQ)
a("s_lshl_b32 s11, s%d, 7", S_DB)
a("s_add_u32 s10, s10, s11")
a("v_lshrrev_b32 v%d, 3, v1", T0)
a("v_lshlrev_b32 v%d, 10, v%d", T0, T0)
a("v_lshrrev_b32 v%d, 4, v1", T1)
a("v_lshlrev_b32 v%d, 1, v%d", T1, T1)
a("v_and_b32 v%d, 7, v1", T2)
a("v_xor_b32 v%d, v%d, v%d", T2, T2, T1)
a("v_lshl_add_u32 v%d, v%d, 4, v%d", T0, T2, T0)
a("v_add_u32 v%d, s10, v%d", VW, T0)
a("s_lshl_b32 s86, s%d, 12", S_TQ)
a("v_lshlrev_b32 v%d, 4, v1", VH)
vmh = []
def dma2(rd, kh, i, vml):
    a("s_add_u32 m0, s86, %d", WBLK[rd][kh] * BLK + i * 1024)
    a("s_mov_b32 s87, %d", (kh * 896 + rd * 128 + 8 * i) * 1024)
    a("buffer_load_dwordx4 v%d, %s, s87 offen lds", VW, sr(SW, 4))
    vml.append(("W", rd))
a("s_waitcnt vmcnt(0)")
a("s_barrier")
a("s_cmp_lg_u32 s3, 4")
a("s_cbranch_scc1 L_nohf")
a("s_cmp_lg_u32 s%d, 0", S_ISAUX)
a("s_cbranch_scc1 L_nohf")
a("s_lshl_b32 s10, s6, 7")
a("s_lshl_b32 s11, s7, 2")
a("s_add_u32 s10, s10, s11")
a("s_add_u32 s10, s10, %d", F_H)
flag_store("s10")
a("L_nohf:")
stamp(4)
for rd in range(4):
    for kh in range(2):
        for i in range(4): dma2(rd, kh, i, vmh)
stamp(5)
a("s_lshr_b32 s79, s%d, 1", S_TB)
a("s_lshl_b32 s79, s79, 7")
a("s_add_u32 s79, s79, %d", F_H)
poll_issue(14, "s79")
a("s_waitcnt vmcnt(0)")
poll_check("s79", 1)
stamp(6)
vmh = []
hload(0, 28, vmh)
a("s_barrier")

VR = 2
def gemm2(role, vml):
    helper = role == "h"
    R = 8
    VO, VYR, EU, ED, EG, EY = 20, 21, 22, 26, 30, 32
    t0, t1, t2, t3 = 36, 37, 38, 39
    AFR = 40
    AC2 = 72
    YL = 88
    A0 = 96
    def vw(tags):
        idx = [i for i, t in enumerate(vml) if t in tags]
        if not idx: return 63
        return min(63, len(vml) - 1 - max(idx))
    a("v_lshrrev_b32 v%d, 2, v1", t0)
    a("v_lshlrev_b32 v%d, 7, v%d", t0, t0)
    a("v_and_b32 v%d, 3, v1", t1)
    a("v_lshl_add_u32 v%d, v%d, 3, v%d", t0, t1, t0)
    a("v_bfe_u32 v%d, v1, 3, 2", t1)
    a("v_xor_b32 v%d, %d, v%d", t1, 2 if helper else 0, t1)
    a("v_lshl_add_u32 v%d, v%d, 5, v%d", R, t1, t0)
    for m in range(1, 4):
        a("v_xor_b32 v%d, %d, v%d", R + m, m << 5, R)
    for m in range(4):
        a("v_add_u32 v%d, %d, v%d", R + 4 + m, 4 * BLK, R + m)
        a("v_add_u32 v%d, %d, v%d", R + 8 + m, 8 * BLK, R + m)
    a("s_lshl_b32 s10, s%d, 12", S_KH)
    a("s_lshl_b32 s11, s%d, 5", S_TQ)
    a("s_add_u32 s10, s10, s11")
    a("s_add_u32 s10, s10, %d", L_Y)
    a("v_add_u32 v%d, s10, v%d", VYR, t0)
    kh = 1 if helper else 0
    def reads(step):
        rd, ks = step // 4, step % 4
        blk = WBLK[rd][kh]
        f = AFR + (step % 2) * 16
        L = []
        for m in range(4):
            for hf in range(2):
                L.append("ds_read_b64_tr_b16 %s, v%d offset:%d" % (vr(f + 4 * m + 2 * hf, 2), R + 4 * (blk // 4) + m, (blk % 4) * BLK + ks * 4096 + hf * 2048))
        return L
    def eops():
        a("v_and_b32 v%d, 15, v1", t1)
        a("v_lshrrev_b32 v%d, 4, v1", t2)
        a("v_lshlrev_b32 v%d, 3, v%d", t3, t2)
        a("v_lshl_add_u32 v%d, v%d, 10, v%d", VO, t1, t3)
        for m in range(2):
            a("buffer_load_dwordx2 %s, v%d, %s, s%d offen offset:%d", vr(EU + 2 * m, 2), VO, sr(SX, 4), S_OB, 32 * m)
            vml.append(("E", 0))
        a("v_add_u32 v%d, s50, v%d", t3, t3)
        for m in range(2):
            a("global_load_dwordx2 %s, v%d, %s offset:%d", vr(ED + 2 * m, 2), t3, sr(P_DSK, 2), 32 * m)
            vml.append(("E", 0))
        a("v_lshlrev_b32 v%d, 2, v%d", t1, t1)
        a("buffer_load_dword v%d, v%d, %s, s51 offen sc1", EG, t1, sr(SWS, 4))
        vml.append(("E", 0))
    def ypoll_issue():
        a("s_lshl_b32 s79, s%d, 7", S_DB)
        a("s_add_u32 s79, s79, %d", F_Y)
        poll_issue(32, "s79"); vml.append(("PY", 0))
    def yload():
        poll_check("s79", 1)
        a("v_lshrrev_b32 v%d, 3, v1", t0)
        a("v_lshlrev_b32 v%d, 12, v%d", t0, t0)
        a("v_and_b32 v%d, 7, v1", t1)
        a("v_lshl_add_u32 v%d, v%d, 4, v%d", t0, t1, t0)
        a("s_lshl_b32 s10, s%d, 3", S_DB)
        a("s_add_u32 s10, s10, s3")
        a("s_lshl_b32 s10, s10, 15")
        a("s_lshl_b32 s11, s%d, 7", S_TB)
        a("s_add_u32 s10, s10, s11")
        a("s_add_u32 s10, s10, %d", WS_Y)
        a("buffer_load_dwordx4 %s, v%d, %s, s10 offen sc1", vr(YL, 4), t0, sr(SWS, 4))
        vml.append(("Y", 0))
    for r in reads(0): a(r)
    pend = []
    for step in range(28):
        rd, ks = step // 4, step % 4
        f = AFR + (step % 2) * 16
        nxt = reads(step + 1) if step < 27 else []
        a("s_waitcnt vmcnt(%d) lgkmcnt(0)", vw([("H", step)]))
        for m in range(4):
            d = vr(AC2 + 4 * m, 4)
            a("v_mfma_f32_16x16x32_bf16 %s, %s, %s, %s", d, vr(f + 4 * m, 4), vr(HF + 4 * step, 4), d if step else "0")
            for r in nxt[2 * m:2 * m + 2]: a(r)
        for _ in range(3):
            if pend: pend.pop(0)()
        if ks == 2 and rd < 6:
            assert not pend
            tags = [("W", rd + 1)]
            if rd == 0 and not helper: tags = [("YS", 0)]
            if rd == 4: tags.append(("PY", 0))
            a("s_waitcnt vmcnt(%d) lgkmcnt(0)", vw(tags))
            a("s_barrier")
            if helper and rd + 4 <= 6:
                pend = [(lambda k=k, i=i, r=rd + 4: dma2(r, k, i, vml)) for k in range(2) for i in range(4)]
            if rd == 0:
                if helper:
                    def fy():
                        lb = a.label("Lnyf")
                        a("s_cmp_lg_u32 s3, 4")
                        a("s_cbranch_scc1 %s", lb)
                        a("s_lshl_b32 s10, s2, 2")
                        a("s_add_u32 s10, s10, %d", F_Y)
                        flag_store("s10")
                        a(lb + ":")
                    fy()
                else:
                    pend = [(lambda j=j: hload(j, 4, vml)) for j in range(8, 28, 4)]
            if rd == 2 and not helper: pend.append(eops)
            if rd == 3:
                if helper: pend.append(eops)
                pend.append(ypoll_issue)
            if rd == 4: pend.append(yload)
    stamp(8)
    a("s_lshl_b32 s10, s3, 10")
    a("s_add_u32 s10, s10, %d", L_Y)
    a("v_add_u32 v%d, s10, v%d", YL + 4, VH)
    a("s_lshl_b32 s10, s3, 11")
    a("s_add_u32 s10, s10, %d", L_R)
    a("v_add_u32 v%d, s10, v%d", t0, VH)
    a("v_xor_b32 v%d, 0x2000, v%d", t1, t0)
    a("s_waitcnt vmcnt(0)")
    a("ds_write_b128 v%d, %s", YL + 4, vr(YL, 4))
    for m in range(2):
        a("ds_write_b128 v%d, %s offset:%d", t0, vr(AC2 + 8 + 4 * m, 4), 1024 * m)
    a("s_waitcnt lgkmcnt(0)")
    a("s_barrier")
    for m in range(2):
        a("ds_read_b64_tr_b16 %s, v%d offset:%d", vr(EY + 2 * m, 2), VYR, m * 2048)
    for m in range(2):
        a("ds_read_b128 %s, v%d offset:%d", vr(AC2 + 8 + 4 * m, 4), t1, 1024 * m)
    for j in range(4):
        for hi in range(2):
            o = A0 + 2 * j + hi
            if hi == 0:
                a("v_lshlrev_b32 v%d, 16, v%d", t2, EU + j)
                a("v_lshlrev_b32 v%d, 16, v%d", t3, ED + j)
            else:
                a("v_and_b32 v%d, 0xffff0000, v%d", t2, EU + j)
                a("v_and_b32 v%d, 0xffff0000, v%d", t3, ED + j)
            a("v_mul_f32 v%d, v%d, v%d", o, t2, t3)
    a("s_waitcnt lgkmcnt(2)")
    for j in range(4):
        a("v_lshlrev_b32 v%d, 16, v%d", t2, EY + j)
        a("v_and_b32 v%d, 0xffff0000, v%d", t3, EY + j)
        a("v_add_f32 v%d, v%d, v%d", A0 + 2 * j, A0 + 2 * j, t2)
        a("v_add_f32 v%d, v%d, v%d", A0 + 2 * j + 1, A0 + 2 * j + 1, t3)
    a("s_waitcnt lgkmcnt(0)")
    for q in range(8):
        a("v_add_f32 v%d, v%d, v%d", AC2 + q, AC2 + q, AC2 + 8 + q)
        a("v_sub_f32 v%d, v%d, v%d", A0 + q, A0 + q, AC2 + q)
        a("v_fmac_f32 v%d, v%d, v%d", AC2 + q, EG, A0 + q)
    for j in range(4):
        a("v_cvt_pk_bf16_f32 v%d, v%d, v%d", A0 + j, AC2 + 2 * j, AC2 + 2 * j + 1)
    for m in range(2):
        a("buffer_store_dwordx2 %s, v%d, %s, s%d offen offset:%d", vr(A0 + 2 * m, 2), VO, sr(SO, 4), S_OB, 32 * m)
    if STAMP: a("s_waitcnt vmcnt(0)")
    stamp(9)
    stamp_out()
    a("s_endpgm")

stamp(7)
gemm2("h", vmh)
a("L_g2c:")
stamp(7)
gemm2("c", vmc)
a("L_end:")
a("s_endpgm")

hdr = open("gated_mix__ssm_conv_s4__glu_gated_bilinear__prompt.s.ref").read().split("\n")
hdr = [l for l in hdr if l.startswith(";") and "@launch" not in l]
print(wrap(hdr + ["; @launch grid=(256,1,1) block=(512,1,1) lds=163840"], [(NAME, a, 256, 102, 256)]))
sys.stderr.write("nops: %d\n" % a.nops)
```

```python
import sys
from asmlib import *

STAMP = "--stamp" in sys.argv
def opt(name, default):
    for x in sys.argv:
        if x.startswith("--%s=" % name): return int(x.split("=")[1])
    return default

WS_H = 0
WS_UT = 8 << 20
WS_Y = 10 << 20
WS_G = 12 << 20
WS_F = (12 << 20) + 0x10000
WS_ST = 13 << 20
WS_BYTES = 14 << 20
F_A, F_H, F_Y, F_G, F_E = WS_F, WS_F + 0x1000, WS_F + 0x2000, WS_F + 0x3000, WS_F + 0x4000

P_U, P_ARE, P_AIM, P_BRE, P_BIM, P_CRE, P_CIM, P_LDT = 16, 18, 20, 22, 24, 26, 28, 30
P_DSK, P_BX, P_WG, P_WU, P_WD, P_GW, P_OUT, P_DBG, P_WS = 32, 34, 36, 38, 40, 42, 44, 46, 48
SX, SG, SU, SWS, SW, SO = 52, 56, 60, 64, 68, 72
S_NONCE, S_ISAUX, S_SPIN, S_PB = 76, 77, 78, 79
S_TB, S_DB, S_KH, S_TQ, S_HB, S_OB = 80, 81, 82, 83, 84, 85
S_W0S = 100
S_RT = 36
S_W2K, S_T, S_TM0, S_YB = 86, 87, 88, 89
S_DOFF, S_GOFF = 50, 51
S_WSO, S_WLD = 90, 91
S_HST = 34
S_FH = 35
SPINMAX = opt("spin", 20000)

BLK = 16384
XB = [0, 1, 2]
GB = [6, 8, 4]
L_TAB = 2 * BLK
TP = 528
TPIECE = 31 * TP
L_U = 0
UCH = 512 + 4096
L_CY = 2 * UCH
CYCH = 129 * 16
L_SY = L_CY + 2 * CYCH
assert L_SY % 16 == 0 and L_SY + 128 <= BLK
L_K = BLK
KCH = 64 + 4096
WB = [6, 8, 2, 4, 0, 6, 8]
L_Y = 5 * BLK
L_R = 2 * BLK

a = Asm()

class Lg:
    def __init__(self): self.q = []; self.done = 0
    def issue(self, ins, tag=None):
        a(ins); self.q.append(tag)
    def need(self, tags, extra=""):
        idx = [i for i, t in enumerate(self.q) if t in tags]
        last = max(idx) if idx else -1
        if last >= self.done:
            cnt = min(len(self.q) - 1 - last, 15)
            a("s_waitcnt %slgkmcnt(%d)", extra, cnt)
            self.done = len(self.q) - cnt
        elif extra:
            a("s_waitcnt %s", extra)
    def drained(self): self.done = len(self.q)
    def run(self, p):
        n0 = len(a.lines)
        a(p) if isinstance(p, str) else p()
        for ln in a.lines[n0:]:
            if ln.strip().startswith("ds_"): self.q.append(None)

SMASK = opt("smask", 0x7fff)
def stamp(i):
    if not STAMP or not (SMASK >> i) & 1: return
    a("s_memtime s[94:95]")
    a("s_memrealtime s[92:93]")
    a("s_waitcnt lgkmcnt(0)")
    a("s_sub_u32 s94, s94, s98")
    a("v_writelane_b32 v255, s94, %d", i)
    a("v_writelane_b32 v255, s92, %d", i + 16)
def stamp_out():
    if not STAMP: return
    a("s_mov_b64 exec, -1")
    a("v_writelane_b32 v255, s96, 31")
    a("s_lshl_b32 s92, s2, 3")
    a("s_add_u32 s92, s92, s3")
    a("s_lshl_b32 s92, s92, 7")
    a("s_add_u32 s92, s92, %d", WS_ST)
    a("v_mbcnt_lo_u32_b32 v254, -1, 0")
    a("v_mbcnt_hi_u32_b32 v254, -1, v254")
    a("v_lshlrev_b32 v253, 2, v254")
    a("s_mov_b64 exec, 0xffffffff")
    a("buffer_store_dword v255, v253, %s, s92 offen", sr(SWS, 4))

def cmul(d, x, y, plain):
    if plain:
        return ["v_mul_f32 v%d, v%d, v%d" % (d, x, y), "v_mul_f32 v%d, v%d, v%d" % (d + 1, x + 1, y),
                "v_fma_f32 v%d, -v%d, v%d, v%d" % (d, x + 1, y + 1, d), "v_fmac_f32 v%d, v%d, v%d" % (d + 1, x, y + 1)]
    return ["v_pk_mul_f32 %s, %s, %s op_sel_hi:[1,0]" % (vr(d, 2), vr(x, 2), vr(y, 2)),
            "v_pk_fma_f32 %s, %s, %s, %s op_sel:[1,1,0] op_sel_hi:[0,1,1] neg_lo:[1,0,0]" % (vr(d, 2), vr(x, 2), vr(y, 2), vr(d, 2))]
def il(x, y):
    o = []
    for i in range(max(len(x), len(y))):
        if i < len(x): o.append(x[i])
        if i < len(y): o.append(y[i])
    return o

VH = 240
VWD = 241
VR0 = 242
VSY = 243
VN = 250
PVA, PVB, PVC, PVY = 148, 149, 150, 151
KA, KBa, KW = 152, 153, 154
VZ = 155
KB = 160
KP = 204
KF = 160
KD = 236
VUL = 244

def kgen_setup():
    a("s_lshr_b32 s10, s3, 2")
    a("s_lshl_b32 s11, s2, 1")
    a("s_add_u32 s11, s11, s10")
    a("s_and_b32 s12, s3, 1")
    a("s_lshl_b32 s13, s11, 8")
    a("s_lshl_b32 s12, s12, 7")
    a("s_add_u32 s13, s13, s12")
    a("v_lshl_add_u32 v%d, v1, 1, s13", KB + 8)
    a("s_lshl_b32 s11, s11, 1")
    a("v_mov_b32 v%d, s11", KB + 9)
    for i in range(7): a("v_mov_b32 v%d, 0", KB + i)
    a("s_bitcmp1_b32 s3, 1")
    a("s_cselect_b64 s[14:15], -1, 0")
def kgen_loads():
    a("global_load_short_d16_hi v%d, v%d, %s", KB + 6, KB + 9, sr(P_LDT, 2))
    for i, p in enumerate([P_ARE, P_AIM, P_BRE, P_BIM, P_CRE, P_CIM]):
        a("global_load_short_d16_hi v%d, v%d, %s", KB + i, KB + 8, sr(p, 2))
    return 7
def rowpos(m): return 16 + (2 * m if m <= 7 else 2 * (m - 8) + 1)
def kgen_valu(plain_tail):
    L = []
    A_, B_, BR, BI, CR, CI, LD, T0, T1, T2 = [KB + i for i in range(10)]
    W, E1, E2, E4, E8, E128, E256, E512, P, X0, X1, R0, R1, RB, Y0, Z0 = [KB + 10 + 2 * i for i in range(16)]
    L.append("v_mul_f32 v%d, 0x3fb8aa3b, v%d" % (T0, LD))
    L.append("v_mov_b32 v%d, 0x3fb8aa3b" % T2)
    L.append("v_fma_f32 v%d, v%d, v%d, -v%d" % (T1, LD, T2, T0))
    L.append("v_fmac_f32 v%d, 0x32a57060, v%d" % (T1, LD))
    L.append("v_exp_f32 v%d, v%d" % (T0, T0))
    L.append("v_mul_f32 v%d, 0x3f317218, v%d" % (T1, T1))
    L.append("v_fmac_f32 v%d, v%d, v%d" % (T0, T0, T1))
    L.append("v_cvt_pk_bf16_f32 v%d, v%d, v%d" % (T0, T0, T0))
    L.append("v_and_b32 v%d, 0xffff0000, v%d" % (T0, T0))
    for r in (A_, B_, BR, BI):
        L.append("v_mul_f32 v%d, v%d, v%d" % (r, T0, r))
    L.append("v_mul_f32 v%d, 0x3fb8aa3b, v%d" % (A_, A_))
    L.append("v_mul_f32 v%d, 0.15915494, v%d" % (B_, B_))
    o1 = ["v_exp_f32 v%d, v%d" % (T0, A_), "v_fract_f32 v%d, v%d" % (T1, B_),
          "v_cos_f32 v%d, v%d" % (E1, T1), "v_sin_f32 v%d, v%d" % (E1 + 1, T1),
          "v_mul_f32 v%d, v%d, v%d" % (E1, T0, E1), "v_mul_f32 v%d, v%d, v%d" % (E1 + 1, T0, E1 + 1)]
    o2 = ["v_mul_f32 v%d, 0x43000000, v%d" % (T2, A_), "v_mul_f32 v%d, 0x43000000, v%d" % (LD, B_),
          "v_exp_f32 v%d, v%d" % (T2, T2), "v_fract_f32 v%d, v%d" % (LD, LD),
          "v_cos_f32 v%d, v%d" % (E128, LD), "v_sin_f32 v%d, v%d" % (E128 + 1, LD),
          "v_mul_f32 v%d, v%d, v%d" % (E128, T2, E128), "v_mul_f32 v%d, v%d, v%d" % (E128 + 1, T2, E128 + 1)]
    L += il(o2, o1 + cmul(W, CR, BR, False))
    L += il(cmul(E2, E1, E1, False) + cmul(E4, E2, E2, False) + cmul(E8, E4, E4, False),
            cmul(E256, E128, E128, False) + cmul(E512, E256, E256, False))
    L.append("v_cndmask_b32 v%d, v%d, v%d, s[14:15]" % (P, E1, E2))
    L.append("v_cndmask_b32 v%d, v%d, v%d, s[14:15]" % (P + 1, E1 + 1, E2 + 1))
    L.append("v_cndmask_b32 v%d, 1.0, v%d, s[14:15]" % (X0, E128))
    L.append("v_cndmask_b32 v%d, 0, v%d, s[14:15]" % (X0 + 1, E128 + 1))
    L.append("v_cndmask_b32 v%d, 1.0, v%d, s[14:15]" % (E256, E256))
    L.append("v_cndmask_b32 v%d, 0, v%d, s[14:15]" % (E256 + 1, E256 + 1))
    L += cmul(RB, W, E256, False)
    rows = [(None, RB, None)]
    cur = RB
    for j in range(1, 8):
        d = R0 if j % 2 else R1
        rows.append((d, cur, P)); cur = d
    Z2 = Y0
    rows += [(Y0, RB, E512), (R1, Y0, E4), (R0, Y0, E8), (Z0, Y0, E512), (R1, Z0, E8), (Z2, Z0, E512), (R0, Z2, E8)]
    cols = [(None, X0, None)]
    cur = X0
    for j in range(1, 16):
        d = X1 if j % 2 else X0
        cols.append((d, cur, E8)); cur = d
    LC, LR = [], []
    for j, (d, s, m) in enumerate(cols):
        if d is not None: LC += cmul(d, s, m, plain_tail)
        x = d if d is not None else s
        LC.append("v_cvt_pk_bf16_f32 v%d, v%d, v%d" % (KP + j, x, x + 1))
    for j, (d, s, m) in enumerate(rows):
        if d is not None: LR += cmul(d, s, m, plain_tail)
        x = d if d is not None else s
        LR.append("v_cvt_pk_bf16_f32 v%d, v%d, -v%d" % (KP + rowpos(j), x, x + 1))
    return L, il(LC, LR)
def kgen_writes():
    return ["ds_write_addtid_b32 v%d offset:%d" % (KP + j, L_TAB + j * TP) for j in range(31)]

def later_addrs(T0, T1, T2):
    a("s_lshr_b32 s10, s3, 1")
    a("s_mul_i32 s10, s10, %d", TPIECE)
    a("s_and_b32 s11, s3, 1")
    a("s_lshl_b32 s11, s11, 8")
    a("s_add_u32 s%d, s10, s11", S_TM0)
    a("s_add_u32 s10, s10, %d", L_TAB)
    a("v_bfe_u32 v%d, v1, 4, 1", T1)
    a("v_lshlrev_b32 v%d, 8, v%d", T1, T1)
    a("v_lshrrev_b32 v%d, 5, v1", T2)
    a("v_lshl_add_u32 v%d, v%d, 7, v%d", T1, T2, T1)
    a("v_and_b32 v%d, 15, v1", T0)
    a("v_mul_u32_u24 v%d, %d, v%d", T2, TP, T0)
    a("v_add3_u32 v%d, v%d, v%d, s10", KBa, T2, T1)
    def lut(v): return sum(x << (4 * i) for i, x in enumerate(v))
    m0 = [0, 1, 2, 3] + [0, 0, 1, 2] + [2, 2, 3, 4] + [4, 5, 6, 7]; h0 = 0x0ff0
    m1 = [8, 9, 10, 10] + [8, 9, 10, 10] + [11, 12, 13, 14] + [11, 12, 13, 14]; h1 = 0xf0f0
    p0 = [rowpos(m) - 16 for m in m0]; p1 = [rowpos(m) - 16 for m in m1]
    a("s_bitcmp1_b32 s3, 0")
    a("s_mov_b32 s11, 0x%x", lut(p0[:8]))
    a("s_cmov_b32 s11, 0x%x", lut(p1[:8]))
    a("s_mov_b32 s12, 0x%x", lut(p0[8:]))
    a("s_cmov_b32 s12, 0x%x", lut(p1[8:]))
    a("s_mov_b32 s13, 0x%x", h0)
    a("s_cmov_b32 s13, 0x%x", h1)
    a("v_cmp_lt_u32 vcc, 7, v%d", T0)
    a("v_mov_b32 v%d, s11", KA)
    a("v_mov_b32 v%d, s12", T2)
    a("v_cndmask_b32 v%d, v%d, v%d, vcc", KA, KA, T2)
    a("v_and_b32 v%d, 7, v1", T2)
    a("v_lshlrev_b32 v%d, 2, v%d", T2, T2)
    a("v_bfe_u32 v%d, v%d, v%d, 4", KA, KA, T2)
    a("v_bfe_u32 v%d, s13, v%d, 1", T2, T0)
    a("v_mad_u32_u24 v%d, v%d, 31, v%d", KA, T2, KA)
    a("v_mul_u32_u24 v%d, %d, v%d", KA, TP, KA)
    a("s_lshr_b32 s10, s3, 2")
    a("s_mul_i32 s11, s10, %d", 2 * TPIECE)
    a("s_add_u32 s11, s11, %d", L_TAB + 16 * TP)
    a("v_add3_u32 v%d, v%d, v%d, s11", KA, KA, T1)
    a("s_mul_i32 s10, s10, %d", KCH)
    a("s_and_b32 s11, s3, 2")
    a("s_lshl_b32 s11, s11, 7")
    a("s_add_u32 s10, s10, s11")
    a("s_add_u32 s10, s10, %d", L_K + 64)
    a("s_bitcmp1_b32 s3, 0")
    a("s_mov_b32 s11, 0x%x", 0 | (64 << 8) | (65 << 16) | (1 << 24))
    a("s_cmov_b32 s11, 0x%x", 0 | (64 << 8) | (128 << 16) | (192 << 24))
    a("s_cselect_b32 s12, 1024, 0")
    a("s_add_u32 s10, s10, s12")
    a("v_lshrrev_b32 v%d, 4, v1", T1)
    a("v_lshlrev_b32 v%d, 3, v%d", T1, T1)
    a("v_bfe_u32 v%d, s11, v%d, 8", T1, T1)
    a("v_lshlrev_b32 v%d, 4, v%d", T0, T0)
    a("v_lshl_add_u32 v%d, v%d, 3, v%d", T0, T1, T0)
    a("v_add_u32 v%d, s10, v%d", KW, T0)
    a("s_bfe_u32 s10, s3, 0x10001")
    a("v_lshrrev_b32 v%d, 5, v1", T0)
    a("v_lshlrev_b32 v%d, 6, v%d", PVA, T0)
    a("v_and_b32 v%d, 31, v1", T1)
    a("v_lshlrev_b32 v%d, 4, v%d", PVB, T1)
    a("v_sub_u32 v%d, v%d, v%d", PVB, PVB, PVA)
    a("v_and_b32 v%d, 1, v1", T2)
    a("v_lshl_add_u32 v%d, v%d, 5, v%d", PVA, T2, PVA)
    a("v_lshrrev_b32 v%d, 2, v%d", T1, T1)
    a("v_lshl_add_u32 v%d, v%d, 1, v%d", T1, T1, T0)
    a("v_lshlrev_b32 v%d, 5, v%d", PVY, T1)
    a("v_lshl_add_u32 v%d, v%d, 4, v%d", PVY, T2, PVY)
    a("s_mul_i32 s11, s10, %d", CYCH)
    a("s_add_u32 s11, s11, %d", L_CY)
    a("v_lshl_add_u32 v%d, v%d, 4, s11", PVC, T1)
    a("v_bfe_u32 v%d, v1, 4, 1", T2)
    a("v_lshl_add_u32 v%d, v%d, 4, v%d", PVA, T2, PVA)
    a("v_bfe_u32 v%d, v1, 1, 1", T2)
    a("v_lshl_add_u32 v%d, v%d, 3, v%d", PVA, T2, PVA)
    a("v_bfe_u32 v%d, v1, 2, 2", T2)
    a("v_lshlrev_b32 v%d, 3, v%d", T2, T2)
    a("v_sub_u32 v%d, v%d, v%d", PVA, PVA, T2)
    a("s_mul_i32 s11, s10, %d", KCH)
    a("s_add_u32 s11, s11, %d", L_K + 32)
    a("v_add_u32 v%d, s11, v%d", PVA, PVA)
    a("s_mul_i32 s11, s10, %d", UCH)
    a("s_add_u32 s11, s11, %d", L_U + 512 - 384)
    a("v_add_u32 v%d, s11, v%d", PVB, PVB)
    a("s_lshl_b32 s11, s2, 1")
    a("s_add_u32 s11, s11, s10")
    a("s_lshl_b32 s11, s11, 12")
    a("s_add_u32 s%d, s11, %d", S_YB, WS_Y)
    a("s_lshl_b32 s%d, s4, 2", S_TB)
    a("s_and_b32 s10, s5, 3")
    a("s_add_u32 s%d, s%d, s10", S_TB, S_TB)
    a("s_lshr_b32 s%d, s5, 2", S_DB)
    a("s_lshr_b32 s%d, s3, 2", S_KH)
    a("s_and_b32 s%d, s3, 3", S_TQ)
    a("s_lshl_b32 s10, s%d, 1", S_TB)
    a("s_and_b32 s13, s3, 1")
    a("s_add_u32 s10, s10, s13")
    a("s_mul_i32 s11, s10, 112")
    a("s_lshr_b32 s12, s3, 1")
    a("s_mul_i32 s%d, s12, %d", S_W0S, 448 * 1024)
    a("s_lshl_b32 s13, s13, 15")
    a("s_add_u32 s%d, s%d, s13", S_W0S, S_W0S)
    a("s_mul_i32 s13, s12, 28")
    a("s_add_u32 s11, s11, s13")
    a("s_lshl_b32 s%d, s11, 10", S_HB)
    a("s_lshl_b32 s%d, s10, 7", S_GOFF)
    a("s_add_u32 s%d, s%d, %d", S_GOFF, S_GOFF, WS_G)
    a("s_lshl_b32 s10, s10, 15")
    a("s_lshl_b32 s11, s%d, 7", S_DB)
    a("s_lshl_b32 s12, s12, 5")
    a("s_add_u32 s%d, s11, s12", S_DOFF)
    a("s_add_u32 s%d, s10, s%d", S_OB, S_DOFF)
    a("s_mul_i32 s%d, s%d, %d", S_WSO, S_TQ, 448 * 1024)
    a("s_lshl_b32 s%d, s%d, 13", S_WLD, S_TQ)
    if opt("rot", 0):
        a("s_cmp_eq_u32 s%d, 7", S_DB)
        a("s_cselect_b32 s10, 0, s%d", S_DB)
        a("s_lshl_b32 s%d, s10, 12", S_RT)
    else:
        a("s_mov_b32 s%d, 0", S_RT)
    for rd in range(1, 7):
        a("s_add_u32 s10, s%d, 4096", S_RT + rd - 1)
        a("s_cmp_eq_u32 s10, %d", 7 * 4096)
        a("s_cselect_b32 s%d, 0, s10", S_RT + rd)
    a("s_lshl_b32 s10, s%d, 4", S_RT)
    a("s_add_u32 s%d, s%d, s10", S_W0S, S_W0S)
    a("v_lshlrev_b32 v%d, 4, v1", VH)
    a("v_lshrrev_b32 v%d, 3, v1", T0)
    a("v_lshlrev_b32 v%d, 10, v%d", T0, T0)
    a("v_bfe_u32 v%d, v1, 4, 1", T1)
    a("v_lshlrev_b32 v%d, 2, v%d", T1, T1)
    a("v_and_b32 v%d, 7, v1", T2)
    a("v_xor_b32 v%d, v%d, v%d", T2, T2, T1)
    a("v_lshl_add_u32 v%d, v%d, 4, v%d", T0, T2, T0)
    a("v_add_u32 v%d, s11, v%d", VWD, T0)
    a("v_lshrrev_b32 v%d, 5, v1", T0)
    a("v_bfe_u32 v%d, v1, 2, 2", T1)
    a("v_lshl_add_u32 v%d, v%d, 2, v%d", T0, T0, T1)
    a("v_lshlrev_b32 v%d, 7, v%d", T0, T0)
    a("v_bfe_u32 v%d, v1, 3, 1", T1)
    a("v_lshl_add_u32 v%d, v%d, 6, v%d", T0, T1, T0)
    a("v_bfe_u32 v%d, v1, 4, 1", T1)
    a("v_lshl_add_u32 v%d, v%d, 5, v%d", T0, T1, T0)
    a("v_and_b32 v%d, 1, v1", T1)
    a("v_lshl_add_u32 v%d, v%d, 4, v%d", T0, T1, T0)
    a("v_bfe_u32 v%d, v1, 1, 1", T1)
    a("v_lshl_add_u32 v%d, v%d, 3, v%d", T0, T1, T0)
    a("v_xor_b32 v%d, s12, v%d", T0, T0)
    a("s_lshl_b32 s12, s12, 8")
    a("v_add_u32 v%d, s12, v%d", VR0, T0)
    a("s_lshl_b32 s10, s3, 2")
    a("s_add_u32 s10, s10, %d", L_SY)
    a("v_mov_b32 v%d, s10", VSY)

def kreads():
    L = []
    for ks in range(8):
        L.append(("ds_read_b128 %s, v%d offset:%d" % (vr(KF + 8 * ks, 4), KA, ks * 16), ("k", ks)))
        L.append(("ds_read_b128 %s, v%d offset:%d" % (vr(KF + 8 * ks + 4, 4), KBa, ks * 16), ("k", ks)))
    return L
def run_kmfma(lg, fill, per):
    for ks in range(8):
        lg.need([("k", ks)])
        d = vr(KD, 4)
        a("v_mfma_f32_16x16x32_bf16 %s, %s, %s, %s", d, vr(KF + 8 * ks, 4), vr(KF + 8 * ks + 4, 4), d if ks else "0")
        for _ in range(per):
            if fill: lg.run(fill.pop(0))
    for f in fill: lg.run(f)
    lb = a.label("Lkm1"); le = a.label("Lkme")
    T = KF
    a("s_bitcmp1_b32 s3, 0")
    a("s_cbranch_scc1 %s", lb)
    a("v_cvt_pk_bf16_f32 v%d, v%d, v%d", T, KD, KD + 1)
    a("v_cvt_pk_bf16_f32 v%d, v%d, v%d", T + 1, KD + 2, KD + 3)
    a("ds_write_b64 v%d, %s", KW, vr(T, 2))
    a("s_branch %s", le)
    a(lb + ":")
    a("s_nop 7")
    a("s_mov_b32 s10, 0xaaaaaaaa")
    a("s_mov_b32 s11, 0xaaaaaaaa")
    a("v_cndmask_b32 v%d, v%d, v%d, s[10:11]", T + 12, KD, KD + 1)
    a("v_cndmask_b32 v%d, v%d, v%d, s[10:11]", T + 13, KD + 2, KD + 3)
    a("v_cvt_pk_bf16_f32 v%d, v%d, v%d", T, KD, KD)
    a("v_cvt_pk_bf16_f32 v%d, v%d, v%d", T + 1, KD, KD)
    a("v_cvt_pk_bf16_f32 v%d, v%d, v%d", T + 2, T + 12, KD + 1)
    a("v_cvt_pk_bf16_f32 v%d, v%d, v%d", T + 3, KD + 1, KD + 1)
    a("v_cvt_pk_bf16_f32 v%d, v%d, v%d", T + 4, KD + 2, KD + 2)
    a("v_cvt_pk_bf16_f32 v%d, v%d, v%d", T + 5, KD + 2, KD + 2)
    a("v_cvt_pk_bf16_f32 v%d, v%d, v%d", T + 6, T + 13, KD + 3)
    a("v_cvt_pk_bf16_f32 v%d, v%d, v%d", T + 7, KD + 3, KD + 3)
    a("s_mov_b64 exec, 0xffffffff")
    a("v_cvt_pk_bf16_f32 v%d, v%d, v%d", T + 1, KD, KD + 1)
    a("v_mov_b32 v%d, v%d", T + 2, T + 3)
    a("v_mov_b32 v%d, v%d", T + 3, T + 4)
    a("s_not_b64 exec, exec")
    a("ds_write_b128 v%d, %s offset:1024", KW, vr(T + 4, 4))
    a("s_mov_b64 exec, -1")
    a("ds_write_b128 v%d, %s", KW, vr(T, 4))
    a(le + ":")

def zero_pads_a():
    T = KD
    for i in range(4): a("v_mov_b32 v%d, 0", T + i)
    a("s_lshr_b32 s10, s3, 2")
    a("s_mul_i32 s11, s10, %d", UCH)
    a("v_lshl_add_u32 v%d, v1, 4, s11", VUL + 4)
    a("s_mul_i32 s11, s10, %d", CYCH)
    a("s_add_u32 s11, s11, %d", L_CY)
    a("v_and_b32 v%d, 7, v1", 235)
    a("v_lshlrev_b32 v%d, 4, v%d", 235, 235)
    a("v_add_u32 v%d, %d, v%d", 235, L_SY, 235)
    a("v_cmp_lt_u32 vcc, 31, v1")
    a("v_cndmask_b32 v%d, v%d, v%d, vcc", VUL + 4, VUL + 4, 235)
    a("v_writelane_b32 v%d, s11, 32", VUL + 4)
    a("ds_write_b128 v%d, %s", VUL + 4, vr(T, 4))
def zero_pads_b():
    a("s_lshr_b32 s10, s3, 2")
    a("s_mul_i32 s11, s10, %d", KCH)
    a("v_and_b32 v%d, 15, v1", 235)
    a("v_lshl_add_u32 v%d, v%d, 2, s11", 235, 235)
    a("v_mov_b32 v%d, 0", 234)
    a("ds_write_b32 v%d, v%d offset:%d", 235, 234, L_K)
VUL2 = 156
def u_load():
    a("v_lshlrev_b32 v%d, 5, v1", VUL + 4)
    a("s_lshl_b32 s10, s2, 13")
    a("s_lshl_b32 s11, s%d, 11", S_TQ)
    a("s_add_u32 s10, s10, s11")
    a("s_add_u32 s10, s10, %d", WS_UT)
    a("buffer_load_dwordx4 %s, v%d, %s, s10 offen sc1", vr(VUL, 4), VUL + 4, sr(SWS, 4))
    a("buffer_load_dwordx4 %s, v%d, %s, s10 offen offset:16 sc1", vr(VUL2, 4), VUL + 4, sr(SWS, 4))
def u_write():
    a("s_lshl_b32 s11, s%d, 10", S_TQ)
    a("v_add_u32 v%d, s11, v%d", VUL + 4, VH)
    a("ds_write_b128 v%d, %s offset:%d", VUL + 4, vr(VUL, 4), L_U + 512)
    a("ds_write_b128 v%d, %s offset:%d", VUL + 4, vr(VUL2, 4), L_U + UCH + 512)
def role(lo, hi):
    l1 = a.label("Lr1"); l2 = a.label("Lr2")
    a("s_cmp_ge_u32 s3, 4")
    a("s_cbranch_scc1 %s", l1)
    if lo: lo()
    if hi:
        a("s_branch %s", l2)
        a(l1 + ":")
        hi()
        a(l2 + ":")
    else:
        a(l1 + ":")

def nonce_issue():
    a("global_load_dwordx2 %s, v%d, %s sc1", vr(VN, 2), VZ, sr(P_DBG, 2))
slow = []
def nonce_check():
    ok = a.label("Lnok"); lp = a.label("Lnlp")
    a(ok + "r:")
    a("v_readfirstlane_b32 s10, v%d", VN + 1)
    a("v_readfirstlane_b32 s%d, v%d", S_NONCE, VN)
    a("s_cmp_lg_u32 s10, 1")
    a("s_cbranch_scc1 %s", lp)
    a(ok + ":")
    def sp():
        a(lp + ":")
        a("s_add_u32 s%d, s%d, 1", S_SPIN, S_SPIN)
        a("s_cmp_ge_u32 s%d, %d", S_SPIN, SPINMAX)
        a("s_cbranch_scc1 %s", ok)
        a("s_sleep 2")
        a("global_load_dwordx2 %s, v%d, %s sc1", vr(VN, 2), VZ, sr(P_DBG, 2))
        a("s_waitcnt vmcnt(0)")
        a("s_branch %sr", ok)
    slow.append(sp)
def poll_issue(n):
    a("v_min_u32 v%d, %d, v1", VN + 2, n - 1)
    a("v_lshlrev_b32 v%d, 2, v%d", VN + 2, VN + 2)
    a("buffer_load_dword v%d, v%d, %s, s%d offen sc1", VN - 1, VN + 2, sr(SWS, 4), S_PB)
def poll_check(sleep=2):
    ok = a.label("Lpok"); lp = a.label("Lplp")
    a(ok + "r:")
    a("v_cmp_ne_u32 vcc, s%d, v%d", S_NONCE, VN - 1)
    a("s_cmp_lg_u64 vcc, 0")
    a("s_cbranch_scc1 %s", lp)
    a(ok + ":")
    def sp():
        a(lp + ":")
        a("s_add_u32 s%d, s%d, 1", S_SPIN, S_SPIN)
        a("s_cmp_ge_u32 s%d, %d", S_SPIN, SPINMAX)
        a("s_cbranch_scc1 %s", ok)
        if sleep: a("s_sleep %d", sleep)
        a("buffer_load_dword v%d, v%d, %s, s%d offen sc1", VN - 1, VN + 2, sr(SWS, 4), S_PB)
        a("s_waitcnt vmcnt(0)")
        a("s_branch %sr", ok)
    slow.append(sp)
def flag_store(sbase):
    a("v_mov_b32 v%d, 0", VN)
    a("v_mov_b32 v%d, s%d", VN + 1, S_NONCE)
    a("s_mov_b64 exec, 1")
    a("buffer_store_dword v%d, v%d, %s, %s offen sc1", VN + 1, VN, sr(SWS, 4), sbase)
    a("s_mov_b64 exec, -1")
def lds_wait(vaddr, off, vtmp, sleep=1):
    lp = a.label("Llw"); ok = a.label("Llok")
    a(lp + ":")
    a("ds_read_b32 v%d, v%d offset:%d", vtmp, vaddr, off)
    a("s_add_u32 s%d, s%d, 1", S_SPIN, S_SPIN)
    a("s_waitcnt lgkmcnt(0)")
    a("v_cmp_eq_u32 vcc, 0, v%d", vtmp)
    a("s_cmp_eq_u64 vcc, 0")
    a("s_cbranch_scc1 %s", ok)
    a("s_sleep %d", sleep)
    a("s_cmp_lt_u32 s%d, %d", S_SPIN, SPINMAX * 16)
    a("s_cbranch_scc1 %s", lp)
    a(ok + ":")

a("s_cmp_ge_u32 s2, 256")
a("s_cbranch_scc1 L_end")
if STAMP:
    a("s_memrealtime s[96:97]")
    a("s_memtime s[98:99]")
a("s_load_dwordx16 s[16:31], s[0:1], 0")
a("s_load_dwordx16 s[32:47], s[0:1], 64")
a("s_load_dwordx2 s[48:49], s[0:1], 128")
a("v_and_b32 v1, 63, v0")
a("v_lshrrev_b32 v2, 6, v0")
a("v_readfirstlane_b32 s3, v2")
a("s_and_b32 s4, s2, 7")
a("s_lshr_b32 s5, s2, 3")
a("s_mov_b32 s%d, 0", S_SPIN)
a("v_mov_b32 v%d, 0", VZ)
a("v_mov_b32 v%d, 0", VN + 2)
if STAMP: a("v_mov_b32 v255, 0")
a("s_lshr_b32 s6, s4, 1")
a("s_lshl_b32 s6, s6, 2")
a("s_and_b32 s7, s5, 3")
a("s_add_u32 s6, s6, s7")
a("s_and_b32 s7, s4, 1")
a("s_mul_i32 s7, s7, 7")
a("s_lshr_b32 s8, s5, 2")
a("s_add_u32 s7, s7, s8")
a("s_sub_u32 s7, s7, 1")
a("s_and_b32 s8, s3, 1")
a("s_lshr_b32 s9, s3, 1")
VX0, VX1, VW0, VW1 = 4, 5, 6, 7
VXR = 8
VWA, VWB = 12, 13
T0, T1, T2, T3 = 14, 15, 16, 17
kgen_setup()
a("s_lshl_b32 s10, s6, 7")
a("s_lshl_b32 s11, s3, 4")
a("s_add_u32 s10, s10, s11")
a("s_lshl_b32 s10, s10, 10")
a("v_lshrrev_b32 v%d, 3, v1", T0)
a("v_lshlrev_b32 v%d, 10, v%d", T0, T0)
a("v_lshrrev_b32 v%d, 4, v1", T1)
a("v_and_b32 v%d, 7, v1", T2)
a("v_xor_b32 v%d, v%d, v%d", T2, T2, T1)
a("v_lshl_add_u32 v%d, v%d, 4, v%d", T0, T2, T0)
a("v_add_u32 v%d, s10, v%d", VX0, T0)
a("v_xor_b32 v%d, 64, v%d", VX1, VX0)
a("v_add_u32 v%d, 0x2000, v%d", VX1, VX1)
a("s_mul_i32 s10, s3, %d", 8 * 3584)
a("s_lshl_b32 s11, s7, 8")
a("s_add_u32 s10, s10, s11")
a("v_mul_u32_u24 v%d, 3584, v%d", T0, T1)
a("v_lshlrev_b32 v%d, 2, v%d", T2, T1)
a("v_and_b32 v%d, 15, v1", T3)
a("v_xor_b32 v%d, v%d, v%d", T2, T2, T3)
a("v_lshl_add_u32 v%d, v%d, 4, v%d", T0, T2, T0)
a("v_add_u32 v%d, s10, v%d", VW0, T0)
a("v_add_u32 v%d, %d, v%d", VW1, 4 * 3584, VW0)
a("s_lshl_b32 s%d, s3, 11", S_W2K)
for r, n in ((SX, 2048 * 1024), (SG, 512 * 3584), (SU, 512 * 3584), (SWS, WS_BYTES), (SW, 1792 * 1024), (SO, 2048 * 1024)):
    a("s_mov_b32 s%d, 0x%x", r + 2, n)
    a("s_mov_b32 s%d, 0x20000", r + 3)
a("s_cmp_lt_u32 s5, 4")
a("s_cselect_b32 s%d, 1, 0", S_ISAUX)
a("s_waitcnt lgkmcnt(0)")
def srd_base(r, p):
    a("s_mov_b32 s%d, s%d", r, p)
    a("s_and_b32 s%d, s%d, 0xffff", r + 1, p + 1)
srd_base(SX, P_U)
a("s_cmp_lg_u32 s%d, 0", S_ISAUX)
a("s_cbranch_scc1 L_aux")

vm = []
def vmwait(tags):
    idx = [i for i, t in enumerate(vm) if t in tags]
    return len(vm) - 1 - max(idx)
def dma1(stage, j):
    if opt("nodma", 0) and stage >= 3:
        vm.insert(0, ("G1", stage)); return
    slot = stage % 3
    kind = j // 2; i = j % 2
    base = [XB[slot], GB[slot], GB[slot] + 1][kind] * BLK + i * 1024
    a("s_add_u32 m0, s%d, %d", S_W2K, base)
    a("s_mov_b32 s%d, %d", S_T, stage * 128 if kind == 0 else stage * 64 * 3584)
    a("buffer_load_dwordx4 v%d, %s, s%d offen lds", [VX0, VW0, VW0][kind] + i, sr([SX, SG, SU][kind], 4), S_T)
    vm.append(("G1", stage))
dma1(0, 0); dma1(0, 1)
srd_base(SG, P_WG)
dma1(0, 2); dma1(0, 3)
srd_base(SU, P_WU)
dma1(0, 4); dma1(0, 5)
vm += [("KP", 0)] * kgen_loads()
def common_srds():
    srd_base(SWS, P_WS); srd_base(SW, P_WD); srd_base(SO, P_OUT)
common_srds()
a("v_and_b32 v%d, 31, v1", T0)
a("v_lshrrev_b32 v%d, 5, v1", T1)
a("v_bfe_u32 v%d, v1, 1, 3", T2)
a("v_xor_b32 v%d, v%d, v%d", T2, T2, T1)
a("v_lshlrev_b32 v%d, 7, v%d", T0, T0)
a("v_lshl_add_u32 v%d, v%d, 4, v%d", T0, T2, T0)
a("s_lshl_b32 s10, s8, 13")
a("v_add_u32 v%d, s10, v%d", VXR, T0)
for ks in range(1, 4): a("v_xor_b32 v%d, %d, v%d", VXR + ks, ks << 5, VXR)
a("v_bfe_u32 v%d, v1, 2, 2", T0)
a("v_lshl_add_u32 v%d, v%d, 3, v%d", T2, T1, T0)
a("v_lshlrev_b32 v%d, 8, v%d", T2, T2)
a("v_xor_b32 v%d, s9, v%d", T0, T0)
a("v_lshl_add_u32 v%d, v%d, 6, v%d", T2, T0, T2)
a("v_bfe_u32 v%d, v1, 4, 1", T0)
a("v_lshl_add_u32 v%d, v%d, 5, v%d", T2, T0, T2)
a("v_and_b32 v%d, 3, v1", T0)
a("v_lshl_add_u32 v%d, v%d, 3, v%d", T2, T0, T2)
a("v_add_u32 v%d, %d, v%d", VWA, 4 * BLK, T2)
a("v_add_u32 v%d, %d, v%d", VWB, 8 * BLK, T2)
for j in range(6): dma1(1, j)
a("s_lshl_b32 s10, s6, 2")
a("s_lshl_b32 s11, s8, 1")
a("s_add_u32 s10, s10, s11")
a("s_mul_i32 s10, s10, 112")
a("s_lshl_b32 s11, s7, 3")
a("s_add_u32 s10, s10, s11")
a("s_lshl_b32 s11, s9, 1")
a("s_add_u32 s10, s10, s11")
a("s_lshl_b32 s%d, s10, 10", S_HST)
a("s_lshl_b32 s10, s6, 7")
a("s_lshl_b32 s11, s7, 2")
a("s_add_u32 s10, s10, s11")
a("s_add_u32 s%d, s10, %d", S_FH, F_H)
later_addrs(T0, T1, T2)
FR = 20
ACC = 84
def reads1(step):
    st, ks = step // 4, step % 4
    slot = st % 3
    f = FR + (step % 2) * 16
    def xr(tt): return ("ds_read_b128 %s, v%d offset:%d" % (vr(f + 4 * tt, 4), VXR + ks, XB[slot] * BLK + tt * 4096), (step, "x", tt))
    def wr(gu, hf):
        blk = GB[slot] + gu
        reg, rel = (VWA, blk - 4) if blk < 8 else (VWB, blk - 8)
        return ("ds_read_b64_tr_b16 %s, v%d offset:%d" % (vr(f + 8 + 4 * gu + 2 * hf, 2), reg, rel * BLK + ks * 4096 + hf * 1024), (step, "w", gu))
    return [xr(0), wr(0, 0), wr(0, 1), wr(1, 0), wr(1, 1), xr(1)]
stamp(0)
a("s_waitcnt vmcnt(%d)", vmwait([("G1", 0)]))
a("s_barrier")
stamp(1)
lg = Lg()
for r in reads1(0): lg.issue(*r)
khead, ktail = kgen_valu(True)
a("s_waitcnt vmcnt(%d)", vmwait([("KP", 0)]))
NHEAD0 = opt("nhead0", 24)
for i in khead[:NHEAD0]: a(i)
kv = khead[NHEAD0:] + ktail
if opt("nokv", 0): kv = []
pend = {}
def at(g, item): pend.setdefault(g, []).append(item)
for j in range(6): at(j + 1, lambda j=j: dma1(2, j))
DG = [0, 3, 5, 8, 10, 13]
KVG = opt("kvg", 3)
def dma_w0(i):
    a("s_lshl_b32 s10, s3, 12")
    a("s_add_u32 m0, s10, %d", WB[0] * BLK + i * 1024)
    a("s_add_u32 s10, s%d, %d", S_W0S, i * 8192)
    a("buffer_load_dwordx4 v%d, %s, s10 offen lds", VWD, sr(SW, 4))
    a("s_mov_b32 m0, s%d", S_TM0)
    vm.append(("W0", 0))
S_PFI = 101
def wd_prefetch(slot):
    if slot == 0:
        a("s_sub_u32 s%d, s5, 4", S_PFI)
        a("s_lshl_b32 s%d, s%d, 3", S_PFI, S_PFI)
        a("s_add_u32 s%d, s%d, s3", S_PFI, S_PFI)
    else:
        a("s_add_u32 s%d, s%d, 224", S_PFI, S_PFI)
    a("s_bfe_u32 s10, s%d, 0x20006", S_PFI)
    a("s_mul_i32 s10, s10, 448")
    a("s_lshr_b32 s11, s%d, 8", S_PFI)
    a("s_lshl_b32 s11, s11, 6")
    a("s_add_u32 s10, s10, s11")
    a("s_and_b32 s11, s%d, 63", S_PFI)
    a("s_add_u32 s10, s10, s11")
    a("s_lshl_b32 s10, s10, 10")
    a("buffer_load_dwordx4 v[52:55], v%d, %s, s10 offen", VH, sr(SW, 4))
    vm.append(("PF", 0))
PF = opt("pf", 0)
for step in range(32):
    st, ks = step // 4, step % 4
    f = FR + (step % 2) * 16
    nxt = reads1(step + 1) if step < 31 else kreads()
    for i, (gu, tt) in enumerate([(0, 0), (1, 0), (0, 1), (1, 1)]):
        d = vr(ACC + (gu * 2 + tt) * 16, 16)
        lg.need([(step, "w", gu), (step, "x", tt)])
        a("v_mfma_f32_32x32x16_bf16 %s, %s, %s, %s", d, vr(f + 8 + 4 * gu, 4), vr(f + 4 * tt, 4), d if step else "0")
        for _ in range(4 if step == 31 else 2):
            if nxt: lg.issue(*nxt.pop(0))
        items = pend.pop(step * 4 + i, [])
        for p in items: lg.run(p)
        if not items:
            for _ in range(KVG + (1 if i >= 2 else 0)):
                if kv: a(kv.pop(0))
    if ks == 2:
        assert not pend, (step, len(pend))
        g0 = (step + 1) * 4
        if st < 7:
            tags = [("G1", st + 1)]
            a("s_waitcnt vmcnt(%d) lgkmcnt(0)", vmwait(tags))
        else:
            a("s_waitcnt lgkmcnt(0)")
        lg.drained()
        a("s_barrier")
        if opt("stg", 0) and st < 7: stamp(8 + st)
        if st + 3 <= 7:
            for j in range(6): at(g0 + DG[j], lambda j=j, s=st + 3: dma1(s, j))
        if PF and st <= 4: at(g0 + 15, lambda st=st: wd_prefetch(st))
        if st == 5:
            assert not kv, len(kv)
            at(g0, "s_mov_b32 m0, s%d" % S_TM0)
            for j, w_ in enumerate(kgen_writes()[:16]): at(g0 + j, w_)
            def f_():
                nonce_issue(); vm.append(("X", 0))
                a("s_mov_b32 s%d, %d", S_PB, F_A)
                poll_issue(32); vm.append(("PA", 0))
            at(g0 + opt("pagap", 6), f_)
            if PF:
                for k_ in range(3): at(g0 + 9 + 3 * k_, lambda k_=k_: wd_prefetch(5 + k_))
        if st == 6:
            for j, w_ in enumerate(kgen_writes()[16:]): at(g0 + j, w_)
            at(g0 + 1, zero_pads_a)
            def f_():
                a("s_waitcnt vmcnt(%d)", vmwait([("PA", 0)]))
                nonce_check()
                def lo():
                    poll_check()
                    u_load()
                role(lo, None)
            at(g0 + 3, f_)
            for i_ in range(4): at(g0 + 5 + 3 * i_, lambda i_=i_: dma_w0(i_))
assert not pend, len(pend)
stamp(2)
fill = []
for tt in range(2):
    g = ACC + tt * 16; u = ACC + (2 + tt) * 16
    for o in range(2):
        for q in range(8 * o, 8 * o + 8):
            fill.append("v_mul_f32 v%d, v%d, v%d" % (g + q, g + q, u + q))
        dst = FR + 8 * tt + 4 * o
        for q in range(4):
            fill.append("v_cvt_pk_bf16_f32 v%d, v%d, v%d" % (dst + q, g + 8 * o + 2 * q, g + 8 * o + 2 * q + 1))
        fill.append("buffer_store_dwordx4 %s, v%d, %s, s%d offen offset:%d %s" % (vr(dst, 4), VH, sr(SWS, 4), S_HST, 1024 * o, ["sc1", "sc0 sc1", "sc1 nt", "", "nt"][opt("hst", 0)]))
    if tt == 0: fill.append("s_add_u32 s%d, s%d, %d" % (S_HST, S_HST, 112 * 1024))
fill.append(zero_pads_b)
def f_():
    def lo():
        a("s_waitcnt vmcnt(8)")
        u_write()
    role(lo, None)
fill.append(f_)
run_kmfma(lg, fill, 7)
a("s_branch L_post")

a("L_aux:")
common_srds()
a("s_lshl_b32 s6, s4, 2")
a("s_add_u32 s6, s6, s5")
PITCH = 1040
LA = 6 * BLK - 1024
LGW = 0
a("v_lshlrev_b32 v4, 4, v1")
a("v_mov_b32 v10, 0")
a("s_mov_b32 s9, %d", F_E)
a("buffer_load_dword v12, v10, %s, s9 offen sc1", sr(SWS, 4))
a("s_lshl_b32 s7, s6, 16")
a("s_lshl_b32 s8, s3, 13")
a("s_add_u32 s7, s7, s8")
a("s_mul_i32 s8, s3, %d", 8 * PITCH)
for j in range(8):
    a("s_add_u32 m0, s8, %d", LA + j * PITCH)
    a("s_add_u32 s11, s7, %d", j * 1024)
    a("buffer_load_dwordx4 v4, %s, s11 offen lds", sr(SX, 4))
a("global_load_dwordx4 v[28:31], v4, %s", sr(P_GW, 2))
kgen_loads()
a("s_or_b32 s10, s2, s3")
a("s_cmp_lg_u32 s10, 0")
a("s_cbranch_scc1 L_nononce")
a("s_mov_b32 s10, 0x9e3779b1")
a("s_waitcnt vmcnt(16)")
a("v_mul_lo_u32 v12, v12, s10")
a("v_add_u32 v12, 0x7f4a7c15, v12")
a("v_mov_b32 v13, 1")
a("s_mov_b64 exec, 1")
a("global_store_dwordx2 v10, v[12:13], %s sc1", sr(P_DBG, 2))
a("buffer_store_dword v12, v10, %s, s9 offen sc1", sr(SWS, 4))
a("s_mov_b64 exec, -1")
a("L_nononce:")
a("v_and_b32 v5, 7, v0")
a("v_lshlrev_b32 v5, 4, v5")
a("v_lshrrev_b32 v6, 4, v1")
a("v_bfe_u32 v7, v1, 2, 2")
a("v_lshl_add_u32 v7, v7, 2, v6")
a("v_mul_u32_u24 v7, %d, v7", PITCH)
a("v_and_b32 v8, 3, v1")
a("v_lshl_add_u32 v7, v8, 3, v7")
a("s_and_b32 s9, s3, 1")
a("s_mul_i32 s10, s9, %d", 32 * PITCH)
a("s_lshr_b32 s11, s3, 1")
a("s_lshl_b32 s12, s11, 8")
a("s_add_u32 s10, s10, s12")
a("s_add_u32 s10, s10, %d", LA)
a("v_add_u32 v7, s10, v7")
a("v_bfe_u32 v8, v1, 1, 3")
a("v_lshlrev_b32 v8, 13, v8")
a("v_lshl_add_u32 v8, v6, 5, v8")
a("v_and_b32 v9, 1, v1")
a("v_lshl_add_u32 v8, v9, 4, v8")
a("s_lshl_b32 s12, s11, 19")
a("s_lshl_b32 s13, s6, 1")
a("s_add_u32 s13, s13, s9")
a("s_lshl_b32 s13, s13, 7")
a("s_add_u32 s12, s12, s13")
a("s_add_u32 s12, s12, %d", WS_UT)
a("v_lshrrev_b32 v9, 3, v0")
a("v_mul_u32_u24 v10, %d, v9", PITCH)
a("v_add_u32 v10, v10, v5")
a("v_add_u32 v10, %d, v10", LA)
a("s_waitcnt vmcnt(7)")
a("ds_write_b128 v4, v[28:31] offset:%d", LGW)
a("s_waitcnt lgkmcnt(0)")
a("s_barrier")
stamp(0)
for j in range(8):
    for hf in range(2):
        a("ds_read_b64_tr_b16 %s, v7 offset:%d", vr(64 + 4 * j + 2 * hf, 2), hf * 16 * PITCH + j * 32)
nonce_issue()
for j in range(8):
    a("s_waitcnt lgkmcnt(%d)", 14 - 2 * j)
    a("s_add_u32 s13, s12, %d", j * 65536)
    a("buffer_store_dwordx4 %s, v8, %s, s13 offen sc1", vr(64 + 4 * j, 4), sr(SWS, 4))
for j in range(8):
    a("ds_read_b128 %s, v10 offset:%d", vr(96 + 4 * j, 4), j * 128)
    a("ds_read_b128 %s, v5 offset:%d", vr(32 + 4 * j, 4), LGW + j * 128)
a("v_mov_b32 v11, 0")
a("v_mov_b32 v12, 0")
a("s_waitcnt lgkmcnt(0)")
for j in range(32):
    a("v_dot2_f32_bf16 v%d, v%d, v%d, v%d", 11 + j % 2, 32 + j, 96 + j, 11 + j % 2)
a("v_add_f32 v11, v11, v12")
a("v_add_f32_dpp v11, v11, v11 quad_perm:[1,0,3,2] row_mask:0xf bank_mask:0xf")
a("v_add_f32_dpp v11, v11, v11 quad_perm:[2,3,0,1] row_mask:0xf bank_mask:0xf")
a("v_add_f32_dpp v11, v11, v11 row_half_mirror row_mask:0xf bank_mask:0xf")
a("v_mul_f32 v11, 0xbfb8aa3b, v11")
a("v_exp_f32 v11, v11")
a("v_add_f32 v11, 1.0, v11")
a("v_rcp_f32 v11, v11")
a("v_lshlrev_b32 v9, 2, v9")
a("s_waitcnt vmcnt(0)")
nonce_check()
a("s_barrier")
a("s_cmp_lg_u32 s3, 0")
a("s_cbranch_scc1 L_auxnf")
a("s_lshl_b32 s10, s6, 2")
a("s_add_u32 s10, s10, %d", F_A)
flag_store("s10")
a("L_auxnf:")
stamp(1)
a("s_lshl_b32 s13, s6, 8")
a("s_add_u32 s13, s13, %d", WS_G)
a("v_cmp_eq_u32 vcc, 0, v5")
a("s_mov_b64 exec, vcc")
a("buffer_store_dword v11, v9, %s, s13 offen sc1", sr(SWS, 4))
a("s_mov_b64 exec, -1")
khead, ktail = kgen_valu(False)
for i in khead: a(i)
later_addrs(T0, T1, T2)
for i in ktail: a(i)
a("s_mov_b32 m0, s%d", S_TM0)
for i in kgen_writes(): a(i)
zero_pads_a()
zero_pads_b()
a("s_mov_b32 s%d, %d", S_PB, F_A)
poll_issue(32)
a("s_waitcnt vmcnt(0) lgkmcnt(0)")
a("s_barrier")
a("s_cmp_lg_u32 s3, 4")
a("s_cbranch_scc1 L_auxng")
a("s_lshl_b32 s10, s6, 2")
a("s_add_u32 s10, s10, %d", F_G)
flag_store("s10")
a("L_auxng:")
def lo():
    poll_check(4)
    u_load()
role(lo, None)
for i_ in range(4): dma_w0(i_)
stamp(2)
lg = Lg()
for r in kreads(): lg.issue(*r)
def f_():
    def lo():
        a("s_waitcnt vmcnt(4)")
        u_write()
    role(lo, None)
run_kmfma(lg, [f_], 0)

a("L_post:")
VA, VB, VC, VY = 2, 3, 4, 5
a("v_mov_b32 v%d, v%d", VA, PVA)
a("v_mov_b32 v%d, v%d", VB, PVB)
a("v_mov_b32 v%d, v%d", VC, PVC)
a("v_mov_b32 v%d, v%d", VY, PVY)
a("v_mov_b32 v6, 1")
a("v_mov_b32 v7, %d", L_SY)
a("s_waitcnt lgkmcnt(0)")
a("s_barrier")
stamp(3)
a("s_cmp_ge_u32 s3, 4")
a("s_cbranch_scc1 L_help")

HF = 112
def hload(j0, n, vml):
    for j in range(j0, j0 + n):
        if j % 4 == 0 or j == j0:
            a("s_add_u32 s%d, s%d, s%d", S_T, S_HB, S_RT + j // 4)
        a("buffer_load_dwordx4 %s, v%d, %s, s%d offen offset:%d sc1", vr(HF + 4 * j, 4), VH, sr(SWS, 4), S_T, (j % 4) * 1024)
        vml.append(("H", j))

a("s_bitcmp1_b32 s3, 0")
a("s_cbranch_scc1 L_set1")
BF = 112
AF = 8
AC = 28
C1POS = opt("c1pos", 20)
LOOK = opt("look", 6)
NC0 = opt("nc0", 12)
FPG = opt("fpg", 4)
vmc = None
for si, tiles in enumerate([[0, 3, 4, 7], [1, 2, 5, 6]]):
    if si == 1: a("L_set1:")
    lg = Lg()
    sched = []
    maxd = 4 * tiles[-1] + 3
    for dl in range(maxd + 1):
        for ti, jt in enumerate(tiles):
            if dl <= 4 * jt + 3: sched.append((dl, ti, jt))
    loads = []; seenA, seenB = set(), set()
    for pos, (dl, ti, jt) in enumerate(sched):
        if dl not in seenA: seenA.add(dl); loads.append(("A", dl, pos))
        e = 4 * jt - dl
        if e not in seenB: seenB.add(e); loads.append(("B", e, pos))
    lastuseA = {}
    for pos, (dl, ti, jt) in enumerate(sched): lastuseA[dl] = pos
    NA = 5
    def ld_instrs(kind, idx):
        if kind == "A":
            r = AF + 4 * (idx % NA)
            return ["ds_read_b64_tr_b16 %s, v%d offset:%d" % (vr(r + 2 * hf, 2), VA, 128 * idx + 32 * (1 - hf)) for hf in range(2)]
        return ["ds_read_b128 %s, v%d offset:%d" % (vr(BF + 4 * (idx + 3), 4), VB, 128 * (idx + 3))]
    li = 0; fill = []
    def recomb(ti):
        b = AC + 20 * ti
        L = []
        q1 = "quad_perm:[1,1,3,3] row_mask:0xf bank_mask:0xf"; q2 = "quad_perm:[2,2,2,2] row_mask:0xf bank_mask:0xf"
        L.append("v_mov_b32_dpp v%d, v%d %s" % (b + 16, b + 15, q1))
        for q in range(15, 0, -1):
            L.append("v_add_f32_dpp v%d, v%d, v%d %s" % (b + q, b + q - 1, b + q, q1))
        L.append("v_mov_b32_dpp v%d, v%d %s" % (b + 18, b + 16, q2))
        L.append("v_mov_b32_dpp v%d, v%d %s" % (b + 17, b + 15, q2))
        for q in range(16, 1, -1):
            L.append("v_add_f32_dpp v%d, v%d, v%d %s" % (b + q, b + q - 2, b + q, q2))
        return L
    started = set(); hold = 0
    for pos, (dl, ti, jt) in enumerate(sched):
        while li < len(loads) and loads[li][2] <= pos + LOOK:
            kind, idx, fp = loads[li]
            if kind == "A" and idx >= NA and lastuseA[idx - NA] >= pos: break
            for ins in ld_instrs(kind, idx): lg.issue(ins, (kind, idx))
            li += 1
        e = 4 * jt - dl
        lg.need([("A", dl), ("B", e)])
        d = vr(AC + 20 * ti, 16)
        a("v_mfma_f32_32x32x16_bf16 %s, %s, %s, %s", d, vr(AF + 4 * (dl % NA), 4), vr(BF + 4 * (e + 3), 4), d if ti in started else "0")
        started.add(ti)
        if pos == C1POS:
            a("s_waitcnt vmcnt(0)")
            lg.issue("ds_write_b32 v%d, v6" % VSY)
        if hold > 0: hold -= 1
        else:
            for _ in range(FPG):
                if fill: a(fill.pop(0))
        if dl == 4 * jt + 3:
            if not fill: hold = 2
            fill += recomb(ti)
    stamp(4)
    for f in fill: a(f)
    a("s_mov_b32 s12, 0x11111111")
    a("s_mov_b32 s13, 0x11111111")
    a("s_mov_b64 exec, s[12:13]")
    for ti, jt in enumerate(tiles):
        a("ds_write_b128 v%d, %s offset:%d", VC, vr(AC + 20 * ti + 16, 4), 256 * jt + 16)
    a("s_mov_b64 exec, -1")
    a("ds_write_b32 v%d, v6 offset:32", VSY)
    a("v_xor_b32 v%d, 4, v%d", VB, VSY)
    stamp(5)
    lds_wait(VB, 32, VA)
    for ti, jt in enumerate(tiles):
        a("ds_read_b128 %s, v%d offset:%d", vr(AF + 4 * ti, 4), VC, 256 * jt)
    a("s_mov_b64 vcc, s[12:13]")
    a("s_mov_b32 s12, 0x33333333")
    a("s_mov_b32 s13, 0x33333333")
    for ti, jt in enumerate(tiles):
        b = AC + 20 * ti
        for q in range(2, 8):
            a("v_cvt_pk_bf16_f32 v%d, v%d, v%d", b + 16 + (q - 2) if q < 4 else b + q, b + 2 * q, b + 2 * q + 1)
    for ti, jt in enumerate(tiles):
        b = AC + 20 * ti
        a("s_waitcnt lgkmcnt(%d)", 3 - ti)
        for q in range(3):
            a("v_add_f32 v%d, v%d, v%d", b + q, b + q, AF + 4 * ti + q)
        a("v_cvt_pk_bf16_f32 v%d, v%d, v%d", b, b, b + 1)
        a("v_cvt_pk_bf16_f32 v%d, v%d, v%d", b + 1, b + 2, b + 3)
        q0 = "quad_perm:[0,0,0,0] row_mask:0xf bank_mask:0xf"
        a("v_cndmask_b32_dpp v%d, v%d, v%d, vcc %s", b + 2, b + 6, b + 16, q0)
        a("v_cndmask_b32_dpp v%d, v%d, v%d, vcc %s", b + 3, b + 7, b + 17, q0)
        a("v_cndmask_b32_dpp v%d, v%d, v%d, vcc %s", b, b + 4, b, q0)
        a("v_cndmask_b32_dpp v%d, v%d, v%d, vcc %s", b + 1, b + 5, b + 1, q0)
        a("s_mov_b64 exec, s[12:13]")
        a("buffer_store_dwordx4 %s, v%d, %s, s%d offen offset:%d sc1", vr(b, 4), VY, sr(SWS, 4), S_YB, 512 * jt)
        a("s_mov_b64 exec, -1")
    a("s_branch L_ycom")

a("L_ycom:")
a("s_waitcnt vmcnt(0)")
a("ds_write_b32 v%d, v6 offset:64", VSY)
a("s_cmp_lg_u32 s3, 0")
a("s_cbranch_scc1 L_nyf")
a("v_and_b32 v2, 3, v1")
a("v_lshl_add_u32 v2, v2, 2, v7")
lds_wait(2, 64, 3)
a("s_lshl_b32 s10, s2, 2")
a("s_add_u32 s10, s10, %d", F_Y)
flag_store("s10")
a("L_nyf:")
stamp(6)
lds_wait(7, 48, 3)
vmc = []
hload(0, NC0, vmc)
a("s_branch L_g2c")

a("L_help:")
a("s_waitcnt vmcnt(0)")
a("ds_write_b32 v%d, v6", VSY)
stamp(10)
a("s_cmp_lg_u32 s3, 4")
a("s_cbranch_scc1 L_hdma")
a("s_cmp_lg_u32 s%d, 0", S_ISAUX)
a("s_cbranch_scc1 L_nohf")
a("v_and_b32 v2, 7, v1")
a("v_lshl_add_u32 v2, v2, 2, v7")
lds_wait(2, 0, 3)
flag_store("s%d" % S_FH)
a("L_nohf:")
stamp(4)
a("s_lshr_b32 s%d, s%d, 1", S_PB, S_TB)
a("s_lshl_b32 s%d, s%d, 7", S_PB, S_PB)
a("s_add_u32 s%d, s%d, %d", S_PB, S_PB, F_H)
PM = opt("pm", 1)
if PM == 1:
    a("s_mov_b32 s12, 0")
    a("L_sp:")
    a("s_buffer_load_dwordx16 s[16:31], %s, s%d glc", sr(SWS, 4), S_PB)
    a("s_add_u32 s12, s12, 1")
    a("s_waitcnt lgkmcnt(0)")
    a("s_xor_b32 s10, s16, s%d", S_NONCE)
    for i in range(1, 14):
        a("s_xor_b32 s11, s%d, s%d", 16 + i, S_NONCE)
        a("s_or_b32 s10, s10, s11")
    a("s_cbranch_scc0 L_spok")
    a("s_cmp_lt_u32 s12, %d", opt("spn", 64))
    a("s_cbranch_scc1 L_sp")
    poll_issue(14)
    a("s_waitcnt vmcnt(0)")
    poll_check(1)
    a("L_spok:")
    if STAMP: a("v_writelane_b32 v255, s12, 14")
elif PM == 2:
    a("v_and_b32 v2, 3, v1")
    a("v_max_u32 v2, 1, v2")
    a("v_lshl_add_u32 v2, v2, 2, v7")
    lds_wait(2, 80, 3)
    poll_issue(14)
    a("s_waitcnt vmcnt(0)")
    poll_check(1)
else:
    poll_issue(14)
    a("s_waitcnt vmcnt(0)")
    poll_check(1)
a("ds_write_b32 v7, v6 offset:48")
stamp(5)
a("s_branch L_hld")
a("L_hdma:")
assert WB[1:4] == [8, 2, 4]
a("s_mov_b32 s10, s%d", S_RT + 1)
a("s_cmp_eq_u32 s%d, 2", S_TQ)
a("s_cmov_b32 s10, s%d", S_RT + 2)
a("s_cmp_eq_u32 s%d, 3", S_TQ)
a("s_cmov_b32 s10, s%d", S_RT + 3)
a("s_lshl_b32 s10, s10, 4")
a("s_lshl_b32 s11, s%d, 15", S_TQ)
a("s_sub_u32 s11, s11, %d", 2 * BLK)
a("s_cmp_eq_u32 s%d, 1", S_TQ)
a("s_cmov_b32 s11, %d", 8 * BLK)
a("s_mov_b32 m0, s11")
a("s_mov_b32 s12, 0")
a("L_hdl:")
for i in range(8):
    a("buffer_load_dwordx4 v%d, %s, s10 offen lds", VWD, sr(SW, 4))
    a("s_add_u32 m0, m0, 1024")
    a("s_add_u32 s10, s10, %d", 8192 if i < 7 else 8192 + (448 - 64) * 1024)
a("s_add_u32 s12, s12, 1")
a("s_cmp_lt_u32 s12, 4")
a("s_cbranch_scc1 L_hdl")
if PM == 2: a("ds_write_b32 v%d, v6 offset:64", VSY)
stamp(4)
lds_wait(7, 48, 3)
stamp(5)
a("L_hld:")
vmh = [("W", 103)]
NH0 = opt("nh0", 12)
hload(0, NH0, vmh)
stamp(6)

def dma2(rd, i, vml):
    if opt("g2nomem", 0): return
    a("s_add_u32 m0, s%d, %d", S_WLD, WB[rd] * BLK + i * 1024)
    if i == 0:
        a("s_lshl_b32 s13, s%d, 4", S_RT + rd)
        a("s_add_u32 s13, s13, s%d", S_WSO)
    else:
        a("s_add_u32 s13, s13, 8192")
    a("buffer_load_dwordx4 v%d, %s, s13 offen lds", VWD, sr(SW, 4))
    vml.append(("W", rd))

def gemm2(role_, vml):
    helper = role_ == "h"
    R = 8
    VO, VYR, EG = 14, 15, 16
    EU, ED, EY = 20, 24, 28
    t0, t1, t2, t3 = 32, 33, 34, 35
    AFR = 36
    AC2 = 60
    YL = 92
    A0 = 100
    def vw(tags):
        idx = [i for i, t in enumerate(vml) if t in tags]
        if opt("g2nowait", 0) and tags[0][0] in "HW": return 63
        if not idx: return 63
        return min(63, len(vml) - 1 - max(idx))
    a("v_mov_b32 v%d, v%d", R, VR0)
    a("v_xor_b32 v%d, 64, v%d", R + 1, VR0)
    for m in range(2):
        a("v_add_u32 v%d, %d, v%d", R + 2 + m, 4 * BLK, R + m)
        a("v_add_u32 v%d, %d, v%d", R + 4 + m, 8 * BLK, R + m)
    if helper: a("s_waitcnt vmcnt(%d)", vw([("W", 103)]))
    a("s_barrier")
    stamp(7)
    def reads(step):
        rd, ks = step // 4, step % 4
        blk = WB[rd]
        f = AFR + (step % 3) * 8
        L = []
        for m in range(2):
            for hf in range(2):
                L.append(("ds_read_b64_tr_b16 %s, v%d offset:%d" % (vr(f + 4 * m + 2 * hf, 2), R + 2 * (blk // 4) + m, (blk % 4) * BLK + ks * 2048 + hf * 1024), (step, m)))
        return L
    def eops():
        a("v_and_b32 v%d, 31, v1", t1)
        a("v_lshrrev_b32 v%d, 5, v1", t2)
        a("v_lshlrev_b32 v%d, 4, v%d", t3, t2)
        a("v_lshl_add_u32 v%d, v%d, 10, v%d", VO, t1, t3)
        a("buffer_load_dwordx4 %s, v%d, %s, s%d offen", vr(EU, 4), VO, sr(SX, 4), S_OB)
        vml.append(("E", 0))
        a("v_add_u32 v%d, s%d, v%d", t3, S_DOFF, t3)
        a("global_load_dwordx4 %s, v%d, %s", vr(ED, 4), t3, sr(P_DSK, 2))
        vml.append(("E", 0))
    def ypoll_issue():
        a("s_lshl_b32 s10, s%d, 7", S_DB)
        a("v_lshl_add_u32 v%d, v1, 2, s10", VN + 2)
        a("s_lshl_b32 s10, s%d, 2", S_TB)
        a("s_add_u32 s10, s10, %d", F_G - F_Y)
        a("v_mov_b32 v%d, s10", t0)
        a("v_cmp_lt_u32 vcc, 31, v1")
        a("v_cndmask_b32 v%d, v%d, v%d, vcc", VN + 2, VN + 2, t0)
        a("s_mov_b32 s%d, %d", S_PB, F_Y)
        a("buffer_load_dword v%d, v%d, %s, s%d offen sc1", VN - 1, VN + 2, sr(SWS, 4), S_PB)
        vml.append(("PY", 0))
    def yload():
        poll_check(1)
        a("v_lshrrev_b32 v%d, 3, v1", t0)
        a("v_lshlrev_b32 v%d, 12, v%d", t0, t0)
        a("v_and_b32 v%d, 7, v1", t1)
        a("v_lshl_add_u32 v%d, v%d, 4, v%d", t0, t1, t0)
        a("s_lshl_b32 s10, s%d, 3", S_DB)
        a("s_add_u32 s10, s10, s3")
        a("s_lshl_b32 s10, s10, 15")
        a("s_lshl_b32 s11, s%d, 7", S_TB)
        a("s_add_u32 s10, s10, s11")
        a("s_add_u32 s10, s10, %d", WS_Y)
        a("buffer_load_dwordx4 %s, v%d, %s, s10 offen sc1", vr(YL, 4), t0, sr(SWS, 4))
        vml.append(("Y", 0))
        a("v_and_b32 v%d, 31, v1", t1)
        a("v_lshlrev_b32 v%d, 2, v%d", t1, t1)
        a("buffer_load_dword v%d, v%d, %s, s%d offen sc1", EG, t1, sr(SWS, 4), S_GOFF)
        vml.append(("Y", 0))
    lg = Lg()
    for r in reads(0) + reads(1): lg.issue(*r)
    pend = []
    if helper:
        pend = [(lambda i=i: dma2(4, i, vml)) for i in range(8)]
    vfill = []
    nh = 28 if opt("g2nomem", 0) else (NH0 if helper else NC0)
    YP = opt("yp", 2)
    for step in range(28):
        rd, ks = step // 4, step % 4
        f = AFR + (step % 3) * 8
        nxt = reads(step + 2) if step < 26 else []
        for m in range(2):
            d = vr(AC2 + 16 * m, 16)
            lg.need([(step, m)], "vmcnt(%d) " % vw([("H", step)]) if m == 0 else "")
            a("v_mfma_f32_32x32x16_bf16 %s, %s, %s, %s", d, vr(f + 4 * m, 4), vr(HF + 4 * step, 4), d if step else "0")
            for r in nxt[2 * m:2 * m + 2]: lg.issue(*r)
            if nh < 28 and (not pend or m == 0 or rd == 0):
                hload(nh, 1, vml); nh += 1
            if pend and not (rd == 0 and step < 2 and False): lg.run(pend.pop(0))
            for _ in range(4):
                if vfill: lg.run(vfill.pop(0))
        if opt("stg2", 0) and ks == 3 and rd < 5:
            stamp(10 + rd); lg.drained()
        if ks == 1 and rd < 6:
            tags = [("W", rd + 1)]
            if rd == YP + 1: tags.append(("PY", 0))
            if rd == 5:
                a("s_lshl_b32 s10, s3, 10")
                a("s_add_u32 s10, s10, %d", L_Y)
                a("v_add_u32 v%d, s10, v%d", YL + 4, VH)
                a("s_waitcnt vmcnt(0)")
                lg.issue("ds_write_b128 v%d, %s" % (YL + 4, vr(YL, 4)), "yw")
                lg.need(["yw"])
            else:
                w_ = vw(tags)
                if w_ < 63: a("s_waitcnt vmcnt(%d)", w_)
            if rd >= 1: a("s_barrier")
            if helper and 1 <= rd <= 2:
                assert not pend
                pend = [(lambda i=i, r=rd + 4: dma2(r, i, vml)) for i in range(8)]
            if rd == 3: pend.append(eops)
            if rd == YP: ypoll_issue()
            if rd == YP + 1: yload()
            if rd == 5:
                a("v_lshrrev_b32 v%d, 5, v1", t0)
                a("v_bfe_u32 v%d, v1, 2, 2", t1)
                a("v_lshl_add_u32 v%d, v%d, 3, v%d", t0, t0, t1)
                a("v_lshlrev_b32 v%d, 7, v%d", t0, t0)
                a("v_bfe_u32 v%d, v1, 4, 1", t1)
                a("v_lshl_add_u32 v%d, v%d, 5, v%d", t0, t1, t0)
                a("v_and_b32 v%d, 3, v1", t1)
                a("v_lshl_add_u32 v%d, v%d, 3, v%d", t0, t1, t0)
                a("s_lshr_b32 s10, s3, 1")
                a("s_lshl_b32 s10, s10, 11")
                a("s_and_b32 s11, s3, 1")
                a("s_lshl_b32 s11, s11, 6")
                a("s_add_u32 s10, s10, s11")
                a("s_add_u32 s10, s10, %d", L_Y)
                a("v_add_u32 v%d, s10, v%d", VYR, t0)
                for hf in range(2):
                    lg.issue("ds_read_b64_tr_b16 %s, v%d offset:%d" % (vr(EY + 2 * hf, 2), VYR, hf * 512), "yr")
                for j in range(4):
                    for hi in range(2):
                        o = A0 + 2 * j + hi
                        op = "v_lshlrev_b32 v%d, 16, v%d" if hi == 0 else "v_and_b32 v%d, 0xffff0000, v%d"
                        vfill.append(op % (t2, EU + j)); vfill.append(op % (t3, ED + j))
                        vfill.append("v_mul_f32 v%d, v%d, v%d" % (o, t2, t3))
                vfill.append(lambda: lg.need(["yr"]))
                for j in range(4):
                    vfill.append("v_lshlrev_b32 v%d, 16, v%d" % (t2, EY + j))
                    vfill.append("v_and_b32 v%d, 0xffff0000, v%d" % (t3, EY + j))
                    vfill.append("v_add_f32 v%d, v%d, v%d" % (A0 + 2 * j, A0 + 2 * j, t2))
                    vfill.append("v_add_f32 v%d, v%d, v%d" % (A0 + 2 * j + 1, A0 + 2 * j + 1, t3))
                vfill.append("s_mul_i32 s10, s3, 6144")
                vfill.append("s_add_u32 s10, s10, %d" % L_R)
                vfill.append("v_add_u32 v%d, s10, v%d" % (t0, VH))
                for j in range(1, 4):
                    vfill.append("s_xor_b32 s10, s3, %d" % (2 * j))
                    vfill.append("s_mul_i32 s10, s10, 6144")
                    vfill.append("s_add_u32 s10, s10, %d" % (L_R + (j - 1) * 2048))
                    vfill.append("v_add_u32 v%d, s10, v%d" % (R + j, VH))
    assert not pend
    stamp(8)
    for f_ in vfill: lg.run(f_)
    for j in range(1, 4):
        for b in range(2):
            a("ds_write_b128 v%d, %s offset:%d", t0, vr(AC2 + 8 * j + 4 * b, 4), (j - 1) * 2048 + b * 1024)
    for q in range(8):
        a("v_sub_f32 v%d, v%d, v%d", A0 + q, A0 + q, AC2 + q)
        a("v_fmac_f32 v%d, v%d, v%d", AC2 + q, EG, A0 + q)
    a("v_sub_f32 v%d, 1.0, v%d", EG, EG)
    a("s_waitcnt lgkmcnt(0)")
    a("s_barrier")
    for j in range(1, 4):
        for b in range(2):
            a("ds_read_b128 %s, v%d offset:%d", vr(AC2 + 8 * j + 4 * b, 4), R + j, b * 1024)
    for j in range(1, 4):
        a("s_waitcnt lgkmcnt(%d)", 2 * (3 - j))
        for q in range(8):
            a("v_fmac_f32 v%d, v%d, v%d", AC2 + q, EG, AC2 + 8 * j + q)
    for j in range(4):
        a("v_cvt_pk_bf16_f32 v%d, v%d, v%d", A0 + j, AC2 + 2 * j, AC2 + 2 * j + 1)
    a("buffer_store_dwordx4 %s, v%d, %s, s%d offen", vr(A0, 4), VO, sr(SO, 4), S_OB)
    if STAMP: a("s_waitcnt vmcnt(0)")
    stamp(9)
    stamp_out()
    a("s_endpgm")

gemm2("h", vmh)
a("L_g2c:")
gemm2("c", vmc)
for sp in slow: sp()
a("L_end:")
a("s_endpgm")

hdr = open("gated_mix__ssm_conv_s4__glu_gated_bilinear__prompt.s.ref").read().split("\n")
hdr = [l for l in hdr if l.startswith(";") and "@launch" not in l]
print(wrap(hdr + ["; @launch grid=(256,1,1) block=(512,1,1) lds=163840"], [(NAME, a, 256, 102, 256)]))
sys.stderr.write("nops: %d\n" % a.nops)
```

```python
import re
NAME = "gated_mix__ssm_conv_s4__glu_gated_bilinear__prompt_kernel"

TRANS = ("v_exp_f32", "v_log_f32", "v_rcp_f32", "v_rsq_f32", "v_sqrt_f32", "v_sin_f32", "v_cos_f32")
_reg_re = re.compile(r"^(-|abs\(|\|)?([vsa])(\d+|\[(\d+):(\d+)\])\)?\|?$")

def parse_regs(tok):
    tok = tok.strip()
    if tok == "vcc": return [("s", "vcc")]
    if tok == "exec": return [("s", "exec")]
    if tok == "m0": return [("s", "m0")]
    m = _reg_re.match(tok)
    if not m: return []
    k = m.group(2)
    if m.group(4) is not None:
        return [(k, i) for i in range(int(m.group(4)), int(m.group(5)) + 1)]
    return [(k, int(m.group(3)))]

class Ins:
    def __init__(self, text):
        self.text = text
        t = text.split(";")[0].strip()
        parts = t.split(None, 1)
        self.op = parts[0]
        rest = parts[1] if len(parts) > 1 else ""
        ops = []; depth = 0; cur = ""
        for ch in rest:
            if ch == "[" or ch == "(": depth += 1
            if ch == "]" or ch == ")": depth -= 1
            if ch == "," and depth == 0:
                ops.append(cur.strip()); cur = ""
            else:
                cur += ch
        if cur.strip(): ops.append(cur.strip())
        self.mods = ""
        if ops:
            sp = ops[-1].split(None, 1)
            ops[-1] = sp[0]
            if len(sp) > 1: self.mods = sp[1]
        self.ops = ops
        op = self.op
        self.is_mfma = op.startswith("v_mfma")
        self.is_valu = op.startswith("v_") and not self.is_mfma
        self.is_salu = op.startswith("s_")
        self.is_ds = op.startswith("ds_")
        self.is_vmem = op.startswith("buffer_") or op.startswith("global_")
        self.is_dpp = "_dpp" in op
        self.is_trans = op.replace("_e32", "").replace("_e64", "") in TRANS
        R = [parse_regs(o) for o in ops]
        self.w = []; self.r = []
        self.store_data = []
        if self.is_mfma:
            self.w = R[0]; self.a = R[1]; self.b = R[2]; self.c = R[3]
            self.r = R[1] + R[2] + R[3]
            self.passes = 8 if "32x32x16" in op else 4
        elif self.is_valu:
            if op.startswith("v_cmp"):
                self.w = R[0]; self.r = sum(R[1:], [])
            elif op.startswith("v_permlane") and "swap" in op:
                self.w = R[0] + R[1]; self.r = R[0] + R[1]
            elif op.startswith(("v_add_co", "v_sub_co", "v_addc_co", "v_subb_co")):
                self.w = R[0] + R[1]; self.r = sum(R[2:], [])
            else:
                self.w = R[0]; self.r = sum(R[1:], [])
                if op.startswith(("v_fmac", "v_writelane", "v_dot2c")) or self.is_dpp or "sdwa" in op:
                    self.r = self.r + R[0]
        elif self.is_ds:
            if op.startswith("ds_read") or op.startswith("ds_bpermute") or op.startswith("ds_swizzle"):
                self.w = R[0]; self.r = sum(R[1:], [])
            else:
                self.r = sum(R, [])
            if "addtid" in op: self.r = self.r + [("s", "m0")]
        elif self.is_vmem:
            lds = " lds" in (" " + self.mods + " ") or self.mods.endswith("lds")
            self.lds = lds or "load_lds" in op
            if op in ("buffer_inv", "buffer_wbl2"):
                pass
            elif "load" in op and not self.lds:
                self.w = R[0]; self.r = sum(R[1:], [])
                if "d16" in op: self.r = self.r + R[0]
            elif self.lds:
                self.r = sum(R, []) + [("s", "m0")]
            else:
                self.r = sum(R, [])
                if "sc0" in self.mods and "atomic" in op and op.startswith("buffer"):
                    self.w = R[0]
                if op.endswith("x3") or op.endswith("x4"):
                    self.store_data = R[0] if op.startswith("buffer") else R[1]
        elif self.is_salu:
            if op.startswith(("s_cmp", "s_cbranch", "s_branch", "s_waitcnt", "s_nop", "s_barrier", "s_endpgm", "s_setprio", "s_sleep", "s_bitcmp")):
                self.r = sum(R, [])
            else:
                self.w = R[0] if R else []; self.r = sum(R[1:], [])
                if "saveexec" in op: self.w = self.w + [("s", "exec")]
    def states(self):
        if self.op == "s_nop": return int(self.ops[0], 0) + 1
        return 1

def need(prev, cur):
    n = 0
    pw = set(prev.w); cr = set(cur.r); cw = set(cur.w)
    pwv = {x for x in pw if x[0] in "va"}
    pws = {x for x in pw if x[0] == "s"}
    if prev.is_valu:
        if cur.is_mfma and pwv & cr: n = max(n, 2)
        if cur.is_valu:
            if cur.is_dpp and pwv & cr: n = max(n, 2)
            if cur.op.startswith(("v_readlane", "v_readfirstlane")) and pwv & cr: n = max(n, 1)
            if cur.op.startswith("v_permlane") and pwv & cr: n = max(n, 2)
            if prev.is_trans and pwv & cr: n = max(n, 1)
            if "sdwa" in prev.op and pwv & (cr | cw): n = max(n, 1)
            if pws & cr:
                n = max(n, 4 if cur.op.startswith(("v_readlane", "v_writelane")) else 2)
            if prev.op.startswith("v_dot2") and pwv & (cr | cw):
                if not (cur.op == prev.op and not (pwv & set(parse_regs(cur.ops[1]) + parse_regs(cur.ops[2])))):
                    n = max(n, 3)
        if (cur.is_vmem or cur.is_ds) and prev.op.startswith("v_dot2") and pwv & cr: n = max(n, 3)
        if cur.is_vmem and pws & cr: n = max(n, 5)
        if cur.is_salu and pws & cr: n = max(n, 1)
    if prev.is_mfma:
        big = 12 if prev.passes == 8 else 8
        if cur.is_mfma:
            if pwv & set(cur.a + cur.b): n = max(n, big)
            if pwv & set(cur.c):
                if not (cur.c == prev.w and cur.passes == prev.passes): n = max(n, big - 2)
            elif pwv & cw: n = max(n, big)
        elif cur.is_valu or cur.is_vmem or cur.is_ds:
            if pwv & (cr | cw): n = max(n, big)
        if cur.is_valu and set(prev.c) & cw: n = max(n, 7 if prev.passes == 8 else 3)
    if prev.is_salu and ("s", "m0") in pw and ("s", "m0") in cr and (cur.is_vmem or cur.is_ds): n = max(n, 1)
    if prev.store_data and set(prev.store_data) & cw: n = max(n, 2)
    return n

class Asm:
    def __init__(self, auto_nop=True):
        self.lines = []
        self.nlabel = 0
        self.hist = []
        self.auto = auto_nop
        self.nops = 0
        self.cap = None
    def __call__(self, s, *args):
        if args:
            s = s % args
        for ln in s.split("\n"):
            ln = ln.strip()
            if not ln: continue
            if self.cap is not None:
                self.cap.append(ln); continue
            if ln.endswith(":") or ln.startswith(".") or ln.startswith(";"):
                self.lines.append(ln)
                continue
            ins = Ins(ln)
            if self.auto:
                dist = 0; req = 0
                for p in reversed(self.hist):
                    nd = need(p, ins)
                    if nd - dist > req: req = nd - dist
                    dist += p.states()
                    if dist >= 13: break
                if req > 0:
                    nop = Ins("s_nop %d" % (req - 1))
                    self.lines.append("    s_nop %d" % (req - 1))
                    self.hist.append(nop); self.nops += 1
            self.lines.append("    " + ln)
            self.hist.append(ins)
            if len(self.hist) > 32: self.hist = self.hist[-32:]
    def capture(self, fn, *args):
        self.cap = []
        fn(*args)
        r, self.cap = self.cap, None
        return r
    def label(self, base="L"):
        self.nlabel += 1
        return "%s_%d" % (base, self.nlabel)
    def c(self, s):
        self.lines.append("    ; " + s)
    def srd(self, r, base, nbytes, add=0):
        if add:
            self("s_add_u32 s%d, s%d, 0x%x", r, base, add)
            self("s_addc_u32 s%d, s%d, 0", r + 1, base + 1)
            self("s_and_b32 s%d, s%d, 0xffff", r + 1, r + 1)
        else:
            self("s_mov_b32 s%d, s%d", r, base)
            self("s_and_b32 s%d, s%d, 0xffff", r + 1, base + 1)
        self("s_mov_b32 s%d, 0x%x", r + 2, nbytes)
        self("s_mov_b32 s%d, 0x20000", r + 3)
    def text(self):
        return "\n".join(self.lines)

def vr(b, n):
    return "v[%d:%d]" % (b, b + n - 1) if n > 1 else "v%d" % b
def sr(b, n):
    return "s[%d:%d]" % (b, b + n - 1) if n > 1 else "s%d" % b

def kernel_begin(name):
    return ".globl %s\n.p2align 8\n.type %s,@function\n%s:\n" % (name, name, name)

def kernel_desc(name, vgpr, sgpr, accum):
    return (".p2align 6\n.amdhsa_kernel %s\n  .amdhsa_next_free_vgpr %d\n  .amdhsa_next_free_sgpr %d\n"
            "  .amdhsa_accum_offset %d\n  .amdhsa_group_segment_fixed_size 0\n  .amdhsa_kernarg_size 136\n"
            "  .amdhsa_user_sgpr_count 2\n  .amdhsa_user_sgpr_kernarg_segment_ptr 1\n"
            "  .amdhsa_system_sgpr_workgroup_id_x 1\n.end_amdhsa_kernel\n") % (name, vgpr, sgpr, accum)

def wrap(launch_lines, kernels):
    o = []
    o += launch_lines
    o.append('.amdgcn_target "amdgcn-amd-amdhsa--gfx950"')
    o.append(".text")
    for (n, a, v, s, ac) in kernels:
        o.append(kernel_begin(n) + a.text())
    o.append('.section .rodata,"a"')
    for (n, a, v, s, ac) in kernels:
        o.append(kernel_desc(n, v, s, ac))
    return "\n".join(o) + "\n"
```

```python
import sys
from asmlib import *

STAMP = "--stamp" in sys.argv
def opt(name, default):
    for x in sys.argv:
        if x.startswith("--%s=" % name): return int(x.split("=")[1])
    return default

WS_H = 0
WS_UT = 8 << 20
WS_Y = 10 << 20
WS_G = 12 << 20
WS_F = (12 << 20) + 0x10000
WS_ST = 13 << 20
WS_BYTES = 14 << 20
F_A, F_H, F_Y, F_G, F_E = WS_F, WS_F + 0x1000, WS_F + 0x2000, WS_F + 0x3000, WS_F + 0x4000

P_U, P_ARE, P_AIM, P_BRE, P_BIM, P_CRE, P_CIM, P_LDT = 16, 18, 20, 22, 24, 26, 28, 30
P_DSK, P_BX, P_WG, P_WU, P_WD, P_GW, P_OUT, P_DBG, P_WS = 32, 34, 36, 38, 40, 42, 44, 46, 48
SX, SG, SU, SWS, SW, SO = 52, 56, 60, 64, 68, 72
S_NONCE, S_ISAUX, S_SPIN, S_PB = 76, 77, 78, 79
S_TB, S_DB, S_KH, S_TQ, S_HB, S_OB = 80, 81, 82, 83, 84, 85
S_W0S = 100
S_RT = 36
S_KR, S_T2 = 0, 1
S_W2K, S_T, S_TM0, S_YB = 86, 87, 88, 89
S_DOFF, S_GOFF = 50, 51
S_WSO, S_WLD = 90, 91
S_HST = 34
S_FH = 35
SPINMAX = opt("spin", 20000)

BLK = 16384
XB = [0, 1, 2]
GB = [6, 8, 4]
L_TAB = 2 * BLK
TP = 528
TPIECE = 31 * TP
L_U = 2 * BLK
UCH = 512 + 4096
L_K = 3 * BLK
KCH = 64 + 4096
L_CY = L_K + 2 * KCH
CYCH = 129 * 16
L_SY = L_CY + 2 * CYCH
assert L_SY % 16 == 0 and L_SY + 128 <= 4 * BLK
WB = [4, 6, 8, 0, 2, 4, 6]
L_Y = 8 * BLK + 24576
L_R = [8 * BLK, 0]

a = Asm()

class Lg:
    def __init__(self): self.q = []; self.done = 0
    def issue(self, ins, tag=None):
        a(ins); self.q.append(tag)
    def need(self, tags, extra=""):
        idx = [i for i, t in enumerate(self.q) if t in tags]
        last = max(idx) if idx else -1
        if last >= self.done:
            cnt = min(len(self.q) - 1 - last, 15)
            a("s_waitcnt %slgkmcnt(%d)", extra, cnt)
            self.done = len(self.q) - cnt
        elif extra:
            a("s_waitcnt %s", extra)
    def drained(self): self.done = len(self.q)
    def run(self, p):
        n0 = len(a.lines)
        a(p) if isinstance(p, str) else p()
        for ln in a.lines[n0:]:
            if ln.strip().startswith("ds_"): self.q.append(None)

SMASK = opt("smask", 0x7fff)
def stamp(i, force=False):
    if not STAMP or not ((SMASK >> i) & 1 or force): return
    a("s_memtime s[94:95]")
    a("s_memrealtime s[92:93]")
    a("s_waitcnt lgkmcnt(0)")
    a("s_sub_u32 s94, s94, s98")
    a("v_writelane_b32 v255, s94, %d", i)
    a("v_writelane_b32 v255, s92, %d", i + 16)
def stamp_out():
    if not STAMP: return
    a("s_mov_b64 exec, -1")
    a("v_writelane_b32 v255, s96, 31")
    a("s_lshl_b32 s92, s2, 3")
    a("s_add_u32 s92, s92, s3")
    a("s_lshl_b32 s92, s92, 7")
    a("s_add_u32 s92, s92, %d", WS_ST)
    a("v_mbcnt_lo_u32_b32 v254, -1, 0")
    a("v_mbcnt_hi_u32_b32 v254, -1, v254")
    a("v_lshlrev_b32 v253, 2, v254")
    a("s_mov_b64 exec, 0xffffffff")
    a("buffer_store_dword v255, v253, %s, s92 offen", sr(SWS, 4))

def cmul(d, x, y, plain):
    if plain:
        return ["v_mul_f32 v%d, v%d, v%d" % (d, x, y), "v_mul_f32 v%d, v%d, v%d" % (d + 1, x + 1, y),
                "v_fma_f32 v%d, -v%d, v%d, v%d" % (d, x + 1, y + 1, d), "v_fmac_f32 v%d, v%d, v%d" % (d + 1, x, y + 1)]
    return ["v_pk_mul_f32 %s, %s, %s op_sel_hi:[1,0]" % (vr(d, 2), vr(x, 2), vr(y, 2)),
            "v_pk_fma_f32 %s, %s, %s, %s op_sel:[1,1,0] op_sel_hi:[0,1,1] neg_lo:[1,0,0]" % (vr(d, 2), vr(x, 2), vr(y, 2), vr(d, 2))]
def il(x, y):
    o = []
    for i in range(max(len(x), len(y))):
        if i < len(x): o.append(x[i])
        if i < len(y): o.append(y[i])
    return o

VH = 240
VWD = 241
VR0 = 242
VSY = 243
VN = 250
PVA, PVB, PVC, PVY = 148, 149, 150, 151
KA, KBa, KW = 152, 153, 154
VZ = 155
KB = 160
KP = 204
KF = 160
KD = 236
VUL = 244

def kgen_setup():
    a("s_lshr_b32 s10, s3, 2")
    a("s_lshl_b32 s11, s2, 1")
    a("s_add_u32 s11, s11, s10")
    a("s_and_b32 s12, s3, 1")
    a("s_lshl_b32 s13, s11, 8")
    a("s_lshl_b32 s12, s12, 7")
    a("s_add_u32 s13, s13, s12")
    a("v_lshl_add_u32 v%d, v1, 1, s13", KB + 8)
    a("s_lshl_b32 s11, s11, 1")
    a("v_mov_b32 v%d, s11", KB + 9)
    for i in range(7): a("v_mov_b32 v%d, 0", KB + i)
    a("s_bitcmp1_b32 s3, 1")
    a("s_cselect_b64 s[14:15], -1, 0")
def kgen_loads():
    a("global_load_short_d16_hi v%d, v%d, %s", KB + 6, KB + 9, sr(P_LDT, 2))
    for i, p in enumerate([P_ARE, P_AIM, P_BRE, P_BIM, P_CRE, P_CIM]):
        a("global_load_short_d16_hi v%d, v%d, %s", KB + i, KB + 8, sr(p, 2))
    return 7
def rowpos(m): return 16 + (2 * m if m <= 7 else 2 * (m - 8) + 1)
def kgen_valu(plain_tail):
    L = []
    A_, B_, BR, BI, CR, CI, LD, T0, T1, T2 = [KB + i for i in range(10)]
    W, E1, E2, E4, E8, E128, E256, E512, P, X0, X1, R0, R1, RB, Y0, Z0 = [KB + 10 + 2 * i for i in range(16)]
    L.append("v_mul_f32 v%d, 0x3fb8aa3b, v%d" % (T0, LD))
    L.append("v_mov_b32 v%d, 0x3fb8aa3b" % T2)
    L.append("v_fma_f32 v%d, v%d, v%d, -v%d" % (T1, LD, T2, T0))
    L.append("v_fmac_f32 v%d, 0x32a57060, v%d" % (T1, LD))
    L.append("v_exp_f32 v%d, v%d" % (T0, T0))
    L.append("v_mul_f32 v%d, 0x3f317218, v%d" % (T1, T1))
    L.append("v_fmac_f32 v%d, v%d, v%d" % (T0, T0, T1))
    L.append("v_cvt_pk_bf16_f32 v%d, v%d, v%d" % (T0, T0, T0))
    L.append("v_and_b32 v%d, 0xffff0000, v%d" % (T0, T0))
    for r in (A_, B_, BR, BI):
        L.append("v_mul_f32 v%d, v%d, v%d" % (r, T0, r))
    L.append("v_mul_f32 v%d, 0x3fb8aa3b, v%d" % (A_, A_))
    L.append("v_mul_f32 v%d, 0.15915494, v%d" % (B_, B_))
    o1 = ["v_exp_f32 v%d, v%d" % (T0, A_), "v_fract_f32 v%d, v%d" % (T1, B_),
          "v_cos_f32 v%d, v%d" % (E1, T1), "v_sin_f32 v%d, v%d" % (E1 + 1, T1),
          "v_mul_f32 v%d, v%d, v%d" % (E1, T0, E1), "v_mul_f32 v%d, v%d, v%d" % (E1 + 1, T0, E1 + 1)]
    o2 = ["v_mul_f32 v%d, 0x43000000, v%d" % (T2, A_), "v_mul_f32 v%d, 0x43000000, v%d" % (LD, B_),
          "v_exp_f32 v%d, v%d" % (T2, T2), "v_fract_f32 v%d, v%d" % (LD, LD),
          "v_cos_f32 v%d, v%d" % (E128, LD), "v_sin_f32 v%d, v%d" % (E128 + 1, LD),
          "v_mul_f32 v%d, v%d, v%d" % (E128, T2, E128), "v_mul_f32 v%d, v%d, v%d" % (E128 + 1, T2, E128 + 1)]
    L += il(o2, o1 + cmul(W, CR, BR, False))
    L += il(cmul(E2, E1, E1, False) + cmul(E4, E2, E2, False) + cmul(E8, E4, E4, False),
            cmul(E256, E128, E128, False) + cmul(E512, E256, E256, False))
    L.append("v_cndmask_b32 v%d, v%d, v%d, s[14:15]" % (P, E1, E2))
    L.append("v_cndmask_b32 v%d, v%d, v%d, s[14:15]" % (P + 1, E1 + 1, E2 + 1))
    L.append("v_cndmask_b32 v%d, 1.0, v%d, s[14:15]" % (X0, E128))
    L.append("v_cndmask_b32 v%d, 0, v%d, s[14:15]" % (X0 + 1, E128 + 1))
    L.append("v_cndmask_b32 v%d, 1.0, v%d, s[14:15]" % (E256, E256))
    L.append("v_cndmask_b32 v%d, 0, v%d, s[14:15]" % (E256 + 1, E256 + 1))
    L += cmul(RB, W, E256, False)
    rows = [(None, RB, None)]
    cur = RB
    for j in range(1, 8):
        d = R0 if j % 2 else R1
        rows.append((d, cur, P)); cur = d
    Z2 = Y0
    rows += [(Y0, RB, E512), (R1, Y0, E4), (R0, Y0, E8), (Z0, Y0, E512), (R1, Z0, E8), (Z2, Z0, E512), (R0, Z2, E8)]
    cols = [(None, X0, None)]
    cur = X0
    for j in range(1, 16):
        d = X1 if j % 2 else X0
        cols.append((d, cur, E8)); cur = d
    LC, LR = [], []
    for j, (d, s, m) in enumerate(cols):
        if d is not None: LC += cmul(d, s, m, plain_tail)
        x = d if d is not None else s
        LC.append("v_cvt_pk_bf16_f32 v%d, v%d, v%d" % (KP + j, x, x + 1))
    for j, (d, s, m) in enumerate(rows):
        if d is not None: LR += cmul(d, s, m, plain_tail)
        x = d if d is not None else s
        LR.append("v_cvt_pk_bf16_f32 v%d, v%d, -v%d" % (KP + rowpos(j), x, x + 1))
    return L, il(LC, LR)
def kgen_writes():
    return ["ds_write_addtid_b32 v%d offset:%d" % (KP + j, L_TAB + j * TP) for j in range(31)]

def later_addrs(T0, T1, T2):
    a("s_lshr_b32 s10, s3, 1")
    a("s_mul_i32 s10, s10, %d", TPIECE)
    a("s_and_b32 s11, s3, 1")
    a("s_lshl_b32 s11, s11, 8")
    a("s_add_u32 s%d, s10, s11", S_TM0)
    a("s_add_u32 s10, s10, %d", L_TAB)
    a("v_bfe_u32 v%d, v1, 4, 1", T1)
    a("v_lshlrev_b32 v%d, 8, v%d", T1, T1)
    a("v_lshrrev_b32 v%d, 5, v1", T2)
    a("v_lshl_add_u32 v%d, v%d, 7, v%d", T1, T2, T1)
    a("v_and_b32 v%d, 15, v1", T0)
    a("v_mul_u32_u24 v%d, %d, v%d", T2, TP, T0)
    a("v_add3_u32 v%d, v%d, v%d, s10", KBa, T2, T1)
    def lut(v): return sum(x << (4 * i) for i, x in enumerate(v))
    m0 = [0, 1, 2, 3] + [0, 0, 1, 2] + [2, 2, 3, 4] + [4, 5, 6, 7]; h0 = 0x0ff0
    m1 = [8, 9, 10, 10] + [8, 9, 10, 10] + [11, 12, 13, 14] + [11, 12, 13, 14]; h1 = 0xf0f0
    p0 = [rowpos(m) - 16 for m in m0]; p1 = [rowpos(m) - 16 for m in m1]
    a("s_bitcmp1_b32 s3, 0")
    a("s_mov_b32 s11, 0x%x", lut(p0[:8]))
    a("s_cmov_b32 s11, 0x%x", lut(p1[:8]))
    a("s_mov_b32 s12, 0x%x", lut(p0[8:]))
    a("s_cmov_b32 s12, 0x%x", lut(p1[8:]))
    a("s_mov_b32 s13, 0x%x", h0)
    a("s_cmov_b32 s13, 0x%x", h1)
    a("v_cmp_lt_u32 vcc, 7, v%d", T0)
    a("v_mov_b32 v%d, s11", KA)
    a("v_mov_b32 v%d, s12", T2)
    a("v_cndmask_b32 v%d, v%d, v%d, vcc", KA, KA, T2)
    a("v_and_b32 v%d, 7, v1", T2)
    a("v_lshlrev_b32 v%d, 2, v%d", T2, T2)
    a("v_bfe_u32 v%d, v%d, v%d, 4", KA, KA, T2)
    a("v_bfe_u32 v%d, s13, v%d, 1", T2, T0)
    a("v_mad_u32_u24 v%d, v%d, 31, v%d", KA, T2, KA)
    a("v_mul_u32_u24 v%d, %d, v%d", KA, TP, KA)
    a("s_lshr_b32 s10, s3, 2")
    a("s_mul_i32 s11, s10, %d", 2 * TPIECE)
    a("s_add_u32 s11, s11, %d", L_TAB + 16 * TP)
    a("v_add3_u32 v%d, v%d, v%d, s11", KA, KA, T1)
    a("s_mul_i32 s10, s10, %d", KCH)
    a("s_and_b32 s11, s3, 2")
    a("s_lshl_b32 s11, s11, 7")
    a("s_add_u32 s10, s10, s11")
    a("s_add_u32 s10, s10, %d", L_K + 64)
    a("s_bitcmp1_b32 s3, 0")
    a("s_mov_b32 s11, 0x%x", 0 | (64 << 8) | (65 << 16) | (1 << 24))
    a("s_cmov_b32 s11, 0x%x", 0 | (64 << 8) | (128 << 16) | (192 << 24))
    a("s_cselect_b32 s12, 1024, 0")
    a("s_add_u32 s10, s10, s12")
    a("v_lshrrev_b32 v%d, 4, v1", T1)
    a("v_lshlrev_b32 v%d, 3, v%d", T1, T1)
    a("v_bfe_u32 v%d, s11, v%d, 8", T1, T1)
    a("v_lshlrev_b32 v%d, 4, v%d", T0, T0)
    a("v_lshl_add_u32 v%d, v%d, 3, v%d", T0, T1, T0)
    a("v_add_u32 v%d, s10, v%d", KW, T0)
def later_addrs2(T0, T1, T2):
    a("s_bfe_u32 s10, s3, 0x10001")
    a("v_lshrrev_b32 v%d, 5, v1", T0)
    a("v_lshlrev_b32 v%d, 6, v%d", PVA, T0)
    a("v_and_b32 v%d, 31, v1", T1)
    a("v_lshlrev_b32 v%d, 4, v%d", PVB, T1)
    a("v_sub_u32 v%d, v%d, v%d", PVB, PVB, PVA)
    a("v_and_b32 v%d, 1, v1", T2)
    a("v_lshl_add_u32 v%d, v%d, 5, v%d", PVA, T2, PVA)
    a("v_lshrrev_b32 v%d, 2, v%d", T1, T1)
    a("v_lshl_add_u32 v%d, v%d, 1, v%d", T1, T1, T0)
    a("v_lshlrev_b32 v%d, 5, v%d", PVY, T1)
    a("v_lshl_add_u32 v%d, v%d, 4, v%d", PVY, T2, PVY)
    a("s_mul_i32 s11, s10, %d", CYCH)
    a("s_add_u32 s11, s11, %d", L_CY)
    a("v_lshl_add_u32 v%d, v%d, 4, s11", PVC, T1)
    a("v_bfe_u32 v%d, v1, 4, 1", T2)
    a("v_lshl_add_u32 v%d, v%d, 4, v%d", PVA, T2, PVA)
    a("v_bfe_u32 v%d, v1, 1, 1", T2)
    a("v_lshl_add_u32 v%d, v%d, 3, v%d", PVA, T2, PVA)
    a("v_bfe_u32 v%d, v1, 2, 2", T2)
    a("v_lshlrev_b32 v%d, 3, v%d", T2, T2)
    a("v_sub_u32 v%d, v%d, v%d", PVA, PVA, T2)
    a("s_mul_i32 s11, s10, %d", KCH)
    a("s_add_u32 s11, s11, %d", L_K + 32)
    a("v_add_u32 v%d, s11, v%d", PVA, PVA)
    a("s_mul_i32 s11, s10, %d", UCH)
    a("s_add_u32 s11, s11, %d", L_U + 512 - 384)
    a("v_add_u32 v%d, s11, v%d", PVB, PVB)
    a("s_lshl_b32 s11, s2, 1")
    a("s_add_u32 s11, s11, s10")
    a("s_lshl_b32 s11, s11, 12")
    a("s_add_u32 s%d, s11, %d", S_YB, WS_Y)
    a("s_lshl_b32 s%d, s4, 2", S_TB)
    a("s_and_b32 s10, s5, 3")
    a("s_add_u32 s%d, s%d, s10", S_TB, S_TB)
    a("s_lshr_b32 s%d, s5, 2", S_DB)
    a("s_lshr_b32 s%d, s3, 2", S_KH)
    a("s_and_b32 s%d, s3, 3", S_TQ)
    a("s_lshl_b32 s10, s%d, 1", S_TB)
    a("s_and_b32 s13, s3, 1")
    a("s_add_u32 s10, s10, s13")
    a("s_mul_i32 s11, s10, 112")
    a("s_lshr_b32 s12, s3, 1")
    a("s_mul_i32 s%d, s12, %d", S_W0S, 448 * 1024)
    a("s_lshl_b32 s13, s13, 15")
    a("s_add_u32 s%d, s%d, s13", S_W0S, S_W0S)
    a("s_mul_i32 s13, s12, 28")
    a("s_add_u32 s11, s11, s13")
    a("s_lshl_b32 s%d, s11, 10", S_HB)
    a("s_lshl_b32 s%d, s10, 7", S_GOFF)
    a("s_add_u32 s%d, s%d, %d", S_GOFF, S_GOFF, WS_G)
    a("s_lshl_b32 s10, s10, 15")
    a("s_lshl_b32 s11, s%d, 7", S_DB)
    a("s_lshl_b32 s12, s12, 5")
    a("s_add_u32 s%d, s11, s12", S_DOFF)
    a("s_add_u32 s%d, s10, s%d", S_OB, S_DOFF)
    a("s_mul_i32 s%d, s%d, %d", S_WSO, S_TQ, 448 * 1024)
    a("s_lshl_b32 s%d, s%d, 13", S_WLD, S_TQ)
    seq = [i % 7 for i in range(16)]
    val = sum(x << (4 * i) for i, x in enumerate(seq))
    a("s_mov_b32 s44, 0x%x", val & 0xffffffff)
    a("s_mov_b32 s45, 0x%x", val >> 32)
    if opt("rot", 2) == 1:
        a("s_lshl_b32 s10, s%d, 2", S_DB)
        a("s_lshr_b64 s[44:45], s[44:45], s10")
    if opt("rot", 2) == 2:
        a("s_and_b32 s10, s5, 3")
        a("s_lshl_b32 s10, s10, 3")
        a("s_lshr_b64 s[44:45], s[44:45], s10")
    for rd in range(7):
        a("s_bfe_u32 s10, s44, 0x%x", (3 << 16) | (4 * rd))
        a("s_lshl_b32 s%d, s10, 12", S_RT + rd)
    a("v_lshlrev_b32 v%d, 4, v1", VH)
    a("v_lshrrev_b32 v%d, 3, v1", T0)
    a("v_lshlrev_b32 v%d, 10, v%d", T0, T0)
    a("v_bfe_u32 v%d, v1, 4, 1", T1)
    a("v_lshlrev_b32 v%d, 2, v%d", T1, T1)
    a("v_and_b32 v%d, 7, v1", T2)
    a("v_xor_b32 v%d, v%d, v%d", T2, T2, T1)
    a("v_lshl_add_u32 v%d, v%d, 4, v%d", T0, T2, T0)
    a("v_add_u32 v%d, s11, v%d", VWD, T0)
    a("v_lshrrev_b32 v%d, 5, v1", T0)
    a("v_bfe_u32 v%d, v1, 2, 2", T1)
    a("v_lshl_add_u32 v%d, v%d, 2, v%d", T0, T0, T1)
    a("v_lshlrev_b32 v%d, 7, v%d", T0, T0)
    a("v_bfe_u32 v%d, v1, 3, 1", T1)
    a("v_lshl_add_u32 v%d, v%d, 6, v%d", T0, T1, T0)
    a("v_bfe_u32 v%d, v1, 4, 1", T1)
    a("v_lshl_add_u32 v%d, v%d, 5, v%d", T0, T1, T0)
    a("v_and_b32 v%d, 1, v1", T1)
    a("v_lshl_add_u32 v%d, v%d, 4, v%d", T0, T1, T0)
    a("v_bfe_u32 v%d, v1, 1, 1", T1)
    a("v_lshl_add_u32 v%d, v%d, 3, v%d", T0, T1, T0)
    a("v_xor_b32 v%d, s12, v%d", T0, T0)
    a("s_lshl_b32 s12, s12, 8")
    a("v_add_u32 v%d, s12, v%d", VR0, T0)
    a("s_lshl_b32 s10, s3, 2")
    a("s_add_u32 s10, s10, %d", L_SY)
    a("v_mov_b32 v%d, s10", VSY)

def kreads():
    L = []
    for ks in range(8):
        L.append(("ds_read_b128 %s, v%d offset:%d" % (vr(KF + 8 * ks, 4), KA, ks * 16), ("k", ks)))
        L.append(("ds_read_b128 %s, v%d offset:%d" % (vr(KF + 8 * ks + 4, 4), KBa, ks * 16), ("k", ks)))
    return L
def run_kmfma(lg, fill, per):
    for ks in range(8):
        lg.need([("k", ks)])
        d = vr(KD, 4)
        a("v_mfma_f32_16x16x32_bf16 %s, %s, %s, %s", d, vr(KF + 8 * ks, 4), vr(KF + 8 * ks + 4, 4), d if ks else "0")
        for _ in range(per):
            if fill: lg.run(fill.pop(0))
    for f in fill: lg.run(f)
def kmfma_finish():
    lb = a.label("Lkm1"); le = a.label("Lkme")
    T = KF
    a("s_bitcmp1_b32 s3, 0")
    a("s_cbranch_scc1 %s", lb)
    a("v_cvt_pk_bf16_f32 v%d, v%d, v%d", T, KD, KD + 1)
    a("v_cvt_pk_bf16_f32 v%d, v%d, v%d", T + 1, KD + 2, KD + 3)
    a("ds_write_b64 v%d, %s", KW, vr(T, 2))
    a("s_branch %s", le)
    a(lb + ":")
    a("s_nop 7")
    a("s_mov_b32 s10, 0xaaaaaaaa")
    a("s_mov_b32 s11, 0xaaaaaaaa")
    a("v_cndmask_b32 v%d, v%d, v%d, s[10:11]", T + 12, KD, KD + 1)
    a("v_cndmask_b32 v%d, v%d, v%d, s[10:11]", T + 13, KD + 2, KD + 3)
    a("v_cvt_pk_bf16_f32 v%d, v%d, v%d", T, KD, KD)
    a("v_cvt_pk_bf16_f32 v%d, v%d, v%d", T + 1, KD, KD)
    a("v_cvt_pk_bf16_f32 v%d, v%d, v%d", T + 2, T + 12, KD + 1)
    a("v_cvt_pk_bf16_f32 v%d, v%d, v%d", T + 3, KD + 1, KD + 1)
    a("v_cvt_pk_bf16_f32 v%d, v%d, v%d", T + 4, KD + 2, KD + 2)
    a("v_cvt_pk_bf16_f32 v%d, v%d, v%d", T + 5, KD + 2, KD + 2)
    a("v_cvt_pk_bf16_f32 v%d, v%d, v%d", T + 6, T + 13, KD + 3)
    a("v_cvt_pk_bf16_f32 v%d, v%d, v%d", T + 7, KD + 3, KD + 3)
    a("s_mov_b64 exec, 0xffffffff")
    a("v_cvt_pk_bf16_f32 v%d, v%d, v%d", T + 1, KD, KD + 1)
    a("v_mov_b32 v%d, v%d", T + 2, T + 3)
    a("v_mov_b32 v%d, v%d", T + 3, T + 4)
    a("s_not_b64 exec, exec")
    a("ds_write_b128 v%d, %s offset:1024", KW, vr(T + 4, 4))
    a("s_mov_b64 exec, -1")
    a("ds_write_b128 v%d, %s", KW, vr(T, 4))
    a(le + ":")

def zero_pads_k():
    T = KF + 16
    for i in range(4): a("v_mov_b32 v%d, 0", T + i)
    a("v_and_b32 v%d, 7, v1", T + 4)
    a("v_lshlrev_b32 v%d, 4, v%d", T + 4, T + 4)
    a("v_add_u32 v%d, %d, v%d", T + 4, L_SY, T + 4)
    for i, ad in enumerate([L_K + 16 * j for j in range(4)] + [L_K + KCH + 16 * j for j in range(4)] + [L_CY, L_CY + CYCH]):
        a("s_mov_b32 s10, %d", ad)
        a("v_writelane_b32 v%d, s10, %d", T + 4, 8 + i)
    a("ds_write_b128 v%d, %s", T + 4, vr(T, 4))
def zero_pads_u():
    T = KD
    for i in range(4): a("v_mov_b32 v%d, 0", T + i)
    a("v_and_b32 v%d, 31, v1", 235)
    a("v_lshlrev_b32 v%d, 4, v%d", 235, 235)
    a("v_lshrrev_b32 v%d, 5, v1", 234)
    a("v_mad_u32_u24 v%d, v%d, %s, v%d", 235, 234, "v233", 235) if False else None
    a("v_mul_u32_u24 v%d, %d, v%d", 234, UCH, 234)
    a("v_add_u32 v%d, v%d, v%d", 235, 235, 234)
    a("ds_write_b128 v%d, %s offset:%d", 235, vr(T, 4), L_U)
VUL2 = 156
def u_load():
    a("v_lshlrev_b32 v%d, 5, v1", VUL + 4)
    a("s_lshl_b32 s10, s2, 13")
    a("s_lshl_b32 s11, s%d, 11", S_TQ)
    a("s_add_u32 s10, s10, s11")
    a("s_add_u32 s10, s10, %d", WS_UT)
    a("buffer_load_dwordx4 %s, v%d, %s, s10 offen sc1", vr(VUL, 4), VUL + 4, sr(SWS, 4))
    a("buffer_load_dwordx4 %s, v%d, %s, s10 offen offset:16 sc1", vr(VUL2, 4), VUL + 4, sr(SWS, 4))
def u_write():
    a("s_lshl_b32 s11, s%d, 10", S_TQ)
    a("v_add_u32 v%d, s11, v%d", VUL + 4, VH)
    a("ds_write_b128 v%d, %s offset:%d", VUL + 4, vr(VUL, 4), L_U + 512)
    a("ds_write_b128 v%d, %s offset:%d", VUL + 4, vr(VUL2, 4), L_U + UCH + 512)
def role(lo, hi):
    l1 = a.label("Lr1"); l2 = a.label("Lr2")
    a("s_cmp_ge_u32 s3, 4")
    a("s_cbranch_scc1 %s", l1)
    if lo is None:
        a.lines[-1] = a.lines[-1].replace("scc1", "scc0")
        hi()
        a(l1 + ":")
        return
    if lo: lo()
    if hi:
        a("s_branch %s", l2)
        a(l1 + ":")
        hi()
        a(l2 + ":")
    else:
        a(l1 + ":")

def nonce_issue():
    a("global_load_dwordx2 %s, v%d, %s sc1", vr(VN, 2), VZ, sr(P_DBG, 2))
slow = []
def nonce_check():
    ok = a.label("Lnok"); lp = a.label("Lnlp")
    a(ok + "r:")
    a("v_readfirstlane_b32 s10, v%d", VN + 1)
    a("v_readfirstlane_b32 s%d, v%d", S_NONCE, VN)
    a("s_cmp_lg_u32 s10, 1")
    a("s_cbranch_scc1 %s", lp)
    a(ok + ":")
    def sp():
        a(lp + ":")
        a("s_add_u32 s%d, s%d, 1", S_SPIN, S_SPIN)
        a("s_cmp_ge_u32 s%d, %d", S_SPIN, SPINMAX)
        a("s_cbranch_scc1 %s", ok)
        a("s_sleep 2")
        a("global_load_dwordx2 %s, v%d, %s sc1", vr(VN, 2), VZ, sr(P_DBG, 2))
        a("s_waitcnt vmcnt(0)")
        a("s_branch %sr", ok)
    slow.append(sp)
def poll_issue(n):
    a("v_min_u32 v%d, %d, v1", VN + 2, n - 1)
    a("v_lshlrev_b32 v%d, 2, v%d", VN + 2, VN + 2)
    a("buffer_load_dword v%d, v%d, %s, s%d offen sc1", VN - 1, VN + 2, sr(SWS, 4), S_PB)
def poll_check(sleep=2):
    ok = a.label("Lpok"); lp = a.label("Lplp")
    a(ok + "r:")
    a("v_cmp_ne_u32 vcc, s%d, v%d", S_NONCE, VN - 1)
    a("s_cmp_lg_u64 vcc, 0")
    a("s_cbranch_scc1 %s", lp)
    a(ok + ":")
    def sp():
        a(lp + ":")
        a("s_add_u32 s%d, s%d, 1", S_SPIN, S_SPIN)
        a("s_cmp_ge_u32 s%d, %d", S_SPIN, SPINMAX)
        a("s_cbranch_scc1 %s", ok)
        if sleep: a("s_sleep %d", sleep)
        a("buffer_load_dword v%d, v%d, %s, s%d offen sc1", VN - 1, VN + 2, sr(SWS, 4), S_PB)
        a("s_waitcnt vmcnt(0)")
        a("s_branch %sr", ok)
    slow.append(sp)
def flag_store(sbase):
    a("v_mov_b32 v%d, 0", VN)
    a("v_mov_b32 v%d, s%d", VN + 1, S_NONCE)
    a("s_mov_b64 exec, 1")
    a("buffer_store_dword v%d, v%d, %s, %s offen sc1", VN + 1, VN, sr(SWS, 4), sbase)
    a("s_mov_b64 exec, -1")
def lds_wait(vaddr, off, vtmp, sleep=1):
    lp = a.label("Llw"); ok = a.label("Llok")
    a(lp + ":")
    a("ds_read_b32 v%d, v%d offset:%d", vtmp, vaddr, off)
    a("s_add_u32 s%d, s%d, 1", S_SPIN, S_SPIN)
    a("s_waitcnt lgkmcnt(0)")
    a("v_cmp_eq_u32 vcc, 0, v%d", vtmp)
    a("s_cmp_eq_u64 vcc, 0")
    a("s_cbranch_scc1 %s", ok)
    a("s_sleep %d", sleep)
    a("s_cmp_lt_u32 s%d, %d", S_SPIN, SPINMAX * 16)
    a("s_cbranch_scc1 %s", lp)
    a(ok + ":")

a("s_cmp_ge_u32 s2, 256")
a("s_cbranch_scc1 L_end")
if STAMP:
    a("s_memrealtime s[96:97]")
    a("s_memtime s[98:99]")
a("s_load_dwordx16 s[16:31], s[0:1], 0")
a("s_load_dwordx16 s[32:47], s[0:1], 64")
a("s_load_dwordx2 s[48:49], s[0:1], 128")
a("v_lshrrev_b32 v2, 6, v0")
a("s_lshr_b32 s5, s2, 3")
if opt("cpf", 1):
    a("s_getpc_b64 s[10:11]")
    a("L_pc:")
    a("s_lshl_b32 s12, s5, 10")
    a("v_lshl_add_u32 v3, v2, 7, s12")
    a("v_and_b32 v4, 1, v0")
    a("v_lshl_add_u32 v3, v4, 6, v3")
    a("v_min_u32 v3, L_end-L_pc, v3")
    a("global_load_dword v19, v3, s[10:11]")
a("v_and_b32 v1, 63, v0")
a("v_readfirstlane_b32 s3, v2")
a("s_and_b32 s4, s2, 7")
kgen_setup()
PRE_WAIT = opt("prewait", 0)
if not PRE_WAIT:
    a("s_waitcnt lgkmcnt(0)")
    kgen_loads()
a("s_mov_b32 s%d, 0", S_SPIN)
a("v_mov_b32 v%d, 0", VZ)
a("v_mov_b32 v%d, 0", VN + 2)
if STAMP: a("v_mov_b32 v255, 0")
a("s_lshr_b32 s6, s4, 1")
a("s_lshl_b32 s6, s6, 2")
a("s_and_b32 s7, s5, 3")
a("s_add_u32 s6, s6, s7")
a("s_and_b32 s7, s4, 1")
a("s_mul_i32 s7, s7, 7")
a("s_lshr_b32 s8, s5, 2")
a("s_add_u32 s7, s7, s8")
a("s_sub_u32 s7, s7, 1")
a("s_and_b32 s8, s3, 1")
a("s_lshr_b32 s9, s3, 1")
VX0, VX1, VW0, VW1 = 4, 5, 6, 7
VXR = 8
VWA, VWB = 12, 13
T0, T1, T2, T3 = 14, 15, 16, 17
a("s_lshl_b32 s10, s6, 7")
a("s_lshl_b32 s11, s3, 4")
a("s_add_u32 s10, s10, s11")
a("s_lshl_b32 s10, s10, 10")
a("v_lshrrev_b32 v%d, 3, v1", T0)
a("v_lshlrev_b32 v%d, 10, v%d", T0, T0)
a("v_lshrrev_b32 v%d, 4, v1", T1)
a("v_and_b32 v%d, 7, v1", T2)
a("v_xor_b32 v%d, v%d, v%d", T2, T2, T1)
a("v_lshl_add_u32 v%d, v%d, 4, v%d", T0, T2, T0)
a("v_add_u32 v%d, s10, v%d", VX0, T0)
a("v_xor_b32 v%d, 64, v%d", VX1, VX0)
a("v_add_u32 v%d, 0x2000, v%d", VX1, VX1)
a("s_and_b32 s12, s3, 3")
a("s_mul_i32 s10, s12, %d", 4 * 3584)
a("s_lshl_b32 s11, s7, 8")
a("s_add_u32 s10, s10, s11")
a("v_mul_u32_u24 v%d, 3584, v%d", T0, T1)
a("v_lshlrev_b32 v%d, 2, v%d", T2, T1)
a("v_and_b32 v%d, 15, v1", T3)
a("v_xor_b32 v%d, v%d, v%d", T2, T2, T3)
a("v_lshl_add_u32 v%d, v%d, 4, v%d", T0, T2, T0)
a("v_add_u32 v%d, s10, v%d", VW0, T0)
S_RO, S_LO = 60, 80
S_LO = 20
for j in range(4):
    a("s_add_u32 s10, s5, %d", j if opt("share", 1) else 0) if opt("share", 1) else a("s_mov_b32 s10, %d", j)
    a("s_and_b32 s10, s10, 3")
    a("s_mul_i32 s%d, s10, %d", S_RO + j, 16 * 3584)
a("s_lshl_b32 s%d, s3, 11", S_W2K)
CC = opt("cc", 8)
S_KO = 99 if not STAMP else 93
if CC < 8:
    NR = 8 - CC
    a("s_and_b32 s10, s5, 3")
    a("s_mul_i32 s10, s10, %d", opt("rm", 2))
    a("s_lshr_b32 s11, s5, 2")
    a("s_add_u32 s10, s10, s11")
    a("s_mul_i32 s11, s10, %d", (65536 + NR - 1) // NR)
    a("s_lshr_b32 s11, s11, 16")
    a("s_mul_i32 s11, s11, %d", NR)
    a("s_sub_u32 s10, s10, s11")
    seq = [CC + (i % NR) for i in range(16)]
    val = sum(x << (4 * i) for i, x in enumerate(seq))
    a("s_mov_b32 s12, 0x%x", val & 0xffffffff)
    a("s_mov_b32 s13, 0x%x", val >> 32)
    a("s_lshl_b32 s10, s10, 2")
    a("s_lshr_b64 s[12:13], s[12:13], s10")
    a("s_lshl_b32 s12, s12, %d", 4 * CC) if CC else None
    a("s_or_b32 s%d, s12, 0x%x", S_KO, sum(i << (4 * i) for i in range(CC)))
else:
    a("s_mov_b32 s%d, 0x76543210", S_KO)
a("s_and_b32 s10, s4, %d", opt("krot", 6))
a("s_mul_i32 s10, s10, 0x11111111")
a("s_add_u32 s%d, s%d, s10", S_KO, S_KO)
for r, n in ((SX, 2048 * 1024), (SG, 512 * 3584), (SWS, WS_BYTES), (SW, 1792 * 1024), (SO, 2048 * 1024)):
    a("s_mov_b32 s%d, 0x%x", r + 2, n)
    a("s_mov_b32 s%d, 0x20000", r + 3)
a("s_cmp_lt_u32 s5, 4")
a("s_cselect_b32 s%d, 1, 0", S_ISAUX)
if PRE_WAIT:
    a("s_waitcnt lgkmcnt(0)")
    kgen_loads()
def srd_base(r, p):
    a("s_mov_b32 s%d, s%d", r, p)
    a("s_and_b32 s%d, s%d, 0xffff", r + 1, p + 1)
srd_base(SX, P_U)
a("s_mov_b32 s%d, s%d", S_KR, S_KO)
a("s_cmp_lg_u32 s%d, 0", S_ISAUX)
a("s_cbranch_scc1 L_aux")

vm = []
def vmwait(tags):
    idx = [i for i, t in enumerate(vm) if t in tags]
    return len(vm) - 1 - max(idx)
def dma1(stage, j, m0r=None):
    slot = stage % 3
    if j == 0 or (j == 3 and stage < 2):
        a("s_bfe_u32 s%d, s%d, 0x%x", S_T, S_KR, (3 << 16) | (4 * stage))
        a("s_mul_i32 s%d, s%d, %d", S_T2, S_T, 64 * 3584)
        a("s_lshl_b32 s%d, s%d, 7", S_T, S_T)
    if j in (1, 2):
        a("s_add_u32 m0, s%d, %d", S_W2K, XB[slot] * BLK + (j - 1) * 1024)
        a("buffer_load_dwordx4 v%d, %s, s%d offen lds", VX0 + j - 1, sr(SX, 4), S_T)
    else:
        p = 0 if j == 0 else j - 2
        a("s_add_u32 m0, s%d, %d", S_LO + p, GB[slot] * BLK)
        a("s_add_u32 s%d, s%d, s%d", S_T3, S_T2, S_RO + p)
        a("buffer_load_dwordx4 v%d, %s, s%d offen lds", VW0, sr(SG, 4), S_T3)
    if m0r is not None: a("s_mov_b32 m0, s%d", m0r)
    vm.append(("G1", stage))
S_T3 = 24
vm += [("KP", 0)] * 7
a("s_cmp_ge_u32 s3, 4")
a("s_cselect_b32 s%d, s%d, s%d", SG, P_WU, P_WG)
a("s_cselect_b32 s%d, s%d, s%d", SG + 1, P_WU + 1, P_WG + 1)
a("s_and_b32 s%d, s%d, 0xffff", SG + 1, SG + 1)
a("s_lshr_b32 s10, s3, 2")
a("s_lshl_b32 s10, s10, 14")
a("s_and_b32 s11, s3, 3")
a("s_lshl_b32 s11, s11, 10")
a("s_add_u32 s10, s10, s11")
for j in range(4):
    a("s_add_u32 s11, s5, %d", j) if opt("share", 1) else a("s_mov_b32 s11, %d", j)
    a("s_and_b32 s11, s11, 3")
    a("s_lshl_b32 s11, s11, 12")
    a("s_add_u32 s%d, s10, s11", S_LO + j)
    if j == 0: dma1(0, 0); dma1(0, 1); dma1(0, 2)
stamp(11)
def common_srds():
    srd_base(SWS, P_WS); srd_base(SW, P_WD); srd_base(SO, P_OUT)
later_addrs(T0, T1, T2)
for j in range(3): dma1(1, j)
def g1_read_addrs():
    a("v_and_b32 v%d, 31, v1", T0)
    a("v_lshrrev_b32 v%d, 5, v1", T1)
    a("v_bfe_u32 v%d, v1, 1, 3", T2)
    a("v_xor_b32 v%d, v%d, v%d", T2, T2, T1)
    a("v_lshlrev_b32 v%d, 7, v%d", T0, T0)
    a("v_lshl_add_u32 v%d, v%d, 4, v%d", T0, T2, T0)
    a("s_lshl_b32 s10, s8, 13")
    a("v_add_u32 v%d, s10, v%d", VXR, T0)
    for ks in range(1, 4): a("v_xor_b32 v%d, %d, v%d", VXR + ks, ks << 5, VXR)
    a("v_bfe_u32 v%d, v1, 2, 2", T0)
    a("v_lshl_add_u32 v%d, v%d, 3, v%d", T2, T1, T0)
    a("v_lshlrev_b32 v%d, 8, v%d", T2, T2)
    a("v_xor_b32 v%d, s9, v%d", T0, T0)
    a("v_lshl_add_u32 v%d, v%d, 6, v%d", T2, T0, T2)
    a("v_bfe_u32 v%d, v1, 4, 1", T0)
    a("v_lshl_add_u32 v%d, v%d, 5, v%d", T2, T0, T2)
    a("v_and_b32 v%d, 3, v1", T0)
    a("v_lshl_add_u32 v%d, v%d, 3, v%d", T2, T0, T2)
    a("v_add_u32 v%d, %d, v%d", VWA, 4 * BLK, T2)
    a("v_add_u32 v%d, %d, v%d", VWB, 8 * BLK, T2)
def mall_prefetch():
    a("s_sub_u32 s10, s5, 4")
    a("s_lshl_b32 s10, s10, 3")
    a("s_add_u32 s10, s10, s3")
    a("s_mul_i32 s11, s4, 224")
    a("s_add_u32 s10, s10, s11")
    a("s_lshl_b32 s10, s10, 10")
    a("buffer_load_dwordx4 v[52:55], v%d, %s, s10 offen", VH, sr(SW, 4))
    vm.append(("MPF", 0))
def late_setup():
    common_srds()
    a("s_lshl_b32 s10, s6, 2")
    a("s_lshl_b32 s11, s8, 1")
    a("s_add_u32 s10, s10, s11")
    a("s_mul_i32 s10, s10, 112")
    a("s_lshl_b32 s11, s7, 3")
    a("s_add_u32 s10, s10, s11")
    a("s_lshl_b32 s11, s9, 1")
    a("s_add_u32 s10, s10, s11")
    a("s_lshl_b32 s%d, s10, 10", S_HST)
    a("s_lshl_b32 s10, s6, 7")
    a("s_lshl_b32 s11, s7, 2")
    a("s_add_u32 s10, s10, s11")
    a("s_add_u32 s%d, s10, %d", S_FH, F_H)
    later_addrs2(T0, T1, T2)
FR = 20
ACC = 84
def reads1(step):
    st, ks = step // 4, step % 4
    slot = st % 3
    f = FR + (step % 2) * 16
    def xr(tt): return ("ds_read_b128 %s, v%d offset:%d" % (vr(f + 4 * tt, 4), VXR + ks, XB[slot] * BLK + tt * 4096), (step, "x", tt))
    def wr(gu, hf):
        blk = GB[slot] + gu
        reg, rel = (VWA, blk - 4) if blk < 8 else (VWB, blk - 8)
        return ("ds_read_b64_tr_b16 %s, v%d offset:%d" % (vr(f + 8 + 4 * gu + 2 * hf, 2), reg, rel * BLK + ks * 4096 + hf * 1024), (step, "w", gu))
    return [xr(0), wr(0, 0), wr(0, 1), wr(1, 0), wr(1, 1), xr(1)]
def kgen_all(dmas):
    khead, ktail = kgen_valu(False)
    for i in khead: a(i)
    if opt("diag1", 0): stamp(7, True)
    a("s_mov_b32 m0, s%d", S_TM0)
    wr = {w_.split()[1]: w_ for w_ in kgen_writes()}
    q = []
    n = len(ktail); k = 0
    for n_, i in enumerate(ktail):
        a(i)
        if q and n_ % 1 == 0 and len(q) > 1: a(q.pop(0))
        if i.startswith("v_cvt"): q.append(wr[i.split()[1].rstrip(",")])
        if dmas and n_ >= opt("d1start", 40) and (n_ - opt("d1start", 40)) % opt("d1step", 20) == 0: dmas.pop(0)()
    for w_ in q: a(w_)
    for d in dmas: d()
def touch(stage):
    a("s_bfe_u32 s10, s%d, 0x%x", S_KR, (3 << 16) | (4 * stage))
    a("s_mul_i32 s10, s10, %d", 64 * 3584)
    a("s_add_u32 s10, s10, s%d", S_RO)
    a("buffer_load_dwordx4 v[52:55], v%d, %s, s10 offen", VW0, sr(SG, 4))
    vm.append(("T", 0))
NT = opt("ntouch", 0)
a("s_waitcnt vmcnt(%d)", vmwait([("KP", 0)]))
stamp(0)
TP0 = opt("tpos", 0)
if TP0 == 0:
    for t_ in range(NT): touch(2 + t_)
kgen_all([(lambda j=j: dma1(0, j, S_TM0)) for j in range(3, 6)])
stamp(14)
a("s_waitcnt lgkmcnt(0)")
a("s_barrier")
stamp(12)
lg = Lg()
for r in kreads(): lg.issue(*r)
g1_read_addrs()
run_kmfma(lg, [], 0)
if opt("diag1", 0): stamp(4, True)
for j in range(3, 6): dma1(1, j)
if opt("diag1", 0): stamp(5, True)
if TP0 == 1:
    for t_ in range(NT): touch(2 + t_)
a("s_waitcnt vmcnt(%d)", vmwait([("G1", 0)]))
if opt("diag1", 0): stamp(6, True)
a("s_barrier")
stamp(1)
lg = Lg()
for r in reads1(0): lg.issue(*r)
kv = a.capture(late_setup) + a.capture(zero_pads_k)
pend = {}
def at(g, item): pend.setdefault(g, []).append(item)
for j in range(6): at([0, 2, 4, 6, 8, 10][j], lambda j=j: dma1(2, j))
class Raw:
    def __init__(self, f): self.f = f
at(1, Raw(kmfma_finish))

DG = [0, 3, 5, 8, 10, 13]
DGF = [0, 1, 2, 3, 4, 5]
NFAST = opt('nfast', 0)
KVG = opt("kvg", 3)
WST = 144
WSTO = {5: 0, 4: 32, 6: 64}
def stage_w(rd, i0=0, n=8):
    a("s_lshl_b32 s13, s%d, 4", S_RT + rd)
    a("s_add_u32 s13, s13, s%d", S_WSO)
    if i0: a("s_add_u32 s13, s13, %d", i0 * 8192)
    for i in range(i0, i0 + n):
        a("buffer_load_dwordx4 %s, v%d, %s, s13 offen", vr(WST + WSTO[rd] + 4 * i, 4), VWD, sr(SW, 4))
        if i < i0 + n - 1: a("s_add_u32 s13, s13, 8192")
def dma_w(rd, i):
    a("s_lshl_b32 s10, s3, 12")
    a("s_add_u32 m0, s10, %d", WB[rd] * BLK + i * 1024)
    a("s_lshl_b32 s10, s%d, 4", S_RT + rd)
    a("s_add_u32 s10, s10, s%d", S_W0S)
    a("s_add_u32 s10, s10, %d", i * 8192)
    a("buffer_load_dwordx4 v%d, %s, s10 offen lds", VWD, sr(SW, 4))
    vm.append(("W0", 0))
S_PFI = 101
def wd_prefetch(slot):
    if slot == 0:
        a("s_sub_u32 s%d, s5, 4", S_PFI)
        a("s_lshl_b32 s%d, s%d, 3", S_PFI, S_PFI)
        a("s_add_u32 s%d, s%d, s3", S_PFI, S_PFI)
    else:
        a("s_add_u32 s%d, s%d, 224", S_PFI, S_PFI)
    a("s_bfe_u32 s10, s%d, 0x20006", S_PFI)
    a("s_mul_i32 s10, s10, 448")
    a("s_lshr_b32 s11, s%d, 8", S_PFI)
    a("s_lshl_b32 s11, s11, 6")
    a("s_add_u32 s10, s10, s11")
    a("s_and_b32 s11, s%d, 63", S_PFI)
    a("s_add_u32 s10, s10, s11")
    a("s_lshl_b32 s10, s10, 10")
    a("buffer_load_dwordx4 v[52:55], v%d, %s, s10 offen", VH, sr(SW, 4))
    vm.append(("PF", 0))
PF = opt("pf", 0)
for step in range(32):
    st, ks = step // 4, step % 4
    f = FR + (step % 2) * 16
    nxt = reads1(step + 1) if step < 31 else []
    for i, (gu, tt) in enumerate([(0, 0), (1, 0), (0, 1), (1, 1)]):
        d = vr(ACC + (gu * 2 + tt) * 16, 16)
        lg.need([(step, "w", gu), (step, "x", tt)])
        a("v_mfma_f32_32x32x16_bf16 %s, %s, %s, %s", d, vr(f + 8 + 4 * gu, 4), vr(f + 4 * tt, 4), d if step else "0")
        for _ in range(4 if step == 31 else 2):
            if nxt: lg.issue(*nxt.pop(0))
        items = pend.pop(step * 4 + i, [])
        for p in items:
            if isinstance(p, Raw): p.f()
            else: lg.run(p)
        if not items:
            for _ in range(KVG + (1 if i >= 2 else 0)):
                if kv: lg.run(kv.pop(0))
    if ks == 2:
        assert not pend, (step, len(pend))
        g0 = (step + 1) * 4
        if st < 7:
            tags = [("G1", st + 1)]
            a("s_waitcnt vmcnt(%d) lgkmcnt(0)", vmwait(tags))
        else:
            def lo():
                a("s_waitcnt vmcnt(%d)", vmwait([("U", 0)]))
                u_write()
            role(lo, None)
            a("s_waitcnt lgkmcnt(0)")
        lg.drained()
        a("s_barrier")
        if opt("stg", 0) and st < 7: stamp([4, 5, 6, 7, 8, 10, 13][st], True)
        if st + 3 <= 7:
            for j in range(6): at(g0 + (DGF if st < NFAST else DG)[j], lambda j=j, s=st + 3: dma1(s, j))
        if st == opt("mpfst", 9): at(g0 + 15, mall_prefetch)
        if st == 5:
            assert not kv
            def f_():
                nonce_issue(); vm.append(("X", 0))
                a("s_mov_b32 s%d, %d", S_PB, F_A)
                poll_issue(32); vm.append(("PA", 0))
            at(g0 + 1, f_)
            for i_ in range(4): at(g0 + 3 + 2 * i_, lambda i_=i_: dma_w(0, i_))
            at(g0 + 11, zero_pads_u)
            def f_():
                a("s_waitcnt vmcnt(%d)", vmwait([("PA", 0)]))
                nonce_check()
                def lo():
                    poll_check()
                    u_load()
                def hi():
                    a("buffer_load_dword v19, v%d, %s, s%d offen", VZ, sr(SW, 4), S_W0S)
                    a("buffer_load_dword v19, v%d, %s, s%d offen", VZ, sr(SW, 4), S_W0S)
                role(lo, hi)
                vm.append(("U", 0)); vm.append(("U", 0))
            at(g0 + 15, f_)
        if st == 6:
            for i_ in range(4): at(g0 + 2 * i_, lambda i_=i_: dma_w(1, i_))
            for i_ in range(4): at(g0 + 8 + 2 * i_, lambda i_=i_: role(None, lambda: stage_w(4, 2 * i_, 2)))
        if st == 7:
            for i_ in range(4): at(g0 + i_, lambda i_=i_: dma_w(2, i_))
assert not pend, len(pend)
stamp(2)
for tt in range(2):
    g = ACC + tt * 16; u = ACC + (2 + tt) * 16
    for o in range(2):
        for q in range(8 * o, 8 * o + 8):
            a("v_mul_f32 v%d, v%d, v%d", g + q, g + q, u + q)
        dst = FR + 8 * tt + 4 * o
        for q in range(4):
            a("v_cvt_pk_bf16_f32 v%d, v%d, v%d", dst + q, g + 8 * o + 2 * q, g + 8 * o + 2 * q + 1)
        a("buffer_store_dwordx4 %s, v%d, %s, s%d offen offset:%d sc1", vr(dst, 4), VH, sr(SWS, 4), S_HST, 1024 * o)
    if tt == 0: a("s_add_u32 s%d, s%d, %d", S_HST, S_HST, 112 * 1024)
a("s_branch L_post")

a("L_aux:")
common_srds()
a("s_lshl_b32 s6, s4, 2")
a("s_add_u32 s6, s6, s5")
PITCH = 1040
LA = 6 * BLK - 1024
LGW = 0
a("v_lshlrev_b32 v4, 4, v1")
a("v_mov_b32 v10, 0")
a("s_mov_b32 s9, %d", F_E)
a("buffer_load_dword v12, v10, %s, s9 offen sc1", sr(SWS, 4))
a("s_lshl_b32 s7, s6, 16")
a("s_lshl_b32 s8, s3, 13")
a("s_add_u32 s7, s7, s8")
a("s_mul_i32 s8, s3, %d", 8 * PITCH)
for j in range(8):
    a("s_add_u32 m0, s8, %d", LA + j * PITCH)
    a("s_add_u32 s11, s7, %d", j * 1024)
    a("buffer_load_dwordx4 v4, %s, s11 offen lds", sr(SX, 4))
a("global_load_dwordx4 v[28:31], v4, %s", sr(P_GW, 2))
a("s_or_b32 s10, s2, s3")
a("s_cmp_lg_u32 s10, 0")
a("s_cbranch_scc1 L_nononce")
a("s_mov_b32 s10, 0x9e3779b1")
a("s_waitcnt vmcnt(9)")
a("v_mul_lo_u32 v12, v12, s10")
a("v_add_u32 v12, 0x7f4a7c15, v12")
a("v_mov_b32 v13, 1")
a("s_mov_b64 exec, 1")
a("global_store_dwordx2 v10, v[12:13], %s sc1", sr(P_DBG, 2))
a("buffer_store_dword v12, v10, %s, s9 offen sc1", sr(SWS, 4))
a("s_mov_b64 exec, -1")
a("L_nononce:")
a("v_and_b32 v5, 7, v0")
a("v_lshlrev_b32 v5, 4, v5")
a("v_lshrrev_b32 v6, 4, v1")
a("v_bfe_u32 v7, v1, 2, 2")
a("v_lshl_add_u32 v7, v7, 2, v6")
a("v_mul_u32_u24 v7, %d, v7", PITCH)
a("v_and_b32 v8, 3, v1")
a("v_lshl_add_u32 v7, v8, 3, v7")
a("s_and_b32 s9, s3, 1")
a("s_mul_i32 s10, s9, %d", 32 * PITCH)
a("s_lshr_b32 s11, s3, 1")
a("s_lshl_b32 s12, s11, 8")
a("s_add_u32 s10, s10, s12")
a("s_add_u32 s10, s10, %d", LA)
a("v_add_u32 v7, s10, v7")
a("v_bfe_u32 v8, v1, 1, 3")
a("v_lshlrev_b32 v8, 13, v8")
a("v_lshl_add_u32 v8, v6, 5, v8")
a("v_and_b32 v9, 1, v1")
a("v_lshl_add_u32 v8, v9, 4, v8")
a("s_lshl_b32 s12, s11, 19")
a("s_lshl_b32 s13, s6, 1")
a("s_add_u32 s13, s13, s9")
a("s_lshl_b32 s13, s13, 7")
a("s_add_u32 s12, s12, s13")
a("s_add_u32 s12, s12, %d", WS_UT)
a("v_lshrrev_b32 v9, 3, v0")
a("v_mul_u32_u24 v10, %d, v9", PITCH)
a("v_add_u32 v10, v10, v5")
a("v_add_u32 v10, %d, v10", LA)
a("s_waitcnt vmcnt(0)")
a("ds_write_b128 v4, v[28:31] offset:%d", LGW)
a("s_waitcnt lgkmcnt(0)")
a("s_barrier")
stamp(0)
for j in range(8):
    for hf in range(2):
        a("ds_read_b64_tr_b16 %s, v7 offset:%d", vr(64 + 4 * j + 2 * hf, 2), hf * 16 * PITCH + j * 32)
nonce_issue()
for j in range(8):
    a("s_waitcnt lgkmcnt(%d)", 14 - 2 * j)
    a("s_add_u32 s13, s12, %d", j * 65536)
    a("buffer_store_dwordx4 %s, v8, %s, s13 offen sc1", vr(64 + 4 * j, 4), sr(SWS, 4))
for j in range(8):
    a("ds_read_b128 %s, v10 offset:%d", vr(96 + 4 * j, 4), j * 128)
    a("ds_read_b128 %s, v5 offset:%d", vr(32 + 4 * j, 4), LGW + j * 128)
a("v_mov_b32 v11, 0")
a("v_mov_b32 v12, 0")
a("s_waitcnt lgkmcnt(0)")
for j in range(32):
    a("v_dot2_f32_bf16 v%d, v%d, v%d, v%d", 11 + j % 2, 32 + j, 96 + j, 11 + j % 2)
a("v_add_f32 v11, v11, v12")
a("v_add_f32_dpp v11, v11, v11 quad_perm:[1,0,3,2] row_mask:0xf bank_mask:0xf")
a("v_add_f32_dpp v11, v11, v11 quad_perm:[2,3,0,1] row_mask:0xf bank_mask:0xf")
a("v_add_f32_dpp v11, v11, v11 row_half_mirror row_mask:0xf bank_mask:0xf")
a("v_mul_f32 v11, 0xbfb8aa3b, v11")
a("v_exp_f32 v11, v11")
a("v_add_f32 v11, 1.0, v11")
a("v_rcp_f32 v11, v11")
a("v_lshlrev_b32 v9, 2, v9")
a("s_waitcnt vmcnt(0)")
nonce_check()
a("s_barrier")
a("s_cmp_lg_u32 s3, 0")
a("s_cbranch_scc1 L_auxnf")
a("s_lshl_b32 s10, s6, 2")
a("s_add_u32 s10, s10, %d", F_A)
flag_store("s10")
a("L_auxnf:")
stamp(1)
a("s_lshl_b32 s13, s6, 8")
a("s_add_u32 s13, s13, %d", WS_G)
a("v_cmp_eq_u32 vcc, 0, v5")
a("s_mov_b64 exec, vcc")
a("buffer_store_dword v11, v9, %s, s13 offen sc1", sr(SWS, 4))
a("s_mov_b64 exec, -1")
later_addrs(T0, T1, T2)
later_addrs2(T0, T1, T2)
if opt("apf", 1):
    a("s_lshl_b32 s%d, s6, 3", S_PFI)
    a("s_add_u32 s%d, s%d, s3", S_PFI, S_PFI)
    a("s_lshr_b32 s10, s%d, 6", S_PFI)
    a("s_mul_i32 s10, s10, 448")
    a("s_and_b32 s11, s%d, 63", S_PFI)
    a("s_add_u32 s10, s10, s11")
    a("s_lshl_b32 s10, s10, 10")
    for k_ in range(7):
        a("buffer_load_dwordx4 v[52:55], v%d, %s, s10 offen", VH, sr(SW, 4))
        a("s_add_u32 s10, s10, 65536")
kgen_all([])
a("s_waitcnt lgkmcnt(0)")
a("s_barrier")
lg = Lg()
for r in kreads(): lg.issue(*r)
run_kmfma(lg, [], 0)
a("s_mov_b32 s%d, %d", S_PB, F_A)
poll_issue(32)
a("s_waitcnt vmcnt(0)")
a("s_barrier")
kmfma_finish()
zero_pads_k()
zero_pads_u()
a("s_cmp_lg_u32 s3, 4")
a("s_cbranch_scc1 L_auxng")
a("s_lshl_b32 s10, s6, 2")
a("s_add_u32 s10, s10, %d", F_G)
flag_store("s10")
a("L_auxng:")
def lo():
    poll_check(4)
    u_load()
role(lo, None)
for rd_ in range(3):
    for i_ in range(4): dma_w(rd_, i_)
def lo():
    a("s_waitcnt vmcnt(12)")
    u_write()
role(lo, lambda: stage_w(4))
a("s_waitcnt lgkmcnt(0)")
a("s_barrier")
stamp(2)

a("L_post:")
VA, VB, VC, VY = 2, 3, 4, 5
a("v_mov_b32 v%d, v%d", VA, PVA)
a("v_mov_b32 v%d, v%d", VB, PVB)
a("v_mov_b32 v%d, v%d", VC, PVC)
a("v_mov_b32 v%d, v%d", VY, PVY)
a("v_mov_b32 v6, 1")
a("v_mov_b32 v7, %d", L_SY)
stamp(3)
a("s_cmp_ge_u32 s3, 4")
a("s_cbranch_scc1 L_help")

HF = 112
HRING = 8
VO, EU, ED = 14, 20, 24
def eops():
    t1, t2, t3 = 17, 18, 19
    a("v_and_b32 v%d, 31, v1", t1)
    a("v_lshrrev_b32 v%d, 5, v1", t2)
    a("v_lshlrev_b32 v%d, 4, v%d", t3, t2)
    a("v_lshl_add_u32 v%d, v%d, 10, v%d", VO, t1, t3)
    a("buffer_load_dwordx4 %s, v%d, %s, s%d offen", vr(EU, 4), VO, sr(SX, 4), S_OB)
    a("v_add_u32 v%d, s%d, v%d", t3, S_DOFF, t3)
    a("global_load_dwordx4 %s, v%d, %s", vr(ED, 4), t3, sr(P_DSK, 2))
def hload(j0, n, vml):
    for j in range(j0, j0 + n):
        if j % 4 == 0 or j == j0:
            a("s_add_u32 s%d, s%d, s%d", S_T, S_HB, S_RT + j // 4)
        a("buffer_load_dwordx4 %s, v%d, %s, s%d offen offset:%d%s", vr(HF + 4 * (j % HRING), 4), VH, sr(SWS, 4), S_T, (j % 4) * 1024, "" if opt("hplain", 0) else " sc1")
        vml.append(("H", j))

a("s_bitcmp1_b32 s3, 0")
a("s_cbranch_scc1 L_set1")
BF = 112
AF = 8
AC = 28
C1POS = opt("c1pos", 20)
LOOK = opt("look", 6)
NC0 = opt("nc0", 6)
FPG = opt("fpg", 4)
vmc = None
for si, tiles in enumerate([[0, 3, 4, 7], [1, 2, 5, 6]]):
    if si == 1: a("L_set1:")
    lg = Lg()
    sched = []
    maxd = 4 * tiles[-1] + 3
    for dl in range(maxd + 1):
        for ti, jt in enumerate(tiles):
            if dl <= 4 * jt + 3: sched.append((dl, ti, jt))
    loads = []; seenA, seenB = set(), set()
    for pos, (dl, ti, jt) in enumerate(sched):
        if dl not in seenA: seenA.add(dl); loads.append(("A", dl, pos))
        e = 4 * jt - dl
        if e not in seenB: seenB.add(e); loads.append(("B", e, pos))
    lastuseA = {}
    for pos, (dl, ti, jt) in enumerate(sched): lastuseA[dl] = pos
    NA = 5
    def ld_instrs(kind, idx):
        if kind == "A":
            r = AF + 4 * (idx % NA)
            return ["ds_read_b64_tr_b16 %s, v%d offset:%d" % (vr(r + 2 * hf, 2), VA, 128 * idx + 32 * (1 - hf)) for hf in range(2)]
        return ["ds_read_b128 %s, v%d offset:%d" % (vr(BF + 4 * (idx + 3), 4), VB, 128 * (idx + 3))]
    li = 0; fill = []
    def recomb(ti):
        b = AC + 20 * ti
        L = []
        q1 = "quad_perm:[1,1,3,3] row_mask:0xf bank_mask:0xf"; q2 = "quad_perm:[2,2,2,2] row_mask:0xf bank_mask:0xf"
        L.append("v_mov_b32_dpp v%d, v%d %s" % (b + 16, b + 15, q1))
        for q in range(15, 0, -1):
            L.append("v_add_f32_dpp v%d, v%d, v%d %s" % (b + q, b + q - 1, b + q, q1))
        L.append("v_mov_b32_dpp v%d, v%d %s" % (b + 18, b + 16, q2))
        L.append("v_mov_b32_dpp v%d, v%d %s" % (b + 17, b + 15, q2))
        for q in range(16, 1, -1):
            L.append("v_add_f32_dpp v%d, v%d, v%d %s" % (b + q, b + q - 2, b + q, q2))
        return L
    started = set(); hold = 0
    for pos, (dl, ti, jt) in enumerate(sched):
        while li < len(loads) and loads[li][2] <= pos + LOOK:
            kind, idx, fp = loads[li]
            if kind == "A" and idx >= NA and lastuseA[idx - NA] >= pos: break
            for ins in ld_instrs(kind, idx): lg.issue(ins, (kind, idx))
            li += 1
        e = 4 * jt - dl
        lg.need([("A", dl), ("B", e)])
        d = vr(AC + 20 * ti, 16)
        a("v_mfma_f32_32x32x16_bf16 %s, %s, %s, %s", d, vr(AF + 4 * (dl % NA), 4), vr(BF + 4 * (e + 3), 4), d if ti in started else "0")
        started.add(ti)
        if pos == C1POS:
            a("s_waitcnt vmcnt(0)")
            lg.issue("ds_write_b32 v%d, v6" % VSY)
        if hold > 0: hold -= 1
        else:
            for _ in range(FPG):
                if fill: a(fill.pop(0))
        if dl == 4 * jt + 3:
            if not fill: hold = 2
            fill += recomb(ti)
    stamp(4)
    for f in fill: a(f)
    a("s_mov_b32 s12, 0x11111111")
    a("s_mov_b32 s13, 0x11111111")
    a("s_mov_b64 exec, s[12:13]")
    for ti, jt in enumerate(tiles):
        a("ds_write_b128 v%d, %s offset:%d", VC, vr(AC + 20 * ti + 16, 4), 256 * jt + 16)
    a("s_mov_b64 exec, -1")
    a("ds_write_b32 v%d, v6 offset:32", VSY)
    a("v_xor_b32 v%d, 4, v%d", VB, VSY)
    stamp(5)
    lds_wait(VB, 32, VA)
    for ti, jt in enumerate(tiles):
        a("ds_read_b128 %s, v%d offset:%d", vr(AF + 4 * ti, 4), VC, 256 * jt)
    a("s_mov_b64 vcc, s[12:13]")
    a("s_mov_b32 s12, 0x33333333")
    a("s_mov_b32 s13, 0x33333333")
    for ti, jt in enumerate(tiles):
        b = AC + 20 * ti
        for q in range(2, 8):
            a("v_cvt_pk_bf16_f32 v%d, v%d, v%d", b + 16 + (q - 2) if q < 4 else b + q, b + 2 * q, b + 2 * q + 1)
    for ti, jt in enumerate(tiles):
        b = AC + 20 * ti
        a("s_waitcnt lgkmcnt(%d)", 3 - ti)
        for q in range(3):
            a("v_add_f32 v%d, v%d, v%d", b + q, b + q, AF + 4 * ti + q)
        a("v_cvt_pk_bf16_f32 v%d, v%d, v%d", b, b, b + 1)
        a("v_cvt_pk_bf16_f32 v%d, v%d, v%d", b + 1, b + 2, b + 3)
        q0 = "quad_perm:[0,0,0,0] row_mask:0xf bank_mask:0xf"
        a("v_cndmask_b32_dpp v%d, v%d, v%d, vcc %s", b + 2, b + 6, b + 16, q0)
        a("v_cndmask_b32_dpp v%d, v%d, v%d, vcc %s", b + 3, b + 7, b + 17, q0)
        a("v_cndmask_b32_dpp v%d, v%d, v%d, vcc %s", b, b + 4, b, q0)
        a("v_cndmask_b32_dpp v%d, v%d, v%d, vcc %s", b + 1, b + 5, b + 1, q0)
        a("s_mov_b64 exec, s[12:13]")
        a("buffer_store_dwordx4 %s, v%d, %s, s%d offen offset:%d sc1", vr(b, 4), VY, sr(SWS, 4), S_YB, 512 * jt)
        a("s_mov_b64 exec, -1")
    a("s_branch L_ycom")

a("L_ycom:")
eops()
a("s_waitcnt vmcnt(0)")
a("ds_write_b32 v%d, v6 offset:64", VSY)
a("s_cmp_lg_u32 s3, 0")
a("s_cbranch_scc1 L_nyf")
a("v_and_b32 v2, 3, v1")
a("v_lshl_add_u32 v2, v2, 2, v7")
lds_wait(2, 64, 3)
a("s_lshl_b32 s10, s2, 2")
a("s_add_u32 s10, s10, %d", F_Y)
flag_store("s10")
a("L_nyf:")
stamp(6)
lds_wait(7, 48, 3)
vmc = []
hload(0, NC0, vmc)
a("s_branch L_g2c")

a("L_help:")
a("s_waitcnt vmcnt(0)")
a("ds_write_b32 v%d, v6", VSY)
stamp(10)
a("s_cmp_lg_u32 s3, 4")
a("s_cbranch_scc1 L_hdma")
a("s_cmp_lg_u32 s%d, 0", S_ISAUX)
a("s_cbranch_scc1 L_nohf")
a("v_and_b32 v2, 7, v1")
a("v_lshl_add_u32 v2, v2, 2, v7")
lds_wait(2, 0, 3)
flag_store("s%d" % S_FH)
a("L_nohf:")
stamp(4)
def help_loads():
    a("s_lshl_b32 s13, s%d, 4", S_RT + 3)
    a("s_add_u32 s13, s13, s%d", S_WSO)
    for i in range(8):
        a("s_add_u32 m0, s%d, %d", S_WLD, WB[3] * BLK + i * 1024)
        if i: a("s_add_u32 s13, s13, 8192")
        a("buffer_load_dwordx4 v%d, %s, s13 offen lds", VWD, sr(SW, 4))
    stage_w(5); stage_w(6)
    eops()
help_loads()
a("s_lshr_b32 s%d, s%d, 1", S_PB, S_TB)
a("s_lshl_b32 s%d, s%d, 7", S_PB, S_PB)
a("s_add_u32 s%d, s%d, %d", S_PB, S_PB, F_H)
PM = opt("pm", 1)
if PM == 1:
    a("s_mov_b32 s12, 0")
    a("L_sp:")
    a("s_buffer_load_dwordx16 s[16:31], %s, s%d glc", sr(SWS, 4), S_PB)
    a("s_add_u32 s12, s12, 1")
    a("s_waitcnt lgkmcnt(0)")
    a("s_xor_b32 s10, s16, s%d", S_NONCE)
    for i in range(1, 14):
        a("s_xor_b32 s11, s%d, s%d", 16 + i, S_NONCE)
        a("s_or_b32 s10, s10, s11")
    a("s_cbranch_scc0 L_spok")
    a("s_cmp_lt_u32 s12, %d", opt("spn", 64))
    a("s_cbranch_scc1 L_sp")
    poll_issue(14)
    a("s_waitcnt vmcnt(0)")
    poll_check(1)
    a("L_spok:")
    pass
elif PM == 2:
    a("v_and_b32 v2, 3, v1")
    a("v_max_u32 v2, 1, v2")
    a("v_lshl_add_u32 v2, v2, 2, v7")
    lds_wait(2, 80, 3)
    poll_issue(14)
    a("s_waitcnt vmcnt(0)")
    poll_check(1)
else:
    poll_issue(14)
    a("s_waitcnt vmcnt(0)")
    poll_check(1)
a("ds_write_b32 v7, v6 offset:48")
stamp(5)
a("s_branch L_hld")
a("L_hdma:")
help_loads()
if PM == 2: a("ds_write_b32 v%d, v6 offset:64", VSY)
stamp(4)
lds_wait(7, 48, 3)
stamp(5)
a("L_hld:")
vmh = [("W", 103)]
NH0 = opt("nh0", 6)
hload(0, NH0, vmh)
stamp(6)

def gemm2(role_, vml):
    helper = role_ == "h"
    R = 8
    VYR, EG = 15, 16
    EY = 28
    VWW = 97
    t0, t1, t2, t3 = 32, 33, 34, 35
    AFR = 36
    AC2 = 60
    YL = 92
    A0 = 100
    RR = 16
    def vw(tags):
        idx = [i for i, t in enumerate(vml) if t in tags]
        if opt("g2nowait", 0) and tags[0][0] in "HW": return 63
        if not idx: return 63
        return min(63, len(vml) - 1 - max(idx))
    a("v_mov_b32 v%d, v%d", R, VR0)
    a("v_xor_b32 v%d, 64, v%d", R + 1, VR0)
    for m in range(2):
        a("v_add_u32 v%d, %d, v%d", R + 2 + m, 4 * BLK, R + m)
        a("v_add_u32 v%d, %d, v%d", R + 4 + m, 8 * BLK, R + m)
    if helper: a("s_waitcnt vmcnt(%d)", vw([("W", 103)]))
    a("s_barrier")
    stamp(7)
    def reads(step):
        rd, ks = step // 4, step % 4
        blk = WB[rd]
        f = AFR + (step % 3) * 8
        L = []
        for m in range(2):
            for hf in range(2):
                L.append(("ds_read_b64_tr_b16 %s, v%d offset:%d" % (vr(f + 4 * m + 2 * hf, 2), R + 2 * (blk // 4) + m, (blk % 4) * BLK + ks * 2048 + hf * 1024), (step, m)))
        return L
    def ypoll_issue():
        a("s_lshl_b32 s10, s%d, 7", S_DB)
        a("v_lshl_add_u32 v%d, v1, 2, s10", VN + 2)
        a("s_lshl_b32 s10, s%d, 2", S_TB)
        a("s_add_u32 s10, s10, %d", F_G - F_Y)
        a("v_mov_b32 v%d, s10", t0)
        a("v_cmp_lt_u32 vcc, 31, v1")
        a("v_cndmask_b32 v%d, v%d, v%d, vcc", VN + 2, VN + 2, t0)
        a("s_mov_b32 s%d, %d", S_PB, F_Y)
        a("buffer_load_dword v%d, v%d, %s, s%d offen sc1", VN - 1, VN + 2, sr(SWS, 4), S_PB)
        vml.append(("PY", 0))
    def yload():
        poll_check(1)
        a("v_lshrrev_b32 v%d, 3, v1", t0)
        a("v_lshlrev_b32 v%d, 12, v%d", t0, t0)
        a("v_and_b32 v%d, 7, v1", t1)
        a("v_lshl_add_u32 v%d, v%d, 4, v%d", t0, t1, t0)
        a("s_lshl_b32 s10, s%d, 3", S_DB)
        a("s_add_u32 s10, s10, s3")
        a("s_lshl_b32 s10, s10, 15")
        a("s_lshl_b32 s11, s%d, 7", S_TB)
        a("s_add_u32 s10, s10, s11")
        a("s_add_u32 s10, s10, %d", WS_Y)
        a("buffer_load_dwordx4 %s, v%d, %s, s10 offen sc1", vr(YL, 4), t0, sr(SWS, 4))
        vml.append(("Y", 0))
        a("v_and_b32 v%d, 31, v1", t1)
        a("v_lshlrev_b32 v%d, 2, v%d", t1, t1)
        a("buffer_load_dword v%d, v%d, %s, s%d offen sc1", EG, t1, sr(SWS, 4), S_GOFF)
        vml.append(("Y", 0))
    lg = Lg()
    for r in reads(0) + reads(1): lg.issue(*r)
    pend = []
    def wwrite(rd, i):
        if i == 0: a("v_add_u32 v%d, %d, v%d", VWW, WB[rd] * BLK, VWW + 1)
        lg.issue("ds_write_b128 v%d, %s offset:%d" % (VWW, vr(WST + WSTO[rd] + 4 * i, 4), i * 1024), ("ww", rd))
    if helper:
        a("v_add_u32 v%d, s%d, v%d", VWW + 1, S_WLD, VH)
        pend = [(lambda i=i: wwrite(4, i)) for i in range(8)]
    vfill = []
    nh = NH0 if helper else NC0
    YPS = opt("yps", 13)
    for step in range(28):
        rd, ks = step // 4, step % 4
        f = AFR + (step % 3) * 8
        nxt = reads(step + 2) if step < 26 else []
        for m in range(2):
            d = vr(AC2 + 16 * m, 16)
            lg.need([(step, m)], "vmcnt(%d) " % vw([("H", step)]) if m == 0 else "")
            a("v_mfma_f32_32x32x16_bf16 %s, %s, %s, %s", d, vr(f + 4 * m, 4), vr(HF + 4 * (step % HRING), 4), d if step else "0")
            for r in nxt[2 * m:2 * m + 2]: lg.issue(*r)
            if nh < 28 and m == 0:
                hload(nh, 1, vml); nh += 1
                if nh == 28:
                    a("s_waitcnt vmcnt(%d)", vw([("PY", 0)]))
                    yload()
            if m == 1 and step == YPS: ypoll_issue()
            if pend: pend.pop(0)()
            for _ in range(5):
                if vfill: lg.run(vfill.pop(0))
        if opt("stg2", 0) and ks == 3 and rd < 5:
            stamp(10 + rd); lg.drained()
        if step == 20:
            for j in range(4):
                for hi in range(2):
                    o = A0 + 2 * j + hi
                    op = "v_lshlrev_b32 v%d, 16, v%d" if hi == 0 else "v_and_b32 v%d, 0xffff0000, v%d"
                    vfill.append(op % (t2, EU + j)); vfill.append(op % (t3, ED + j))
                    vfill.append("v_mul_f32 v%d, v%d, v%d" % (o, t2, t3))
        if ks == 1 and 1 <= rd < 6:
            if helper and rd >= 3: lg.need([("ww", rd + 1)])
            a("s_barrier")
            if helper and rd <= 2:
                assert not pend
                pend = [(lambda i=i, r=rd + 4: wwrite(r, i)) for i in range(8)]
            if rd == 5:
                vfill += ["v_lshrrev_b32 v%d, 5, v1" % VYR,
                          "v_bfe_u32 v%d, v1, 2, 2" % t2,
                          "v_lshl_add_u32 v%d, v%d, 3, v%d" % (VYR, VYR, t2),
                          "v_lshlrev_b32 v%d, 7, v%d" % (VYR, VYR),
                          "v_bfe_u32 v%d, v1, 4, 1" % t2,
                          "v_lshl_add_u32 v%d, v%d, 5, v%d" % (VYR, t2, VYR),
                          "v_and_b32 v%d, 3, v1" % t2,
                          "v_lshl_add_u32 v%d, v%d, 3, v%d" % (VYR, t2, VYR),
                          "s_lshr_b32 s10, s3, 1", "s_lshl_b32 s10, s10, 11", "s_and_b32 s11, s3, 1", "s_lshl_b32 s11, s11, 6",
                          "s_add_u32 s10, s10, s11", "s_add_u32 s10, s10, %d" % L_Y,
                          "v_add_u32 v%d, s10, v%d" % (VYR, VYR),
                          "s_lshl_b32 s10, s3, 10", "s_add_u32 s10, s10, %d" % L_Y,
                          "v_add_u32 v%d, s10, v%d" % (YL + 4, VH)]
                for j in range(4):
                    hi_ = (1 if helper else 0) ^ (j >> 1)
                    vfill.append("s_xor_b32 s10, s%d, %d" % (S_TQ, (2 * j) & 3))
                    vfill.append("s_mul_i32 s10, s10, 6144")
                    vfill.append("s_add_u32 s10, s10, %d" % (L_R[hi_] + max(j - 1, 0) * 2048))
                    vfill.append("v_add_u32 v%d, s10, v%d" % (VWW if j == 0 else RR + j, VH))
    assert not pend
    stamp(8)
    for f_ in vfill: lg.run(f_)
    a("s_waitcnt vmcnt(0)")
    a("ds_write_b128 v%d, %s", YL + 4, vr(YL, 4))
    for j in range(1, 4):
        for b in range(2):
            a("ds_write_b128 v%d, %s offset:%d", VWW, vr(AC2 + 8 * j + 4 * b, 4), (j - 1) * 2048 + b * 1024)
    for q in range(8):
        a("v_sub_f32 v%d, v%d, v%d", A0 + q, A0 + q, AC2 + q)
        a("v_fmac_f32 v%d, v%d, v%d", AC2 + q, EG, A0 + q)
    a("v_sub_f32 v%d, 1.0, v%d", t1, EG)
    a("s_waitcnt lgkmcnt(0)")
    a("s_barrier")
    for hf in range(2):
        a("ds_read_b64_tr_b16 %s, v%d offset:%d", vr(EY + 2 * hf, 2), VYR, hf * 512)
    for j in range(1, 4):
        for b in range(2):
            a("ds_read_b128 %s, v%d offset:%d", vr(AC2 + 8 * j + 4 * b, 4), RR + j, b * 1024)
    a("s_waitcnt lgkmcnt(6)")
    for j in range(4):
        a("v_lshlrev_b32 v%d, 16, v%d", t2, EY + j)
        a("v_and_b32 v%d, 0xffff0000, v%d", t3, EY + j)
        a("v_fmac_f32 v%d, v%d, v%d", AC2 + 2 * j, EG, t2)
        a("v_fmac_f32 v%d, v%d, v%d", AC2 + 2 * j + 1, EG, t3)
    for j in range(1, 4):
        a("s_waitcnt lgkmcnt(%d)", 2 * (3 - j))
        for q in range(8):
            a("v_fmac_f32 v%d, v%d, v%d", AC2 + q, t1, AC2 + 8 * j + q)
    for j in range(4):
        a("v_cvt_pk_bf16_f32 v%d, v%d, v%d", A0 + j, AC2 + 2 * j, AC2 + 2 * j + 1)
    a("buffer_store_dwordx4 %s, v%d, %s, s%d offen", vr(A0, 4), VO, sr(SO, 4), S_OB)
    if STAMP: a("s_waitcnt vmcnt(0)")
    stamp(9)
    stamp_out()
    a("s_endpgm")

gemm2("h", vmh)
a("L_g2c:")
gemm2("c", vmc)
for sp in slow: sp()
a("L_end:")
a("s_endpgm")

hdr = open("gated_mix__ssm_conv_s4__glu_gated_bilinear__prompt.s.ref").read().split("\n")
hdr = [l for l in hdr if l.startswith(";") and "@launch" not in l]
print(wrap(hdr + ["; @launch grid=(256,1,1) block=(512,1,1) lds=163840"], [(NAME, a, 256, 102, 256)]))
sys.stderr.write("nops: %d\n" % a.nops)
```

```python
import sys
from asmlib import *

STAMP = "--stamp" in sys.argv
def opt(name, default):
    for x in sys.argv:
        if x.startswith("--%s=" % name): return int(x.split("=")[1])
    return default

WS_H = 0
WS_UT = 8 << 20
WS_Y = 10 << 20
WS_G = 12 << 20
WS_F = (12 << 20) + 0x10000
WS_ST = 13 << 20
WS_BYTES = 14 << 20
F_A, F_H, F_Y, F_G, F_E = WS_F, WS_F + 0x1000, WS_F + 0x2000, WS_F + 0x3000, WS_F + 0x4000

P_U, P_ARE, P_AIM, P_BRE, P_BIM, P_CRE, P_CIM, P_LDT = 16, 18, 20, 22, 24, 26, 28, 30
P_DSK, P_BX, P_WG, P_WU, P_WD, P_GW, P_OUT, P_DBG, P_WS = 32, 34, 36, 38, 40, 42, 44, 46, 48
SX, SG, SU, SWS, SW, SO = 52, 56, 60, 64, 68, 72
S_NONCE, S_ISAUX, S_SPIN, S_PB = 76, 77, 78, 79
S_TB, S_DB, S_KH, S_TQ, S_HB, S_OB = 80, 81, 82, 83, 84, 85
S_W0S = 100
S_RT = 36
S_KR, S_T2 = 0, 1
S_W2K, S_T, S_TM0, S_YB = 86, 87, 88, 89
S_DOFF, S_GOFF = 50, 51
S_WSO, S_WLD = 90, 91
S_HST = 34
S_FH = 35
SPINMAX = opt("spin", 20000)

BLK = 16384
XB = [0, 1, 2]
GB = [6, 8, 4]
L_TAB = 2 * BLK
TP = 528
TPIECE = 31 * TP
L_U = 2 * BLK
UCH = 512 + 4096
L_K = 3 * BLK
KCH = 64 + 4096
L_CY = L_K + 2 * KCH
CYCH = 129 * 16
L_SY = L_CY + 2 * CYCH
assert L_SY % 16 == 0 and L_SY + 128 <= 4 * BLK
WB = [4, 6, 8, 0, 2, 4, 6]
L_Y = 8 * BLK + 24576
L_R = [8 * BLK, 0]

a = Asm()

class Lg:
    def __init__(self): self.q = []; self.done = 0
    def issue(self, ins, tag=None):
        a(ins); self.q.append(tag)
    def need(self, tags, extra=""):
        idx = [i for i, t in enumerate(self.q) if t in tags]
        last = max(idx) if idx else -1
        if last >= self.done:
            cnt = min(len(self.q) - 1 - last, 15)
            a("s_waitcnt %slgkmcnt(%d)", extra, cnt)
            self.done = len(self.q) - cnt
        elif extra:
            a("s_waitcnt %s", extra)
    def drained(self): self.done = len(self.q)
    def run(self, p):
        n0 = len(a.lines)
        a(p) if isinstance(p, str) else p()
        for ln in a.lines[n0:]:
            if ln.strip().startswith("ds_"): self.q.append(None)

SMASK = opt("smask", 0x7fff)
def stamp(i, force=False):
    if not STAMP or not ((SMASK >> i) & 1 or force): return
    a("s_memtime s[94:95]")
    a("s_memrealtime s[92:93]")
    a("s_waitcnt lgkmcnt(0)")
    a("s_sub_u32 s94, s94, s98")
    a("v_writelane_b32 v255, s94, %d", i)
    a("v_writelane_b32 v255, s92, %d", i + 16)
def stamp_out():
    if not STAMP: return
    a("s_mov_b64 exec, -1")
    a("v_writelane_b32 v255, s96, 31")
    a("s_lshl_b32 s92, s2, 3")
    a("s_add_u32 s92, s92, s3")
    a("s_lshl_b32 s92, s92, 7")
    a("s_add_u32 s92, s92, %d", WS_ST)
    a("v_mbcnt_lo_u32_b32 v254, -1, 0")
    a("v_mbcnt_hi_u32_b32 v254, -1, v254")
    a("v_lshlrev_b32 v253, 2, v254")
    a("s_mov_b64 exec, 0xffffffff")
    a("buffer_store_dword v255, v253, %s, s92 offen", sr(SWS, 4))

def cmul(d, x, y, plain):
    if plain:
        return ["v_mul_f32 v%d, v%d, v%d" % (d, x, y), "v_mul_f32 v%d, v%d, v%d" % (d + 1, x + 1, y),
                "v_fma_f32 v%d, -v%d, v%d, v%d" % (d, x + 1, y + 1, d), "v_fmac_f32 v%d, v%d, v%d" % (d + 1, x, y + 1)]
    return ["v_pk_mul_f32 %s, %s, %s op_sel_hi:[1,0]" % (vr(d, 2), vr(x, 2), vr(y, 2)),
            "v_pk_fma_f32 %s, %s, %s, %s op_sel:[1,1,0] op_sel_hi:[0,1,1] neg_lo:[1,0,0]" % (vr(d, 2), vr(x, 2), vr(y, 2), vr(d, 2))]
def il(x, y):
    o = []
    for i in range(max(len(x), len(y))):
        if i < len(x): o.append(x[i])
        if i < len(y): o.append(y[i])
    return o

VH = 240
VWD = 241
VR0 = 242
VSY = 243
VN = 250
PVA, PVB, PVC, PVY = 148, 149, 150, 151
KA, KBa, KW = 152, 153, 154
VZ = 155
KB = 160
KP = 204
KF = 160
KD = 236
VUL = 244

def kgen_setup():
    a("s_lshr_b32 s10, s3, 2")
    a("s_lshl_b32 s11, s2, 1")
    a("s_add_u32 s11, s11, s10")
    a("s_and_b32 s12, s3, 1")
    a("s_lshl_b32 s13, s11, 8")
    a("s_lshl_b32 s12, s12, 7")
    a("s_add_u32 s13, s13, s12")
    a("v_lshl_add_u32 v%d, v1, 1, s13", KB + 8)
    a("s_lshl_b32 s11, s11, 1")
    a("v_mov_b32 v%d, s11", KB + 9)
    for i in range(7): a("v_mov_b32 v%d, 0", KB + i)
    a("s_bitcmp1_b32 s3, 1")
    a("s_cselect_b64 s[14:15], -1, 0")
def kgen_loads():
    a("global_load_short_d16_hi v%d, v%d, %s", KB + 6, KB + 9, sr(P_LDT, 2))
    for i, p in enumerate([P_ARE, P_AIM, P_BRE, P_BIM, P_CRE, P_CIM]):
        a("global_load_short_d16_hi v%d, v%d, %s", KB + i, KB + 8, sr(p, 2))
    return 7
def rowpos(m): return 16 + (2 * m if m <= 7 else 2 * (m - 8) + 1)
def kgen_valu(plain_tail):
    L = []
    A_, B_, BR, BI, CR, CI, LD, T0, T1, T2 = [KB + i for i in range(10)]
    W, E1, E2, E4, E8, E128, E256, E512, P, X0, X1, R0, R1, RB, Y0, Z0 = [KB + 10 + 2 * i for i in range(16)]
    L.append("v_mul_f32 v%d, 0x3fb8aa3b, v%d" % (T0, LD))
    L.append("v_mov_b32 v%d, 0x3fb8aa3b" % T2)
    L.append("v_fma_f32 v%d, v%d, v%d, -v%d" % (T1, LD, T2, T0))
    L.append("v_fmac_f32 v%d, 0x32a57060, v%d" % (T1, LD))
    L.append("v_exp_f32 v%d, v%d" % (T0, T0))
    L.append("v_mul_f32 v%d, 0x3f317218, v%d" % (T1, T1))
    L.append("v_fmac_f32 v%d, v%d, v%d" % (T0, T0, T1))
    L.append("v_cvt_pk_bf16_f32 v%d, v%d, v%d" % (T0, T0, T0))
    L.append("v_and_b32 v%d, 0xffff0000, v%d" % (T0, T0))
    for r in (A_, B_, BR, BI):
        L.append("v_mul_f32 v%d, v%d, v%d" % (r, T0, r))
    L.append("v_mul_f32 v%d, 0x3fb8aa3b, v%d" % (A_, A_))
    L.append("v_mul_f32 v%d, 0.15915494, v%d" % (B_, B_))
    o1 = ["v_exp_f32 v%d, v%d" % (T0, A_), "v_fract_f32 v%d, v%d" % (T1, B_),
          "v_cos_f32 v%d, v%d" % (E1, T1), "v_sin_f32 v%d, v%d" % (E1 + 1, T1),
          "v_mul_f32 v%d, v%d, v%d" % (E1, T0, E1), "v_mul_f32 v%d, v%d, v%d" % (E1 + 1, T0, E1 + 1)]
    o2 = ["v_mul_f32 v%d, 0x43000000, v%d" % (T2, A_), "v_mul_f32 v%d, 0x43000000, v%d" % (LD, B_),
          "v_exp_f32 v%d, v%d" % (T2, T2), "v_fract_f32 v%d, v%d" % (LD, LD),
          "v_cos_f32 v%d, v%d" % (E128, LD), "v_sin_f32 v%d, v%d" % (E128 + 1, LD),
          "v_mul_f32 v%d, v%d, v%d" % (E128, T2, E128), "v_mul_f32 v%d, v%d, v%d" % (E128 + 1, T2, E128 + 1)]
    L += il(o2, o1 + cmul(W, CR, BR, False))
    L += il(cmul(E2, E1, E1, False) + cmul(E4, E2, E2, False) + cmul(E8, E4, E4, False),
            cmul(E256, E128, E128, False) + cmul(E512, E256, E256, False))
    L.append("v_cndmask_b32 v%d, v%d, v%d, s[14:15]" % (P, E1, E2))
    L.append("v_cndmask_b32 v%d, v%d, v%d, s[14:15]" % (P + 1, E1 + 1, E2 + 1))
    L.append("v_cndmask_b32 v%d, 1.0, v%d, s[14:15]" % (X0, E128))
    L.append("v_cndmask_b32 v%d, 0, v%d, s[14:15]" % (X0 + 1, E128 + 1))
    L.append("v_cndmask_b32 v%d, 1.0, v%d, s[14:15]" % (E256, E256))
    L.append("v_cndmask_b32 v%d, 0, v%d, s[14:15]" % (E256 + 1, E256 + 1))
    L += cmul(RB, W, E256, False)
    rows = [(None, RB, None)]
    cur = RB
    for j in range(1, 8):
        d = R0 if j % 2 else R1
        rows.append((d, cur, P)); cur = d
    Z2 = Y0
    rows += [(Y0, RB, E512), (R1, Y0, E4), (R0, Y0, E8), (Z0, Y0, E512), (R1, Z0, E8), (Z2, Z0, E512), (R0, Z2, E8)]
    cols = [(None, X0, None)]
    cur = X0
    for j in range(1, 16):
        d = X1 if j % 2 else X0
        cols.append((d, cur, E8)); cur = d
    LC, LR = [], []
    for j, (d, s, m) in enumerate(cols):
        if d is not None: LC += cmul(d, s, m, plain_tail)
        x = d if d is not None else s
        LC.append("v_cvt_pk_bf16_f32 v%d, v%d, v%d" % (KP + j, x, x + 1))
    for j, (d, s, m) in enumerate(rows):
        if d is not None: LR += cmul(d, s, m, plain_tail)
        x = d if d is not None else s
        LR.append("v_cvt_pk_bf16_f32 v%d, v%d, -v%d" % (KP + rowpos(j), x, x + 1))
    return L, il(LC, LR)
def kgen_writes():
    return ["ds_write_addtid_b32 v%d offset:%d" % (KP + j, L_TAB + j * TP) for j in range(31)]

def later_addrs(T0, T1, T2):
    a("s_lshr_b32 s10, s3, 1")
    a("s_mul_i32 s10, s10, %d", TPIECE)
    a("s_and_b32 s11, s3, 1")
    a("s_lshl_b32 s11, s11, 8")
    a("s_add_u32 s%d, s10, s11", S_TM0)
    a("s_add_u32 s10, s10, %d", L_TAB)
    a("v_bfe_u32 v%d, v1, 4, 1", T1)
    a("v_lshlrev_b32 v%d, 8, v%d", T1, T1)
    a("v_lshrrev_b32 v%d, 5, v1", T2)
    a("v_lshl_add_u32 v%d, v%d, 7, v%d", T1, T2, T1)
    a("v_and_b32 v%d, 15, v1", T0)
    a("v_mul_u32_u24 v%d, %d, v%d", T2, TP, T0)
    a("v_add3_u32 v%d, v%d, v%d, s10", KBa, T2, T1)
    def lut(v): return sum(x << (4 * i) for i, x in enumerate(v))
    m0 = [0, 1, 2, 3] + [0, 0, 1, 2] + [2, 2, 3, 4] + [4, 5, 6, 7]; h0 = 0x0ff0
    m1 = [8, 9, 10, 10] + [8, 9, 10, 10] + [11, 12, 13, 14] + [11, 12, 13, 14]; h1 = 0xf0f0
    p0 = [rowpos(m) - 16 for m in m0]; p1 = [rowpos(m) - 16 for m in m1]
    a("s_bitcmp1_b32 s3, 0")
    a("s_mov_b32 s11, 0x%x", lut(p0[:8]))
    a("s_cmov_b32 s11, 0x%x", lut(p1[:8]))
    a("s_mov_b32 s12, 0x%x", lut(p0[8:]))
    a("s_cmov_b32 s12, 0x%x", lut(p1[8:]))
    a("s_mov_b32 s13, 0x%x", h0)
    a("s_cmov_b32 s13, 0x%x", h1)
    a("v_cmp_lt_u32 vcc, 7, v%d", T0)
    a("v_mov_b32 v%d, s11", KA)
    a("v_mov_b32 v%d, s12", T2)
    a("v_cndmask_b32 v%d, v%d, v%d, vcc", KA, KA, T2)
    a("v_and_b32 v%d, 7, v1", T2)
    a("v_lshlrev_b32 v%d, 2, v%d", T2, T2)
    a("v_bfe_u32 v%d, v%d, v%d, 4", KA, KA, T2)
    a("v_bfe_u32 v%d, s13, v%d, 1", T2, T0)
    a("v_mad_u32_u24 v%d, v%d, 31, v%d", KA, T2, KA)
    a("v_mul_u32_u24 v%d, %d, v%d", KA, TP, KA)
    a("s_lshr_b32 s10, s3, 2")
    a("s_mul_i32 s11, s10, %d", 2 * TPIECE)
    a("s_add_u32 s11, s11, %d", L_TAB + 16 * TP)
    a("v_add3_u32 v%d, v%d, v%d, s11", KA, KA, T1)
    a("s_mul_i32 s10, s10, %d", KCH)
    a("s_and_b32 s11, s3, 2")
    a("s_lshl_b32 s11, s11, 7")
    a("s_add_u32 s10, s10, s11")
    a("s_add_u32 s10, s10, %d", L_K + 64)
    a("s_bitcmp1_b32 s3, 0")
    a("s_mov_b32 s11, 0x%x", 0 | (64 << 8) | (65 << 16) | (1 << 24))
    a("s_cmov_b32 s11, 0x%x", 0 | (64 << 8) | (128 << 16) | (192 << 24))
    a("s_cselect_b32 s12, 1024, 0")
    a("s_add_u32 s10, s10, s12")
    a("v_lshrrev_b32 v%d, 4, v1", T1)
    a("v_lshlrev_b32 v%d, 3, v%d", T1, T1)
    a("v_bfe_u32 v%d, s11, v%d, 8", T1, T1)
    a("v_lshlrev_b32 v%d, 4, v%d", T0, T0)
    a("v_lshl_add_u32 v%d, v%d, 3, v%d", T0, T1, T0)
    a("v_add_u32 v%d, s10, v%d", KW, T0)
def later_addrs2(T0, T1, T2):
    a("s_bfe_u32 s10, s3, 0x10001")
    a("v_lshrrev_b32 v%d, 5, v1", T0)
    a("v_lshlrev_b32 v%d, 6, v%d", PVA, T0)
    a("v_and_b32 v%d, 31, v1", T1)
    a("v_lshlrev_b32 v%d, 4, v%d", PVB, T1)
    a("v_sub_u32 v%d, v%d, v%d", PVB, PVB, PVA)
    a("v_and_b32 v%d, 1, v1", T2)
    a("v_lshl_add_u32 v%d, v%d, 5, v%d", PVA, T2, PVA)
    a("v_lshrrev_b32 v%d, 2, v%d", T1, T1)
    a("v_lshl_add_u32 v%d, v%d, 1, v%d", T1, T1, T0)
    a("v_lshlrev_b32 v%d, 5, v%d", PVY, T1)
    a("v_lshl_add_u32 v%d, v%d, 4, v%d", PVY, T2, PVY)
    a("s_mul_i32 s11, s10, %d", CYCH)
    a("s_add_u32 s11, s11, %d", L_CY)
    a("v_lshl_add_u32 v%d, v%d, 4, s11", PVC, T1)
    a("v_bfe_u32 v%d, v1, 4, 1", T2)
    a("v_lshl_add_u32 v%d, v%d, 4, v%d", PVA, T2, PVA)
    a("v_bfe_u32 v%d, v1, 1, 1", T2)
    a("v_lshl_add_u32 v%d, v%d, 3, v%d", PVA, T2, PVA)
    a("v_bfe_u32 v%d, v1, 2, 2", T2)
    a("v_lshlrev_b32 v%d, 3, v%d", T2, T2)
    a("v_sub_u32 v%d, v%d, v%d", PVA, PVA, T2)
    a("s_mul_i32 s11, s10, %d", KCH)
    a("s_add_u32 s11, s11, %d", L_K + 32)
    a("v_add_u32 v%d, s11, v%d", PVA, PVA)
    a("s_mul_i32 s11, s10, %d", UCH)
    a("s_add_u32 s11, s11, %d", L_U + 512 - 384)
    a("v_add_u32 v%d, s11, v%d", PVB, PVB)
    a("s_lshl_b32 s11, s2, 1")
    a("s_add_u32 s11, s11, s10")
    a("s_lshl_b32 s11, s11, 12")
    a("s_add_u32 s%d, s11, %d", S_YB, WS_Y)
    a("s_lshl_b32 s%d, s4, 2", S_TB)
    a("s_and_b32 s10, s5, 3")
    a("s_add_u32 s%d, s%d, s10", S_TB, S_TB)
    a("s_lshr_b32 s%d, s5, 2", S_DB)
    a("s_lshr_b32 s%d, s3, 2", S_KH)
    a("s_and_b32 s%d, s3, 3", S_TQ)
    a("s_lshl_b32 s10, s%d, 1", S_TB)
    a("s_and_b32 s13, s3, 1")
    a("s_add_u32 s10, s10, s13")
    a("s_mul_i32 s11, s10, 112")
    a("s_lshr_b32 s12, s3, 1")
    a("s_mul_i32 s%d, s12, %d", S_W0S, 448 * 1024)
    a("s_lshl_b32 s13, s13, 15")
    a("s_add_u32 s%d, s%d, s13", S_W0S, S_W0S)
    a("s_mul_i32 s13, s12, 28")
    a("s_add_u32 s11, s11, s13")
    a("s_lshl_b32 s%d, s11, 10", S_HB)
    a("s_lshl_b32 s%d, s10, 7", S_GOFF)
    a("s_add_u32 s%d, s%d, %d", S_GOFF, S_GOFF, WS_G)
    a("s_lshl_b32 s10, s10, 15")
    a("s_lshl_b32 s11, s%d, 7", S_DB)
    a("s_lshl_b32 s12, s12, 5")
    a("s_add_u32 s%d, s11, s12", S_DOFF)
    a("s_add_u32 s%d, s10, s%d", S_OB, S_DOFF)
    a("s_mul_i32 s%d, s%d, %d", S_WSO, S_TQ, 448 * 1024)
    a("s_lshl_b32 s%d, s%d, 13", S_WLD, S_TQ)
    seq = [i % 7 for i in range(16)]
    val = sum(x << (4 * i) for i, x in enumerate(seq))
    a("s_mov_b32 s44, 0x%x", val & 0xffffffff)
    a("s_mov_b32 s45, 0x%x", val >> 32)
    if opt("rot", 2) == 1:
        a("s_lshl_b32 s10, s%d, 2", S_DB)
        a("s_lshr_b64 s[44:45], s[44:45], s10")
    if opt("rot", 2) == 3:
        a("s_and_b32 s10, s5, 1")
        a("s_lshl_b32 s10, s10, 4")
        a("s_lshr_b64 s[44:45], s[44:45], s10")
    if opt("rot", 2) == 2:
        a("s_and_b32 s10, s5, 3")
        a("s_lshl_b32 s10, s10, 3")
        a("s_lshr_b64 s[44:45], s[44:45], s10")
    for rd in range(7):
        a("s_bfe_u32 s10, s44, 0x%x", (3 << 16) | (4 * rd))
        a("s_lshl_b32 s%d, s10, 12", S_RT + rd)
    a("v_lshlrev_b32 v%d, 4, v1", VH)
    a("v_lshrrev_b32 v%d, 3, v1", T0)
    a("v_lshlrev_b32 v%d, 10, v%d", T0, T0)
    a("v_bfe_u32 v%d, v1, 4, 1", T1)
    a("v_lshlrev_b32 v%d, 2, v%d", T1, T1)
    a("v_and_b32 v%d, 7, v1", T2)
    a("v_xor_b32 v%d, v%d, v%d", T2, T2, T1)
    a("v_lshl_add_u32 v%d, v%d, 4, v%d", T0, T2, T0)
    a("v_add_u32 v%d, s11, v%d", VWD, T0)
    a("v_lshrrev_b32 v%d, 5, v1", T0)
    a("v_bfe_u32 v%d, v1, 2, 2", T1)
    a("v_lshl_add_u32 v%d, v%d, 2, v%d", T0, T0, T1)
    a("v_lshlrev_b32 v%d, 7, v%d", T0, T0)
    a("v_bfe_u32 v%d, v1, 3, 1", T1)
    a("v_lshl_add_u32 v%d, v%d, 6, v%d", T0, T1, T0)
    a("v_bfe_u32 v%d, v1, 4, 1", T1)
    a("v_lshl_add_u32 v%d, v%d, 5, v%d", T0, T1, T0)
    a("v_and_b32 v%d, 1, v1", T1)
    a("v_lshl_add_u32 v%d, v%d, 4, v%d", T0, T1, T0)
    a("v_bfe_u32 v%d, v1, 1, 1", T1)
    a("v_lshl_add_u32 v%d, v%d, 3, v%d", T0, T1, T0)
    a("v_xor_b32 v%d, s12, v%d", T0, T0)
    a("s_lshl_b32 s12, s12, 8")
    a("v_add_u32 v%d, s12, v%d", VR0, T0)
    a("s_lshl_b32 s10, s3, 2")
    a("s_add_u32 s10, s10, %d", L_SY)
    a("v_mov_b32 v%d, s10", VSY)

def kreads():
    L = []
    for ks in range(8):
        L.append(("ds_read_b128 %s, v%d offset:%d" % (vr(KF + 8 * ks, 4), KA, ks * 16), ("k", ks)))
        L.append(("ds_read_b128 %s, v%d offset:%d" % (vr(KF + 8 * ks + 4, 4), KBa, ks * 16), ("k", ks)))
    return L
def run_kmfma(lg, fill, per):
    for ks in range(8):
        lg.need([("k", ks)])
        d = vr(KD, 4)
        a("v_mfma_f32_16x16x32_bf16 %s, %s, %s, %s", d, vr(KF + 8 * ks, 4), vr(KF + 8 * ks + 4, 4), d if ks else "0")
        for _ in range(per):
            if fill: lg.run(fill.pop(0))
    for f in fill: lg.run(f)
def kmfma_finish():
    lb = a.label("Lkm1"); le = a.label("Lkme")
    T = KF
    a("s_bitcmp1_b32 s3, 0")
    a("s_cbranch_scc1 %s", lb)
    a("v_cvt_pk_bf16_f32 v%d, v%d, v%d", T, KD, KD + 1)
    a("v_cvt_pk_bf16_f32 v%d, v%d, v%d", T + 1, KD + 2, KD + 3)
    a("ds_write_b64 v%d, %s", KW, vr(T, 2))
    a("s_branch %s", le)
    a(lb + ":")
    a("s_nop 7")
    a("s_mov_b32 s10, 0xaaaaaaaa")
    a("s_mov_b32 s11, 0xaaaaaaaa")
    a("v_cndmask_b32 v%d, v%d, v%d, s[10:11]", T + 12, KD, KD + 1)
    a("v_cndmask_b32 v%d, v%d, v%d, s[10:11]", T + 13, KD + 2, KD + 3)
    a("v_cvt_pk_bf16_f32 v%d, v%d, v%d", T, KD, KD)
    a("v_cvt_pk_bf16_f32 v%d, v%d, v%d", T + 1, KD, KD)
    a("v_cvt_pk_bf16_f32 v%d, v%d, v%d", T + 2, T + 12, KD + 1)
    a("v_cvt_pk_bf16_f32 v%d, v%d, v%d", T + 3, KD + 1, KD + 1)
    a("v_cvt_pk_bf16_f32 v%d, v%d, v%d", T + 4, KD + 2, KD + 2)
    a("v_cvt_pk_bf16_f32 v%d, v%d, v%d", T + 5, KD + 2, KD + 2)
    a("v_cvt_pk_bf16_f32 v%d, v%d, v%d", T + 6, T + 13, KD + 3)
    a("v_cvt_pk_bf16_f32 v%d, v%d, v%d", T + 7, KD + 3, KD + 3)
    a("s_mov_b64 exec, 0xffffffff")
    a("v_cvt_pk_bf16_f32 v%d, v%d, v%d", T + 1, KD, KD + 1)
    a("v_mov_b32 v%d, v%d", T + 2, T + 3)
    a("v_mov_b32 v%d, v%d", T + 3, T + 4)
    a("s_not_b64 exec, exec")
    a("ds_write_b128 v%d, %s offset:1024", KW, vr(T + 4, 4))
    a("s_mov_b64 exec, -1")
    a("ds_write_b128 v%d, %s", KW, vr(T, 4))
    a(le + ":")

def zero_pads_k():
    T = KF + 16
    for i in range(4): a("v_mov_b32 v%d, 0", T + i)
    a("v_and_b32 v%d, 7, v1", T + 4)
    a("v_lshlrev_b32 v%d, 4, v%d", T + 4, T + 4)
    a("v_add_u32 v%d, %d, v%d", T + 4, L_SY, T + 4)
    for i, ad in enumerate([L_K + 16 * j for j in range(4)] + [L_K + KCH + 16 * j for j in range(4)] + [L_CY, L_CY + CYCH]):
        a("s_mov_b32 s10, %d", ad)
        a("v_writelane_b32 v%d, s10, %d", T + 4, 8 + i)
    a("ds_write_b128 v%d, %s", T + 4, vr(T, 4))
def zero_pads_u():
    T = KD
    for i in range(4): a("v_mov_b32 v%d, 0", T + i)
    a("v_and_b32 v%d, 31, v1", 235)
    a("v_lshlrev_b32 v%d, 4, v%d", 235, 235)
    a("v_lshrrev_b32 v%d, 5, v1", 234)
    a("v_mad_u32_u24 v%d, v%d, %s, v%d", 235, 234, "v233", 235) if False else None
    a("v_mul_u32_u24 v%d, %d, v%d", 234, UCH, 234)
    a("v_add_u32 v%d, v%d, v%d", 235, 235, 234)
    a("ds_write_b128 v%d, %s offset:%d", 235, vr(T, 4), L_U)
VUL2 = 156
def u_load():
    a("v_lshlrev_b32 v%d, 5, v1", VUL + 4)
    a("s_lshl_b32 s10, s2, 13")
    a("s_lshl_b32 s11, s%d, 11", S_TQ)
    a("s_add_u32 s10, s10, s11")
    a("s_add_u32 s10, s10, %d", WS_UT)
    a("buffer_load_dwordx4 %s, v%d, %s, s10 offen sc1", vr(VUL, 4), VUL + 4, sr(SWS, 4))
    a("buffer_load_dwordx4 %s, v%d, %s, s10 offen offset:16 sc1", vr(VUL2, 4), VUL + 4, sr(SWS, 4))
def u_write():
    a("s_lshl_b32 s11, s%d, 10", S_TQ)
    a("v_add_u32 v%d, s11, v%d", VUL + 4, VH)
    a("ds_write_b128 v%d, %s offset:%d", VUL + 4, vr(VUL, 4), L_U + 512)
    a("ds_write_b128 v%d, %s offset:%d", VUL + 4, vr(VUL2, 4), L_U + UCH + 512)
def onwave(w, fn):
    lb = a.label("Low")
    a("s_cmp_lg_u32 s3, %d", w)
    a("s_cbranch_scc1 %s", lb)
    fn()
    a(lb + ":")
def role(lo, hi):
    l1 = a.label("Lr1"); l2 = a.label("Lr2")
    a("s_cmp_ge_u32 s3, 4")
    a("s_cbranch_scc1 %s", l1)
    if lo is None:
        a.lines[-1] = a.lines[-1].replace("scc1", "scc0")
        hi()
        a(l1 + ":")
        return
    if lo: lo()
    if hi:
        a("s_branch %s", l2)
        a(l1 + ":")
        hi()
        a(l2 + ":")
    else:
        a(l1 + ":")

def nonce_issue():
    a("global_load_dwordx2 %s, v%d, %s sc1", vr(VN, 2), VZ, sr(P_DBG, 2))
slow = []
def nonce_check():
    ok = a.label("Lnok"); lp = a.label("Lnlp")
    a(ok + "r:")
    a("v_readfirstlane_b32 s10, v%d", VN + 1)
    a("v_readfirstlane_b32 s%d, v%d", S_NONCE, VN)
    a("s_cmp_lg_u32 s10, 1")
    a("s_cbranch_scc1 %s", lp)
    a(ok + ":")
    def sp():
        a(lp + ":")
        a("s_add_u32 s%d, s%d, 1", S_SPIN, S_SPIN)
        a("s_cmp_ge_u32 s%d, %d", S_SPIN, SPINMAX)
        a("s_cbranch_scc1 %s", ok)
        a("s_sleep 2")
        a("global_load_dwordx2 %s, v%d, %s sc1", vr(VN, 2), VZ, sr(P_DBG, 2))
        a("s_waitcnt vmcnt(0)")
        a("s_branch %sr", ok)
    slow.append(sp)
def poll_issue(n):
    a("v_min_u32 v%d, %d, v1", VN + 2, n - 1)
    a("v_lshlrev_b32 v%d, 2, v%d", VN + 2, VN + 2)
    a("buffer_load_dword v%d, v%d, %s, s%d offen sc1", VN - 1, VN + 2, sr(SWS, 4), S_PB)
def poll_check(sleep=2):
    ok = a.label("Lpok"); lp = a.label("Lplp")
    a(ok + "r:")
    a("v_cmp_ne_u32 vcc, s%d, v%d", S_NONCE, VN - 1)
    a("s_cmp_lg_u64 vcc, 0")
    a("s_cbranch_scc1 %s", lp)
    a(ok + ":")
    def sp():
        a(lp + ":")
        a("s_add_u32 s%d, s%d, 1", S_SPIN, S_SPIN)
        a("s_cmp_ge_u32 s%d, %d", S_SPIN, SPINMAX)
        a("s_cbranch_scc1 %s", ok)
        if sleep: a("s_sleep %d", sleep)
        a("buffer_load_dword v%d, v%d, %s, s%d offen sc1", VN - 1, VN + 2, sr(SWS, 4), S_PB)
        a("s_waitcnt vmcnt(0)")
        a("s_branch %sr", ok)
    slow.append(sp)
def flag_store(sbase):
    a("v_mov_b32 v%d, 0", VN)
    a("v_mov_b32 v%d, s%d", VN + 1, S_NONCE)
    a("s_mov_b64 exec, 1")
    a("buffer_store_dword v%d, v%d, %s, %s offen sc1", VN + 1, VN, sr(SWS, 4), sbase)
    a("s_mov_b64 exec, -1")
def lds_wait(vaddr, off, vtmp, sleep=1):
    lp = a.label("Llw"); ok = a.label("Llok")
    a(lp + ":")
    a("ds_read_b32 v%d, v%d offset:%d", vtmp, vaddr, off)
    a("s_add_u32 s%d, s%d, 1", S_SPIN, S_SPIN)
    a("s_waitcnt lgkmcnt(0)")
    a("v_cmp_eq_u32 vcc, 0, v%d", vtmp)
    a("s_cmp_eq_u64 vcc, 0")
    a("s_cbranch_scc1 %s", ok)
    a("s_sleep %d", sleep)
    a("s_cmp_lt_u32 s%d, %d", S_SPIN, SPINMAX * 16)
    a("s_cbranch_scc1 %s", lp)
    a(ok + ":")

a("s_cmp_ge_u32 s2, 256")
a("s_cbranch_scc1 L_end")
if STAMP:
    a("s_memrealtime s[96:97]")
    a("s_memtime s[98:99]")
a("s_load_dwordx16 s[16:31], s[0:1], 0")
a("s_load_dwordx16 s[32:47], s[0:1], 64")
a("s_load_dwordx2 s[48:49], s[0:1], 128")
a("v_lshrrev_b32 v2, 6, v0")
a("s_lshr_b32 s5, s2, 3")
if opt("cpf", 1):
    a("s_getpc_b64 s[10:11]")
    a("L_pc:")
    a("s_lshl_b32 s12, s5, 10")
    a("v_lshl_add_u32 v3, v2, 7, s12")
    a("v_and_b32 v4, 1, v0")
    a("v_lshl_add_u32 v3, v4, 6, v3")
    a("v_min_u32 v3, L_end-L_pc, v3")
    a("global_load_dword v19, v3, s[10:11]")
a("v_and_b32 v1, 63, v0")
a("v_readfirstlane_b32 s3, v2")
a("s_and_b32 s4, s2, 7")
kgen_setup()
PRE_WAIT = opt("prewait", 0)
if not PRE_WAIT:
    a("s_waitcnt lgkmcnt(0)")
    kgen_loads()
a("s_mov_b32 s%d, 0", S_SPIN)
a("v_mov_b32 v%d, 0", VZ)
a("v_mov_b32 v%d, 0", VN + 2)
if STAMP: a("v_mov_b32 v255, 0")
a("s_lshr_b32 s6, s4, 1")
a("s_lshl_b32 s6, s6, 2")
a("s_and_b32 s7, s5, 3")
a("s_add_u32 s6, s6, s7")
a("s_and_b32 s7, s4, 1")
a("s_mul_i32 s7, s7, 7")
a("s_lshr_b32 s8, s5, 2")
a("s_add_u32 s7, s7, s8")
a("s_sub_u32 s7, s7, 1")
a("s_and_b32 s8, s3, 1")
a("s_lshr_b32 s9, s3, 1")
VX0, VX1, VW0, VW1 = 4, 5, 6, 7
VXR = 8
VWA, VWB = 12, 13
T0, T1, T2, T3 = 14, 15, 16, 17
a("s_lshl_b32 s10, s6, 7")
a("s_lshl_b32 s11, s3, 4")
a("s_add_u32 s10, s10, s11")
a("s_lshl_b32 s10, s10, 10")
a("v_lshrrev_b32 v%d, 3, v1", T0)
a("v_lshlrev_b32 v%d, 10, v%d", T0, T0)
a("v_lshrrev_b32 v%d, 4, v1", T1)
a("v_and_b32 v%d, 7, v1", T2)
a("v_xor_b32 v%d, v%d, v%d", T2, T2, T1)
a("v_lshl_add_u32 v%d, v%d, 4, v%d", T0, T2, T0)
a("v_add_u32 v%d, s10, v%d", VX0, T0)
a("v_xor_b32 v%d, 64, v%d", VX1, VX0)
a("v_add_u32 v%d, 0x2000, v%d", VX1, VX1)
a("s_and_b32 s12, s3, 3")
a("s_mul_i32 s10, s12, %d", 4 * 3584)
a("s_lshl_b32 s11, s7, 8")
a("s_add_u32 s10, s10, s11")
a("v_mul_u32_u24 v%d, 3584, v%d", T0, T1)
a("v_lshlrev_b32 v%d, 2, v%d", T2, T1)
a("v_and_b32 v%d, 15, v1", T3)
a("v_xor_b32 v%d, v%d, v%d", T2, T2, T3)
a("v_lshl_add_u32 v%d, v%d, 4, v%d", T0, T2, T0)
a("v_add_u32 v%d, s10, v%d", VW0, T0)
S_RO, S_LO = 60, 80
S_LO = 20
for j in range(4):
    a("s_add_u32 s10, s5, %d", j if opt("share", 1) else 0) if opt("share", 1) else a("s_mov_b32 s10, %d", j)
    a("s_and_b32 s10, s10, 3")
    a("s_mul_i32 s%d, s10, %d", S_RO + j, 16 * 3584)
a("s_lshl_b32 s%d, s3, 11", S_W2K)
CC = opt("cc", 8)
S_KO = 99 if not STAMP else 93
if CC < 8:
    NR = 8 - CC
    a("s_and_b32 s10, s5, 3")
    a("s_mul_i32 s10, s10, %d", opt("rm", 2))
    a("s_lshr_b32 s11, s5, 2")
    a("s_add_u32 s10, s10, s11")
    a("s_mul_i32 s11, s10, %d", (65536 + NR - 1) // NR)
    a("s_lshr_b32 s11, s11, 16")
    a("s_mul_i32 s11, s11, %d", NR)
    a("s_sub_u32 s10, s10, s11")
    seq = [CC + (i % NR) for i in range(16)]
    val = sum(x << (4 * i) for i, x in enumerate(seq))
    a("s_mov_b32 s12, 0x%x", val & 0xffffffff)
    a("s_mov_b32 s13, 0x%x", val >> 32)
    a("s_lshl_b32 s10, s10, 2")
    a("s_lshr_b64 s[12:13], s[12:13], s10")
    a("s_lshl_b32 s12, s12, %d", 4 * CC) if CC else None
    a("s_or_b32 s%d, s12, 0x%x", S_KO, sum(i << (4 * i) for i in range(CC)))
else:
    a("s_mov_b32 s%d, 0x76543210", S_KO)
a("s_and_b32 s10, s4, %d", opt("krot", 6))
a("s_mul_i32 s10, s10, 0x11111111")
a("s_add_u32 s%d, s%d, s10", S_KO, S_KO)
for r, n in ((SX, 2048 * 1024), (SG, 512 * 3584), (SWS, WS_BYTES), (SW, 1792 * 1024), (SO, 2048 * 1024)):
    a("s_mov_b32 s%d, 0x%x", r + 2, n)
    a("s_mov_b32 s%d, 0x20000", r + 3)
a("s_cmp_lt_u32 s5, 4")
a("s_cselect_b32 s%d, 1, 0", S_ISAUX)
if PRE_WAIT:
    a("s_waitcnt lgkmcnt(0)")
    kgen_loads()
def srd_base(r, p):
    a("s_mov_b32 s%d, s%d", r, p)
    a("s_and_b32 s%d, s%d, 0xffff", r + 1, p + 1)
srd_base(SX, P_U)
a("s_mov_b32 s%d, s%d", S_KR, S_KO)
a("s_cmp_lg_u32 s%d, 0", S_ISAUX)
a("s_cbranch_scc1 L_aux")

vm = []
def vmwait(tags):
    idx = [i for i, t in enumerate(vm) if t in tags]
    return len(vm) - 1 - max(idx)
def dma1(stage, j, m0r=None):
    slot = stage % 3
    if j == 0 or (j == 3 and stage < 2):
        a("s_bfe_u32 s%d, s%d, 0x%x", S_T, S_KR, (3 << 16) | (4 * stage))
        a("s_mul_i32 s%d, s%d, %d", S_T2, S_T, 64 * 3584)
        a("s_lshl_b32 s%d, s%d, 7", S_T, S_T)
    if j in (1, 2):
        a("s_add_u32 m0, s%d, %d", S_W2K, XB[slot] * BLK + (j - 1) * 1024)
        a("buffer_load_dwordx4 v%d, %s, s%d offen lds", VX0 + j - 1, sr(SX, 4), S_T)
    else:
        p = 0 if j == 0 else j - 2
        a("s_add_u32 m0, s%d, %d", S_LO + p, GB[slot] * BLK)
        a("s_add_u32 s%d, s%d, s%d", S_T3, S_T2, S_RO + p)
        a("buffer_load_dwordx4 v%d, %s, s%d offen lds", VW0, sr(SG, 4), S_T3)
    if m0r is not None: a("s_mov_b32 m0, s%d", m0r)
    vm.append(("G1", stage))
S_T3 = 24
vm += [("KP", 0)] * 7
a("s_cmp_ge_u32 s3, 4")
a("s_cselect_b32 s%d, s%d, s%d", SG, P_WU, P_WG)
a("s_cselect_b32 s%d, s%d, s%d", SG + 1, P_WU + 1, P_WG + 1)
a("s_and_b32 s%d, s%d, 0xffff", SG + 1, SG + 1)
a("s_lshr_b32 s10, s3, 2")
a("s_lshl_b32 s10, s10, 14")
a("s_and_b32 s11, s3, 3")
a("s_lshl_b32 s11, s11, 10")
a("s_add_u32 s10, s10, s11")
for j in range(4):
    a("s_add_u32 s11, s5, %d", j) if opt("share", 1) else a("s_mov_b32 s11, %d", j)
    a("s_and_b32 s11, s11, 3")
    a("s_lshl_b32 s11, s11, 12")
    a("s_add_u32 s%d, s10, s11", S_LO + j)
    if j == 0: dma1(0, 0); dma1(0, 1); dma1(0, 2)
stamp(11)
def common_srds():
    srd_base(SWS, P_WS); srd_base(SW, P_WD); srd_base(SO, P_OUT)
later_addrs(T0, T1, T2)
for j in range(3): dma1(1, j)
def g1_read_addrs():
    a("v_and_b32 v%d, 31, v1", T0)
    a("v_lshrrev_b32 v%d, 5, v1", T1)
    a("v_bfe_u32 v%d, v1, 1, 3", T2)
    a("v_xor_b32 v%d, v%d, v%d", T2, T2, T1)
    a("v_lshlrev_b32 v%d, 7, v%d", T0, T0)
    a("v_lshl_add_u32 v%d, v%d, 4, v%d", T0, T2, T0)
    a("s_lshl_b32 s10, s8, 13")
    a("v_add_u32 v%d, s10, v%d", VXR, T0)
    for ks in range(1, 4): a("v_xor_b32 v%d, %d, v%d", VXR + ks, ks << 5, VXR)
    a("v_bfe_u32 v%d, v1, 2, 2", T0)
    a("v_lshl_add_u32 v%d, v%d, 3, v%d", T2, T1, T0)
    a("v_lshlrev_b32 v%d, 8, v%d", T2, T2)
    a("v_xor_b32 v%d, s9, v%d", T0, T0)
    a("v_lshl_add_u32 v%d, v%d, 6, v%d", T2, T0, T2)
    a("v_bfe_u32 v%d, v1, 4, 1", T0)
    a("v_lshl_add_u32 v%d, v%d, 5, v%d", T2, T0, T2)
    a("v_and_b32 v%d, 3, v1", T0)
    a("v_lshl_add_u32 v%d, v%d, 3, v%d", T2, T0, T2)
    a("v_add_u32 v%d, %d, v%d", VWA, 4 * BLK, T2)
    a("v_add_u32 v%d, %d, v%d", VWB, 8 * BLK, T2)
def mall_prefetch():
    a("s_sub_u32 s25, s5, 4")
    a("s_lshl_b32 s25, s25, 3")
    a("s_add_u32 s25, s25, s3")
    a("s_mul_i32 s26, s4, 224")
    a("s_add_u32 s25, s25, s26")
    a("s_lshl_b32 s25, s25, 10")
    a("v_lshlrev_b32 v18, 4, v1")
    a("buffer_load_dwordx4 v[52:55], v18, %s, s25 offen", sr(SW, 4))
    vm.append(("MPF", 0))
def late_setup():
    common_srds()
    a("s_lshl_b32 s10, s6, 2")
    a("s_lshl_b32 s11, s8, 1")
    a("s_add_u32 s10, s10, s11")
    a("s_mul_i32 s10, s10, 112")
    a("s_lshl_b32 s11, s7, 3")
    a("s_add_u32 s10, s10, s11")
    a("s_lshl_b32 s11, s9, 1")
    a("s_add_u32 s10, s10, s11")
    a("s_lshl_b32 s%d, s10, 10", S_HST)
    a("s_lshl_b32 s10, s6, 7")
    a("s_lshl_b32 s11, s7, 2")
    a("s_add_u32 s10, s10, s11")
    a("s_add_u32 s%d, s10, %d", S_FH, F_H)
    later_addrs2(T0, T1, T2)
FR = 20
ACC = 84
def reads1(step):
    st, ks = step // 4, step % 4
    slot = st % 3
    f = FR + (step % 2) * 16
    def xr(tt): return ("ds_read_b128 %s, v%d offset:%d" % (vr(f + 4 * tt, 4), VXR + ks, XB[slot] * BLK + tt * 4096), (step, "x", tt))
    def wr(gu, hf):
        blk = GB[slot] + gu
        reg, rel = (VWA, blk - 4) if blk < 8 else (VWB, blk - 8)
        return ("ds_read_b64_tr_b16 %s, v%d offset:%d" % (vr(f + 8 + 4 * gu + 2 * hf, 2), reg, rel * BLK + ks * 4096 + hf * 1024), (step, "w", gu))
    return [xr(0), wr(0, 0), wr(0, 1), wr(1, 0), wr(1, 1), xr(1)]
def kgen_all(dmas):
    khead, ktail = kgen_valu(False)
    for i in khead: a(i)
    if opt("diag1", 0): stamp(7, True)
    a("s_mov_b32 m0, s%d", S_TM0)
    wr = {w_.split()[1]: w_ for w_ in kgen_writes()}
    q = []
    n = len(ktail); k = 0
    for n_, i in enumerate(ktail):
        a(i)
        if q and n_ % 1 == 0 and len(q) > 1: a(q.pop(0))
        if i.startswith("v_cvt"): q.append(wr[i.split()[1].rstrip(",")])
        if dmas and n_ >= opt("d1start", 40) and (n_ - opt("d1start", 40)) % opt("d1step", 20) == 0: dmas.pop(0)()
    for w_ in q: a(w_)
    for d in dmas: d()
def touch(stage):
    a("s_bfe_u32 s10, s%d, 0x%x", S_KR, (3 << 16) | (4 * stage))
    a("s_mul_i32 s10, s10, %d", 64 * 3584)
    a("s_add_u32 s10, s10, s%d", S_RO)
    a("buffer_load_dwordx4 v[52:55], v%d, %s, s10 offen", VW0, sr(SG, 4))
    vm.append(("T", 0))
NT = opt("ntouch", 0)
a("s_waitcnt vmcnt(%d)", vmwait([("KP", 0)]))
stamp(0)
TP0 = opt("tpos", 0)
if TP0 == 0:
    for t_ in range(NT): touch(2 + t_)
kgen_all([(lambda j=j: dma1(0, j, S_TM0)) for j in range(3, 6)])
stamp(14)
a("s_waitcnt lgkmcnt(0)")
a("s_barrier")
stamp(12)
lg = Lg()
for r in kreads(): lg.issue(*r)
g1_read_addrs()
run_kmfma(lg, [], 0)
if opt("diag1", 0): stamp(4, True)
for j in range(3, 6): dma1(1, j)
if opt("diag1", 0): stamp(5, True)
if TP0 == 1:
    for t_ in range(NT): touch(2 + t_)
a("s_waitcnt vmcnt(%d)", vmwait([("G1", 0)]))
if opt("diag1", 0): stamp(6, True)
a("s_barrier")
stamp(1)
lg = Lg()
for r in reads1(0): lg.issue(*r)
kv = a.capture(late_setup) + a.capture(zero_pads_k)
pend = {}
def at(g, item): pend.setdefault(g, []).append(item)
for j in range(6): at([0, 2, 4, 6, 8, 10][j], lambda j=j: dma1(2, j))
class Raw:
    def __init__(self, f): self.f = f
at(1, Raw(kmfma_finish))

DG = [0, 3, 5, 8, 10, 13]
DGF = [0, 1, 2, 3, 4, 5]
NFAST = opt('nfast', 0)
KVG = opt("kvg", 3)
WST = 144
WSTO = {5: 0, 4: 32, 6: 64}
W4T = opt("w4t", 1)
def stage_w(rd, i0=0, n=8):
    a("s_lshl_b32 s13, s%d, 4", S_RT + rd)
    a("s_add_u32 s13, s13, s%d", S_WSO)
    if i0: a("s_add_u32 s13, s13, %d", i0 * 8192)
    for i in range(i0, i0 + n):
        a("buffer_load_dwordx4 %s, v%d, %s, s13 offen", vr(WST + WSTO[rd] + 4 * i, 4), VWD, sr(SW, 4))
        if i < i0 + n - 1: a("s_add_u32 s13, s13, 8192")
def dma_w(rd, i):
    a("s_lshl_b32 s10, s3, 12")
    a("s_add_u32 m0, s10, %d", WB[rd] * BLK + i * 1024)
    a("s_lshl_b32 s10, s%d, 4", S_RT + rd)
    a("s_add_u32 s10, s10, s%d", S_W0S)
    a("s_add_u32 s10, s10, %d", i * 8192)
    a("buffer_load_dwordx4 v%d, %s, s10 offen lds", VWD, sr(SW, 4))
    vm.append(("W0", 0))
S_PFI = 101
def wd_prefetch(slot):
    if slot == 0:
        a("s_sub_u32 s%d, s5, 4", S_PFI)
        a("s_lshl_b32 s%d, s%d, 3", S_PFI, S_PFI)
        a("s_add_u32 s%d, s%d, s3", S_PFI, S_PFI)
    else:
        a("s_add_u32 s%d, s%d, 224", S_PFI, S_PFI)
    a("s_bfe_u32 s10, s%d, 0x20006", S_PFI)
    a("s_mul_i32 s10, s10, 448")
    a("s_lshr_b32 s11, s%d, 8", S_PFI)
    a("s_lshl_b32 s11, s11, 6")
    a("s_add_u32 s10, s10, s11")
    a("s_and_b32 s11, s%d, 63", S_PFI)
    a("s_add_u32 s10, s10, s11")
    a("s_lshl_b32 s10, s10, 10")
    a("buffer_load_dwordx4 v[52:55], v%d, %s, s10 offen", VH, sr(SW, 4))
    vm.append(("PF", 0))
PF = opt("pf", 0)
for step in range(32):
    st, ks = step // 4, step % 4
    f = FR + (step % 2) * 16
    nxt = reads1(step + 1) if step < 31 else []
    for i, (gu, tt) in enumerate([(0, 0), (1, 0), (0, 1), (1, 1)]):
        d = vr(ACC + (gu * 2 + tt) * 16, 16)
        lg.need([(step, "w", gu), (step, "x", tt)])
        a("v_mfma_f32_32x32x16_bf16 %s, %s, %s, %s", d, vr(f + 8 + 4 * gu, 4), vr(f + 4 * tt, 4), d if step else "0")
        for _ in range(4 if step == 31 else 2):
            if nxt: lg.issue(*nxt.pop(0))
        items = pend.pop(step * 4 + i, [])
        for p in items:
            if isinstance(p, Raw): p.f()
            else: lg.run(p)
        if not items:
            for _ in range(KVG + (1 if i >= 2 else 0)):
                if kv: lg.run(kv.pop(0))
    if ks == 2:
        assert not pend, (step, len(pend))
        g0 = (step + 1) * 4
        if st < 7:
            tags = [("G1", st + 1)]
            a("s_waitcnt vmcnt(%d) lgkmcnt(0)", vmwait(tags))
        else:
            def lo():
                a("s_waitcnt vmcnt(%d)", vmwait([("U", 0)]))
                u_write()
            role(lo, None)
            a("s_waitcnt lgkmcnt(0)")
        lg.drained()
        a("s_barrier")
        if opt("stg", 0) and st < 7: stamp([4, 5, 6, 7, 8, 10, 13][st], True)
        if st + 3 <= 7:
            for j in range(6): at(g0 + (DGF if st < NFAST else DG)[j], lambda j=j, s=st + 3: dma1(s, j))
        if st == opt("mpfst", 9): at(g0 + 15, mall_prefetch)
        if st == 5:
            assert not kv
            def f_():
                def p_():
                    a("s_mov_b32 s%d, %d", S_PB, F_A)
                    poll_issue(32)
                onwave(0, p_)
                nonce_issue(); vm.append(("X", 0))
            at(g0 + opt("pagap", 3), f_)
            for i_ in range(4): at(g0 + 5 + 2 * i_, lambda i_=i_: dma_w(0, i_))
            at(g0 + 1, zero_pads_u)
            def f_():
                a("s_waitcnt vmcnt(%d)", vmwait([("X", 0)]))
                nonce_check()
                onwave(0, lambda: poll_check(16))
            at(g0 + 15, f_)
        if st == 6:
            def f_():
                role(u_load, None)
                vm.append(("U", 0))
            at(g0, f_)
            for i_ in range(4): at(g0 + 1 + 2 * i_, lambda i_=i_: dma_w(1, i_))
            if W4T:
                for i_ in range(4): at(g0 + 9 + 2 * i_, lambda i_=i_: role(None, lambda: stage_w(4, 2 * i_, 2)))
        if st == 7:
            for i_ in range(4): at(g0 + i_, lambda i_=i_: dma_w(2, i_))
assert not pend, len(pend)
stamp(2)
for tt in range(2):
    g = ACC + tt * 16; u = ACC + (2 + tt) * 16
    for o in range(2):
        for q in range(8 * o, 8 * o + 8):
            a("v_mul_f32 v%d, v%d, v%d", g + q, g + q, u + q)
        dst = FR + 8 * tt + 4 * o
        for q in range(4):
            a("v_cvt_pk_bf16_f32 v%d, v%d, v%d", dst + q, g + 8 * o + 2 * q, g + 8 * o + 2 * q + 1)
        a("buffer_store_dwordx4 %s, v%d, %s, s%d offen offset:%d sc1", vr(dst, 4), VH, sr(SWS, 4), S_HST, 1024 * o)
    if tt == 0: a("s_add_u32 s%d, s%d, %d", S_HST, S_HST, 112 * 1024)
a("s_branch L_post")

a("L_aux:")
common_srds()
a("s_lshl_b32 s6, s4, 2")
a("s_add_u32 s6, s6, s5")
PITCH = 1040
LA = 6 * BLK - 1024
LGW = 0
a("v_lshlrev_b32 v4, 4, v1")
a("v_mov_b32 v10, 0")
a("s_mov_b32 s9, %d", F_E)
a("buffer_load_dword v12, v10, %s, s9 offen sc1", sr(SWS, 4))
a("s_lshl_b32 s7, s6, 16")
a("s_lshl_b32 s8, s3, 13")
a("s_add_u32 s7, s7, s8")
a("s_mul_i32 s8, s3, %d", 8 * PITCH)
for j in range(8):
    a("s_add_u32 m0, s8, %d", LA + j * PITCH)
    a("s_add_u32 s11, s7, %d", j * 1024)
    a("buffer_load_dwordx4 v4, %s, s11 offen lds", sr(SX, 4))
a("global_load_dwordx4 v[28:31], v4, %s", sr(P_GW, 2))
a("s_or_b32 s10, s2, s3")
a("s_cmp_lg_u32 s10, 0")
a("s_cbranch_scc1 L_nononce")
a("s_mov_b32 s10, 0x9e3779b1")
a("s_waitcnt vmcnt(9)")
a("v_mul_lo_u32 v12, v12, s10")
a("v_add_u32 v12, 0x7f4a7c15, v12")
a("v_mov_b32 v13, 1")
a("s_mov_b64 exec, 1")
a("global_store_dwordx2 v10, v[12:13], %s sc1", sr(P_DBG, 2))
a("buffer_store_dword v12, v10, %s, s9 offen sc1", sr(SWS, 4))
a("s_mov_b64 exec, -1")
a("L_nononce:")
a("v_and_b32 v5, 7, v0")
a("v_lshlrev_b32 v5, 4, v5")
a("v_lshrrev_b32 v6, 4, v1")
a("v_bfe_u32 v7, v1, 2, 2")
a("v_lshl_add_u32 v7, v7, 2, v6")
a("v_mul_u32_u24 v7, %d, v7", PITCH)
a("v_and_b32 v8, 3, v1")
a("v_lshl_add_u32 v7, v8, 3, v7")
a("s_and_b32 s9, s3, 1")
a("s_mul_i32 s10, s9, %d", 32 * PITCH)
a("s_lshr_b32 s11, s3, 1")
a("s_lshl_b32 s12, s11, 8")
a("s_add_u32 s10, s10, s12")
a("s_add_u32 s10, s10, %d", LA)
a("v_add_u32 v7, s10, v7")
a("v_bfe_u32 v8, v1, 1, 3")
a("v_lshlrev_b32 v8, 13, v8")
a("v_lshl_add_u32 v8, v6, 5, v8")
a("v_and_b32 v9, 1, v1")
a("v_lshl_add_u32 v8, v9, 4, v8")
a("s_lshl_b32 s12, s11, 19")
a("s_lshl_b32 s13, s6, 1")
a("s_add_u32 s13, s13, s9")
a("s_lshl_b32 s13, s13, 7")
a("s_add_u32 s12, s12, s13")
a("s_add_u32 s12, s12, %d", WS_UT)
a("v_lshrrev_b32 v9, 3, v0")
a("v_mul_u32_u24 v10, %d, v9", PITCH)
a("v_add_u32 v10, v10, v5")
a("v_add_u32 v10, %d, v10", LA)
a("s_waitcnt vmcnt(0)")
a("ds_write_b128 v4, v[28:31] offset:%d", LGW)
a("s_waitcnt lgkmcnt(0)")
a("s_barrier")
stamp(0)
for j in range(8):
    for hf in range(2):
        a("ds_read_b64_tr_b16 %s, v7 offset:%d", vr(64 + 4 * j + 2 * hf, 2), hf * 16 * PITCH + j * 32)
nonce_issue()
for j in range(8):
    a("s_waitcnt lgkmcnt(%d)", 14 - 2 * j)
    a("s_add_u32 s13, s12, %d", j * 65536)
    a("buffer_store_dwordx4 %s, v8, %s, s13 offen sc1", vr(64 + 4 * j, 4), sr(SWS, 4))
for j in range(8):
    a("ds_read_b128 %s, v10 offset:%d", vr(96 + 4 * j, 4), j * 128)
    a("ds_read_b128 %s, v5 offset:%d", vr(32 + 4 * j, 4), LGW + j * 128)
a("v_mov_b32 v11, 0")
a("v_mov_b32 v12, 0")
a("s_waitcnt lgkmcnt(0)")
for j in range(32):
    a("v_dot2_f32_bf16 v%d, v%d, v%d, v%d", 11 + j % 2, 32 + j, 96 + j, 11 + j % 2)
a("v_add_f32 v11, v11, v12")
a("v_add_f32_dpp v11, v11, v11 quad_perm:[1,0,3,2] row_mask:0xf bank_mask:0xf")
a("v_add_f32_dpp v11, v11, v11 quad_perm:[2,3,0,1] row_mask:0xf bank_mask:0xf")
a("v_add_f32_dpp v11, v11, v11 row_half_mirror row_mask:0xf bank_mask:0xf")
a("v_mul_f32 v11, 0xbfb8aa3b, v11")
a("v_exp_f32 v11, v11")
a("v_add_f32 v11, 1.0, v11")
a("v_rcp_f32 v11, v11")
a("v_lshlrev_b32 v9, 2, v9")
a("s_waitcnt vmcnt(0)")
nonce_check()
a("s_barrier")
a("s_cmp_lg_u32 s3, 0")
a("s_cbranch_scc1 L_auxnf")
a("s_lshl_b32 s10, s6, 2")
a("s_add_u32 s10, s10, %d", F_A)
flag_store("s10")
a("L_auxnf:")
stamp(1)
a("s_lshl_b32 s13, s6, 8")
a("s_add_u32 s13, s13, %d", WS_G)
a("v_cmp_eq_u32 vcc, 0, v5")
a("s_mov_b64 exec, vcc")
a("buffer_store_dword v11, v9, %s, s13 offen sc1", sr(SWS, 4))
a("s_mov_b64 exec, -1")
later_addrs(T0, T1, T2)
later_addrs2(T0, T1, T2)
if opt("apf", 1):
    a("s_lshl_b32 s%d, s6, 3", S_PFI)
    a("s_add_u32 s%d, s%d, s3", S_PFI, S_PFI)
    a("s_lshr_b32 s10, s%d, 6", S_PFI)
    a("s_mul_i32 s10, s10, 448")
    a("s_and_b32 s11, s%d, 63", S_PFI)
    a("s_add_u32 s10, s10, s11")
    a("s_lshl_b32 s10, s10, 10")
    for k_ in range(7):
        a("buffer_load_dwordx4 v[52:55], v%d, %s, s10 offen", VH, sr(SW, 4))
        a("s_add_u32 s10, s10, 65536")
kgen_all([])
a("s_waitcnt lgkmcnt(0)")
a("s_barrier")
lg = Lg()
for r in kreads(): lg.issue(*r)
run_kmfma(lg, [], 0)
def p_():
    a("s_mov_b32 s%d, %d", S_PB, F_A)
    poll_issue(32)
    a("s_waitcnt vmcnt(0)")
    poll_check(16)
onwave(0, p_)
a("s_waitcnt vmcnt(0)")
a("s_barrier")
role(u_load, None)
kmfma_finish()
zero_pads_k()
zero_pads_u()
def p_():
    a("s_lshl_b32 s10, s6, 2")
    a("s_add_u32 s10, s10, %d", F_G)
    flag_store("s10")
onwave(4, p_)
for rd_ in range(3):
    for i_ in range(4): dma_w(rd_, i_)
def lo():
    a("s_waitcnt vmcnt(12)")
    u_write()
role(lo, (lambda: stage_w(4)) if W4T else None)
a("s_waitcnt lgkmcnt(0)")
a("s_barrier")
stamp(2)

a("L_post:")
VA, VB, VC, VY = 2, 3, 4, 5
a("v_mov_b32 v%d, v%d", VA, PVA)
a("v_mov_b32 v%d, v%d", VB, PVB)
a("v_mov_b32 v%d, v%d", VC, PVC)
a("v_mov_b32 v%d, v%d", VY, PVY)
a("v_mov_b32 v6, 1")
a("v_mov_b32 v7, %d", L_SY)
stamp(3)
a("s_cmp_ge_u32 s3, 4")
a("s_cbranch_scc1 L_help")

HF = 112
HRING = 8
VO, EU, ED = 14, 20, 24
def eops():
    t1, t2, t3 = 17, 18, 19
    a("v_and_b32 v%d, 31, v1", t1)
    a("v_lshrrev_b32 v%d, 5, v1", t2)
    a("v_lshlrev_b32 v%d, 4, v%d", t3, t2)
    a("v_lshl_add_u32 v%d, v%d, 10, v%d", VO, t1, t3)
    a("buffer_load_dwordx4 %s, v%d, %s, s%d offen", vr(EU, 4), VO, sr(SX, 4), S_OB)
    a("v_add_u32 v%d, s%d, v%d", t3, S_DOFF, t3)
    a("global_load_dwordx4 %s, v%d, %s", vr(ED, 4), t3, sr(P_DSK, 2))
def hload(j0, n, vml):
    for j in range(j0, j0 + n):
        if j % 4 == 0 or j == j0:
            a("s_add_u32 s%d, s%d, s%d", S_T, S_HB, S_RT + j // 4)
        a("buffer_load_dwordx4 %s, v%d, %s, s%d offen offset:%d%s", vr(HF + 4 * (j % HRING), 4), VH, sr(SWS, 4), S_T, (j % 4) * 1024, "" if opt("hplain", 0) else " sc1")
        vml.append(("H", j))

a("s_bitcmp1_b32 s3, 0")
a("s_cbranch_scc1 L_set1")
BF = 112
AF = 8
AC = 28
C1POS = opt("c1pos", 20)
LOOK = opt("look", 6)
NC0 = opt("nc0", 6)
FPG = opt("fpg", 4)
vmc = None
for si, tiles in enumerate([[0, 3, 4, 7], [1, 2, 5, 6]]):
    if si == 1: a("L_set1:")
    lg = Lg()
    sched = []
    maxd = 4 * tiles[-1] + 3
    for dl in range(maxd + 1):
        for ti, jt in enumerate(tiles):
            if dl <= 4 * jt + 3: sched.append((dl, ti, jt))
    loads = []; seenA, seenB = set(), set()
    for pos, (dl, ti, jt) in enumerate(sched):
        if dl not in seenA: seenA.add(dl); loads.append(("A", dl, pos))
        e = 4 * jt - dl
        if e not in seenB: seenB.add(e); loads.append(("B", e, pos))
    lastuseA = {}
    for pos, (dl, ti, jt) in enumerate(sched): lastuseA[dl] = pos
    NA = 5
    def ld_instrs(kind, idx):
        if kind == "A":
            r = AF + 4 * (idx % NA)
            return ["ds_read_b64_tr_b16 %s, v%d offset:%d" % (vr(r + 2 * hf, 2), VA, 128 * idx + 32 * (1 - hf)) for hf in range(2)]
        return ["ds_read_b128 %s, v%d offset:%d" % (vr(BF + 4 * (idx + 3), 4), VB, 128 * (idx + 3))]
    li = 0; fill = []
    def recomb(ti):
        b = AC + 20 * ti
        L = []
        q1 = "quad_perm:[1,1,3,3] row_mask:0xf bank_mask:0xf"; q2 = "quad_perm:[2,2,2,2] row_mask:0xf bank_mask:0xf"
        L.append("v_mov_b32_dpp v%d, v%d %s" % (b + 16, b + 15, q1))
        for q in range(15, 0, -1):
            L.append("v_add_f32_dpp v%d, v%d, v%d %s" % (b + q, b + q - 1, b + q, q1))
        L.append("v_mov_b32_dpp v%d, v%d %s" % (b + 18, b + 16, q2))
        L.append("v_mov_b32_dpp v%d, v%d %s" % (b + 17, b + 15, q2))
        for q in range(16, 1, -1):
            L.append("v_add_f32_dpp v%d, v%d, v%d %s" % (b + q, b + q - 2, b + q, q2))
        return L
    started = set(); hold = 0
    for pos, (dl, ti, jt) in enumerate(sched):
        while li < len(loads) and loads[li][2] <= pos + LOOK:
            kind, idx, fp = loads[li]
            if kind == "A" and idx >= NA and lastuseA[idx - NA] >= pos: break
            for ins in ld_instrs(kind, idx): lg.issue(ins, (kind, idx))
            li += 1
        e = 4 * jt - dl
        lg.need([("A", dl), ("B", e)])
        d = vr(AC + 20 * ti, 16)
        a("v_mfma_f32_32x32x16_bf16 %s, %s, %s, %s", d, vr(AF + 4 * (dl % NA), 4), vr(BF + 4 * (e + 3), 4), d if ti in started else "0")
        started.add(ti)
        if pos == C1POS:
            a("s_waitcnt vmcnt(0)")
            lg.issue("ds_write_b32 v%d, v6" % VSY)
        if hold > 0: hold -= 1
        else:
            for _ in range(FPG):
                if fill: a(fill.pop(0))
        if dl == 4 * jt + 3:
            if not fill: hold = 2
            fill += recomb(ti)
    stamp(4)
    for f in fill: a(f)
    a("s_mov_b32 s12, 0x11111111")
    a("s_mov_b32 s13, 0x11111111")
    a("s_mov_b64 exec, s[12:13]")
    for ti, jt in enumerate(tiles):
        a("ds_write_b128 v%d, %s offset:%d", VC, vr(AC + 20 * ti + 16, 4), 256 * jt + 16)
    a("s_mov_b64 exec, -1")
    a("ds_write_b32 v%d, v6 offset:32", VSY)
    a("v_xor_b32 v%d, 4, v%d", VB, VSY)
    stamp(5)
    lds_wait(VB, 32, VA)
    for ti, jt in enumerate(tiles):
        a("ds_read_b128 %s, v%d offset:%d", vr(AF + 4 * ti, 4), VC, 256 * jt)
    a("s_mov_b64 vcc, s[12:13]")
    a("s_mov_b32 s12, 0x33333333")
    a("s_mov_b32 s13, 0x33333333")
    for ti, jt in enumerate(tiles):
        b = AC + 20 * ti
        for q in range(2, 8):
            a("v_cvt_pk_bf16_f32 v%d, v%d, v%d", b + 16 + (q - 2) if q < 4 else b + q, b + 2 * q, b + 2 * q + 1)
    for ti, jt in enumerate(tiles):
        b = AC + 20 * ti
        a("s_waitcnt lgkmcnt(%d)", 3 - ti)
        for q in range(3):
            a("v_add_f32 v%d, v%d, v%d", b + q, b + q, AF + 4 * ti + q)
        a("v_cvt_pk_bf16_f32 v%d, v%d, v%d", b, b, b + 1)
        a("v_cvt_pk_bf16_f32 v%d, v%d, v%d", b + 1, b + 2, b + 3)
        q0 = "quad_perm:[0,0,0,0] row_mask:0xf bank_mask:0xf"
        a("v_cndmask_b32_dpp v%d, v%d, v%d, vcc %s", b + 2, b + 6, b + 16, q0)
        a("v_cndmask_b32_dpp v%d, v%d, v%d, vcc %s", b + 3, b + 7, b + 17, q0)
        a("v_cndmask_b32_dpp v%d, v%d, v%d, vcc %s", b, b + 4, b, q0)
        a("v_cndmask_b32_dpp v%d, v%d, v%d, vcc %s", b + 1, b + 5, b + 1, q0)
        a("s_mov_b64 exec, s[12:13]")
        a("buffer_store_dwordx4 %s, v%d, %s, s%d offen offset:%d sc1", vr(b, 4), VY, sr(SWS, 4), S_YB, 512 * jt)
        a("s_mov_b64 exec, -1")
    a("s_branch L_ycom")

a("L_ycom:")
a("ds_read_b32 v3, v7 offset:48")
eops()
def ypublish(n):
    lb = a.label("Lnyf")
    a("s_waitcnt vmcnt(%d)", n)
    a("ds_write_b32 v%d, v6 offset:64", VSY)
    a("s_cmp_lg_u32 s3, 0")
    a("s_cbranch_scc1 %s", lb)
    a("v_and_b32 v2, 3, v1")
    a("v_lshl_add_u32 v2, v2, 2, v7")
    lds_wait(2, 64, 3)
    a("s_lshl_b32 s10, s2, 2")
    a("s_add_u32 s10, s10, %d", F_Y)
    flag_store("s10")
    a(lb + ":")
    stamp(6)
a("s_waitcnt lgkmcnt(0)")
a("v_readfirstlane_b32 s10, v3")
a("s_cmp_eq_u32 s10, 0")
a("s_cbranch_scc1 L_ylate")
vmc = []
hload(0, NC0, vmc)
ypublish(NC0 + 2)
a("s_branch L_g2c")
a("L_ylate:")
ypublish(2)
lds_wait(7, 48, 3)
hload(0, NC0, [])
a("s_branch L_g2c")

a("L_help:")
a("s_cmp_lg_u32 s3, 4")
a("s_cbranch_scc1 L_hdma")
a("s_waitcnt vmcnt(0)")
a("ds_write_b32 v%d, v6", VSY)
stamp(10)
a("s_cmp_lg_u32 s%d, 0", S_ISAUX)
a("s_cbranch_scc1 L_nohf")
a("v_and_b32 v2, 7, v1")
a("v_lshl_add_u32 v2, v2, 2, v7")
lds_wait(2, 0, 3)
flag_store("s%d" % S_FH)
a("L_nohf:")
stamp(4)
def help_loads(sig=False):
    a("s_lshl_b32 s13, s%d, 4", S_RT + 3)
    a("s_add_u32 s13, s13, s%d", S_WSO)
    for i in range(8):
        a("s_add_u32 m0, s%d, %d", S_WLD, WB[3] * BLK + i * 1024)
        if i: a("s_add_u32 s13, s13, 8192")
        a("buffer_load_dwordx4 v%d, %s, s13 offen lds", VWD, sr(SW, 4))
    if sig:
        a("s_waitcnt vmcnt(8)")
        a("ds_write_b32 v%d, v6", VSY)
        stamp(10)
    if not W4T: stage_w(4)
    stage_w(5); stage_w(6)
    eops()
help_loads()
a("s_lshr_b32 s%d, s%d, 1", S_PB, S_TB)
a("s_lshl_b32 s%d, s%d, 7", S_PB, S_PB)
a("s_add_u32 s%d, s%d, %d", S_PB, S_PB, F_H)
PM = opt("pm", 1)
if PM == 1:
    a("s_mov_b32 s12, 0")
    a("L_sp:")
    a("s_buffer_load_dwordx16 s[16:31], %s, s%d glc", sr(SWS, 4), S_PB)
    a("s_add_u32 s12, s12, 1")
    a("s_waitcnt lgkmcnt(0)")
    a("s_xor_b32 s10, s16, s%d", S_NONCE)
    for i in range(1, 14):
        a("s_xor_b32 s11, s%d, s%d", 16 + i, S_NONCE)
        a("s_or_b32 s10, s10, s11")
    a("s_cbranch_scc0 L_spok")
    a("s_cmp_lt_u32 s12, %d", opt("spn", 64))
    a("s_cbranch_scc1 L_sp")
    poll_issue(14)
    a("s_waitcnt vmcnt(0)")
    poll_check(1)
    a("L_spok:")
    pass
elif PM == 2:
    a("v_and_b32 v2, 3, v1")
    a("v_max_u32 v2, 1, v2")
    a("v_lshl_add_u32 v2, v2, 2, v7")
    lds_wait(2, 80, 3)
    poll_issue(14)
    a("s_waitcnt vmcnt(0)")
    poll_check(1)
else:
    poll_issue(14)
    a("s_waitcnt vmcnt(0)")
    poll_check(1)
a("ds_write_b32 v7, v6 offset:48")
stamp(5)
a("s_branch L_hld")
a("L_hdma:")
help_loads(True)
if PM == 2: a("ds_write_b32 v%d, v6 offset:64", VSY)
stamp(4)
lds_wait(7, 48, 3)
stamp(5)
a("L_hld:")
vmh = [("W", 103)]
NH0 = opt("nh0", 6)
hload(0, NH0, vmh)
stamp(6)

def gemm2(role_, vml):
    helper = role_ == "h"
    R = 8
    VYR, EG = 15, 16
    EY = 28
    VWW = 97
    t0, t1, t2, t3 = 32, 33, 34, 35
    AFR = 36
    AC2 = 60
    YL = 92
    A0 = 100
    RR = 16
    def vw(tags):
        idx = [i for i, t in enumerate(vml) if t in tags]
        if opt("g2nowait", 0) and tags[0][0] in "HW": return 63
        if not idx: return 63
        return min(63, len(vml) - 1 - max(idx))
    a("v_mov_b32 v%d, v%d", R, VR0)
    a("v_xor_b32 v%d, 64, v%d", R + 1, VR0)
    for m in range(2):
        a("v_add_u32 v%d, %d, v%d", R + 2 + m, 4 * BLK, R + m)
        a("v_add_u32 v%d, %d, v%d", R + 4 + m, 8 * BLK, R + m)
    if helper: a("s_waitcnt vmcnt(%d)", vw([("W", 103)]))
    a("s_barrier")
    stamp(7)
    def reads(step):
        rd, ks = step // 4, step % 4
        blk = WB[rd]
        f = AFR + (step % 3) * 8
        L = []
        for m in range(2):
            for hf in range(2):
                L.append(("ds_read_b64_tr_b16 %s, v%d offset:%d" % (vr(f + 4 * m + 2 * hf, 2), R + 2 * (blk // 4) + m, (blk % 4) * BLK + ks * 2048 + hf * 1024), (step, m)))
        return L
    def ypoll_issue():
        a("s_lshl_b32 s10, s%d, 7", S_DB)
        a("v_lshl_add_u32 v%d, v1, 2, s10", VN + 2)
        a("s_lshl_b32 s10, s%d, 2", S_TB)
        a("s_add_u32 s10, s10, %d", F_G - F_Y)
        a("v_mov_b32 v%d, s10", t0)
        a("v_cmp_lt_u32 vcc, 31, v1")
        a("v_cndmask_b32 v%d, v%d, v%d, vcc", VN + 2, VN + 2, t0)
        a("s_mov_b32 s%d, %d", S_PB, F_Y)
        a("buffer_load_dword v%d, v%d, %s, s%d offen sc1", VN - 1, VN + 2, sr(SWS, 4), S_PB)
        vml.append(("PY", 0))
    def yload():
        poll_check(1)
        a("v_lshrrev_b32 v%d, 3, v1", t0)
        a("v_lshlrev_b32 v%d, 12, v%d", t0, t0)
        a("v_and_b32 v%d, 7, v1", t1)
        a("v_lshl_add_u32 v%d, v%d, 4, v%d", t0, t1, t0)
        a("s_lshl_b32 s10, s%d, 3", S_DB)
        a("s_add_u32 s10, s10, s3")
        a("s_lshl_b32 s10, s10, 15")
        a("s_lshl_b32 s11, s%d, 7", S_TB)
        a("s_add_u32 s10, s10, s11")
        a("s_add_u32 s10, s10, %d", WS_Y)
        a("buffer_load_dwordx4 %s, v%d, %s, s10 offen sc1", vr(YL, 4), t0, sr(SWS, 4))
        vml.append(("Y", 0))
        a("v_and_b32 v%d, 31, v1", t1)
        a("v_lshlrev_b32 v%d, 2, v%d", t1, t1)
        a("buffer_load_dword v%d, v%d, %s, s%d offen sc1", EG, t1, sr(SWS, 4), S_GOFF)
        vml.append(("Y", 0))
    lg = Lg()
    for r in reads(0) + reads(1): lg.issue(*r)
    pend = []
    def wwrite(rd, i):
        if i == 0: a("v_add_u32 v%d, %d, v%d", VWW, WB[rd] * BLK, VWW + 1)
        lg.issue("ds_write_b128 v%d, %s offset:%d" % (VWW, vr(WST + WSTO[rd] + 4 * i, 4), i * 1024), ("ww", rd))
    if helper:
        a("v_add_u32 v%d, s%d, v%d", VWW + 1, S_WLD, VH)
        pend = [(lambda i=i: wwrite(4, i)) for i in range(8)]
    vfill = []
    nh = NH0 if helper else NC0
    YPS = opt("yps", 13)
    for step in range(28):
        rd, ks = step // 4, step % 4
        f = AFR + (step % 3) * 8
        nxt = reads(step + 2) if step < 26 else []
        for m in range(2):
            d = vr(AC2 + 16 * m, 16)
            lg.need([(step, m)], "vmcnt(%d) " % vw([("H", step)]) if m == 0 else "")
            a("v_mfma_f32_32x32x16_bf16 %s, %s, %s, %s", d, vr(f + 4 * m, 4), vr(HF + 4 * (step % HRING), 4), d if step else "0")
            for r in nxt[2 * m:2 * m + 2]: lg.issue(*r)
            if nh < 28 and m == 0:
                hload(nh, 1, vml); nh += 1
                if nh == 28:
                    a("s_waitcnt vmcnt(%d)", vw([("PY", 0)]))
                    yload()
            if m == 1 and step == YPS: ypoll_issue()
            if pend: pend.pop(0)()
            for _ in range(5):
                if vfill: lg.run(vfill.pop(0))
        if opt("stg2", 0) and ks == 3 and rd < 5:
            stamp(10 + rd); lg.drained()
        if step == 20:
            for j in range(4):
                for hi in range(2):
                    o = A0 + 2 * j + hi
                    op = "v_lshlrev_b32 v%d, 16, v%d" if hi == 0 else "v_and_b32 v%d, 0xffff0000, v%d"
                    vfill.append(op % (t2, EU + j)); vfill.append(op % (t3, ED + j))
                    vfill.append("v_mul_f32 v%d, v%d, v%d" % (o, t2, t3))
        if ks == 1 and 1 <= rd < 6:
            if helper and rd >= 3: lg.need([("ww", rd + 1)])
            a("s_barrier")
            if helper and rd <= 2:
                assert not pend
                pend = [(lambda i=i, r=rd + 4: wwrite(r, i)) for i in range(8)]
            if rd == 5:
                vfill += ["v_lshrrev_b32 v%d, 5, v1" % VYR,
                          "v_bfe_u32 v%d, v1, 2, 2" % t2,
                          "v_lshl_add_u32 v%d, v%d, 3, v%d" % (VYR, VYR, t2),
                          "v_lshlrev_b32 v%d, 7, v%d" % (VYR, VYR),
                          "v_bfe_u32 v%d, v1, 4, 1" % t2,
                          "v_lshl_add_u32 v%d, v%d, 5, v%d" % (VYR, t2, VYR),
                          "v_and_b32 v%d, 3, v1" % t2,
                          "v_lshl_add_u32 v%d, v%d, 3, v%d" % (VYR, t2, VYR),
                          "s_lshr_b32 s10, s3, 1", "s_lshl_b32 s10, s10, 11", "s_and_b32 s11, s3, 1", "s_lshl_b32 s11, s11, 6",
                          "s_add_u32 s10, s10, s11", "s_add_u32 s10, s10, %d" % L_Y,
                          "v_add_u32 v%d, s10, v%d" % (VYR, VYR),
                          "s_lshl_b32 s10, s3, 10", "s_add_u32 s10, s10, %d" % L_Y,
                          "v_add_u32 v%d, s10, v%d" % (YL + 4, VH)]
                for j in range(4):
                    hi_ = (1 if helper else 0) ^ (j >> 1)
                    vfill.append("s_xor_b32 s10, s%d, %d" % (S_TQ, (2 * j) & 3))
                    vfill.append("s_mul_i32 s10, s10, 6144")
                    vfill.append("s_add_u32 s10, s10, %d" % (L_R[hi_] + max(j - 1, 0) * 2048))
                    vfill.append("v_add_u32 v%d, s10, v%d" % (VWW if j == 0 else RR + j, VH))
    assert not pend
    stamp(8)
    for f_ in vfill: lg.run(f_)
    a("s_waitcnt vmcnt(0)")
    a("ds_write_b128 v%d, %s", YL + 4, vr(YL, 4))
    for j in range(1, 4):
        for b in range(2):
            a("ds_write_b128 v%d, %s offset:%d", VWW, vr(AC2 + 8 * j + 4 * b, 4), (j - 1) * 2048 + b * 1024)
    for q in range(8):
        a("v_sub_f32 v%d, v%d, v%d", A0 + q, A0 + q, AC2 + q)
        a("v_fmac_f32 v%d, v%d, v%d", AC2 + q, EG, A0 + q)
    a("v_sub_f32 v%d, 1.0, v%d", t1, EG)
    a("s_waitcnt lgkmcnt(0)")
    a("s_barrier")
    for hf in range(2):
        a("ds_read_b64_tr_b16 %s, v%d offset:%d", vr(EY + 2 * hf, 2), VYR, hf * 512)
    for j in range(1, 4):
        for b in range(2):
            a("ds_read_b128 %s, v%d offset:%d", vr(AC2 + 8 * j + 4 * b, 4), RR + j, b * 1024)
    a("s_waitcnt lgkmcnt(6)")
    for j in range(4):
        a("v_lshlrev_b32 v%d, 16, v%d", t2, EY + j)
        a("v_and_b32 v%d, 0xffff0000, v%d", t3, EY + j)
        a("v_fmac_f32 v%d, v%d, v%d", AC2 + 2 * j, EG, t2)
        a("v_fmac_f32 v%d, v%d, v%d", AC2 + 2 * j + 1, EG, t3)
    for j in range(1, 4):
        a("s_waitcnt lgkmcnt(%d)", 2 * (3 - j))
        for q in range(8):
            a("v_fmac_f32 v%d, v%d, v%d", AC2 + q, t1, AC2 + 8 * j + q)
    for j in range(4):
        a("v_cvt_pk_bf16_f32 v%d, v%d, v%d", A0 + j, AC2 + 2 * j, AC2 + 2 * j + 1)
    a("buffer_store_dwordx4 %s, v%d, %s, s%d offen", vr(A0, 4), VO, sr(SO, 4), S_OB)
    if STAMP: a("s_waitcnt vmcnt(0)")
    stamp(9)
    stamp_out()
    a("s_endpgm")

gemm2("h", vmh)
a("L_g2c:")
gemm2("c", vmc)
for sp in slow: sp()
a("L_end:")
a("s_endpgm")

hdr = open("gated_mix__ssm_conv_s4__glu_gated_bilinear__prompt.s.ref").read().split("\n")
hdr = [l for l in hdr if l.startswith(";") and "@launch" not in l]
print(wrap(hdr + ["; @launch grid=(256,1,1) block=(512,1,1) lds=163840"], [(NAME, a, 256, 102, 256)]))
sys.stderr.write("nops: %d\n" % a.nops)
```

```python
import sys
from asmlib import *

STAMP = "--stamp" in sys.argv
def opt(name, default):
    for x in sys.argv:
        if x.startswith("--%s=" % name): return int(x.split("=")[1])
    return default

WS_H = 0
WS_UT = 8 << 20
WS_Y = 10 << 20
WS_G = 12 << 20
WS_F = (12 << 20) + 0x10000
WS_ST = 13 << 20
WS_BYTES = 14 << 20
F_A, F_H, F_Y, F_G, F_E = WS_F, WS_F + 0x1000, WS_F + 0x2000, WS_F + 0x3000, WS_F + 0x4000

P_U, P_ARE, P_AIM, P_BRE, P_BIM, P_CRE, P_CIM, P_LDT = 16, 18, 20, 22, 24, 26, 28, 30
P_DSK, P_BX, P_WG, P_WU, P_WD, P_GW, P_OUT, P_DBG, P_WS = 32, 34, 36, 38, 40, 42, 44, 46, 48
SX, SG, SU, SWS, SW, SO = 52, 56, 60, 64, 68, 72
S_NONCE, S_ISAUX, S_SPIN, S_PB = 76, 77, 78, 79
S_TB, S_DB, S_KH, S_TQ, S_HB, S_OB = 80, 81, 82, 83, 84, 85
S_W0S = 100
S_RT = 36
S_KR, S_T2 = 0, 1
S_W2K, S_T, S_TM0, S_YB = 86, 87, 88, 89
S_DOFF, S_GOFF = 50, 51
S_WSO, S_WLD = 90, 91
S_HST = 34
S_FH = 35
SPINMAX = opt("spin", 20000)

BLK = 16384
XB = [0, 1, 2]
GB = [6, 8, 4]
L_TAB = 2 * BLK
TP = 528
TPIECE = 31 * TP
L_U = 2 * BLK
UCH = 512 + 4096
L_K = 3 * BLK
KCH = 64 + 4096
L_CY = L_K + 2 * KCH
CYCH = 129 * 16
L_SY = L_CY + 2 * CYCH
assert L_SY % 16 == 0 and L_SY + 128 <= 4 * BLK
WB = [4, 6, 8, 0, 2, 4, 6]
L_Y = 8 * BLK + 24576
L_R = [8 * BLK, 0]

a = Asm()

class Lg:
    def __init__(self): self.q = []; self.done = 0
    def issue(self, ins, tag=None):
        a(ins); self.q.append(tag)
    def need(self, tags, extra=""):
        idx = [i for i, t in enumerate(self.q) if t in tags]
        last = max(idx) if idx else -1
        if last >= self.done:
            cnt = min(len(self.q) - 1 - last, 15)
            a("s_waitcnt %slgkmcnt(%d)", extra, cnt)
            self.done = len(self.q) - cnt
        elif extra:
            a("s_waitcnt %s", extra)
    def drained(self): self.done = len(self.q)
    def run(self, p):
        n0 = len(a.lines)
        a(p) if isinstance(p, str) else p()
        for ln in a.lines[n0:]:
            if ln.strip().startswith("ds_"): self.q.append(None)

SMASK = opt("smask", 0x7fff)
def stamp(i, force=False):
    if opt("stg", 0) == 2:
        if not force or not (SMASK >> i) & 1: return
    if not STAMP or not ((SMASK >> i) & 1 or force): return
    a("s_memtime s[94:95]")
    a("s_memrealtime s[92:93]")
    a("s_waitcnt lgkmcnt(0)")
    a("s_sub_u32 s94, s94, s98")
    a("v_writelane_b32 v255, s94, %d", i)
    a("v_writelane_b32 v255, s92, %d", i + 16)
def stamp_out():
    if not STAMP: return
    a("s_mov_b64 exec, -1")
    a("v_writelane_b32 v255, s96, 31")
    a("s_lshl_b32 s92, s2, 3")
    a("s_add_u32 s92, s92, s3")
    a("s_lshl_b32 s92, s92, 7")
    a("s_add_u32 s92, s92, %d", WS_ST)
    a("v_mbcnt_lo_u32_b32 v254, -1, 0")
    a("v_mbcnt_hi_u32_b32 v254, -1, v254")
    a("v_lshlrev_b32 v253, 2, v254")
    a("s_mov_b64 exec, 0xffffffff")
    a("buffer_store_dword v255, v253, %s, s92 offen", sr(SWS, 4))

def cmul(d, x, y, plain):
    if plain:
        return ["v_mul_f32 v%d, v%d, v%d" % (d, x, y), "v_mul_f32 v%d, v%d, v%d" % (d + 1, x + 1, y),
                "v_fma_f32 v%d, -v%d, v%d, v%d" % (d, x + 1, y + 1, d), "v_fmac_f32 v%d, v%d, v%d" % (d + 1, x, y + 1)]
    return ["v_pk_mul_f32 %s, %s, %s op_sel_hi:[1,0]" % (vr(d, 2), vr(x, 2), vr(y, 2)),
            "v_pk_fma_f32 %s, %s, %s, %s op_sel:[1,1,0] op_sel_hi:[0,1,1] neg_lo:[1,0,0]" % (vr(d, 2), vr(x, 2), vr(y, 2), vr(d, 2))]
def il(x, y):
    o = []
    for i in range(max(len(x), len(y))):
        if i < len(x): o.append(x[i])
        if i < len(y): o.append(y[i])
    return o

VH = 240
VWD = 241
VR0 = 242
VSY = 243
VN = 250
PVA, PVB, PVC, PVY = 148, 149, 150, 151
KA, KBa, KW = 152, 153, 154
VZ = 155
KB = 160
KP = 204
KF = 160
KD = 236
VUL = 244

def kgen_setup():
    a("s_lshr_b32 s10, s3, 2")
    a("s_lshl_b32 s11, s2, 1")
    a("s_add_u32 s11, s11, s10")
    a("s_and_b32 s12, s3, 1")
    a("s_lshl_b32 s13, s11, 8")
    a("s_lshl_b32 s12, s12, 7")
    a("s_add_u32 s13, s13, s12")
    a("v_lshl_add_u32 v%d, v1, 1, s13", KB + 8)
    a("s_lshl_b32 s11, s11, 1")
    a("v_mov_b32 v%d, s11", KB + 9)
    for i in range(7): a("v_mov_b32 v%d, 0", KB + i)
    a("s_bitcmp1_b32 s3, 1")
    a("s_cselect_b64 s[14:15], -1, 0")
def kgen_loads():
    a("global_load_short_d16_hi v%d, v%d, %s", KB + 6, KB + 9, sr(P_LDT, 2))
    for i, p in enumerate([P_ARE, P_AIM, P_BRE, P_BIM, P_CRE, P_CIM]):
        a("global_load_short_d16_hi v%d, v%d, %s", KB + i, KB + 8, sr(p, 2))
    return 7
def rowpos(m): return 16 + (2 * m if m <= 7 else 2 * (m - 8) + 1)
def kgen_valu(plain_tail):
    L = []
    A_, B_, BR, BI, CR, CI, LD, T0, T1, T2 = [KB + i for i in range(10)]
    W, E1, E2, E4, E8, E128, E256, E512, P, X0, X1, R0, R1, RB, Y0, Z0 = [KB + 10 + 2 * i for i in range(16)]
    L.append("v_mul_f32 v%d, 0x3fb8aa3b, v%d" % (T0, LD))
    L.append("v_mov_b32 v%d, 0x3fb8aa3b" % T2)
    L.append("v_fma_f32 v%d, v%d, v%d, -v%d" % (T1, LD, T2, T0))
    L.append("v_fmac_f32 v%d, 0x32a57060, v%d" % (T1, LD))
    L.append("v_exp_f32 v%d, v%d" % (T0, T0))
    L.append("v_mul_f32 v%d, 0x3f317218, v%d" % (T1, T1))
    L.append("v_fmac_f32 v%d, v%d, v%d" % (T0, T0, T1))
    L.append("v_cvt_pk_bf16_f32 v%d, v%d, v%d" % (T0, T0, T0))
    L.append("v_and_b32 v%d, 0xffff0000, v%d" % (T0, T0))
    for r in (A_, B_, BR, BI):
        L.append("v_mul_f32 v%d, v%d, v%d" % (r, T0, r))
    L.append("v_mul_f32 v%d, 0x3fb8aa3b, v%d" % (A_, A_))
    L.append("v_mul_f32 v%d, 0.15915494, v%d" % (B_, B_))
    o1 = ["v_exp_f32 v%d, v%d" % (T0, A_), "v_fract_f32 v%d, v%d" % (T1, B_),
          "v_cos_f32 v%d, v%d" % (E1, T1), "v_sin_f32 v%d, v%d" % (E1 + 1, T1),
          "v_mul_f32 v%d, v%d, v%d" % (E1, T0, E1), "v_mul_f32 v%d, v%d, v%d" % (E1 + 1, T0, E1 + 1)]
    o2 = ["v_mul_f32 v%d, 0x43000000, v%d" % (T2, A_), "v_mul_f32 v%d, 0x43000000, v%d" % (LD, B_),
          "v_exp_f32 v%d, v%d" % (T2, T2), "v_fract_f32 v%d, v%d" % (LD, LD),
          "v_cos_f32 v%d, v%d" % (E128, LD), "v_sin_f32 v%d, v%d" % (E128 + 1, LD),
          "v_mul_f32 v%d, v%d, v%d" % (E128, T2, E128), "v_mul_f32 v%d, v%d, v%d" % (E128 + 1, T2, E128 + 1)]
    L += il(o2, o1 + cmul(W, CR, BR, False))
    L += il(cmul(E2, E1, E1, False) + cmul(E4, E2, E2, False) + cmul(E8, E4, E4, False),
            cmul(E256, E128, E128, False) + cmul(E512, E256, E256, False))
    L.append("v_cndmask_b32 v%d, v%d, v%d, s[14:15]" % (P, E1, E2))
    L.append("v_cndmask_b32 v%d, v%d, v%d, s[14:15]" % (P + 1, E1 + 1, E2 + 1))
    L.append("v_cndmask_b32 v%d, 1.0, v%d, s[14:15]" % (X0, E128))
    L.append("v_cndmask_b32 v%d, 0, v%d, s[14:15]" % (X0 + 1, E128 + 1))
    L.append("v_cndmask_b32 v%d, 1.0, v%d, s[14:15]" % (E256, E256))
    L.append("v_cndmask_b32 v%d, 0, v%d, s[14:15]" % (E256 + 1, E256 + 1))
    L += cmul(RB, W, E256, False)
    rows = [(None, RB, None)]
    cur = RB
    for j in range(1, 8):
        d = R0 if j % 2 else R1
        rows.append((d, cur, P)); cur = d
    Z2 = Y0
    rows += [(Y0, RB, E512), (R1, Y0, E4), (R0, Y0, E8), (Z0, Y0, E512), (R1, Z0, E8), (Z2, Z0, E512), (R0, Z2, E8)]
    cols = [(None, X0, None)]
    cur = X0
    for j in range(1, 16):
        d = X1 if j % 2 else X0
        cols.append((d, cur, E8)); cur = d
    LC, LR = [], []
    for j, (d, s, m) in enumerate(cols):
        if d is not None: LC += cmul(d, s, m, plain_tail)
        x = d if d is not None else s
        LC.append("v_cvt_pk_bf16_f32 v%d, v%d, v%d" % (KP + j, x, x + 1))
    for j, (d, s, m) in enumerate(rows):
        if d is not None: LR += cmul(d, s, m, plain_tail)
        x = d if d is not None else s
        LR.append("v_cvt_pk_bf16_f32 v%d, v%d, -v%d" % (KP + rowpos(j), x, x + 1))
    return L, il(LC, LR)
def kgen_writes():
    return ["ds_write_addtid_b32 v%d offset:%d" % (KP + j, L_TAB + j * TP) for j in range(31)]

def later_addrs(T0, T1, T2):
    a("s_lshr_b32 s10, s3, 1")
    a("s_mul_i32 s10, s10, %d", TPIECE)
    a("s_and_b32 s11, s3, 1")
    a("s_lshl_b32 s11, s11, 8")
    a("s_add_u32 s%d, s10, s11", S_TM0)
    a("s_add_u32 s10, s10, %d", L_TAB)
    a("v_bfe_u32 v%d, v1, 4, 1", T1)
    a("v_lshlrev_b32 v%d, 8, v%d", T1, T1)
    a("v_lshrrev_b32 v%d, 5, v1", T2)
    a("v_lshl_add_u32 v%d, v%d, 7, v%d", T1, T2, T1)
    a("v_and_b32 v%d, 15, v1", T0)
    a("v_mul_u32_u24 v%d, %d, v%d", T2, TP, T0)
    a("v_add3_u32 v%d, v%d, v%d, s10", KBa, T2, T1)
    def lut(v): return sum(x << (4 * i) for i, x in enumerate(v))
    m0 = [0, 1, 2, 3] + [0, 0, 1, 2] + [2, 2, 3, 4] + [4, 5, 6, 7]; h0 = 0x0ff0
    m1 = [8, 9, 10, 10] + [8, 9, 10, 10] + [11, 12, 13, 14] + [11, 12, 13, 14]; h1 = 0xf0f0
    p0 = [rowpos(m) - 16 for m in m0]; p1 = [rowpos(m) - 16 for m in m1]
    a("s_bitcmp1_b32 s3, 0")
    a("s_mov_b32 s11, 0x%x", lut(p0[:8]))
    a("s_cmov_b32 s11, 0x%x", lut(p1[:8]))
    a("s_mov_b32 s12, 0x%x", lut(p0[8:]))
    a("s_cmov_b32 s12, 0x%x", lut(p1[8:]))
    a("s_mov_b32 s13, 0x%x", h0)
    a("s_cmov_b32 s13, 0x%x", h1)
    a("v_cmp_lt_u32 vcc, 7, v%d", T0)
    a("v_mov_b32 v%d, s11", KA)
    a("v_mov_b32 v%d, s12", T2)
    a("v_cndmask_b32 v%d, v%d, v%d, vcc", KA, KA, T2)
    a("v_and_b32 v%d, 7, v1", T2)
    a("v_lshlrev_b32 v%d, 2, v%d", T2, T2)
    a("v_bfe_u32 v%d, v%d, v%d, 4", KA, KA, T2)
    a("v_bfe_u32 v%d, s13, v%d, 1", T2, T0)
    a("v_mad_u32_u24 v%d, v%d, 31, v%d", KA, T2, KA)
    a("v_mul_u32_u24 v%d, %d, v%d", KA, TP, KA)
    a("s_lshr_b32 s10, s3, 2")
    a("s_mul_i32 s11, s10, %d", 2 * TPIECE)
    a("s_add_u32 s11, s11, %d", L_TAB + 16 * TP)
    a("v_add3_u32 v%d, v%d, v%d, s11", KA, KA, T1)
    a("s_mul_i32 s10, s10, %d", KCH)
    a("s_and_b32 s11, s3, 2")
    a("s_lshl_b32 s11, s11, 7")
    a("s_add_u32 s10, s10, s11")
    a("s_add_u32 s10, s10, %d", L_K + 64)
    a("s_bitcmp1_b32 s3, 0")
    a("s_mov_b32 s11, 0x%x", 0 | (64 << 8) | (65 << 16) | (1 << 24))
    a("s_cmov_b32 s11, 0x%x", 0 | (64 << 8) | (128 << 16) | (192 << 24))
    a("s_cselect_b32 s12, 1024, 0")
    a("s_add_u32 s10, s10, s12")
    a("v_lshrrev_b32 v%d, 4, v1", T1)
    a("v_lshlrev_b32 v%d, 3, v%d", T1, T1)
    a("v_bfe_u32 v%d, s11, v%d, 8", T1, T1)
    a("v_lshlrev_b32 v%d, 4, v%d", T0, T0)
    a("v_lshl_add_u32 v%d, v%d, 3, v%d", T0, T1, T0)
    a("v_add_u32 v%d, s10, v%d", KW, T0)
def later_addrs2(T0, T1, T2):
    a("s_bfe_u32 s10, s3, 0x10001")
    a("v_lshrrev_b32 v%d, 5, v1", T0)
    a("v_lshlrev_b32 v%d, 6, v%d", PVA, T0)
    a("v_and_b32 v%d, 31, v1", T1)
    a("v_lshlrev_b32 v%d, 4, v%d", PVB, T1)
    a("v_sub_u32 v%d, v%d, v%d", PVB, PVB, PVA)
    a("v_and_b32 v%d, 1, v1", T2)
    a("v_lshl_add_u32 v%d, v%d, 5, v%d", PVA, T2, PVA)
    a("v_lshrrev_b32 v%d, 2, v%d", T1, T1)
    a("v_lshl_add_u32 v%d, v%d, 1, v%d", T1, T1, T0)
    a("v_lshlrev_b32 v%d, 5, v%d", PVY, T1)
    a("v_lshl_add_u32 v%d, v%d, 4, v%d", PVY, T2, PVY)
    a("s_mul_i32 s11, s10, %d", CYCH)
    a("s_add_u32 s11, s11, %d", L_CY)
    a("v_lshl_add_u32 v%d, v%d, 4, s11", PVC, T1)
    a("v_bfe_u32 v%d, v1, 4, 1", T2)
    a("v_lshl_add_u32 v%d, v%d, 4, v%d", PVA, T2, PVA)
    a("v_bfe_u32 v%d, v1, 1, 1", T2)
    a("v_lshl_add_u32 v%d, v%d, 3, v%d", PVA, T2, PVA)
    a("v_bfe_u32 v%d, v1, 2, 2", T2)
    a("v_lshlrev_b32 v%d, 3, v%d", T2, T2)
    a("v_sub_u32 v%d, v%d, v%d", PVA, PVA, T2)
    a("s_mul_i32 s11, s10, %d", KCH)
    a("s_add_u32 s11, s11, %d", L_K + 32)
    a("v_add_u32 v%d, s11, v%d", PVA, PVA)
    a("s_mul_i32 s11, s10, %d", UCH)
    a("s_add_u32 s11, s11, %d", L_U + 512 - 384)
    a("v_add_u32 v%d, s11, v%d", PVB, PVB)
    a("s_lshl_b32 s11, s2, 1")
    a("s_add_u32 s11, s11, s10")
    a("s_lshl_b32 s11, s11, 12")
    a("s_add_u32 s%d, s11, %d", S_YB, WS_Y)
    if opt("b84", 1):
        a("s_and_b32 s%d, s4, 6", S_TB)
        a("s_lshl_b32 s%d, s%d, 2", S_TB, S_TB)
        a("s_and_b32 s10, s5, 7")
        a("s_add_u32 s%d, s%d, s10", S_TB, S_TB)
        a("s_and_b32 s%d, s4, 1", S_DB)
        a("s_lshl_b32 s%d, s%d, 2", S_DB, S_DB)
        a("s_lshr_b32 s10, s5, 3")
        a("s_add_u32 s%d, s%d, s10", S_DB, S_DB)
    else:
        a("s_lshl_b32 s%d, s4, 2", S_TB)
        a("s_and_b32 s10, s5, 3")
        a("s_add_u32 s%d, s%d, s10", S_TB, S_TB)
        a("s_lshr_b32 s%d, s5, 2", S_DB)
    a("s_lshr_b32 s%d, s3, 2", S_KH)
    a("s_and_b32 s%d, s3, 3", S_TQ)
    a("s_lshl_b32 s10, s%d, 1", S_TB)
    a("s_and_b32 s13, s3, 1")
    a("s_add_u32 s10, s10, s13")
    a("s_mul_i32 s11, s10, 112")
    a("s_lshr_b32 s12, s3, 1")
    a("s_mul_i32 s%d, s12, %d", S_W0S, 448 * 1024)
    a("s_lshl_b32 s13, s13, 15")
    a("s_add_u32 s%d, s%d, s13", S_W0S, S_W0S)
    a("s_mul_i32 s13, s12, 28")
    a("s_add_u32 s11, s11, s13")
    a("s_lshl_b32 s%d, s11, 10", S_HB)
    a("s_lshl_b32 s%d, s10, 7", S_GOFF)
    a("s_add_u32 s%d, s%d, %d", S_GOFF, S_GOFF, WS_G)
    a("s_lshl_b32 s10, s10, 15")
    a("s_lshl_b32 s11, s%d, 7", S_DB)
    a("s_lshl_b32 s12, s12, 5")
    a("s_add_u32 s%d, s11, s12", S_DOFF)
    a("s_add_u32 s%d, s10, s%d", S_OB, S_DOFF)
    a("s_mul_i32 s%d, s%d, %d", S_WSO, S_TQ, 448 * 1024)
    a("s_lshl_b32 s%d, s%d, 13", S_WLD, S_TQ)
    seq = [i % 7 for i in range(16)]
    val = sum(x << (4 * i) for i, x in enumerate(seq))
    a("s_mov_b32 s44, 0x%x", val & 0xffffffff)
    a("s_mov_b32 s45, 0x%x", val >> 32)
    if opt("rot", 4) == 1:
        a("s_lshl_b32 s10, s%d, 2", S_DB)
        a("s_lshr_b64 s[44:45], s[44:45], s10")
    if opt("rot", 4) == 4:
        a("s_and_b32 s10, s5, 7")
        a("s_lshl_b32 s10, s10, 2")
        a("s_lshr_b64 s[44:45], s[44:45], s10")
    if opt("rot", 4) == 5:
        a("s_and_b32 s10, s5, 7")
        a("s_lshr_b32 s13, s5, 3")
        a("s_lshl_b32 s13, s13, 1")
        a("s_add_u32 s10, s10, s13")
        a("s_sub_u32 s13, s10, 7")
        a("s_min_u32 s10, s10, s13")
        a("s_lshl_b32 s10, s10, 2")
        a("s_lshr_b64 s[44:45], s[44:45], s10")
    if opt("rot", 4) == 3:
        a("s_and_b32 s10, s5, 1")
        a("s_lshl_b32 s10, s10, 4")
        a("s_lshr_b64 s[44:45], s[44:45], s10")
    if opt("rot", 4) == 2:
        a("s_and_b32 s10, s5, 3")
        a("s_lshl_b32 s10, s10, 3")
        a("s_lshr_b64 s[44:45], s[44:45], s10")
    for rd in range(7):
        a("s_bfe_u32 s10, s44, 0x%x", (3 << 16) | (4 * rd))
        a("s_lshl_b32 s%d, s10, 12", S_RT + rd)
    a("v_lshlrev_b32 v%d, 4, v1", VH)
    a("v_lshrrev_b32 v%d, 3, v1", T0)
    a("v_lshlrev_b32 v%d, 10, v%d", T0, T0)
    a("v_bfe_u32 v%d, v1, 4, 1", T1)
    a("v_lshlrev_b32 v%d, 2, v%d", T1, T1)
    a("v_and_b32 v%d, 7, v1", T2)
    a("v_xor_b32 v%d, v%d, v%d", T2, T2, T1)
    a("v_lshl_add_u32 v%d, v%d, 4, v%d", T0, T2, T0)
    a("v_add_u32 v%d, s11, v%d", VWD, T0)
    a("v_lshrrev_b32 v%d, 5, v1", T0)
    a("v_bfe_u32 v%d, v1, 2, 2", T1)
    a("v_lshl_add_u32 v%d, v%d, 2, v%d", T0, T0, T1)
    a("v_lshlrev_b32 v%d, 7, v%d", T0, T0)
    a("v_bfe_u32 v%d, v1, 3, 1", T1)
    a("v_lshl_add_u32 v%d, v%d, 6, v%d", T0, T1, T0)
    a("v_bfe_u32 v%d, v1, 4, 1", T1)
    a("v_lshl_add_u32 v%d, v%d, 5, v%d", T0, T1, T0)
    a("v_and_b32 v%d, 1, v1", T1)
    a("v_lshl_add_u32 v%d, v%d, 4, v%d", T0, T1, T0)
    a("v_bfe_u32 v%d, v1, 1, 1", T1)
    a("v_lshl_add_u32 v%d, v%d, 3, v%d", T0, T1, T0)
    a("v_xor_b32 v%d, s12, v%d", T0, T0)
    a("s_lshl_b32 s12, s12, 8")
    a("v_add_u32 v%d, s12, v%d", VR0, T0)
    a("s_lshl_b32 s10, s3, 2")
    a("s_add_u32 s10, s10, %d", L_SY)
    a("v_mov_b32 v%d, s10", VSY)

def kreads():
    L = []
    for ks in range(8):
        L.append(("ds_read_b128 %s, v%d offset:%d" % (vr(KF + 8 * ks, 4), KA, ks * 16), ("k", ks)))
        L.append(("ds_read_b128 %s, v%d offset:%d" % (vr(KF + 8 * ks + 4, 4), KBa, ks * 16), ("k", ks)))
    return L
def run_kmfma(lg, fill, per):
    for ks in range(8):
        lg.need([("k", ks)])
        d = vr(KD, 4)
        a("v_mfma_f32_16x16x32_bf16 %s, %s, %s, %s", d, vr(KF + 8 * ks, 4), vr(KF + 8 * ks + 4, 4), d if ks else "0")
        for _ in range(per):
            if fill: lg.run(fill.pop(0))
    for f in fill: lg.run(f)
def kmfma_finish():
    lb = a.label("Lkm1"); le = a.label("Lkme")
    T = KF
    a("s_bitcmp1_b32 s3, 0")
    a("s_cbranch_scc1 %s", lb)
    a("v_cvt_pk_bf16_f32 v%d, v%d, v%d", T, KD, KD + 1)
    a("v_cvt_pk_bf16_f32 v%d, v%d, v%d", T + 1, KD + 2, KD + 3)
    a("ds_write_b64 v%d, %s", KW, vr(T, 2))
    a("s_branch %s", le)
    a(lb + ":")
    a("s_nop 7")
    a("s_mov_b32 s14, 0xaaaaaaaa")
    a("s_mov_b32 s15, 0xaaaaaaaa")
    a("v_cndmask_b32 v%d, v%d, v%d, s[14:15]", T + 12, KD, KD + 1)
    a("v_cndmask_b32 v%d, v%d, v%d, s[14:15]", T + 13, KD + 2, KD + 3)
    a("v_cvt_pk_bf16_f32 v%d, v%d, v%d", T, KD, KD)
    a("v_cvt_pk_bf16_f32 v%d, v%d, v%d", T + 1, KD, KD)
    a("v_cvt_pk_bf16_f32 v%d, v%d, v%d", T + 2, T + 12, KD + 1)
    a("v_cvt_pk_bf16_f32 v%d, v%d, v%d", T + 3, KD + 1, KD + 1)
    a("v_cvt_pk_bf16_f32 v%d, v%d, v%d", T + 4, KD + 2, KD + 2)
    a("v_cvt_pk_bf16_f32 v%d, v%d, v%d", T + 5, KD + 2, KD + 2)
    a("v_cvt_pk_bf16_f32 v%d, v%d, v%d", T + 6, T + 13, KD + 3)
    a("v_cvt_pk_bf16_f32 v%d, v%d, v%d", T + 7, KD + 3, KD + 3)
    a("s_mov_b64 exec, 0xffffffff")
    a("v_cvt_pk_bf16_f32 v%d, v%d, v%d", T + 1, KD, KD + 1)
    a("v_mov_b32 v%d, v%d", T + 2, T + 3)
    a("v_mov_b32 v%d, v%d", T + 3, T + 4)
    a("s_not_b64 exec, exec")
    a("ds_write_b128 v%d, %s offset:1024", KW, vr(T + 4, 4))
    a("s_mov_b64 exec, -1")
    a("ds_write_b128 v%d, %s", KW, vr(T, 4))
    a(le + ":")

def zero_pads_k():
    T = KF + 16
    a("v_mov_b32 v%d, 0", T)
    a("v_bfe_u32 v%d, v1, 4, 1", T + 1)
    a("v_and_b32 v%d, 15, v1", T + 2)
    a("v_mul_u32_u24 v%d, %d, v%d", T + 3, KCH, T + 1)
    a("v_lshl_add_u32 v%d, v%d, 2, v%d", T + 3, T + 2, T + 3)
    a("v_mul_u32_u24 v%d, %d, v%d", T + 4, CYCH, T + 1)
    a("v_lshl_add_u32 v%d, v%d, 2, v%d", T + 4, T + 2, T + 4)
    a("v_lshlrev_b32 v%d, 2, v1", T + 5)
    a("s_mov_b64 exec, 0xffffffff")
    a("ds_write_b32 v%d, v%d offset:%d", T + 3, T, L_K)
    a("ds_write_b32 v%d, v%d offset:%d", T + 4, T, L_CY)
    a("ds_write_b32 v%d, v%d offset:%d", T + 5, T, L_SY)
    a("s_mov_b64 exec, -1")
def zero_pads_u():
    T = KD
    for i in range(4): a("v_mov_b32 v%d, 0", T + i)
    a("v_and_b32 v%d, 31, v1", 235)
    a("v_lshlrev_b32 v%d, 4, v%d", 235, 235)
    a("v_lshrrev_b32 v%d, 5, v1", 234)
    a("v_mul_u32_u24 v%d, %d, v%d", 234, UCH, 234)
    a("v_add_u32 v%d, v%d, v%d", 235, 235, 234)
    a("ds_write_b128 v%d, %s offset:%d", 235, vr(T, 4), L_U)
def sig(vaddr, off):
    a("s_mov_b64 exec, 1")
    a("ds_write_b32 v%d, v6 offset:%d", vaddr, off)
    a("s_mov_b64 exec, -1")
VUL2 = 156
def u_load():
    a("v_lshlrev_b32 v%d, 5, v1", VUL + 4)
    a("s_lshl_b32 s10, s2, 13")
    a("s_lshl_b32 s11, s%d, 11", S_TQ)
    a("s_add_u32 s10, s10, s11")
    a("s_add_u32 s10, s10, %d", WS_UT)
    a("buffer_load_dwordx4 %s, v%d, %s, s10 offen sc1", vr(VUL, 4), VUL + 4, sr(SWS, 4))
    a("buffer_load_dwordx4 %s, v%d, %s, s10 offen offset:16 sc1", vr(VUL2, 4), VUL + 4, sr(SWS, 4))
def u_write():
    a("s_lshl_b32 s11, s%d, 10", S_TQ)
    a("v_add_u32 v%d, s11, v%d", VUL + 4, VH)
    a("ds_write_b128 v%d, %s offset:%d", VUL + 4, vr(VUL, 4), L_U + 512)
    a("ds_write_b128 v%d, %s offset:%d", VUL + 4, vr(VUL2, 4), L_U + UCH + 512)
def onwave(w, fn):
    lb = a.label("Low")
    a("s_cmp_lg_u32 s3, %d", w)
    a("s_cbranch_scc1 %s", lb)
    fn()
    a(lb + ":")
def role(lo, hi):
    l1 = a.label("Lr1"); l2 = a.label("Lr2")
    a("s_cmp_ge_u32 s3, 4")
    a("s_cbranch_scc1 %s", l1)
    if lo is None:
        a.lines[-1] = a.lines[-1].replace("scc1", "scc0")
        hi()
        a(l1 + ":")
        return
    if lo: lo()
    if hi:
        a("s_branch %s", l2)
        a(l1 + ":")
        hi()
        a(l2 + ":")
    else:
        a(l1 + ":")

def nonce_issue():
    a("global_load_dwordx2 %s, v%d, %s sc1", vr(VN, 2), VZ, sr(P_DBG, 2))
slow = []
def nonce_check():
    ok = a.label("Lnok"); lp = a.label("Lnlp")
    a(ok + "r:")
    a("v_readfirstlane_b32 s10, v%d", VN + 1)
    a("v_readfirstlane_b32 s%d, v%d", S_NONCE, VN)
    a("s_cmp_lg_u32 s10, 1")
    a("s_cbranch_scc1 %s", lp)
    a(ok + ":")
    def sp():
        a(lp + ":")
        a("s_add_u32 s%d, s%d, 1", S_SPIN, S_SPIN)
        a("s_cmp_ge_u32 s%d, %d", S_SPIN, SPINMAX)
        a("s_cbranch_scc1 %s", ok)
        a("s_sleep 2")
        a("global_load_dwordx2 %s, v%d, %s sc1", vr(VN, 2), VZ, sr(P_DBG, 2))
        a("s_waitcnt vmcnt(0)")
        a("s_branch %sr", ok)
    slow.append(sp)
def poll_issue(n):
    a("v_min_u32 v%d, %d, v1", VN + 2, n - 1)
    a("v_lshlrev_b32 v%d, 2, v%d", VN + 2, VN + 2)
    a("buffer_load_dword v%d, v%d, %s, s%d offen sc1", VN - 1, VN + 2, sr(SWS, 4), S_PB)
def poll_check(sleep=2):
    ok = a.label("Lpok"); lp = a.label("Lplp")
    a(ok + "r:")
    a("v_cmp_ne_u32 vcc, s%d, v%d", S_NONCE, VN - 1)
    a("s_cmp_lg_u64 vcc, 0")
    a("s_cbranch_scc1 %s", lp)
    a(ok + ":")
    def sp():
        a(lp + ":")
        a("s_add_u32 s%d, s%d, 1", S_SPIN, S_SPIN)
        a("s_cmp_ge_u32 s%d, %d", S_SPIN, SPINMAX)
        a("s_cbranch_scc1 %s", ok)
        if sleep: a("s_sleep %d", sleep)
        a("buffer_load_dword v%d, v%d, %s, s%d offen sc1", VN - 1, VN + 2, sr(SWS, 4), S_PB)
        a("s_waitcnt vmcnt(0)")
        a("s_branch %sr", ok)
    slow.append(sp)
def flag_store(sbase):
    a("v_mov_b32 v%d, 0", VN)
    a("v_mov_b32 v%d, s%d", VN + 1, S_NONCE)
    a("s_mov_b64 exec, 1")
    a("buffer_store_dword v%d, v%d, %s, %s offen sc1", VN + 1, VN, sr(SWS, 4), sbase)
    a("s_mov_b64 exec, -1")
def lds_wait(vaddr, off, vtmp, sleep=1):
    lp = a.label("Llw"); ok = a.label("Llok")
    a(lp + ":")
    a("ds_read_b32 v%d, v%d offset:%d", vtmp, vaddr, off)
    a("s_add_u32 s%d, s%d, 1", S_SPIN, S_SPIN)
    a("s_waitcnt lgkmcnt(0)")
    a("v_cmp_eq_u32 vcc, 0, v%d", vtmp)
    a("s_cmp_eq_u64 vcc, 0")
    a("s_cbranch_scc1 %s", ok)
    if sleep: a("s_sleep %d", sleep)
    a("s_cmp_lt_u32 s%d, %d", S_SPIN, SPINMAX * 16)
    a("s_cbranch_scc1 %s", lp)
    a(ok + ":")

a("s_cmp_ge_u32 s2, 256")
a("s_cbranch_scc1 L_end")
if STAMP:
    a("s_memrealtime s[96:97]")
    a("s_memtime s[98:99]")
a("s_load_dwordx16 s[16:31], s[0:1], 0")
a("s_load_dwordx16 s[32:47], s[0:1], 64")
a("s_load_dwordx2 s[48:49], s[0:1], 128")
a("v_lshrrev_b32 v2, 6, v0")
a("s_lshr_b32 s5, s2, 3")
if opt("cpf", 1):
    a("s_getpc_b64 s[10:11]")
    a("L_pc:")
    a("s_lshl_b32 s12, s5, 10")
    a("v_lshl_add_u32 v3, v2, 7, s12")
    a("v_and_b32 v4, 1, v0")
    a("v_lshl_add_u32 v3, v4, 6, v3")
    a("v_min_u32 v3, L_end-L_pc, v3")
    a("global_load_dword v19, v3, s[10:11]")
a("v_and_b32 v1, 63, v0")
a("v_readfirstlane_b32 s3, v2")
a("s_and_b32 s4, s2, 7")
kgen_setup()
PRE_WAIT = opt("prewait", 0)
if not PRE_WAIT:
    a("s_waitcnt lgkmcnt(0)")
    kgen_loads()
a("s_mov_b32 s%d, 0", S_SPIN)
a("v_mov_b32 v%d, 0", VZ)
a("v_mov_b32 v%d, 0", VN + 2)
if STAMP: a("v_mov_b32 v255, 0")
a("s_lshr_b32 s6, s4, 1")
a("s_lshl_b32 s6, s6, 2")
a("s_and_b32 s7, s5, 3")
a("s_add_u32 s6, s6, s7")
a("s_and_b32 s7, s4, 1")
a("s_mul_i32 s7, s7, 7")
a("s_lshr_b32 s8, s5, 2")
a("s_add_u32 s7, s7, s8")
a("s_sub_u32 s7, s7, 1")
a("s_and_b32 s8, s3, 1")
a("s_lshr_b32 s9, s3, 1")
VX0, VX1, VW0, VW1 = 4, 5, 6, 7
VXR = 8
VWA, VWB = 12, 13
T0, T1, T2, T3 = 14, 15, 16, 17
a("s_lshl_b32 s10, s6, 7")
a("s_lshl_b32 s11, s3, 4")
a("s_add_u32 s10, s10, s11")
a("s_lshl_b32 s10, s10, 10")
a("v_lshrrev_b32 v%d, 3, v1", T0)
a("v_lshlrev_b32 v%d, 10, v%d", T0, T0)
a("v_lshrrev_b32 v%d, 4, v1", T1)
a("v_and_b32 v%d, 7, v1", T2)
a("v_xor_b32 v%d, v%d, v%d", T2, T2, T1)
a("v_lshl_add_u32 v%d, v%d, 4, v%d", T0, T2, T0)
a("v_add_u32 v%d, s10, v%d", VX0, T0)
a("v_xor_b32 v%d, 64, v%d", VX1, VX0)
a("v_add_u32 v%d, 0x2000, v%d", VX1, VX1)
a("s_and_b32 s12, s3, 3")
a("s_mul_i32 s10, s12, %d", 4 * 3584)
a("s_lshl_b32 s11, s7, 8")
a("s_add_u32 s10, s10, s11")
a("v_mul_u32_u24 v%d, 3584, v%d", T0, T1)
a("v_lshlrev_b32 v%d, 2, v%d", T2, T1)
a("v_and_b32 v%d, 15, v1", T3)
a("v_xor_b32 v%d, v%d, v%d", T2, T2, T3)
a("v_lshl_add_u32 v%d, v%d, 4, v%d", T0, T2, T0)
a("v_add_u32 v%d, s10, v%d", VW0, T0)
S_RO, S_LO = 60, 80
S_LO = 20
for j in range(4):
    a("s_add_u32 s10, s5, %d", j if opt("share", 1) else 0) if opt("share", 1) else a("s_mov_b32 s10, %d", j)
    a("s_and_b32 s10, s10, 3")
    a("s_mul_i32 s%d, s10, %d", S_RO + j, 16 * 3584)
a("s_lshl_b32 s%d, s3, 11", S_W2K)
CC = opt("cc", 8)
S_KO = 99 if not STAMP else 93
if CC < 8:
    NR = 8 - CC
    a("s_and_b32 s10, s5, 3")
    a("s_mul_i32 s10, s10, %d", opt("rm", 2))
    a("s_lshr_b32 s11, s5, 2")
    a("s_add_u32 s10, s10, s11")
    a("s_mul_i32 s11, s10, %d", (65536 + NR - 1) // NR)
    a("s_lshr_b32 s11, s11, 16")
    a("s_mul_i32 s11, s11, %d", NR)
    a("s_sub_u32 s10, s10, s11")
    seq = [CC + (i % NR) for i in range(16)]
    val = sum(x << (4 * i) for i, x in enumerate(seq))
    a("s_mov_b32 s12, 0x%x", val & 0xffffffff)
    a("s_mov_b32 s13, 0x%x", val >> 32)
    a("s_lshl_b32 s10, s10, 2")
    a("s_lshr_b64 s[12:13], s[12:13], s10")
    a("s_lshl_b32 s12, s12, %d", 4 * CC) if CC else None
    a("s_or_b32 s%d, s12, 0x%x", S_KO, sum(i << (4 * i) for i in range(CC)))
else:
    a("s_mov_b32 s%d, 0x76543210", S_KO)
a("s_and_b32 s10, s4, %d", opt("krot", 6))
a("s_mul_i32 s10, s10, 0x11111111")
a("s_add_u32 s%d, s%d, s10", S_KO, S_KO)
for r, n in ((SX, 2048 * 1024), (SG, 512 * 3584), (SWS, WS_BYTES), (SW, 1792 * 1024), (SO, 2048 * 1024)):
    a("s_mov_b32 s%d, 0x%x", r + 2, n)
    a("s_mov_b32 s%d, 0x20000", r + 3)
a("s_cmp_lt_u32 s5, 4")
a("s_cselect_b32 s%d, 1, 0", S_ISAUX)
if PRE_WAIT:
    a("s_waitcnt lgkmcnt(0)")
    kgen_loads()
def srd_base(r, p):
    a("s_mov_b32 s%d, s%d", r, p)
    a("s_and_b32 s%d, s%d, 0xffff", r + 1, p + 1)
srd_base(SX, P_U)
a("s_mov_b32 s%d, s%d", S_KR, S_KO)
a("s_cmp_lg_u32 s%d, 0", S_ISAUX)
a("s_cbranch_scc1 L_aux")

vm = []
def vmwait(tags):
    idx = [i for i, t in enumerate(vm) if t in tags]
    return len(vm) - 1 - max(idx)
def dma1(stage, j, m0r=None):
    slot = stage % 3
    if j == 0 or (j == 3 and stage < 2):
        a("s_bfe_u32 s%d, s%d, 0x%x", S_T, S_KR, (3 << 16) | (4 * stage))
        a("s_mul_i32 s%d, s%d, %d", S_T2, S_T, 64 * 3584)
        a("s_lshl_b32 s%d, s%d, 7", S_T, S_T)
    if j in (1, 2):
        a("s_add_u32 m0, s%d, %d", S_W2K, XB[slot] * BLK + (j - 1) * 1024)
        a("buffer_load_dwordx4 v%d, %s, s%d offen lds", VX0 + j - 1, sr(SX, 4), S_T)
    else:
        p = 0 if j == 0 else j - 2
        a("s_add_u32 m0, s%d, %d", S_LO + p, GB[slot] * BLK)
        a("s_add_u32 s%d, s%d, s%d", S_T3, S_T2, S_RO + p)
        a("buffer_load_dwordx4 v%d, %s, s%d offen lds", VW0, sr(SG, 4), S_T3)
    if m0r is not None: a("s_mov_b32 m0, s%d", m0r)
    vm.append(("G1", stage))
S_T3 = 24
vm += [("KP", 0)] * 7
a("s_cmp_ge_u32 s3, 4")
a("s_cselect_b32 s%d, s%d, s%d", SG, P_WU, P_WG)
a("s_cselect_b32 s%d, s%d, s%d", SG + 1, P_WU + 1, P_WG + 1)
a("s_and_b32 s%d, s%d, 0xffff", SG + 1, SG + 1)
a("s_lshr_b32 s10, s3, 2")
a("s_lshl_b32 s10, s10, 14")
a("s_and_b32 s11, s3, 3")
a("s_lshl_b32 s11, s11, 10")
a("s_add_u32 s10, s10, s11")
for j in range(4):
    a("s_add_u32 s11, s5, %d", j) if opt("share", 1) else a("s_mov_b32 s11, %d", j)
    a("s_and_b32 s11, s11, 3")
    a("s_lshl_b32 s11, s11, 12")
    a("s_add_u32 s%d, s10, s11", S_LO + j)
    if j == 0: dma1(0, 0); dma1(0, 1); dma1(0, 2)
stamp(11)
def common_srds():
    srd_base(SWS, P_WS); srd_base(SW, P_WD); srd_base(SO, P_OUT)
later_addrs(T0, T1, T2)
for j in range(3): dma1(1, j)
def g1_read_addrs():
    a("v_and_b32 v%d, 31, v1", T0)
    a("v_lshrrev_b32 v%d, 5, v1", T1)
    a("v_bfe_u32 v%d, v1, 1, 3", T2)
    a("v_xor_b32 v%d, v%d, v%d", T2, T2, T1)
    a("v_lshlrev_b32 v%d, 7, v%d", T0, T0)
    a("v_lshl_add_u32 v%d, v%d, 4, v%d", T0, T2, T0)
    a("s_lshl_b32 s10, s8, 13")
    a("v_add_u32 v%d, s10, v%d", VXR, T0)
    for ks in range(1, 4): a("v_xor_b32 v%d, %d, v%d", VXR + ks, ks << 5, VXR)
    a("v_bfe_u32 v%d, v1, 2, 2", T0)
    a("v_lshl_add_u32 v%d, v%d, 3, v%d", T2, T1, T0)
    a("v_lshlrev_b32 v%d, 8, v%d", T2, T2)
    a("v_xor_b32 v%d, s9, v%d", T0, T0)
    a("v_lshl_add_u32 v%d, v%d, 6, v%d", T2, T0, T2)
    a("v_bfe_u32 v%d, v1, 4, 1", T0)
    a("v_lshl_add_u32 v%d, v%d, 5, v%d", T2, T0, T2)
    a("v_and_b32 v%d, 3, v1", T0)
    a("v_lshl_add_u32 v%d, v%d, 3, v%d", T2, T0, T2)
    a("v_add_u32 v%d, %d, v%d", VWA, 4 * BLK, T2)
    a("v_add_u32 v%d, %d, v%d", VWB, 8 * BLK, T2)
def mall_prefetch():
    a("s_sub_u32 s25, s5, 4")
    a("s_lshl_b32 s25, s25, 3")
    a("s_add_u32 s25, s25, s3")
    a("s_mul_i32 s26, s4, 224")
    a("s_add_u32 s25, s25, s26")
    a("s_lshl_b32 s25, s25, 10")
    a("v_lshlrev_b32 v18, 4, v1")
    a("buffer_load_dwordx4 v[52:55], v18, %s, s25 offen", sr(SW, 4))
    vm.append(("MPF", 0))
def late_setup():
    common_srds()
    a("s_lshl_b32 s10, s6, 2")
    a("s_lshl_b32 s11, s8, 1")
    a("s_add_u32 s10, s10, s11")
    a("s_mul_i32 s10, s10, 112")
    a("s_lshl_b32 s11, s7, 3")
    a("s_add_u32 s10, s10, s11")
    a("s_lshl_b32 s11, s9, 1")
    a("s_add_u32 s10, s10, s11")
    a("s_lshl_b32 s%d, s10, 10", S_HST)
    a("s_lshl_b32 s10, s6, 7")
    a("s_lshl_b32 s11, s7, 2")
    a("s_add_u32 s10, s10, s11")
    a("s_add_u32 s%d, s10, %d", S_FH, F_H)
    later_addrs2(T0, T1, T2)
FR = 20
ACC = 84
def reads1(step):
    st, ks = step // 4, step % 4
    slot = st % 3
    f = FR + (step % 2) * 16
    def xr(tt): return ("ds_read_b128 %s, v%d offset:%d" % (vr(f + 4 * tt, 4), VXR + ks, XB[slot] * BLK + tt * 4096), (step, "x", tt))
    def wr(gu, hf):
        blk = GB[slot] + gu
        reg, rel = (VWA, blk - 4) if blk < 8 else (VWB, blk - 8)
        return ("ds_read_b64_tr_b16 %s, v%d offset:%d" % (vr(f + 8 + 4 * gu + 2 * hf, 2), reg, rel * BLK + ks * 4096 + hf * 1024), (step, "w", gu))
    return [xr(0), wr(0, 0), wr(0, 1), wr(1, 0), wr(1, 1), xr(1)]
def kgen_all(dmas):
    khead, ktail = kgen_valu(False)
    for i in khead: a(i)
    if opt("diag1", 0): stamp(7, True)
    a("s_mov_b32 m0, s%d", S_TM0)
    wr = {w_.split()[1]: w_ for w_ in kgen_writes()}
    q = []
    n = len(ktail); k = 0
    for n_, i in enumerate(ktail):
        a(i)
        if q and n_ % 1 == 0 and len(q) > 1: a(q.pop(0))
        if i.startswith("v_cvt"): q.append(wr[i.split()[1].rstrip(",")])
        if dmas and n_ >= opt("d1start", 40) and (n_ - opt("d1start", 40)) % opt("d1step", 20) == 0: dmas.pop(0)()
    for w_ in q: a(w_)
    for d in dmas: d()
def touch(stage):
    a("s_bfe_u32 s10, s%d, 0x%x", S_KR, (3 << 16) | (4 * stage))
    a("s_mul_i32 s10, s10, %d", 64 * 3584)
    a("s_add_u32 s10, s10, s%d", S_RO)
    a("buffer_load_dwordx4 v[52:55], v%d, %s, s10 offen", VW0, sr(SG, 4))
    vm.append(("T", 0))
a("s_waitcnt vmcnt(%d)", vmwait([("KP", 0)]))
stamp(0)
kgen_all([(lambda j=j: dma1(0, j, S_TM0)) for j in range(3, 6)])
stamp(14)
a("s_waitcnt lgkmcnt(0)")
a("s_barrier")
stamp(12)
lg = Lg()
for r in kreads(): lg.issue(*r)
g1_read_addrs()
run_kmfma(lg, [], 0)
for j in range(3, 6): dma1(1, j)
a("s_waitcnt vmcnt(%d)", vmwait([("G1", 0)]))
a("s_barrier")
stamp(1)
lg = Lg()
for r in reads1(0): lg.issue(*r)
kv = a.capture(late_setup)
pend = {}
def at(g, item): pend.setdefault(g, []).append(item)
for j in range(6): at([0, 2, 4, 6, 8, 10][j], lambda j=j: dma1(2, j))
class Raw:
    def __init__(self, f): self.f = f
at(1, Raw(kmfma_finish))

DG = [0, 3, 5, 8, 10, 13]
DGF = [0, 1, 2, 3, 4, 5]
NFAST = opt('nfast', 0)
KVG = opt("kvg", 3)
WST = 144
WSTO = {5: 0, 4: 32, 6: 64}
W4T = opt("w4t", 0)
W2T = opt("w2t", 0)
W1T = opt("w1t", 1)
def stage_w(rd, i0=0, n=8):
    a("s_lshl_b32 s13, s%d, 4", S_RT + rd)
    a("s_add_u32 s13, s13, s%d", S_WSO)
    if i0: a("s_add_u32 s13, s13, %d", i0 * 8192)
    for i in range(i0, i0 + n):
        a("buffer_load_dwordx4 %s, v%d, %s, s13 offen", vr(WST + WSTO[rd] + 4 * i, 4), VWD, sr(SW, 4))
        if i < i0 + n - 1: a("s_add_u32 s13, s13, 8192")
def dma_w(rd, i):
    a("s_lshl_b32 s10, s3, 12")
    a("s_add_u32 m0, s10, %d", WB[rd] * BLK + i * 1024)
    a("s_lshl_b32 s10, s%d, 4", S_RT + rd)
    a("s_add_u32 s10, s10, s%d", S_W0S)
    a("s_add_u32 s10, s10, %d", i * 8192)
    a("buffer_load_dwordx4 v%d, %s, s10 offen lds", VWD, sr(SW, 4))
    vm.append(("W0", 0))
S_PFI = 101
def wd_prefetch(slot):
    if slot == 0:
        a("s_sub_u32 s%d, s5, 4", S_PFI)
        a("s_lshl_b32 s%d, s%d, 3", S_PFI, S_PFI)
        a("s_add_u32 s%d, s%d, s3", S_PFI, S_PFI)
        a("s_lshl_b32 s%d, s%d, 10", S_PFI, S_PFI)
        a("v_lshlrev_b32 v18, 4, v1")
    a("s_add_u32 s25, s4, %d", slot)
    a("s_and_b32 s25, s25, 7")
    a("s_mul_i32 s25, s25, %d", 224 * 1024)
    a("s_add_u32 s25, s25, s%d", S_PFI)
    a("buffer_load_dwordx4 v[52:55], v18, %s, s25 offen", sr(SW, 4))
    vm.append(("PF", 0))
PF = opt("pf", 0)
for step in range(32):
    st, ks = step // 4, step % 4
    f = FR + (step % 2) * 16
    nxt = reads1(step + 1) if step < 31 else []
    for i, (gu, tt) in enumerate([(0, 0), (1, 0), (0, 1), (1, 1)]):
        d = vr(ACC + (gu * 2 + tt) * 16, 16)
        lg.need([(step, "w", gu), (step, "x", tt)])
        a("v_mfma_f32_32x32x16_bf16 %s, %s, %s, %s", d, vr(f + 8 + 4 * gu, 4), vr(f + 4 * tt, 4), d if step else "0")
        for _ in range(4 if step == 31 else 2):
            if nxt: lg.issue(*nxt.pop(0))
        items = pend.pop(step * 4 + i, [])
        for p in items:
            if isinstance(p, Raw): p.f()
            else: lg.run(p)
        budget = opt("kvb", 4) if not items else opt("kvb2", 1)
        while kv:
            c_ = opt("sc", 1) if kv[0].startswith("s_") else 1
            if c_ > budget: break
            budget -= c_
            lg.run(kv.pop(0))
    if ks == 2:
        assert not pend, (step, len(pend))
        g0 = (step + 1) * 4
        if st < 7:
            tags = [("G1", st + 1)]
            a("s_waitcnt vmcnt(%d) lgkmcnt(0)", vmwait(tags))
        else:
            if opt("stg", 0): stamp(11, True)
            a("s_waitcnt lgkmcnt(0)")
            if opt("stg", 0): stamp(12, True)
        lg.drained()
        a("s_barrier")
        if opt("stg", 0) and st == 7: stamp(14, True)
        if opt("stg", 0) and st < 7: stamp([4, 5, 6, 7, 8, 10, 13][st], True)
        if st + 3 <= 7:
            for j in range(6): at(g0 + (DGF if st < NFAST else DG)[j], lambda j=j, s=st + 3: dma1(s, j))
        if st == opt("mpfst", 9): at(g0 + 15, mall_prefetch)
        if st == 0: at(g0 + 6, Raw(lambda: onwave(0, zero_pads_k)))
        if PF and st <= 4:
            sched = {1: [[0], [1, 2], [3, 4], [5, 6], [7]], 2: [[0, 1], [2, 3], [4, 5], [6, 7], []], 3: [[], [0], [1, 2], [3, 4], [5, 6, 7]]}[PF][st]
            for k_, sl in enumerate(sched): at(g0 + 1 + k_ + (1 if k_ == 2 else 0), lambda sl=sl: wd_prefetch(sl))
        if st == 5:
            assert not kv
            def f_():
                def p_():
                    a("s_mov_b32 s%d, %d", S_PB, F_A)
                    poll_issue(32)
                onwave(0, p_)
                nonce_issue(); vm.append(("X", 0))
            at(g0 + opt("pagap", 3), f_)
            for i_ in range(4): at(g0 + 5 + 2 * i_, lambda i_=i_: dma_w(0, i_))
            at(g0 + 1, Raw(lambda: onwave(1, zero_pads_u)))
            def f_():
                a("s_waitcnt vmcnt(%d)", vmwait([("X", 0)]))
                nonce_check()
                onwave(0, lambda: poll_check(16))
            at(g0 + 15, f_)
        if st == 6:
            def f_():
                role(u_load, None)
                vm.append(("U", 0))
            at(g0, f_)
            if W1T:
                for i_ in range(4): at(g0 + 8 + 2 * i_, lambda i_=i_: dma_w(1, i_))
            if W4T:
                for i_ in range(4): at(g0 + 9 + 2 * i_, lambda i_=i_: role(None, lambda: stage_w(4, 2 * i_, 2)))
        if st == 7 and W2T:
            for i_ in range(4): at(g0 + i_, lambda i_=i_: dma_w(2, i_))
assert not pend, len(pend)
NUW = vmwait([("U", 0)]) + 4
stamp(2)
for tt in range(2):
    g = ACC + tt * 16; u = ACC + (2 + tt) * 16
    for o in range(2):
        for q in range(8 * o, 8 * o + 8):
            a("v_mul_f32 v%d, v%d, v%d", g + q, g + q, u + q)
        dst = FR + 8 * tt + 4 * o
        for q in range(4):
            a("v_cvt_pk_bf16_f32 v%d, v%d, v%d", dst + q, g + 8 * o + 2 * q, g + 8 * o + 2 * q + 1)
        if 2 * tt + o < opt("nhs", 4):
            a("buffer_store_dwordx4 %s, v%d, %s, s%d offen offset:%d %s", vr(dst, 4), VH, sr(SWS, 4), S_HST, 1024 * o, ["sc1", "sc0 sc1", "sc1 nt", "", "nt"][opt("hst", 0)])
    if tt == 0: a("s_add_u32 s%d, s%d, %d", S_HST, S_HST, 112 * 1024)
a("s_branch L_post")

a("L_aux:")
common_srds()
a("s_lshl_b32 s6, s4, 2")
a("s_add_u32 s6, s6, s5")
PITCH = 1040
LA = 6 * BLK - 1024
LGW = 0
a("v_lshlrev_b32 v4, 4, v1")
a("v_mov_b32 v10, 0")
a("s_mov_b32 s9, %d", F_E)
a("buffer_load_dword v12, v10, %s, s9 offen sc1", sr(SWS, 4))
a("s_lshl_b32 s7, s6, 16")
a("s_lshl_b32 s8, s3, 13")
a("s_add_u32 s7, s7, s8")
a("s_mul_i32 s8, s3, %d", 8 * PITCH)
for j in range(8):
    a("s_add_u32 m0, s8, %d", LA + j * PITCH)
    a("s_add_u32 s11, s7, %d", j * 1024)
    a("buffer_load_dwordx4 v4, %s, s11 offen lds", sr(SX, 4))
a("global_load_dwordx4 v[28:31], v4, %s", sr(P_GW, 2))
a("s_or_b32 s10, s2, s3")
a("s_cmp_lg_u32 s10, 0")
a("s_cbranch_scc1 L_nononce")
a("s_mov_b32 s10, 0x9e3779b1")
a("s_waitcnt vmcnt(9)")
a("v_mul_lo_u32 v12, v12, s10")
a("v_add_u32 v12, 0x7f4a7c15, v12")
a("v_mov_b32 v13, 1")
a("s_mov_b64 exec, 1")
a("global_store_dwordx2 v10, v[12:13], %s sc1", sr(P_DBG, 2))
a("buffer_store_dword v12, v10, %s, s9 offen sc1", sr(SWS, 4))
a("s_mov_b64 exec, -1")
a("L_nononce:")
a("v_and_b32 v5, 7, v0")
a("v_lshlrev_b32 v5, 4, v5")
a("v_lshrrev_b32 v6, 4, v1")
a("v_bfe_u32 v7, v1, 2, 2")
a("v_lshl_add_u32 v7, v7, 2, v6")
a("v_mul_u32_u24 v7, %d, v7", PITCH)
a("v_and_b32 v8, 3, v1")
a("v_lshl_add_u32 v7, v8, 3, v7")
a("s_and_b32 s9, s3, 1")
a("s_mul_i32 s10, s9, %d", 32 * PITCH)
a("s_lshr_b32 s11, s3, 1")
a("s_lshl_b32 s12, s11, 8")
a("s_add_u32 s10, s10, s12")
a("s_add_u32 s10, s10, %d", LA)
a("v_add_u32 v7, s10, v7")
a("v_bfe_u32 v8, v1, 1, 3")
a("v_lshlrev_b32 v8, 13, v8")
a("v_lshl_add_u32 v8, v6, 5, v8")
a("v_and_b32 v9, 1, v1")
a("v_lshl_add_u32 v8, v9, 4, v8")
a("s_lshl_b32 s12, s11, 19")
a("s_lshl_b32 s13, s6, 1")
a("s_add_u32 s13, s13, s9")
a("s_lshl_b32 s13, s13, 7")
a("s_add_u32 s12, s12, s13")
a("s_add_u32 s12, s12, %d", WS_UT)
a("v_lshrrev_b32 v9, 3, v0")
a("v_mul_u32_u24 v10, %d, v9", PITCH)
a("v_add_u32 v10, v10, v5")
a("v_add_u32 v10, %d, v10", LA)
a("s_waitcnt vmcnt(0)")
a("ds_write_b128 v4, v[28:31] offset:%d", LGW)
a("s_waitcnt lgkmcnt(0)")
a("s_barrier")
stamp(0)
for j in range(8):
    for hf in range(2):
        a("ds_read_b64_tr_b16 %s, v7 offset:%d", vr(64 + 4 * j + 2 * hf, 2), hf * 16 * PITCH + j * 32)
nonce_issue()
for j in range(8):
    a("s_waitcnt lgkmcnt(%d)", 14 - 2 * j)
    a("s_add_u32 s13, s12, %d", j * 65536)
    a("buffer_store_dwordx4 %s, v8, %s, s13 offen sc1", vr(64 + 4 * j, 4), sr(SWS, 4))
for j in range(8):
    a("ds_read_b128 %s, v10 offset:%d", vr(96 + 4 * j, 4), j * 128)
    a("ds_read_b128 %s, v5 offset:%d", vr(32 + 4 * j, 4), LGW + j * 128)
a("v_mov_b32 v11, 0")
a("v_mov_b32 v12, 0")
a("s_waitcnt lgkmcnt(0)")
for j in range(32):
    a("v_dot2_f32_bf16 v%d, v%d, v%d, v%d", 11 + j % 2, 32 + j, 96 + j, 11 + j % 2)
a("v_add_f32 v11, v11, v12")
a("v_add_f32_dpp v11, v11, v11 quad_perm:[1,0,3,2] row_mask:0xf bank_mask:0xf")
a("v_add_f32_dpp v11, v11, v11 quad_perm:[2,3,0,1] row_mask:0xf bank_mask:0xf")
a("v_add_f32_dpp v11, v11, v11 row_half_mirror row_mask:0xf bank_mask:0xf")
a("v_mul_f32 v11, 0xbfb8aa3b, v11")
a("v_exp_f32 v11, v11")
a("v_add_f32 v11, 1.0, v11")
a("v_rcp_f32 v11, v11")
a("v_lshlrev_b32 v9, 2, v9")
a("s_waitcnt vmcnt(0)")
nonce_check()
a("s_barrier")
a("s_cmp_lg_u32 s3, 0")
a("s_cbranch_scc1 L_auxnf")
a("s_lshl_b32 s10, s6, 2")
a("s_add_u32 s10, s10, %d", F_A)
flag_store("s10")
a("L_auxnf:")
stamp(1)
a("s_lshl_b32 s13, s6, 8")
a("s_add_u32 s13, s13, %d", WS_G)
a("v_cmp_eq_u32 vcc, 0, v5")
a("s_mov_b64 exec, vcc")
a("buffer_store_dword v11, v9, %s, s13 offen sc1", sr(SWS, 4))
a("s_mov_b64 exec, -1")
later_addrs(T0, T1, T2)
later_addrs2(T0, T1, T2)
if opt("apf", 1):
    a("s_lshl_b32 s%d, s6, 3", S_PFI)
    a("s_add_u32 s%d, s%d, s3", S_PFI, S_PFI)
    a("s_lshr_b32 s10, s%d, 6", S_PFI)
    a("s_mul_i32 s10, s10, 448")
    a("s_and_b32 s11, s%d, 63", S_PFI)
    a("s_add_u32 s10, s10, s11")
    a("s_lshl_b32 s10, s10, 10")
    for k_ in range(7):
        a("buffer_load_dwordx4 v[52:55], v%d, %s, s10 offen", VH, sr(SW, 4))
        a("s_add_u32 s10, s10, 65536")
kgen_all([])
a("s_waitcnt lgkmcnt(0)")
a("s_barrier")
lg = Lg()
for r in kreads(): lg.issue(*r)
run_kmfma(lg, [], 0)
def p_():
    a("s_mov_b32 s%d, %d", S_PB, F_A)
    poll_issue(32)
    a("s_waitcnt vmcnt(0)")
    poll_check(16)
onwave(0, p_)
a("s_waitcnt vmcnt(0)")
a("s_barrier")
role(u_load, None)
kmfma_finish()
onwave(0, zero_pads_k)
onwave(1, zero_pads_u)
def p_():
    a("s_lshl_b32 s10, s6, 2")
    a("s_add_u32 s10, s10, %d", F_G)
    flag_store("s10")
onwave(4, p_)
a("s_waitcnt vmcnt(0)")
for rd_ in range(1 + W1T + W2T):
    for i_ in range(4): dma_w(rd_, i_)
if W4T: role(None, lambda: stage_w(4))
a("s_waitcnt lgkmcnt(0)")
a("s_barrier")
stamp(2)

a("L_post:")
VA, VB, VC, VY = 2, 3, 4, 5
a("v_mov_b32 v%d, v%d", VA, PVA)
a("v_mov_b32 v%d, v%d", VB, PVB)
a("v_mov_b32 v%d, v%d", VC, PVC)
a("v_mov_b32 v%d, v%d", VY, PVY)
a("v_mov_b32 v6, 1")
a("v_mov_b32 v7, %d", L_SY)
stamp(3)
a("s_cmp_ge_u32 s3, 4")
a("s_cbranch_scc1 L_help")

HF = 112
HRING = 8
VO, EU, ED = 14, 20, 24
def eops():
    t1, t2, t3 = 17, 18, 19
    a("v_and_b32 v%d, 31, v1", t1)
    a("v_lshrrev_b32 v%d, 5, v1", t2)
    a("v_lshlrev_b32 v%d, 4, v%d", t3, t2)
    a("v_lshl_add_u32 v%d, v%d, 10, v%d", VO, t1, t3)
    a("buffer_load_dwordx4 %s, v%d, %s, s%d offen", vr(EU, 4), VO, sr(SX, 4), S_OB)
    a("v_add_u32 v%d, s%d, v%d", t3, S_DOFF, t3)
    a("global_load_dwordx4 %s, v%d, %s", vr(ED, 4), t3, sr(P_DSK, 2))
def hload(j0, n, vml):
    for j in range(j0, j0 + n):
        if j % 4 == 0 or j == j0:
            a("s_add_u32 s%d, s%d, s%d", S_T, S_HB, S_RT + j // 4)
        a("buffer_load_dwordx4 %s, v%d, %s, s%d offen offset:%d%s", vr(HF + 4 * (j % HRING), 4), VH, sr(SWS, 4), S_T, (j % 4) * 1024, "" if opt("hplain", 0) else " sc1")
        vml.append(("H", j))

a("s_waitcnt vmcnt(%d)", NUW)
if opt("diag2", 0): stamp(10, True)
u_write()
sig(VSY, 96)
a("v_and_b32 v8, 3, v1")
a("v_lshl_add_u32 v8, v8, 2, v7")
lds_wait(8, 96, 9, 0)
if opt("diag2", 0): stamp(13, True)
if opt("prio", 0): a("s_setprio %d", opt("prio", 0))
a("s_bitcmp1_b32 s3, 0")
a("s_cbranch_scc1 L_set1")
BF = 112
AF = 8
AC = 28
C1POS = opt("c1pos", 20)
LOOK = opt("look", 6)
NC0 = opt("nc0", 6)
FPG = opt("fpg", 4)
vmc = None
for si, tiles in enumerate([[0, 3, 4, 7], [1, 2, 5, 6]]):
    if si == 1: a("L_set1:")
    lg = Lg()
    sched = []
    maxd = 4 * tiles[-1] + 3
    for dl in range(maxd + 1):
        for ti, jt in enumerate(tiles):
            if dl <= 4 * jt + 3: sched.append((dl, ti, jt))
    loads = []; seenA, seenB = set(), set()
    for pos, (dl, ti, jt) in enumerate(sched):
        if dl not in seenA: seenA.add(dl); loads.append(("A", dl, pos))
        e = 4 * jt - dl
        if e not in seenB: seenB.add(e); loads.append(("B", e, pos))
    lastuseA = {}
    for pos, (dl, ti, jt) in enumerate(sched): lastuseA[dl] = pos
    NA = 5
    def ld_instrs(kind, idx):
        if kind == "A":
            r = AF + 4 * (idx % NA)
            return ["ds_read_b64_tr_b16 %s, v%d offset:%d" % (vr(r + 2 * hf, 2), VA, 128 * idx + 32 * (1 - hf)) for hf in range(2)]
        return ["ds_read_b128 %s, v%d offset:%d" % (vr(BF + 4 * (idx + 3), 4), VB, 128 * (idx + 3))]
    li = 0; fill = []
    def recomb(ti):
        b = AC + 20 * ti
        L = []
        q1 = "quad_perm:[1,1,3,3] row_mask:0xf bank_mask:0xf"; q2 = "quad_perm:[2,2,2,2] row_mask:0xf bank_mask:0xf"
        L.append("v_mov_b32_dpp v%d, v%d %s" % (b + 16, b + 15, q1))
        for q in range(15, 0, -1):
            L.append("v_add_f32_dpp v%d, v%d, v%d %s" % (b + q, b + q - 1, b + q, q1))
        L.append("v_mov_b32_dpp v%d, v%d %s" % (b + 18, b + 16, q2))
        L.append("v_mov_b32_dpp v%d, v%d %s" % (b + 17, b + 15, q2))
        for q in range(16, 1, -1):
            L.append("v_add_f32_dpp v%d, v%d, v%d %s" % (b + q, b + q - 2, b + q, q2))
        return L
    started = set(); hold = 0
    for pos, (dl, ti, jt) in enumerate(sched):
        while li < len(loads) and loads[li][2] <= pos + LOOK:
            kind, idx, fp = loads[li]
            if kind == "A" and idx >= NA and lastuseA[idx - NA] >= pos: break
            for ins in ld_instrs(kind, idx): lg.issue(ins, (kind, idx))
            li += 1
        e = 4 * jt - dl
        lg.need([("A", dl), ("B", e)])
        d = vr(AC + 20 * ti, 16)
        a("v_mfma_f32_32x32x16_bf16 %s, %s, %s, %s", d, vr(AF + 4 * (dl % NA), 4), vr(BF + 4 * (e + 3), 4), d if ti in started else "0")
        started.add(ti)
        if opt("diag2", 0) and pos in (15, 39):
            stamp({15: 11, 39: 12}[pos], True); lg.drained()
        if pos == C1POS:
            a("s_waitcnt vmcnt(0)")
            lg.run(lambda: sig(VSY, 0))
        if hold > 0: hold -= 1
        else:
            for _ in range(FPG):
                if fill: a(fill.pop(0))
        if dl == 4 * jt + 3:
            if not fill: hold = 2
            fill += recomb(ti)
    stamp(4)
    for f in fill: a(f)
    a("s_mov_b32 s12, 0x11111111")
    a("s_mov_b32 s13, 0x11111111")
    a("s_mov_b64 exec, s[12:13]")
    for ti, jt in enumerate(tiles):
        a("ds_write_b128 v%d, %s offset:%d", VC, vr(AC + 20 * ti + 16, 4), 256 * jt + 16)
    a("s_mov_b64 exec, -1")
    sig(VSY, 32)
    a("v_xor_b32 v%d, 4, v%d", VB, VSY)
    stamp(5)
    lds_wait(VB, 32, VA)
    for ti, jt in enumerate(tiles):
        a("ds_read_b128 %s, v%d offset:%d", vr(AF + 4 * ti, 4), VC, 256 * jt)
    a("s_mov_b64 vcc, s[12:13]")
    a("s_mov_b32 s12, 0x33333333")
    a("s_mov_b32 s13, 0x33333333")
    for ti, jt in enumerate(tiles):
        b = AC + 20 * ti
        for q in range(2, 8):
            a("v_cvt_pk_bf16_f32 v%d, v%d, v%d", b + 16 + (q - 2) if q < 4 else b + q, b + 2 * q, b + 2 * q + 1)
    for ti, jt in enumerate(tiles):
        b = AC + 20 * ti
        a("s_waitcnt lgkmcnt(%d)", 3 - ti)
        for q in range(3):
            a("v_add_f32 v%d, v%d, v%d", b + q, b + q, AF + 4 * ti + q)
        a("v_cvt_pk_bf16_f32 v%d, v%d, v%d", b, b, b + 1)
        a("v_cvt_pk_bf16_f32 v%d, v%d, v%d", b + 1, b + 2, b + 3)
        q0 = "quad_perm:[0,0,0,0] row_mask:0xf bank_mask:0xf"
        a("v_cndmask_b32_dpp v%d, v%d, v%d, vcc %s", b + 2, b + 6, b + 16, q0)
        a("v_cndmask_b32_dpp v%d, v%d, v%d, vcc %s", b + 3, b + 7, b + 17, q0)
        a("v_cndmask_b32_dpp v%d, v%d, v%d, vcc %s", b, b + 4, b, q0)
        a("v_cndmask_b32_dpp v%d, v%d, v%d, vcc %s", b + 1, b + 5, b + 1, q0)
        a("s_mov_b64 exec, s[12:13]")
        a("buffer_store_dwordx4 %s, v%d, %s, s%d offen offset:%d sc1", vr(b, 4), VY, sr(SWS, 4), S_YB, 512 * jt)
        a("s_mov_b64 exec, -1")
    a("s_branch L_ycom")

a("L_ycom:")
a("ds_read_b32 v3, v7 offset:48")
eops()
def ypublish(n):
    lb = a.label("Lnyf")
    a("s_waitcnt vmcnt(%d)", n)
    sig(VSY, 64)
    a("s_cmp_lg_u32 s3, 0")
    a("s_cbranch_scc1 %s", lb)
    a("v_and_b32 v2, 3, v1")
    a("v_lshl_add_u32 v2, v2, 2, v7")
    lds_wait(2, 64, 3)
    a("s_lshl_b32 s10, s2, 2")
    a("s_add_u32 s10, s10, %d", F_Y)
    flag_store("s10")
    a(lb + ":")
    stamp(6)
a("s_waitcnt lgkmcnt(0)")
a("v_readfirstlane_b32 s10, v3")
a("s_cmp_eq_u32 s10, 0")
a("s_cbranch_scc1 L_ylate")
vmc = []
hload(0, NC0, vmc)
ypublish(NC0 + 2)
a("s_branch L_g2c")
a("L_ylate:")
ypublish(2)
lds_wait(7, 48, 3)
hload(0, NC0, [])
a("s_branch L_g2c")

a("L_help:")
def hl_list():
    L = []
    for rd in ([] if W1T else [1]) + ([3] if W2T else [2, 3]) + ([] if W4T else [4]) + [5, 6]:
        for i in range(8):
            def f(rd=rd, i=i):
                if rd < 4:
                    a("s_add_u32 m0, s%d, %d", S_WLD, WB[rd] * BLK + i * 1024)
                if i == 0:
                    a("s_lshl_b32 s13, s%d, 4", S_RT + rd)
                    a("s_add_u32 s13, s13, s%d", S_WSO)
                else:
                    a("s_add_u32 s13, s13, 8192")
                if rd < 4:
                    a("buffer_load_dwordx4 v%d, %s, s13 offen lds", VWD, sr(SW, 4))
                else:
                    a("buffer_load_dwordx4 %s, v%d, %s, s13 offen", vr(WST + WSTO[rd] + 4 * i, 4), VWD, sr(SW, 4))
            L.append(f)
    if opt("nohl", 0): L = L[:opt("nohl", 0)]
    return L
NPRE = opt("npre", 6)
for f in hl_list()[:NPRE]: f()
a("s_waitcnt vmcnt(%d)", NPRE)
sig(VSY, 0)
stamp(10)
a("s_cmp_lg_u32 s3, 4")
a("s_cbranch_scc1 L_hdma")
a("s_cmp_lg_u32 s%d, 0", S_ISAUX)
a("s_cbranch_scc1 L_nohf")
a("v_and_b32 v2, 7, v1")
a("v_lshl_add_u32 v2, v2, 2, v7")
lds_wait(2, 0, 3)
flag_store("s%d" % S_FH)
a("L_nohf:")
stamp(4)
a("s_lshr_b32 s%d, s%d, 1", S_PB, S_TB)
a("s_lshl_b32 s%d, s%d, 7", S_PB, S_PB)
a("s_add_u32 s%d, s%d, %d", S_PB, S_PB, F_H)
a("s_mov_b32 s8, s%d", S_NONCE)
a("s_mov_b32 s9, s%d", S_NONCE)
def sp_cmp():
    a("s_waitcnt lgkmcnt(0)")
    a("s_xor_b64 s[10:11], s[16:17], s[8:9]")
    for i in range(1, 7):
        a("s_xor_b64 s[14:15], s[%d:%d], s[8:9]", 16 + 2 * i, 17 + 2 * i)
        a("s_or_b64 s[10:11], s[10:11], s[14:15]")
rest = hl_list()[NPRE:] + [eops]
SEG = opt("seg", 60)
segs = [rest[i:i + SEG] for i in range(0, len(rest), SEG)]
for k, sg in enumerate(segs):
    a("s_buffer_load_dwordx16 s[16:31], %s, s%d glc", sr(SWS, 4), S_PB)
    for f in sg: f()
    sp_cmp()
    a("s_cbranch_scc0 L_fnd%d", k + 1)
a("s_mov_b32 s12, 0")
a("L_sp:")
a("s_buffer_load_dwordx16 s[16:31], %s, s%d glc", sr(SWS, 4), S_PB)
a("s_add_u32 s12, s12, 1")
sp_cmp()
a("s_cbranch_scc0 L_fnd%d", len(segs))
a("s_cmp_lt_u32 s12, %d", opt("spn", 64))
a("s_cbranch_scc1 L_sp")
poll_issue(14)
a("s_waitcnt vmcnt(0)")
poll_check(1)
a("s_branch L_fnd%d", len(segs))
for k in range(1, len(segs) + 1):
    a("L_fnd%d:" % k)
    sig(7, 48)
    stamp(5)
    a("s_branch L_seg%d" % k)
a("L_hdma:")
for k, sg in enumerate(segs):
    for f in sg: f()
    a("L_seg%d:" % (k + 1))
if STAMP:
    a("s_cmp_eq_u32 s3, 4")
    a("s_cbranch_scc1 L_hld")
stamp(4)
lds_wait(7, 48, 3)
stamp(5)
a("L_hld:")
vmh = [("W", 103)]
NH0 = opt("nh0", 6)
hload(0, NH0, vmh)
stamp(6)

def gemm2(role_, vml):
    helper = role_ == "h"
    R = 8
    VYR, EG = 15, 16
    EY = 28
    VWW = 97
    t0, t1, t2, t3 = 32, 33, 34, 35
    AFR = 36
    AC2 = 60
    YL = 92
    A0 = 100
    RR = 16
    def vw(tags):
        idx = [i for i, t in enumerate(vml) if t in tags]
        if opt("g2nowait", 0) and tags[0][0] in "HW": return 63
        if not idx: return 63
        return min(63, len(vml) - 1 - max(idx))
    a("v_mov_b32 v%d, v%d", R, VR0)
    a("v_xor_b32 v%d, 64, v%d", R + 1, VR0)
    for m in range(2):
        a("v_add_u32 v%d, %d, v%d", R + 2 + m, 4 * BLK, R + m)
        a("v_add_u32 v%d, %d, v%d", R + 4 + m, 8 * BLK, R + m)
    if helper: a("s_waitcnt vmcnt(%d)", vw([("W", 103)]))
    a("s_barrier")
    stamp(7)
    def reads(step):
        rd, ks = step // 4, step % 4
        blk = WB[rd]
        f = AFR + (step % 3) * 8
        L = []
        for m in range(2):
            for hf in range(2):
                L.append(("ds_read_b64_tr_b16 %s, v%d offset:%d" % (vr(f + 4 * m + 2 * hf, 2), R + 2 * (blk // 4) + m, (blk % 4) * BLK + ks * 2048 + hf * 1024), (step, m)))
        return L
    def ypoll_issue():
        a("s_lshl_b32 s10, s%d, 7", S_DB)
        a("v_lshl_add_u32 v%d, v1, 2, s10", VN + 2)
        a("s_lshl_b32 s10, s%d, 2", S_TB)
        a("s_add_u32 s10, s10, %d", F_G - F_Y)
        a("v_mov_b32 v%d, s10", t0)
        a("v_cmp_lt_u32 vcc, 31, v1")
        a("v_cndmask_b32 v%d, v%d, v%d, vcc", VN + 2, VN + 2, t0)
        a("s_mov_b32 s%d, %d", S_PB, F_Y)
        a("buffer_load_dword v%d, v%d, %s, s%d offen sc1", VN - 1, VN + 2, sr(SWS, 4), S_PB)
        vml.append(("PY", 0))
    def yload():
        poll_check(1)
        a("v_lshrrev_b32 v%d, 3, v1", t0)
        a("v_lshlrev_b32 v%d, 12, v%d", t0, t0)
        a("v_and_b32 v%d, 7, v1", t1)
        a("v_lshl_add_u32 v%d, v%d, 4, v%d", t0, t1, t0)
        a("s_lshl_b32 s10, s%d, 3", S_DB)
        a("s_add_u32 s10, s10, s3")
        a("s_lshl_b32 s10, s10, 15")
        a("s_lshl_b32 s11, s%d, 7", S_TB)
        a("s_add_u32 s10, s10, s11")
        a("s_add_u32 s10, s10, %d", WS_Y)
        a("buffer_load_dwordx4 %s, v%d, %s, s10 offen sc1", vr(YL, 4), t0, sr(SWS, 4))
        vml.append(("Y", 0))
        a("v_and_b32 v%d, 31, v1", t1)
        a("v_lshlrev_b32 v%d, 2, v%d", t1, t1)
        a("buffer_load_dword v%d, v%d, %s, s%d offen sc1", EG, t1, sr(SWS, 4), S_GOFF)
        vml.append(("Y", 0))
    lg = Lg()
    for r in reads(0) + reads(1): lg.issue(*r)
    pend = []
    def wwrite(rd, i):
        if i == 0: a("v_add_u32 v%d, %d, v%d", VWW, WB[rd] * BLK, VWW + 1)
        lg.issue("ds_write_b128 v%d, %s offset:%d" % (VWW, vr(WST + WSTO[rd] + 4 * i, 4), i * 1024), ("ww", rd))
    if helper:
        a("v_add_u32 v%d, s%d, v%d", VWW + 1, S_WLD, VH)
        pend = [(lambda i=i: wwrite(4, i)) for i in range(8)]
    vfill = []
    nh = NH0 if helper else NC0
    YPS = opt("yps", 13)
    for step in range(28):
        rd, ks = step // 4, step % 4
        f = AFR + (step % 3) * 8
        nxt = reads(step + 2) if step < 26 else []
        for m in range(2):
            d = vr(AC2 + 16 * m, 16)
            lg.need([(step, m)], "vmcnt(%d) " % vw([("H", step)]) if m == 0 else "")
            a("v_mfma_f32_32x32x16_bf16 %s, %s, %s, %s", d, vr(f + 4 * m, 4), vr(HF + 4 * (step % HRING), 4), d if step else "0")
            for r in nxt[2 * m:2 * m + 2]: lg.issue(*r)
            if nh < 28 and m == 0:
                hload(nh, 1, vml); nh += 1
                if nh == 28:
                    a("s_waitcnt vmcnt(%d)", vw([("PY", 0)]))
                    yload()
            if m == 1 and step == YPS: ypoll_issue()
            if pend: pend.pop(0)()
            for _ in range(5):
                if vfill: lg.run(vfill.pop(0))
        if opt("stg2", 0) and ks == 3 and rd < 5:
            stamp(10 + rd); lg.drained()
        if step == 20:
            for j in range(4):
                for hi in range(2):
                    o = A0 + 2 * j + hi
                    op = "v_lshlrev_b32 v%d, 16, v%d" if hi == 0 else "v_and_b32 v%d, 0xffff0000, v%d"
                    vfill.append(op % (t2, EU + j)); vfill.append(op % (t3, ED + j))
                    vfill.append("v_mul_f32 v%d, v%d, v%d" % (o, t2, t3))
        if ks == 1 and 1 <= rd < 6:
            if helper and rd >= 3: lg.need([("ww", rd + 1)])
            a("s_barrier")
            if helper and rd <= 2:
                assert not pend
                pend = [(lambda i=i, r=rd + 4: wwrite(r, i)) for i in range(8)]
            if rd == 5:
                vfill += ["v_lshrrev_b32 v%d, 5, v1" % VYR,
                          "v_bfe_u32 v%d, v1, 2, 2" % t2,
                          "v_lshl_add_u32 v%d, v%d, 3, v%d" % (VYR, VYR, t2),
                          "v_lshlrev_b32 v%d, 7, v%d" % (VYR, VYR),
                          "v_bfe_u32 v%d, v1, 4, 1" % t2,
                          "v_lshl_add_u32 v%d, v%d, 5, v%d" % (VYR, t2, VYR),
                          "v_and_b32 v%d, 3, v1" % t2,
                          "v_lshl_add_u32 v%d, v%d, 3, v%d" % (VYR, t2, VYR),
                          "s_lshr_b32 s10, s3, 1", "s_lshl_b32 s10, s10, 11", "s_and_b32 s11, s3, 1", "s_lshl_b32 s11, s11, 6",
                          "s_add_u32 s10, s10, s11", "s_add_u32 s10, s10, %d" % L_Y,
                          "v_add_u32 v%d, s10, v%d" % (VYR, VYR),
                          "s_lshl_b32 s10, s3, 10", "s_add_u32 s10, s10, %d" % L_Y,
                          "v_add_u32 v%d, s10, v%d" % (YL + 4, VH)]
                for j in range(4):
                    hi_ = (1 if helper else 0) ^ (j >> 1)
                    vfill.append("s_xor_b32 s10, s%d, %d" % (S_TQ, (2 * j) & 3))
                    vfill.append("s_mul_i32 s10, s10, 6144")
                    vfill.append("s_add_u32 s10, s10, %d" % (L_R[hi_] + max(j - 1, 0) * 2048))
                    vfill.append("v_add_u32 v%d, s10, v%d" % (VWW if j == 0 else RR + j, VH))
    assert not pend
    stamp(8)
    for f_ in vfill: lg.run(f_)
    a("s_waitcnt vmcnt(0)")
    a("ds_write_b128 v%d, %s", YL + 4, vr(YL, 4))
    for j in range(1, 4):
        for b in range(2):
            a("ds_write_b128 v%d, %s offset:%d", VWW, vr(AC2 + 8 * j + 4 * b, 4), (j - 1) * 2048 + b * 1024)
    for q in range(8):
        a("v_sub_f32 v%d, v%d, v%d", A0 + q, A0 + q, AC2 + q)
        a("v_fmac_f32 v%d, v%d, v%d", AC2 + q, EG, A0 + q)
    a("v_sub_f32 v%d, 1.0, v%d", t1, EG)
    a("s_waitcnt lgkmcnt(0)")
    a("s_barrier")
    for hf in range(2):
        a("ds_read_b64_tr_b16 %s, v%d offset:%d", vr(EY + 2 * hf, 2), VYR, hf * 512)
    for j in range(1, 4):
        for b in range(2):
            a("ds_read_b128 %s, v%d offset:%d", vr(AC2 + 8 * j + 4 * b, 4), RR + j, b * 1024)
    a("s_waitcnt lgkmcnt(6)")
    for j in range(4):
        a("v_lshlrev_b32 v%d, 16, v%d", t2, EY + j)
        a("v_and_b32 v%d, 0xffff0000, v%d", t3, EY + j)
        a("v_fmac_f32 v%d, v%d, v%d", AC2 + 2 * j, EG, t2)
        a("v_fmac_f32 v%d, v%d, v%d", AC2 + 2 * j + 1, EG, t3)
    for j in range(1, 4):
        a("s_waitcnt lgkmcnt(%d)", 2 * (3 - j))
        for q in range(8):
            a("v_fmac_f32 v%d, v%d, v%d", AC2 + q, t1, AC2 + 8 * j + q)
    for j in range(4):
        a("v_cvt_pk_bf16_f32 v%d, v%d, v%d", A0 + j, AC2 + 2 * j, AC2 + 2 * j + 1)
    a("buffer_store_dwordx4 %s, v%d, %s, s%d offen", vr(A0, 4), VO, sr(SO, 4), S_OB)
    if STAMP: a("s_waitcnt vmcnt(0)")
    stamp(9)
    stamp_out()
    a("s_endpgm")

gemm2("h", vmh)
a("L_g2c:")
gemm2("c", vmc)
for sp in slow: sp()
a("L_end:")
a("s_endpgm")

hdr = open("gated_mix__ssm_conv_s4__glu_gated_bilinear__prompt.s.ref").read().split("\n")
hdr = [l for l in hdr if l.startswith(";") and "@launch" not in l]
print(wrap(hdr + ["; @launch grid=(256,1,1) block=(512,1,1) lds=163840"], [(NAME, a, 256, 102, 256)]))
sys.stderr.write("nops: %d\n" % a.nops)
```

```python
import sys
from asmlib import *

STAMP = "--stamp" in sys.argv
def opt(name, default):
    for x in sys.argv:
        if x.startswith("--%s=" % name): return int(x.split("=")[1])
    return default

WS_H = 0
WS_UT = 8 << 20
WS_Y = 10 << 20
WS_G = 12 << 20
WS_F = (12 << 20) + 0x10000
F_H2 = (12 << 20) + 0x80000
WS_ST = 13 << 20
WS_BYTES = 14 << 20
F_A, F_H, F_Y, F_G, F_E = WS_F, WS_F + 0x1000, WS_F + 0x2000, WS_F + 0x3000, WS_F + 0x4000

P_U, P_ARE, P_AIM, P_BRE, P_BIM, P_CRE, P_CIM, P_LDT = 16, 18, 20, 22, 24, 26, 28, 30
P_DSK, P_BX, P_WG, P_WU, P_WD, P_GW, P_OUT, P_DBG, P_WS = 32, 34, 36, 38, 40, 42, 44, 46, 48
SX, SG, SU, SWS, SW, SO = 52, 56, 60, 64, 68, 72
S_NONCE, S_ISAUX, S_SPIN, S_PB = 76, 77, 78, 79
S_TB, S_DB, S_KH, S_TQ, S_HB, S_OB = 80, 81, 82, 83, 84, 85
S_W0S = 100
S_RT = 36
S_KR, S_T2 = 0, 1
S_W2K, S_T, S_TM0, S_YB = 86, 87, 88, 89
S_DOFF, S_GOFF = 50, 51
S_WSO, S_WLD = 90, 91
S_HST = 34
S_FH = 35
PCF = opt('pcf', 0)
FSTR = opt('fstr', 1280)
G16 = 1
SPINMAX = opt("spin", 20000)

BLK = 16384
XB = [0, 1, 2]
GB = [6, 8, 4]
L_TAB = 2 * BLK
TP = 528
TPIECE = 31 * TP
L_U = 2 * BLK
UCH = 512 + 4096
L_K = 3 * BLK
KCH = 64 + 4096
L_CY = L_K + 2 * KCH
CYCH = 129 * 16
L_SY = L_CY + 2 * CYCH
assert L_SY % 32 == 0 and L_SY + 128 <= 4 * BLK
WB = [4, 6, 8, 0, 2, 4, 6]
L_Y = 8 * BLK + 24576
L_R = [8 * BLK, 0]

a = Asm()

class Lg:
    def __init__(self): self.q = []; self.done = 0
    def issue(self, ins, tag=None):
        a(ins); self.q.append(tag)
    def need(self, tags, extra=""):
        idx = [i for i, t in enumerate(self.q) if t in tags]
        last = max(idx) if idx else -1
        if last >= self.done:
            cnt = min(len(self.q) - 1 - last, 15)
            a("s_waitcnt %slgkmcnt(%d)", extra, cnt)
            self.done = len(self.q) - cnt
        elif extra:
            a("s_waitcnt %s", extra)
    def drained(self): self.done = len(self.q)
    def run(self, p):
        n0 = len(a.lines)
        a(p) if isinstance(p, str) else p()
        for ln in a.lines[n0:]:
            if ln.strip().startswith("ds_"): self.q.append(None)

SMASK = opt("smask", 0x7fff)
def stamp(i, force=False):
    if opt("stg", 0) == 2:
        if not force or not (SMASK >> i) & 1: return
    if not STAMP or not ((SMASK >> i) & 1 or force): return
    a("s_memtime s[94:95]")
    a("s_memrealtime s[92:93]")
    a("s_waitcnt lgkmcnt(0)")
    a("s_sub_u32 s94, s94, s98")
    a("v_writelane_b32 v255, s94, %d", i)
    a("v_writelane_b32 v255, s92, %d", i + 16)
def stamp_out():
    if not STAMP: return
    a("s_mov_b64 exec, -1")
    a("v_writelane_b32 v255, s96, 31")
    a("s_getreg_b32 s92, hwreg(HW_REG_XCC_ID)")
    a("s_getreg_b32 s93, hwreg(HW_REG_HW_ID)")
    a("s_and_b32 s92, s92, 15")
    a("s_lshl_b32 s93, s93, 4")
    a("s_or_b32 s92, s92, s93")
    a("v_writelane_b32 v255, s92, 15")
    a("s_lshl_b32 s92, s2, 3")
    a("s_add_u32 s92, s92, s3")
    a("s_lshl_b32 s92, s92, 7")
    a("s_add_u32 s92, s92, %d", WS_ST)
    a("v_mbcnt_lo_u32_b32 v254, -1, 0")
    a("v_mbcnt_hi_u32_b32 v254, -1, v254")
    a("v_lshlrev_b32 v253, 2, v254")
    a("s_mov_b64 exec, 0xffffffff")
    a("buffer_store_dword v255, v253, %s, s92 offen", sr(SWS, 4))

def cmul(d, x, y, plain):
    if plain:
        return ["v_mul_f32 v%d, v%d, v%d" % (d, x, y), "v_mul_f32 v%d, v%d, v%d" % (d + 1, x + 1, y),
                "v_fma_f32 v%d, -v%d, v%d, v%d" % (d, x + 1, y + 1, d), "v_fmac_f32 v%d, v%d, v%d" % (d + 1, x, y + 1)]
    return ["v_pk_mul_f32 %s, %s, %s op_sel_hi:[1,0]" % (vr(d, 2), vr(x, 2), vr(y, 2)),
            "v_pk_fma_f32 %s, %s, %s, %s op_sel:[1,1,0] op_sel_hi:[0,1,1] neg_lo:[1,0,0]" % (vr(d, 2), vr(x, 2), vr(y, 2), vr(d, 2))]
def il(x, y):
    o = []
    for i in range(max(len(x), len(y))):
        if i < len(x): o.append(x[i])
        if i < len(y): o.append(y[i])
    return o

VH = 240
VWD = 241
VR0 = 242
VSY = 243
VN = 250
PVA, PVB, PVC, PVY = 2, 3, 4, 5
KA, KBa, KW = 152, 153, 154
VZ = 235
KB = 160
KP = 204
KF = 160
KD = 236
VUL = 244

def kgen_setup():
    a("s_lshr_b32 s10, s3, 2")
    a("s_lshl_b32 s11, s2, 1")
    a("s_add_u32 s11, s11, s10")
    a("s_and_b32 s12, s3, 1")
    a("s_lshl_b32 s13, s11, 8")
    a("s_lshl_b32 s12, s12, 7")
    a("s_add_u32 s13, s13, s12")
    a("v_lshl_add_u32 v%d, v1, 1, s13", KB + 8)
    a("s_lshl_b32 s11, s11, 1")
    a("v_mov_b32 v%d, s11", KB + 9)
    for i in range(7): a("v_mov_b32 v%d, 0", KB + i)
    a("s_bitcmp1_b32 s3, 1")
    a("s_cselect_b64 s[14:15], -1, 0")
def kgen_loads():
    a("global_load_short_d16_hi v%d, v%d, %s", KB + 6, KB + 9, sr(P_LDT, 2))
    for i, p in enumerate([P_ARE, P_AIM, P_BRE, P_BIM, P_CRE, P_CIM]):
        a("global_load_short_d16_hi v%d, v%d, %s", KB + i, KB + 8, sr(p, 2))
    return 7
def rowpos(m): return 16 + (2 * m if m <= 7 else 2 * (m - 8) + 1)
def kgen_valu(plain_tail):
    L = []
    A_, B_, BR, BI, CR, CI, LD, T0, T1, T2 = [KB + i for i in range(10)]
    W, E1, E2, E4, E8, E128, E256, E512, P, X0, X1, R0, R1, RB, Y0, Z0 = [KB + 10 + 2 * i for i in range(16)]
    L.append("v_mul_f32 v%d, 0x3fb8aa3b, v%d" % (T0, LD))
    L.append("v_mov_b32 v%d, 0x3fb8aa3b" % T2)
    L.append("v_fma_f32 v%d, v%d, v%d, -v%d" % (T1, LD, T2, T0))
    L.append("v_fmac_f32 v%d, 0x32a57060, v%d" % (T1, LD))
    L.append("v_exp_f32 v%d, v%d" % (T0, T0))
    L.append("v_mul_f32 v%d, 0x3f317218, v%d" % (T1, T1))
    L.append("v_fmac_f32 v%d, v%d, v%d" % (T0, T0, T1))
    L.append("v_cvt_pk_bf16_f32 v%d, v%d, v%d" % (T0, T0, T0))
    L.append("v_and_b32 v%d, 0xffff0000, v%d" % (T0, T0))
    for r in (A_, B_, BR, BI):
        L.append("v_mul_f32 v%d, v%d, v%d" % (r, T0, r))
    L.append("v_mul_f32 v%d, 0x3fb8aa3b, v%d" % (A_, A_))
    L.append("v_mul_f32 v%d, 0.15915494, v%d" % (B_, B_))
    o1 = ["v_exp_f32 v%d, v%d" % (T0, A_), "v_fract_f32 v%d, v%d" % (T1, B_),
          "v_cos_f32 v%d, v%d" % (E1, T1), "v_sin_f32 v%d, v%d" % (E1 + 1, T1),
          "v_mul_f32 v%d, v%d, v%d" % (E1, T0, E1), "v_mul_f32 v%d, v%d, v%d" % (E1 + 1, T0, E1 + 1)]
    o2 = ["v_mul_f32 v%d, 0x43000000, v%d" % (T2, A_), "v_mul_f32 v%d, 0x43000000, v%d" % (LD, B_),
          "v_exp_f32 v%d, v%d" % (T2, T2), "v_fract_f32 v%d, v%d" % (LD, LD),
          "v_cos_f32 v%d, v%d" % (E128, LD), "v_sin_f32 v%d, v%d" % (E128 + 1, LD),
          "v_mul_f32 v%d, v%d, v%d" % (E128, T2, E128), "v_mul_f32 v%d, v%d, v%d" % (E128 + 1, T2, E128 + 1)]
    L += il(o2, o1 + cmul(W, CR, BR, False))
    L += il(cmul(E2, E1, E1, False) + cmul(E4, E2, E2, False) + cmul(E8, E4, E4, False),
            cmul(E256, E128, E128, False) + cmul(E512, E256, E256, False))
    L.append("v_cndmask_b32 v%d, v%d, v%d, s[14:15]" % (P, E1, E2))
    L.append("v_cndmask_b32 v%d, v%d, v%d, s[14:15]" % (P + 1, E1 + 1, E2 + 1))
    L.append("v_cndmask_b32 v%d, 1.0, v%d, s[14:15]" % (X0, E128))
    L.append("v_cndmask_b32 v%d, 0, v%d, s[14:15]" % (X0 + 1, E128 + 1))
    L.append("v_cndmask_b32 v%d, 1.0, v%d, s[14:15]" % (E256, E256))
    L.append("v_cndmask_b32 v%d, 0, v%d, s[14:15]" % (E256 + 1, E256 + 1))
    L += cmul(RB, W, E256, False)
    rows = [(None, RB, None)]
    cur = RB
    for j in range(1, 8):
        d = R0 if j % 2 else R1
        rows.append((d, cur, P)); cur = d
    Z2 = Y0
    rows += [(Y0, RB, E512), (R1, Y0, E4), (R0, Y0, E8), (Z0, Y0, E512), (R1, Z0, E8), (Z2, Z0, E512), (R0, Z2, E8)]
    cols = [(None, X0, None)]
    cur = X0
    for j in range(1, 16):
        d = X1 if j % 2 else X0
        cols.append((d, cur, E8)); cur = d
    LC, LR = [], []
    for j, (d, s, m) in enumerate(cols):
        if d is not None: LC += cmul(d, s, m, plain_tail)
        x = d if d is not None else s
        LC.append("v_cvt_pk_bf16_f32 v%d, v%d, v%d" % (KP + j, x, x + 1))
    for j, (d, s, m) in enumerate(rows):
        if d is not None: LR += cmul(d, s, m, plain_tail)
        x = d if d is not None else s
        LR.append("v_cvt_pk_bf16_f32 v%d, v%d, -v%d" % (KP + rowpos(j), x, x + 1))
    return L, il(LC, LR)
def kgen_writes():
    return ["ds_write_addtid_b32 v%d offset:%d" % (KP + j, L_TAB + j * TP) for j in range(31)]

def later_addrs(T0, T1, T2):
    a("s_lshr_b32 s10, s3, 1")
    a("s_mul_i32 s10, s10, %d", TPIECE)
    a("s_and_b32 s11, s3, 1")
    a("s_lshl_b32 s11, s11, 8")
    a("s_add_u32 s%d, s10, s11", S_TM0)
    a("s_add_u32 s10, s10, %d", L_TAB)
    a("v_bfe_u32 v%d, v1, 4, 1", T1)
    a("v_lshlrev_b32 v%d, 8, v%d", T1, T1)
    a("v_lshrrev_b32 v%d, 5, v1", T2)
    a("v_lshl_add_u32 v%d, v%d, 7, v%d", T1, T2, T1)
    a("v_and_b32 v%d, 15, v1", T0)
    a("v_mul_u32_u24 v%d, %d, v%d", T2, TP, T0)
    a("v_add3_u32 v%d, v%d, v%d, s10", KBa, T2, T1)
    def lut(v): return sum(x << (4 * i) for i, x in enumerate(v))
    m0 = [0, 1, 2, 3] + [0, 0, 1, 2] + [2, 2, 3, 4] + [4, 5, 6, 7]; h0 = 0x0ff0
    m1 = [8, 9, 10, 10] + [8, 9, 10, 10] + [11, 12, 13, 14] + [11, 12, 13, 14]; h1 = 0xf0f0
    p0 = [rowpos(m) - 16 for m in m0]; p1 = [rowpos(m) - 16 for m in m1]
    a("s_bitcmp1_b32 s3, 0")
    a("s_mov_b32 s11, 0x%x", lut(p0[:8]))
    a("s_cmov_b32 s11, 0x%x", lut(p1[:8]))
    a("s_mov_b32 s12, 0x%x", lut(p0[8:]))
    a("s_cmov_b32 s12, 0x%x", lut(p1[8:]))
    a("s_mov_b32 s13, 0x%x", h0)
    a("s_cmov_b32 s13, 0x%x", h1)
    a("v_cmp_lt_u32 vcc, 7, v%d", T0)
    a("v_mov_b32 v%d, s11", KA)
    a("v_mov_b32 v%d, s12", T2)
    a("v_cndmask_b32 v%d, v%d, v%d, vcc", KA, KA, T2)
    a("v_and_b32 v%d, 7, v1", T2)
    a("v_lshlrev_b32 v%d, 2, v%d", T2, T2)
    a("v_bfe_u32 v%d, v%d, v%d, 4", KA, KA, T2)
    a("v_bfe_u32 v%d, s13, v%d, 1", T2, T0)
    a("v_mad_u32_u24 v%d, v%d, 31, v%d", KA, T2, KA)
    a("v_mul_u32_u24 v%d, %d, v%d", KA, TP, KA)
    a("s_lshr_b32 s10, s3, 2")
    a("s_mul_i32 s11, s10, %d", 2 * TPIECE)
    a("s_add_u32 s11, s11, %d", L_TAB + 16 * TP)
    a("v_add3_u32 v%d, v%d, v%d, s11", KA, KA, T1)
    a("s_mul_i32 s10, s10, %d", KCH)
    a("s_and_b32 s11, s3, 2")
    a("s_lshl_b32 s11, s11, 7")
    a("s_add_u32 s10, s10, s11")
    a("s_add_u32 s10, s10, %d", L_K + 64)
    a("s_bitcmp1_b32 s3, 0")
    a("s_mov_b32 s11, 0x%x", 0 | (64 << 8) | (65 << 16) | (1 << 24))
    a("s_cmov_b32 s11, 0x%x", 0 | (64 << 8) | (128 << 16) | (192 << 24))
    a("s_cselect_b32 s12, 1024, 0")
    a("s_add_u32 s10, s10, s12")
    a("v_lshrrev_b32 v%d, 4, v1", T1)
    a("v_lshlrev_b32 v%d, 3, v%d", T1, T1)
    a("v_bfe_u32 v%d, s11, v%d, 8", T1, T1)
    a("v_lshlrev_b32 v%d, 4, v%d", T0, T0)
    a("v_lshl_add_u32 v%d, v%d, 3, v%d", T0, T1, T0)
    a("v_add_u32 v%d, s10, v%d", KW, T0)
def later_addrs2(T0, T1, T2):
    a("s_bfe_u32 s10, s3, 0x10001")
    a("v_lshrrev_b32 v%d, 5, v1", T0)
    a("v_lshlrev_b32 v%d, 6, v%d", PVA, T0)
    a("v_and_b32 v%d, 31, v1", T1)
    a("v_lshlrev_b32 v%d, 4, v%d", PVB, T1)
    a("v_sub_u32 v%d, v%d, v%d", PVB, PVB, PVA)
    a("v_and_b32 v%d, 1, v1", T2)
    a("v_lshl_add_u32 v%d, v%d, 5, v%d", PVA, T2, PVA)
    a("v_lshrrev_b32 v%d, 2, v%d", T1, T1)
    a("v_lshl_add_u32 v%d, v%d, 1, v%d", T1, T1, T0)
    a("v_lshlrev_b32 v%d, 5, v%d", PVY, T1)
    a("v_lshl_add_u32 v%d, v%d, 4, v%d", PVY, T2, PVY)
    a("s_mul_i32 s11, s10, %d", CYCH)
    a("s_add_u32 s11, s11, %d", L_CY)
    a("v_lshl_add_u32 v%d, v%d, 4, s11", PVC, T1)
    a("v_bfe_u32 v%d, v1, 4, 1", T2)
    a("v_lshl_add_u32 v%d, v%d, 4, v%d", PVA, T2, PVA)
    a("v_bfe_u32 v%d, v1, 1, 1", T2)
    a("v_lshl_add_u32 v%d, v%d, 3, v%d", PVA, T2, PVA)
    a("v_bfe_u32 v%d, v1, 2, 2", T2)
    a("v_lshlrev_b32 v%d, 3, v%d", T2, T2)
    a("v_sub_u32 v%d, v%d, v%d", PVA, PVA, T2)
    a("s_mul_i32 s11, s10, %d", KCH)
    a("s_add_u32 s11, s11, %d", L_K + 32)
    a("v_add_u32 v%d, s11, v%d", PVA, PVA)
    a("s_mul_i32 s11, s10, %d", UCH)
    a("s_add_u32 s11, s11, %d", L_U + 512 - 384)
    a("v_add_u32 v%d, s11, v%d", PVB, PVB)
    a("s_lshl_b32 s11, s2, 1")
    a("s_add_u32 s11, s11, s10")
    a("s_lshl_b32 s11, s11, 12")
    a("s_add_u32 s%d, s11, %d", S_YB, WS_Y)
def later_addrs3(T0, T1, T2):
    if opt("b84", 1):
        a("s_and_b32 s%d, s4, 6", S_TB)
        a("s_lshl_b32 s%d, s%d, 2", S_TB, S_TB)
        a("s_and_b32 s10, s5, 7")
        a("s_add_u32 s%d, s%d, s10", S_TB, S_TB)
        a("s_and_b32 s%d, s4, 1", S_DB)
        a("s_lshl_b32 s%d, s%d, 2", S_DB, S_DB)
        a("s_lshr_b32 s10, s5, 3")
        a("s_add_u32 s%d, s%d, s10", S_DB, S_DB)
    else:
        a("s_lshl_b32 s%d, s4, 2", S_TB)
        a("s_and_b32 s10, s5, 3")
        a("s_add_u32 s%d, s%d, s10", S_TB, S_TB)
        a("s_lshr_b32 s%d, s5, 2", S_DB)
    a("s_lshr_b32 s%d, s3, 2", S_KH)
    a("s_and_b32 s%d, s3, 3", S_TQ)
    a("s_lshl_b32 s10, s%d, 1", S_TB)
    a("s_and_b32 s13, s3, 1")
    a("s_add_u32 s10, s10, s13")
    a("s_mul_i32 s11, s10, 112")
    a("s_lshr_b32 s12, s3, 1")
    a("s_mul_i32 s%d, s12, %d", S_W0S, 448 * 1024)
    a("s_lshl_b32 s13, s13, 15")
    a("s_add_u32 s%d, s%d, s13", S_W0S, S_W0S)
    a("s_mul_i32 s13, s12, 28")
    a("s_add_u32 s11, s11, s13")
    a("s_lshl_b32 s%d, s11, 10", S_HB)
    a("s_lshl_b32 s%d, s10, 7", S_GOFF)
    a("s_add_u32 s%d, s%d, %d", S_GOFF, S_GOFF, WS_G)
    a("s_lshl_b32 s10, s10, 15")
    a("s_lshl_b32 s11, s%d, 7", S_DB)
    a("s_lshl_b32 s12, s12, 5")
    a("s_add_u32 s%d, s11, s12", S_DOFF)
    a("s_add_u32 s%d, s10, s%d", S_OB, S_DOFF)
    a("s_mul_i32 s%d, s%d, %d", S_WSO, S_TQ, 448 * 1024)
    a("s_lshl_b32 s%d, s%d, 13", S_WLD, S_TQ)
    seq = [i % 7 for i in range(16)]
    val = sum(x << (4 * i) for i, x in enumerate(seq))
    a("s_mov_b32 s44, 0x%x", val & 0xffffffff)
    a("s_mov_b32 s45, 0x%x", val >> 32)
    if opt("rot", 4) == 1:
        a("s_lshl_b32 s10, s%d, 2", S_DB)
        a("s_lshr_b64 s[44:45], s[44:45], s10")
    if opt("rot", 4) == 4:
        a("s_and_b32 s10, s5, 7")
        a("s_lshl_b32 s10, s10, 2")
        a("s_lshr_b64 s[44:45], s[44:45], s10")
    if opt("rot", 4) == 5:
        a("s_and_b32 s10, s5, 7")
        a("s_lshr_b32 s13, s5, 3")
        a("s_lshl_b32 s13, s13, 1")
        a("s_add_u32 s10, s10, s13")
        a("s_sub_u32 s13, s10, 7")
        a("s_min_u32 s10, s10, s13")
        a("s_lshl_b32 s10, s10, 2")
        a("s_lshr_b64 s[44:45], s[44:45], s10")
    if opt("rot", 4) == 3:
        a("s_and_b32 s10, s5, 1")
        a("s_lshl_b32 s10, s10, 4")
        a("s_lshr_b64 s[44:45], s[44:45], s10")
    if opt("rot", 4) == 2:
        a("s_and_b32 s10, s5, 3")
        a("s_lshl_b32 s10, s10, 3")
        a("s_lshr_b64 s[44:45], s[44:45], s10")
    for rd in range(7):
        a("s_bfe_u32 s10, s44, 0x%x", (3 << 16) | (4 * rd))
        a("s_lshl_b32 s%d, s10, 12", S_RT + rd)
    a("v_lshlrev_b32 v%d, 4, v1", VH)
    a("v_lshrrev_b32 v%d, 3, v1", T0)
    a("v_lshlrev_b32 v%d, 10, v%d", T0, T0)
    a("v_bfe_u32 v%d, v1, 4, 1", T1)
    a("v_lshlrev_b32 v%d, 2, v%d", T1, T1)
    a("v_and_b32 v%d, 7, v1", T2)
    a("v_xor_b32 v%d, v%d, v%d", T2, T2, T1)
    a("v_lshl_add_u32 v%d, v%d, 4, v%d", T0, T2, T0)
    a("v_add_u32 v%d, s11, v%d", VWD, T0)
    a("v_lshrrev_b32 v%d, 5, v1", T0)
    a("v_bfe_u32 v%d, v1, 2, 2", T1)
    a("v_lshl_add_u32 v%d, v%d, 2, v%d", T0, T0, T1)
    a("v_lshlrev_b32 v%d, 7, v%d", T0, T0)
    a("v_bfe_u32 v%d, v1, 3, 1", T1)
    a("v_lshl_add_u32 v%d, v%d, 6, v%d", T0, T1, T0)
    a("v_bfe_u32 v%d, v1, 4, 1", T1)
    a("v_lshl_add_u32 v%d, v%d, 5, v%d", T0, T1, T0)
    a("v_and_b32 v%d, 1, v1", T1)
    a("v_lshl_add_u32 v%d, v%d, 4, v%d", T0, T1, T0)
    a("v_bfe_u32 v%d, v1, 1, 1", T1)
    a("v_lshl_add_u32 v%d, v%d, 3, v%d", T0, T1, T0)
    a("v_xor_b32 v%d, s12, v%d", T0, T0)
    a("s_lshl_b32 s12, s12, 8")
    a("v_add_u32 v%d, s12, v%d", VR0, T0)
    a("s_lshl_b32 s10, s3, 2")
    a("s_add_u32 s10, s10, %d", L_SY)
    a("v_mov_b32 v%d, s10", VSY)

def kreads():
    L = []
    for ks in range(8):
        L.append(("ds_read_b128 %s, v%d offset:%d" % (vr(KF + 8 * ks, 4), KA, ks * 16), ("k", ks)))
        L.append(("ds_read_b128 %s, v%d offset:%d" % (vr(KF + 8 * ks + 4, 4), KBa, ks * 16), ("k", ks)))
    return L
def run_kmfma(lg, fill, per):
    for ks in range(8):
        lg.need([("k", ks)])
        d = vr(KD, 4)
        a("v_mfma_f32_16x16x32_bf16 %s, %s, %s, %s", d, vr(KF + 8 * ks, 4), vr(KF + 8 * ks + 4, 4), d if ks else "0")
        for _ in range(per):
            if fill: lg.run(fill.pop(0))
    for f in fill: lg.run(f)
def kmfma_finish():
    lb = a.label("Lkm1"); le = a.label("Lkme")
    T = KF
    a("s_bitcmp1_b32 s3, 0")
    a("s_cbranch_scc1 %s", lb)
    a("v_cvt_pk_bf16_f32 v%d, v%d, v%d", T, KD, KD + 1)
    a("v_cvt_pk_bf16_f32 v%d, v%d, v%d", T + 1, KD + 2, KD + 3)
    a("ds_write_b64 v%d, %s", KW, vr(T, 2))
    a("s_branch %s", le)
    a(lb + ":")
    a("s_nop 7")
    a("s_mov_b32 s14, 0xaaaaaaaa")
    a("s_mov_b32 s15, 0xaaaaaaaa")
    a("v_cndmask_b32 v%d, v%d, v%d, s[14:15]", T + 12, KD, KD + 1)
    a("v_cndmask_b32 v%d, v%d, v%d, s[14:15]", T + 13, KD + 2, KD + 3)
    a("v_cvt_pk_bf16_f32 v%d, v%d, v%d", T, KD, KD)
    a("v_cvt_pk_bf16_f32 v%d, v%d, v%d", T + 1, KD, KD)
    a("v_cvt_pk_bf16_f32 v%d, v%d, v%d", T + 2, T + 12, KD + 1)
    a("v_cvt_pk_bf16_f32 v%d, v%d, v%d", T + 3, KD + 1, KD + 1)
    a("v_cvt_pk_bf16_f32 v%d, v%d, v%d", T + 4, KD + 2, KD + 2)
    a("v_cvt_pk_bf16_f32 v%d, v%d, v%d", T + 5, KD + 2, KD + 2)
    a("v_cvt_pk_bf16_f32 v%d, v%d, v%d", T + 6, T + 13, KD + 3)
    a("v_cvt_pk_bf16_f32 v%d, v%d, v%d", T + 7, KD + 3, KD + 3)
    a("s_mov_b64 exec, 0xffffffff")
    a("v_cvt_pk_bf16_f32 v%d, v%d, v%d", T + 1, KD, KD + 1)
    a("v_mov_b32 v%d, v%d", T + 2, T + 3)
    a("v_mov_b32 v%d, v%d", T + 3, T + 4)
    a("s_not_b64 exec, exec")
    a("ds_write_b128 v%d, %s offset:1024", KW, vr(T + 4, 4))
    a("s_mov_b64 exec, -1")
    a("ds_write_b128 v%d, %s", KW, vr(T, 4))
    a(le + ":")

def zero_pads_k():
    T = KF + 16
    a("v_mov_b32 v%d, 0", T)
    a("v_bfe_u32 v%d, v1, 4, 1", T + 1)
    a("v_and_b32 v%d, 15, v1", T + 2)
    a("v_mul_u32_u24 v%d, %d, v%d", T + 3, KCH, T + 1)
    a("v_lshl_add_u32 v%d, v%d, 2, v%d", T + 3, T + 2, T + 3)
    a("v_mul_u32_u24 v%d, %d, v%d", T + 4, CYCH, T + 1)
    a("v_lshl_add_u32 v%d, v%d, 2, v%d", T + 4, T + 2, T + 4)
    a("v_lshlrev_b32 v%d, 2, v1", T + 5)
    a("s_mov_b64 exec, 0xffffffff")
    a("ds_write_b32 v%d, v%d offset:%d", T + 3, T, L_K)
    a("ds_write_b32 v%d, v%d offset:%d", T + 4, T, L_CY)
    a("ds_write_b32 v%d, v%d offset:%d", T + 5, T, L_SY)
    a("s_mov_b64 exec, -1")
def zero_pads_u():
    T = KD
    for i in range(4): a("v_mov_b32 v%d, 0", T + i)
    a("v_and_b32 v%d, 31, v1", 233)
    a("v_lshlrev_b32 v%d, 4, v%d", 233, 233)
    a("v_lshrrev_b32 v%d, 5, v1", 234)
    a("v_mul_u32_u24 v%d, %d, v%d", 234, UCH, 234)
    a("v_add_u32 v%d, v%d, v%d", 233, 233, 234)
    a("ds_write_b128 v%d, %s offset:%d", 233, vr(T, 4), L_U)
def sig(vaddr, off):
    a("s_mov_b64 exec, 1")
    a("ds_write_b32 v%d, v6 offset:%d", vaddr, off)
    a("s_mov_b64 exec, -1")
VUL2 = 156
def u_load():
    a("v_lshlrev_b32 v%d, 5, v1", VUL + 4)
    a("s_lshl_b32 s10, s2, 13")
    a("s_lshl_b32 s11, s%d, 11", S_TQ)
    a("s_add_u32 s10, s10, s11")
    a("s_add_u32 s10, s10, %d", WS_UT)
    a("buffer_load_dwordx4 %s, v%d, %s, s10 offen sc1", vr(VUL, 4), VUL + 4, sr(SWS, 4))
    a("buffer_load_dwordx4 %s, v%d, %s, s10 offen offset:16 sc1", vr(VUL2, 4), VUL + 4, sr(SWS, 4))
def u_write():
    a("s_lshl_b32 s11, s%d, 10", S_TQ)
    a("v_add_u32 v%d, s11, v%d", VUL + 4, VH)
    a("ds_write_b128 v%d, %s offset:%d", VUL + 4, vr(VUL, 4), L_U + 512)
    a("ds_write_b128 v%d, %s offset:%d", VUL + 4, vr(VUL2, 4), L_U + UCH + 512)
def onwave(w, fn):
    lb = a.label("Low")
    a("s_cmp_lg_u32 s3, %d", w)
    a("s_cbranch_scc1 %s", lb)
    fn()
    a(lb + ":")
def role(lo, hi):
    l1 = a.label("Lr1"); l2 = a.label("Lr2")
    a("s_cmp_ge_u32 s3, 4")
    a("s_cbranch_scc1 %s", l1)
    if lo is None:
        a.lines[-1] = a.lines[-1].replace("scc1", "scc0")
        hi()
        a(l1 + ":")
        return
    if lo: lo()
    if hi:
        a("s_branch %s", l2)
        a(l1 + ":")
        hi()
        a(l2 + ":")
    else:
        a(l1 + ":")

def nonce_issue():
    a("global_load_dwordx2 %s, v%d, %s sc1", vr(VN, 2), VZ, sr(P_DBG, 2))
slow = []
def nonce_check():
    ok = a.label("Lnok"); lp = a.label("Lnlp")
    a(ok + "r:")
    a("v_readfirstlane_b32 s10, v%d", VN + 1)
    a("v_readfirstlane_b32 s%d, v%d", S_NONCE, VN)
    a("s_cmp_lg_u32 s10, 1")
    a("s_cbranch_scc1 %s", lp)
    a(ok + ":")
    def sp():
        a(lp + ":")
        a("s_add_u32 s%d, s%d, 1", S_SPIN, S_SPIN)
        a("s_cmp_ge_u32 s%d, %d", S_SPIN, SPINMAX)
        a("s_cbranch_scc1 %s", ok)
        a("s_sleep 2")
        a("global_load_dwordx2 %s, v%d, %s sc1", vr(VN, 2), VZ, sr(P_DBG, 2))
        a("s_waitcnt vmcnt(0)")
        a("s_branch %sr", ok)
    slow.append(sp)
def poll_issue(n):
    a("v_min_u32 v%d, %d, v1", VN + 2, n - 1)
    a("v_lshlrev_b32 v%d, 2, v%d", VN + 2, VN + 2)
    a("buffer_load_dword v%d, v%d, %s, s%d offen sc1", VN - 1, VN + 2, sr(SWS, 4), S_PB)
def poll_check(sleep=2):
    ok = a.label("Lpok"); lp = a.label("Lplp")
    a(ok + "r:")
    a("v_cmp_ne_u32 vcc, s%d, v%d", S_NONCE, VN - 1)
    a("s_cmp_lg_u64 vcc, 0")
    a("s_cbranch_scc1 %s", lp)
    a(ok + ":")
    def sp():
        a(lp + ":")
        a("s_add_u32 s%d, s%d, 1", S_SPIN, S_SPIN)
        a("s_cmp_ge_u32 s%d, %d", S_SPIN, SPINMAX)
        a("s_cbranch_scc1 %s", ok)
        if sleep: a("s_sleep %d", sleep)
        a("buffer_load_dword v%d, v%d, %s, s%d offen sc1", VN - 1, VN + 2, sr(SWS, 4), S_PB)
        a("s_waitcnt vmcnt(0)")
        a("s_branch %sr", ok)
    slow.append(sp)
def flag_store(sbase):
    if opt("sflag", 2) & 1:
        a("s_mov_b32 s11, s%d", S_NONCE)
        a("s_buffer_atomic_swap s11, %s, %s", sr(SWS, 4), sbase)
        return
    a("v_mov_b32 v%d, 0", VN)
    a("v_mov_b32 v%d, s%d", VN + 1, S_NONCE)
    a("s_mov_b64 exec, 1")
    a("buffer_store_dword v%d, v%d, %s, %s offen sc1", VN + 1, VN, sr(SWS, 4), sbase)
    a("s_mov_b64 exec, -1")
def lds_wait(vaddr, off, vtmp, sleep=1):
    lp = a.label("Llw"); ok = a.label("Llok")
    a(lp + ":")
    a("ds_read_b32 v%d, v%d offset:%d", vtmp, vaddr, off)
    a("s_add_u32 s%d, s%d, 1", S_SPIN, S_SPIN)
    a("s_waitcnt lgkmcnt(0)")
    a("v_cmp_eq_u32 vcc, 0, v%d", vtmp)
    a("s_cmp_eq_u64 vcc, 0")
    a("s_cbranch_scc1 %s", ok)
    if sleep: a("s_sleep %d", sleep)
    a("s_cmp_lt_u32 s%d, %d", S_SPIN, SPINMAX * 16)
    a("s_cbranch_scc1 %s", lp)
    a(ok + ":")

a("s_cmp_ge_u32 s2, 256")
a("s_cbranch_scc1 L_end")
if STAMP:
    a("s_memrealtime s[96:97]")
    a("s_memtime s[98:99]")
a("s_load_dwordx16 s[16:31], s[0:1], 0")
a("s_load_dwordx16 s[32:47], s[0:1], 64")
a("s_load_dwordx2 s[48:49], s[0:1], 128")
a("v_lshrrev_b32 v2, 6, v0")
a("s_lshr_b32 s5, s2, 3")
if opt("cpf", 1):
    a("s_getpc_b64 s[10:11]")
    a("L_pc:")
    a("s_lshl_b32 s12, s5, 10")
    a("v_lshl_add_u32 v3, v2, 7, s12")
    a("v_and_b32 v4, 1, v0")
    a("v_lshl_add_u32 v3, v4, 6, v3")
    a("v_min_u32 v3, L_end-L_pc, v3")
    a("global_load_dword v19, v3, s[10:11]")
a("v_and_b32 v1, 63, v0")
a("v_readfirstlane_b32 s3, v2")
a("s_and_b32 s4, s2, 7")
kgen_setup()
PRE_WAIT = opt("prewait", 0)
if not PRE_WAIT:
    a("s_waitcnt lgkmcnt(0)")
    kgen_loads()
a("s_mov_b32 s%d, 0", S_SPIN)
a("v_mov_b32 v%d, 0", VZ)
a("v_mov_b32 v%d, 0", VN + 2)
if STAMP: a("v_mov_b32 v255, 0")
a("s_lshr_b32 s6, s4, 1")
a("s_lshl_b32 s6, s6, 2")
a("s_and_b32 s7, s5, 3")
a("s_add_u32 s6, s6, s7")
a("s_and_b32 s7, s4, 1")
a("s_mul_i32 s7, s7, 7")
a("s_lshr_b32 s8, s5, 2")
a("s_add_u32 s7, s7, s8")
a("s_sub_u32 s7, s7, 1")
a("s_and_b32 s8, s3, 1")
a("s_lshr_b32 s9, s3, 1")
VX0, VX1, VW0, VW1 = 4, 5, 6, 7
VXR = 8
VWA, VWB = 12, 13
T0, T1, T2, T3 = 14, 15, 16, 17
a("s_lshl_b32 s10, s6, 7")
a("s_lshl_b32 s11, s3, 4")
a("s_add_u32 s10, s10, s11")
a("s_lshl_b32 s10, s10, 10")
a("v_lshrrev_b32 v%d, 3, v1", T0)
a("v_lshlrev_b32 v%d, 10, v%d", T0, T0)
a("v_lshrrev_b32 v%d, 4, v1", T1)
a("v_and_b32 v%d, 7, v1", T2)
a("v_xor_b32 v%d, v%d, v%d", T2, T2, T1)
a("v_lshl_add_u32 v%d, v%d, 4, v%d", T0, T2, T0)
a("v_add_u32 v%d, s10, v%d", VX0, T0)
a("v_xor_b32 v%d, 64, v%d", VX1, VX0)
a("v_add_u32 v%d, 0x2000, v%d", VX1, VX1)
a("s_and_b32 s12, s3, 3")
a("s_mul_i32 s10, s12, %d", 4 * 3584)
a("s_lshl_b32 s11, s7, 8")
a("s_add_u32 s10, s10, s11")
a("v_mul_u32_u24 v%d, 3584, v%d", T0, T1)
if G16:
    a("s_and_b32 s11, s3, 2")
    a("s_lshl_b32 s11, s11, 2")
    a("v_lshl_or_b32 v%d, v%d, 1, s11", T2, T1)
else:
    a("v_lshlrev_b32 v%d, 2, v%d", T2, T1)
a("v_and_b32 v%d, 15, v1", T3)
a("v_xor_b32 v%d, v%d, v%d", T2, T2, T3)
a("v_lshl_add_u32 v%d, v%d, 4, v%d", T0, T2, T0)
a("v_add_u32 v%d, s10, v%d", VW0, T0)
S_RO, S_LO = 60, 80
S_LO = 20
for j in range(4):
    a("s_add_u32 s10, s5, %d", j if opt("share", 1) else 0) if opt("share", 1) else a("s_mov_b32 s10, %d", j)
    a("s_and_b32 s10, s10, 3")
    a("s_mul_i32 s%d, s10, %d", S_RO + j, 16 * 3584)
a("s_lshl_b32 s%d, s3, 11", S_W2K)
CC = opt("cc", 8)
S_KO = 99 if not STAMP else 93
if CC < 8:
    NR = 8 - CC
    a("s_and_b32 s10, s5, 3")
    a("s_mul_i32 s10, s10, %d", opt("rm", 2))
    a("s_lshr_b32 s11, s5, 2")
    a("s_add_u32 s10, s10, s11")
    a("s_mul_i32 s11, s10, %d", (65536 + NR - 1) // NR)
    a("s_lshr_b32 s11, s11, 16")
    a("s_mul_i32 s11, s11, %d", NR)
    a("s_sub_u32 s10, s10, s11")
    seq = [CC + (i % NR) for i in range(16)]
    val = sum(x << (4 * i) for i, x in enumerate(seq))
    a("s_mov_b32 s12, 0x%x", val & 0xffffffff)
    a("s_mov_b32 s13, 0x%x", val >> 32)
    a("s_lshl_b32 s10, s10, 2")
    a("s_lshr_b64 s[12:13], s[12:13], s10")
    a("s_lshl_b32 s12, s12, %d", 4 * CC) if CC else None
    a("s_or_b32 s%d, s12, 0x%x", S_KO, sum(i << (4 * i) for i in range(CC)))
else:
    a("s_mov_b32 s%d, 0x76543210", S_KO)
a("s_and_b32 s10, s4, %d", opt("krot", 6))
a("s_mul_i32 s10, s10, 0x11111111")
a("s_add_u32 s%d, s%d, s10", S_KO, S_KO)
for r, n in ((SX, 2048 * 1024), (SG, 512 * 3584), (SWS, WS_BYTES), (SW, 1792 * 1024), (SO, 2048 * 1024)):
    a("s_mov_b32 s%d, 0x%x", r + 2, n)
    a("s_mov_b32 s%d, 0x20000", r + 3)
a("s_cmp_lt_u32 s5, 4")
a("s_cselect_b32 s%d, 1, 0", S_ISAUX)
if PRE_WAIT:
    a("s_waitcnt lgkmcnt(0)")
    kgen_loads()
def srd_base(r, p):
    a("s_mov_b32 s%d, s%d", r, p)
    a("s_and_b32 s%d, s%d, 0xffff", r + 1, p + 1)
srd_base(SX, P_U)
a("s_mov_b32 s%d, s%d", S_KR, S_KO)
a("s_cmp_lg_u32 s%d, 0", S_ISAUX)
a("s_cbranch_scc1 L_aux")

vm = []
def vmwait(tags):
    idx = [i for i, t in enumerate(vm) if t in tags]
    return len(vm) - 1 - max(idx)
def dma1(stage, j, m0r=None):
    slot = stage % 3
    if j == 0 or (j == 3 and stage < 2):
        a("s_bfe_u32 s%d, s%d, 0x%x", S_T, S_KR, (3 << 16) | (4 * stage))
        a("s_mul_i32 s%d, s%d, %d", S_T2, S_T, 64 * 3584)
        a("s_lshl_b32 s%d, s%d, 7", S_T, S_T)
    if j in (1, 2):
        a("s_add_u32 m0, s%d, %d", S_W2K, XB[slot] * BLK + (j - 1) * 1024)
        a("buffer_load_dwordx4 v%d, %s, s%d offen lds", VX0 + j - 1, sr(SX, 4), S_T)
    else:
        p = 0 if j == 0 else j - 2
        a("s_add_u32 m0, s%d, %d", S_LO + p, GB[slot] * BLK)
        a("s_add_u32 s%d, s%d, s%d", S_T3, S_T2, S_RO + p)
        a("buffer_load_dwordx4 v%d, %s, s%d offen lds", VW0, sr(SG, 4), S_T3)
    if m0r is not None: a("s_mov_b32 m0, s%d", m0r)
    vm.append(("G1", stage))
S_T3 = 24
vm += [("KP", 0)] * 7
a("s_cmp_ge_u32 s3, 4")
a("s_cselect_b32 s%d, s%d, s%d", SG, P_WU, P_WG)
a("s_cselect_b32 s%d, s%d, s%d", SG + 1, P_WU + 1, P_WG + 1)
a("s_and_b32 s%d, s%d, 0xffff", SG + 1, SG + 1)
a("s_lshr_b32 s10, s3, 2")
a("s_lshl_b32 s10, s10, 14")
a("s_and_b32 s11, s3, 3")
a("s_lshl_b32 s11, s11, 10")
a("s_add_u32 s10, s10, s11")
for j in range(4):
    a("s_add_u32 s11, s5, %d", j) if opt("share", 1) else a("s_mov_b32 s11, %d", j)
    a("s_and_b32 s11, s11, 3")
    a("s_lshl_b32 s11, s11, 12")
    a("s_add_u32 s%d, s10, s11", S_LO + j)
    if j == 0: dma1(0, 0); dma1(0, 1); dma1(0, 2)
stamp(11)
def common_srds():
    srd_base(SWS, P_WS); srd_base(SW, P_WD); srd_base(SO, P_OUT)
later_addrs(T0, T1, T2)
for j in range(3): dma1(1, j)
def g1_read_addrs():
    t0, t1, t2 = 18, 19, 20
    a("v_and_b32 v%d, 15, v1", t0)
    a("v_lshrrev_b32 v%d, 4, v1", t1)
    a("v_bfe_u32 v%d, v1, 1, 3", t2)
    a("v_xor_b32 v%d, v%d, v%d", t2, t2, t1)
    a("v_lshlrev_b32 v%d, 7, v%d", t0, t0)
    a("v_lshl_add_u32 v%d, v%d, 4, v%d", t0, t2, t0)
    a("s_lshl_b32 s10, s8, 13")
    a("v_add_u32 v%d, s10, v%d", VXR, t0)
    a("v_xor_b32 v%d, 64, v%d", VXR + 1, VXR)
    a("v_bfe_u32 v%d, v1, 2, 2", t0)
    a("v_lshl_add_u32 v%d, v%d, 3, v%d", t0, t1, t0)
    a("v_lshlrev_b32 v%d, 8, v%d", t0, t0)
    a("v_bfe_u32 v%d, v1, 2, 3", t2)
    a("s_and_b32 s10, s3, 2")
    a("s_lshl_b32 s10, s10, 1")
    a("v_xor_b32 v%d, s10, v%d", t2, t2)
    a("v_lshl_add_u32 v%d, v%d, 5, v%d", t0, t2, t0)
    a("v_and_b32 v%d, 3, v1", t2)
    a("v_lshl_add_u32 v%d, v%d, 3, v%d", t0, t2, t0)
    a("v_add_u32 v10, %d, v%d", 4 * BLK, t0)
    for m in range(1, 4): a("v_xor_b32 v%d, %d, v10", 10 + m, m << 5)
    for m in range(4): a("v_add_u32 v%d, %d, v%d", 14 + m, 4 * BLK, 10 + m)
def late_setup(comp, T0, T1, T2):
    common_srds()
    if comp:
        a("s_lshl_b32 s10, s6, 2")
        a("s_lshl_b32 s11, s8, 1")
        a("s_add_u32 s10, s10, s11")
        a("s_mul_i32 s10, s10, 112")
        a("s_lshl_b32 s11, s7, 3")
        a("s_add_u32 s10, s10, s11")
        a("s_lshl_b32 s11, s9, 2")
        a("s_add_u32 s10, s10, s11")
        a("s_lshl_b32 s%d, s10, 10", S_HST)
        later_addrs2(T0, T1, T2)
    else:
        a("s_mul_i32 s10, s6, %d", FSTR * (16 if PCF else 1))
        a("s_lshl_b32 s11, s7, 2")
        a("s_add_u32 s10, s10, s11")
        a("s_add_u32 s%d, s10, %d", S_FH, F_H2)
    later_addrs3(T0, T1, T2)
FX = 20
FA = 52
NAR = 10
ACC = 92
AORD = [(gu, m) for m in range(4) for gu in range(2)]
def xreads(step):
    st, ks = step // 2, step % 2
    return [("ds_read_b128 %s, v%d offset:%d" % (vr(FX + (step % 2) * 16 + 4 * tt, 4), VXR + ks, XB[st % 3] * BLK + tt * 2048), (step, "x", tt)) for tt in range(4)]
def areads(n):
    step, i = n // 8, n % 8
    st, ks = step // 2, step % 2
    gu, m = AORD[i]
    blk = GB[st % 3] + gu
    reg, rel = (10, blk - 4) if blk < 8 else (14, blk - 8)
    return [("ds_read_b64_tr_b16 %s, v%d offset:%d" % (vr(FA + 4 * (n % NAR) + 2 * hf, 2), reg + m, rel * BLK + ks * 8192 + hf * 1024), ("a", n)) for hf in range(2)]
def kgen_all(dmas):
    khead, ktail = kgen_valu(False)
    for i in khead: a(i)
    if opt("diag1", 0): stamp(7, True)
    a("s_mov_b32 m0, s%d", S_TM0)
    wr = {w_.split()[1]: w_ for w_ in kgen_writes()}
    q = []
    n = len(ktail); k = 0
    for n_, i in enumerate(ktail):
        a(i)
        if q and n_ % 1 == 0 and len(q) > 1: a(q.pop(0))
        if i.startswith("v_cvt"): q.append(wr[i.split()[1].rstrip(",")])
        if dmas and n_ >= opt("d1start", 40) and (n_ - opt("d1start", 40)) % opt("d1step", 20) == 0: dmas.pop(0)()
    for w_ in q: a(w_)
    for d in dmas: d()
def touch(stage):
    a("s_bfe_u32 s10, s%d, 0x%x", S_KR, (3 << 16) | (4 * stage))
    a("s_mul_i32 s10, s10, %d", 64 * 3584)
    a("s_add_u32 s10, s10, s%d", S_RO)
    a("buffer_load_dwordx4 v[52:55], v%d, %s, s10 offen", VW0, sr(SG, 4))
    vm.append(("T", 0))
if opt("stub", 1):
    for k_ in range(4):
        a("s_cmp_eq_u32 s3, %d", k_)
        a("s_cbranch_scc1 L_st%d", k_)
a("L_stret:")
a("s_waitcnt vmcnt(%d)", vmwait([("KP", 0)]))
stamp(0)
kgen_all([(lambda j=j: dma1(0, j, S_TM0)) for j in range(3, 6)])
stamp(14)
a("s_waitcnt lgkmcnt(0)")
a("s_barrier")
stamp(12)
lg = Lg()
for r in kreads(): lg.issue(*r)
g1_read_addrs()
run_kmfma(lg, [], 0)
for j in range(3, 6): dma1(1, j)
a("s_waitcnt vmcnt(%d)", vmwait([("G1", 0)]))
a("s_barrier")
stamp(1)
class Raw:
    def __init__(self, f): self.f = f
a("s_cmp_ge_u32 s3, 4")
a("s_cbranch_scc1 L_load")
WST = 144
WSTO = {5: 0, 4: 32, 6: 64}
W4T = opt("w4t", 0)
W2T = opt("w2t", 0)
W1T = opt("w1t", 1)
def stage_w(rd, i0=0, n=8):
    a("s_lshl_b32 s13, s%d, 4", S_RT + rd)
    a("s_add_u32 s13, s13, s%d", S_WSO)
    if i0: a("s_add_u32 s13, s13, %d", i0 * 8192)
    for i in range(i0, i0 + n):
        a("buffer_load_dwordx4 %s, v%d, %s, s13 offen", vr(WST + WSTO[rd] + 4 * i, 4), VWD, sr(SW, 4))
        if i < i0 + n - 1: a("s_add_u32 s13, s13, 8192")
EUD = 244
def eops_load(EU=56, ED=60, t1=64, t2=65, t3=66):
    a("v_and_b32 v%d, 31, v1", t1)
    a("v_lshrrev_b32 v%d, 5, v1", t2)
    a("v_lshlrev_b32 v%d, 4, v%d", t3, t2)
    a("v_lshl_add_u32 v%d, v%d, 10, v%d", t1, t1, t3)
    a("buffer_load_dwordx4 %s, v%d, %s, s%d offen", vr(EU, 4), t1, sr(SX, 4), S_OB)
    a("v_add_u32 v%d, s%d, v%d", t3, S_DOFF, t3)
    a("global_load_dwordx4 %s, v%d, %s", vr(ED, 4), t3, sr(P_DSK, 2))
def eops_calc(EU=56, ED=60, t1=64, t2=65, t3=66):
    for j in range(4):
        a("v_lshlrev_b32 v%d, 16, v%d", t1, EU + j)
        a("v_lshlrev_b32 v%d, 16, v%d", t2, ED + j)
        a("v_and_b32 v%d, 0xffff0000, v%d", EU + j, EU + j)
        a("v_and_b32 v%d, 0xffff0000, v%d", ED + j, ED + j)
        a("v_mul_f32 v%d, v%d, v%d", t1, t1, t2)
        a("v_mul_f32 v%d, v%d, v%d", t2, EU + j, ED + j)
        a("v_cvt_pk_bf16_f32 v%d, v%d, v%d", EUD + j, t1, t2)
def dma_w(rd, i):
    a("s_lshl_b32 s10, s3, 12")
    a("s_add_u32 m0, s10, %d", WB[rd] * BLK + i * 1024)
    a("s_lshl_b32 s10, s%d, 4", S_RT + rd)
    a("s_add_u32 s10, s10, s%d", S_W0S)
    a("s_add_u32 s10, s10, %d", i * 8192)
    a("buffer_load_dwordx4 v%d, %s, s10 offen lds", VWD, sr(SW, 4))
    vm.append(("W0", 0))
S_PFI = 101
lg = Lg()
for r in areads(0) + xreads(0): lg.issue(*r)
for n in range(1, 8):
    for r in areads(n): lg.issue(*r)
    if n == 3: kmfma_finish()
a("s_waitcnt lgkmcnt(8)") if False else None
kv = a.capture(late_setup, True, 18, 19, 7)
ECT = dict(EU=220, ED=224, t1=228, t2=229, t3=230)
def epilogue(p):
    for tt in range(4):
        dst = (FX if p == 0 else FX + 16) + 4 * tt
        for m in (2 * p, 2 * p + 1):
            g = ACC + (m * 4 + tt) * 4; u = ACC + ((4 + m) * 4 + tt) * 4
            if p == 0 and opt("eplain", 0):
                for q_ in range(4): a("v_mul_f32 v%d, v%d, v%d", g + q_, g + q_, u + q_)
            else:
                for q_ in range(2): a("v_pk_mul_f32 %s, %s, %s", vr(g + 2 * q_, 2), vr(g + 2 * q_, 2), vr(u + 2 * q_, 2))
        for m in (2 * p, 2 * p + 1):
            g = ACC + (m * 4 + tt) * 4
            for q_ in range(2): a("v_cvt_pk_bf16_f32 v%d, v%d, v%d", dst + 2 * (m & 1) + q_, g + 2 * q_, g + 2 * q_ + 1)
        a("buffer_store_dwordx4 %s, v18, %s, s%d offen offset:%d sc1", vr(dst, 4), sr(SWS, 4), S_HST if tt < 2 else 10, 2048 * p + 256 * (tt & 1))
epi = [a.capture(epilogue, 0), a.capture(epilogue, 1)]
AHEAD = 8
for step in range(16):
    st, ks = step // 2, step % 2
    q = []
    if step < 15:
        sched = {}
        for i in range(8):
            g_ = max(0, 4 * (i - (NAR - 8)) + 3)
            sched.setdefault(g_, []).extend(areads((step + 1) * 8 + i))
        xq = xreads(step + 1)
    order = [(i, tt) for i in range(8) for tt in range(4)]
    for g, (i, tt) in enumerate(order):
        gu, m = AORD[i]
        n = step * 8 + i
        d = vr(ACC + ((gu * 4 + m) * 4 + tt) * 4, 4)
        lg.need([("a", n), (step, "x", tt)])
        a("v_mfma_f32_16x16x32_bf16 %s, %s, %s, %s", d, vr(FA + 4 * (n % NAR), 4), vr(FX + (step % 2) * 16 + 4 * tt, 4), d if step else "0")
        if step < 15: q += sched.pop(g, [])
        if step == 15 and g >= 18:
            assert not kv
            for _ in range(opt("epg", 2)):
                if epi[0]: a(epi[0].pop(0))
        if q: lg.issue(*q.pop(0))
        elif step < 15 and xq: lg.issue(*xq.pop(0))
        elif kv:
            k_ = kv.pop(0)
            k_() if callable(k_) else a(k_)
            if kv and not callable(k_) and k_.startswith("s_") and not callable(kv[0]) and opt("s2", 1): a(kv.pop(0))
    assert not q and (step == 15 or not xq)
    if ks == 0:
        a("s_waitcnt %slgkmcnt(0)", "vmcnt(0) " if st == 0 else ""); lg.drained()
        a("s_barrier")
        if opt("stg", 0): stamp([4, 5, 6, 7, 8, 10, 13, 14][st], True)
        if st == 5:
            assert not kv, len(kv)
            kv = a.capture(eops_load, *[ECT[k] for k in ("EU", "ED", "t1", "t2", "t3")])
        if st == 6:
            kv = ["s_waitcnt vmcnt(0)"] + a.capture(eops_calc, *[ECT[k] for k in ("EU", "ED", "t1", "t2", "t3")])
        if st == 7:
            kv += ["ds_read_b32 v%d, v%d offset:%d" % (VN, VZ, L_SY + 100), "v_lshrrev_b32 v18, 4, v1", "v_lshlrev_b32 v18, 9, v18",
                   "v_and_b32 v19, 15, v1", "v_lshl_add_u32 v18, v19, 4, v18", "s_add_u32 s10, s%d, %d" % (S_HST, 112 * 1024)]
assert not kv
stamp(2)
for k_ in epi[0] + epi[1]: a(k_)
def hs_():
    a("v_mov_b32 v6, 1")
    sig(VZ, L_SY + 104)
onwave(3, hs_)
stamp(13)
a("v_and_b32 v19, 3, v1")
a("v_lshlrev_b32 v19, 2, v19")
lds_wait(19, L_SY + 16, 6, 0)
a("v_readfirstlane_b32 s%d, v%d", S_NONCE, VN)

def loader():
    SG2 = 28
    VX2 = 8
    a("L_load:")
    kmfma_finish()
    a.srd(SG2, P_WG, 512 * 3584)
    a("v_subrev_u32 v%d, 0x10000, v%d", VX2, VX0)
    a("v_subrev_u32 v%d, 0x10000, v%d", VX2 + 1, VX1)
    def stage(s_):
        slot = s_ % 3
        a("s_bfe_u32 s%d, s%d, 0x%x", S_T, S_KR, (3 << 16) | (4 * s_))
        a("s_mul_i32 s%d, s%d, %d", S_T2, S_T, 64 * 3584)
        a("s_lshl_b32 s%d, s%d, 7", S_T, S_T)
        def wp(p):
            a("s_add_u32 s%d, s%d, s%d", S_T3, S_T2, S_RO + p)
            for m in range(2):
                a("s_add_u32 m0, s%d, %d", S_LO + p, (GB[slot] - 1 + m) * BLK)
                a("buffer_load_dwordx4 v%d, %s, s%d offen lds", VW0, sr([SG2, SG][m], 4), S_T3)
                vm.append(("G1", s_))
        wp(0)
        for h_ in range(2):
            for i in range(2):
                a("s_add_u32 m0, s%d, %d", S_W2K, (XB[slot] * BLK + i * 1024 - (1 - h_) * 8192) & 0xffffffff)
                a("buffer_load_dwordx4 v%d, %s, s%d offen lds", [VX2, VX0][h_] + i, sr(SX, 4), S_T)
                vm.append(("G1", s_))
        for p in range(1, 4): wp(p)
    wl = hl_list(True)
    def wloads(n):
        for _ in range(n):
            wl.pop(0)(); vm.append(("W", 0))
    stage(2)
    ls = a.capture(late_setup, False, T0, T1, T2)
    for st in range(8):
        if st < 7: a("s_waitcnt vmcnt(%d) lgkmcnt(0)", vmwait([("G1", st + 1)]))
        else: a("s_waitcnt lgkmcnt(0)")
        a("s_barrier")
        if st + 3 <= 7: stage(st + 3)
        if st == 0: onwave(4, zero_pads_k)
        if 1 <= st <= 3:
            n_ = (len(ls) + 3 - st) // (4 - st)
            for k_ in ls[:n_]: a(k_)
            ls = ls[n_:]
        if st == 4:
            a("v_mov_b32 v21, 1")
            wloads(NW[0])
        if st == 5:
            eops_load(); vm.append(("E", 0)); vm.append(("E", 0))
            a("s_mov_b32 s%d, %d", S_PB, F_A)
            poll_issue(32); vm.append(("X", 0))
            nonce_issue(); vm.append(("X", 0))
            wloads(NW[1])
            onwave(5, zero_pads_u)
        if st == 6:
            a("s_waitcnt vmcnt(%d)", vmwait([("X", 0)]))
            nonce_check()
            def wn():
                a("s_mov_b64 exec, 1")
                a("ds_write_b32 v%d, v%d offset:%d", VZ, VN, L_SY + 100)
                a("s_mov_b64 exec, -1")
            onwave(4, wn)
            poll_check(16)
            u_load(); vm.append(("U", 0)); vm.append(("U", 0))
            wloads(NW[2])
    stamp(2)
    a("v_mov_b32 v6, 1")
    a("v_mov_b32 v7, %d", L_SY)
    a("s_waitcnt vmcnt(%d)", vmwait([("U", 0)]))
    u_write()
    sig(VSY, 0)
    stamp(13)
    eops_calc()
NW = [opt("nw4", 0), opt("nw5", 8), opt("nw6", 8)]
AUX0 = len(a.lines)
HIST0 = list(a.hist)
a("L_aux:")
common_srds()
a("s_lshl_b32 s6, s4, 2")
a("s_add_u32 s6, s6, s5")
PITCH = 1040
LA = 6 * BLK - 1024
LGW = 0
a("v_lshlrev_b32 v4, 4, v1")
a("v_mov_b32 v10, 0")
a("s_mov_b32 s9, %d", F_E)
a("buffer_load_dword v12, v10, %s, s9 offen sc1", sr(SWS, 4))
a("s_lshl_b32 s7, s6, 16")
a("s_lshl_b32 s8, s3, 13")
a("s_add_u32 s7, s7, s8")
a("s_mul_i32 s8, s3, %d", 8 * PITCH)
for j in range(8):
    a("s_add_u32 m0, s8, %d", LA + j * PITCH)
    a("s_add_u32 s11, s7, %d", j * 1024)
    a("buffer_load_dwordx4 v4, %s, s11 offen lds", sr(SX, 4))
a("global_load_dwordx4 v[28:31], v4, %s", sr(P_GW, 2))
a("s_or_b32 s10, s2, s3")
a("s_cmp_lg_u32 s10, 0")
a("s_cbranch_scc1 L_nononce")
a("s_mov_b32 s10, 0x9e3779b1")
a("s_waitcnt vmcnt(9)")
a("v_mul_lo_u32 v12, v12, s10")
a("v_add_u32 v12, 0x7f4a7c15, v12")
a("v_mov_b32 v13, 1")
a("s_mov_b64 exec, 1")
a("global_store_dwordx2 v10, v[12:13], %s sc1", sr(P_DBG, 2))
a("buffer_store_dword v12, v10, %s, s9 offen sc1", sr(SWS, 4))
a("s_mov_b64 exec, -1")
a("L_nononce:")
a("v_and_b32 v5, 7, v0")
a("v_lshlrev_b32 v5, 4, v5")
a("v_lshrrev_b32 v6, 4, v1")
a("v_bfe_u32 v7, v1, 2, 2")
a("v_lshl_add_u32 v7, v7, 2, v6")
a("v_mul_u32_u24 v7, %d, v7", PITCH)
a("v_and_b32 v8, 3, v1")
a("v_lshl_add_u32 v7, v8, 3, v7")
a("s_and_b32 s9, s3, 1")
a("s_mul_i32 s10, s9, %d", 32 * PITCH)
a("s_lshr_b32 s11, s3, 1")
a("s_lshl_b32 s12, s11, 8")
a("s_add_u32 s10, s10, s12")
a("s_add_u32 s10, s10, %d", LA)
a("v_add_u32 v7, s10, v7")
a("v_bfe_u32 v8, v1, 1, 3")
a("v_lshlrev_b32 v8, 13, v8")
a("v_lshl_add_u32 v8, v6, 5, v8")
a("v_and_b32 v9, 1, v1")
a("v_lshl_add_u32 v8, v9, 4, v8")
a("s_lshl_b32 s12, s11, 19")
a("s_lshl_b32 s13, s6, 1")
a("s_add_u32 s13, s13, s9")
a("s_lshl_b32 s13, s13, 7")
a("s_add_u32 s12, s12, s13")
a("s_add_u32 s12, s12, %d", WS_UT)
a("v_lshrrev_b32 v9, 3, v0")
a("v_mul_u32_u24 v10, %d, v9", PITCH)
a("v_add_u32 v10, v10, v5")
a("v_add_u32 v10, %d, v10", LA)
a("s_waitcnt vmcnt(0)")
a("ds_write_b128 v4, v[28:31] offset:%d", LGW)
a("s_waitcnt lgkmcnt(0)")
a("s_barrier")
stamp(0)
for j in range(8):
    for hf in range(2):
        a("ds_read_b64_tr_b16 %s, v7 offset:%d", vr(64 + 4 * j + 2 * hf, 2), hf * 16 * PITCH + j * 32)
nonce_issue()
for j in range(8):
    a("s_waitcnt lgkmcnt(%d)", 14 - 2 * j)
    a("s_add_u32 s13, s12, %d", j * 65536)
    a("buffer_store_dwordx4 %s, v8, %s, s13 offen sc1", vr(64 + 4 * j, 4), sr(SWS, 4))
for j in range(8):
    a("ds_read_b128 %s, v10 offset:%d", vr(96 + 4 * j, 4), j * 128)
    a("ds_read_b128 %s, v5 offset:%d", vr(32 + 4 * j, 4), LGW + j * 128)
a("v_mov_b32 v11, 0")
a("v_mov_b32 v12, 0")
a("s_waitcnt lgkmcnt(0)")
for j in range(32):
    a("v_dot2_f32_bf16 v%d, v%d, v%d, v%d", 11 + j % 2, 32 + j, 96 + j, 11 + j % 2)
a("v_add_f32 v11, v11, v12")
a("v_add_f32_dpp v11, v11, v11 quad_perm:[1,0,3,2] row_mask:0xf bank_mask:0xf")
a("v_add_f32_dpp v11, v11, v11 quad_perm:[2,3,0,1] row_mask:0xf bank_mask:0xf")
a("v_add_f32_dpp v11, v11, v11 row_half_mirror row_mask:0xf bank_mask:0xf")
a("v_mul_f32 v11, 0xbfb8aa3b, v11")
a("v_exp_f32 v11, v11")
a("v_add_f32 v11, 1.0, v11")
a("v_rcp_f32 v11, v11")
a("v_lshlrev_b32 v9, 2, v9")
a("s_waitcnt vmcnt(0)")
nonce_check()
a("s_barrier")
a("s_cmp_lg_u32 s3, 0")
a("s_cbranch_scc1 L_auxnf")
a("s_lshl_b32 s10, s6, 2")
a("s_add_u32 s10, s10, %d", F_A)
flag_store("s10")
a("L_auxnf:")
stamp(1)
a("s_lshl_b32 s13, s6, 8")
a("s_add_u32 s13, s13, %d", WS_G)
a("v_cmp_eq_u32 vcc, 0, v5")
a("s_mov_b64 exec, vcc")
a("buffer_store_dword v11, v9, %s, s13 offen sc1", sr(SWS, 4))
a("s_mov_b64 exec, -1")
later_addrs(T0, T1, T2)
later_addrs2(T0, T1, T2)
later_addrs3(T0, T1, T2)
if opt("apf", 1):
    a("s_lshl_b32 s%d, s6, 3", S_PFI)
    a("s_add_u32 s%d, s%d, s3", S_PFI, S_PFI)
    a("s_lshr_b32 s10, s%d, 6", S_PFI)
    a("s_mul_i32 s10, s10, 448")
    a("s_and_b32 s11, s%d, 63", S_PFI)
    a("s_add_u32 s10, s10, s11")
    a("s_lshl_b32 s10, s10, 10")
    for k_ in range(7):
        a("buffer_load_dwordx4 v[52:55], v%d, %s, s10 offen", VH, sr(SW, 4))
        a("s_add_u32 s10, s10, 65536")
kgen_all([])
a("s_waitcnt lgkmcnt(0)")
a("s_barrier")
lg = Lg()
for r in kreads(): lg.issue(*r)
run_kmfma(lg, [], 0)
def p_():
    a("s_mov_b32 s%d, %d", S_PB, F_A)
    poll_issue(32)
    a("s_waitcnt vmcnt(0)")
    poll_check(16)
onwave(0, p_)
a("s_waitcnt vmcnt(0)")
a("s_barrier")
role(u_load, None)
eops_load()
kmfma_finish()
onwave(0, zero_pads_k)
onwave(1, zero_pads_u)
def p_():
    a("s_lshl_b32 s10, s6, 2")
    a("s_add_u32 s10, s10, %d", F_G)
    flag_store("s10")
onwave(4, p_)
a("s_waitcnt vmcnt(0)")
role(u_write, None)
eops_calc()
AUXW = len(a.lines)
a("s_waitcnt lgkmcnt(0)")
a("s_barrier")
stamp(2)

a("s_branch L_post")
aux_lines = a.lines[AUX0:]
a.lines = a.lines[:AUX0]
a.hist = HIST0
a("L_post:")
VA, VB, VC, VY = 2, 3, 4, 5
a("v_mov_b32 v6, 1")
a("v_mov_b32 v7, %d", L_SY)
stamp(3)
a("s_cmp_ge_u32 s3, 4")
a("s_cbranch_scc1 L_help")

HF = 80
HRING = 16
VO = 14
def hload(j0, n, vml):
    for j in range(j0, j0 + n):
        if j % 4 == 0 or j == j0:
            a("s_add_u32 s%d, s%d, s%d", S_T, S_HB, S_RT + j // 4)
        a("buffer_load_dwordx4 %s, v%d, %s, s%d offen offset:%d%s", vr(HF + 4 * (j % HRING), 4), VH, sr(SWS, 4), S_T, (j % 4) * 1024, "" if opt("hplain", 0) else " sc1")
        vml.append(("H", j))

if opt("prio", 0): a("s_setprio %d", opt("prio", 0))
a("s_lshl_b32 s10, s3, 4")
a("s_add_u32 s10, s10, %d", L_SY + 32)
a("v_mov_b32 v108, s10")
a("v_xor_b32 v109, 16, v108")
a("s_mov_b32 s14, 0x11111111")
a("s_mov_b32 s15, 0x11111111")
a("s_mov_b64 vcc, s[14:15]")
a("s_mov_b32 s12, 0x33333333")
a("s_mov_b32 s13, 0x33333333")
a("s_bitcmp1_b32 s3, 0")
a("s_cbranch_scc1 L_set1")
BF = 112
AF = 8
AC = 28
C1POS = opt("c1pos", 26)
LOOK = opt("look", 6)
NC0 = opt("nc0", 6)
FPG = opt("fpg", 4)
vmc = None
VCF, VCP = 108, 109
DONE = {}
def done_pos(jt):
    CM = opt("cm", 0)
    for tiles in ([0, 3, 4, 7], [1, 2, 5, 6]):
        if jt in tiles:
            groups = {0: [[0, 1, 2, 3]], 1: [[0], [1], [2], [3]], 2: [[0, 1], [2, 3]], 3: [[0, 1, 2], [3]]}[CM]
            sc = [tiles[ti] for g_ in groups for dl in range(4 * tiles[g_[-1]] + 4) for ti in g_ if dl <= 4 * tiles[ti] + 3]
            return max(p for p, x in enumerate(sc) if x == jt)
for si, tiles in enumerate([[0, 3, 4, 7], [1, 2, 5, 6]]):
    if si == 1:
        a("L_st0:"); a("s_branch L_stret")
        a("L_set1:")
    other = [[1, 2, 5, 6], [0, 3, 4, 7]][si]
    lg = Lg()
    CM = opt("cm", 0)
    groups = {0: [[0, 1, 2, 3]], 1: [[0], [1], [2], [3]], 2: [[0, 1], [2, 3]], 3: [[0, 1, 2], [3]]}[CM]
    sched = []; aid = []; adl = []
    for g_ in groups:
        for dl in range(4 * tiles[g_[-1]] + 4):
            adl.append(dl)
            for ti in g_:
                if dl <= 4 * tiles[ti] + 3:
                    sched.append((dl, ti, tiles[ti])); aid.append(len(adl) - 1)
    NA = 5
    lastuse = {}
    for pos in range(len(sched)): lastuse[aid[pos]] = pos
    loads = []; seenB = set(); seenA = set()
    for pos, (dl, ti, jt) in enumerate(sched):
        if aid[pos] not in seenA: seenA.add(aid[pos]); loads.append(("A", aid[pos], pos))
        e = 4 * jt - dl
        if e not in seenB: seenB.add(e); loads.append(("B", e, pos))
    done_at = {jt: max(p for p, x in enumerate(sched) if x[2] == jt) for jt in tiles}
    DONE.update(done_at)
    def ld_instrs(kind, idx):
        if kind == "A":
            r = AF + 4 * (idx % NA); dl_ = adl[idx]
            return ["ds_read_b64_tr_b16 %s, v%d offset:%d" % (vr(r + 2 * hf, 2), VA, 128 * dl_ + 32 * (1 - hf)) for hf in range(2)]
        return ["ds_read_b128 %s, v%d offset:%d" % (vr(BF + 4 * (idx + 3), 4), VB, 128 * (idx + 3))]
    nys = [0]
    ystores = []
    def post(ti, jt):
        b = AC + 20 * ti
        L = []
        q1 = "quad_perm:[1,1,3,3] row_mask:0xf bank_mask:0xf"; q2 = "quad_perm:[2,2,2,2] row_mask:0xf bank_mask:0xf"
        q0 = "quad_perm:[0,0,0,0] row_mask:0xf bank_mask:0xf"
        L.append("v_mov_b32_dpp v%d, v%d %s" % (b + 16, b + 15, q1))
        for q in range(15, 0, -1):
            L.append("v_add_f32_dpp v%d, v%d, v%d %s" % (b + q, b + q - 1, b + q, q1))
        L.append("v_mov_b32_dpp v%d, v%d %s" % (b + 18, b + 16, q2))
        L.append("v_mov_b32_dpp v%d, v%d %s" % (b + 17, b + 15, q2))
        L.append("v_add_f32_dpp v%d, v%d, v%d %s" % (b + 16, b + 14, b + 16, q2))
        def cw():
            a("s_mov_b64 exec, vcc")
            lg.issue("ds_write_b128 v%d, %s offset:%d" % (VC, vr(b + 16, 4), 256 * jt + 16))
            if jt + 1 in other:
                a("s_mov_b64 exec, 1")
                lg.issue("ds_write_b32 v%d, v6 offset:%d" % (VCF, 4 * ti))
            a("s_mov_b64 exec, -1")
        L.append(cw)
        for q in range(15, 1, -1):
            L.append("v_add_f32_dpp v%d, v%d, v%d %s" % (b + q, b + q - 2, b + q, q2))
        for q in range(2, 8):
            L.append("v_cvt_pk_bf16_f32 v%d, v%d, v%d" % (b + 16 + (q - 2) if q < 4 else b + q, b + 2 * q, b + 2 * q + 1))
        L = [(0, x) for x in L]
        part = (jt - 1) in other
        mp = done_pos(jt - 1) + opt("cmarg", 22) if part else 0
        def rd():
            if part: lg.issue("ds_read_b32 v%d, v%d offset:%d" % (b + 12, VCP, 4 * other.index(jt - 1)), ("cf", ti))
            lg.issue("ds_read_b128 %s, v%d offset:%d" % (vr(b + 8, 4), VC, 256 * jt), ("cy", ti))
        L.append((mp, rd))
        def chk():
            lg.need([("cy", ti)])
            if part:
                ok = a.label("Lcok"); sl = a.label("Lcsl")
                a("v_readfirstlane_b32 s10, v%d", b + 12)
                a("s_cmp_eq_u32 s10, 0")
                a("s_cbranch_scc1 %s", sl)
                a(ok + ":")
                def sp(ok=ok, sl=sl, oi=other.index(jt - 1)):
                    a(sl + ":")
                    lds_wait(VCP, 4 * oi, b + 12, 0)
                    a("s_mov_b64 vcc, s[14:15]")
                    a("ds_read_b128 %s, v%d offset:%d", vr(b + 8, 4), VC, 256 * jt)
                    a("s_waitcnt lgkmcnt(0)")
                    a("s_branch %s", ok)
                slow.append(sp)
        L.append((-3, chk))
        for q in range(3):
            L.append((0, "v_add_f32 v%d, v%d, v%d" % (b + q, b + q, b + 8 + q)))
        L.append((0, "v_cvt_pk_bf16_f32 v%d, v%d, v%d" % (b, b, b + 1)))
        L.append((0, "v_cvt_pk_bf16_f32 v%d, v%d, v%d" % (b + 1, b + 2, b + 3)))
        L.append((0, "v_cndmask_b32_dpp v%d, v%d, v%d, vcc %s" % (b + 2, b + 6, b + 16, q0)))
        L.append((0, "v_cndmask_b32_dpp v%d, v%d, v%d, vcc %s" % (b + 3, b + 7, b + 17, q0)))
        L.append((0, "v_cndmask_b32_dpp v%d, v%d, v%d, vcc %s" % (b, b + 4, b, q0)))
        L.append((0, "v_cndmask_b32_dpp v%d, v%d, v%d, vcc %s" % (b + 1, b + 5, b + 1, q0)))
        def st_():
            a("s_mov_b64 exec, s[12:13]")
            a("buffer_store_dwordx4 %s, v%d, %s, s%d offen offset:%d sc1", vr(b, 4), VY, sr(SWS, 4), S_YB, 512 * jt)
            a("s_mov_b64 exec, -1")
            nys[0] += 1
        if opt("ydefer", 1): ystores.append(st_)
        else: L.append((0, st_))
        return L
    li = 0; queues = []
    def emit(x): a(x) if isinstance(x, str) else x()
    for pos, (dl, ti, jt) in enumerate(sched):
        for ld in list(loads):
            kind, idx, fp = ld
            if fp <= pos + LOOK and not (kind == "A" and idx >= NA and lastuse[idx - NA] >= pos):
                for ins in ld_instrs(kind, idx): lg.issue(ins, (kind, idx))
                loads.remove(ld)
        e = 4 * jt - dl
        lg.need([("A", aid[pos]), ("B", e)])
        d = vr(AC + 20 * ti, 16)
        a("v_mfma_f32_32x32x16_bf16 %s, %s, %s, %s", d, vr(AF + 4 * (aid[pos] % NA), 4), vr(BF + 4 * (e + 3), 4), d if dl else "0")
        if opt("diag2", 0) and pos in (15, 39):
            stamp({15: 11, 39: 12}[pos], True); lg.drained()
        if pos == C1POS:
            a("s_waitcnt vmcnt(%d)", nys[0])
            lg.run(lambda: sig(VSY, 0))
        bud = FPG
        for qu in queues:
            while bud and qu[0] and pos >= qu[1]:
                mp, x = qu[0][0]
                if mp > pos: break
                if mp < 0:
                    qu[0][0] = (pos - mp, x); break
                qu[0].pop(0); emit(x); bud -= 1
        if dl == 4 * jt + 3: queues.append([post(ti, jt), pos + 3])
    stamp(4)
    def upto(qu, name, incl):
        names = [getattr(x, "__name__", "") for mp, x in qu[0]]
        if name not in names: return
        n_ = names.index(name) + (1 if incl else 0)
        for mp, x in qu[0][:n_]: emit(x)
        qu[0] = qu[0][n_:]
    for qu in queues[:-1]: upto(qu, "cw", True)
    upto(queues[-1], "cw", True)
    for qu in queues[:-1]: upto(qu, "rd", True)
    upto(queues[-1], "rd", True)
    for qu in queues:
        for mp, x in qu[0]: emit(x)
    for x in ystores: x()
    stamp(5)
    a("s_branch L_ycom")

a("L_st1:"); a("s_branch L_stret")
a("L_ycom:")
a("ds_read_b32 v3, v7 offset:96")
def ypublish(n):
    lb = a.label("Lnyf")
    a("s_waitcnt vmcnt(%d)", n)
    sig(VSY, 112)
    a("s_cmp_lg_u32 s3, 0")
    a("s_cbranch_scc1 %s", lb)
    a("v_and_b32 v2, 3, v1")
    a("v_lshl_add_u32 v2, v2, 2, v7")
    lds_wait(2, 112, 3)
    a("s_lshl_b32 s10, s2, 2")
    a("s_add_u32 s10, s10, %d", F_Y)
    flag_store("s10")
    a(lb + ":")
    stamp(6)
if opt("hfirst", 1):
    lds_wait(7, 96, 3, 0)
    vmc = []
    hload(0, NC0, vmc)
    ypublish(NC0)
    a("s_branch L_g2c")
else:
    a("s_waitcnt lgkmcnt(0)")
    a("v_readfirstlane_b32 s10, v3")
    a("s_cmp_eq_u32 s10, 0")
    a("s_cbranch_scc1 L_ylate")
    vmc = []
    hload(0, NC0, vmc)
    ypublish(NC0)
    a("s_branch L_g2c")
    a("L_ylate:")
    ypublish(0)
    lds_wait(7, 96, 3)
    hload(0, NC0, [])
    a("s_branch L_g2c")

a("L_st2:"); a("s_branch L_stret")
WORD = [4, 0, 1, 5, 6, 2, 3]
def hl_list(all_=False):
    L = []
    for rd in WORD:
        for i in range(8):
            def f(rd=rd, i=i):
                if rd < 4:
                    a("s_add_u32 m0, s%d, %d", S_WLD, WB[rd] * BLK + i * 1024)
                if i == 0:
                    a("s_lshl_b32 s13, s%d, 4", S_RT + rd)
                    a("s_add_u32 s13, s13, s%d", S_WSO)
                else:
                    a("s_add_u32 s13, s13, 8192")
                if rd < 4:
                    a("buffer_load_dwordx4 v%d, %s, s13 offen lds", VWD, sr(SW, 4))
                else:
                    a("buffer_load_dwordx4 %s, v%d, %s, s13 offen", vr(WST + WSTO[rd] + 4 * i, 4), VWD, sr(SW, 4))
            L.append(f)
    return L if all_ else L[sum(NW):]
assert all(x % 8 == 0 for x in NW) and NW[0] <= 8 and NW[0] + NW[1] <= 16
loader()
a("L_help:")
NPRE = opt("npre", 0)
for f in hl_list()[:NPRE]: f()
if opt("hold", 1):
    a("s_cmp_lg_u32 s%d, 0", S_ISAUX)
    a("s_cbranch_scc1 L_nohold")
    lds_wait(7, 104, 3, 1)
    a("L_nohold:")
stamp(10)
a("s_cmp_lg_u32 s3, 4")
a("s_cbranch_scc1 %s", "L_nohf2" if opt("allpoll", 0) else "L_hdma")
a("s_cmp_lg_u32 s%d, 0", S_ISAUX)
a("s_cbranch_scc1 L_nohf")
a("v_and_b32 v2, 3, v1")
a("v_lshl_add_u32 v2, v2, 2, v7")
lds_wait(2, 0, 3)
if PCF and opt("sflag", 2) & 2:
    a("s_mov_b32 s11, s%d", S_NONCE)
    for k_ in range(16):
        a("s_buffer_atomic_swap s11, %s, s%d", sr(SWS, 4), S_FH)
        if k_ < 15: a("s_add_u32 s%d, s%d, %d", S_FH, S_FH, FSTR)
elif PCF:
    a("v_mul_u32_u24 v%d, %d, v1", VN, FSTR)
    a("v_mov_b32 v%d, s%d", VN + 1, S_NONCE)
    a("s_mov_b64 exec, 0xffff")
    a("buffer_store_dword v%d, v%d, %s, s%d offen sc1", VN + 1, VN, sr(SWS, 4), S_FH)
    a("s_mov_b64 exec, -1")
elif opt("sflag", 2) & 2:
    a("s_mov_b32 s11, s%d", S_NONCE)
    a("s_buffer_atomic_swap s11, %s, s%d", sr(SWS, 4), S_FH)
else:
    flag_store("s%d" % S_FH)
a("L_nohf:")
stamp(4)
a("L_nohf2:")
if PCF:
    a("s_lshl_b32 s%d, s%d, 3", S_PB, S_TB)
    a("s_add_u32 s%d, s%d, s%d", S_PB, S_PB, S_DB)
else:
    a("s_lshr_b32 s%d, s%d, 1", S_PB, S_TB)
a("s_mul_i32 s%d, s%d, %d", S_PB, S_PB, FSTR)
a("s_add_u32 s%d, s%d, %d", S_PB, S_PB, F_H2)
a("s_mov_b32 s8, s%d", S_NONCE)
a("s_mov_b32 s9, s%d", S_NONCE)
def sp_cmp():
    a("s_waitcnt lgkmcnt(0)")
    a("s_xor_b64 s[10:11], s[16:17], s[8:9]")
    for i in range(1, 7):
        a("s_xor_b64 s[14:15], s[%d:%d], s[8:9]", 16 + 2 * i, 17 + 2 * i)
        a("s_or_b64 s[10:11], s[10:11], s[14:15]")
rest = hl_list()[NPRE:]
SEG = opt("seg", 60)
segs = [rest[i:i + SEG] for i in range(0, len(rest), SEG)]
for k, sg in enumerate(segs):
    a("s_buffer_load_dwordx16 s[16:31], %s, s%d glc", sr(SWS, 4), S_PB)
    for f in sg: f()
    sp_cmp()
    a("s_cbranch_scc0 L_fnd%d", k + 1)
a("s_mov_b32 s12, 0")
a("L_sp:")
if opt("allpoll", 0):
    a("ds_read_b32 v3, v7 offset:96")
    a("s_waitcnt lgkmcnt(0)")
    a("v_readfirstlane_b32 s10, v3")
    a("s_cmp_lg_u32 s10, 0")
    a("s_cbranch_scc1 L_fnd%d", len(segs))
a("s_buffer_load_dwordx16 s[16:31], %s, s%d glc", sr(SWS, 4), S_PB)
a("s_add_u32 s12, s12, 1")
sp_cmp()
pass
a("s_cbranch_scc0 L_fnd%d", len(segs))
a("s_cmp_lt_u32 s12, %d", opt("spn", 64))
a("s_cbranch_scc1 L_sp")
poll_issue(14)
a("s_waitcnt vmcnt(0)")
poll_check(1)
a("s_branch L_fnd%d", len(segs))
for k in range(1, len(segs) + 1):
    a("L_fnd%d:" % k)
    sig(7, 96)
    stamp(5)
    a("s_branch L_seg%d" % k)
a("L_hdma:")
for k, sg in enumerate(segs):
    for f in sg: f()
    a("L_seg%d:" % (k + 1))
if not opt("allpoll", 0):
    if STAMP:
        a("s_cmp_eq_u32 s3, 4")
        a("s_cbranch_scc1 L_hld")
    stamp(4)
    lds_wait(7, 96, 3)
    stamp(5)
a("L_hld:")
vmh = [("W", 103)]
NH0 = opt("nh0", 8)
hload(0, NH0, vmh)
stamp(6)

def gemm2(role_, vml):
    helper = role_ == "h"
    R = 8
    VYR, EG = 15, 16
    EY = 176
    VWW = 76
    t0, t1, t2, t3 = 2, 3, 4, 5
    AFR = 20
    AC2 = 44
    YL = 180
    A0 = 188
    RR = 16
    def vw(tags):
        idx = [i for i, t in enumerate(vml) if t in tags]
        if opt("g2nowait", 0) and tags[0][0] in "HW": return 63
        if not idx: return 63
        return min(63, len(vml) - 1 - max(idx))
    a("v_mov_b32 v%d, v%d", R, VR0)
    a("v_xor_b32 v%d, 64, v%d", R + 1, VR0)
    for m in range(2):
        a("v_add_u32 v%d, %d, v%d", R + 2 + m, 4 * BLK, R + m)
        a("v_add_u32 v%d, %d, v%d", R + 4 + m, 8 * BLK, R + m)
    if helper: a("s_waitcnt vmcnt(%d)", vw([("W", 103)]))
    a("s_barrier")
    stamp(7)
    def reads(step):
        rd, ks = step // 4, step % 4
        blk = WB[rd]
        f = AFR + (step % 3) * 8
        L = []
        for m in range(2):
            for hf in range(2):
                L.append(("ds_read_b64_tr_b16 %s, v%d offset:%d" % (vr(f + 4 * m + 2 * hf, 2), R + 2 * (blk // 4) + m, (blk % 4) * BLK + ((ks >> 1) * 4096 + (ks & 1) * 1024 + hf * 2048 if G16 else ks * 2048 + hf * 1024)), (step, m)))
        return L
    def ypoll_issue():
        a("s_lshl_b32 s10, s%d, 7", S_DB)
        a("v_lshl_add_u32 v%d, v1, 2, s10", VN + 2)
        a("s_lshl_b32 s10, s%d, 2", S_TB)
        a("s_add_u32 s10, s10, %d", F_G - F_Y)
        a("v_mov_b32 v%d, s10", t0)
        a("v_cmp_lt_u32 vcc, 31, v1")
        a("v_cndmask_b32 v%d, v%d, v%d, vcc", VN + 2, VN + 2, t0)
        a("s_mov_b32 s%d, %d", S_PB, F_Y)
        a("buffer_load_dword v%d, v%d, %s, s%d offen sc1", VN - 1, VN + 2, sr(SWS, 4), S_PB)
        vml.append(("PY", 0))
    def yload():
        poll_check(1)
        a("v_lshrrev_b32 v%d, 3, v1", t0)
        a("v_lshlrev_b32 v%d, 12, v%d", t0, t0)
        a("v_and_b32 v%d, 7, v1", t1)
        a("v_lshl_add_u32 v%d, v%d, 4, v%d", t0, t1, t0)
        a("s_lshl_b32 s12, s%d, 3", S_DB)
        a("s_add_u32 s12, s12, s3")
        a("s_lshl_b32 s12, s12, 15")
        a("s_lshl_b32 s13, s%d, 7", S_TB)
        a("s_add_u32 s12, s12, s13")
        a("s_add_u32 s12, s12, %d", WS_Y)
        a("buffer_load_dwordx4 %s, v%d, %s, s12 offen sc1", vr(YL, 4), t0, sr(SWS, 4))
        vml.append(("Y", 0))
        a("v_and_b32 v%d, 31, v1", t1)
        a("v_lshlrev_b32 v%d, 2, v%d", t1, t1)
        a("buffer_load_dword v%d, v%d, %s, s%d offen sc1", EG, t1, sr(SWS, 4), S_GOFF)
        vml.append(("Y", 0))
    lg = Lg()
    for r in reads(0) + reads(1): lg.issue(*r)
    pend = []
    def wwrite(rd, i):
        if i == 0: a("v_add_u32 v%d, %d, v%d", VWW, WB[rd] * BLK, VWW + 1)
        lg.issue("ds_write_b128 v%d, %s offset:%d" % (VWW, vr(WST + WSTO[rd] + 4 * i, 4), i * 1024), ("ww", rd))
    if helper:
        a("v_add_u32 v%d, s%d, v%d", VWW + 1, S_WLD, VH)
        pend = [(lambda i=i: wwrite(4, i)) for i in range(8)]
    vfill = []
    nh = NH0 if helper else NC0
    YPS = opt("yps", 18)
    for step in range(28):
        rd, ks = step // 4, step % 4
        f = AFR + (step % 3) * 8
        nxt = reads(step + 2) if step < 26 else []
        for m in range(2):
            d = vr(AC2 + 16 * m, 16)
            lg.need([(step, m)], "vmcnt(%d) " % vw([("H", step)]) if m == 0 else "")
            a("v_mfma_f32_32x32x16_bf16 %s, %s, %s, %s", d, vr(f + 4 * m, 4), vr(HF + 4 * (step % HRING), 4), d if step else "0")
            for r in nxt[2 * m:2 * m + 2]: lg.issue(*r)
            if nh < 28 and m == 0:
                hload(nh, 1, vml); nh += 1
            if m == 0 and step == opt("yls", 23):
                a("s_waitcnt vmcnt(%d)", vw([("PY", 0)]))
                yload()
            if m == 1 and step == YPS: ypoll_issue()
            if pend: pend.pop(0)()
            for _ in range(5):
                if vfill: lg.run(vfill.pop(0))
        if opt("stg2", 0) and ks == 3 and rd < 5:
            stamp(10 + rd); lg.drained()
        if step == 20:
            for j in range(4):
                vfill.append("v_lshlrev_b32 v%d, 16, v%d" % (A0 + 2 * j, EUD + j))
                vfill.append("v_and_b32 v%d, 0xffff0000, v%d" % (A0 + 2 * j + 1, EUD + j))
            vfill += ["v_and_b32 v%d, 31, v1" % t2, "v_lshrrev_b32 v%d, 5, v1" % t3, "v_lshlrev_b32 v%d, 4, v%d" % (t3, t3),
                      "v_lshl_add_u32 v%d, v%d, 10, v%d" % (VO, t2, t3)]
        if ks == 1 and 1 <= rd < 6:
            if helper and rd >= 3: lg.need([("ww", rd + 1)])
            a("s_barrier")
            if helper and rd <= 2:
                assert not pend
                pend = [(lambda i=i, r=rd + 4: wwrite(r, i)) for i in range(8)]
            if rd == 5:
                vfill += ["v_lshrrev_b32 v%d, 5, v1" % VYR,
                          "v_bfe_u32 v%d, v1, 2, 2" % t2,
                          "v_lshl_add_u32 v%d, v%d, 3, v%d" % (VYR, VYR, t2),
                          "v_lshlrev_b32 v%d, 7, v%d" % (VYR, VYR),
                          "v_bfe_u32 v%d, v1, 4, 1" % t2,
                          "v_lshl_add_u32 v%d, v%d, 5, v%d" % (VYR, t2, VYR),
                          "v_and_b32 v%d, 3, v1" % t2,
                          "v_lshl_add_u32 v%d, v%d, 3, v%d" % (VYR, t2, VYR),
                          "s_lshr_b32 s10, s3, 1", "s_lshl_b32 s10, s10, 11", "s_and_b32 s11, s3, 1", "s_lshl_b32 s11, s11, 6",
                          "s_add_u32 s10, s10, s11", "s_add_u32 s10, s10, %d" % L_Y,
                          "v_add_u32 v%d, s10, v%d" % (VYR, VYR),
                          "s_lshl_b32 s10, s3, 10", "s_add_u32 s10, s10, %d" % L_Y,
                          "v_add_u32 v%d, s10, v%d" % (YL + 4, VH)]
                for j in range(4):
                    hi_ = (1 if helper else 0) ^ (j >> 1)
                    vfill.append("s_xor_b32 s10, s%d, %d" % (S_TQ, (2 * j) & 3))
                    vfill.append("s_mul_i32 s10, s10, 6144")
                    vfill.append("s_add_u32 s10, s10, %d" % (L_R[hi_] + max(j - 1, 0) * 2048))
                    vfill.append("v_add_u32 v%d, s10, v%d" % (VWW if j == 0 else RR + j, VH))
    assert not pend
    stamp(8)
    for f_ in vfill: lg.run(f_)
    a("s_waitcnt vmcnt(0)")
    a("ds_write_b128 v%d, %s", YL + 4, vr(YL, 4))
    for j in range(1, 4):
        for b in range(2):
            a("ds_write_b128 v%d, %s offset:%d", VWW, vr(AC2 + 8 * j + 4 * b, 4), (j - 1) * 2048 + b * 1024)
    for q in range(8):
        a("v_sub_f32 v%d, v%d, v%d", A0 + q, A0 + q, AC2 + q)
        a("v_fmac_f32 v%d, v%d, v%d", AC2 + q, EG, A0 + q)
    a("v_sub_f32 v%d, 1.0, v%d", t1, EG)
    a("s_waitcnt lgkmcnt(0)")
    a("s_barrier")
    for hf in range(2):
        a("ds_read_b64_tr_b16 %s, v%d offset:%d", vr(EY + 2 * hf, 2), VYR, hf * 512)
    for j in range(1, 4):
        for b in range(2):
            a("ds_read_b128 %s, v%d offset:%d", vr(AC2 + 8 * j + 4 * b, 4), RR + j, b * 1024)
    a("s_waitcnt lgkmcnt(6)")
    for j in range(4):
        a("v_lshlrev_b32 v%d, 16, v%d", t2, EY + j)
        a("v_and_b32 v%d, 0xffff0000, v%d", t3, EY + j)
        a("v_fmac_f32 v%d, v%d, v%d", AC2 + 2 * j, EG, t2)
        a("v_fmac_f32 v%d, v%d, v%d", AC2 + 2 * j + 1, EG, t3)
    for j in range(1, 4):
        a("s_waitcnt lgkmcnt(%d)", 2 * (3 - j))
        for q in range(8):
            a("v_fmac_f32 v%d, v%d, v%d", AC2 + q, t1, AC2 + 8 * j + q)
    for j in range(4):
        a("v_cvt_pk_bf16_f32 v%d, v%d, v%d", A0 + j, AC2 + 2 * j, AC2 + 2 * j + 1)
    a("buffer_store_dwordx4 %s, v%d, %s, s%d offen", vr(A0, 4), VO, sr(SO, 4), S_OB)
    if STAMP: a("s_waitcnt vmcnt(0)")
    stamp(9)
    stamp_out()
    a("s_endpgm")

gemm2("h", vmh)
a("L_st3:"); a("s_branch L_stret")
a("L_g2c:")
gemm2("c", vmc)
n0_ = len(a.lines)
def auxw():
    for f in hl_list(True)[:sum(NW)]: f()
role(None, auxw)
auxw_lines = a.lines[n0_:]; a.lines = a.lines[:n0_]
a.lines += aux_lines[:AUXW - AUX0] + auxw_lines + aux_lines[AUXW - AUX0:]
for sp in slow: sp()
a("L_end:")
a("s_endpgm")

hdr = open("gated_mix__ssm_conv_s4__glu_gated_bilinear__prompt.s.ref").read().split("\n")
hdr = [l for l in hdr if l.startswith(";") and "@launch" not in l]
print(wrap(hdr + ["; @launch grid=(256,1,1) block=(512,1,1) lds=163840"], [(NAME, a, 256, 102, 256)]))
sys.stderr.write("nops: %d\n" % a.nops)
```

```python
import sys
from asmlib import *

STAMP = "--stamp" in sys.argv
def opt(name, default):
    for x in sys.argv:
        if x.startswith("--%s=" % name): return int(x.split("=")[1])
    return default

WS_H = 0
WS_UT = 8 << 20
WS_Y = 10 << 20
WS_G = 12 << 20
WS_F = (12 << 20) + 0x10000
F_H2 = (12 << 20) + 0x80000
WS_ST = 13 << 20
WS_BYTES = 14 << 20
F_A, F_H, F_Y, F_G, F_E = WS_F, WS_F + 0x1000, WS_F + 0x2000, WS_F + 0x3000, WS_F + 0x4000

P_U, P_ARE, P_AIM, P_BRE, P_BIM, P_CRE, P_CIM, P_LDT = 16, 18, 20, 22, 24, 26, 28, 30
P_DSK, P_BX, P_WG, P_WU, P_WD, P_GW, P_OUT, P_DBG, P_WS = 32, 34, 36, 38, 40, 42, 44, 46, 48
SX, SG, SU, SWS, SW, SO = 52, 56, 60, 64, 68, 72
S_NONCE, S_ISAUX, S_SPIN, S_PB = 76, 77, 78, 79
S_TB, S_DB, S_KH, S_TQ, S_HB, S_OB = 80, 81, 82, 83, 84, 85
S_W0S = 100
S_RT = 36
S_KR, S_T2 = 0, 1
S_W2K, S_T, S_TM0, S_YB = 86, 87, 88, 89
S_DOFF, S_GOFF = 50, 51
S_WSO, S_WLD = 90, 91
S_HST = 34
S_FH = 35
PCF = opt('pcf', 0)
FSTR = opt('fstr', 1280)
G16 = 1
SPINMAX = opt("spin", 20000)

BLK = 16384
XB = [0, 1, 2]
GB = [6, 8, 4]
L_TAB = 2 * BLK
TP = 528
TPIECE = 31 * TP
L_U = 2 * BLK
UCH = 512 + 4096
L_K = 3 * BLK
KCH = 64 + 4096
L_CY = L_K + 2 * KCH
CYCH = 129 * 16
L_SY = 4 * BLK - 128
assert L_SY % 32 == 0 and L_SY + 128 <= 4 * BLK
WB = [4, 6, 8, 0, 2, 4, 6]
L_Y = 8 * BLK + 24576
L_R = [8 * BLK, 0]

a = Asm()

class Lg:
    def __init__(self): self.q = []; self.done = 0
    def issue(self, ins, tag=None):
        a(ins); self.q.append(tag)
    def need(self, tags, extra=""):
        idx = [i for i, t in enumerate(self.q) if t in tags]
        last = max(idx) if idx else -1
        if last >= self.done:
            cnt = min(len(self.q) - 1 - last, 15)
            a("s_waitcnt %slgkmcnt(%d)", extra, cnt)
            self.done = len(self.q) - cnt
        elif extra:
            a("s_waitcnt %s", extra)
    def drained(self): self.done = len(self.q)
    def run(self, p):
        n0 = len(a.lines)
        a(p) if isinstance(p, str) else p()
        for ln in a.lines[n0:]:
            if ln.strip().startswith("ds_"): self.q.append(None)

SMASK = opt("smask", 0x7fff)
def stamp(i, force=False):
    if opt("stg", 0) == 2:
        if not force or not (SMASK >> i) & 1: return
    if not STAMP or not ((SMASK >> i) & 1 or force): return
    a("s_memtime s[94:95]")
    a("s_memrealtime s[92:93]")
    a("s_waitcnt lgkmcnt(0)")
    a("s_sub_u32 s94, s94, s98")
    a("v_writelane_b32 v255, s94, %d", i)
    a("v_writelane_b32 v255, s92, %d", i + 16)
def stamp_out():
    if not STAMP: return
    a("s_mov_b64 exec, -1")
    a("v_writelane_b32 v255, s96, 31")
    a("s_getreg_b32 s92, hwreg(HW_REG_XCC_ID)")
    a("s_getreg_b32 s93, hwreg(HW_REG_HW_ID)")
    a("s_and_b32 s92, s92, 15")
    a("s_lshl_b32 s93, s93, 4")
    a("s_or_b32 s92, s92, s93")
    a("v_writelane_b32 v255, s92, 15")
    a("s_lshl_b32 s92, s2, 3")
    a("s_add_u32 s92, s92, s3")
    a("s_lshl_b32 s92, s92, 7")
    a("s_add_u32 s92, s92, %d", WS_ST)
    a("v_mbcnt_lo_u32_b32 v254, -1, 0")
    a("v_mbcnt_hi_u32_b32 v254, -1, v254")
    a("v_lshlrev_b32 v253, 2, v254")
    a("s_mov_b64 exec, 0xffffffff")
    a("buffer_store_dword v255, v253, %s, s92 offen", sr(SWS, 4))

def cmul(d, x, y, plain):
    if plain:
        return ["v_mul_f32 v%d, v%d, v%d" % (d, x, y), "v_mul_f32 v%d, v%d, v%d" % (d + 1, x + 1, y),
                "v_fma_f32 v%d, -v%d, v%d, v%d" % (d, x + 1, y + 1, d), "v_fmac_f32 v%d, v%d, v%d" % (d + 1, x, y + 1)]
    return ["v_pk_mul_f32 %s, %s, %s op_sel_hi:[1,0]" % (vr(d, 2), vr(x, 2), vr(y, 2)),
            "v_pk_fma_f32 %s, %s, %s, %s op_sel:[1,1,0] op_sel_hi:[0,1,1] neg_lo:[1,0,0]" % (vr(d, 2), vr(x, 2), vr(y, 2), vr(d, 2))]
def il(x, y):
    o = []
    for i in range(max(len(x), len(y))):
        if i < len(x): o.append(x[i])
        if i < len(y): o.append(y[i])
    return o

VH = 240
VWD = 241
VR0 = 242
VSY = 243
VN = 250
PVA, PVB, PVC, PVY = 2, 3, 4, 5
KA, KBa, KW = 152, 153, 154
VZ = 235
KB = 160
KP = 204
KF = 160
KD = 236
VUL = 244

def kgen_setup():
    a("s_lshr_b32 s10, s3, 2")
    a("s_lshl_b32 s11, s2, 1")
    a("s_add_u32 s11, s11, s10")
    a("s_and_b32 s12, s3, 1")
    a("s_lshl_b32 s13, s11, 8")
    a("s_lshl_b32 s12, s12, 7")
    a("s_add_u32 s13, s13, s12")
    a("v_lshl_add_u32 v%d, v1, 1, s13", KB + 8)
    a("s_lshl_b32 s11, s11, 1")
    a("v_mov_b32 v%d, s11", KB + 9)
    for i in range(7): a("v_mov_b32 v%d, 0", KB + i)
    a("s_bitcmp1_b32 s3, 1")
    a("s_cselect_b64 s[14:15], -1, 0")
def kgen_loads():
    a("global_load_short_d16_hi v%d, v%d, %s", KB + 6, KB + 9, sr(P_LDT, 2))
    for i, p in enumerate([P_ARE, P_AIM, P_BRE, P_BIM, P_CRE, P_CIM]):
        a("global_load_short_d16_hi v%d, v%d, %s", KB + i, KB + 8, sr(p, 2))
    return 7
def rowpos(m): return 16 + (2 * m if m <= 7 else 2 * (m - 8) + 1)
def kgen_valu(plain_tail):
    L = []
    A_, B_, BR, BI, CR, CI, LD, T0, T1, T2 = [KB + i for i in range(10)]
    W, E1, E2, E4, E8, E128, E256, E512, P, X0, X1, R0, R1, RB, Y0, Z0 = [KB + 10 + 2 * i for i in range(16)]
    L.append("v_mul_f32 v%d, 0x3fb8aa3b, v%d" % (T0, LD))
    L.append("v_mov_b32 v%d, 0x3fb8aa3b" % T2)
    L.append("v_fma_f32 v%d, v%d, v%d, -v%d" % (T1, LD, T2, T0))
    L.append("v_fmac_f32 v%d, 0x32a57060, v%d" % (T1, LD))
    L.append("v_exp_f32 v%d, v%d" % (T0, T0))
    L.append("v_mul_f32 v%d, 0x3f317218, v%d" % (T1, T1))
    L.append("v_fmac_f32 v%d, v%d, v%d" % (T0, T0, T1))
    L.append("v_cvt_pk_bf16_f32 v%d, v%d, v%d" % (T0, T0, T0))
    L.append("v_and_b32 v%d, 0xffff0000, v%d" % (T0, T0))
    for r in (A_, B_, BR, BI):
        L.append("v_mul_f32 v%d, v%d, v%d" % (r, T0, r))
    L.append("v_mul_f32 v%d, 0x3fb8aa3b, v%d" % (A_, A_))
    L.append("v_mul_f32 v%d, 0.15915494, v%d" % (B_, B_))
    o1 = ["v_exp_f32 v%d, v%d" % (T0, A_), "v_fract_f32 v%d, v%d" % (T1, B_),
          "v_cos_f32 v%d, v%d" % (E1, T1), "v_sin_f32 v%d, v%d" % (E1 + 1, T1),
          "v_mul_f32 v%d, v%d, v%d" % (E1, T0, E1), "v_mul_f32 v%d, v%d, v%d" % (E1 + 1, T0, E1 + 1)]
    o2 = ["v_mul_f32 v%d, 0x43000000, v%d" % (T2, A_), "v_mul_f32 v%d, 0x43000000, v%d" % (LD, B_),
          "v_exp_f32 v%d, v%d" % (T2, T2), "v_fract_f32 v%d, v%d" % (LD, LD),
          "v_cos_f32 v%d, v%d" % (E128, LD), "v_sin_f32 v%d, v%d" % (E128 + 1, LD),
          "v_mul_f32 v%d, v%d, v%d" % (E128, T2, E128), "v_mul_f32 v%d, v%d, v%d" % (E128 + 1, T2, E128 + 1)]
    L += il(o2, o1 + cmul(W, CR, BR, False))
    L += il(cmul(E2, E1, E1, False) + cmul(E4, E2, E2, False) + cmul(E8, E4, E4, False),
            cmul(E256, E128, E128, False) + cmul(E512, E256, E256, False))
    L.append("v_cndmask_b32 v%d, v%d, v%d, s[14:15]" % (P, E1, E2))
    L.append("v_cndmask_b32 v%d, v%d, v%d, s[14:15]" % (P + 1, E1 + 1, E2 + 1))
    L.append("v_cndmask_b32 v%d, 1.0, v%d, s[14:15]" % (X0, E128))
    L.append("v_cndmask_b32 v%d, 0, v%d, s[14:15]" % (X0 + 1, E128 + 1))
    L.append("v_cndmask_b32 v%d, 1.0, v%d, s[14:15]" % (E256, E256))
    L.append("v_cndmask_b32 v%d, 0, v%d, s[14:15]" % (E256 + 1, E256 + 1))
    L += cmul(RB, W, E256, False)
    rows = [(None, RB, None)]
    cur = RB
    for j in range(1, 8):
        d = R0 if j % 2 else R1
        rows.append((d, cur, P)); cur = d
    Z2 = Y0
    rows += [(Y0, RB, E512), (R1, Y0, E4), (R0, Y0, E8), (Z0, Y0, E512), (R1, Z0, E8), (Z2, Z0, E512), (R0, Z2, E8)]
    cols = [(None, X0, None)]
    cur = X0
    for j in range(1, 16):
        d = X1 if j % 2 else X0
        cols.append((d, cur, E8)); cur = d
    LC, LR = [], []
    for j, (d, s, m) in enumerate(cols):
        if d is not None: LC += cmul(d, s, m, plain_tail)
        x = d if d is not None else s
        LC.append("v_cvt_pk_bf16_f32 v%d, v%d, v%d" % (KP + j, x, x + 1))
    for j, (d, s, m) in enumerate(rows):
        if d is not None: LR += cmul(d, s, m, plain_tail)
        x = d if d is not None else s
        LR.append("v_cvt_pk_bf16_f32 v%d, v%d, -v%d" % (KP + rowpos(j), x, x + 1))
    return L, il(LC, LR)
def kgen_writes():
    return ["ds_write_addtid_b32 v%d offset:%d" % (KP + j, L_TAB + j * TP) for j in range(31)]

def later_addrs(T0, T1, T2):
    a("s_lshr_b32 s10, s3, 1")
    a("s_mul_i32 s10, s10, %d", TPIECE)
    a("s_and_b32 s11, s3, 1")
    a("s_lshl_b32 s11, s11, 8")
    a("s_add_u32 s%d, s10, s11", S_TM0)
    a("s_add_u32 s10, s10, %d", L_TAB)
    a("v_bfe_u32 v%d, v1, 4, 1", T1)
    a("v_lshlrev_b32 v%d, 8, v%d", T1, T1)
    a("v_lshrrev_b32 v%d, 5, v1", T2)
    a("v_lshl_add_u32 v%d, v%d, 7, v%d", T1, T2, T1)
    a("v_and_b32 v%d, 15, v1", T0)
    a("v_mul_u32_u24 v%d, %d, v%d", T2, TP, T0)
    a("v_add3_u32 v%d, v%d, v%d, s10", KBa, T2, T1)
    def lut(v): return sum(x << (4 * i) for i, x in enumerate(v))
    m0 = [0, 1, 2, 3] + [0, 0, 1, 2] + [2, 2, 3, 4] + [4, 5, 6, 7]; h0 = 0x0ff0
    m1 = [8, 9, 10, 10] + [8, 9, 10, 10] + [11, 12, 13, 14] + [11, 12, 13, 14]; h1 = 0xf0f0
    p0 = [rowpos(m) - 16 for m in m0]; p1 = [rowpos(m) - 16 for m in m1]
    a("s_bitcmp1_b32 s3, 0")
    a("s_mov_b32 s11, 0x%x", lut(p0[:8]))
    a("s_cmov_b32 s11, 0x%x", lut(p1[:8]))
    a("s_mov_b32 s12, 0x%x", lut(p0[8:]))
    a("s_cmov_b32 s12, 0x%x", lut(p1[8:]))
    a("s_mov_b32 s13, 0x%x", h0)
    a("s_cmov_b32 s13, 0x%x", h1)
    a("v_cmp_lt_u32 vcc, 7, v%d", T0)
    a("v_mov_b32 v%d, s11", KA)
    a("v_mov_b32 v%d, s12", T2)
    a("v_cndmask_b32 v%d, v%d, v%d, vcc", KA, KA, T2)
    a("v_and_b32 v%d, 7, v1", T2)
    a("v_lshlrev_b32 v%d, 2, v%d", T2, T2)
    a("v_bfe_u32 v%d, v%d, v%d, 4", KA, KA, T2)
    a("v_bfe_u32 v%d, s13, v%d, 1", T2, T0)
    a("v_mad_u32_u24 v%d, v%d, 31, v%d", KA, T2, KA)
    a("v_mul_u32_u24 v%d, %d, v%d", KA, TP, KA)
    a("s_lshr_b32 s10, s3, 2")
    a("s_mul_i32 s11, s10, %d", 2 * TPIECE)
    a("s_add_u32 s11, s11, %d", L_TAB + 16 * TP)
    a("v_add3_u32 v%d, v%d, v%d, s11", KA, KA, T1)
    a("s_mul_i32 s10, s10, %d", KCH)
    a("s_and_b32 s11, s3, 2")
    a("s_lshl_b32 s11, s11, 7")
    a("s_add_u32 s10, s10, s11")
    a("s_add_u32 s10, s10, %d", L_K + 64)
    a("s_bitcmp1_b32 s3, 0")
    a("s_mov_b32 s11, 0x%x", 0 | (64 << 8) | (65 << 16) | (1 << 24))
    a("s_cmov_b32 s11, 0x%x", 0 | (64 << 8) | (128 << 16) | (192 << 24))
    a("s_cselect_b32 s12, 1024, 0")
    a("s_add_u32 s10, s10, s12")
    a("v_lshrrev_b32 v%d, 4, v1", T1)
    a("v_lshlrev_b32 v%d, 3, v%d", T1, T1)
    a("v_bfe_u32 v%d, s11, v%d, 8", T1, T1)
    a("v_lshlrev_b32 v%d, 4, v%d", T0, T0)
    a("v_lshl_add_u32 v%d, v%d, 3, v%d", T0, T1, T0)
    a("v_add_u32 v%d, s10, v%d", KW, T0)
def later_addrs2(T0, T1, T2):
    a("s_bfe_u32 s10, s3, 0x10001")
    a("v_lshrrev_b32 v%d, 5, v1", T0)
    a("v_lshlrev_b32 v%d, 6, v%d", PVA, T0)
    a("v_and_b32 v%d, 31, v1", T1)
    a("v_lshlrev_b32 v%d, 4, v%d", PVB, T1)
    a("v_sub_u32 v%d, v%d, v%d", PVB, PVB, PVA)
    a("v_and_b32 v%d, 1, v1", T2)
    a("v_lshl_add_u32 v%d, v%d, 5, v%d", PVA, T2, PVA)
    a("v_lshrrev_b32 v%d, 2, v%d", T1, T1)
    a("v_lshl_add_u32 v%d, v%d, 1, v%d", T1, T1, T0)
    a("v_lshlrev_b32 v%d, 5, v%d", PVY, T1)
    a("v_lshl_add_u32 v%d, v%d, 4, v%d", PVY, T2, PVY)
    a("s_mul_i32 s11, s10, %d", CYCH)
    a("s_add_u32 s11, s11, %d", L_CY)
    a("v_lshl_add_u32 v%d, v%d, 4, s11", PVC, T1)
    a("v_bfe_u32 v%d, v1, 4, 1", T2)
    a("v_lshl_add_u32 v%d, v%d, 4, v%d", PVA, T2, PVA)
    a("v_bfe_u32 v%d, v1, 1, 1", T2)
    a("v_lshl_add_u32 v%d, v%d, 3, v%d", PVA, T2, PVA)
    a("v_bfe_u32 v%d, v1, 2, 2", T2)
    a("v_lshlrev_b32 v%d, 3, v%d", T2, T2)
    a("v_sub_u32 v%d, v%d, v%d", PVA, PVA, T2)
    a("s_mul_i32 s11, s10, %d", KCH)
    a("s_add_u32 s11, s11, %d", L_K + 32)
    a("v_add_u32 v%d, s11, v%d", PVA, PVA)
    a("s_mul_i32 s11, s10, %d", UCH)
    a("s_add_u32 s11, s11, %d", L_U + 512 - 384)
    a("v_add_u32 v%d, s11, v%d", PVB, PVB)
    a("s_lshl_b32 s11, s2, 1")
    a("s_add_u32 s11, s11, s10")
    a("s_lshl_b32 s11, s11, 12")
    a("s_add_u32 s%d, s11, %d", S_YB, WS_Y)
def later_addrs3(T0, T1, T2):
    if opt("b84", 1):
        a("s_and_b32 s%d, s4, 6", S_TB)
        a("s_lshl_b32 s%d, s%d, 2", S_TB, S_TB)
        a("s_and_b32 s10, s5, 7")
        a("s_add_u32 s%d, s%d, s10", S_TB, S_TB)
        a("s_and_b32 s%d, s4, 1", S_DB)
        a("s_lshl_b32 s%d, s%d, 2", S_DB, S_DB)
        a("s_lshr_b32 s10, s5, 3")
        a("s_add_u32 s%d, s%d, s10", S_DB, S_DB)
    else:
        a("s_lshl_b32 s%d, s4, 2", S_TB)
        a("s_and_b32 s10, s5, 3")
        a("s_add_u32 s%d, s%d, s10", S_TB, S_TB)
        a("s_lshr_b32 s%d, s5, 2", S_DB)
    a("s_lshr_b32 s%d, s3, 2", S_KH)
    a("s_and_b32 s%d, s3, 3", S_TQ)
    a("s_lshl_b32 s10, s%d, 1", S_TB)
    a("s_and_b32 s13, s3, 1")
    a("s_add_u32 s10, s10, s13")
    a("s_mul_i32 s11, s10, 112")
    a("s_lshr_b32 s12, s3, 1")
    a("s_mul_i32 s%d, s12, %d", S_W0S, 448 * 1024)
    a("s_lshl_b32 s13, s13, 15")
    a("s_add_u32 s%d, s%d, s13", S_W0S, S_W0S)
    a("s_mul_i32 s13, s12, 28")
    a("s_add_u32 s11, s11, s13")
    a("s_lshl_b32 s%d, s11, 10", S_HB)
    a("s_lshl_b32 s%d, s10, 7", S_GOFF)
    a("s_add_u32 s%d, s%d, %d", S_GOFF, S_GOFF, WS_G)
    a("s_lshl_b32 s10, s10, 15")
    a("s_lshl_b32 s11, s%d, 7", S_DB)
    a("s_lshl_b32 s12, s12, 5")
    a("s_add_u32 s%d, s11, s12", S_DOFF)
    a("s_add_u32 s%d, s10, s%d", S_OB, S_DOFF)
    a("s_mul_i32 s%d, s%d, %d", S_WSO, S_TQ, 448 * 1024)
    a("s_lshl_b32 s%d, s%d, 13", S_WLD, S_TQ)
    seq = [i % 7 for i in range(16)]
    val = sum(x << (4 * i) for i, x in enumerate(seq))
    a("s_mov_b32 s44, 0x%x", val & 0xffffffff)
    a("s_mov_b32 s45, 0x%x", val >> 32)
    if opt("rot", 4) == 1:
        a("s_lshl_b32 s10, s%d, 2", S_DB)
        a("s_lshr_b64 s[44:45], s[44:45], s10")
    if opt("rot", 4) == 4:
        a("s_and_b32 s10, s5, 7")
        a("s_lshl_b32 s10, s10, 2")
        a("s_lshr_b64 s[44:45], s[44:45], s10")
    if opt("rot", 4) == 5:
        a("s_and_b32 s10, s5, 7")
        a("s_lshr_b32 s13, s5, 3")
        a("s_lshl_b32 s13, s13, 1")
        a("s_add_u32 s10, s10, s13")
        a("s_sub_u32 s13, s10, 7")
        a("s_min_u32 s10, s10, s13")
        a("s_lshl_b32 s10, s10, 2")
        a("s_lshr_b64 s[44:45], s[44:45], s10")
    if opt("rot", 4) == 3:
        a("s_and_b32 s10, s5, 1")
        a("s_lshl_b32 s10, s10, 4")
        a("s_lshr_b64 s[44:45], s[44:45], s10")
    if opt("rot", 4) == 2:
        a("s_and_b32 s10, s5, 3")
        a("s_lshl_b32 s10, s10, 3")
        a("s_lshr_b64 s[44:45], s[44:45], s10")
    for rd in range(7):
        a("s_bfe_u32 s10, s44, 0x%x", (3 << 16) | (4 * rd))
        a("s_lshl_b32 s%d, s10, 12", S_RT + rd)
    a("v_lshlrev_b32 v%d, 4, v1", VH)
    a("v_lshrrev_b32 v%d, 3, v1", T0)
    a("v_lshlrev_b32 v%d, 10, v%d", T0, T0)
    a("v_bfe_u32 v%d, v1, 4, 1", T1)
    a("v_lshlrev_b32 v%d, 2, v%d", T1, T1)
    a("v_and_b32 v%d, 7, v1", T2)
    a("v_xor_b32 v%d, v%d, v%d", T2, T2, T1)
    a("v_lshl_add_u32 v%d, v%d, 4, v%d", T0, T2, T0)
    a("v_add_u32 v%d, s11, v%d", VWD, T0)
    a("v_lshrrev_b32 v%d, 5, v1", T0)
    a("v_bfe_u32 v%d, v1, 2, 2", T1)
    a("v_lshl_add_u32 v%d, v%d, 2, v%d", T0, T0, T1)
    a("v_lshlrev_b32 v%d, 7, v%d", T0, T0)
    a("v_bfe_u32 v%d, v1, 3, 1", T1)
    a("v_lshl_add_u32 v%d, v%d, 6, v%d", T0, T1, T0)
    a("v_bfe_u32 v%d, v1, 4, 1", T1)
    a("v_lshl_add_u32 v%d, v%d, 5, v%d", T0, T1, T0)
    a("v_and_b32 v%d, 1, v1", T1)
    a("v_lshl_add_u32 v%d, v%d, 4, v%d", T0, T1, T0)
    a("v_bfe_u32 v%d, v1, 1, 1", T1)
    a("v_lshl_add_u32 v%d, v%d, 3, v%d", T0, T1, T0)
    a("v_xor_b32 v%d, s12, v%d", T0, T0)
    a("s_lshl_b32 s12, s12, 8")
    a("v_add_u32 v%d, s12, v%d", VR0, T0)
    a("s_lshl_b32 s10, s3, 2")
    a("s_add_u32 s10, s10, %d", L_SY)
    a("v_mov_b32 v%d, s10", VSY)

def kreads():
    L = []
    for ks in range(8):
        L.append(("ds_read_b128 %s, v%d offset:%d" % (vr(KF + 8 * ks, 4), KA, ks * 16), ("k", ks)))
        L.append(("ds_read_b128 %s, v%d offset:%d" % (vr(KF + 8 * ks + 4, 4), KBa, ks * 16), ("k", ks)))
    return L
def run_kmfma(lg, fill, per):
    for ks in range(8):
        lg.need([("k", ks)])
        d = vr(KD, 4)
        a("v_mfma_f32_16x16x32_bf16 %s, %s, %s, %s", d, vr(KF + 8 * ks, 4), vr(KF + 8 * ks + 4, 4), d if ks else "0")
        for _ in range(per):
            if fill: lg.run(fill.pop(0))
    for f in fill: lg.run(f)
def kmfma_finish():
    lb = a.label("Lkm1"); le = a.label("Lkme")
    T = KF
    a("s_bitcmp1_b32 s3, 0")
    a("s_cbranch_scc1 %s", lb)
    a("v_cvt_pk_bf16_f32 v%d, v%d, v%d", T, KD, KD + 1)
    a("v_cvt_pk_bf16_f32 v%d, v%d, v%d", T + 1, KD + 2, KD + 3)
    a("ds_write_b64 v%d, %s", KW, vr(T, 2))
    a("s_branch %s", le)
    a(lb + ":")
    a("s_nop 7")
    a("s_mov_b32 s14, 0xaaaaaaaa")
    a("s_mov_b32 s15, 0xaaaaaaaa")
    a("v_cndmask_b32 v%d, v%d, v%d, s[14:15]", T + 12, KD, KD + 1)
    a("v_cndmask_b32 v%d, v%d, v%d, s[14:15]", T + 13, KD + 2, KD + 3)
    a("v_cvt_pk_bf16_f32 v%d, v%d, v%d", T, KD, KD)
    a("v_cvt_pk_bf16_f32 v%d, v%d, v%d", T + 1, KD, KD)
    a("v_cvt_pk_bf16_f32 v%d, v%d, v%d", T + 2, T + 12, KD + 1)
    a("v_cvt_pk_bf16_f32 v%d, v%d, v%d", T + 3, KD + 1, KD + 1)
    a("v_cvt_pk_bf16_f32 v%d, v%d, v%d", T + 4, KD + 2, KD + 2)
    a("v_cvt_pk_bf16_f32 v%d, v%d, v%d", T + 5, KD + 2, KD + 2)
    a("v_cvt_pk_bf16_f32 v%d, v%d, v%d", T + 6, T + 13, KD + 3)
    a("v_cvt_pk_bf16_f32 v%d, v%d, v%d", T + 7, KD + 3, KD + 3)
    a("s_mov_b64 exec, 0xffffffff")
    a("v_cvt_pk_bf16_f32 v%d, v%d, v%d", T + 1, KD, KD + 1)
    a("v_mov_b32 v%d, v%d", T + 2, T + 3)
    a("v_mov_b32 v%d, v%d", T + 3, T + 4)
    a("s_not_b64 exec, exec")
    a("ds_write_b128 v%d, %s offset:1024", KW, vr(T + 4, 4))
    a("s_mov_b64 exec, -1")
    a("ds_write_b128 v%d, %s", KW, vr(T, 4))
    a(le + ":")

def zero_pads_k():
    T = KF + 16
    a("v_mov_b32 v%d, 0", T)
    a("v_bfe_u32 v%d, v1, 4, 1", T + 1)
    a("v_and_b32 v%d, 15, v1", T + 2)
    a("v_mul_u32_u24 v%d, %d, v%d", T + 3, KCH, T + 1)
    a("v_lshl_add_u32 v%d, v%d, 2, v%d", T + 3, T + 2, T + 3)
    a("v_mul_u32_u24 v%d, %d, v%d", T + 4, CYCH, T + 1)
    a("v_lshl_add_u32 v%d, v%d, 2, v%d", T + 4, T + 2, T + 4)
    a("v_lshlrev_b32 v%d, 2, v1", T + 5)
    a("s_mov_b64 exec, 0xffffffff")
    a("ds_write_b32 v%d, v%d offset:%d", T + 3, T, L_K)
    a("ds_write_b32 v%d, v%d offset:%d", T + 4, T, L_CY)
    a("ds_write_b32 v%d, v%d offset:%d", T + 5, T, L_SY)
    a("s_mov_b64 exec, -1")
def zero_pads_u():
    T = KD
    for i in range(4): a("v_mov_b32 v%d, 0", T + i)
    a("v_and_b32 v%d, 31, v1", 233)
    a("v_lshlrev_b32 v%d, 4, v%d", 233, 233)
    a("v_lshrrev_b32 v%d, 5, v1", 234)
    a("v_mul_u32_u24 v%d, %d, v%d", 234, UCH, 234)
    a("v_add_u32 v%d, v%d, v%d", 233, 233, 234)
    a("ds_write_b128 v%d, %s offset:%d", 233, vr(T, 4), L_U)
def sig(vaddr, off):
    a("s_mov_b64 exec, 1")
    a("ds_write_b32 v%d, v6 offset:%d", vaddr, off)
    a("s_mov_b64 exec, -1")
VUL2 = 156
def u_load():
    a("v_lshlrev_b32 v%d, 5, v1", VUL + 4)
    a("s_lshl_b32 s10, s2, 13")
    a("s_lshl_b32 s11, s%d, 11", S_TQ)
    a("s_add_u32 s10, s10, s11")
    a("s_add_u32 s10, s10, %d", WS_UT)
    a("buffer_load_dwordx4 %s, v%d, %s, s10 offen sc1", vr(VUL, 4), VUL + 4, sr(SWS, 4))
    a("buffer_load_dwordx4 %s, v%d, %s, s10 offen offset:16 sc1", vr(VUL2, 4), VUL + 4, sr(SWS, 4))
def u_write():
    a("s_lshl_b32 s11, s%d, 10", S_TQ)
    a("v_add_u32 v%d, s11, v%d", VUL + 4, VH)
    a("ds_write_b128 v%d, %s offset:%d", VUL + 4, vr(VUL, 4), L_U + 512)
    a("ds_write_b128 v%d, %s offset:%d", VUL + 4, vr(VUL2, 4), L_U + UCH + 512)
def onwave(w, fn):
    lb = a.label("Low")
    a("s_cmp_lg_u32 s3, %d", w)
    a("s_cbranch_scc1 %s", lb)
    fn()
    a(lb + ":")
def role(lo, hi):
    l1 = a.label("Lr1"); l2 = a.label("Lr2")
    a("s_cmp_ge_u32 s3, 4")
    a("s_cbranch_scc1 %s", l1)
    if lo is None:
        a.lines[-1] = a.lines[-1].replace("scc1", "scc0")
        hi()
        a(l1 + ":")
        return
    if lo: lo()
    if hi:
        a("s_branch %s", l2)
        a(l1 + ":")
        hi()
        a(l2 + ":")
    else:
        a(l1 + ":")

def nonce_issue():
    a("global_load_dwordx2 %s, v%d, %s sc1", vr(VN, 2), VZ, sr(P_DBG, 2))
slow = []
def nonce_check():
    ok = a.label("Lnok"); lp = a.label("Lnlp")
    a(ok + "r:")
    a("v_readfirstlane_b32 s10, v%d", VN + 1)
    a("v_readfirstlane_b32 s%d, v%d", S_NONCE, VN)
    a("s_cmp_lg_u32 s10, 1")
    a("s_cbranch_scc1 %s", lp)
    a(ok + ":")
    def sp():
        a(lp + ":")
        a("s_add_u32 s%d, s%d, 1", S_SPIN, S_SPIN)
        a("s_cmp_ge_u32 s%d, %d", S_SPIN, SPINMAX)
        a("s_cbranch_scc1 %s", ok)
        a("s_sleep 2")
        a("global_load_dwordx2 %s, v%d, %s sc1", vr(VN, 2), VZ, sr(P_DBG, 2))
        a("s_waitcnt vmcnt(0)")
        a("s_branch %sr", ok)
    slow.append(sp)
def poll_issue(n):
    a("v_min_u32 v%d, %d, v1", VN + 2, n - 1)
    a("v_lshlrev_b32 v%d, 2, v%d", VN + 2, VN + 2)
    a("buffer_load_dword v%d, v%d, %s, s%d offen sc1", VN - 1, VN + 2, sr(SWS, 4), S_PB)
def poll_check(sleep=2):
    ok = a.label("Lpok"); lp = a.label("Lplp")
    a(ok + "r:")
    a("v_cmp_ne_u32 vcc, s%d, v%d", S_NONCE, VN - 1)
    a("s_cmp_lg_u64 vcc, 0")
    a("s_cbranch_scc1 %s", lp)
    a(ok + ":")
    def sp():
        a(lp + ":")
        a("s_add_u32 s%d, s%d, 1", S_SPIN, S_SPIN)
        a("s_cmp_ge_u32 s%d, %d", S_SPIN, SPINMAX)
        a("s_cbranch_scc1 %s", ok)
        if sleep: a("s_sleep %d", sleep)
        a("buffer_load_dword v%d, v%d, %s, s%d offen sc1", VN - 1, VN + 2, sr(SWS, 4), S_PB)
        a("s_waitcnt vmcnt(0)")
        a("s_branch %sr", ok)
    slow.append(sp)
def flag_store(sbase):
    if opt("sflag", 2) & 1:
        a("s_mov_b32 s11, s%d", S_NONCE)
        a("s_buffer_atomic_swap s11, %s, %s", sr(SWS, 4), sbase)
        return
    a("v_mov_b32 v%d, 0", VN)
    a("v_mov_b32 v%d, s%d", VN + 1, S_NONCE)
    a("s_mov_b64 exec, 1")
    a("buffer_store_dword v%d, v%d, %s, %s offen sc1", VN + 1, VN, sr(SWS, 4), sbase)
    a("s_mov_b64 exec, -1")
def lds_wait(vaddr, off, vtmp, sleep=1):
    lp = a.label("Llw"); ok = a.label("Llok")
    a(lp + ":")
    a("ds_read_b32 v%d, v%d offset:%d", vtmp, vaddr, off)
    a("s_add_u32 s%d, s%d, 1", S_SPIN, S_SPIN)
    a("s_waitcnt lgkmcnt(0)")
    a("v_cmp_eq_u32 vcc, 0, v%d", vtmp)
    a("s_cmp_eq_u64 vcc, 0")
    a("s_cbranch_scc1 %s", ok)
    if sleep: a("s_sleep %d", sleep)
    a("s_cmp_lt_u32 s%d, %d", S_SPIN, SPINMAX * 16)
    a("s_cbranch_scc1 %s", lp)
    a(ok + ":")

a("s_cmp_ge_u32 s2, 256")
a("s_cbranch_scc1 L_end")
if STAMP:
    a("s_memrealtime s[96:97]")
    a("s_memtime s[98:99]")
a("s_load_dwordx16 s[16:31], s[0:1], 0")
a("s_load_dwordx16 s[32:47], s[0:1], 64")
a("s_load_dwordx2 s[48:49], s[0:1], 128")
a("v_lshrrev_b32 v2, 6, v0")
a("s_lshr_b32 s5, s2, 3")
if opt("cpf", 1):
    a("s_getpc_b64 s[10:11]")
    a("L_pc:")
    a("s_lshl_b32 s12, s5, 10")
    a("v_lshl_add_u32 v3, v2, 7, s12")
    a("v_and_b32 v4, 1, v0")
    a("v_lshl_add_u32 v3, v4, 6, v3")
    a("v_min_u32 v3, L_end-L_pc, v3")
    a("global_load_dword v19, v3, s[10:11]")
a("v_and_b32 v1, 63, v0")
a("v_readfirstlane_b32 s3, v2")
a("s_and_b32 s4, s2, 7")
kgen_setup()
PRE_WAIT = opt("prewait", 0)
if not PRE_WAIT:
    a("s_waitcnt lgkmcnt(0)")
    kgen_loads()
a("s_mov_b32 s%d, 0", S_SPIN)
a("v_mov_b32 v%d, 0", VZ)
a("v_mov_b32 v%d, 0", VN + 2)
if STAMP: a("v_mov_b32 v255, 0")
a("s_lshr_b32 s6, s4, 1")
a("s_lshl_b32 s6, s6, 2")
a("s_and_b32 s7, s5, 3")
a("s_add_u32 s6, s6, s7")
a("s_and_b32 s7, s4, 1")
a("s_mul_i32 s7, s7, 7")
a("s_lshr_b32 s8, s5, 2")
a("s_add_u32 s7, s7, s8")
a("s_sub_u32 s7, s7, 1")
a("s_and_b32 s8, s3, 1")
a("s_lshr_b32 s9, s3, 1")
VX0, VX1, VW0, VW1 = 4, 5, 6, 7
VXR = 8
VWA, VWB = 12, 13
T0, T1, T2, T3 = 14, 15, 16, 17
a("s_lshl_b32 s10, s6, 7")
a("s_lshl_b32 s11, s3, 4")
a("s_add_u32 s10, s10, s11")
a("s_lshl_b32 s10, s10, 10")
a("v_lshrrev_b32 v%d, 3, v1", T0)
a("v_lshlrev_b32 v%d, 10, v%d", T0, T0)
a("v_lshrrev_b32 v%d, 4, v1", T1)
a("v_and_b32 v%d, 7, v1", T2)
a("v_xor_b32 v%d, v%d, v%d", T2, T2, T1)
a("v_lshl_add_u32 v%d, v%d, 4, v%d", T0, T2, T0)
a("v_add_u32 v%d, s10, v%d", VX0, T0)
a("v_xor_b32 v%d, 64, v%d", VX1, VX0)
a("v_add_u32 v%d, 0x2000, v%d", VX1, VX1)
a("s_and_b32 s12, s3, 3")
a("s_mul_i32 s10, s12, %d", 4 * 3584)
a("s_lshl_b32 s11, s7, 8")
a("s_add_u32 s10, s10, s11")
a("v_mul_u32_u24 v%d, 3584, v%d", T0, T1)
if G16:
    a("s_and_b32 s11, s3, 2")
    a("s_lshl_b32 s11, s11, 2")
    a("v_lshl_or_b32 v%d, v%d, 1, s11", T2, T1)
else:
    a("v_lshlrev_b32 v%d, 2, v%d", T2, T1)
a("v_and_b32 v%d, 15, v1", T3)
a("v_xor_b32 v%d, v%d, v%d", T2, T2, T3)
a("v_lshl_add_u32 v%d, v%d, 4, v%d", T0, T2, T0)
a("v_add_u32 v%d, s10, v%d", VW0, T0)
S_RO, S_LO = 60, 80
S_LO = 20
for j in range(4):
    a("s_add_u32 s10, s5, %d", j if opt("share", 1) else 0) if opt("share", 1) else a("s_mov_b32 s10, %d", j)
    a("s_and_b32 s10, s10, 3")
    a("s_mul_i32 s%d, s10, %d", S_RO + j, 16 * 3584)
a("s_lshl_b32 s%d, s3, 11", S_W2K)
CC = opt("cc", 8)
S_KO = 99 if not STAMP else 93
if CC < 8:
    NR = 8 - CC
    a("s_and_b32 s10, s5, 3")
    a("s_mul_i32 s10, s10, %d", opt("rm", 2))
    a("s_lshr_b32 s11, s5, 2")
    a("s_add_u32 s10, s10, s11")
    a("s_mul_i32 s11, s10, %d", (65536 + NR - 1) // NR)
    a("s_lshr_b32 s11, s11, 16")
    a("s_mul_i32 s11, s11, %d", NR)
    a("s_sub_u32 s10, s10, s11")
    seq = [CC + (i % NR) for i in range(16)]
    val = sum(x << (4 * i) for i, x in enumerate(seq))
    a("s_mov_b32 s12, 0x%x", val & 0xffffffff)
    a("s_mov_b32 s13, 0x%x", val >> 32)
    a("s_lshl_b32 s10, s10, 2")
    a("s_lshr_b64 s[12:13], s[12:13], s10")
    a("s_lshl_b32 s12, s12, %d", 4 * CC) if CC else None
    a("s_or_b32 s%d, s12, 0x%x", S_KO, sum(i << (4 * i) for i in range(CC)))
else:
    a("s_mov_b32 s%d, 0x76543210", S_KO)
a("s_and_b32 s10, s4, %d", opt("krot", 6))
a("s_mul_i32 s10, s10, 0x11111111")
a("s_add_u32 s%d, s%d, s10", S_KO, S_KO)
for r, n in ((SX, 2048 * 1024), (SG, 512 * 3584), (SWS, WS_BYTES), (SW, 1792 * 1024), (SO, 2048 * 1024)):
    a("s_mov_b32 s%d, 0x%x", r + 2, n)
    a("s_mov_b32 s%d, 0x20000", r + 3)
a("s_cmp_lt_u32 s5, 4")
a("s_cselect_b32 s%d, 1, 0", S_ISAUX)
if PRE_WAIT:
    a("s_waitcnt lgkmcnt(0)")
    kgen_loads()
def srd_base(r, p):
    a("s_mov_b32 s%d, s%d", r, p)
    a("s_and_b32 s%d, s%d, 0xffff", r + 1, p + 1)
srd_base(SX, P_U)
a("s_mov_b32 s%d, s%d", S_KR, S_KO)
a("s_cmp_lg_u32 s%d, 0", S_ISAUX)
a("s_cbranch_scc1 L_aux")

vm = []
def vmwait(tags):
    idx = [i for i, t in enumerate(vm) if t in tags]
    return len(vm) - 1 - max(idx)
def dma1(stage, j, m0r=None):
    slot = stage % 3
    if j == 0 or (j == 3 and stage < 2):
        a("s_bfe_u32 s%d, s%d, 0x%x", S_T, S_KR, (3 << 16) | (4 * stage))
        a("s_mul_i32 s%d, s%d, %d", S_T2, S_T, 64 * 3584)
        a("s_lshl_b32 s%d, s%d, 7", S_T, S_T)
    if j in (1, 2):
        a("s_add_u32 m0, s%d, %d", S_W2K, XB[slot] * BLK + (j - 1) * 1024)
        a("buffer_load_dwordx4 v%d, %s, s%d offen lds", VX0 + j - 1, sr(SX, 4), S_T)
    else:
        p = 0 if j == 0 else j - 2
        a("s_add_u32 m0, s%d, %d", S_LO + p, GB[slot] * BLK)
        a("s_add_u32 s%d, s%d, s%d", S_T3, S_T2, S_RO + p)
        a("buffer_load_dwordx4 v%d, %s, s%d offen lds", VW0, sr(SG, 4), S_T3)
    if m0r is not None: a("s_mov_b32 m0, s%d", m0r)
    vm.append(("G1", stage))
S_T3 = 24
vm += [("KP", 0)] * 7
a("s_cmp_ge_u32 s3, 4")
a("s_cselect_b32 s%d, s%d, s%d", SG, P_WU, P_WG)
a("s_cselect_b32 s%d, s%d, s%d", SG + 1, P_WU + 1, P_WG + 1)
a("s_and_b32 s%d, s%d, 0xffff", SG + 1, SG + 1)
a("s_lshr_b32 s10, s3, 2")
a("s_lshl_b32 s10, s10, 14")
a("s_and_b32 s11, s3, 3")
a("s_lshl_b32 s11, s11, 10")
a("s_add_u32 s10, s10, s11")
for j in range(4):
    a("s_add_u32 s11, s5, %d", j) if opt("share", 1) else a("s_mov_b32 s11, %d", j)
    a("s_and_b32 s11, s11, 3")
    a("s_lshl_b32 s11, s11, 12")
    a("s_add_u32 s%d, s10, s11", S_LO + j)
    if j == 0: dma1(0, 0); dma1(0, 1); dma1(0, 2)
stamp(11)
def common_srds():
    srd_base(SWS, P_WS); srd_base(SW, P_WD); srd_base(SO, P_OUT)
later_addrs(T0, T1, T2)
for j in range(3): dma1(1, j)
def g1_read_addrs():
    t0, t1, t2 = 18, 19, 20
    a("v_and_b32 v%d, 15, v1", t0)
    a("v_lshrrev_b32 v%d, 4, v1", t1)
    a("v_bfe_u32 v%d, v1, 1, 3", t2)
    a("v_xor_b32 v%d, v%d, v%d", t2, t2, t1)
    a("v_lshlrev_b32 v%d, 7, v%d", t0, t0)
    a("v_lshl_add_u32 v%d, v%d, 4, v%d", t0, t2, t0)
    a("s_lshl_b32 s10, s8, 13")
    a("v_add_u32 v%d, s10, v%d", VXR, t0)
    a("v_xor_b32 v%d, 64, v%d", VXR + 1, VXR)
    a("v_bfe_u32 v%d, v1, 2, 2", t0)
    a("v_lshl_add_u32 v%d, v%d, 3, v%d", t0, t1, t0)
    a("v_lshlrev_b32 v%d, 8, v%d", t0, t0)
    a("v_bfe_u32 v%d, v1, 2, 3", t2)
    a("s_and_b32 s10, s3, 2")
    a("s_lshl_b32 s10, s10, 1")
    a("v_xor_b32 v%d, s10, v%d", t2, t2)
    a("v_lshl_add_u32 v%d, v%d, 5, v%d", t0, t2, t0)
    a("v_and_b32 v%d, 3, v1", t2)
    a("v_lshl_add_u32 v%d, v%d, 3, v%d", t0, t2, t0)
    a("v_add_u32 v10, %d, v%d", 4 * BLK, t0)
    for m in range(1, 4): a("v_xor_b32 v%d, %d, v10", 10 + m, m << 5)
    for m in range(4): a("v_add_u32 v%d, %d, v%d", 14 + m, 4 * BLK, 10 + m)
def late_setup(comp, T0, T1, T2):
    common_srds()
    if comp:
        a("s_lshl_b32 s10, s6, 2")
        a("s_lshl_b32 s11, s8, 1")
        a("s_add_u32 s10, s10, s11")
        a("s_mul_i32 s10, s10, 112")
        a("s_lshl_b32 s11, s7, 3")
        a("s_add_u32 s10, s10, s11")
        a("s_lshl_b32 s11, s9, 2")
        a("s_add_u32 s10, s10, s11")
        a("s_lshl_b32 s%d, s10, 10", S_HST)
        a("s_mul_i32 s10, s6, %d", FSTR * (16 if PCF else 1))
        a("s_lshl_b32 s11, s7, 2")
        a("s_add_u32 s10, s10, s11")
        a("s_add_u32 s%d, s10, %d", S_FH, F_H2)
    later_addrs3(T0, T1, T2)
FX = 20
FA = 52
NAR = 10
ACC = 92
AORD = [(gu, m) for m in range(4) for gu in range(2)]
def xreads(step):
    st, ks = step // 2, step % 2
    return [("ds_read_b128 %s, v%d offset:%d" % (vr(FX + (step % 2) * 16 + 4 * tt, 4), VXR + ks, XB[st % 3] * BLK + tt * 2048), (step, "x", tt)) for tt in range(4)]
def areads(n):
    step, i = n // 8, n % 8
    st, ks = step // 2, step % 2
    gu, m = AORD[i]
    blk = GB[st % 3] + gu
    reg, rel = (10, blk - 4) if blk < 8 else (14, blk - 8)
    return [("ds_read_b64_tr_b16 %s, v%d offset:%d" % (vr(FA + 4 * (n % NAR) + 2 * hf, 2), reg + m, rel * BLK + ks * 8192 + hf * 1024), ("a", n)) for hf in range(2)]
def kgen_all(dmas):
    khead, ktail = kgen_valu(False)
    for i in khead: a(i)
    if opt("diag1", 0): stamp(7, True)
    a("s_mov_b32 m0, s%d", S_TM0)
    wr = {w_.split()[1]: w_ for w_ in kgen_writes()}
    q = []
    n = len(ktail); k = 0
    for n_, i in enumerate(ktail):
        a(i)
        if q and n_ % 1 == 0 and len(q) > 1: a(q.pop(0))
        if i.startswith("v_cvt"): q.append(wr[i.split()[1].rstrip(",")])
        if dmas and n_ >= opt("d1start", 40) and (n_ - opt("d1start", 40)) % opt("d1step", 20) == 0: dmas.pop(0)()
    for w_ in q: a(w_)
    for d in dmas: d()
def touch(stage):
    a("s_bfe_u32 s10, s%d, 0x%x", S_KR, (3 << 16) | (4 * stage))
    a("s_mul_i32 s10, s10, %d", 64 * 3584)
    a("s_add_u32 s10, s10, s%d", S_RO)
    a("buffer_load_dwordx4 v[52:55], v%d, %s, s10 offen", VW0, sr(SG, 4))
    vm.append(("T", 0))
if opt("stub", 1):
    for k_ in (0, 2):
        a("s_cmp_eq_u32 s3, %d", k_)
        a("s_cbranch_scc1 L_st%d", k_)
a("L_stret:")
a("s_waitcnt vmcnt(%d)", vmwait([("KP", 0)]))
stamp(0)
kgen_all([(lambda j=j: dma1(0, j, S_TM0)) for j in range(3, 6)])
stamp(14)
a("s_waitcnt lgkmcnt(0)")
a("s_barrier")
stamp(12)
lg = Lg()
for r in kreads(): lg.issue(*r)
g1_read_addrs()
run_kmfma(lg, [], 0)
for j in range(3, 6): dma1(1, j)
a("s_waitcnt vmcnt(%d)", vmwait([("G1", 0)]))
a("s_barrier")
stamp(1)
class Raw:
    def __init__(self, f): self.f = f
a("s_cmp_ge_u32 s3, 4")
a("s_cbranch_scc1 L_load")
WST = 144
WSTO = {5: 0, 4: 32, 6: 64}
W4T = opt("w4t", 0)
W2T = opt("w2t", 0)
W1T = opt("w1t", 1)
def stage_w(rd, i0=0, n=8):
    a("s_lshl_b32 s13, s%d, 4", S_RT + rd)
    a("s_add_u32 s13, s13, s%d", S_WSO)
    if i0: a("s_add_u32 s13, s13, %d", i0 * 8192)
    for i in range(i0, i0 + n):
        a("buffer_load_dwordx4 %s, v%d, %s, s13 offen", vr(WST + WSTO[rd] + 4 * i, 4), VWD, sr(SW, 4))
        if i < i0 + n - 1: a("s_add_u32 s13, s13, 8192")
EUD = 244
def eops_load(EU=56, ED=60, t1=64, t2=65, t3=66):
    a("v_and_b32 v%d, 31, v1", t1)
    a("v_lshrrev_b32 v%d, 5, v1", t2)
    a("v_lshlrev_b32 v%d, 4, v%d", t3, t2)
    a("v_lshl_add_u32 v%d, v%d, 10, v%d", t1, t1, t3)
    a("buffer_load_dwordx4 %s, v%d, %s, s%d offen", vr(EU, 4), t1, sr(SX, 4), S_OB)
    a("v_add_u32 v%d, s%d, v%d", t3, S_DOFF, t3)
    a("global_load_dwordx4 %s, v%d, %s", vr(ED, 4), t3, sr(P_DSK, 2))
def eops_calc(EU=56, ED=60, t1=64, t2=65, t3=66):
    for j in range(4):
        a("v_lshlrev_b32 v%d, 16, v%d", t1, EU + j)
        a("v_lshlrev_b32 v%d, 16, v%d", t2, ED + j)
        a("v_and_b32 v%d, 0xffff0000, v%d", EU + j, EU + j)
        a("v_and_b32 v%d, 0xffff0000, v%d", ED + j, ED + j)
        a("v_mul_f32 v%d, v%d, v%d", t1, t1, t2)
        a("v_mul_f32 v%d, v%d, v%d", t2, EU + j, ED + j)
        a("v_cvt_pk_bf16_f32 v%d, v%d, v%d", EUD + j, t1, t2)
def dma_w(rd, i):
    a("s_lshl_b32 s10, s3, 12")
    a("s_add_u32 m0, s10, %d", WB[rd] * BLK + i * 1024)
    a("s_lshl_b32 s10, s%d, 4", S_RT + rd)
    a("s_add_u32 s10, s10, s%d", S_W0S)
    a("s_add_u32 s10, s10, %d", i * 8192)
    a("buffer_load_dwordx4 v%d, %s, s10 offen lds", VWD, sr(SW, 4))
    vm.append(("W0", 0))
S_PFI = 101
if opt("cprio", 2): a("s_setprio %d", opt("cprio", 2))
lg = Lg()
for r in areads(0) + xreads(0): lg.issue(*r)
for n in range(1, 8):
    for r in areads(n): lg.issue(*r)
    if n == 3: kmfma_finish()
a("s_waitcnt lgkmcnt(8)") if False else None
kv = a.capture(late_setup, True, 18, 19, 7)
ECT = dict(EU=220, ED=224, t1=228, t2=229, t3=230)
def epilogue(p):
    for tt in range(4):
        dst = (FX if p == 0 else FX + 16) + 4 * tt
        for m in (2 * p, 2 * p + 1):
            g = ACC + (m * 4 + tt) * 4; u = ACC + ((4 + m) * 4 + tt) * 4
            if (opt("eplain", 3) >> p) & 1:
                for q_ in range(4): a("v_mul_f32 v%d, v%d, v%d", g + q_, g + q_, u + q_)
            else:
                for q_ in range(2): a("v_pk_mul_f32 %s, %s, %s", vr(g + 2 * q_, 2), vr(g + 2 * q_, 2), vr(u + 2 * q_, 2))
        for m in (2 * p, 2 * p + 1):
            g = ACC + (m * 4 + tt) * 4
            for q_ in range(2): a("v_cvt_pk_bf16_f32 v%d, v%d, v%d", dst + 2 * (m & 1) + q_, g + 2 * q_, g + 2 * q_ + 1)
        a("buffer_store_dwordx4 %s, v18, %s, s%d offen offset:%d sc1", vr(dst, 4), sr(SWS, 4), S_HST if tt < 2 else 10, 2048 * p + 256 * (tt & 1))
epi = [a.capture(epilogue, 0), a.capture(epilogue, 1)]
AHEAD = 8
for step in range(16):
    st, ks = step // 2, step % 2
    q = []
    if step < 15:
        sched = {}
        for i in range(8):
            g_ = max(0, 4 * (i - (NAR - 8)) + 3)
            sched.setdefault(g_, []).extend(areads((step + 1) * 8 + i))
        xq = xreads(step + 1)
    order = [(i, tt) for i in range(8) for tt in range(4)]
    for g, (i, tt) in enumerate(order):
        gu, m = AORD[i]
        n = step * 8 + i
        d = vr(ACC + ((gu * 4 + m) * 4 + tt) * 4, 4)
        lg.need([("a", n), (step, "x", tt)])
        a("v_mfma_f32_16x16x32_bf16 %s, %s, %s, %s", d, vr(FA + 4 * (n % NAR), 4), vr(FX + (step % 2) * 16 + 4 * tt, 4), d if step else "0")
        if step < 15: q += sched.pop(g, [])
        if step == 15 and g >= 18:
            assert not kv
            for _ in range(opt("epg", 3)):
                if epi[0]: a(epi[0].pop(0))
        if q: lg.issue(*q.pop(0))
        elif step < 15 and xq: lg.issue(*xq.pop(0))
        elif kv:
            k_ = kv.pop(0)
            k_() if callable(k_) else a(k_)
            if kv and not callable(k_) and k_.startswith("s_") and not callable(kv[0]) and opt("s2", 1): a(kv.pop(0))
    assert not q and (step == 15 or not xq)
    if ks == 0:
        a("s_waitcnt %slgkmcnt(0)", "vmcnt(0) " if st == 0 else ""); lg.drained()
        a("s_barrier")
        if opt("stg", 0): stamp([4, 5, 6, 7, 8, 10, 13, 14][st], True)
        if st == 5:
            assert not kv, len(kv)
            kv = a.capture(eops_load, *[ECT[k] for k in ("EU", "ED", "t1", "t2", "t3")])
        if st == 6:
            kv = ["s_waitcnt vmcnt(0)"] + a.capture(eops_calc, *[ECT[k] for k in ("EU", "ED", "t1", "t2", "t3")])
        if st == 7:
            kv += ["ds_read_b32 v%d, v%d offset:%d" % (VN, VZ, L_SY + 100), "v_lshrrev_b32 v18, 4, v1", "v_lshlrev_b32 v18, 9, v18",
                   "v_and_b32 v19, 15, v1", "v_lshl_add_u32 v18, v19, 4, v18", "s_add_u32 s10, s%d, %d" % (S_HST, 112 * 1024)]
assert not kv
stamp(2)
for k_ in epi[0] + epi[1]: a(k_)
a("s_waitcnt lgkmcnt(0)")
a("v_readfirstlane_b32 s%d, v%d", S_NONCE, VN)

def loader():
    SG2 = 28
    VX2 = 8
    a("L_load:")
    kmfma_finish()
    a.srd(SG2, P_WG, 512 * 3584)
    a("v_subrev_u32 v%d, 0x10000, v%d", VX2, VX0)
    a("v_subrev_u32 v%d, 0x10000, v%d", VX2 + 1, VX1)
    def stage(s_):
        slot = s_ % 3
        a("s_bfe_u32 s%d, s%d, 0x%x", S_T, S_KR, (3 << 16) | (4 * s_))
        a("s_mul_i32 s%d, s%d, %d", S_T2, S_T, 64 * 3584)
        a("s_lshl_b32 s%d, s%d, 7", S_T, S_T)
        def wp(p):
            a("s_add_u32 s%d, s%d, s%d", S_T3, S_T2, S_RO + p)
            for m in range(2):
                a("s_add_u32 m0, s%d, %d", S_LO + p, (GB[slot] - 1 + m) * BLK)
                a("buffer_load_dwordx4 v%d, %s, s%d offen lds", VW0, sr([SG2, SG][m], 4), S_T3)
                vm.append(("G1", s_))
        wp(0)
        for h_ in range(2):
            for i in range(2):
                a("s_add_u32 m0, s%d, %d", S_W2K, (XB[slot] * BLK + i * 1024 - (1 - h_) * 8192) & 0xffffffff)
                a("buffer_load_dwordx4 v%d, %s, s%d offen lds", [VX2, VX0][h_] + i, sr(SX, 4), S_T)
                vm.append(("G1", s_))
        for p in range(1, 4): wp(p)
    wl = hl_list(True)
    def wloads(n):
        for _ in range(n):
            wl.pop(0)(); vm.append(("W", 0))
    stage(2)
    ls = a.capture(late_setup, False, T0, T1, T2)
    for st in range(8):
        if st < 7: a("s_waitcnt vmcnt(%d) lgkmcnt(0)", vmwait([("G1", st + 1)]))
        else: a("s_waitcnt lgkmcnt(0)")
        a("s_barrier")
        if st + 3 <= 7: stage(st + 3)
        if st == 0: onwave(4, zero_pads_k)
        if 1 <= st <= 3:
            n_ = (len(ls) + 3 - st) // (4 - st)
            for k_ in ls[:n_]: a(k_)
            ls = ls[n_:]
        if st == 4:
            later_addrs2(T0, T1, T2)
            conv_prelude()
            if UE:
                a("s_mov_b32 s%d, %d", S_PB, F_A)
                poll_issue(32); vm.append(("X", 0))
                nonce_issue(); vm.append(("X", 0))
        def ucheck():
            a("s_waitcnt vmcnt(%d)", vmwait([("X", 0)]))
            nonce_check()
            def wn():
                a("s_mov_b64 exec, 1")
                a("ds_write_b32 v%d, v%d offset:%d", VZ, VN, L_SY + 100)
                a("s_mov_b64 exec, -1")
            onwave(4, wn)
            poll_check(16)
            u_load(); vm.append(("U", 0)); vm.append(("U", 0))
        if st == 5:
            eops_load(); vm.append(("E", 0)); vm.append(("E", 0))
            onwave(5, zero_pads_u)
            if UE: ucheck()
            else:
                a("s_mov_b32 s%d, %d", S_PB, F_A)
                poll_issue(32); vm.append(("X", 0))
                nonce_issue(); vm.append(("X", 0))
            wloads(NW[1])
        if st == 6:
            if not UE: ucheck()
            else:
                a("s_waitcnt vmcnt(%d)", vmwait([("U", 0)]))
                u_write()
                eops_calc()
            wloads(NW[2])
    stamp(2)
    wloads(min(NW[3], 8))
    if not UE:
        a("s_waitcnt vmcnt(%d)", vmwait([("U", 0)]))
        u_write()
        sig(VSY, 0)
        wloads(NW[3] - min(NW[3], 8))
        eops_calc()
        a("v_and_b32 v19, 3, v1")
        a("v_lshlrev_b32 v19, 2, v19")
        lds_wait(19, L_SY + 16, 18, 0)
    if opt("hold", 0): lds_wait(7, 104, 18, 1)
UE = opt("ue", 0)
def conv_prelude():
    a("v_mov_b32 v6, 1")
    a("v_mov_b32 v7, %d", L_SY)
    a("s_lshl_b32 s10, s%d, 4", S_TQ)
    a("s_add_u32 s10, s10, %d", L_SY + 32)
    a("v_mov_b32 v108, s10")
    a("v_xor_b32 v109, 16, v108")
NW = [0, opt("nw5", 8), opt("nw6", 8), opt("nw7", 0)]
AUX0 = len(a.lines)
HIST0 = list(a.hist)
a("L_aux:")
common_srds()
a("s_lshl_b32 s6, s4, 2")
a("s_add_u32 s6, s6, s5")
PITCH = 1040
LA = 6 * BLK - 1024
LGW = 0
a("v_lshlrev_b32 v4, 4, v1")
a("v_mov_b32 v10, 0")
a("s_mov_b32 s9, %d", F_E)
a("buffer_load_dword v12, v10, %s, s9 offen sc1", sr(SWS, 4))
a("s_lshl_b32 s7, s6, 16")
a("s_lshl_b32 s8, s3, 13")
a("s_add_u32 s7, s7, s8")
a("s_mul_i32 s8, s3, %d", 8 * PITCH)
for j in range(8):
    a("s_add_u32 m0, s8, %d", LA + j * PITCH)
    a("s_add_u32 s11, s7, %d", j * 1024)
    a("buffer_load_dwordx4 v4, %s, s11 offen lds", sr(SX, 4))
a("global_load_dwordx4 v[28:31], v4, %s", sr(P_GW, 2))
a("s_or_b32 s10, s2, s3")
a("s_cmp_lg_u32 s10, 0")
a("s_cbranch_scc1 L_nononce")
a("s_mov_b32 s10, 0x9e3779b1")
a("s_waitcnt vmcnt(9)")
a("v_mul_lo_u32 v12, v12, s10")
a("v_add_u32 v12, 0x7f4a7c15, v12")
a("v_mov_b32 v13, 1")
a("s_mov_b64 exec, 1")
a("global_store_dwordx2 v10, v[12:13], %s sc1", sr(P_DBG, 2))
a("buffer_store_dword v12, v10, %s, s9 offen sc1", sr(SWS, 4))
a("s_mov_b64 exec, -1")
a("L_nononce:")
a("v_and_b32 v5, 7, v0")
a("v_lshlrev_b32 v5, 4, v5")
a("v_lshrrev_b32 v6, 4, v1")
a("v_bfe_u32 v7, v1, 2, 2")
a("v_lshl_add_u32 v7, v7, 2, v6")
a("v_mul_u32_u24 v7, %d, v7", PITCH)
a("v_and_b32 v8, 3, v1")
a("v_lshl_add_u32 v7, v8, 3, v7")
a("s_and_b32 s9, s3, 1")
a("s_mul_i32 s10, s9, %d", 32 * PITCH)
a("s_lshr_b32 s11, s3, 1")
a("s_lshl_b32 s12, s11, 8")
a("s_add_u32 s10, s10, s12")
a("s_add_u32 s10, s10, %d", LA)
a("v_add_u32 v7, s10, v7")
a("v_bfe_u32 v8, v1, 1, 3")
a("v_lshlrev_b32 v8, 13, v8")
a("v_lshl_add_u32 v8, v6, 5, v8")
a("v_and_b32 v9, 1, v1")
a("v_lshl_add_u32 v8, v9, 4, v8")
a("s_lshl_b32 s12, s11, 19")
a("s_lshl_b32 s13, s6, 1")
a("s_add_u32 s13, s13, s9")
a("s_lshl_b32 s13, s13, 7")
a("s_add_u32 s12, s12, s13")
a("s_add_u32 s12, s12, %d", WS_UT)
a("v_lshrrev_b32 v9, 3, v0")
a("v_mul_u32_u24 v10, %d, v9", PITCH)
a("v_add_u32 v10, v10, v5")
a("v_add_u32 v10, %d, v10", LA)
a("s_waitcnt vmcnt(0)")
a("ds_write_b128 v4, v[28:31] offset:%d", LGW)
a("s_waitcnt lgkmcnt(0)")
a("s_barrier")
stamp(0)
for j in range(8):
    for hf in range(2):
        a("ds_read_b64_tr_b16 %s, v7 offset:%d", vr(64 + 4 * j + 2 * hf, 2), hf * 16 * PITCH + j * 32)
nonce_issue()
for j in range(8):
    a("s_waitcnt lgkmcnt(%d)", 14 - 2 * j)
    a("s_add_u32 s13, s12, %d", j * 65536)
    a("buffer_store_dwordx4 %s, v8, %s, s13 offen sc1", vr(64 + 4 * j, 4), sr(SWS, 4))
for j in range(8):
    a("ds_read_b128 %s, v10 offset:%d", vr(96 + 4 * j, 4), j * 128)
    a("ds_read_b128 %s, v5 offset:%d", vr(32 + 4 * j, 4), LGW + j * 128)
a("v_mov_b32 v11, 0")
a("v_mov_b32 v12, 0")
a("s_waitcnt lgkmcnt(0)")
for j in range(32):
    a("v_dot2_f32_bf16 v%d, v%d, v%d, v%d", 11 + j % 2, 32 + j, 96 + j, 11 + j % 2)
a("v_add_f32 v11, v11, v12")
a("v_add_f32_dpp v11, v11, v11 quad_perm:[1,0,3,2] row_mask:0xf bank_mask:0xf")
a("v_add_f32_dpp v11, v11, v11 quad_perm:[2,3,0,1] row_mask:0xf bank_mask:0xf")
a("v_add_f32_dpp v11, v11, v11 row_half_mirror row_mask:0xf bank_mask:0xf")
a("v_mul_f32 v11, 0xbfb8aa3b, v11")
a("v_exp_f32 v11, v11")
a("v_add_f32 v11, 1.0, v11")
a("v_rcp_f32 v11, v11")
a("v_lshlrev_b32 v9, 2, v9")
a("s_waitcnt vmcnt(0)")
nonce_check()
a("s_barrier")
a("s_cmp_lg_u32 s3, 0")
a("s_cbranch_scc1 L_auxnf")
a("s_lshl_b32 s10, s6, 2")
a("s_add_u32 s10, s10, %d", F_A)
flag_store("s10")
a("L_auxnf:")
stamp(1)
a("s_lshl_b32 s13, s6, 8")
a("s_add_u32 s13, s13, %d", WS_G)
a("v_cmp_eq_u32 vcc, 0, v5")
a("s_mov_b64 exec, vcc")
a("buffer_store_dword v11, v9, %s, s13 offen sc1", sr(SWS, 4))
a("s_mov_b64 exec, -1")
later_addrs(T0, T1, T2)
later_addrs2(T0, T1, T2)
later_addrs3(T0, T1, T2)
if opt("apf", 1):
    a("s_lshl_b32 s%d, s6, 3", S_PFI)
    a("s_add_u32 s%d, s%d, s3", S_PFI, S_PFI)
    a("s_lshr_b32 s10, s%d, 6", S_PFI)
    a("s_mul_i32 s10, s10, 448")
    a("s_and_b32 s11, s%d, 63", S_PFI)
    a("s_add_u32 s10, s10, s11")
    a("s_lshl_b32 s10, s10, 10")
    for k_ in range(7):
        a("buffer_load_dwordx4 v[52:55], v%d, %s, s10 offen", VH, sr(SW, 4))
        a("s_add_u32 s10, s10, 65536")
kgen_all([])
a("s_waitcnt lgkmcnt(0)")
a("s_barrier")
lg = Lg()
for r in kreads(): lg.issue(*r)
run_kmfma(lg, [], 0)
def p_():
    a("s_mov_b32 s%d, %d", S_PB, F_A)
    poll_issue(32)
    a("s_waitcnt vmcnt(0)")
    poll_check(16)
onwave(0, p_)
a("s_waitcnt vmcnt(0)")
a("s_barrier")
role(u_load, None)
eops_load()
kmfma_finish()
onwave(0, zero_pads_k)
onwave(1, zero_pads_u)
def p_():
    a("s_lshl_b32 s10, s6, 2")
    a("s_add_u32 s10, s10, %d", F_G)
    flag_store("s10")
onwave(4, p_)
a("s_waitcnt vmcnt(0)")
role(u_write, None)
eops_calc()
AUXW = len(a.lines)
a("s_waitcnt lgkmcnt(0)")
a("s_barrier")
stamp(2)

conv_prelude()
a("s_cmp_ge_u32 s3, 4")
a("s_cbranch_scc1 L_conv")
a("s_branch L_help")
aux_lines = a.lines[AUX0:]
a.lines = a.lines[:AUX0]
a.hist = HIST0
VA, VB, VC, VY = 2, 3, 4, 5
HF = 80
HRING = 16
VO = 14
HFC = 112
def hload(j0, n, vml, HF=HF):
    for j in range(j0, j0 + n):
        if j % 4 == 0 or j == j0:
            a("s_add_u32 s%d, s%d, s%d", S_T, S_HB, S_RT + j // 4)
        a("buffer_load_dwordx4 %s, v%d, %s, s%d offen offset:%d%s", vr(HF + 4 * (j % HRING), 4), VH, sr(SWS, 4), S_T, (j % 4) * 1024, "" if opt("hplain", 0) else " sc1")
        vml.append(("H", j))

WORD = {0: [0, 1, 4, 5, 6, 2, 3], 8: [0, 1, 2, 4, 5, 6, 3], 16: [0, 1, 2, 3, 4, 5, 6]}[opt('nw7', 0)]
def hl_list(all_=False):
    L = []
    for rd in WORD:
        for i in range(8):
            def f(rd=rd, i=i):
                if rd < 4:
                    a("s_add_u32 m0, s%d, %d", S_WLD, WB[rd] * BLK + i * 1024)
                if i == 0:
                    a("s_lshl_b32 s13, s%d, 4", S_RT + rd)
                    a("s_add_u32 s13, s13, s%d", S_WSO)
                else:
                    a("s_add_u32 s13, s13, 8192")
                if rd < 4:
                    a("buffer_load_dwordx4 v%d, %s, s13 offen lds", VWD, sr(SW, 4))
                else:
                    a("buffer_load_dwordx4 %s, v%d, %s, s13 offen", vr(WST + WSTO[rd] + 4 * i, 4), VWD, sr(SW, 4))
            L.append(f)
    return L if all_ else L[sum(NW):]
assert all(x % 8 == 0 for x in NW) and NW[0] <= 8 and NW[0] + NW[1] <= 16
BC0 = len(a.lines)
a("L_st2:"); a("s_branch L_stret")
loader()
a("L_conv:")
stamp(3)
if opt("prio", 0): a("s_setprio %d", opt("prio", 0))
a("s_mov_b32 s14, 0x11111111")
a("s_mov_b32 s15, 0x11111111")
a("s_mov_b64 vcc, s[14:15]")
a("s_mov_b32 s12, 0x33333333")
a("s_mov_b32 s13, 0x33333333")
a("s_bitcmp1_b32 s3, 0")
a("s_cbranch_scc1 L_set1")
BF = 112
AF = 8
AC = 28
C1POS = opt("c1pos", 26)
LOOK = opt("look", 6)
NC0 = opt("nc0", 6)
FPG = opt("fpg", 4)
vmc = None
VCF, VCP = 108, 109
DONE = {}
def done_pos(jt):
    CM = opt("cm", 0)
    for tiles in ([0, 3, 4, 7], [1, 2, 5, 6]):
        if jt in tiles:
            groups = {0: [[0, 1, 2, 3]], 1: [[0], [1], [2], [3]], 2: [[0, 1], [2, 3]], 3: [[0, 1, 2], [3]]}[CM]
            sc = [tiles[ti] for g_ in groups for dl in range(4 * tiles[g_[-1]] + 4) for ti in g_ if dl <= 4 * tiles[ti] + 3]
            return max(p for p, x in enumerate(sc) if x == jt)
for si, tiles in enumerate([[0, 3, 4, 7], [1, 2, 5, 6]]):
    if si == 1:
        a("L_st0:"); a("s_branch L_stret")
        a("L_set1:")
    other = [[1, 2, 5, 6], [0, 3, 4, 7]][si]
    lg = Lg()
    CM = opt("cm", 0)
    groups = {0: [[0, 1, 2, 3]], 1: [[0], [1], [2], [3]], 2: [[0, 1], [2, 3]], 3: [[0, 1, 2], [3]]}[CM]
    sched = []; aid = []; adl = []
    for g_ in groups:
        for dl in range(4 * tiles[g_[-1]] + 4):
            adl.append(dl)
            for ti in g_:
                if dl <= 4 * tiles[ti] + 3:
                    sched.append((dl, ti, tiles[ti])); aid.append(len(adl) - 1)
    NA = 5
    lastuse = {}
    for pos in range(len(sched)): lastuse[aid[pos]] = pos
    loads = []; seenB = set(); seenA = set()
    for pos, (dl, ti, jt) in enumerate(sched):
        if aid[pos] not in seenA: seenA.add(aid[pos]); loads.append(("A", aid[pos], pos))
        e = 4 * jt - dl
        if e not in seenB: seenB.add(e); loads.append(("B", e, pos))
    done_at = {jt: max(p for p, x in enumerate(sched) if x[2] == jt) for jt in tiles}
    DONE.update(done_at)
    def ld_instrs(kind, idx):
        if kind == "A":
            r = AF + 4 * (idx % NA); dl_ = adl[idx]
            return ["ds_read_b64_tr_b16 %s, v%d offset:%d" % (vr(r + 2 * hf, 2), VA, 128 * dl_ + 32 * (1 - hf)) for hf in range(2)]
        return ["ds_read_b128 %s, v%d offset:%d" % (vr(BF + 4 * (idx + 3), 4), VB, 128 * (idx + 3))]
    nys = [0]
    ystores = []
    def post(ti, jt):
        b = AC + 20 * ti
        L = []
        q1 = "quad_perm:[1,1,3,3] row_mask:0xf bank_mask:0xf"; q2 = "quad_perm:[2,2,2,2] row_mask:0xf bank_mask:0xf"
        q0 = "quad_perm:[0,0,0,0] row_mask:0xf bank_mask:0xf"
        L.append("v_mov_b32_dpp v%d, v%d %s" % (b + 16, b + 15, q1))
        for q in range(15, 0, -1):
            L.append("v_add_f32_dpp v%d, v%d, v%d %s" % (b + q, b + q - 1, b + q, q1))
        L.append("v_mov_b32_dpp v%d, v%d %s" % (b + 18, b + 16, q2))
        L.append("v_mov_b32_dpp v%d, v%d %s" % (b + 17, b + 15, q2))
        L.append("v_add_f32_dpp v%d, v%d, v%d %s" % (b + 16, b + 14, b + 16, q2))
        def cw():
            a("s_mov_b64 exec, vcc")
            lg.issue("ds_write_b128 v%d, %s offset:%d" % (VC, vr(b + 16, 4), 256 * jt + 16))
            if jt + 1 in other:
                a("s_mov_b64 exec, 1")
                lg.issue("ds_write_b32 v%d, v6 offset:%d" % (VCF, 4 * ti))
            a("s_mov_b64 exec, -1")
        L.append(cw)
        for q in range(15, 1, -1):
            L.append("v_add_f32_dpp v%d, v%d, v%d %s" % (b + q, b + q - 2, b + q, q2))
        for q in range(2, 8):
            L.append("v_cvt_pk_bf16_f32 v%d, v%d, v%d" % (b + 16 + (q - 2) if q < 4 else b + q, b + 2 * q, b + 2 * q + 1))
        L = [(0, x) for x in L]
        part = (jt - 1) in other
        mp = done_pos(jt - 1) + opt("cmarg", 22) if part else 0
        def rd():
            if part: lg.issue("ds_read_b32 v%d, v%d offset:%d" % (b + 12, VCP, 4 * other.index(jt - 1)), ("cf", ti))
            lg.issue("ds_read_b128 %s, v%d offset:%d" % (vr(b + 8, 4), VC, 256 * jt), ("cy", ti))
        L.append((mp, rd))
        def chk():
            lg.need([("cy", ti)])
            if part:
                ok = a.label("Lcok"); sl = a.label("Lcsl")
                a("v_readfirstlane_b32 s10, v%d", b + 12)
                a("s_cmp_eq_u32 s10, 0")
                a("s_cbranch_scc1 %s", sl)
                a(ok + ":")
                def sp(ok=ok, sl=sl, oi=other.index(jt - 1)):
                    a(sl + ":")
                    lds_wait(VCP, 4 * oi, b + 12, 0)
                    a("s_mov_b64 vcc, s[14:15]")
                    a("ds_read_b128 %s, v%d offset:%d", vr(b + 8, 4), VC, 256 * jt)
                    a("s_waitcnt lgkmcnt(0)")
                    a("s_branch %s", ok)
                slow.append(sp)
        L.append((-3, chk))
        for q in range(3):
            L.append((0, "v_add_f32 v%d, v%d, v%d" % (b + q, b + q, b + 8 + q)))
        L.append((0, "v_cvt_pk_bf16_f32 v%d, v%d, v%d" % (b, b, b + 1)))
        L.append((0, "v_cvt_pk_bf16_f32 v%d, v%d, v%d" % (b + 1, b + 2, b + 3)))
        L.append((0, "v_cndmask_b32_dpp v%d, v%d, v%d, vcc %s" % (b + 2, b + 6, b + 16, q0)))
        L.append((0, "v_cndmask_b32_dpp v%d, v%d, v%d, vcc %s" % (b + 3, b + 7, b + 17, q0)))
        L.append((0, "v_cndmask_b32_dpp v%d, v%d, v%d, vcc %s" % (b, b + 4, b, q0)))
        L.append((0, "v_cndmask_b32_dpp v%d, v%d, v%d, vcc %s" % (b + 1, b + 5, b + 1, q0)))
        def st_():
            a("s_mov_b64 exec, s[12:13]")
            a("buffer_store_dwordx4 %s, v%d, %s, s%d offen offset:%d sc1", vr(b, 4), VY, sr(SWS, 4), S_YB, 512 * jt)
            a("s_mov_b64 exec, -1")
            nys[0] += 1
        if opt("ydefer", 1): ystores.append(st_)
        else: L.append((0, st_))
        return L
    li = 0; queues = []
    def emit(x): a(x) if isinstance(x, str) else x()
    for pos, (dl, ti, jt) in enumerate(sched):
        for ld in list(loads):
            kind, idx, fp = ld
            if fp <= pos + LOOK and not (kind == "A" and idx >= NA and lastuse[idx - NA] >= pos):
                for ins in ld_instrs(kind, idx): lg.issue(ins, (kind, idx))
                loads.remove(ld)
        e = 4 * jt - dl
        lg.need([("A", aid[pos]), ("B", e)])
        d = vr(AC + 20 * ti, 16)
        a("v_mfma_f32_32x32x16_bf16 %s, %s, %s, %s", d, vr(AF + 4 * (aid[pos] % NA), 4), vr(BF + 4 * (e + 3), 4), d if dl else "0")
        if opt("diag2", 0) and pos in (15, 39):
            stamp({15: 11, 39: 12}[pos], True); lg.drained()
        bud = FPG
        for qu in queues:
            while bud and qu[0] and pos >= qu[1]:
                mp, x = qu[0][0]
                if mp > pos: break
                if mp < 0:
                    qu[0][0] = (pos - mp, x); break
                qu[0].pop(0); emit(x); bud -= 1
        if dl == 4 * jt + 3: queues.append([post(ti, jt), pos + 3])
    stamp(4)
    def upto(qu, name, incl):
        names = [getattr(x, "__name__", "") for mp, x in qu[0]]
        if name not in names: return
        n_ = names.index(name) + (1 if incl else 0)
        for mp, x in qu[0][:n_]: emit(x)
        qu[0] = qu[0][n_:]
    for qu in queues[:-1]: upto(qu, "cw", True)
    upto(queues[-1], "cw", True)
    for qu in queues[:-1]: upto(qu, "rd", True)
    upto(queues[-1], "rd", True)
    for qu in queues[:-1]:
        for mp, x in qu[0]: emit(x)
    for mp, x in queues[-1][0]: emit(x)
    for x in ystores: x()
    stamp(5)
    if si == 0: a("s_branch L_g2c")

BH0 = len(a.lines)
a.hist = HIST0
a("v_mov_b32 v6, 1")
a("v_mov_b32 v7, %d", L_SY)
if opt("hold", 0): onwave(3, lambda: sig(7, 104))
a("s_setprio 0")
a("L_help:")
stamp(3)
NPRE = opt("npre", 8)
for f in hl_list()[:NPRE]: f()
a("s_waitcnt vmcnt(%d)", NPRE)
sig(VSY, 0)
stamp(10)
a("s_cmp_lg_u32 s3, 0")
a("s_cbranch_scc1 L_hdma")
a("s_cmp_lg_u32 s%d, 0", S_ISAUX)
a("s_cbranch_scc1 L_hdma")
a("v_and_b32 v2, 3, v1")
a("v_lshl_add_u32 v2, v2, 2, v7")
rest = hl_list()[NPRE:]
SEG = opt("seg", 2)
NSEG = opt("nseg", 6)
for k in range(NSEG):
    a("ds_read_b32 v3, v2")
    a("s_waitcnt lgkmcnt(0)")
    a("v_cmp_eq_u32 vcc, 0, v3")
    a("s_cmp_eq_u64 vcc, 0")
    a("s_cbranch_scc1 L_pub%d", k)
    for f in rest[k * SEG:(k + 1) * SEG]: f()
lds_wait(2, 0, 3, 0)
for k in range(NSEG, -1, -1):
    a("L_pub%d:" % k)
    a("s_mov_b32 s11, s%d", S_NONCE)
    a("s_buffer_atomic_swap s11, %s, s%d", sr(SWS, 4), S_FH)
    if STAMP and k == 0: pass
    if k: a("s_branch L_seg%d", k)
a("L_hdma:")
for n_, f in enumerate(rest):
    if n_ and n_ % SEG == 0 and n_ // SEG <= NSEG: a("L_seg%d:" % (n_ // SEG))
    f()
stamp(6)
NH0 = opt("nh0", 6)
def hpoll():
    if PCF:
        a("s_lshl_b32 s%d, s%d, 3", S_PB, S_TB)
        a("s_add_u32 s%d, s%d, s%d", S_PB, S_PB, S_DB)
    else:
        a("s_lshr_b32 s%d, s%d, 1", S_PB, S_TB)
    a("s_mul_i32 s%d, s%d, %d", S_PB, S_PB, FSTR)
    a("s_add_u32 s%d, s%d, %d", S_PB, S_PB, F_H2)
    a("s_mov_b32 s8, s%d", S_NONCE)
    a("s_mov_b32 s9, s%d", S_NONCE)
    a("s_mov_b32 s12, 0")
    a("L_sp:")
    a("s_buffer_load_dwordx16 s[16:31], %s, s%d glc", sr(SWS, 4), S_PB)
    a("s_add_u32 s12, s12, 1")
    a("s_waitcnt lgkmcnt(0)")
    a("s_xor_b64 s[10:11], s[16:17], s[8:9]")
    for i in range(1, 7):
        a("s_xor_b64 s[14:15], s[%d:%d], s[8:9]", 16 + 2 * i, 17 + 2 * i)
        a("s_or_b64 s[10:11], s[10:11], s[14:15]")
    a("s_cbranch_scc0 L_fnd")
    a("s_cmp_lt_u32 s12, %d", opt("spn", 64))
    a("s_cbranch_scc1 L_sp")
    poll_issue(14)
    a("s_waitcnt vmcnt(0)")
    poll_check(1)
    a("L_fnd:")
    sig(7, 96)
def ypublish():
    a("s_waitcnt vmcnt(0)")
    sig(VSY, 96)
    def p_():
        a("v_and_b32 v2, 3, v1")
        a("v_lshl_add_u32 v2, v2, 2, v7")
        lds_wait(2, 112, 3, 0)
        a("s_lshl_b32 s10, s2, 2")
        a("s_add_u32 s10, s10, %d", F_Y)
        flag_store("s10")
    onwave(4, p_)
    stamp(6)
vmh = []; vmc = []

def gemm2(role_, vml):
    helper = role_ == "h"
    HFR = HF if helper else HFC
    R = 8
    VYR, EG = 15, 16
    EY = 176
    VWW = 76
    t0, t1, t2, t3 = 2, 3, 4, 5
    AFR = 20
    AC2 = 44
    YL = 180
    A0 = 188
    RR = 16
    def vw(tags):
        idx = [i for i, t in enumerate(vml) if t in tags]
        if opt("g2nowait", 0) and tags[0][0] in "HW": return 63
        if not idx: return 63
        return min(63, len(vml) - 1 - max(idx))
    a("v_mov_b32 v%d, v%d", R, VR0)
    a("v_xor_b32 v%d, 64, v%d", R + 1, VR0)
    for m in range(2):
        a("v_add_u32 v%d, %d, v%d", R + 2 + m, 4 * BLK, R + m)
        a("v_add_u32 v%d, %d, v%d", R + 4 + m, 8 * BLK, R + m)
    if helper and opt("pollpre", 1): onwave(opt("pollw", 1), hpoll)
    a("s_waitcnt vmcnt(%d)", 0 if helper else 4)
    if not helper and opt("pollpre", 1): ypublish()
    a("s_barrier")
    stamp(7)
    def reads(step):
        rd, ks = step // 4, step % 4
        blk = WB[rd]
        f = AFR + (step % 3) * 8
        L = []
        for m in range(2):
            for hf in range(2):
                L.append(("ds_read_b64_tr_b16 %s, v%d offset:%d" % (vr(f + 4 * m + 2 * hf, 2), R + 2 * (blk // 4) + m, (blk % 4) * BLK + ((ks >> 1) * 4096 + (ks & 1) * 1024 + hf * 2048 if G16 else ks * 2048 + hf * 1024)), (step, m)))
        return L
    def ypoll_issue():
        a("s_lshl_b32 s10, s%d, 7", S_DB)
        a("v_lshl_add_u32 v%d, v1, 2, s10", VN + 2)
        a("s_lshl_b32 s10, s%d, 2", S_TB)
        a("s_add_u32 s10, s10, %d", F_G - F_Y)
        a("v_mov_b32 v%d, s10", t0)
        a("v_cmp_lt_u32 vcc, 31, v1")
        a("v_cndmask_b32 v%d, v%d, v%d, vcc", VN + 2, VN + 2, t0)
        a("s_mov_b32 s%d, %d", S_PB, F_Y)
        a("buffer_load_dword v%d, v%d, %s, s%d offen sc1", VN - 1, VN + 2, sr(SWS, 4), S_PB)
        vml.append(("PY", 0))
    def yload():
        poll_check(1)
        a("v_lshrrev_b32 v%d, 3, v1", t0)
        a("v_lshlrev_b32 v%d, 12, v%d", t0, t0)
        a("v_and_b32 v%d, 7, v1", t1)
        a("v_lshl_add_u32 v%d, v%d, 4, v%d", t0, t1, t0)
        a("s_lshl_b32 s12, s%d, 3", S_DB)
        a("s_add_u32 s12, s12, s3")
        a("s_lshl_b32 s12, s12, 15")
        a("s_lshl_b32 s13, s%d, 7", S_TB)
        a("s_add_u32 s12, s12, s13")
        a("s_add_u32 s12, s12, %d", WS_Y)
        a("buffer_load_dwordx4 %s, v%d, %s, s12 offen sc1", vr(YL, 4), t0, sr(SWS, 4))
        vml.append(("Y", 0))
        a("v_and_b32 v%d, 31, v1", t1)
        a("v_lshlrev_b32 v%d, 2, v%d", t1, t1)
        a("buffer_load_dword v%d, v%d, %s, s%d offen sc1", EG, t1, sr(SWS, 4), S_GOFF)
        vml.append(("Y", 0))
    lg = Lg()
    for r in reads(0) + reads(1): lg.issue(*r)
    pend = []
    def wwrite(rd, i):
        if opt("xnoww", 0): return
        if i == 0: a("v_add_u32 v%d, %d, v%d", VWW, WB[rd] * BLK, VWW + 1)
        lg.issue("ds_write_b128 v%d, %s offset:%d" % (VWW, vr(WST + WSTO[rd] + 4 * i, 4), i * 1024), ("ww", rd))
    if helper:
        a("v_add_u32 v%d, s%d, v%d", VWW + 1, S_WLD, VH)
    if opt("pollpre", 1):
        hload(0, NH0 if helper else NC0, vml, HFR)
        if helper:
            for i in range(7): wwrite(4, i)
    else:
        if helper:
            for i in range(7): wwrite(4, i)
            onwave(opt("pollw", 1), hpoll)
        else:
            ypublish()
        lds_wait(7, 96, 3, 0); lg.drained()
        stamp(13)
        hload(0, NH0 if helper else NC0, vml, HFR)
    vfill = []
    nh = NH0 if helper else NC0
    YPS = opt("yps", 12)
    for step in range(28):
        rd, ks = step // 4, step % 4
        f = AFR + (step % 3) * 8
        nxt = reads(step + 2) if step < 26 else []
        for m in range(2):
            d = vr(AC2 + 16 * m, 16)
            lg.need([(step, m)], "vmcnt(%d) " % vw([("H", step)]) if m == 0 else "")
            a("v_mfma_f32_32x32x16_bf16 %s, %s, %s, %s", d, vr(f + 4 * m, 4), vr(HFR + 4 * (step % HRING), 4), d if step else "0")
            for r in nxt[2 * m:2 * m + 2]: lg.issue(*r)
            if nh < 28 and m == 0 and not opt("xnoh", 0):
                hload(nh, 1, vml, HFR); nh += 1
            if m == 0 and step == opt("yls", 21):
                a("s_waitcnt vmcnt(%d)", vw([("PY", 0)]))
                yload()
            if m == 1 and step == YPS: ypoll_issue()
            if pend: pend.pop(0)()
            for _ in range(5):
                if vfill: lg.run(vfill.pop(0))
        if opt("stg2", 0) and ks == 3 and rd < 5:
            stamp(10 + rd); lg.drained()
        if step == 20:
            for j in range(4):
                vfill.append("v_lshlrev_b32 v%d, 16, v%d" % (A0 + 2 * j, EUD + j))
                vfill.append("v_and_b32 v%d, 0xffff0000, v%d" % (A0 + 2 * j + 1, EUD + j))
            vfill += ["v_and_b32 v%d, 31, v1" % t2, "v_lshrrev_b32 v%d, 5, v1" % t3, "v_lshlrev_b32 v%d, 4, v%d" % (t3, t3),
                      "v_lshl_add_u32 v%d, v%d, 10, v%d" % (VO, t2, t3)]
        if ks == 1 and 1 <= rd < 6:
            if helper and rd >= 3: lg.need([("ww", rd + 1)])
            a("s_barrier")
            if helper and rd == 1: wwrite(4, 7)
            if helper and rd <= 2:
                assert not pend
                pend = [(lambda i=i, r=rd + 4: wwrite(r, i)) for i in range(8)]
            if rd == 5:
                vfill += ["v_lshrrev_b32 v%d, 5, v1" % VYR,
                          "v_bfe_u32 v%d, v1, 2, 2" % t2,
                          "v_lshl_add_u32 v%d, v%d, 3, v%d" % (VYR, VYR, t2),
                          "v_lshlrev_b32 v%d, 7, v%d" % (VYR, VYR),
                          "v_bfe_u32 v%d, v1, 4, 1" % t2,
                          "v_lshl_add_u32 v%d, v%d, 5, v%d" % (VYR, t2, VYR),
                          "v_and_b32 v%d, 3, v1" % t2,
                          "v_lshl_add_u32 v%d, v%d, 3, v%d" % (VYR, t2, VYR),
                          "s_lshr_b32 s10, s3, 1", "s_lshl_b32 s10, s10, 11", "s_and_b32 s11, s3, 1", "s_lshl_b32 s11, s11, 6",
                          "s_add_u32 s10, s10, s11", "s_add_u32 s10, s10, %d" % L_Y,
                          "v_add_u32 v%d, s10, v%d" % (VYR, VYR),
                          "s_lshl_b32 s10, s3, 10", "s_add_u32 s10, s10, %d" % L_Y,
                          "v_add_u32 v%d, s10, v%d" % (YL + 4, VH)]
                for j in range(4):
                    hi_ = (0 if helper else 1) ^ (j >> 1)
                    vfill.append("s_xor_b32 s10, s%d, %d" % (S_TQ, (2 * j) & 3))
                    vfill.append("s_mul_i32 s10, s10, 6144")
                    vfill.append("s_add_u32 s10, s10, %d" % (L_R[hi_] + max(j - 1, 0) * 2048))
                    vfill.append("v_add_u32 v%d, s10, v%d" % (VWW if j == 0 else RR + j, VH))
    assert not pend
    stamp(8)
    for f_ in vfill: lg.run(f_)
    a("s_waitcnt vmcnt(0)")
    a("ds_write_b128 v%d, %s", YL + 4, vr(YL, 4))
    for j in range(1, 4):
        for b in range(2):
            a("ds_write_b128 v%d, %s offset:%d", VWW, vr(AC2 + 8 * j + 4 * b, 4), (j - 1) * 2048 + b * 1024)
    for q in range(8):
        a("v_sub_f32 v%d, v%d, v%d", A0 + q, A0 + q, AC2 + q)
        a("v_fmac_f32 v%d, v%d, v%d", AC2 + q, EG, A0 + q)
    a("v_sub_f32 v%d, 1.0, v%d", t1, EG)
    a("s_waitcnt lgkmcnt(0)")
    a("s_barrier")
    for hf in range(2):
        a("ds_read_b64_tr_b16 %s, v%d offset:%d", vr(EY + 2 * hf, 2), VYR, hf * 512)
    for j in range(1, 4):
        for b in range(2):
            a("ds_read_b128 %s, v%d offset:%d", vr(AC2 + 8 * j + 4 * b, 4), RR + j, b * 1024)
    a("s_waitcnt lgkmcnt(6)")
    for j in range(4):
        a("v_lshlrev_b32 v%d, 16, v%d", t2, EY + j)
        a("v_and_b32 v%d, 0xffff0000, v%d", t3, EY + j)
        a("v_fmac_f32 v%d, v%d, v%d", AC2 + 2 * j, EG, t2)
        a("v_fmac_f32 v%d, v%d, v%d", AC2 + 2 * j + 1, EG, t3)
    for j in range(1, 4):
        a("s_waitcnt lgkmcnt(%d)", 2 * (3 - j))
        for q in range(8):
            a("v_fmac_f32 v%d, v%d, v%d", AC2 + q, t1, AC2 + 8 * j + q)
    for j in range(4):
        a("v_cvt_pk_bf16_f32 v%d, v%d, v%d", A0 + j, AC2 + 2 * j, AC2 + 2 * j + 1)
    a("buffer_store_dwordx4 %s, v%d, %s, s%d offen", vr(A0, 4), VO, sr(SO, 4), S_OB)
    if STAMP: a("s_waitcnt vmcnt(0)")
    stamp(9)
    stamp_out()
    a("s_endpgm")

gemm2("h", vmh)
BG0 = len(a.lines)
a.lines = a.lines[:BC0] + a.lines[BH0:BG0] + a.lines[BC0:BH0]
a("L_g2c:")
gemm2("c", vmc)
n0_ = len(a.lines)
def auxw():
    for f in hl_list(True)[:sum(NW)]: f()
role(None, auxw)
auxw_lines = a.lines[n0_:]; a.lines = a.lines[:n0_]
a.lines += aux_lines[:AUXW - AUX0] + auxw_lines + aux_lines[AUXW - AUX0:]
for sp in slow: sp()
a("L_end:")
a("s_endpgm")

hdr = open("gated_mix__ssm_conv_s4__glu_gated_bilinear__prompt.s.ref").read().split("\n")
hdr = [l for l in hdr if l.startswith(";") and "@launch" not in l]
print(wrap(hdr + ["; @launch grid=(256,1,1) block=(512,1,1) lds=163840"], [(NAME, a, 256, 102, 256)]))
sys.stderr.write("nops: %d\n" % a.nops)
```

```python
import sys
from asmlib import *

STAMP = "--stamp" in sys.argv
def opt(name, default):
    for x in sys.argv:
        if x.startswith("--%s=" % name): return int(x.split("=")[1])
    return default

WS_H = 0
WS_UT = 8 << 20
WS_Y = 10 << 20
WS_G = 12 << 20
WS_F = (12 << 20) + 0x10000
F_H2 = (12 << 20) + 0x80000
WS_ST = 13 << 20
WS_BYTES = 14 << 20
F_A, F_H, F_Y, F_G, F_E = WS_F, WS_F + 0x1000, WS_F + 0x2000, WS_F + 0x3000, WS_F + 0x4000

P_U, P_ARE, P_AIM, P_BRE, P_BIM, P_CRE, P_CIM, P_LDT = 16, 18, 20, 22, 24, 26, 28, 30
P_DSK, P_BX, P_WG, P_WU, P_WD, P_GW, P_OUT, P_DBG, P_WS = 32, 34, 36, 38, 40, 42, 44, 46, 48
SX, SG, SU, SWS, SW, SO = 52, 56, 60, 64, 68, 72
S_NONCE, S_ISAUX, S_SPIN, S_PB = 76, 77, 78, 79
S_TB, S_DB, S_KH, S_TQ, S_HB, S_OB = 80, 81, 82, 83, 84, 85
S_W0S = 100
S_RT = 36
S_KR, S_T2 = 0, 1
S_W2K, S_T, S_TM0, S_YB = 86, 87, 88, 89
S_DOFF, S_GOFF = 50, 51
S_WSO, S_WLD = 90, 91
S_HST = 34
S_FH = 35
PCF = opt('pcf', 0)
FSTR = opt('fstr', 1280)
G16 = 1
SPINMAX = opt("spin", 20000)

BLK = 16384
XB = [0, 1, 2]
GB = [6, 8, 4]
L_TAB = 2 * BLK
TP = 528
TPIECE = 31 * TP
L_U = 2 * BLK
UCH = 512 + 4096
L_K = 3 * BLK
KCH = 64 + 4096
L_CY = L_K + 2 * KCH
CYCH = 129 * 16
L_SY = 4 * BLK - 128
assert L_SY % 32 == 0 and L_SY + 128 <= 4 * BLK
WB = [4, 6, 8, 0, 2, 4, 6]
L_Y = 8 * BLK + 24576
L_R = [8 * BLK, 0]

a = Asm()

class Lg:
    def __init__(self): self.q = []; self.done = 0
    def issue(self, ins, tag=None):
        a(ins); self.q.append(tag)
    def need(self, tags, extra=""):
        idx = [i for i, t in enumerate(self.q) if t in tags]
        last = max(idx) if idx else -1
        if last >= self.done:
            cnt = min(len(self.q) - 1 - last, 15)
            a("s_waitcnt %slgkmcnt(%d)", extra, cnt)
            self.done = len(self.q) - cnt
        elif extra:
            a("s_waitcnt %s", extra)
    def drained(self): self.done = len(self.q)
    def run(self, p):
        n0 = len(a.lines)
        a(p) if isinstance(p, str) else p()
        for ln in a.lines[n0:]:
            if ln.strip().startswith("ds_"): self.q.append(None)

SMASK = opt("smask", 0x7fff)
def stamp(i, force=False):
    if opt("stg", 0) == 2:
        if not force or not (SMASK >> i) & 1: return
    if not STAMP or not ((SMASK >> i) & 1 or force): return
    a("s_memtime s[94:95]")
    a("s_memrealtime s[92:93]")
    a("s_waitcnt lgkmcnt(0)")
    a("s_sub_u32 s94, s94, s98")
    a("v_writelane_b32 v255, s94, %d", i)
    a("v_writelane_b32 v255, s92, %d", i + 16)
def stamp_out():
    if not STAMP: return
    a("s_mov_b64 exec, -1")
    a("v_writelane_b32 v255, s96, 31")
    a("s_getreg_b32 s92, hwreg(HW_REG_XCC_ID)")
    a("s_getreg_b32 s93, hwreg(HW_REG_HW_ID)")
    a("s_and_b32 s92, s92, 15")
    a("s_lshl_b32 s93, s93, 4")
    a("s_or_b32 s92, s92, s93")
    a("v_writelane_b32 v255, s92, 15")
    a("s_lshl_b32 s92, s2, 3")
    a("s_add_u32 s92, s92, s3")
    a("s_lshl_b32 s92, s92, 7")
    a("s_add_u32 s92, s92, %d", WS_ST)
    a("v_mbcnt_lo_u32_b32 v254, -1, 0")
    a("v_mbcnt_hi_u32_b32 v254, -1, v254")
    a("v_lshlrev_b32 v253, 2, v254")
    a("s_mov_b64 exec, 0xffffffff")
    a("buffer_store_dword v255, v253, %s, s92 offen", sr(SWS, 4))

def cmul(d, x, y, plain):
    if plain:
        return ["v_mul_f32 v%d, v%d, v%d" % (d, x, y), "v_mul_f32 v%d, v%d, v%d" % (d + 1, x + 1, y),
                "v_fma_f32 v%d, -v%d, v%d, v%d" % (d, x + 1, y + 1, d), "v_fmac_f32 v%d, v%d, v%d" % (d + 1, x, y + 1)]
    return ["v_pk_mul_f32 %s, %s, %s op_sel_hi:[1,0]" % (vr(d, 2), vr(x, 2), vr(y, 2)),
            "v_pk_fma_f32 %s, %s, %s, %s op_sel:[1,1,0] op_sel_hi:[0,1,1] neg_lo:[1,0,0]" % (vr(d, 2), vr(x, 2), vr(y, 2), vr(d, 2))]
def il(x, y):
    o = []
    for i in range(max(len(x), len(y))):
        if i < len(x): o.append(x[i])
        if i < len(y): o.append(y[i])
    return o

VH = 240
VWD = 241
VR0 = 242
VSY = 243
VN = 250
PVA, PVB, PVC, PVY = 2, 3, 4, 5
KA, KBa, KW = 152, 153, 154
VZ = 235
KB = 160
KP = 204
KF = 160
KD = 236
VUL = 244

def kgen_setup():
    a("s_lshr_b32 s10, s3, 2")
    a("s_lshl_b32 s11, s2, 1")
    a("s_add_u32 s11, s11, s10")
    a("s_and_b32 s12, s3, 1")
    a("s_lshl_b32 s13, s11, 8")
    a("s_lshl_b32 s12, s12, 7")
    a("s_add_u32 s13, s13, s12")
    a("v_lshl_add_u32 v%d, v1, 1, s13", KB + 8)
    a("s_lshl_b32 s11, s11, 1")
    a("v_mov_b32 v%d, s11", KB + 9)
    for i in range(7): a("v_mov_b32 v%d, 0", KB + i)
    a("s_bitcmp1_b32 s3, 1")
    a("s_cselect_b64 s[14:15], -1, 0")
def kgen_loads():
    a("global_load_short_d16_hi v%d, v%d, %s", KB + 6, KB + 9, sr(P_LDT, 2))
    for i, p in enumerate([P_ARE, P_AIM, P_BRE, P_BIM, P_CRE, P_CIM]):
        a("global_load_short_d16_hi v%d, v%d, %s", KB + i, KB + 8, sr(p, 2))
    return 7
def rowpos(m): return 16 + (2 * m if m <= 7 else 2 * (m - 8) + 1)
def kgen_valu(plain_tail):
    L = []
    A_, B_, BR, BI, CR, CI, LD, T0, T1, T2 = [KB + i for i in range(10)]
    W, E1, E2, E4, E8, E128, E256, E512, P, X0, X1, R0, R1, RB, Y0, Z0 = [KB + 10 + 2 * i for i in range(16)]
    L.append("v_mul_f32 v%d, 0x3fb8aa3b, v%d" % (T0, LD))
    L.append("v_mov_b32 v%d, 0x3fb8aa3b" % T2)
    L.append("v_fma_f32 v%d, v%d, v%d, -v%d" % (T1, LD, T2, T0))
    L.append("v_fmac_f32 v%d, 0x32a57060, v%d" % (T1, LD))
    L.append("v_exp_f32 v%d, v%d" % (T0, T0))
    L.append("v_mul_f32 v%d, 0x3f317218, v%d" % (T1, T1))
    L.append("v_fmac_f32 v%d, v%d, v%d" % (T0, T0, T1))
    L.append("v_cvt_pk_bf16_f32 v%d, v%d, v%d" % (T0, T0, T0))
    L.append("v_and_b32 v%d, 0xffff0000, v%d" % (T0, T0))
    for r in (A_, B_, BR, BI):
        L.append("v_mul_f32 v%d, v%d, v%d" % (r, T0, r))
    L.append("v_mul_f32 v%d, 0x3fb8aa3b, v%d" % (A_, A_))
    L.append("v_mul_f32 v%d, 0.15915494, v%d" % (B_, B_))
    o1 = ["v_exp_f32 v%d, v%d" % (T0, A_), "v_fract_f32 v%d, v%d" % (T1, B_),
          "v_cos_f32 v%d, v%d" % (E1, T1), "v_sin_f32 v%d, v%d" % (E1 + 1, T1),
          "v_mul_f32 v%d, v%d, v%d" % (E1, T0, E1), "v_mul_f32 v%d, v%d, v%d" % (E1 + 1, T0, E1 + 1)]
    o2 = ["v_mul_f32 v%d, 0x43000000, v%d" % (T2, A_), "v_mul_f32 v%d, 0x43000000, v%d" % (LD, B_),
          "v_exp_f32 v%d, v%d" % (T2, T2), "v_fract_f32 v%d, v%d" % (LD, LD),
          "v_cos_f32 v%d, v%d" % (E128, LD), "v_sin_f32 v%d, v%d" % (E128 + 1, LD),
          "v_mul_f32 v%d, v%d, v%d" % (E128, T2, E128), "v_mul_f32 v%d, v%d, v%d" % (E128 + 1, T2, E128 + 1)]
    L += il(o2, o1 + cmul(W, CR, BR, False))
    L += il(cmul(E2, E1, E1, False) + cmul(E4, E2, E2, False) + cmul(E8, E4, E4, False),
            cmul(E256, E128, E128, False) + cmul(E512, E256, E256, False))
    L.append("v_cndmask_b32 v%d, v%d, v%d, s[14:15]" % (P, E1, E2))
    L.append("v_cndmask_b32 v%d, v%d, v%d, s[14:15]" % (P + 1, E1 + 1, E2 + 1))
    L.append("v_cndmask_b32 v%d, 1.0, v%d, s[14:15]" % (X0, E128))
    L.append("v_cndmask_b32 v%d, 0, v%d, s[14:15]" % (X0 + 1, E128 + 1))
    L.append("v_cndmask_b32 v%d, 1.0, v%d, s[14:15]" % (E256, E256))
    L.append("v_cndmask_b32 v%d, 0, v%d, s[14:15]" % (E256 + 1, E256 + 1))
    L += cmul(RB, W, E256, False)
    rows = [(None, RB, None)]
    cur = RB
    for j in range(1, 8):
        d = R0 if j % 2 else R1
        rows.append((d, cur, P)); cur = d
    Z2 = Y0
    rows += [(Y0, RB, E512), (R1, Y0, E4), (R0, Y0, E8), (Z0, Y0, E512), (R1, Z0, E8), (Z2, Z0, E512), (R0, Z2, E8)]
    cols = [(None, X0, None)]
    cur = X0
    for j in range(1, 16):
        d = X1 if j % 2 else X0
        cols.append((d, cur, E8)); cur = d
    LC, LR = [], []
    for j, (d, s, m) in enumerate(cols):
        if d is not None: LC += cmul(d, s, m, plain_tail)
        x = d if d is not None else s
        LC.append("v_cvt_pk_bf16_f32 v%d, v%d, v%d" % (KP + j, x, x + 1))
    for j, (d, s, m) in enumerate(rows):
        if d is not None: LR += cmul(d, s, m, plain_tail)
        x = d if d is not None else s
        LR.append("v_cvt_pk_bf16_f32 v%d, v%d, -v%d" % (KP + rowpos(j), x, x + 1))
    return L, il(LC, LR)
def kgen_writes():
    return ["ds_write_addtid_b32 v%d offset:%d" % (KP + j, L_TAB + j * TP) for j in range(31)]

def later_addrs(T0, T1, T2):
    a("s_lshr_b32 s10, s3, 1")
    a("s_mul_i32 s10, s10, %d", TPIECE)
    a("s_and_b32 s11, s3, 1")
    a("s_lshl_b32 s11, s11, 8")
    a("s_add_u32 s%d, s10, s11", S_TM0)
    a("s_add_u32 s10, s10, %d", L_TAB)
    a("v_bfe_u32 v%d, v1, 4, 1", T1)
    a("v_lshlrev_b32 v%d, 8, v%d", T1, T1)
    a("v_lshrrev_b32 v%d, 5, v1", T2)
    a("v_lshl_add_u32 v%d, v%d, 7, v%d", T1, T2, T1)
    a("v_and_b32 v%d, 15, v1", T0)
    a("v_mul_u32_u24 v%d, %d, v%d", T2, TP, T0)
    a("v_add3_u32 v%d, v%d, v%d, s10", KBa, T2, T1)
    def lut(v): return sum(x << (4 * i) for i, x in enumerate(v))
    m0 = [0, 1, 2, 3] + [0, 0, 1, 2] + [2, 2, 3, 4] + [4, 5, 6, 7]; h0 = 0x0ff0
    m1 = [8, 9, 10, 10] + [8, 9, 10, 10] + [11, 12, 13, 14] + [11, 12, 13, 14]; h1 = 0xf0f0
    p0 = [rowpos(m) - 16 for m in m0]; p1 = [rowpos(m) - 16 for m in m1]
    a("s_bitcmp1_b32 s3, 0")
    a("s_mov_b32 s11, 0x%x", lut(p0[:8]))
    a("s_cmov_b32 s11, 0x%x", lut(p1[:8]))
    a("s_mov_b32 s12, 0x%x", lut(p0[8:]))
    a("s_cmov_b32 s12, 0x%x", lut(p1[8:]))
    a("s_mov_b32 s13, 0x%x", h0)
    a("s_cmov_b32 s13, 0x%x", h1)
    a("v_cmp_lt_u32 vcc, 7, v%d", T0)
    a("v_mov_b32 v%d, s11", KA)
    a("v_mov_b32 v%d, s12", T2)
    a("v_cndmask_b32 v%d, v%d, v%d, vcc", KA, KA, T2)
    a("v_and_b32 v%d, 7, v1", T2)
    a("v_lshlrev_b32 v%d, 2, v%d", T2, T2)
    a("v_bfe_u32 v%d, v%d, v%d, 4", KA, KA, T2)
    a("v_bfe_u32 v%d, s13, v%d, 1", T2, T0)
    a("v_mad_u32_u24 v%d, v%d, 31, v%d", KA, T2, KA)
    a("v_mul_u32_u24 v%d, %d, v%d", KA, TP, KA)
    a("s_lshr_b32 s10, s3, 2")
    a("s_mul_i32 s11, s10, %d", 2 * TPIECE)
    a("s_add_u32 s11, s11, %d", L_TAB + 16 * TP)
    a("v_add3_u32 v%d, v%d, v%d, s11", KA, KA, T1)
    a("s_mul_i32 s10, s10, %d", KCH)
    a("s_and_b32 s11, s3, 2")
    a("s_lshl_b32 s11, s11, 7")
    a("s_add_u32 s10, s10, s11")
    a("s_add_u32 s10, s10, %d", L_K + 64)
    a("s_bitcmp1_b32 s3, 0")
    a("s_mov_b32 s11, 0x%x", 0 | (64 << 8) | (65 << 16) | (1 << 24))
    a("s_cmov_b32 s11, 0x%x", 0 | (64 << 8) | (128 << 16) | (192 << 24))
    a("s_cselect_b32 s12, 1024, 0")
    a("s_add_u32 s10, s10, s12")
    a("v_lshrrev_b32 v%d, 4, v1", T1)
    a("v_lshlrev_b32 v%d, 3, v%d", T1, T1)
    a("v_bfe_u32 v%d, s11, v%d, 8", T1, T1)
    a("v_lshlrev_b32 v%d, 4, v%d", T0, T0)
    a("v_lshl_add_u32 v%d, v%d, 3, v%d", T0, T1, T0)
    a("v_add_u32 v%d, s10, v%d", KW, T0)
def later_addrs2(T0, T1, T2):
    a("s_bfe_u32 s10, s3, 0x10001")
    a("v_lshrrev_b32 v%d, 5, v1", T0)
    a("v_lshlrev_b32 v%d, 6, v%d", PVA, T0)
    a("v_and_b32 v%d, 31, v1", T1)
    a("v_lshlrev_b32 v%d, 4, v%d", PVB, T1)
    a("v_sub_u32 v%d, v%d, v%d", PVB, PVB, PVA)
    a("v_and_b32 v%d, 1, v1", T2)
    a("v_lshl_add_u32 v%d, v%d, 5, v%d", PVA, T2, PVA)
    a("v_lshrrev_b32 v%d, 2, v%d", T1, T1)
    a("v_lshl_add_u32 v%d, v%d, 1, v%d", T1, T1, T0)
    a("v_lshlrev_b32 v%d, 5, v%d", PVY, T1)
    a("v_lshl_add_u32 v%d, v%d, 4, v%d", PVY, T2, PVY)
    a("s_mul_i32 s11, s10, %d", CYCH)
    a("s_add_u32 s11, s11, %d", L_CY)
    a("v_lshl_add_u32 v%d, v%d, 4, s11", PVC, T1)
    a("v_bfe_u32 v%d, v1, 4, 1", T2)
    a("v_lshl_add_u32 v%d, v%d, 4, v%d", PVA, T2, PVA)
    a("v_bfe_u32 v%d, v1, 1, 1", T2)
    a("v_lshl_add_u32 v%d, v%d, 3, v%d", PVA, T2, PVA)
    a("v_bfe_u32 v%d, v1, 2, 2", T2)
    a("v_lshlrev_b32 v%d, 3, v%d", T2, T2)
    a("v_sub_u32 v%d, v%d, v%d", PVA, PVA, T2)
    a("s_mul_i32 s11, s10, %d", KCH)
    a("s_add_u32 s11, s11, %d", L_K + 32)
    a("v_add_u32 v%d, s11, v%d", PVA, PVA)
    a("s_mul_i32 s11, s10, %d", UCH)
    a("s_add_u32 s11, s11, %d", L_U + 512 - 384)
    a("v_add_u32 v%d, s11, v%d", PVB, PVB)
    a("s_lshl_b32 s11, s2, 1")
    a("s_add_u32 s11, s11, s10")
    a("s_lshl_b32 s11, s11, 12")
    a("s_add_u32 s%d, s11, %d", S_YB, WS_Y)
def later_addrs3(T0, T1, T2):
    if opt("b84", 1):
        a("s_and_b32 s%d, s4, 6", S_TB)
        a("s_lshl_b32 s%d, s%d, 2", S_TB, S_TB)
        a("s_and_b32 s10, s5, 7")
        a("s_add_u32 s%d, s%d, s10", S_TB, S_TB)
        a("s_and_b32 s%d, s4, 1", S_DB)
        a("s_lshl_b32 s%d, s%d, 2", S_DB, S_DB)
        a("s_lshr_b32 s10, s5, 3")
        a("s_add_u32 s%d, s%d, s10", S_DB, S_DB)
    else:
        a("s_lshl_b32 s%d, s4, 2", S_TB)
        a("s_and_b32 s10, s5, 3")
        a("s_add_u32 s%d, s%d, s10", S_TB, S_TB)
        a("s_lshr_b32 s%d, s5, 2", S_DB)
    a("s_lshr_b32 s%d, s3, 2", S_KH)
    a("s_and_b32 s%d, s3, 3", S_TQ)
    a("s_lshl_b32 s10, s%d, 1", S_TB)
    a("s_and_b32 s13, s3, 1")
    a("s_add_u32 s10, s10, s13")
    a("s_mul_i32 s11, s10, 112")
    a("s_lshr_b32 s12, s3, 1")
    a("s_mul_i32 s%d, s12, %d", S_W0S, 448 * 1024)
    a("s_lshl_b32 s13, s13, 15")
    a("s_add_u32 s%d, s%d, s13", S_W0S, S_W0S)
    a("s_mul_i32 s13, s12, 28")
    a("s_add_u32 s11, s11, s13")
    a("s_lshl_b32 s%d, s11, 10", S_HB)
    a("s_lshl_b32 s%d, s10, 7", S_GOFF)
    a("s_add_u32 s%d, s%d, %d", S_GOFF, S_GOFF, WS_G)
    a("s_lshl_b32 s10, s10, 15")
    a("s_lshl_b32 s11, s%d, 7", S_DB)
    a("s_lshl_b32 s12, s12, 5")
    a("s_add_u32 s%d, s11, s12", S_DOFF)
    a("s_add_u32 s%d, s10, s%d", S_OB, S_DOFF)
    a("s_mul_i32 s%d, s%d, %d", S_WSO, S_TQ, 448 * 1024)
    a("s_lshl_b32 s%d, s%d, 13", S_WLD, S_TQ)
    seq = [i % 7 for i in range(16)]
    val = sum(x << (4 * i) for i, x in enumerate(seq))
    a("s_mov_b32 s44, 0x%x", val & 0xffffffff)
    a("s_mov_b32 s45, 0x%x", val >> 32)
    if opt("rot", 4) == 1:
        a("s_lshl_b32 s10, s%d, 2", S_DB)
        a("s_lshr_b64 s[44:45], s[44:45], s10")
    if opt("rot", 4) == 4:
        a("s_and_b32 s10, s5, 7")
        a("s_lshl_b32 s10, s10, 2")
        a("s_lshr_b64 s[44:45], s[44:45], s10")
    if opt("rot", 4) == 5:
        a("s_and_b32 s10, s5, 7")
        a("s_lshr_b32 s13, s5, 3")
        a("s_lshl_b32 s13, s13, 1")
        a("s_add_u32 s10, s10, s13")
        a("s_sub_u32 s13, s10, 7")
        a("s_min_u32 s10, s10, s13")
        a("s_lshl_b32 s10, s10, 2")
        a("s_lshr_b64 s[44:45], s[44:45], s10")
    if opt("rot", 4) == 3:
        a("s_and_b32 s10, s5, 1")
        a("s_lshl_b32 s10, s10, 4")
        a("s_lshr_b64 s[44:45], s[44:45], s10")
    if opt("rot", 4) == 2:
        a("s_and_b32 s10, s5, 3")
        a("s_lshl_b32 s10, s10, 3")
        a("s_lshr_b64 s[44:45], s[44:45], s10")
    for rd in range(7):
        a("s_bfe_u32 s10, s44, 0x%x", (3 << 16) | (4 * rd))
        a("s_lshl_b32 s%d, s10, 12", S_RT + rd)
    a("v_lshlrev_b32 v%d, 4, v1", VH)
    a("v_lshrrev_b32 v%d, 3, v1", T0)
    a("v_lshlrev_b32 v%d, 10, v%d", T0, T0)
    a("v_bfe_u32 v%d, v1, 4, 1", T1)
    a("v_lshlrev_b32 v%d, 2, v%d", T1, T1)
    a("v_and_b32 v%d, 7, v1", T2)
    a("v_xor_b32 v%d, v%d, v%d", T2, T2, T1)
    a("v_lshl_add_u32 v%d, v%d, 4, v%d", T0, T2, T0)
    a("v_add_u32 v%d, s11, v%d", VWD, T0)
    a("v_lshrrev_b32 v%d, 5, v1", T0)
    a("v_bfe_u32 v%d, v1, 2, 2", T1)
    a("v_lshl_add_u32 v%d, v%d, 2, v%d", T0, T0, T1)
    a("v_lshlrev_b32 v%d, 7, v%d", T0, T0)
    a("v_bfe_u32 v%d, v1, 3, 1", T1)
    a("v_lshl_add_u32 v%d, v%d, 6, v%d", T0, T1, T0)
    a("v_bfe_u32 v%d, v1, 4, 1", T1)
    a("v_lshl_add_u32 v%d, v%d, 5, v%d", T0, T1, T0)
    a("v_and_b32 v%d, 1, v1", T1)
    a("v_lshl_add_u32 v%d, v%d, 4, v%d", T0, T1, T0)
    a("v_bfe_u32 v%d, v1, 1, 1", T1)
    a("v_lshl_add_u32 v%d, v%d, 3, v%d", T0, T1, T0)
    a("v_xor_b32 v%d, s12, v%d", T0, T0)
    a("s_lshl_b32 s12, s12, 8")
    a("v_add_u32 v%d, s12, v%d", VR0, T0)
    a("s_lshl_b32 s10, s3, 2")
    a("s_add_u32 s10, s10, %d", L_SY)
    a("v_mov_b32 v%d, s10", VSY)

def kreads():
    L = []
    for ks in range(8):
        L.append(("ds_read_b128 %s, v%d offset:%d" % (vr(KF + 8 * ks, 4), KA, ks * 16), ("k", ks)))
        L.append(("ds_read_b128 %s, v%d offset:%d" % (vr(KF + 8 * ks + 4, 4), KBa, ks * 16), ("k", ks)))
    return L
def run_kmfma(lg, fill, per):
    for ks in range(8):
        lg.need([("k", ks)])
        d = vr(KD, 4)
        a("v_mfma_f32_16x16x32_bf16 %s, %s, %s, %s", d, vr(KF + 8 * ks, 4), vr(KF + 8 * ks + 4, 4), d if ks else "0")
        for _ in range(per):
            if fill: lg.run(fill.pop(0))
    for f in fill: lg.run(f)
def kmfma_finish():
    lb = a.label("Lkm1"); le = a.label("Lkme")
    T = KF
    a("s_bitcmp1_b32 s3, 0")
    a("s_cbranch_scc1 %s", lb)
    a("v_cvt_pk_bf16_f32 v%d, v%d, v%d", T, KD, KD + 1)
    a("v_cvt_pk_bf16_f32 v%d, v%d, v%d", T + 1, KD + 2, KD + 3)
    a("ds_write_b64 v%d, %s", KW, vr(T, 2))
    a("s_branch %s", le)
    a(lb + ":")
    a("s_nop 7")
    a("s_mov_b32 s14, 0xaaaaaaaa")
    a("s_mov_b32 s15, 0xaaaaaaaa")
    a("v_cndmask_b32 v%d, v%d, v%d, s[14:15]", T + 12, KD, KD + 1)
    a("v_cndmask_b32 v%d, v%d, v%d, s[14:15]", T + 13, KD + 2, KD + 3)
    a("v_cvt_pk_bf16_f32 v%d, v%d, v%d", T, KD, KD)
    a("v_cvt_pk_bf16_f32 v%d, v%d, v%d", T + 1, KD, KD)
    a("v_cvt_pk_bf16_f32 v%d, v%d, v%d", T + 2, T + 12, KD + 1)
    a("v_cvt_pk_bf16_f32 v%d, v%d, v%d", T + 3, KD + 1, KD + 1)
    a("v_cvt_pk_bf16_f32 v%d, v%d, v%d", T + 4, KD + 2, KD + 2)
    a("v_cvt_pk_bf16_f32 v%d, v%d, v%d", T + 5, KD + 2, KD + 2)
    a("v_cvt_pk_bf16_f32 v%d, v%d, v%d", T + 6, T + 13, KD + 3)
    a("v_cvt_pk_bf16_f32 v%d, v%d, v%d", T + 7, KD + 3, KD + 3)
    a("s_mov_b64 exec, 0xffffffff")
    a("v_cvt_pk_bf16_f32 v%d, v%d, v%d", T + 1, KD, KD + 1)
    a("v_mov_b32 v%d, v%d", T + 2, T + 3)
    a("v_mov_b32 v%d, v%d", T + 3, T + 4)
    a("s_not_b64 exec, exec")
    a("ds_write_b128 v%d, %s offset:1024", KW, vr(T + 4, 4))
    a("s_mov_b64 exec, -1")
    a("ds_write_b128 v%d, %s", KW, vr(T, 4))
    a(le + ":")

def zero_pads_k():
    T = KF + 16
    a("v_mov_b32 v%d, 0", T)
    a("v_bfe_u32 v%d, v1, 4, 1", T + 1)
    a("v_and_b32 v%d, 15, v1", T + 2)
    a("v_mul_u32_u24 v%d, %d, v%d", T + 3, KCH, T + 1)
    a("v_lshl_add_u32 v%d, v%d, 2, v%d", T + 3, T + 2, T + 3)
    a("v_mul_u32_u24 v%d, %d, v%d", T + 4, CYCH, T + 1)
    a("v_lshl_add_u32 v%d, v%d, 2, v%d", T + 4, T + 2, T + 4)
    a("v_lshlrev_b32 v%d, 2, v1", T + 5)
    a("s_mov_b64 exec, 0xffffffff")
    a("ds_write_b32 v%d, v%d offset:%d", T + 3, T, L_K)
    a("ds_write_b32 v%d, v%d offset:%d", T + 4, T, L_CY)
    a("ds_write_b32 v%d, v%d offset:%d", T + 5, T, L_SY)
    a("s_mov_b64 exec, -1")
def zero_pads_u():
    T = KD
    for i in range(4): a("v_mov_b32 v%d, 0", T + i)
    a("v_and_b32 v%d, 31, v1", 233)
    a("v_lshlrev_b32 v%d, 4, v%d", 233, 233)
    a("v_lshrrev_b32 v%d, 5, v1", 234)
    a("v_mul_u32_u24 v%d, %d, v%d", 234, UCH, 234)
    a("v_add_u32 v%d, v%d, v%d", 233, 233, 234)
    a("ds_write_b128 v%d, %s offset:%d", 233, vr(T, 4), L_U)
def sig(vaddr, off):
    a("s_mov_b64 exec, 1")
    a("ds_write_b32 v%d, v6 offset:%d", vaddr, off)
    a("s_mov_b64 exec, -1")
VUL2 = 156
def u_load():
    a("v_lshlrev_b32 v%d, 5, v1", VUL + 4)
    a("s_lshl_b32 s10, s2, 13")
    a("s_lshl_b32 s11, s%d, 11", S_TQ)
    a("s_add_u32 s10, s10, s11")
    a("s_add_u32 s10, s10, %d", WS_UT)
    a("buffer_load_dwordx4 %s, v%d, %s, s10 offen sc1", vr(VUL, 4), VUL + 4, sr(SWS, 4))
    a("buffer_load_dwordx4 %s, v%d, %s, s10 offen offset:16 sc1", vr(VUL2, 4), VUL + 4, sr(SWS, 4))
def u_write():
    a("s_lshl_b32 s11, s%d, 10", S_TQ)
    a("v_add_u32 v%d, s11, v%d", VUL + 4, VH)
    a("ds_write_b128 v%d, %s offset:%d", VUL + 4, vr(VUL, 4), L_U + 512)
    a("ds_write_b128 v%d, %s offset:%d", VUL + 4, vr(VUL2, 4), L_U + UCH + 512)
def onwave(w, fn):
    lb = a.label("Low")
    a("s_cmp_lg_u32 s3, %d", w)
    a("s_cbranch_scc1 %s", lb)
    fn()
    a(lb + ":")
def role(lo, hi):
    l1 = a.label("Lr1"); l2 = a.label("Lr2")
    a("s_cmp_ge_u32 s3, 4")
    a("s_cbranch_scc1 %s", l1)
    if lo is None:
        a.lines[-1] = a.lines[-1].replace("scc1", "scc0")
        hi()
        a(l1 + ":")
        return
    if lo: lo()
    if hi:
        a("s_branch %s", l2)
        a(l1 + ":")
        hi()
        a(l2 + ":")
    else:
        a(l1 + ":")

def nonce_issue():
    a("global_load_dwordx2 %s, v%d, %s sc1", vr(VN, 2), VZ, sr(P_DBG, 2))
slow = []
def nonce_check():
    ok = a.label("Lnok"); lp = a.label("Lnlp")
    a(ok + "r:")
    a("v_readfirstlane_b32 s10, v%d", VN + 1)
    a("v_readfirstlane_b32 s%d, v%d", S_NONCE, VN)
    a("s_cmp_lg_u32 s10, 1")
    a("s_cbranch_scc1 %s", lp)
    a(ok + ":")
    def sp():
        a(lp + ":")
        a("s_add_u32 s%d, s%d, 1", S_SPIN, S_SPIN)
        a("s_cmp_ge_u32 s%d, %d", S_SPIN, SPINMAX)
        a("s_cbranch_scc1 %s", ok)
        a("s_sleep 2")
        a("global_load_dwordx2 %s, v%d, %s sc1", vr(VN, 2), VZ, sr(P_DBG, 2))
        a("s_waitcnt vmcnt(0)")
        a("s_branch %sr", ok)
    slow.append(sp)
def poll_issue(n):
    a("v_min_u32 v%d, %d, v1", VN + 2, n - 1)
    a("v_lshlrev_b32 v%d, 2, v%d", VN + 2, VN + 2)
    a("buffer_load_dword v%d, v%d, %s, s%d offen sc1", VN - 1, VN + 2, sr(SWS, 4), S_PB)
def poll_check(sleep=2):
    ok = a.label("Lpok"); lp = a.label("Lplp")
    a(ok + "r:")
    a("v_cmp_ne_u32 vcc, s%d, v%d", S_NONCE, VN - 1)
    a("s_cmp_lg_u64 vcc, 0")
    a("s_cbranch_scc1 %s", lp)
    a(ok + ":")
    def sp():
        a(lp + ":")
        a("s_add_u32 s%d, s%d, 1", S_SPIN, S_SPIN)
        a("s_cmp_ge_u32 s%d, %d", S_SPIN, SPINMAX)
        a("s_cbranch_scc1 %s", ok)
        if sleep: a("s_sleep %d", sleep)
        a("buffer_load_dword v%d, v%d, %s, s%d offen sc1", VN - 1, VN + 2, sr(SWS, 4), S_PB)
        a("s_waitcnt vmcnt(0)")
        a("s_branch %sr", ok)
    slow.append(sp)
def flag_store(sbase):
    if opt("sflag", 2) & 1:
        a("s_mov_b32 s11, s%d", S_NONCE)
        a("s_buffer_atomic_swap s11, %s, %s", sr(SWS, 4), sbase)
        return
    a("v_mov_b32 v%d, 0", VN)
    a("v_mov_b32 v%d, s%d", VN + 1, S_NONCE)
    a("s_mov_b64 exec, 1")
    a("buffer_store_dword v%d, v%d, %s, %s offen sc1", VN + 1, VN, sr(SWS, 4), sbase)
    a("s_mov_b64 exec, -1")
def lds_wait(vaddr, off, vtmp, sleep=1):
    lp = a.label("Llw"); ok = a.label("Llok")
    a(lp + ":")
    a("ds_read_b32 v%d, v%d offset:%d", vtmp, vaddr, off)
    a("s_add_u32 s%d, s%d, 1", S_SPIN, S_SPIN)
    a("s_waitcnt lgkmcnt(0)")
    a("v_cmp_eq_u32 vcc, 0, v%d", vtmp)
    a("s_cmp_eq_u64 vcc, 0")
    a("s_cbranch_scc1 %s", ok)
    if sleep: a("s_sleep %d", sleep)
    a("s_cmp_lt_u32 s%d, %d", S_SPIN, SPINMAX * 16)
    a("s_cbranch_scc1 %s", lp)
    a(ok + ":")

a("s_cmp_ge_u32 s2, 256")
a("s_cbranch_scc1 L_end")
if STAMP:
    a("s_memrealtime s[96:97]")
    a("s_memtime s[98:99]")
a("s_load_dwordx16 s[16:31], s[0:1], 0")
a("s_load_dwordx16 s[32:47], s[0:1], 64")
a("s_load_dwordx2 s[48:49], s[0:1], 128")
a("v_lshrrev_b32 v2, 6, v0")
a("s_lshr_b32 s5, s2, 3")
if opt("cpf", 1):
    a("s_getpc_b64 s[10:11]")
    a("L_pc:")
    a("s_lshl_b32 s12, s5, 10")
    a("v_lshl_add_u32 v3, v2, 7, s12")
    a("v_and_b32 v4, 1, v0")
    a("v_lshl_add_u32 v3, v4, 6, v3")
    a("v_min_u32 v3, L_end-L_pc, v3")
    a("global_load_dword v19, v3, s[10:11]")
a("v_and_b32 v1, 63, v0")
a("v_readfirstlane_b32 s3, v2")
a("s_and_b32 s4, s2, 7")
kgen_setup()
PRE_WAIT = opt("prewait", 0)
if not PRE_WAIT:
    a("s_waitcnt lgkmcnt(0)")
    kgen_loads()
a("s_mov_b32 s%d, 0", S_SPIN)
a("v_mov_b32 v%d, 0", VZ)
a("v_mov_b32 v%d, 0", VN + 2)
if STAMP: a("v_mov_b32 v255, 0")
a("s_lshr_b32 s6, s4, 1")
a("s_lshl_b32 s6, s6, 2")
a("s_and_b32 s7, s5, 3")
a("s_add_u32 s6, s6, s7")
a("s_and_b32 s7, s4, 1")
a("s_mul_i32 s7, s7, 7")
a("s_lshr_b32 s8, s5, 2")
a("s_add_u32 s7, s7, s8")
a("s_sub_u32 s7, s7, 1")
a("s_and_b32 s8, s3, 1")
a("s_lshr_b32 s9, s3, 1")
VX0, VX1, VW0, VW1 = 4, 5, 6, 7
VXR = 8
VWA, VWB = 12, 13
T0, T1, T2, T3 = 14, 15, 16, 17
a("s_lshl_b32 s10, s6, 7")
a("s_lshl_b32 s11, s3, 4")
a("s_add_u32 s10, s10, s11")
a("s_lshl_b32 s10, s10, 10")
a("v_lshrrev_b32 v%d, 3, v1", T0)
a("v_lshlrev_b32 v%d, 10, v%d", T0, T0)
a("v_lshrrev_b32 v%d, 4, v1", T1)
a("v_and_b32 v%d, 7, v1", T2)
a("v_xor_b32 v%d, v%d, v%d", T2, T2, T1)
a("v_lshl_add_u32 v%d, v%d, 4, v%d", T0, T2, T0)
a("v_add_u32 v%d, s10, v%d", VX0, T0)
a("v_xor_b32 v%d, 64, v%d", VX1, VX0)
a("v_add_u32 v%d, 0x2000, v%d", VX1, VX1)
a("s_and_b32 s12, s3, 3")
a("s_mul_i32 s10, s12, %d", 4 * 3584)
a("s_lshl_b32 s11, s7, 8")
a("s_add_u32 s10, s10, s11")
a("v_mul_u32_u24 v%d, 3584, v%d", T0, T1)
if G16:
    a("s_and_b32 s11, s3, 2")
    a("s_lshl_b32 s11, s11, 2")
    a("v_lshl_or_b32 v%d, v%d, 1, s11", T2, T1)
else:
    a("v_lshlrev_b32 v%d, 2, v%d", T2, T1)
a("v_and_b32 v%d, 15, v1", T3)
a("v_xor_b32 v%d, v%d, v%d", T2, T2, T3)
a("v_lshl_add_u32 v%d, v%d, 4, v%d", T0, T2, T0)
a("v_add_u32 v%d, s10, v%d", VW0, T0)
S_RO, S_LO = 60, 80
S_LO = 20
for j in range(4):
    a("s_add_u32 s10, s5, %d", j if opt("share", 1) else 0) if opt("share", 1) else a("s_mov_b32 s10, %d", j)
    a("s_and_b32 s10, s10, 3")
    a("s_mul_i32 s%d, s10, %d", S_RO + j, 16 * 3584)
a("s_lshl_b32 s%d, s3, 11", S_W2K)
CC = opt("cc", 8)
S_KO = 99 if not STAMP else 93
if CC < 8:
    NR = 8 - CC
    a("s_and_b32 s10, s5, 3")
    a("s_mul_i32 s10, s10, %d", opt("rm", 2))
    a("s_lshr_b32 s11, s5, 2")
    a("s_add_u32 s10, s10, s11")
    a("s_mul_i32 s11, s10, %d", (65536 + NR - 1) // NR)
    a("s_lshr_b32 s11, s11, 16")
    a("s_mul_i32 s11, s11, %d", NR)
    a("s_sub_u32 s10, s10, s11")
    seq = [CC + (i % NR) for i in range(16)]
    val = sum(x << (4 * i) for i, x in enumerate(seq))
    a("s_mov_b32 s12, 0x%x", val & 0xffffffff)
    a("s_mov_b32 s13, 0x%x", val >> 32)
    a("s_lshl_b32 s10, s10, 2")
    a("s_lshr_b64 s[12:13], s[12:13], s10")
    a("s_lshl_b32 s12, s12, %d", 4 * CC) if CC else None
    a("s_or_b32 s%d, s12, 0x%x", S_KO, sum(i << (4 * i) for i in range(CC)))
else:
    a("s_mov_b32 s%d, 0x76543210", S_KO)
a("s_and_b32 s10, s4, %d", opt("krot", 6))
a("s_mul_i32 s10, s10, 0x11111111")
a("s_add_u32 s%d, s%d, s10", S_KO, S_KO)
for r, n in ((SX, 2048 * 1024), (SG, 512 * 3584), (SWS, WS_BYTES), (SW, 1792 * 1024), (SO, 2048 * 1024)):
    a("s_mov_b32 s%d, 0x%x", r + 2, n)
    a("s_mov_b32 s%d, 0x20000", r + 3)
a("s_cmp_lt_u32 s5, 4")
a("s_cselect_b32 s%d, 1, 0", S_ISAUX)
if PRE_WAIT:
    a("s_waitcnt lgkmcnt(0)")
    kgen_loads()
def srd_base(r, p):
    a("s_mov_b32 s%d, s%d", r, p)
    a("s_and_b32 s%d, s%d, 0xffff", r + 1, p + 1)
srd_base(SX, P_U)
a("s_mov_b32 s%d, s%d", S_KR, S_KO)
a("s_cmp_lg_u32 s%d, 0", S_ISAUX)
a("s_cbranch_scc1 L_aux")

vm = []
def vmwait(tags):
    idx = [i for i, t in enumerate(vm) if t in tags]
    return len(vm) - 1 - max(idx)
def dma1(stage, j, m0r=None):
    slot = stage % 3
    if j == 0 or (j == 3 and stage < 2):
        a("s_bfe_u32 s%d, s%d, 0x%x", S_T, S_KR, (3 << 16) | (4 * stage))
        a("s_mul_i32 s%d, s%d, %d", S_T2, S_T, 64 * 3584)
        a("s_lshl_b32 s%d, s%d, 7", S_T, S_T)
    if j in (1, 2):
        a("s_add_u32 m0, s%d, %d", S_W2K, XB[slot] * BLK + (j - 1) * 1024)
        a("buffer_load_dwordx4 v%d, %s, s%d offen lds", VX0 + j - 1, sr(SX, 4), S_T)
    else:
        p = 0 if j == 0 else j - 2
        a("s_add_u32 m0, s%d, %d", S_LO + p, GB[slot] * BLK)
        a("s_add_u32 s%d, s%d, s%d", S_T3, S_T2, S_RO + p)
        a("buffer_load_dwordx4 v%d, %s, s%d offen lds", VW0, sr(SG, 4), S_T3)
    if m0r is not None: a("s_mov_b32 m0, s%d", m0r)
    vm.append(("G1", stage))
S_T3 = 24
vm += [("KP", 0)] * 7
a("s_cmp_ge_u32 s3, 4")
a("s_cselect_b32 s%d, s%d, s%d", SG, P_WU, P_WG)
a("s_cselect_b32 s%d, s%d, s%d", SG + 1, P_WU + 1, P_WG + 1)
a("s_and_b32 s%d, s%d, 0xffff", SG + 1, SG + 1)
a("s_lshr_b32 s10, s3, 2")
a("s_lshl_b32 s10, s10, 14")
a("s_and_b32 s11, s3, 3")
a("s_lshl_b32 s11, s11, 10")
a("s_add_u32 s10, s10, s11")
for j in range(4):
    a("s_add_u32 s11, s5, %d", j) if opt("share", 1) else a("s_mov_b32 s11, %d", j)
    a("s_and_b32 s11, s11, 3")
    a("s_lshl_b32 s11, s11, 12")
    a("s_add_u32 s%d, s10, s11", S_LO + j)
    if j == 0: dma1(0, 0); dma1(0, 1); dma1(0, 2)
stamp(11)
def common_srds():
    srd_base(SWS, P_WS); srd_base(SW, P_WD); srd_base(SO, P_OUT)
later_addrs(T0, T1, T2)
for j in range(3): dma1(1, j)
def g1_read_addrs():
    t0, t1, t2 = 18, 19, 20
    a("v_and_b32 v%d, 15, v1", t0)
    a("v_lshrrev_b32 v%d, 4, v1", t1)
    a("v_bfe_u32 v%d, v1, 1, 3", t2)
    a("v_xor_b32 v%d, v%d, v%d", t2, t2, t1)
    a("v_lshlrev_b32 v%d, 7, v%d", t0, t0)
    a("v_lshl_add_u32 v%d, v%d, 4, v%d", t0, t2, t0)
    a("s_lshl_b32 s10, s8, 13")
    a("v_add_u32 v%d, s10, v%d", VXR, t0)
    a("v_xor_b32 v%d, 64, v%d", VXR + 1, VXR)
    a("v_bfe_u32 v%d, v1, 2, 2", t0)
    a("v_lshl_add_u32 v%d, v%d, 3, v%d", t0, t1, t0)
    a("v_lshlrev_b32 v%d, 8, v%d", t0, t0)
    a("v_bfe_u32 v%d, v1, 2, 3", t2)
    a("s_and_b32 s10, s3, 2")
    a("s_lshl_b32 s10, s10, 1")
    a("v_xor_b32 v%d, s10, v%d", t2, t2)
    a("v_lshl_add_u32 v%d, v%d, 5, v%d", t0, t2, t0)
    a("v_and_b32 v%d, 3, v1", t2)
    a("v_lshl_add_u32 v%d, v%d, 3, v%d", t0, t2, t0)
    a("v_add_u32 v10, %d, v%d", 4 * BLK, t0)
    for m in range(1, 4): a("v_xor_b32 v%d, %d, v10", 10 + m, m << 5)
    for m in range(4): a("v_add_u32 v%d, %d, v%d", 14 + m, 4 * BLK, 10 + m)
def late_setup(comp, T0, T1, T2):
    common_srds()
    if comp:
        a("s_lshl_b32 s10, s6, 2")
        a("s_lshl_b32 s11, s8, 1")
        a("s_add_u32 s10, s10, s11")
        a("s_mul_i32 s10, s10, 112")
        a("s_lshl_b32 s11, s7, 3")
        a("s_add_u32 s10, s10, s11")
        a("s_lshl_b32 s11, s9, 2")
        a("s_add_u32 s10, s10, s11")
        a("s_lshl_b32 s%d, s10, 10", S_HST)
        a("s_mul_i32 s10, s6, %d", FSTR * (16 if PCF else 1))
        a("s_lshl_b32 s11, s7, 2")
        a("s_add_u32 s10, s10, s11")
        a("s_add_u32 s%d, s10, %d", S_FH, F_H2)
    later_addrs3(T0, T1, T2)
FX = 20
FA = 52
NAR = 10
ACC = 92
AORD = [(gu, m) for m in range(4) for gu in range(2)]
def xreads(step):
    st, ks = step // 2, step % 2
    return [("ds_read_b128 %s, v%d offset:%d" % (vr(FX + (step % 2) * 16 + 4 * tt, 4), VXR + ks, XB[st % 3] * BLK + tt * 2048), (step, "x", tt)) for tt in range(4)]
def areads(n):
    step, i = n // 8, n % 8
    st, ks = step // 2, step % 2
    gu, m = AORD[i]
    blk = GB[st % 3] + gu
    reg, rel = (10, blk - 4) if blk < 8 else (14, blk - 8)
    return [("ds_read_b64_tr_b16 %s, v%d offset:%d" % (vr(FA + 4 * (n % NAR) + 2 * hf, 2), reg + m, rel * BLK + ks * 8192 + hf * 1024), ("a", n)) for hf in range(2)]
def kgen_all(dmas):
    khead, ktail = kgen_valu(False)
    for i in khead: a(i)
    if opt("diag1", 0): stamp(7, True)
    a("s_mov_b32 m0, s%d", S_TM0)
    wr = {w_.split()[1]: w_ for w_ in kgen_writes()}
    q = []
    n = len(ktail); k = 0
    for n_, i in enumerate(ktail):
        a(i)
        if q and n_ % 1 == 0 and len(q) > 1: a(q.pop(0))
        if i.startswith("v_cvt"): q.append(wr[i.split()[1].rstrip(",")])
        if dmas and n_ >= opt("d1start", 40) and (n_ - opt("d1start", 40)) % opt("d1step", 20) == 0: dmas.pop(0)()
    for w_ in q: a(w_)
    for d in dmas: d()
def touch(stage):
    a("s_bfe_u32 s10, s%d, 0x%x", S_KR, (3 << 16) | (4 * stage))
    a("s_mul_i32 s10, s10, %d", 64 * 3584)
    a("s_add_u32 s10, s10, s%d", S_RO)
    a("buffer_load_dwordx4 v[52:55], v%d, %s, s10 offen", VW0, sr(SG, 4))
    vm.append(("T", 0))
if opt("stub", 1):
    for k_ in (0, 2):
        a("s_cmp_eq_u32 s3, %d", k_)
        a("s_cbranch_scc1 L_st%d", k_)
a("L_stret:")
a("s_waitcnt vmcnt(%d)", vmwait([("KP", 0)]))
stamp(0)
kgen_all([(lambda j=j: dma1(0, j, S_TM0)) for j in range(3, 6)])
stamp(14)
a("s_waitcnt lgkmcnt(0)")
a("s_barrier")
stamp(12)
lg = Lg()
for r in kreads(): lg.issue(*r)
g1_read_addrs()
run_kmfma(lg, [], 0)
for j in range(3, 6): dma1(1, j)
a("s_waitcnt vmcnt(%d)", vmwait([("G1", 0)]))
a("s_barrier")
stamp(1)
class Raw:
    def __init__(self, f): self.f = f
a("s_cmp_ge_u32 s3, 4")
a("s_cbranch_scc1 L_load")
WST = 144
WSTO = {5: 0, 4: 32, 6: 64}
W4T = opt("w4t", 0)
W2T = opt("w2t", 0)
W1T = opt("w1t", 1)
def stage_w(rd, i0=0, n=8):
    a("s_lshl_b32 s13, s%d, 4", S_RT + rd)
    a("s_add_u32 s13, s13, s%d", S_WSO)
    if i0: a("s_add_u32 s13, s13, %d", i0 * 8192)
    for i in range(i0, i0 + n):
        a("buffer_load_dwordx4 %s, v%d, %s, s13 offen", vr(WST + WSTO[rd] + 4 * i, 4), VWD, sr(SW, 4))
        if i < i0 + n - 1: a("s_add_u32 s13, s13, 8192")
EUD = 244
def eops_load(EU=56, ED=60, t1=64, t2=65, t3=66):
    a("v_and_b32 v%d, 31, v1", t1)
    a("v_lshrrev_b32 v%d, 5, v1", t2)
    a("v_lshlrev_b32 v%d, 4, v%d", t3, t2)
    a("v_lshl_add_u32 v%d, v%d, 10, v%d", t1, t1, t3)
    a("buffer_load_dwordx4 %s, v%d, %s, s%d offen", vr(EU, 4), t1, sr(SX, 4), S_OB)
    a("v_add_u32 v%d, s%d, v%d", t3, S_DOFF, t3)
    a("global_load_dwordx4 %s, v%d, %s", vr(ED, 4), t3, sr(P_DSK, 2))
def eops_calc(EU=56, ED=60, t1=64, t2=65, t3=66):
    for j in range(4):
        a("v_lshlrev_b32 v%d, 16, v%d", t1, EU + j)
        a("v_lshlrev_b32 v%d, 16, v%d", t2, ED + j)
        a("v_and_b32 v%d, 0xffff0000, v%d", EU + j, EU + j)
        a("v_and_b32 v%d, 0xffff0000, v%d", ED + j, ED + j)
        a("v_mul_f32 v%d, v%d, v%d", t1, t1, t2)
        a("v_mul_f32 v%d, v%d, v%d", t2, EU + j, ED + j)
        a("v_cvt_pk_bf16_f32 v%d, v%d, v%d", EUD + j, t1, t2)
def dma_w(rd, i):
    a("s_lshl_b32 s10, s3, 12")
    a("s_add_u32 m0, s10, %d", WB[rd] * BLK + i * 1024)
    a("s_lshl_b32 s10, s%d, 4", S_RT + rd)
    a("s_add_u32 s10, s10, s%d", S_W0S)
    a("s_add_u32 s10, s10, %d", i * 8192)
    a("buffer_load_dwordx4 v%d, %s, s10 offen lds", VWD, sr(SW, 4))
    vm.append(("W0", 0))
S_PFI = 101
if opt("cprio", 2): a("s_setprio %d", opt("cprio", 2))
lg = Lg()
for r in areads(0) + xreads(0): lg.issue(*r)
for n in range(1, 8):
    for r in areads(n): lg.issue(*r)
    if n == 3: kmfma_finish()
a("s_waitcnt lgkmcnt(8)") if False else None
kv = a.capture(late_setup, True, 18, 19, 7)
ECT = dict(EU=220, ED=224, t1=228, t2=229, t3=230)
def epilogue(p):
    for tt in range(4):
        dst = (FX if p == 0 else FX + 16) + 4 * tt
        for m in (2 * p, 2 * p + 1):
            g = ACC + (m * 4 + tt) * 4; u = ACC + ((4 + m) * 4 + tt) * 4
            if (opt("eplain", 3) >> p) & 1:
                for q_ in range(4): a("v_mul_f32 v%d, v%d, v%d", g + q_, g + q_, u + q_)
            else:
                for q_ in range(2): a("v_pk_mul_f32 %s, %s, %s", vr(g + 2 * q_, 2), vr(g + 2 * q_, 2), vr(u + 2 * q_, 2))
        for m in (2 * p, 2 * p + 1):
            g = ACC + (m * 4 + tt) * 4
            for q_ in range(2): a("v_cvt_pk_bf16_f32 v%d, v%d, v%d", dst + 2 * (m & 1) + q_, g + 2 * q_, g + 2 * q_ + 1)
        a("buffer_store_dwordx4 %s, v18, %s, s%d offen offset:%d sc1", vr(dst, 4), sr(SWS, 4), S_HST if tt < 2 else 10, 2048 * p + 256 * (tt & 1))
epi = [a.capture(epilogue, 0), a.capture(epilogue, 1)]
AHEAD = 8
for step in range(16):
    st, ks = step // 2, step % 2
    q = []
    if step < 15:
        sched = {}
        for i in range(8):
            g_ = max(0, 4 * (i - (NAR - 8)) + 3)
            sched.setdefault(g_, []).extend(areads((step + 1) * 8 + i))
        xq = xreads(step + 1)
    order = [(i, tt) for i in range(8) for tt in range(4)]
    for g, (i, tt) in enumerate(order):
        gu, m = AORD[i]
        n = step * 8 + i
        d = vr(ACC + ((gu * 4 + m) * 4 + tt) * 4, 4)
        lg.need([("a", n), (step, "x", tt)])
        a("v_mfma_f32_16x16x32_bf16 %s, %s, %s, %s", d, vr(FA + 4 * (n % NAR), 4), vr(FX + (step % 2) * 16 + 4 * tt, 4), d if step else "0")
        if step < 15: q += sched.pop(g, [])
        if step == 15 and g >= 18:
            assert not kv
            for _ in range(opt("epg", 3)):
                if epi[0]: a(epi[0].pop(0))
        if q: lg.issue(*q.pop(0))
        elif step < 15 and xq: lg.issue(*xq.pop(0))
        elif kv:
            k_ = kv.pop(0)
            k_() if callable(k_) else a(k_)
            if kv and not callable(k_) and k_.startswith("s_") and not callable(kv[0]) and opt("s2", 1): a(kv.pop(0))
    assert not q and (step == 15 or not xq)
    if ks == 0:
        a("s_waitcnt %slgkmcnt(0)", "vmcnt(0) " if st == 0 else ""); lg.drained()
        a("s_barrier")
        if opt("stg", 0): stamp([4, 5, 6, 7, 8, 10, 13, 14][st], True)
        if st == 5:
            assert not kv, len(kv)
            kv = a.capture(eops_load, *[ECT[k] for k in ("EU", "ED", "t1", "t2", "t3")])
        if st == 6:
            kv = ["s_waitcnt vmcnt(0)"] + a.capture(eops_calc, *[ECT[k] for k in ("EU", "ED", "t1", "t2", "t3")])
        if st == 7:
            kv += ["ds_read_b32 v%d, v%d offset:%d" % (VN, VZ, L_SY + 100), "v_lshrrev_b32 v18, 4, v1", "v_lshlrev_b32 v18, 9, v18",
                   "v_and_b32 v19, 15, v1", "v_lshl_add_u32 v18, v19, 4, v18", "s_add_u32 s10, s%d, %d" % (S_HST, 112 * 1024)]
assert not kv
stamp(2)
for k_ in epi[0] + epi[1]: a(k_)
a("s_waitcnt lgkmcnt(0)")
a("v_readfirstlane_b32 s%d, v%d", S_NONCE, VN)

def loader():
    SG2 = 28
    VX2 = 8
    a("L_load:")
    kmfma_finish()
    a.srd(SG2, P_WG, 512 * 3584)
    a("v_subrev_u32 v%d, 0x10000, v%d", VX2, VX0)
    a("v_subrev_u32 v%d, 0x10000, v%d", VX2 + 1, VX1)
    def stage(s_):
        slot = s_ % 3
        a("s_bfe_u32 s%d, s%d, 0x%x", S_T, S_KR, (3 << 16) | (4 * s_))
        a("s_mul_i32 s%d, s%d, %d", S_T2, S_T, 64 * 3584)
        a("s_lshl_b32 s%d, s%d, 7", S_T, S_T)
        def wp(p):
            a("s_add_u32 s%d, s%d, s%d", S_T3, S_T2, S_RO + p)
            for m in range(2):
                a("s_add_u32 m0, s%d, %d", S_LO + p, (GB[slot] - 1 + m) * BLK)
                a("buffer_load_dwordx4 v%d, %s, s%d offen lds", VW0, sr([SG2, SG][m], 4), S_T3)
                vm.append(("G1", s_))
        wp(0)
        for h_ in range(2):
            for i in range(2):
                a("s_add_u32 m0, s%d, %d", S_W2K, (XB[slot] * BLK + i * 1024 - (1 - h_) * 8192) & 0xffffffff)
                a("buffer_load_dwordx4 v%d, %s, s%d offen lds", [VX2, VX0][h_] + i, sr(SX, 4), S_T)
                vm.append(("G1", s_))
        for p in range(1, 4): wp(p)
    wl = hl_list(True)
    def wloads(n):
        for _ in range(n):
            wl.pop(0)(); vm.append(("W", 0))
    stage(2)
    ls = a.capture(late_setup, False, T0, T1, T2)
    for st in range(8):
        if st < 7: a("s_waitcnt vmcnt(%d) lgkmcnt(0)", vmwait([("G1", st + 1)]))
        else: a("s_waitcnt lgkmcnt(0)")
        a("s_barrier")
        if st + 3 <= 7: stage(st + 3)
        if st == 0: onwave(4, zero_pads_k)
        if 1 <= st <= 3:
            n_ = (len(ls) + 3 - st) // (4 - st)
            for k_ in ls[:n_]: a(k_)
            ls = ls[n_:]
        if st == 4:
            later_addrs2(T0, T1, T2)
            conv_prelude()
            if UE:
                a("s_mov_b32 s%d, %d", S_PB, F_A)
                poll_issue(32); vm.append(("X", 0))
                nonce_issue(); vm.append(("X", 0))
        def ucheck():
            a("s_waitcnt vmcnt(%d)", vmwait([("X", 0)]))
            nonce_check()
            def wn():
                a("s_mov_b64 exec, 1")
                a("ds_write_b32 v%d, v%d offset:%d", VZ, VN, L_SY + 100)
                a("s_mov_b64 exec, -1")
            onwave(4, wn)
            poll_check(16)
            u_load(); vm.append(("U", 0)); vm.append(("U", 0))
        if st == 5:
            eops_load(); vm.append(("E", 0)); vm.append(("E", 0))
            onwave(5, zero_pads_u)
            if UE: ucheck()
            else:
                a("s_mov_b32 s%d, %d", S_PB, F_A)
                poll_issue(32); vm.append(("X", 0))
                nonce_issue(); vm.append(("X", 0))
            wloads(NW[1])
        if st == 6:
            if not UE: ucheck()
            else:
                a("s_waitcnt vmcnt(%d)", vmwait([("U", 0)]))
                u_write()
                eops_calc()
            wloads(NW[2])
    stamp(2)
    wloads(min(NW[3], 8))
    if not UE:
        a("s_waitcnt vmcnt(%d)", vmwait([("U", 0)]))
        u_write()
        sig(VSY, 0)
        wloads(NW[3] - min(NW[3], 8))
        eops_calc()
        a("v_and_b32 v19, 3, v1")
        a("v_lshlrev_b32 v19, 2, v19")
        lds_wait(19, L_SY + 16, 18, 0)
    if opt("hold", 0): lds_wait(7, 104, 18, 1)
UE = opt("ue", 0)
def conv_prelude():
    a("v_mov_b32 v6, 1")
    a("v_mov_b32 v7, %d", L_SY)
    a("s_lshl_b32 s10, s%d, 4", S_TQ)
    a("s_add_u32 s10, s10, %d", L_SY + 32)
    a("v_mov_b32 v108, s10")
    a("v_xor_b32 v109, 16, v108")
NW = [0, opt("nw5", 8), opt("nw6", 8), opt("nw7", 0)]
AUX0 = len(a.lines)
HIST0 = list(a.hist)
a("L_aux:")
common_srds()
a("s_lshl_b32 s6, s4, 2")
a("s_add_u32 s6, s6, s5")
PITCH = 1040
LA = 6 * BLK - 1024
LGW = 0
a("v_lshlrev_b32 v4, 4, v1")
a("v_mov_b32 v10, 0")
a("s_mov_b32 s9, %d", F_E)
a("buffer_load_dword v12, v10, %s, s9 offen sc1", sr(SWS, 4))
a("s_lshl_b32 s7, s6, 16")
a("s_lshl_b32 s8, s3, 13")
a("s_add_u32 s7, s7, s8")
a("s_mul_i32 s8, s3, %d", 8 * PITCH)
for j in range(8):
    a("s_add_u32 m0, s8, %d", LA + j * PITCH)
    a("s_add_u32 s11, s7, %d", j * 1024)
    a("buffer_load_dwordx4 v4, %s, s11 offen lds", sr(SX, 4))
a("global_load_dwordx4 v[28:31], v4, %s", sr(P_GW, 2))
a("s_or_b32 s10, s2, s3")
a("s_cmp_lg_u32 s10, 0")
a("s_cbranch_scc1 L_nononce")
a("s_mov_b32 s10, 0x9e3779b1")
a("s_waitcnt vmcnt(9)")
a("v_mul_lo_u32 v12, v12, s10")
a("v_add_u32 v12, 0x7f4a7c15, v12")
a("v_mov_b32 v13, 1")
a("s_mov_b64 exec, 1")
a("global_store_dwordx2 v10, v[12:13], %s sc1", sr(P_DBG, 2))
a("buffer_store_dword v12, v10, %s, s9 offen sc1", sr(SWS, 4))
a("s_mov_b64 exec, -1")
a("L_nononce:")
a("v_and_b32 v5, 7, v0")
a("v_lshlrev_b32 v5, 4, v5")
a("v_lshrrev_b32 v6, 4, v1")
a("v_bfe_u32 v7, v1, 2, 2")
a("v_lshl_add_u32 v7, v7, 2, v6")
a("v_mul_u32_u24 v7, %d, v7", PITCH)
a("v_and_b32 v8, 3, v1")
a("v_lshl_add_u32 v7, v8, 3, v7")
a("s_and_b32 s9, s3, 1")
a("s_mul_i32 s10, s9, %d", 32 * PITCH)
a("s_lshr_b32 s11, s3, 1")
a("s_lshl_b32 s12, s11, 8")
a("s_add_u32 s10, s10, s12")
a("s_add_u32 s10, s10, %d", LA)
a("v_add_u32 v7, s10, v7")
a("v_bfe_u32 v8, v1, 1, 3")
a("v_lshlrev_b32 v8, 13, v8")
a("v_lshl_add_u32 v8, v6, 5, v8")
a("v_and_b32 v9, 1, v1")
a("v_lshl_add_u32 v8, v9, 4, v8")
a("s_lshl_b32 s12, s11, 19")
a("s_lshl_b32 s13, s6, 1")
a("s_add_u32 s13, s13, s9")
a("s_lshl_b32 s13, s13, 7")
a("s_add_u32 s12, s12, s13")
a("s_add_u32 s12, s12, %d", WS_UT)
a("v_lshrrev_b32 v9, 3, v0")
a("v_mul_u32_u24 v10, %d, v9", PITCH)
a("v_add_u32 v10, v10, v5")
a("v_add_u32 v10, %d, v10", LA)
a("s_waitcnt vmcnt(0)")
a("ds_write_b128 v4, v[28:31] offset:%d", LGW)
a("s_waitcnt lgkmcnt(0)")
a("s_barrier")
stamp(0)
for j in range(8):
    for hf in range(2):
        a("ds_read_b64_tr_b16 %s, v7 offset:%d", vr(64 + 4 * j + 2 * hf, 2), hf * 16 * PITCH + j * 32)
nonce_issue()
for j in range(8):
    a("s_waitcnt lgkmcnt(%d)", 14 - 2 * j)
    a("s_add_u32 s13, s12, %d", j * 65536)
    a("buffer_store_dwordx4 %s, v8, %s, s13 offen sc1", vr(64 + 4 * j, 4), sr(SWS, 4))
for j in range(8):
    a("ds_read_b128 %s, v10 offset:%d", vr(96 + 4 * j, 4), j * 128)
    a("ds_read_b128 %s, v5 offset:%d", vr(32 + 4 * j, 4), LGW + j * 128)
a("v_mov_b32 v11, 0")
a("v_mov_b32 v12, 0")
a("s_waitcnt lgkmcnt(0)")
for j in range(32):
    a("v_dot2_f32_bf16 v%d, v%d, v%d, v%d", 11 + j % 2, 32 + j, 96 + j, 11 + j % 2)
a("v_add_f32 v11, v11, v12")
a("v_add_f32_dpp v11, v11, v11 quad_perm:[1,0,3,2] row_mask:0xf bank_mask:0xf")
a("v_add_f32_dpp v11, v11, v11 quad_perm:[2,3,0,1] row_mask:0xf bank_mask:0xf")
a("v_add_f32_dpp v11, v11, v11 row_half_mirror row_mask:0xf bank_mask:0xf")
a("v_mul_f32 v11, 0xbfb8aa3b, v11")
a("v_exp_f32 v11, v11")
a("v_add_f32 v11, 1.0, v11")
a("v_rcp_f32 v11, v11")
a("v_lshlrev_b32 v9, 2, v9")
a("s_waitcnt vmcnt(0)")
nonce_check()
a("s_barrier")
a("s_cmp_lg_u32 s3, 0")
a("s_cbranch_scc1 L_auxnf")
a("s_lshl_b32 s10, s6, 2")
a("s_add_u32 s10, s10, %d", F_A)
flag_store("s10")
a("L_auxnf:")
stamp(1)
a("s_lshl_b32 s13, s6, 8")
a("s_add_u32 s13, s13, %d", WS_G)
a("v_cmp_eq_u32 vcc, 0, v5")
a("s_mov_b64 exec, vcc")
a("buffer_store_dword v11, v9, %s, s13 offen sc1", sr(SWS, 4))
a("s_mov_b64 exec, -1")
later_addrs(T0, T1, T2)
later_addrs2(T0, T1, T2)
later_addrs3(T0, T1, T2)
if opt("apf", 1):
    a("s_lshl_b32 s%d, s6, 3", S_PFI)
    a("s_add_u32 s%d, s%d, s3", S_PFI, S_PFI)
    a("s_lshr_b32 s10, s%d, 6", S_PFI)
    a("s_mul_i32 s10, s10, 448")
    a("s_and_b32 s11, s%d, 63", S_PFI)
    a("s_add_u32 s10, s10, s11")
    a("s_lshl_b32 s10, s10, 10")
    for k_ in range(7):
        a("buffer_load_dwordx4 v[52:55], v%d, %s, s10 offen", VH, sr(SW, 4))
        a("s_add_u32 s10, s10, 65536")
kgen_all([])
a("s_waitcnt lgkmcnt(0)")
a("s_barrier")
lg = Lg()
for r in kreads(): lg.issue(*r)
run_kmfma(lg, [], 0)
def p_():
    a("s_mov_b32 s%d, %d", S_PB, F_A)
    poll_issue(32)
    a("s_waitcnt vmcnt(0)")
    poll_check(16)
onwave(0, p_)
a("s_waitcnt vmcnt(0)")
a("s_barrier")
role(u_load, None)
eops_load()
kmfma_finish()
onwave(0, zero_pads_k)
onwave(1, zero_pads_u)
def p_():
    a("s_lshl_b32 s10, s6, 2")
    a("s_add_u32 s10, s10, %d", F_G)
    flag_store("s10")
onwave(4, p_)
a("s_waitcnt vmcnt(0)")
role(u_write, None)
eops_calc()
AUXW = len(a.lines)
a("s_waitcnt lgkmcnt(0)")
a("s_barrier")
stamp(2)

conv_prelude()
a("s_cmp_ge_u32 s3, 4")
a("s_cbranch_scc1 L_conv")
a("s_branch L_help")
aux_lines = a.lines[AUX0:]
a.lines = a.lines[:AUX0]
a.hist = HIST0
VA, VB, VC, VY = 2, 3, 4, 5
HF = 80
HRING = 16
VO = 14
HFC = 112
def hload(j0, n, vml, HF=HF):
    for j in range(j0, j0 + n):
        if j % 4 == 0 or j == j0:
            a("s_add_u32 s%d, s%d, s%d", S_T, S_HB, S_RT + j // 4)
        a("buffer_load_dwordx4 %s, v%d, %s, s%d offen offset:%d%s", vr(HF + 4 * (j % HRING), 4), VH, sr(SWS, 4), S_T, (j % 4) * 1024, "" if opt("hplain", 0) else " sc1")
        vml.append(("H", j))

WORD = {0: [0, 1, 4, 5, 6, 2, 3], 8: [0, 1, 2, 4, 5, 6, 3], 16: [0, 1, 2, 3, 4, 5, 6]}[opt('nw7', 0)]
def hl_list(all_=False):
    L = []
    for rd in WORD:
        for i in range(8):
            def f(rd=rd, i=i):
                if rd < 4:
                    a("s_add_u32 m0, s%d, %d", S_WLD, WB[rd] * BLK + i * 1024)
                if i == 0:
                    a("s_lshl_b32 s13, s%d, 4", S_RT + rd)
                    a("s_add_u32 s13, s13, s%d", S_WSO)
                else:
                    a("s_add_u32 s13, s13, 8192")
                if rd < 4:
                    a("buffer_load_dwordx4 v%d, %s, s13 offen lds", VWD, sr(SW, 4))
                else:
                    a("buffer_load_dwordx4 %s, v%d, %s, s13 offen", vr(WST + WSTO[rd] + 4 * i, 4), VWD, sr(SW, 4))
            L.append(f)
    return L if all_ else L[sum(NW):]
assert all(x % 8 == 0 for x in NW) and NW[0] <= 8 and NW[0] + NW[1] <= 16
BC0 = len(a.lines)
a("L_st2:"); a("s_branch L_stret")
loader()
a("L_conv:")
stamp(3)
if opt("prio", 0): a("s_setprio %d", opt("prio", 0))
a("s_mov_b32 s14, 0x11111111")
a("s_mov_b32 s15, 0x11111111")
a("s_mov_b64 vcc, s[14:15]")
a("s_mov_b32 s12, 0x33333333")
a("s_mov_b32 s13, 0x33333333")
a("s_bitcmp1_b32 s3, 0")
a("s_cbranch_scc1 L_set1")
BF = 112
AF = 8
AC = 28
C1POS = opt("c1pos", 26)
LOOK = opt("look", 6)
NC0 = opt("nc0", 6)
FPG = opt("fpg", 4)
vmc = None
VCF, VCP = 108, 109
DONE = {}
def done_pos(jt):
    CM = opt("cm", 0)
    for tiles in ([0, 3, 4, 7], [1, 2, 5, 6]):
        if jt in tiles:
            groups = {0: [[0, 1, 2, 3]], 1: [[0], [1], [2], [3]], 2: [[0, 1], [2, 3]], 3: [[0, 1, 2], [3]]}[CM]
            sc = [tiles[ti] for g_ in groups for dl in range(4 * tiles[g_[-1]] + 4) for ti in g_ if dl <= 4 * tiles[ti] + 3]
            return max(p for p, x in enumerate(sc) if x == jt)
for si, tiles in enumerate([[0, 3, 4, 7], [1, 2, 5, 6]]):
    if si == 1:
        a("L_st0:"); a("s_branch L_stret")
        a("L_set1:")
    other = [[1, 2, 5, 6], [0, 3, 4, 7]][si]
    lg = Lg()
    CM = opt("cm", 0)
    groups = {0: [[0, 1, 2, 3]], 1: [[0], [1], [2], [3]], 2: [[0, 1], [2, 3]], 3: [[0, 1, 2], [3]]}[CM]
    sched = []; aid = []; adl = []
    for g_ in groups:
        for dl in range(4 * tiles[g_[-1]] + 4):
            adl.append(dl)
            for ti in g_:
                if dl <= 4 * tiles[ti] + 3:
                    sched.append((dl, ti, tiles[ti])); aid.append(len(adl) - 1)
    NA = 5
    lastuse = {}
    for pos in range(len(sched)): lastuse[aid[pos]] = pos
    loads = []; seenB = set(); seenA = set()
    for pos, (dl, ti, jt) in enumerate(sched):
        if aid[pos] not in seenA: seenA.add(aid[pos]); loads.append(("A", aid[pos], pos))
        e = 4 * jt - dl
        if e not in seenB: seenB.add(e); loads.append(("B", e, pos))
    done_at = {jt: max(p for p, x in enumerate(sched) if x[2] == jt) for jt in tiles}
    DONE.update(done_at)
    def ld_instrs(kind, idx):
        if kind == "A":
            r = AF + 4 * (idx % NA); dl_ = adl[idx]
            return ["ds_read_b64_tr_b16 %s, v%d offset:%d" % (vr(r + 2 * hf, 2), VA, 128 * dl_ + 32 * (1 - hf)) for hf in range(2)]
        return ["ds_read_b128 %s, v%d offset:%d" % (vr(BF + 4 * (idx + 3), 4), VB, 128 * (idx + 3))]
    nys = [0]
    ystores = []
    def post(ti, jt):
        b = AC + 20 * ti
        L = []
        q1 = "quad_perm:[1,1,3,3] row_mask:0xf bank_mask:0xf"; q2 = "quad_perm:[2,2,2,2] row_mask:0xf bank_mask:0xf"
        q0 = "quad_perm:[0,0,0,0] row_mask:0xf bank_mask:0xf"
        L.append("v_mov_b32_dpp v%d, v%d %s" % (b + 16, b + 15, q1))
        for q in range(15, 0, -1):
            L.append("v_add_f32_dpp v%d, v%d, v%d %s" % (b + q, b + q - 1, b + q, q1))
        L.append("v_mov_b32_dpp v%d, v%d %s" % (b + 18, b + 16, q2))
        L.append("v_mov_b32_dpp v%d, v%d %s" % (b + 17, b + 15, q2))
        L.append("v_add_f32_dpp v%d, v%d, v%d %s" % (b + 16, b + 14, b + 16, q2))
        def cw():
            a("s_mov_b64 exec, vcc")
            lg.issue("ds_write_b128 v%d, %s offset:%d" % (VC, vr(b + 16, 4), 256 * jt + 16))
            if jt + 1 in other:
                a("s_mov_b64 exec, 1")
                lg.issue("ds_write_b32 v%d, v6 offset:%d" % (VCF, 4 * ti))
            a("s_mov_b64 exec, -1")
        L.append(cw)
        for q in range(15, 1, -1):
            L.append("v_add_f32_dpp v%d, v%d, v%d %s" % (b + q, b + q - 2, b + q, q2))
        for q in range(2, 8):
            L.append("v_cvt_pk_bf16_f32 v%d, v%d, v%d" % (b + 16 + (q - 2) if q < 4 else b + q, b + 2 * q, b + 2 * q + 1))
        L = [(0, x) for x in L]
        part = (jt - 1) in other
        mp = done_pos(jt - 1) + opt("cmarg", 22) if part else 0
        def rd():
            if part: lg.issue("ds_read_b32 v%d, v%d offset:%d" % (b + 12, VCP, 4 * other.index(jt - 1)), ("cf", ti))
            lg.issue("ds_read_b128 %s, v%d offset:%d" % (vr(b + 8, 4), VC, 256 * jt), ("cy", ti))
        L.append((mp, rd))
        def chk():
            lg.need([("cy", ti)])
            if part:
                ok = a.label("Lcok"); sl = a.label("Lcsl")
                a("v_readfirstlane_b32 s10, v%d", b + 12)
                a("s_cmp_eq_u32 s10, 0")
                a("s_cbranch_scc1 %s", sl)
                a(ok + ":")
                def sp(ok=ok, sl=sl, oi=other.index(jt - 1)):
                    a(sl + ":")
                    lds_wait(VCP, 4 * oi, b + 12, 0)
                    a("s_mov_b64 vcc, s[14:15]")
                    a("ds_read_b128 %s, v%d offset:%d", vr(b + 8, 4), VC, 256 * jt)
                    a("s_waitcnt lgkmcnt(0)")
                    a("s_branch %s", ok)
                slow.append(sp)
        L.append((-3, chk))
        for q in range(3):
            L.append((0, "v_add_f32 v%d, v%d, v%d" % (b + q, b + q, b + 8 + q)))
        L.append((0, "v_cvt_pk_bf16_f32 v%d, v%d, v%d" % (b, b, b + 1)))
        L.append((0, "v_cvt_pk_bf16_f32 v%d, v%d, v%d" % (b + 1, b + 2, b + 3)))
        L.append((0, "v_cndmask_b32_dpp v%d, v%d, v%d, vcc %s" % (b + 2, b + 6, b + 16, q0)))
        L.append((0, "v_cndmask_b32_dpp v%d, v%d, v%d, vcc %s" % (b + 3, b + 7, b + 17, q0)))
        L.append((0, "v_cndmask_b32_dpp v%d, v%d, v%d, vcc %s" % (b, b + 4, b, q0)))
        L.append((0, "v_cndmask_b32_dpp v%d, v%d, v%d, vcc %s" % (b + 1, b + 5, b + 1, q0)))
        def st_():
            a("s_mov_b64 exec, s[12:13]")
            a("buffer_store_dwordx4 %s, v%d, %s, s%d offen offset:%d sc1", vr(b, 4), VY, sr(SWS, 4), S_YB, 512 * jt)
            a("s_mov_b64 exec, -1")
            nys[0] += 1
        if opt("ydefer", 1): ystores.append(st_)
        else: L.append((0, st_))
        return L
    li = 0; queues = []
    def emit(x): a(x) if isinstance(x, str) else x()
    for pos, (dl, ti, jt) in enumerate(sched):
        for ld in list(loads):
            kind, idx, fp = ld
            if fp <= pos + LOOK and not (kind == "A" and idx >= NA and lastuse[idx - NA] >= pos):
                for ins in ld_instrs(kind, idx): lg.issue(ins, (kind, idx))
                loads.remove(ld)
        e = 4 * jt - dl
        lg.need([("A", aid[pos]), ("B", e)])
        d = vr(AC + 20 * ti, 16)
        a("v_mfma_f32_32x32x16_bf16 %s, %s, %s, %s", d, vr(AF + 4 * (aid[pos] % NA), 4), vr(BF + 4 * (e + 3), 4), d if dl else "0")
        if opt("diag2", 0) and pos in (15, 39):
            stamp({15: 11, 39: 12}[pos], True); lg.drained()
        bud = FPG
        for qu in queues:
            while bud and qu[0] and pos >= qu[1]:
                mp, x = qu[0][0]
                if mp > pos: break
                if mp < 0:
                    qu[0][0] = (pos - mp, x); break
                qu[0].pop(0); emit(x); bud -= 1
        if dl == 4 * jt + 3: queues.append([post(ti, jt), pos + 3])
    stamp(4)
    def upto(qu, name, incl):
        names = [getattr(x, "__name__", "") for mp, x in qu[0]]
        if name not in names: return
        n_ = names.index(name) + (1 if incl else 0)
        for mp, x in qu[0][:n_]: emit(x)
        qu[0] = qu[0][n_:]
    for qu in queues[:-1]: upto(qu, "cw", True)
    upto(queues[-1], "cw", True)
    for qu in queues[:-1]: upto(qu, "rd", True)
    upto(queues[-1], "rd", True)
    for qu in queues[:-1]:
        for mp, x in qu[0]: emit(x)
    for mp, x in queues[-1][0]: emit(x)
    for x in ystores: x()
    stamp(5)
    if si == 0: a("s_branch L_g2c")

BH0 = len(a.lines)
a.hist = HIST0
a("v_mov_b32 v6, 1")
a("v_mov_b32 v7, %d", L_SY)
if opt("hold", 0): onwave(3, lambda: sig(7, 104))
a("s_setprio 0")
a("L_help:")
stamp(3)
NPRE = opt("npre", 8)
for f in hl_list()[:NPRE]: f()
a("s_waitcnt vmcnt(%d)", NPRE)
sig(VSY, 0)
stamp(10)
a("s_cmp_lg_u32 s3, 0")
a("s_cbranch_scc1 L_hdma")
a("s_cmp_lg_u32 s%d, 0", S_ISAUX)
a("s_cbranch_scc1 L_hdma")
a("v_and_b32 v2, 3, v1")
a("v_lshl_add_u32 v2, v2, 2, v7")
rest = hl_list()[NPRE:]
SEG = opt("seg", 2)
NSEG = opt("nseg", 6)
for k in range(NSEG):
    a("ds_read_b32 v3, v2")
    a("s_waitcnt lgkmcnt(0)")
    a("v_cmp_eq_u32 vcc, 0, v3")
    a("s_cmp_eq_u64 vcc, 0")
    a("s_cbranch_scc1 L_pub%d", k)
    for f in rest[k * SEG:(k + 1) * SEG]: f()
lds_wait(2, 0, 3, 0)
for k in range(NSEG, -1, -1):
    a("L_pub%d:" % k)
    a("s_mov_b32 s11, s%d", S_NONCE)
    a("s_buffer_atomic_swap s11, %s, s%d", sr(SWS, 4), S_FH)
    if STAMP and k == 0: pass
    if k: a("s_branch L_seg%d", k)
a("L_hdma:")
for n_, f in enumerate(rest):
    if n_ and n_ % SEG == 0 and n_ // SEG <= NSEG: a("L_seg%d:" % (n_ // SEG))
    f()
stamp(6)
NH0 = opt("nh0", 6)
def hpoll():
    if PCF:
        a("s_lshl_b32 s%d, s%d, 3", S_PB, S_TB)
        a("s_add_u32 s%d, s%d, s%d", S_PB, S_PB, S_DB)
    else:
        a("s_lshr_b32 s%d, s%d, 1", S_PB, S_TB)
    a("s_mul_i32 s%d, s%d, %d", S_PB, S_PB, FSTR)
    a("s_add_u32 s%d, s%d, %d", S_PB, S_PB, F_H2)
    a("s_mov_b32 s8, s%d", S_NONCE)
    a("s_mov_b32 s9, s%d", S_NONCE)
    a("s_mov_b32 s12, 0")
    a("L_sp:")
    a("s_buffer_load_dwordx16 s[16:31], %s, s%d glc", sr(SWS, 4), S_PB)
    a("s_add_u32 s12, s12, 1")
    a("s_waitcnt lgkmcnt(0)")
    a("s_xor_b64 s[10:11], s[16:17], s[8:9]")
    for i in range(1, 7):
        a("s_xor_b64 s[14:15], s[%d:%d], s[8:9]", 16 + 2 * i, 17 + 2 * i)
        a("s_or_b64 s[10:11], s[10:11], s[14:15]")
    a("s_cbranch_scc0 L_fnd")
    a("s_cmp_lt_u32 s12, %d", opt("spn", 64))
    a("s_cbranch_scc1 L_sp")
    poll_issue(14)
    a("s_waitcnt vmcnt(0)")
    poll_check(1)
    a("L_fnd:")
    sig(7, 96)
def ypublish():
    a("s_waitcnt vmcnt(0)")
    sig(VSY, 96)
    def p_():
        a("v_and_b32 v2, 3, v1")
        a("v_lshl_add_u32 v2, v2, 2, v7")
        lds_wait(2, 112, 3, 0)
        a("s_lshl_b32 s10, s2, 2")
        a("s_add_u32 s10, s10, %d", F_Y)
        flag_store("s10")
    onwave(4, p_)
    stamp(6)
vmh = []; vmc = []

def gemm2(role_, vml):
    helper = role_ == "h"
    HFR = HF if helper else HFC
    R = 8
    VYR, EG = 15, 16
    EY = 176
    VWW = 76
    t0, t1, t2, t3 = 2, 3, 4, 5
    AFR = 20
    AC2 = 44
    YL = 180
    A0 = 188
    RR = 16
    def vw(tags):
        idx = [i for i, t in enumerate(vml) if t in tags]
        if opt("g2nowait", 0) and tags[0][0] in "HW": return 63
        if not idx: return 63
        return min(63, len(vml) - 1 - max(idx))
    a("v_mov_b32 v%d, v%d", R, VR0)
    a("v_xor_b32 v%d, 64, v%d", R + 1, VR0)
    for m in range(2):
        a("v_add_u32 v%d, %d, v%d", R + 2 + m, 4 * BLK, R + m)
        a("v_add_u32 v%d, %d, v%d", R + 4 + m, 8 * BLK, R + m)
    if helper and opt("pollpre", 1): onwave(opt("pollw", 1), hpoll)
    a("s_waitcnt vmcnt(%d)", 0 if helper else 4)
    if not helper and opt("pollpre", 1): ypublish()
    a("s_barrier")
    stamp(7)
    if opt("g2prio", 0) and not helper: a("s_setprio 1")
    def reads(step):
        rd, ks = step // 4, step % 4
        blk = WB[rd]
        f = AFR + (step % 3) * 8
        L = []
        for m in range(2):
            for hf in range(2):
                L.append(("ds_read_b64_tr_b16 %s, v%d offset:%d" % (vr(f + 4 * m + 2 * hf, 2), R + 2 * (blk // 4) + m, (blk % 4) * BLK + ((ks >> 1) * 4096 + (ks & 1) * 1024 + hf * 2048 if G16 else ks * 2048 + hf * 1024)), (step, m)))
        return L
    def ypoll_issue():
        a("s_lshl_b32 s10, s%d, 7", S_DB)
        a("v_lshl_add_u32 v%d, v1, 2, s10", VN + 2)
        a("s_lshl_b32 s10, s%d, 2", S_TB)
        a("s_add_u32 s10, s10, %d", F_G - F_Y)
        a("v_mov_b32 v%d, s10", t0)
        a("v_cmp_lt_u32 vcc, 31, v1")
        a("v_cndmask_b32 v%d, v%d, v%d, vcc", VN + 2, VN + 2, t0)
        a("s_mov_b32 s%d, %d", S_PB, F_Y)
        a("buffer_load_dword v%d, v%d, %s, s%d offen sc1", VN - 1, VN + 2, sr(SWS, 4), S_PB)
        vml.append(("PY", 0))
    def yload():
        poll_check(1)
        a("v_lshrrev_b32 v%d, 3, v1", t0)
        a("v_lshlrev_b32 v%d, 12, v%d", t0, t0)
        a("v_and_b32 v%d, 7, v1", t1)
        a("v_lshl_add_u32 v%d, v%d, 4, v%d", t0, t1, t0)
        a("s_lshl_b32 s12, s%d, 3", S_DB)
        a("s_add_u32 s12, s12, s3")
        a("s_lshl_b32 s12, s12, 15")
        a("s_lshl_b32 s13, s%d, 7", S_TB)
        a("s_add_u32 s12, s12, s13")
        a("s_add_u32 s12, s12, %d", WS_Y)
        a("buffer_load_dwordx4 %s, v%d, %s, s12 offen sc1", vr(YL, 4), t0, sr(SWS, 4))
        vml.append(("Y", 0))
        a("v_and_b32 v%d, 31, v1", t1)
        a("v_lshlrev_b32 v%d, 2, v%d", t1, t1)
        a("buffer_load_dword v%d, v%d, %s, s%d offen sc1", EG, t1, sr(SWS, 4), S_GOFF)
        vml.append(("Y", 0))
    lg = Lg()
    for r in reads(0) + reads(1): lg.issue(*r)
    pend = []
    def wwrite(rd, i):
        if opt("xnoww", 0): return
        if i == 0: a("v_add_u32 v%d, %d, v%d", VWW, WB[rd] * BLK, VWW + 1)
        lg.issue("ds_write_b128 v%d, %s offset:%d" % (VWW, vr(WST + WSTO[rd] + 4 * i, 4), i * 1024), ("ww", rd))
    if helper:
        a("v_add_u32 v%d, s%d, v%d", VWW + 1, S_WLD, VH)
    if opt("pollpre", 1):
        hload(0, NH0 if helper else NC0, vml, HFR)
        if helper:
            for i in range(8): wwrite(4, i)
    else:
        assert False
        if helper:
            for i in range(7): wwrite(4, i)
            onwave(opt("pollw", 1), hpoll)
        else:
            ypublish()
        lds_wait(7, 96, 3, 0); lg.drained()
        stamp(13)
        hload(0, NH0 if helper else NC0, vml, HFR)
    vfill = []
    nh = NH0 if helper else NC0
    YPS = opt("yps", 12)
    for step in range(28):
        rd, ks = step // 4, step % 4
        f = AFR + (step % 3) * 8
        nxt = reads(step + 2) if step < 26 else []
        for m in range(2):
            d = vr(AC2 + 16 * m, 16)
            lg.need([(step, m)], "vmcnt(%d) " % vw([("H", step)]) if m == 0 else "")
            a("v_mfma_f32_32x32x16_bf16 %s, %s, %s, %s", d, vr(f + 4 * m, 4), vr(HFR + 4 * (step % HRING), 4), d if step else "0")
            for r in nxt[2 * m:2 * m + 2]: lg.issue(*r)
            if nh < 28 and (m == 0 or nh < step + opt("hd", 0)) and not opt("xnoh", 0):
                hload(nh, 1, vml, HFR); nh += 1
            if m == 0 and step == opt("yls", 21):
                a("s_waitcnt vmcnt(%d)", vw([("PY", 0)]))
                yload()
            if m == 1 and step == YPS: ypoll_issue()
            if pend: pend.pop(0)()
            for _ in range(5):
                if vfill: lg.run(vfill.pop(0))
        if opt("stg2", 0) and ks == 3 and rd < 5:
            stamp(10 + rd); lg.drained()
        if step == 20:
            for j in range(4):
                vfill.append("v_lshlrev_b32 v%d, 16, v%d" % (A0 + 2 * j, EUD + j))
                vfill.append("v_and_b32 v%d, 0xffff0000, v%d" % (A0 + 2 * j + 1, EUD + j))
            vfill += ["v_and_b32 v%d, 31, v1" % t2, "v_lshrrev_b32 v%d, 5, v1" % t3, "v_lshlrev_b32 v%d, 4, v%d" % (t3, t3),
                      "v_lshl_add_u32 v%d, v%d, 10, v%d" % (VO, t2, t3)]
        if ks == 1 and 1 <= rd < 6:
            if opt("fewbar", 1):
                if rd == 2:
                    a("s_barrier")
                    if helper:
                        pend = [(lambda i=i, r=r: wwrite(r, i)) for r in (5, 6) for i in range(8)]
                if rd == 4:
                    if helper:
                        assert not pend
                        lg.need([("ww", 6)])
                    a("s_barrier")
            else:
                if helper and rd >= 3: lg.need([("ww", rd + 1)])
                a("s_barrier")
                if helper and rd <= 2:
                    assert not pend
                    pend = [(lambda i=i, r=rd + 4: wwrite(r, i)) for i in range(8)]
            if rd == 5:
                vfill += ["v_lshrrev_b32 v%d, 5, v1" % VYR,
                          "v_bfe_u32 v%d, v1, 2, 2" % t2,
                          "v_lshl_add_u32 v%d, v%d, 3, v%d" % (VYR, VYR, t2),
                          "v_lshlrev_b32 v%d, 7, v%d" % (VYR, VYR),
                          "v_bfe_u32 v%d, v1, 4, 1" % t2,
                          "v_lshl_add_u32 v%d, v%d, 5, v%d" % (VYR, t2, VYR),
                          "v_and_b32 v%d, 3, v1" % t2,
                          "v_lshl_add_u32 v%d, v%d, 3, v%d" % (VYR, t2, VYR),
                          "s_lshr_b32 s10, s3, 1", "s_lshl_b32 s10, s10, 11", "s_and_b32 s11, s3, 1", "s_lshl_b32 s11, s11, 6",
                          "s_add_u32 s10, s10, s11", "s_add_u32 s10, s10, %d" % L_Y,
                          "v_add_u32 v%d, s10, v%d" % (VYR, VYR),
                          "s_lshl_b32 s10, s3, 10", "s_add_u32 s10, s10, %d" % L_Y,
                          "v_add_u32 v%d, s10, v%d" % (YL + 4, VH)]
                for j in range(4):
                    hi_ = (0 if helper else 1) ^ (j >> 1)
                    vfill.append("s_xor_b32 s10, s%d, %d" % (S_TQ, (2 * j) & 3))
                    vfill.append("s_mul_i32 s10, s10, 6144")
                    vfill.append("s_add_u32 s10, s10, %d" % (L_R[hi_] + max(j - 1, 0) * 2048))
                    vfill.append("v_add_u32 v%d, s10, v%d" % (VWW if j == 0 else RR + j, VH))
    assert not pend
    stamp(8)
    for f_ in vfill: lg.run(f_)
    a("s_waitcnt vmcnt(0)")
    if opt("diag3", 0): stamp(10, True)
    a("ds_write_b128 v%d, %s", YL + 4, vr(YL, 4))
    for j in range(1, 4):
        for b in range(2):
            a("ds_write_b128 v%d, %s offset:%d", VWW, vr(AC2 + 8 * j + 4 * b, 4), (j - 1) * 2048 + b * 1024)
    for q in range(8):
        a("v_sub_f32 v%d, v%d, v%d", A0 + q, A0 + q, AC2 + q)
        a("v_fmac_f32 v%d, v%d, v%d", AC2 + q, EG, A0 + q)
    a("v_sub_f32 v%d, 1.0, v%d", t1, EG)
    a("s_waitcnt lgkmcnt(0)")
    if opt("diag3", 0): stamp(11, True)
    a("s_barrier")
    if opt("diag3", 0): stamp(12, True)
    for hf in range(2):
        a("ds_read_b64_tr_b16 %s, v%d offset:%d", vr(EY + 2 * hf, 2), VYR, hf * 512)
    for j in range(1, 4):
        for b in range(2):
            a("ds_read_b128 %s, v%d offset:%d", vr(AC2 + 8 * j + 4 * b, 4), RR + j, b * 1024)
    a("s_waitcnt lgkmcnt(6)")
    for j in range(4):
        a("v_lshlrev_b32 v%d, 16, v%d", t2, EY + j)
        a("v_and_b32 v%d, 0xffff0000, v%d", t3, EY + j)
        a("v_fmac_f32 v%d, v%d, v%d", AC2 + 2 * j, EG, t2)
        a("v_fmac_f32 v%d, v%d, v%d", AC2 + 2 * j + 1, EG, t3)
    for j in range(1, 4):
        a("s_waitcnt lgkmcnt(%d)", 2 * (3 - j))
        for q in range(8):
            a("v_fmac_f32 v%d, v%d, v%d", AC2 + q, t1, AC2 + 8 * j + q)
    for j in range(4):
        a("v_cvt_pk_bf16_f32 v%d, v%d, v%d", A0 + j, AC2 + 2 * j, AC2 + 2 * j + 1)
    a("buffer_store_dwordx4 %s, v%d, %s, s%d offen%s", vr(A0, 4), VO, sr(SO, 4), S_OB, ["", " sc1", " nt", " sc0 sc1"][opt("ost", 0)])
    if opt("diag3", 0): stamp(13, True)
    if STAMP: a("s_waitcnt vmcnt(0)")
    stamp(9)
    stamp_out()
    a("s_endpgm")

gemm2("h", vmh)
BG0 = len(a.lines)
a.lines = a.lines[:BC0] + a.lines[BH0:BG0] + a.lines[BC0:BH0]
a("L_g2c:")
gemm2("c", vmc)
n0_ = len(a.lines)
def auxw():
    for f in hl_list(True)[:sum(NW)]: f()
role(None, auxw)
auxw_lines = a.lines[n0_:]; a.lines = a.lines[:n0_]
a.lines += aux_lines[:AUXW - AUX0] + auxw_lines + aux_lines[AUXW - AUX0:]
for sp in slow: sp()
a("L_end:")
a("s_endpgm")

hdr = open("gated_mix__ssm_conv_s4__glu_gated_bilinear__prompt.s.ref").read().split("\n")
hdr = [l for l in hdr if l.startswith(";") and "@launch" not in l]
print(wrap(hdr + ["; @launch grid=(256,1,1) block=(512,1,1) lds=163840"], [(NAME, a, 256, 102, 256)]))
sys.stderr.write("nops: %d\n" % a.nops)
```

```python
import sys
from asmlib import *

STAMP = "--stamp" in sys.argv
def opt(name, default):
    for x in sys.argv:
        if x.startswith("--%s=" % name): return int(x.split("=")[1])
    return default

WS_H = 0
WS_UT = 8 << 20
WS_Y = 10 << 20
WS_G = 12 << 20
WS_F = (12 << 20) + 0x10000
F_H2 = (12 << 20) + 0x80000
WS_ST = 13 << 20
WS_BYTES = 14 << 20
F_A, F_H, F_Y, F_G, F_E = WS_F, WS_F + 0x1000, WS_F + 0x2000, WS_F + 0x3000, WS_F + 0x4000

P_U, P_ARE, P_AIM, P_BRE, P_BIM, P_CRE, P_CIM, P_LDT = 16, 18, 20, 22, 24, 26, 28, 30
P_DSK, P_BX, P_WG, P_WU, P_WD, P_GW, P_OUT, P_DBG, P_WS = 32, 34, 36, 38, 40, 42, 44, 46, 48
SX, SG, SU, SWS, SW, SO = 52, 56, 60, 64, 68, 72
S_NONCE, S_ISAUX, S_SPIN, S_PB = 76, 77, 78, 79
S_TB, S_DB, S_KH, S_TQ, S_HB, S_OB = 80, 81, 82, 83, 84, 85
S_W0S = 100
S_RT = 36
S_KR, S_T2 = 0, 1
S_W2K, S_T, S_TM0, S_YB = 86, 87, 88, 89
S_DOFF, S_GOFF = 50, 51
S_WSO, S_WLD = 90, 91
S_HST = 34
S_FH = 35
PCF = opt('pcf', 0)
FSTR = opt('fstr', 1280)
G16 = 1
SPINMAX = opt("spin", 2000000)

BLK = 16384
XB = [0, 1, 2]
GB = [6, 8, 4]
L_TAB = 2 * BLK
TP = 528
TPIECE = 31 * TP
L_U = 2 * BLK
UCH = 512 + 4096
L_K = 3 * BLK
KCH = 64 + 4096
L_CY = L_K + 2 * KCH
CYCH = 129 * 16
L_SY = 4 * BLK - 128
assert L_SY % 32 == 0 and L_SY + 128 <= 4 * BLK
WB = [4, 6, 8, 0, 2, 4, 6]
L_Y = 8 * BLK + 24576
L_R = [8 * BLK, 0]

a = Asm()

class Lg:
    def __init__(self): self.q = []; self.done = 0
    def issue(self, ins, tag=None):
        a(ins); self.q.append(tag)
    def need(self, tags, extra=""):
        idx = [i for i, t in enumerate(self.q) if t in tags]
        last = max(idx) if idx else -1
        if last >= self.done:
            cnt = min(len(self.q) - 1 - last, 15)
            a("s_waitcnt %slgkmcnt(%d)", extra, cnt)
            self.done = len(self.q) - cnt
        elif extra:
            a("s_waitcnt %s", extra)
    def drained(self): self.done = len(self.q)
    def run(self, p):
        n0 = len(a.lines)
        a(p) if isinstance(p, str) else p()
        for ln in a.lines[n0:]:
            if ln.strip().startswith("ds_"): self.q.append(None)

SMASK = opt("smask", 0x7fff)
def stamp(i, force=False):
    if opt("stg", 0) == 2:
        if not force or not (SMASK >> i) & 1: return
    if not STAMP or not ((SMASK >> i) & 1 or force): return
    a("s_memtime s[94:95]")
    a("s_memrealtime s[92:93]")
    a("s_waitcnt lgkmcnt(0)")
    a("s_sub_u32 s94, s94, s98")
    a("v_writelane_b32 v255, s94, %d", i)
    a("v_writelane_b32 v255, s92, %d", i + 16)
def stamp_out():
    if not STAMP: return
    a("s_mov_b64 exec, -1")
    a("v_writelane_b32 v255, s96, 31")
    a("s_getreg_b32 s92, hwreg(HW_REG_XCC_ID)")
    a("s_getreg_b32 s93, hwreg(HW_REG_HW_ID)")
    a("s_and_b32 s92, s92, 15")
    a("s_lshl_b32 s93, s93, 4")
    a("s_or_b32 s92, s92, s93")
    a("v_writelane_b32 v255, s92, 15")
    a("s_lshl_b32 s92, s2, 3")
    a("s_add_u32 s92, s92, s3")
    a("s_lshl_b32 s92, s92, 7")
    a("s_add_u32 s92, s92, %d", WS_ST)
    a("v_mbcnt_lo_u32_b32 v254, -1, 0")
    a("v_mbcnt_hi_u32_b32 v254, -1, v254")
    a("v_lshlrev_b32 v253, 2, v254")
    a("s_mov_b64 exec, 0xffffffff")
    a("buffer_store_dword v255, v253, %s, s92 offen", sr(SWS, 4))

def cmul(d, x, y, plain):
    if plain:
        return ["v_mul_f32 v%d, v%d, v%d" % (d, x, y), "v_mul_f32 v%d, v%d, v%d" % (d + 1, x + 1, y),
                "v_fma_f32 v%d, -v%d, v%d, v%d" % (d, x + 1, y + 1, d), "v_fmac_f32 v%d, v%d, v%d" % (d + 1, x, y + 1)]
    return ["v_pk_mul_f32 %s, %s, %s op_sel_hi:[1,0]" % (vr(d, 2), vr(x, 2), vr(y, 2)),
            "v_pk_fma_f32 %s, %s, %s, %s op_sel:[1,1,0] op_sel_hi:[0,1,1] neg_lo:[1,0,0]" % (vr(d, 2), vr(x, 2), vr(y, 2), vr(d, 2))]
def il(x, y):
    o = []
    for i in range(max(len(x), len(y))):
        if i < len(x): o.append(x[i])
        if i < len(y): o.append(y[i])
    return o

VH = 240
VWD = 241
VR0 = 242
VSY = 243
VN = 250
PVA, PVB, PVC, PVY = 2, 3, 4, 5
KA, KBa, KW = 152, 153, 154
VZ = 235
KB = 160
KP = 204
KF = 160
KD = 236
VUL = 244

def kgen_setup():
    a("s_lshr_b32 s10, s3, 2")
    a("s_lshl_b32 s11, s2, 1")
    a("s_add_u32 s11, s11, s10")
    a("s_and_b32 s12, s3, 1")
    a("s_lshl_b32 s13, s11, 8")
    a("s_lshl_b32 s12, s12, 7")
    a("s_add_u32 s13, s13, s12")
    a("v_lshl_add_u32 v%d, v1, 1, s13", KB + 8)
    a("s_lshl_b32 s11, s11, 1")
    a("v_mov_b32 v%d, s11", KB + 9)
    for i in range(7): a("v_mov_b32 v%d, 0", KB + i)
    a("s_bitcmp1_b32 s3, 1")
    a("s_cselect_b64 s[14:15], -1, 0")
def kgen_loads():
    a("global_load_short_d16_hi v%d, v%d, %s", KB + 6, KB + 9, sr(P_LDT, 2))
    for i, p in enumerate([P_ARE, P_AIM, P_BRE, P_BIM, P_CRE, P_CIM]):
        a("global_load_short_d16_hi v%d, v%d, %s", KB + i, KB + 8, sr(p, 2))
    return 7
def rowpos(m): return 16 + (2 * m if m <= 7 else 2 * (m - 8) + 1)
def kgen_valu(plain_tail):
    L = []
    A_, B_, BR, BI, CR, CI, LD, T0, T1, T2 = [KB + i for i in range(10)]
    W, E1, E2, E4, E8, E128, E256, E512, P, X0, X1, R0, R1, RB, Y0, Z0 = [KB + 10 + 2 * i for i in range(16)]
    L.append("v_mul_f32 v%d, 0x3fb8aa3b, v%d" % (T0, LD))
    L.append("v_mov_b32 v%d, 0x3fb8aa3b" % T2)
    L.append("v_fma_f32 v%d, v%d, v%d, -v%d" % (T1, LD, T2, T0))
    L.append("v_fmac_f32 v%d, 0x32a57060, v%d" % (T1, LD))
    L.append("v_exp_f32 v%d, v%d" % (T0, T0))
    L.append("v_mul_f32 v%d, 0x3f317218, v%d" % (T1, T1))
    L.append("v_fmac_f32 v%d, v%d, v%d" % (T0, T0, T1))
    L.append("v_cvt_pk_bf16_f32 v%d, v%d, v%d" % (T0, T0, T0))
    L.append("v_and_b32 v%d, 0xffff0000, v%d" % (T0, T0))
    for r in (A_, B_, BR, BI):
        L.append("v_mul_f32 v%d, v%d, v%d" % (r, T0, r))
    L.append("v_mul_f32 v%d, 0x3fb8aa3b, v%d" % (A_, A_))
    L.append("v_mul_f32 v%d, 0.15915494, v%d" % (B_, B_))
    o1 = ["v_exp_f32 v%d, v%d" % (T0, A_), "v_fract_f32 v%d, v%d" % (T1, B_),
          "v_cos_f32 v%d, v%d" % (E1, T1), "v_sin_f32 v%d, v%d" % (E1 + 1, T1),
          "v_mul_f32 v%d, v%d, v%d" % (E1, T0, E1), "v_mul_f32 v%d, v%d, v%d" % (E1 + 1, T0, E1 + 1)]
    o2 = ["v_mul_f32 v%d, 0x43000000, v%d" % (T2, A_), "v_mul_f32 v%d, 0x43000000, v%d" % (LD, B_),
          "v_exp_f32 v%d, v%d" % (T2, T2), "v_fract_f32 v%d, v%d" % (LD, LD),
          "v_cos_f32 v%d, v%d" % (E128, LD), "v_sin_f32 v%d, v%d" % (E128 + 1, LD),
          "v_mul_f32 v%d, v%d, v%d" % (E128, T2, E128), "v_mul_f32 v%d, v%d, v%d" % (E128 + 1, T2, E128 + 1)]
    L += il(o2, o1 + cmul(W, CR, BR, False))
    L += il(cmul(E2, E1, E1, False) + cmul(E4, E2, E2, False) + cmul(E8, E4, E4, False),
            cmul(E256, E128, E128, False) + cmul(E512, E256, E256, False))
    L.append("v_cndmask_b32 v%d, v%d, v%d, s[14:15]" % (P, E1, E2))
    L.append("v_cndmask_b32 v%d, v%d, v%d, s[14:15]" % (P + 1, E1 + 1, E2 + 1))
    L.append("v_cndmask_b32 v%d, 1.0, v%d, s[14:15]" % (X0, E128))
    L.append("v_cndmask_b32 v%d, 0, v%d, s[14:15]" % (X0 + 1, E128 + 1))
    L.append("v_cndmask_b32 v%d, 1.0, v%d, s[14:15]" % (E256, E256))
    L.append("v_cndmask_b32 v%d, 0, v%d, s[14:15]" % (E256 + 1, E256 + 1))
    L += cmul(RB, W, E256, False)
    rows = [(None, RB, None)]
    cur = RB
    for j in range(1, 8):
        d = R0 if j % 2 else R1
        rows.append((d, cur, P)); cur = d
    Z2 = Y0
    rows += [(Y0, RB, E512), (R1, Y0, E4), (R0, Y0, E8), (Z0, Y0, E512), (R1, Z0, E8), (Z2, Z0, E512), (R0, Z2, E8)]
    cols = [(None, X0, None)]
    cur = X0
    for j in range(1, 16):
        d = X1 if j % 2 else X0
        cols.append((d, cur, E8)); cur = d
    LC, LR = [], []
    for j, (d, s, m) in enumerate(cols):
        if d is not None: LC += cmul(d, s, m, plain_tail)
        x = d if d is not None else s
        LC.append("v_cvt_pk_bf16_f32 v%d, v%d, v%d" % (KP + j, x, x + 1))
    for j, (d, s, m) in enumerate(rows):
        if d is not None: LR += cmul(d, s, m, plain_tail)
        x = d if d is not None else s
        LR.append("v_cvt_pk_bf16_f32 v%d, v%d, -v%d" % (KP + rowpos(j), x, x + 1))
    return L, il(LC, LR)
def kgen_writes():
    return ["ds_write_addtid_b32 v%d offset:%d" % (KP + j, L_TAB + j * TP) for j in range(31)]

def later_addrs(T0, T1, T2):
    a("s_lshr_b32 s10, s3, 1")
    a("s_mul_i32 s10, s10, %d", TPIECE)
    a("s_and_b32 s11, s3, 1")
    a("s_lshl_b32 s11, s11, 8")
    a("s_add_u32 s%d, s10, s11", S_TM0)
    a("s_add_u32 s10, s10, %d", L_TAB)
    a("v_bfe_u32 v%d, v1, 4, 1", T1)
    a("v_lshlrev_b32 v%d, 8, v%d", T1, T1)
    a("v_lshrrev_b32 v%d, 5, v1", T2)
    a("v_lshl_add_u32 v%d, v%d, 7, v%d", T1, T2, T1)
    a("v_and_b32 v%d, 15, v1", T0)
    a("v_mul_u32_u24 v%d, %d, v%d", T2, TP, T0)
    a("v_add3_u32 v%d, v%d, v%d, s10", KBa, T2, T1)
    def lut(v): return sum(x << (4 * i) for i, x in enumerate(v))
    m0 = [0, 1, 2, 3] + [0, 0, 1, 2] + [2, 2, 3, 4] + [4, 5, 6, 7]; h0 = 0x0ff0
    m1 = [8, 9, 10, 10] + [8, 9, 10, 10] + [11, 12, 13, 14] + [11, 12, 13, 14]; h1 = 0xf0f0
    p0 = [rowpos(m) - 16 for m in m0]; p1 = [rowpos(m) - 16 for m in m1]
    a("s_bitcmp1_b32 s3, 0")
    a("s_mov_b32 s11, 0x%x", lut(p0[:8]))
    a("s_cmov_b32 s11, 0x%x", lut(p1[:8]))
    a("s_mov_b32 s12, 0x%x", lut(p0[8:]))
    a("s_cmov_b32 s12, 0x%x", lut(p1[8:]))
    a("s_mov_b32 s13, 0x%x", h0)
    a("s_cmov_b32 s13, 0x%x", h1)
    a("v_cmp_lt_u32 vcc, 7, v%d", T0)
    a("v_mov_b32 v%d, s11", KA)
    a("v_mov_b32 v%d, s12", T2)
    a("v_cndmask_b32 v%d, v%d, v%d, vcc", KA, KA, T2)
    a("v_and_b32 v%d, 7, v1", T2)
    a("v_lshlrev_b32 v%d, 2, v%d", T2, T2)
    a("v_bfe_u32 v%d, v%d, v%d, 4", KA, KA, T2)
    a("v_bfe_u32 v%d, s13, v%d, 1", T2, T0)
    a("v_mad_u32_u24 v%d, v%d, 31, v%d", KA, T2, KA)
    a("v_mul_u32_u24 v%d, %d, v%d", KA, TP, KA)
    a("s_lshr_b32 s10, s3, 2")
    a("s_mul_i32 s11, s10, %d", 2 * TPIECE)
    a("s_add_u32 s11, s11, %d", L_TAB + 16 * TP)
    a("v_add3_u32 v%d, v%d, v%d, s11", KA, KA, T1)
    a("s_mul_i32 s10, s10, %d", KCH)
    a("s_and_b32 s11, s3, 2")
    a("s_lshl_b32 s11, s11, 7")
    a("s_add_u32 s10, s10, s11")
    a("s_add_u32 s10, s10, %d", L_K + 64)
    a("s_bitcmp1_b32 s3, 0")
    a("s_mov_b32 s11, 0x%x", 0 | (64 << 8) | (65 << 16) | (1 << 24))
    a("s_cmov_b32 s11, 0x%x", 0 | (64 << 8) | (128 << 16) | (192 << 24))
    a("s_cselect_b32 s12, 1024, 0")
    a("s_add_u32 s10, s10, s12")
    a("v_lshrrev_b32 v%d, 4, v1", T1)
    a("v_lshlrev_b32 v%d, 3, v%d", T1, T1)
    a("v_bfe_u32 v%d, s11, v%d, 8", T1, T1)
    a("v_lshlrev_b32 v%d, 4, v%d", T0, T0)
    a("v_lshl_add_u32 v%d, v%d, 3, v%d", T0, T1, T0)
    a("v_add_u32 v%d, s10, v%d", KW, T0)
def later_addrs2(T0, T1, T2):
    a("s_bfe_u32 s10, s3, 0x10001")
    a("v_lshrrev_b32 v%d, 5, v1", T0)
    a("v_lshlrev_b32 v%d, 6, v%d", PVA, T0)
    a("v_and_b32 v%d, 31, v1", T1)
    a("v_lshlrev_b32 v%d, 4, v%d", PVB, T1)
    a("v_sub_u32 v%d, v%d, v%d", PVB, PVB, PVA)
    a("v_and_b32 v%d, 1, v1", T2)
    a("v_lshl_add_u32 v%d, v%d, 5, v%d", PVA, T2, PVA)
    a("v_lshrrev_b32 v%d, 2, v%d", T1, T1)
    a("v_lshl_add_u32 v%d, v%d, 1, v%d", T1, T1, T0)
    a("v_lshlrev_b32 v%d, 5, v%d", PVY, T1)
    a("v_lshl_add_u32 v%d, v%d, 4, v%d", PVY, T2, PVY)
    a("s_mul_i32 s11, s10, %d", CYCH)
    a("s_add_u32 s11, s11, %d", L_CY)
    a("v_lshl_add_u32 v%d, v%d, 4, s11", PVC, T1)
    a("v_bfe_u32 v%d, v1, 4, 1", T2)
    a("v_lshl_add_u32 v%d, v%d, 4, v%d", PVA, T2, PVA)
    a("v_bfe_u32 v%d, v1, 1, 1", T2)
    a("v_lshl_add_u32 v%d, v%d, 3, v%d", PVA, T2, PVA)
    a("v_bfe_u32 v%d, v1, 2, 2", T2)
    a("v_lshlrev_b32 v%d, 3, v%d", T2, T2)
    a("v_sub_u32 v%d, v%d, v%d", PVA, PVA, T2)
    a("s_mul_i32 s11, s10, %d", KCH)
    a("s_add_u32 s11, s11, %d", L_K + 32)
    a("v_add_u32 v%d, s11, v%d", PVA, PVA)
    a("s_mul_i32 s11, s10, %d", UCH)
    a("s_add_u32 s11, s11, %d", L_U + 512 - 384)
    a("v_add_u32 v%d, s11, v%d", PVB, PVB)
    a("s_lshl_b32 s11, s2, 1")
    a("s_add_u32 s11, s11, s10")
    a("s_lshl_b32 s11, s11, 12")
    a("s_add_u32 s%d, s11, %d", S_YB, WS_Y)
def later_addrs3(T0, T1, T2):
    if opt("b84", 1):
        a("s_and_b32 s%d, s4, 6", S_TB)
        a("s_lshl_b32 s%d, s%d, 2", S_TB, S_TB)
        a("s_and_b32 s10, s5, 7")
        a("s_add_u32 s%d, s%d, s10", S_TB, S_TB)
        a("s_and_b32 s%d, s4, 1", S_DB)
        a("s_lshl_b32 s%d, s%d, 2", S_DB, S_DB)
        a("s_lshr_b32 s10, s5, 3")
        a("s_add_u32 s%d, s%d, s10", S_DB, S_DB)
    else:
        a("s_lshl_b32 s%d, s4, 2", S_TB)
        a("s_and_b32 s10, s5, 3")
        a("s_add_u32 s%d, s%d, s10", S_TB, S_TB)
        a("s_lshr_b32 s%d, s5, 2", S_DB)
    a("s_lshr_b32 s%d, s3, 2", S_KH)
    a("s_and_b32 s%d, s3, 3", S_TQ)
    a("s_lshl_b32 s10, s%d, 1", S_TB)
    a("s_and_b32 s13, s3, 1")
    a("s_add_u32 s10, s10, s13")
    a("s_mul_i32 s11, s10, 112")
    a("s_lshr_b32 s12, s3, 1")
    a("s_mul_i32 s%d, s12, %d", S_W0S, 448 * 1024)
    a("s_lshl_b32 s13, s13, 15")
    a("s_add_u32 s%d, s%d, s13", S_W0S, S_W0S)
    a("s_mul_i32 s13, s12, 28")
    a("s_add_u32 s11, s11, s13")
    a("s_lshl_b32 s%d, s11, 10", S_HB)
    a("s_lshl_b32 s%d, s10, 7", S_GOFF)
    a("s_add_u32 s%d, s%d, %d", S_GOFF, S_GOFF, WS_G)
    a("s_lshl_b32 s10, s10, 15")
    a("s_lshl_b32 s11, s%d, 7", S_DB)
    a("s_lshl_b32 s12, s12, 5")
    a("s_add_u32 s%d, s11, s12", S_DOFF)
    a("s_add_u32 s%d, s10, s%d", S_OB, S_DOFF)
    a("s_mul_i32 s%d, s%d, %d", S_WSO, S_TQ, 448 * 1024)
    a("s_lshl_b32 s%d, s%d, 13", S_WLD, S_TQ)
    seq = [i % 7 for i in range(16)]
    val = sum(x << (4 * i) for i, x in enumerate(seq))
    a("s_mov_b32 s44, 0x%x", val & 0xffffffff)
    a("s_mov_b32 s45, 0x%x", val >> 32)
    if opt("rot", 4) == 1:
        a("s_lshl_b32 s10, s%d, 2", S_DB)
        a("s_lshr_b64 s[44:45], s[44:45], s10")
    if opt("rot", 4) == 4:
        a("s_and_b32 s10, s5, 7")
        a("s_lshl_b32 s10, s10, 2")
        a("s_lshr_b64 s[44:45], s[44:45], s10")
    if opt("rot", 4) == 5:
        a("s_and_b32 s10, s5, 7")
        a("s_lshr_b32 s13, s5, 3")
        a("s_lshl_b32 s13, s13, 1")
        a("s_add_u32 s10, s10, s13")
        a("s_sub_u32 s13, s10, 7")
        a("s_min_u32 s10, s10, s13")
        a("s_lshl_b32 s10, s10, 2")
        a("s_lshr_b64 s[44:45], s[44:45], s10")
    if opt("rot", 4) == 3:
        a("s_and_b32 s10, s5, 1")
        a("s_lshl_b32 s10, s10, 4")
        a("s_lshr_b64 s[44:45], s[44:45], s10")
    if opt("rot", 4) == 2:
        a("s_and_b32 s10, s5, 3")
        a("s_lshl_b32 s10, s10, 3")
        a("s_lshr_b64 s[44:45], s[44:45], s10")
    for rd in range(7):
        a("s_bfe_u32 s10, s44, 0x%x", (3 << 16) | (4 * rd))
        a("s_lshl_b32 s%d, s10, 12", S_RT + rd)
    a("v_lshlrev_b32 v%d, 4, v1", VH)
    a("v_lshrrev_b32 v%d, 3, v1", T0)
    a("v_lshlrev_b32 v%d, 10, v%d", T0, T0)
    a("v_bfe_u32 v%d, v1, 4, 1", T1)
    a("v_lshlrev_b32 v%d, 2, v%d", T1, T1)
    a("v_and_b32 v%d, 7, v1", T2)
    a("v_xor_b32 v%d, v%d, v%d", T2, T2, T1)
    a("v_lshl_add_u32 v%d, v%d, 4, v%d", T0, T2, T0)
    a("v_add_u32 v%d, s11, v%d", VWD, T0)
    a("v_lshrrev_b32 v%d, 5, v1", T0)
    a("v_bfe_u32 v%d, v1, 2, 2", T1)
    a("v_lshl_add_u32 v%d, v%d, 2, v%d", T0, T0, T1)
    a("v_lshlrev_b32 v%d, 7, v%d", T0, T0)
    a("v_bfe_u32 v%d, v1, 3, 1", T1)
    a("v_lshl_add_u32 v%d, v%d, 6, v%d", T0, T1, T0)
    a("v_bfe_u32 v%d, v1, 4, 1", T1)
    a("v_lshl_add_u32 v%d, v%d, 5, v%d", T0, T1, T0)
    a("v_and_b32 v%d, 1, v1", T1)
    a("v_lshl_add_u32 v%d, v%d, 4, v%d", T0, T1, T0)
    a("v_bfe_u32 v%d, v1, 1, 1", T1)
    a("v_lshl_add_u32 v%d, v%d, 3, v%d", T0, T1, T0)
    a("v_xor_b32 v%d, s12, v%d", T0, T0)
    a("s_lshl_b32 s12, s12, 8")
    a("v_add_u32 v%d, s12, v%d", VR0, T0)
    a("s_lshl_b32 s10, s3, 2")
    a("s_add_u32 s10, s10, %d", L_SY)
    a("v_mov_b32 v%d, s10", VSY)

def kreads():
    L = []
    for ks in range(8):
        L.append(("ds_read_b128 %s, v%d offset:%d" % (vr(KF + 8 * ks, 4), KA, ks * 16), ("k", ks)))
        L.append(("ds_read_b128 %s, v%d offset:%d" % (vr(KF + 8 * ks + 4, 4), KBa, ks * 16), ("k", ks)))
    return L
def run_kmfma(lg, fill, per):
    for ks in range(8):
        lg.need([("k", ks)])
        d = vr(KD, 4)
        a("v_mfma_f32_16x16x32_bf16 %s, %s, %s, %s", d, vr(KF + 8 * ks, 4), vr(KF + 8 * ks + 4, 4), d if ks else "0")
        for _ in range(per):
            if fill: lg.run(fill.pop(0))
    for f in fill: lg.run(f)
def kmfma_finish():
    lb = a.label("Lkm1"); le = a.label("Lkme")
    T = KF
    a("s_bitcmp1_b32 s3, 0")
    a("s_cbranch_scc1 %s", lb)
    a("v_cvt_pk_bf16_f32 v%d, v%d, v%d", T, KD, KD + 1)
    a("v_cvt_pk_bf16_f32 v%d, v%d, v%d", T + 1, KD + 2, KD + 3)
    a("ds_write_b64 v%d, %s", KW, vr(T, 2))
    a("s_branch %s", le)
    a(lb + ":")
    a("s_nop 7")
    a("s_mov_b32 s14, 0xaaaaaaaa")
    a("s_mov_b32 s15, 0xaaaaaaaa")
    a("v_cndmask_b32 v%d, v%d, v%d, s[14:15]", T + 12, KD, KD + 1)
    a("v_cndmask_b32 v%d, v%d, v%d, s[14:15]", T + 13, KD + 2, KD + 3)
    a("v_cvt_pk_bf16_f32 v%d, v%d, v%d", T, KD, KD)
    a("v_cvt_pk_bf16_f32 v%d, v%d, v%d", T + 1, KD, KD)
    a("v_cvt_pk_bf16_f32 v%d, v%d, v%d", T + 2, T + 12, KD + 1)
    a("v_cvt_pk_bf16_f32 v%d, v%d, v%d", T + 3, KD + 1, KD + 1)
    a("v_cvt_pk_bf16_f32 v%d, v%d, v%d", T + 4, KD + 2, KD + 2)
    a("v_cvt_pk_bf16_f32 v%d, v%d, v%d", T + 5, KD + 2, KD + 2)
    a("v_cvt_pk_bf16_f32 v%d, v%d, v%d", T + 6, T + 13, KD + 3)
    a("v_cvt_pk_bf16_f32 v%d, v%d, v%d", T + 7, KD + 3, KD + 3)
    a("s_mov_b64 exec, 0xffffffff")
    a("v_cvt_pk_bf16_f32 v%d, v%d, v%d", T + 1, KD, KD + 1)
    a("v_mov_b32 v%d, v%d", T + 2, T + 3)
    a("v_mov_b32 v%d, v%d", T + 3, T + 4)
    a("s_not_b64 exec, exec")
    a("ds_write_b128 v%d, %s offset:1024", KW, vr(T + 4, 4))
    a("s_mov_b64 exec, -1")
    a("ds_write_b128 v%d, %s", KW, vr(T, 4))
    a(le + ":")

def zero_pads_k():
    T = KF + 16
    a("v_mov_b32 v%d, 0", T)
    a("v_bfe_u32 v%d, v1, 4, 1", T + 1)
    a("v_and_b32 v%d, 15, v1", T + 2)
    a("v_mul_u32_u24 v%d, %d, v%d", T + 3, KCH, T + 1)
    a("v_lshl_add_u32 v%d, v%d, 2, v%d", T + 3, T + 2, T + 3)
    a("v_mul_u32_u24 v%d, %d, v%d", T + 4, CYCH, T + 1)
    a("v_lshl_add_u32 v%d, v%d, 2, v%d", T + 4, T + 2, T + 4)
    a("v_lshlrev_b32 v%d, 2, v1", T + 5)
    a("s_mov_b64 exec, 0xffffffff")
    a("ds_write_b32 v%d, v%d offset:%d", T + 3, T, L_K)
    a("ds_write_b32 v%d, v%d offset:%d", T + 4, T, L_CY)
    a("ds_write_b32 v%d, v%d offset:%d", T + 5, T, L_SY)
    a("s_mov_b64 exec, -1")
def zero_pads_u():
    T = KD
    for i in range(4): a("v_mov_b32 v%d, 0", T + i)
    a("v_and_b32 v%d, 31, v1", 233)
    a("v_lshlrev_b32 v%d, 4, v%d", 233, 233)
    a("v_lshrrev_b32 v%d, 5, v1", 234)
    a("v_mul_u32_u24 v%d, %d, v%d", 234, UCH, 234)
    a("v_add_u32 v%d, v%d, v%d", 233, 233, 234)
    a("ds_write_b128 v%d, %s offset:%d", 233, vr(T, 4), L_U)
def sig(vaddr, off):
    a("s_mov_b64 exec, 1")
    a("ds_write_b32 v%d, v6 offset:%d", vaddr, off)
    a("s_mov_b64 exec, -1")
VUL2 = 156
def u_load():
    a("v_lshlrev_b32 v%d, 5, v1", VUL + 4)
    a("s_lshl_b32 s10, s2, 13")
    a("s_lshl_b32 s11, s%d, 11", S_TQ)
    a("s_add_u32 s10, s10, s11")
    a("s_add_u32 s10, s10, %d", WS_UT)
    a("buffer_load_dwordx4 %s, v%d, %s, s10 offen sc1", vr(VUL, 4), VUL + 4, sr(SWS, 4))
    a("buffer_load_dwordx4 %s, v%d, %s, s10 offen offset:16 sc1", vr(VUL2, 4), VUL + 4, sr(SWS, 4))
def u_write():
    a("s_lshl_b32 s11, s%d, 10", S_TQ)
    a("v_add_u32 v%d, s11, v%d", VUL + 4, VH)
    a("ds_write_b128 v%d, %s offset:%d", VUL + 4, vr(VUL, 4), L_U + 512)
    a("ds_write_b128 v%d, %s offset:%d", VUL + 4, vr(VUL2, 4), L_U + UCH + 512)
def onwave(w, fn):
    lb = a.label("Low")
    a("s_cmp_lg_u32 s3, %d", w)
    a("s_cbranch_scc1 %s", lb)
    fn()
    a(lb + ":")
def role(lo, hi):
    l1 = a.label("Lr1"); l2 = a.label("Lr2")
    a("s_cmp_ge_u32 s3, 4")
    a("s_cbranch_scc1 %s", l1)
    if lo is None:
        a.lines[-1] = a.lines[-1].replace("scc1", "scc0")
        hi()
        a(l1 + ":")
        return
    if lo: lo()
    if hi:
        a("s_branch %s", l2)
        a(l1 + ":")
        hi()
        a(l2 + ":")
    else:
        a(l1 + ":")

def nonce_issue():
    a("global_load_dwordx2 %s, v%d, %s sc1", vr(VN, 2), VZ, sr(P_DBG, 2))
slow = []
def nonce_check():
    ok = a.label("Lnok"); lp = a.label("Lnlp")
    a(ok + "r:")
    a("v_readfirstlane_b32 s10, v%d", VN + 1)
    a("v_readfirstlane_b32 s%d, v%d", S_NONCE, VN)
    a("s_cmp_lg_u32 s10, 1")
    a("s_cbranch_scc1 %s", lp)
    a(ok + ":")
    def sp():
        a(lp + ":")
        a("s_add_u32 s%d, s%d, 1", S_SPIN, S_SPIN)
        a("s_cmp_ge_u32 s%d, %d", S_SPIN, SPINMAX)
        a("s_cbranch_scc1 %s", ok)
        a("s_sleep 2")
        a("global_load_dwordx2 %s, v%d, %s sc1", vr(VN, 2), VZ, sr(P_DBG, 2))
        a("s_waitcnt vmcnt(0)")
        a("s_branch %sr", ok)
    slow.append(sp)
def poll_issue(n):
    a("v_min_u32 v%d, %d, v1", VN + 2, n - 1)
    a("v_lshlrev_b32 v%d, 2, v%d", VN + 2, VN + 2)
    a("buffer_load_dword v%d, v%d, %s, s%d offen sc1", VN - 1, VN + 2, sr(SWS, 4), S_PB)
def poll_check(sleep=2):
    ok = a.label("Lpok"); lp = a.label("Lplp")
    a(ok + "r:")
    a("v_cmp_ne_u32 vcc, s%d, v%d", S_NONCE, VN - 1)
    a("s_cmp_lg_u64 vcc, 0")
    a("s_cbranch_scc1 %s", lp)
    a(ok + ":")
    def sp():
        a(lp + ":")
        a("s_add_u32 s%d, s%d, 1", S_SPIN, S_SPIN)
        a("s_cmp_ge_u32 s%d, %d", S_SPIN, SPINMAX)
        a("s_cbranch_scc1 %s", ok)
        if sleep: a("s_sleep %d", sleep)
        a("buffer_load_dword v%d, v%d, %s, s%d offen sc1", VN - 1, VN + 2, sr(SWS, 4), S_PB)
        a("s_waitcnt vmcnt(0)")
        a("s_branch %sr", ok)
    slow.append(sp)
def flag_store(sbase):
    if opt("sflag", 2) & 1:
        a("s_mov_b32 s11, s%d", S_NONCE)
        a("s_buffer_atomic_swap s11, %s, %s", sr(SWS, 4), sbase)
        return
    a("v_mov_b32 v%d, 0", VN)
    a("v_mov_b32 v%d, s%d", VN + 1, S_NONCE)
    a("s_mov_b64 exec, 1")
    a("buffer_store_dword v%d, v%d, %s, %s offen sc1", VN + 1, VN, sr(SWS, 4), sbase)
    a("s_mov_b64 exec, -1")
def lds_wait(vaddr, off, vtmp, sleep=1):
    lp = a.label("Llw"); ok = a.label("Llok")
    a(lp + ":")
    a("ds_read_b32 v%d, v%d offset:%d", vtmp, vaddr, off)
    a("s_add_u32 s%d, s%d, 1", S_SPIN, S_SPIN)
    a("s_waitcnt lgkmcnt(0)")
    a("v_cmp_eq_u32 vcc, 0, v%d", vtmp)
    a("s_cmp_eq_u64 vcc, 0")
    a("s_cbranch_scc1 %s", ok)
    if sleep: a("s_sleep %d", sleep)
    a("s_cmp_lt_u32 s%d, %d", S_SPIN, SPINMAX * 16)
    a("s_cbranch_scc1 %s", lp)
    a(ok + ":")

a("s_cmp_ge_u32 s2, 256")
a("s_cbranch_scc1 L_end")
if STAMP:
    a("s_memrealtime s[96:97]")
    a("s_memtime s[98:99]")
a("s_load_dwordx16 s[16:31], s[0:1], 0")
a("s_load_dwordx16 s[32:47], s[0:1], 64")
a("s_load_dwordx2 s[48:49], s[0:1], 128")
a("v_lshrrev_b32 v2, 6, v0")
a("s_lshr_b32 s5, s2, 3")
if opt("cpf", 1):
    a("s_getpc_b64 s[10:11]")
    a("L_pc:")
    a("s_lshl_b32 s12, s5, 10")
    a("v_lshl_add_u32 v3, v2, 7, s12")
    a("v_and_b32 v4, 1, v0")
    a("v_lshl_add_u32 v3, v4, 6, v3")
    a("v_min_u32 v3, L_end-L_pc, v3")
    a("global_load_dword v19, v3, s[10:11]")
a("v_and_b32 v1, 63, v0")
a("v_readfirstlane_b32 s3, v2")
a("s_and_b32 s4, s2, 7")
kgen_setup()
PRE_WAIT = opt("prewait", 0)
if not PRE_WAIT:
    a("s_waitcnt lgkmcnt(0)")
    kgen_loads()
a("s_mov_b32 s%d, 0", S_SPIN)
a("v_mov_b32 v%d, 0", VZ)
a("v_mov_b32 v%d, 0", VN + 2)
if STAMP: a("v_mov_b32 v255, 0")
a("s_lshr_b32 s6, s4, 1")
a("s_lshl_b32 s6, s6, 2")
a("s_and_b32 s7, s5, 3")
a("s_add_u32 s6, s6, s7")
a("s_and_b32 s7, s4, 1")
a("s_mul_i32 s7, s7, 7")
a("s_lshr_b32 s8, s5, 2")
a("s_add_u32 s7, s7, s8")
a("s_sub_u32 s7, s7, 1")
a("s_and_b32 s8, s3, 1")
a("s_lshr_b32 s9, s3, 1")
VX0, VX1, VW0, VW1 = 4, 5, 6, 7
VXR = 8
VWA, VWB = 12, 13
T0, T1, T2, T3 = 14, 15, 16, 17
a("s_lshl_b32 s10, s6, 7")
a("s_lshl_b32 s11, s3, 4")
a("s_add_u32 s10, s10, s11")
a("s_lshl_b32 s10, s10, 10")
a("v_lshrrev_b32 v%d, 3, v1", T0)
a("v_lshlrev_b32 v%d, 10, v%d", T0, T0)
a("v_lshrrev_b32 v%d, 4, v1", T1)
a("v_and_b32 v%d, 7, v1", T2)
a("v_xor_b32 v%d, v%d, v%d", T2, T2, T1)
a("v_lshl_add_u32 v%d, v%d, 4, v%d", T0, T2, T0)
a("v_add_u32 v%d, s10, v%d", VX0, T0)
a("v_xor_b32 v%d, 64, v%d", VX1, VX0)
a("v_add_u32 v%d, 0x2000, v%d", VX1, VX1)
a("s_and_b32 s12, s3, 3")
a("s_mul_i32 s10, s12, %d", 4 * 3584)
a("s_lshl_b32 s11, s7, 8")
a("s_add_u32 s10, s10, s11")
a("v_mul_u32_u24 v%d, 3584, v%d", T0, T1)
if G16:
    a("s_and_b32 s11, s3, 2")
    a("s_lshl_b32 s11, s11, 2")
    a("v_lshl_or_b32 v%d, v%d, 1, s11", T2, T1)
else:
    a("v_lshlrev_b32 v%d, 2, v%d", T2, T1)
a("v_and_b32 v%d, 15, v1", T3)
a("v_xor_b32 v%d, v%d, v%d", T2, T2, T3)
a("v_lshl_add_u32 v%d, v%d, 4, v%d", T0, T2, T0)
a("v_add_u32 v%d, s10, v%d", VW0, T0)
S_RO, S_LO = 60, 80
S_LO = 20
for j in range(4):
    a("s_add_u32 s10, s5, %d", j if opt("share", 1) else 0) if opt("share", 1) else a("s_mov_b32 s10, %d", j)
    a("s_and_b32 s10, s10, 3")
    a("s_mul_i32 s%d, s10, %d", S_RO + j, 16 * 3584)
a("s_lshl_b32 s%d, s3, 11", S_W2K)
CC = opt("cc", 8)
S_KO = 99 if not STAMP else 93
if CC < 8:
    NR = 8 - CC
    a("s_and_b32 s10, s5, 3")
    a("s_mul_i32 s10, s10, %d", opt("rm", 2))
    a("s_lshr_b32 s11, s5, 2")
    a("s_add_u32 s10, s10, s11")
    a("s_mul_i32 s11, s10, %d", (65536 + NR - 1) // NR)
    a("s_lshr_b32 s11, s11, 16")
    a("s_mul_i32 s11, s11, %d", NR)
    a("s_sub_u32 s10, s10, s11")
    seq = [CC + (i % NR) for i in range(16)]
    val = sum(x << (4 * i) for i, x in enumerate(seq))
    a("s_mov_b32 s12, 0x%x", val & 0xffffffff)
    a("s_mov_b32 s13, 0x%x", val >> 32)
    a("s_lshl_b32 s10, s10, 2")
    a("s_lshr_b64 s[12:13], s[12:13], s10")
    a("s_lshl_b32 s12, s12, %d", 4 * CC) if CC else None
    a("s_or_b32 s%d, s12, 0x%x", S_KO, sum(i << (4 * i) for i in range(CC)))
else:
    a("s_mov_b32 s%d, 0x76543210", S_KO)
a("s_and_b32 s10, s4, %d", opt("krot", 6))
a("s_mul_i32 s10, s10, 0x11111111")
a("s_add_u32 s%d, s%d, s10", S_KO, S_KO)
for r, n in ((SX, 2048 * 1024), (SG, 512 * 3584), (SWS, WS_BYTES), (SW, 1792 * 1024), (SO, 2048 * 1024)):
    a("s_mov_b32 s%d, 0x%x", r + 2, n)
    a("s_mov_b32 s%d, 0x20000", r + 3)
a("s_cmp_lt_u32 s5, 4")
a("s_cselect_b32 s%d, 1, 0", S_ISAUX)
if PRE_WAIT:
    a("s_waitcnt lgkmcnt(0)")
    kgen_loads()
def srd_base(r, p):
    a("s_mov_b32 s%d, s%d", r, p)
    a("s_and_b32 s%d, s%d, 0xffff", r + 1, p + 1)
srd_base(SX, P_U)
a("s_mov_b32 s%d, s%d", S_KR, S_KO)
a("s_cmp_lg_u32 s%d, 0", S_ISAUX)
a("s_cbranch_scc1 L_aux")

vm = []
def vmwait(tags):
    idx = [i for i, t in enumerate(vm) if t in tags]
    return len(vm) - 1 - max(idx)
def dma1(stage, j, m0r=None):
    slot = stage % 3
    if j == 0 or (j == 3 and stage < 2):
        a("s_bfe_u32 s%d, s%d, 0x%x", S_T, S_KR, (3 << 16) | (4 * stage))
        a("s_mul_i32 s%d, s%d, %d", S_T2, S_T, 64 * 3584)
        a("s_lshl_b32 s%d, s%d, 7", S_T, S_T)
    if j in (1, 2):
        a("s_add_u32 m0, s%d, %d", S_W2K, XB[slot] * BLK + (j - 1) * 1024)
        a("buffer_load_dwordx4 v%d, %s, s%d offen lds", VX0 + j - 1, sr(SX, 4), S_T)
    else:
        p = 0 if j == 0 else j - 2
        a("s_add_u32 m0, s%d, %d", S_LO + p, GB[slot] * BLK)
        a("s_add_u32 s%d, s%d, s%d", S_T3, S_T2, S_RO + p)
        a("buffer_load_dwordx4 v%d, %s, s%d offen lds", VW0, sr(SG, 4), S_T3)
    if m0r is not None: a("s_mov_b32 m0, s%d", m0r)
    vm.append(("G1", stage))
S_T3 = 24
vm += [("KP", 0)] * 7
a("s_cmp_ge_u32 s3, 4")
a("s_cselect_b32 s%d, s%d, s%d", SG, P_WU, P_WG)
a("s_cselect_b32 s%d, s%d, s%d", SG + 1, P_WU + 1, P_WG + 1)
a("s_and_b32 s%d, s%d, 0xffff", SG + 1, SG + 1)
a("s_lshr_b32 s10, s3, 2")
a("s_lshl_b32 s10, s10, 14")
a("s_and_b32 s11, s3, 3")
a("s_lshl_b32 s11, s11, 10")
a("s_add_u32 s10, s10, s11")
for j in range(4):
    a("s_add_u32 s11, s5, %d", j) if opt("share", 1) else a("s_mov_b32 s11, %d", j)
    a("s_and_b32 s11, s11, 3")
    a("s_lshl_b32 s11, s11, 12")
    a("s_add_u32 s%d, s10, s11", S_LO + j)
    if j == 0: dma1(0, 0); dma1(0, 1); dma1(0, 2)
stamp(11)
def common_srds():
    srd_base(SWS, P_WS); srd_base(SW, P_WD); srd_base(SO, P_OUT)
later_addrs(T0, T1, T2)
for j in range(3): dma1(1, j)
def g1_read_addrs():
    t0, t1, t2 = 18, 19, 20
    a("v_and_b32 v%d, 15, v1", t0)
    a("v_lshrrev_b32 v%d, 4, v1", t1)
    a("v_bfe_u32 v%d, v1, 1, 3", t2)
    a("v_xor_b32 v%d, v%d, v%d", t2, t2, t1)
    a("v_lshlrev_b32 v%d, 7, v%d", t0, t0)
    a("v_lshl_add_u32 v%d, v%d, 4, v%d", t0, t2, t0)
    a("s_lshl_b32 s10, s8, 13")
    a("v_add_u32 v%d, s10, v%d", VXR, t0)
    a("v_xor_b32 v%d, 64, v%d", VXR + 1, VXR)
    a("v_bfe_u32 v%d, v1, 2, 2", t0)
    a("v_lshl_add_u32 v%d, v%d, 3, v%d", t0, t1, t0)
    a("v_lshlrev_b32 v%d, 8, v%d", t0, t0)
    a("v_bfe_u32 v%d, v1, 2, 3", t2)
    a("s_and_b32 s10, s3, 2")
    a("s_lshl_b32 s10, s10, 1")
    a("v_xor_b32 v%d, s10, v%d", t2, t2)
    a("v_lshl_add_u32 v%d, v%d, 5, v%d", t0, t2, t0)
    a("v_and_b32 v%d, 3, v1", t2)
    a("v_lshl_add_u32 v%d, v%d, 3, v%d", t0, t2, t0)
    a("v_add_u32 v10, %d, v%d", 4 * BLK, t0)
    for m in range(1, 4): a("v_xor_b32 v%d, %d, v10", 10 + m, m << 5)
    for m in range(4): a("v_add_u32 v%d, %d, v%d", 14 + m, 4 * BLK, 10 + m)
def late_setup(comp, T0, T1, T2):
    common_srds()
    if comp:
        a("s_lshl_b32 s10, s6, 2")
        a("s_lshl_b32 s11, s8, 1")
        a("s_add_u32 s10, s10, s11")
        a("s_mul_i32 s10, s10, 112")
        a("s_lshl_b32 s11, s7, 3")
        a("s_add_u32 s10, s10, s11")
        a("s_lshl_b32 s11, s9, 2")
        a("s_add_u32 s10, s10, s11")
        a("s_lshl_b32 s%d, s10, 10", S_HST)
        a("s_mul_i32 s10, s6, %d", FSTR * (16 if PCF else 1))
        a("s_lshl_b32 s11, s7, 2")
        a("s_add_u32 s10, s10, s11")
        a("s_add_u32 s%d, s10, %d", S_FH, F_H2)
    later_addrs3(T0, T1, T2)
FX = 20
FA = 52
NAR = 10
ACC = 92
AORD = [(gu, m) for m in range(4) for gu in range(2)]
def xreads(step):
    st, ks = step // 2, step % 2
    return [("ds_read_b128 %s, v%d offset:%d" % (vr(FX + (step % 2) * 16 + 4 * tt, 4), VXR + ks, XB[st % 3] * BLK + tt * 2048), (step, "x", tt)) for tt in range(4)]
def areads(n):
    step, i = n // 8, n % 8
    st, ks = step // 2, step % 2
    gu, m = AORD[i]
    blk = GB[st % 3] + gu
    reg, rel = (10, blk - 4) if blk < 8 else (14, blk - 8)
    return [("ds_read_b64_tr_b16 %s, v%d offset:%d" % (vr(FA + 4 * (n % NAR) + 2 * hf, 2), reg + m, rel * BLK + ks * 8192 + hf * 1024), ("a", n)) for hf in range(2)]
def kgen_all(dmas):
    khead, ktail = kgen_valu(False)
    for i in khead: a(i)
    if opt("diag1", 0): stamp(7, True)
    a("s_mov_b32 m0, s%d", S_TM0)
    wr = {w_.split()[1]: w_ for w_ in kgen_writes()}
    q = []
    n = len(ktail); k = 0
    for n_, i in enumerate(ktail):
        a(i)
        if q and n_ % 1 == 0 and len(q) > 1: a(q.pop(0))
        if i.startswith("v_cvt"): q.append(wr[i.split()[1].rstrip(",")])
        if dmas and n_ >= opt("d1start", 40) and (n_ - opt("d1start", 40)) % opt("d1step", 20) == 0: dmas.pop(0)()
    for w_ in q: a(w_)
    for d in dmas: d()
def touch(stage):
    a("s_bfe_u32 s10, s%d, 0x%x", S_KR, (3 << 16) | (4 * stage))
    a("s_mul_i32 s10, s10, %d", 64 * 3584)
    a("s_add_u32 s10, s10, s%d", S_RO)
    a("buffer_load_dwordx4 v[52:55], v%d, %s, s10 offen", VW0, sr(SG, 4))
    vm.append(("T", 0))
if opt("stub", 1):
    for k_ in (0, 2):
        a("s_cmp_eq_u32 s3, %d", k_)
        a("s_cbranch_scc1 L_st%d", k_)
a("L_stret:")
a("s_waitcnt vmcnt(%d)", vmwait([("KP", 0)]))
stamp(0)
kgen_all([(lambda j=j: dma1(0, j, S_TM0)) for j in range(3, 6)])
stamp(14)
a("s_waitcnt lgkmcnt(0)")
a("s_barrier")
stamp(12)
lg = Lg()
for r in kreads(): lg.issue(*r)
a.srd(28, P_WG, 512 * 3584)
def ld_setup():
    a("v_subrev_u32 v8, 0x10000, v%d", VX0)
    a("v_subrev_u32 v9, 0x10000, v%d", VX1)
if opt("s1early", 1):
    for j in range(3, 6): dma1(1, j)
role(g1_read_addrs, ld_setup)
run_kmfma(lg, [], 0)
if not opt("s1early", 1):
    for j in range(3, 6): dma1(1, j)
a("s_waitcnt vmcnt(%d)", vmwait([("G1", 0)]))
a("s_barrier")
stamp(1)
class Raw:
    def __init__(self, f): self.f = f
a("s_cmp_ge_u32 s3, 4")
a("s_cbranch_scc1 L_load")
WST = 144
WSTO = {5: 0, 4: 32, 6: 64}
W4T = opt("w4t", 0)
W2T = opt("w2t", 0)
W1T = opt("w1t", 1)
def stage_w(rd, i0=0, n=8):
    a("s_lshl_b32 s13, s%d, 4", S_RT + rd)
    a("s_add_u32 s13, s13, s%d", S_WSO)
    if i0: a("s_add_u32 s13, s13, %d", i0 * 8192)
    for i in range(i0, i0 + n):
        a("buffer_load_dwordx4 %s, v%d, %s, s13 offen", vr(WST + WSTO[rd] + 4 * i, 4), VWD, sr(SW, 4))
        if i < i0 + n - 1: a("s_add_u32 s13, s13, 8192")
EUD = 244
def eops_load(EU=56, ED=60, t1=64, t2=65, t3=66):
    a("v_and_b32 v%d, 31, v1", t1)
    a("v_lshrrev_b32 v%d, 5, v1", t2)
    a("v_lshlrev_b32 v%d, 4, v%d", t3, t2)
    a("v_lshl_add_u32 v%d, v%d, 10, v%d", t1, t1, t3)
    a("buffer_load_dwordx4 %s, v%d, %s, s%d offen", vr(EU, 4), t1, sr(SX, 4), S_OB)
    a("v_add_u32 v%d, s%d, v%d", t3, S_DOFF, t3)
    a("global_load_dwordx4 %s, v%d, %s", vr(ED, 4), t3, sr(P_DSK, 2))
def eops_calc(EU=56, ED=60, t1=64, t2=65, t3=66):
    for j in range(4):
        a("v_lshlrev_b32 v%d, 16, v%d", t1, EU + j)
        a("v_lshlrev_b32 v%d, 16, v%d", t2, ED + j)
        a("v_and_b32 v%d, 0xffff0000, v%d", EU + j, EU + j)
        a("v_and_b32 v%d, 0xffff0000, v%d", ED + j, ED + j)
        a("v_mul_f32 v%d, v%d, v%d", t1, t1, t2)
        a("v_mul_f32 v%d, v%d, v%d", t2, EU + j, ED + j)
        a("v_cvt_pk_bf16_f32 v%d, v%d, v%d", EUD + j, t1, t2)
def dma_w(rd, i):
    a("s_lshl_b32 s10, s3, 12")
    a("s_add_u32 m0, s10, %d", WB[rd] * BLK + i * 1024)
    a("s_lshl_b32 s10, s%d, 4", S_RT + rd)
    a("s_add_u32 s10, s10, s%d", S_W0S)
    a("s_add_u32 s10, s10, %d", i * 8192)
    a("buffer_load_dwordx4 v%d, %s, s10 offen lds", VWD, sr(SW, 4))
    vm.append(("W0", 0))
S_PFI = 101
if opt("cprio", 2): a("s_setprio %d", opt("cprio", 2))
lg = Lg()
for r in areads(0) + xreads(0): lg.issue(*r)
for n in range(1, 8):
    for r in areads(n): lg.issue(*r)
    if n == 3: kmfma_finish()
a("s_waitcnt lgkmcnt(8)") if False else None
kv = a.capture(late_setup, True, 18, 19, 7)
ECT = dict(EU=220, ED=224, t1=228, t2=229, t3=230)
def epilogue(p):
    for tt in range(4):
        dst = (FX if p == 0 else FX + 16) + 4 * tt
        for m in (2 * p, 2 * p + 1):
            g = ACC + (m * 4 + tt) * 4; u = ACC + ((4 + m) * 4 + tt) * 4
            if (opt("eplain", 3) >> p) & 1:
                for q_ in range(4): a("v_mul_f32 v%d, v%d, v%d", g + q_, g + q_, u + q_)
            else:
                for q_ in range(2): a("v_pk_mul_f32 %s, %s, %s", vr(g + 2 * q_, 2), vr(g + 2 * q_, 2), vr(u + 2 * q_, 2))
        for m in (2 * p, 2 * p + 1):
            g = ACC + (m * 4 + tt) * 4
            for q_ in range(2): a("v_cvt_pk_bf16_f32 v%d, v%d, v%d", dst + 2 * (m & 1) + q_, g + 2 * q_, g + 2 * q_ + 1)
        a("buffer_store_dwordx4 %s, v18, %s, s%d offen offset:%d sc1", vr(dst, 4), sr(SWS, 4), S_HST if tt < 2 else 10, 2048 * p + 256 * (tt & 1))
epi = [a.capture(epilogue, 0), a.capture(epilogue, 1)]
AHEAD = 8
for step in range(16):
    st, ks = step // 2, step % 2
    q = []
    if step < 15:
        sched = {}
        for i in range(8):
            g_ = max(0, 4 * (i - (NAR - 8)) + 3)
            sched.setdefault(g_, []).extend(areads((step + 1) * 8 + i))
        xq = xreads(step + 1)
    order = [(i, tt) for i in range(8) for tt in range(4)]
    for g, (i, tt) in enumerate(order):
        gu, m = AORD[i]
        n = step * 8 + i
        d = vr(ACC + ((gu * 4 + m) * 4 + tt) * 4, 4)
        lg.need([("a", n), (step, "x", tt)])
        a("v_mfma_f32_16x16x32_bf16 %s, %s, %s, %s", d, vr(FA + 4 * (n % NAR), 4), vr(FX + (step % 2) * 16 + 4 * tt, 4), d if step else "0")
        if step < 15: q += sched.pop(g, [])
        if step == 15 and g >= 18:
            assert not kv
            for _ in range(opt("epg", 3)):
                if epi[0]: a(epi[0].pop(0))
        if q: lg.issue(*q.pop(0))
        elif step < 15 and xq: lg.issue(*xq.pop(0))
        elif kv:
            k_ = kv.pop(0)
            k_() if callable(k_) else a(k_)
            if kv and not callable(k_) and k_.startswith("s_") and not callable(kv[0]) and opt("s2", 1): a(kv.pop(0))
    assert not q and (step == 15 or not xq)
    if ks == 0:
        a("s_waitcnt %slgkmcnt(0)", "vmcnt(0) " if st == 0 else ""); lg.drained()
        a("s_barrier")
        if opt("stg", 0): stamp([4, 5, 6, 7, 8, 10, 13, 14][st], True)
        if st == 5:
            assert not kv, len(kv)
            kv = a.capture(eops_load, *[ECT[k] for k in ("EU", "ED", "t1", "t2", "t3")])
        if st == 6:
            kv = ["s_waitcnt vmcnt(0)"] + a.capture(eops_calc, *[ECT[k] for k in ("EU", "ED", "t1", "t2", "t3")])
        if st == 7:
            kv += ["ds_read_b32 v%d, v%d offset:%d" % (VN, VZ, L_SY + 100), "v_lshrrev_b32 v18, 4, v1", "v_lshlrev_b32 v18, 9, v18",
                   "v_and_b32 v19, 15, v1", "v_lshl_add_u32 v18, v19, 4, v18", "s_add_u32 s10, s%d, %d" % (S_HST, 112 * 1024)]
assert not kv
stamp(2)
for k_ in epi[0] + epi[1]: a(k_)
a("s_waitcnt lgkmcnt(0)")
a("v_readfirstlane_b32 s%d, v%d", S_NONCE, VN)

def loader():
    SG2 = 28
    VX2 = 8
    a("L_load:")
    def stage(s_, part=3):
        slot = s_ % 3
        a("s_bfe_u32 s%d, s%d, 0x%x", S_T, S_KR, (3 << 16) | (4 * s_))
        a("s_mul_i32 s%d, s%d, %d", S_T2, S_T, 64 * 3584)
        a("s_lshl_b32 s%d, s%d, 7", S_T, S_T)
        def wp(p):
            a("s_add_u32 s%d, s%d, s%d", S_T3, S_T2, S_RO + p)
            for m in range(2):
                a("s_add_u32 m0, s%d, %d", S_LO + p, (GB[slot] - 1 + m) * BLK)
                a("buffer_load_dwordx4 v%d, %s, s%d offen lds", VW0, sr([SG2, SG][m], 4), S_T3)
                vm.append(("G1", s_))
        if part & 1: wp(0)
        for h_ in range(2 if part & 1 else 0):
            for i in range(2):
                a("s_add_u32 m0, s%d, %d", S_W2K, (XB[slot] * BLK + i * 1024 - (1 - h_) * 8192) & 0xffffffff)
                a("buffer_load_dwordx4 v%d, %s, s%d offen lds", [VX2, VX0][h_] + i, sr(SX, 4), S_T)
                vm.append(("G1", s_))
        if part & 2:
            for p in range(1, 4): wp(p)
    wl = hl_list(True)
    def wloads(n):
        for _ in range(n):
            wl.pop(0)(); vm.append(("W", 0))
    SP = opt("sp", 2)
    stage(2, 1 if SP else 3)
    kmfma_finish()
    ls = a.capture(late_setup, False, T0, T1, T2)
    for st in range(8):
        if st < 7: a("s_waitcnt vmcnt(%d) lgkmcnt(0)", vmwait([("G1", st + 1)]))
        else: a("s_waitcnt lgkmcnt(0)")
        a("s_barrier")
        if st < SP and st + 2 <= 7: stage(st + 2, 2)
        if st + 3 <= 7: stage(st + 3, 1 if st + 1 < SP else 3)
        if st == 0: onwave(4, zero_pads_k)
        if 1 <= st <= 3:
            n_ = (len(ls) + 3 - st) // (4 - st)
            for k_ in ls[:n_]: a(k_)
            ls = ls[n_:]
        if st == 4:
            later_addrs2(T0, T1, T2)
            conv_prelude()
            if UE:
                a("s_mov_b32 s%d, %d", S_PB, F_A)
                poll_issue(32); vm.append(("X", 0))
                nonce_issue(); vm.append(("X", 0))
        def ucheck():
            a("s_waitcnt vmcnt(%d)", vmwait([("X", 0)]))
            nonce_check()
            def wn():
                a("s_mov_b64 exec, 1")
                a("ds_write_b32 v%d, v%d offset:%d", VZ, VN, L_SY + 100)
                a("s_mov_b64 exec, -1")
            onwave(4, wn)
            poll_check(16)
            u_load(); vm.append(("U", 0)); vm.append(("U", 0))
        if st == 5:
            eops_load(); vm.append(("E", 0)); vm.append(("E", 0))
            onwave(5, zero_pads_u)
            if UE: ucheck()
            else:
                a("s_mov_b32 s%d, %d", S_PB, F_A)
                poll_issue(32); vm.append(("X", 0))
                nonce_issue(); vm.append(("X", 0))
            wloads(NW[1])
        if st == 6:
            if not UE: ucheck()
            else:
                a("s_waitcnt vmcnt(%d)", vmwait([("U", 0)]))
                u_write()
                eops_calc()
            wloads(NW[2])
    stamp(2)
    wloads(min(NW[3], 8))
    if not UE:
        a("s_waitcnt vmcnt(%d)", vmwait([("U", 0)]))
        u_write()
        sig(VSY, 0)
        wloads(NW[3] - min(NW[3], 8))
        eops_calc()
        a("v_and_b32 v19, 3, v1")
        a("v_lshlrev_b32 v19, 2, v19")
        lds_wait(19, L_SY + 16, 18, 0)
    if opt("hold", 0): lds_wait(7, 104, 18, 1)
UE = opt("ue", 0)
def conv_prelude():
    a("v_mov_b32 v6, 1")
    a("v_mov_b32 v7, %d", L_SY)
    a("s_lshl_b32 s10, s%d, 4", S_TQ)
    a("s_add_u32 s10, s10, %d", L_SY + 32)
    a("v_mov_b32 v108, s10")
    a("v_xor_b32 v109, 16, v108")
NW = [0, opt("nw5", 8), opt("nw6", 8), opt("nw7", 0)]
AUX0 = len(a.lines)
HIST0 = list(a.hist)
a("L_aux:")
common_srds()
a("s_lshl_b32 s6, s4, 2")
a("s_add_u32 s6, s6, s5")
PITCH = 1040
LA = 6 * BLK - 1024
LGW = 0
a("v_lshlrev_b32 v4, 4, v1")
a("v_mov_b32 v10, 0")
a("s_mov_b32 s9, %d", F_E)
a("buffer_load_dword v12, v10, %s, s9 offen sc1", sr(SWS, 4))
a("s_lshl_b32 s7, s6, 16")
a("s_lshl_b32 s8, s3, 13")
a("s_add_u32 s7, s7, s8")
a("s_mul_i32 s8, s3, %d", 8 * PITCH)
for j in range(8):
    a("s_add_u32 m0, s8, %d", LA + j * PITCH)
    a("s_add_u32 s11, s7, %d", j * 1024)
    a("buffer_load_dwordx4 v4, %s, s11 offen lds", sr(SX, 4))
a("global_load_dwordx4 v[28:31], v4, %s", sr(P_GW, 2))
a("s_or_b32 s10, s2, s3")
a("s_cmp_lg_u32 s10, 0")
a("s_cbranch_scc1 L_nononce")
a("s_mov_b32 s10, 0x9e3779b1")
a("s_waitcnt vmcnt(9)")
a("v_mul_lo_u32 v12, v12, s10")
a("v_add_u32 v12, 0x7f4a7c15, v12")
a("v_mov_b32 v13, 1")
a("s_mov_b64 exec, 1")
a("global_store_dwordx2 v10, v[12:13], %s sc1", sr(P_DBG, 2))
a("buffer_store_dword v12, v10, %s, s9 offen sc1", sr(SWS, 4))
a("s_mov_b64 exec, -1")
a("L_nononce:")
a("v_and_b32 v5, 7, v0")
a("v_lshlrev_b32 v5, 4, v5")
a("v_lshrrev_b32 v6, 4, v1")
a("v_bfe_u32 v7, v1, 2, 2")
a("v_lshl_add_u32 v7, v7, 2, v6")
a("v_mul_u32_u24 v7, %d, v7", PITCH)
a("v_and_b32 v8, 3, v1")
a("v_lshl_add_u32 v7, v8, 3, v7")
a("s_and_b32 s9, s3, 1")
a("s_mul_i32 s10, s9, %d", 32 * PITCH)
a("s_lshr_b32 s11, s3, 1")
a("s_lshl_b32 s12, s11, 8")
a("s_add_u32 s10, s10, s12")
a("s_add_u32 s10, s10, %d", LA)
a("v_add_u32 v7, s10, v7")
a("v_bfe_u32 v8, v1, 1, 3")
a("v_lshlrev_b32 v8, 13, v8")
a("v_lshl_add_u32 v8, v6, 5, v8")
a("v_and_b32 v9, 1, v1")
a("v_lshl_add_u32 v8, v9, 4, v8")
a("s_lshl_b32 s12, s11, 19")
a("s_lshl_b32 s13, s6, 1")
a("s_add_u32 s13, s13, s9")
a("s_lshl_b32 s13, s13, 7")
a("s_add_u32 s12, s12, s13")
a("s_add_u32 s12, s12, %d", WS_UT)
a("v_lshrrev_b32 v9, 3, v0")
a("v_mul_u32_u24 v10, %d, v9", PITCH)
a("v_add_u32 v10, v10, v5")
a("v_add_u32 v10, %d, v10", LA)
a("s_waitcnt vmcnt(0)")
a("ds_write_b128 v4, v[28:31] offset:%d", LGW)
a("s_waitcnt lgkmcnt(0)")
a("s_barrier")
stamp(0)
for j in range(8):
    for hf in range(2):
        a("ds_read_b64_tr_b16 %s, v7 offset:%d", vr(64 + 4 * j + 2 * hf, 2), hf * 16 * PITCH + j * 32)
nonce_issue()
for j in range(8):
    a("s_waitcnt lgkmcnt(%d)", 14 - 2 * j)
    a("s_add_u32 s13, s12, %d", j * 65536)
    a("buffer_store_dwordx4 %s, v8, %s, s13 offen sc1", vr(64 + 4 * j, 4), sr(SWS, 4))
for j in range(8):
    a("ds_read_b128 %s, v10 offset:%d", vr(96 + 4 * j, 4), j * 128)
    a("ds_read_b128 %s, v5 offset:%d", vr(32 + 4 * j, 4), LGW + j * 128)
a("v_mov_b32 v11, 0")
a("v_mov_b32 v12, 0")
a("s_waitcnt lgkmcnt(0)")
for j in range(32):
    a("v_dot2_f32_bf16 v%d, v%d, v%d, v%d", 11 + j % 2, 32 + j, 96 + j, 11 + j % 2)
a("v_add_f32 v11, v11, v12")
a("v_add_f32_dpp v11, v11, v11 quad_perm:[1,0,3,2] row_mask:0xf bank_mask:0xf")
a("v_add_f32_dpp v11, v11, v11 quad_perm:[2,3,0,1] row_mask:0xf bank_mask:0xf")
a("v_add_f32_dpp v11, v11, v11 row_half_mirror row_mask:0xf bank_mask:0xf")
a("v_mul_f32 v11, 0xbfb8aa3b, v11")
a("v_exp_f32 v11, v11")
a("v_add_f32 v11, 1.0, v11")
a("v_rcp_f32 v11, v11")
a("v_lshlrev_b32 v9, 2, v9")
a("s_waitcnt vmcnt(0)")
nonce_check()
a("s_barrier")
a("s_cmp_lg_u32 s3, 0")
a("s_cbranch_scc1 L_auxnf")
a("s_lshl_b32 s10, s6, 2")
a("s_add_u32 s10, s10, %d", F_A)
flag_store("s10")
a("L_auxnf:")
stamp(1)
a("s_lshl_b32 s13, s6, 8")
a("s_add_u32 s13, s13, %d", WS_G)
a("v_cmp_eq_u32 vcc, 0, v5")
a("s_mov_b64 exec, vcc")
a("buffer_store_dword v11, v9, %s, s13 offen sc1", sr(SWS, 4))
a("s_mov_b64 exec, -1")
later_addrs(T0, T1, T2)
later_addrs2(T0, T1, T2)
later_addrs3(T0, T1, T2)
if opt("apf", 1):
    a("s_lshl_b32 s%d, s6, 3", S_PFI)
    a("s_add_u32 s%d, s%d, s3", S_PFI, S_PFI)
    a("s_lshr_b32 s10, s%d, 6", S_PFI)
    a("s_mul_i32 s10, s10, 448")
    a("s_and_b32 s11, s%d, 63", S_PFI)
    a("s_add_u32 s10, s10, s11")
    a("s_lshl_b32 s10, s10, 10")
    for k_ in range(7):
        a("buffer_load_dwordx4 v[52:55], v%d, %s, s10 offen", VH, sr(SW, 4))
        a("s_add_u32 s10, s10, 65536")
kgen_all([])
a("s_waitcnt lgkmcnt(0)")
a("s_barrier")
lg = Lg()
for r in kreads(): lg.issue(*r)
run_kmfma(lg, [], 0)
def p_():
    a("s_mov_b32 s%d, %d", S_PB, F_A)
    poll_issue(32)
    a("s_waitcnt vmcnt(0)")
    poll_check(16)
onwave(0, p_)
a("s_waitcnt vmcnt(0)")
a("s_barrier")
role(u_load, None)
eops_load()
kmfma_finish()
onwave(0, zero_pads_k)
onwave(1, zero_pads_u)
def p_():
    a("s_lshl_b32 s10, s6, 2")
    a("s_add_u32 s10, s10, %d", F_G)
    flag_store("s10")
onwave(4, p_)
a("s_waitcnt vmcnt(0)")
role(u_write, None)
eops_calc()
AUXW = len(a.lines)
a("s_waitcnt lgkmcnt(0)")
a("s_barrier")
stamp(2)

conv_prelude()
a("s_cmp_ge_u32 s3, 4")
a("s_cbranch_scc1 L_conv")
a("s_branch L_help")
aux_lines = a.lines[AUX0:]
a.lines = a.lines[:AUX0]
a.hist = HIST0
VA, VB, VC, VY = 2, 3, 4, 5
HF = 80
HRING = 16
VO = 14
HFC = 112
def hload(j0, n, vml, HF=HF):
    for j in range(j0, j0 + n):
        if j % 4 == 0 or j == j0:
            a("s_add_u32 s%d, s%d, s%d", S_T, S_HB, S_RT + j // 4)
        a("buffer_load_dwordx4 %s, v%d, %s, s%d offen offset:%d%s", vr(HF + 4 * (j % HRING), 4), VH, sr(SWS, 4), S_T, (j % 4) * 1024, "" if opt("hplain", 0) else " sc1")
        vml.append(("H", j))

WORD = {0: [0, 1, 4, 5, 6, 2, 3], 8: [0, 1, 2, 4, 5, 6, 3], 16: [0, 1, 2, 3, 4, 5, 6]}[opt('nw7', 0)]
def hl_list(all_=False):
    L = []
    for rd in WORD:
        for i in range(8):
            def f(rd=rd, i=i):
                if rd < 4:
                    a("s_add_u32 m0, s%d, %d", S_WLD, WB[rd] * BLK + i * 1024)
                if i == 0:
                    a("s_lshl_b32 s13, s%d, 4", S_RT + rd)
                    a("s_add_u32 s13, s13, s%d", S_WSO)
                else:
                    a("s_add_u32 s13, s13, 8192")
                if rd < 4:
                    a("buffer_load_dwordx4 v%d, %s, s13 offen lds", VWD, sr(SW, 4))
                else:
                    a("buffer_load_dwordx4 %s, v%d, %s, s13 offen", vr(WST + WSTO[rd] + 4 * i, 4), VWD, sr(SW, 4))
            L.append(f)
    return L if all_ else L[sum(NW):]
assert all(x % 8 == 0 for x in NW) and NW[0] <= 8 and NW[0] + NW[1] <= 16
BC0 = len(a.lines)
a("L_st2:"); a("s_branch L_stret")
loader()
a("L_conv:")
stamp(3)
if opt("prio", 0): a("s_setprio %d", opt("prio", 0))
a("s_mov_b32 s14, 0x11111111")
a("s_mov_b32 s15, 0x11111111")
a("s_mov_b64 vcc, s[14:15]")
a("s_mov_b32 s12, 0x33333333")
a("s_mov_b32 s13, 0x33333333")
a("s_bitcmp1_b32 s3, 0")
a("s_cbranch_scc1 L_set1")
BF = 112
AF = 8
AC = 28
C1POS = opt("c1pos", 26)
LOOK = opt("look", 6)
NC0 = opt("nc0", 6)
FPG = opt("fpg", 4)
vmc = None
VCF, VCP = 108, 109
DONE = {}
def done_pos(jt):
    CM = opt("cm", 0)
    for tiles in ([0, 3, 4, 7], [1, 2, 5, 6]):
        if jt in tiles:
            groups = {0: [[0, 1, 2, 3]], 1: [[0], [1], [2], [3]], 2: [[0, 1], [2, 3]], 3: [[0, 1, 2], [3]]}[CM]
            sc = [tiles[ti] for g_ in groups for dl in range(4 * tiles[g_[-1]] + 4) for ti in g_ if dl <= 4 * tiles[ti] + 3]
            return max(p for p, x in enumerate(sc) if x == jt)
for si, tiles in enumerate([[0, 3, 4, 7], [1, 2, 5, 6]]):
    if si == 1:
        a("L_st0:"); a("s_branch L_stret")
        a("L_set1:")
    other = [[1, 2, 5, 6], [0, 3, 4, 7]][si]
    lg = Lg()
    CM = opt("cm", 0)
    groups = {0: [[0, 1, 2, 3]], 1: [[0], [1], [2], [3]], 2: [[0, 1], [2, 3]], 3: [[0, 1, 2], [3]]}[CM]
    sched = []; aid = []; adl = []
    for g_ in groups:
        for dl in range(4 * tiles[g_[-1]] + 4):
            adl.append(dl)
            for ti in g_:
                if dl <= 4 * tiles[ti] + 3:
                    sched.append((dl, ti, tiles[ti])); aid.append(len(adl) - 1)
    NA = 5
    lastuse = {}
    for pos in range(len(sched)): lastuse[aid[pos]] = pos
    loads = []; seenB = set(); seenA = set()
    for pos, (dl, ti, jt) in enumerate(sched):
        if aid[pos] not in seenA: seenA.add(aid[pos]); loads.append(("A", aid[pos], pos))
        e = 4 * jt - dl
        if e not in seenB: seenB.add(e); loads.append(("B", e, pos))
    done_at = {jt: max(p for p, x in enumerate(sched) if x[2] == jt) for jt in tiles}
    DONE.update(done_at)
    def ld_instrs(kind, idx):
        if kind == "A":
            r = AF + 4 * (idx % NA); dl_ = adl[idx]
            return ["ds_read_b64_tr_b16 %s, v%d offset:%d" % (vr(r + 2 * hf, 2), VA, 128 * dl_ + 32 * (1 - hf)) for hf in range(2)]
        return ["ds_read_b128 %s, v%d offset:%d" % (vr(BF + 4 * (idx + 3), 4), VB, 128 * (idx + 3))]
    nys = [0]
    ystores = []
    def post(ti, jt):
        b = AC + 20 * ti
        L = []
        q1 = "quad_perm:[1,1,3,3] row_mask:0xf bank_mask:0xf"; q2 = "quad_perm:[2,2,2,2] row_mask:0xf bank_mask:0xf"
        q0 = "quad_perm:[0,0,0,0] row_mask:0xf bank_mask:0xf"
        L.append("v_mov_b32_dpp v%d, v%d %s" % (b + 16, b + 15, q1))
        for q in range(15, 0, -1):
            L.append("v_add_f32_dpp v%d, v%d, v%d %s" % (b + q, b + q - 1, b + q, q1))
        L.append("v_mov_b32_dpp v%d, v%d %s" % (b + 18, b + 16, q2))
        L.append("v_mov_b32_dpp v%d, v%d %s" % (b + 17, b + 15, q2))
        L.append("v_add_f32_dpp v%d, v%d, v%d %s" % (b + 16, b + 14, b + 16, q2))
        def cw():
            a("s_mov_b64 exec, vcc")
            lg.issue("ds_write_b128 v%d, %s offset:%d" % (VC, vr(b + 16, 4), 256 * jt + 16))
            if jt + 1 in other:
                a("s_mov_b64 exec, 1")
                lg.issue("ds_write_b32 v%d, v6 offset:%d" % (VCF, 4 * ti))
            a("s_mov_b64 exec, -1")
        L.append(cw)
        for q in range(15, 1, -1):
            L.append("v_add_f32_dpp v%d, v%d, v%d %s" % (b + q, b + q - 2, b + q, q2))
        for q in range(2, 8):
            L.append("v_cvt_pk_bf16_f32 v%d, v%d, v%d" % (b + 16 + (q - 2) if q < 4 else b + q, b + 2 * q, b + 2 * q + 1))
        L = [(0, x) for x in L]
        part = (jt - 1) in other
        mp = done_pos(jt - 1) + opt("cmarg", 22) if part else 0
        def rd():
            if part: lg.issue("ds_read_b32 v%d, v%d offset:%d" % (b + 12, VCP, 4 * other.index(jt - 1)), ("cf", ti))
            lg.issue("ds_read_b128 %s, v%d offset:%d" % (vr(b + 8, 4), VC, 256 * jt), ("cy", ti))
        L.append((mp, rd))
        def chk():
            lg.need([("cy", ti)])
            if part:
                ok = a.label("Lcok"); sl = a.label("Lcsl")
                a("v_readfirstlane_b32 s10, v%d", b + 12)
                a("s_cmp_eq_u32 s10, 0")
                a("s_cbranch_scc1 %s", sl)
                a(ok + ":")
                def sp(ok=ok, sl=sl, oi=other.index(jt - 1)):
                    a(sl + ":")
                    lds_wait(VCP, 4 * oi, b + 12, 0)
                    a("s_mov_b64 vcc, s[14:15]")
                    a("ds_read_b128 %s, v%d offset:%d", vr(b + 8, 4), VC, 256 * jt)
                    a("s_waitcnt lgkmcnt(0)")
                    a("s_branch %s", ok)
                slow.append(sp)
        L.append((-3, chk))
        for q in range(3):
            L.append((0, "v_add_f32 v%d, v%d, v%d" % (b + q, b + q, b + 8 + q)))
        L.append((0, "v_cvt_pk_bf16_f32 v%d, v%d, v%d" % (b, b, b + 1)))
        L.append((0, "v_cvt_pk_bf16_f32 v%d, v%d, v%d" % (b + 1, b + 2, b + 3)))
        L.append((0, "v_cndmask_b32_dpp v%d, v%d, v%d, vcc %s" % (b + 2, b + 6, b + 16, q0)))
        L.append((0, "v_cndmask_b32_dpp v%d, v%d, v%d, vcc %s" % (b + 3, b + 7, b + 17, q0)))
        L.append((0, "v_cndmask_b32_dpp v%d, v%d, v%d, vcc %s" % (b, b + 4, b, q0)))
        L.append((0, "v_cndmask_b32_dpp v%d, v%d, v%d, vcc %s" % (b + 1, b + 5, b + 1, q0)))
        def st_():
            a("s_mov_b64 exec, s[12:13]")
            a("buffer_store_dwordx4 %s, v%d, %s, s%d offen offset:%d sc1", vr(b, 4), VY, sr(SWS, 4), S_YB, 512 * jt)
            a("s_mov_b64 exec, -1")
            nys[0] += 1
        if opt("ydefer", 1): ystores.append(st_)
        else: L.append((0, st_))
        return L
    li = 0; queues = []
    def emit(x): a(x) if isinstance(x, str) else x()
    for pos, (dl, ti, jt) in enumerate(sched):
        for ld in list(loads):
            kind, idx, fp = ld
            if fp <= pos + LOOK and not (kind == "A" and idx >= NA and lastuse[idx - NA] >= pos):
                for ins in ld_instrs(kind, idx): lg.issue(ins, (kind, idx))
                loads.remove(ld)
        e = 4 * jt - dl
        lg.need([("A", aid[pos]), ("B", e)])
        d = vr(AC + 20 * ti, 16)
        a("v_mfma_f32_32x32x16_bf16 %s, %s, %s, %s", d, vr(AF + 4 * (aid[pos] % NA), 4), vr(BF + 4 * (e + 3), 4), d if dl else "0")
        if opt("diag2", 0) and pos in (15, 39):
            stamp({15: 11, 39: 12}[pos], True); lg.drained()
        bud = FPG
        for qu in queues:
            while bud and qu[0] and pos >= qu[1]:
                mp, x = qu[0][0]
                if mp > pos: break
                if mp < 0:
                    qu[0][0] = (pos - mp, x); break
                qu[0].pop(0); emit(x); bud -= 1
        if dl == 4 * jt + 3: queues.append([post(ti, jt), pos + 3])
    stamp(4)
    def upto(qu, name, incl):
        names = [getattr(x, "__name__", "") for mp, x in qu[0]]
        if name not in names: return
        n_ = names.index(name) + (1 if incl else 0)
        for mp, x in qu[0][:n_]: emit(x)
        qu[0] = qu[0][n_:]
    for qu in queues[:-1]: upto(qu, "cw", True)
    upto(queues[-1], "cw", True)
    for qu in queues[:-1]: upto(qu, "rd", True)
    upto(queues[-1], "rd", True)
    for qu in queues[:-1]:
        for mp, x in qu[0]: emit(x)
    for mp, x in queues[-1][0]: emit(x)
    for x in ystores: x()
    stamp(5)
    if si == 0: a("s_branch L_g2c")

BH0 = len(a.lines)
a.hist = HIST0
a("v_mov_b32 v6, 1")
a("v_mov_b32 v7, %d", L_SY)
if opt("hold", 0): onwave(3, lambda: sig(7, 104))
a("s_setprio 0")
a("L_help:")
stamp(3)
NPRE = opt("npre", 8)
for f in hl_list()[:NPRE]: f()
a("s_waitcnt vmcnt(%d)", NPRE)
sig(VSY, 0)
stamp(10)
a("s_cmp_lg_u32 s3, 0")
a("s_cbranch_scc1 L_hdma")
a("s_cmp_lg_u32 s%d, 0", S_ISAUX)
a("s_cbranch_scc1 L_hdma")
a("v_and_b32 v2, 3, v1")
a("v_lshl_add_u32 v2, v2, 2, v7")
rest = hl_list()[NPRE:]
SEG = opt("seg", 2)
NSEG = opt("nseg", 6)
for k in range(NSEG):
    a("ds_read_b32 v3, v2")
    a("s_waitcnt lgkmcnt(0)")
    a("v_cmp_eq_u32 vcc, 0, v3")
    a("s_cmp_eq_u64 vcc, 0")
    a("s_cbranch_scc1 L_pub%d", k)
    for f in rest[k * SEG:(k + 1) * SEG]: f()
lds_wait(2, 0, 3, 0)
for k in range(NSEG, -1, -1):
    a("L_pub%d:" % k)
    a("s_mov_b32 s11, s%d", S_NONCE)
    a("s_buffer_atomic_swap s11, %s, s%d", sr(SWS, 4), S_FH)
    if STAMP and k == 0: pass
    if k: a("s_branch L_seg%d", k)
a("L_hdma:")
for n_, f in enumerate(rest):
    if n_ and n_ % SEG == 0 and n_ // SEG <= NSEG: a("L_seg%d:" % (n_ // SEG))
    f()
stamp(6)
NH0 = opt("nh0", 6)
def hpoll():
    if PCF:
        a("s_lshl_b32 s%d, s%d, 3", S_PB, S_TB)
        a("s_add_u32 s%d, s%d, s%d", S_PB, S_PB, S_DB)
    else:
        a("s_lshr_b32 s%d, s%d, 1", S_PB, S_TB)
    a("s_mul_i32 s%d, s%d, %d", S_PB, S_PB, FSTR)
    a("s_add_u32 s%d, s%d, %d", S_PB, S_PB, F_H2)
    a("s_mov_b32 s8, s%d", S_NONCE)
    a("s_mov_b32 s9, s%d", S_NONCE)
    a("s_mov_b32 s12, 0")
    a("L_sp:")
    a("s_buffer_load_dwordx16 s[16:31], %s, s%d glc", sr(SWS, 4), S_PB)
    a("s_add_u32 s12, s12, 1")
    a("s_waitcnt lgkmcnt(0)")
    a("s_xor_b64 s[10:11], s[16:17], s[8:9]")
    for i in range(1, 7):
        a("s_xor_b64 s[14:15], s[%d:%d], s[8:9]", 16 + 2 * i, 17 + 2 * i)
        a("s_or_b64 s[10:11], s[10:11], s[14:15]")
    a("s_cbranch_scc0 L_fnd")
    a("s_cmp_lt_u32 s12, %d", opt("spn", 64))
    a("s_cbranch_scc1 L_sp")
    poll_issue(14)
    a("s_waitcnt vmcnt(0)")
    poll_check(1)
    a("L_fnd:")
    sig(7, 96)
def ypublish():
    a("s_waitcnt vmcnt(0)")
    sig(VSY, 96)
    def p_():
        a("v_and_b32 v2, 3, v1")
        a("v_lshl_add_u32 v2, v2, 2, v7")
        lds_wait(2, 112, 3, 0)
        a("s_lshl_b32 s10, s2, 2")
        a("s_add_u32 s10, s10, %d", F_Y)
        flag_store("s10")
    onwave(4, p_)
    stamp(6)
vmh = []; vmc = []

def gemm2(role_, vml):
    helper = role_ == "h"
    HFR = HF if helper else HFC
    R = 8
    VYR, EG = 15, 16
    EY = 176
    VWW = 76
    t0, t1, t2, t3 = 2, 3, 4, 5
    AFR = 20
    AC2 = 44
    YL = 180
    A0 = 188
    RR = 16
    def vw(tags):
        idx = [i for i, t in enumerate(vml) if t in tags]
        if opt("g2nowait", 0) and tags[0][0] in "HW": return 63
        if not idx: return 63
        return min(63, len(vml) - 1 - max(idx))
    a("v_mov_b32 v%d, v%d", R, VR0)
    a("v_xor_b32 v%d, 64, v%d", R + 1, VR0)
    for m in range(2):
        a("v_add_u32 v%d, %d, v%d", R + 2 + m, 4 * BLK, R + m)
        a("v_add_u32 v%d, %d, v%d", R + 4 + m, 8 * BLK, R + m)
    if helper and opt("pollpre", 1): onwave(opt("pollw", 1), hpoll)
    a("s_waitcnt vmcnt(%d)", 0 if helper else 4)
    if not helper and opt("pollpre", 1): ypublish()
    a("s_barrier")
    stamp(7)
    if opt("g2prio", 0) and not helper: a("s_setprio 1")
    def reads(step):
        rd, ks = step // 4, step % 4
        blk = WB[rd]
        f = AFR + (step % 3) * 8
        L = []
        for m in range(2):
            for hf in range(2):
                L.append(("ds_read_b64_tr_b16 %s, v%d offset:%d" % (vr(f + 4 * m + 2 * hf, 2), R + 2 * (blk // 4) + m, (blk % 4) * BLK + ((ks >> 1) * 4096 + (ks & 1) * 1024 + hf * 2048 if G16 else ks * 2048 + hf * 1024)), (step, m)))
        return L
    def ypoll_issue():
        a("s_lshl_b32 s10, s%d, 7", S_DB)
        a("v_lshl_add_u32 v%d, v1, 2, s10", VN + 2)
        a("s_lshl_b32 s10, s%d, 2", S_TB)
        a("s_add_u32 s10, s10, %d", F_G - F_Y)
        a("v_mov_b32 v%d, s10", t0)
        a("v_cmp_lt_u32 vcc, 31, v1")
        a("v_cndmask_b32 v%d, v%d, v%d, vcc", VN + 2, VN + 2, t0)
        a("s_mov_b32 s%d, %d", S_PB, F_Y)
        a("buffer_load_dword v%d, v%d, %s, s%d offen sc1", VN - 1, VN + 2, sr(SWS, 4), S_PB)
        vml.append(("PY", 0))
    def yload():
        poll_check(1)
        a("v_lshrrev_b32 v%d, 3, v1", t0)
        a("v_lshlrev_b32 v%d, 12, v%d", t0, t0)
        a("v_and_b32 v%d, 7, v1", t1)
        a("v_lshl_add_u32 v%d, v%d, 4, v%d", t0, t1, t0)
        a("s_lshl_b32 s12, s%d, 3", S_DB)
        a("s_add_u32 s12, s12, s3")
        a("s_lshl_b32 s12, s12, 15")
        a("s_lshl_b32 s13, s%d, 7", S_TB)
        a("s_add_u32 s12, s12, s13")
        a("s_add_u32 s12, s12, %d", WS_Y)
        a("buffer_load_dwordx4 %s, v%d, %s, s12 offen sc1", vr(YL, 4), t0, sr(SWS, 4))
        vml.append(("Y", 0))
        a("v_and_b32 v%d, 31, v1", t1)
        a("v_lshlrev_b32 v%d, 2, v%d", t1, t1)
        a("buffer_load_dword v%d, v%d, %s, s%d offen sc1", EG, t1, sr(SWS, 4), S_GOFF)
        vml.append(("Y", 0))
    lg = Lg()
    for r in reads(0) + reads(1): lg.issue(*r)
    pend = []
    def wwrite(rd, i):
        if opt("xnoww", 0): return
        if i == 0: a("v_add_u32 v%d, %d, v%d", VWW, WB[rd] * BLK, VWW + 1)
        lg.issue("ds_write_b128 v%d, %s offset:%d" % (VWW, vr(WST + WSTO[rd] + 4 * i, 4), i * 1024), ("ww", rd))
    if helper:
        a("v_add_u32 v%d, s%d, v%d", VWW + 1, S_WLD, VH)
    if opt("pollpre", 1):
        hload(0, NH0 if helper else NC0, vml, HFR)
        if helper:
            for i in range(8): wwrite(4, i)
    else:
        assert False
        if helper:
            for i in range(7): wwrite(4, i)
            onwave(opt("pollw", 1), hpoll)
        else:
            ypublish()
        lds_wait(7, 96, 3, 0); lg.drained()
        stamp(13)
        hload(0, NH0 if helper else NC0, vml, HFR)
    vfill = []
    nh = NH0 if helper else NC0
    YPS = opt("yps", 12)
    for step in range(28):
        rd, ks = step // 4, step % 4
        f = AFR + (step % 3) * 8
        nxt = reads(step + 2) if step < 26 else []
        for m in range(2):
            d = vr(AC2 + 16 * m, 16)
            lg.need([(step, m)], "vmcnt(%d) " % vw([("H", step)]) if m == 0 else "")
            a("v_mfma_f32_32x32x16_bf16 %s, %s, %s, %s", d, vr(f + 4 * m, 4), vr(HFR + 4 * (step % HRING), 4), d if step else "0")
            for r in nxt[2 * m:2 * m + 2]: lg.issue(*r)
            if nh < 28 and (m == 0 or nh < step + opt("hd", 0)) and not opt("xnoh", 0):
                hload(nh, 1, vml, HFR); nh += 1
            if m == 0 and step == opt("yls", 21):
                a("s_waitcnt vmcnt(%d)", vw([("PY", 0)]))
                yload()
            if m == 1 and step == YPS: ypoll_issue()
            if pend: pend.pop(0)()
            for _ in range(5):
                if vfill: lg.run(vfill.pop(0))
        if opt("stg2", 0) and ks == 3 and rd < 5:
            stamp(10 + rd); lg.drained()
        if step == 20:
            for j in range(4):
                vfill.append("v_lshlrev_b32 v%d, 16, v%d" % (A0 + 2 * j, EUD + j))
                vfill.append("v_and_b32 v%d, 0xffff0000, v%d" % (A0 + 2 * j + 1, EUD + j))
            vfill += ["v_and_b32 v%d, 31, v1" % t2, "v_lshrrev_b32 v%d, 5, v1" % t3, "v_lshlrev_b32 v%d, 4, v%d" % (t3, t3),
                      "v_lshl_add_u32 v%d, v%d, 10, v%d" % (VO, t2, t3)]
        if ks == 1 and 1 <= rd < 6:
            if opt("fewbar", 1):
                if rd == 2:
                    a("s_barrier")
                    if helper:
                        pend = [(lambda i=i, r=r: wwrite(r, i)) for r in (5, 6) for i in range(8)]
                if rd == 4:
                    if helper:
                        assert not pend
                        lg.need([("ww", 6)])
                    a("s_barrier")
            else:
                if helper and rd >= 3: lg.need([("ww", rd + 1)])
                a("s_barrier")
                if helper and rd <= 2:
                    assert not pend
                    pend = [(lambda i=i, r=rd + 4: wwrite(r, i)) for i in range(8)]
            if rd == 5:
                vfill += ["v_lshrrev_b32 v%d, 5, v1" % VYR,
                          "v_bfe_u32 v%d, v1, 2, 2" % t2,
                          "v_lshl_add_u32 v%d, v%d, 3, v%d" % (VYR, VYR, t2),
                          "v_lshlrev_b32 v%d, 7, v%d" % (VYR, VYR),
                          "v_bfe_u32 v%d, v1, 4, 1" % t2,
                          "v_lshl_add_u32 v%d, v%d, 5, v%d" % (VYR, t2, VYR),
                          "v_and_b32 v%d, 3, v1" % t2,
                          "v_lshl_add_u32 v%d, v%d, 3, v%d" % (VYR, t2, VYR),
                          "s_lshr_b32 s10, s3, 1", "s_lshl_b32 s10, s10, 11", "s_and_b32 s11, s3, 1", "s_lshl_b32 s11, s11, 6",
                          "s_add_u32 s10, s10, s11", "s_add_u32 s10, s10, %d" % L_Y,
                          "v_add_u32 v%d, s10, v%d" % (VYR, VYR),
                          "s_lshl_b32 s10, s3, 10", "s_add_u32 s10, s10, %d" % L_Y,
                          "v_add_u32 v%d, s10, v%d" % (YL + 4, VH)]
                for j in range(4):
                    hi_ = (0 if helper else 1) ^ (j >> 1)
                    vfill.append("s_xor_b32 s10, s%d, %d" % (S_TQ, (2 * j) & 3))
                    vfill.append("s_mul_i32 s10, s10, 6144")
                    vfill.append("s_add_u32 s10, s10, %d" % (L_R[hi_] + max(j - 1, 0) * 2048))
                    vfill.append("v_add_u32 v%d, s10, v%d" % (VWW if j == 0 else RR + j, VH))
    assert not pend
    stamp(8)
    for f_ in vfill: lg.run(f_)
    a("s_waitcnt vmcnt(0)")
    if opt("diag3", 0): stamp(10, True)
    a("ds_write_b128 v%d, %s", YL + 4, vr(YL, 4))
    for j in range(1, 4):
        for b in range(2):
            a("ds_write_b128 v%d, %s offset:%d", VWW, vr(AC2 + 8 * j + 4 * b, 4), (j - 1) * 2048 + b * 1024)
    for q in range(8):
        a("v_sub_f32 v%d, v%d, v%d", A0 + q, A0 + q, AC2 + q)
        a("v_fmac_f32 v%d, v%d, v%d", AC2 + q, EG, A0 + q)
    a("v_sub_f32 v%d, 1.0, v%d", t1, EG)
    a("s_waitcnt lgkmcnt(0)")
    if opt("diag3", 0): stamp(11, True)
    a("s_barrier")
    if opt("diag3", 0): stamp(12, True)
    for hf in range(2):
        a("ds_read_b64_tr_b16 %s, v%d offset:%d", vr(EY + 2 * hf, 2), VYR, hf * 512)
    for j in range(1, 4):
        for b in range(2):
            a("ds_read_b128 %s, v%d offset:%d", vr(AC2 + 8 * j + 4 * b, 4), RR + j, b * 1024)
    a("s_waitcnt lgkmcnt(6)")
    for j in range(4):
        a("v_lshlrev_b32 v%d, 16, v%d", t2, EY + j)
        a("v_and_b32 v%d, 0xffff0000, v%d", t3, EY + j)
        a("v_fmac_f32 v%d, v%d, v%d", AC2 + 2 * j, EG, t2)
        a("v_fmac_f32 v%d, v%d, v%d", AC2 + 2 * j + 1, EG, t3)
    for j in range(1, 4):
        a("s_waitcnt lgkmcnt(%d)", 2 * (3 - j))
        for q in range(8):
            a("v_fmac_f32 v%d, v%d, v%d", AC2 + q, t1, AC2 + 8 * j + q)
    for j in range(4):
        a("v_cvt_pk_bf16_f32 v%d, v%d, v%d", A0 + j, AC2 + 2 * j, AC2 + 2 * j + 1)
    a("buffer_store_dwordx4 %s, v%d, %s, s%d offen%s", vr(A0, 4), VO, sr(SO, 4), S_OB, ["", " sc1", " nt", " sc0 sc1"][opt("ost", 0)])
    if opt("diag3", 0): stamp(13, True)
    if STAMP: a("s_waitcnt vmcnt(0)")
    stamp(9)
    stamp_out()
    a("s_endpgm")

gemm2("h", vmh)
BG0 = len(a.lines)
a.lines = a.lines[:BC0] + a.lines[BH0:BG0] + a.lines[BC0:BH0]
a("L_g2c:")
gemm2("c", vmc)
n0_ = len(a.lines)
def auxw():
    for f in hl_list(True)[:sum(NW)]: f()
role(None, auxw)
auxw_lines = a.lines[n0_:]; a.lines = a.lines[:n0_]
a.lines += aux_lines[:AUXW - AUX0] + auxw_lines + aux_lines[AUXW - AUX0:]
for sp in slow: sp()
a("L_end:")
a("s_endpgm")

hdr = open("gated_mix__ssm_conv_s4__glu_gated_bilinear__prompt.s.ref").read().split("\n")
hdr = [l for l in hdr if l.startswith(";") and "@launch" not in l]
print(wrap(hdr + ["; @launch grid=(256,1,1) block=(512,1,1) lds=163840"], [(NAME, a, 256, 102, 256)]))
sys.stderr.write("nops: %d\n" % a.nops)
```

```python
import sys
from asmlib import *

STAMP = "--stamp" in sys.argv
def opt(name, default):
    for x in sys.argv:
        if x.startswith("--%s=" % name): return int(x.split("=")[1])
    return default

WS_H = 0
WS_UT = 8 << 20
WS_Y = 10 << 20
WS_G = 12 << 20
WS_F = (12 << 20) + 0x10000
F_H2 = (12 << 20) + 0x80000
WS_ST = 13 << 20
WS_BYTES = 14 << 20
F_A, F_H, F_Y, F_G, F_E = WS_F, WS_F + 0x1000, WS_F + 0x2000, WS_F + 0x3000, WS_F + 0x4000

P_U, P_ARE, P_AIM, P_BRE, P_BIM, P_CRE, P_CIM, P_LDT = 16, 18, 20, 22, 24, 26, 28, 30
P_DSK, P_BX, P_WG, P_WU, P_WD, P_GW, P_OUT, P_DBG, P_WS = 32, 34, 36, 38, 40, 42, 44, 46, 48
SX, SG, SU, SWS, SW, SO = 52, 56, 60, 64, 68, 72
S_NONCE, S_ISAUX, S_SPIN, S_PB = 76, 77, 78, 79
S_TB, S_DB, S_KH, S_TQ, S_HB, S_OB = 80, 81, 82, 83, 84, 85
S_W0S = 100
S_RT = 36
S_KR, S_T2 = 0, 1
S_W2K, S_T, S_TM0, S_YB = 86, 87, 88, 89
S_DOFF, S_GOFF = 50, 51
S_WSO, S_WLD = 90, 91
S_HST = 34
S_FH = 35
PCF = opt('pcf', 0)
FSTR = opt('fstr', 1280)
G16 = 1
SPINMAX = opt("spin", 2000000)

BLK = 16384
XB = [0, 1, 2]
GB = [6, 8, 4]
L_TAB = 2 * BLK
TP = 528
TPIECE = 31 * TP
L_U = 2 * BLK
UCH = 512 + 4096
L_K = 3 * BLK
KCH = 64 + 4096
L_CY = L_K + 2 * KCH
CYCH = 129 * 16
L_SY = 4 * BLK - 128
assert L_SY % 32 == 0 and L_SY + 128 <= 4 * BLK
WB = [4, 6, 8, 0, 2, 4, 6]
L_Y = 8 * BLK + 24576
L_R = [8 * BLK, 0]

a = Asm()

class Lg:
    def __init__(self): self.q = []; self.done = 0
    def issue(self, ins, tag=None):
        a(ins); self.q.append(tag)
    def need(self, tags, extra=""):
        idx = [i for i, t in enumerate(self.q) if t in tags]
        last = max(idx) if idx else -1
        if last >= self.done:
            cnt = min(len(self.q) - 1 - last, 15)
            a("s_waitcnt %slgkmcnt(%d)", extra, cnt)
            self.done = len(self.q) - cnt
        elif extra:
            a("s_waitcnt %s", extra)
    def drained(self): self.done = len(self.q)
    def run(self, p):
        n0 = len(a.lines)
        a(p) if isinstance(p, str) else p()
        for ln in a.lines[n0:]:
            if ln.strip().startswith("ds_"): self.q.append(None)

SMASK = opt("smask", 0x7fff)
def stamp(i, force=False):
    if opt("stg", 0) == 2:
        if not force or not (SMASK >> i) & 1: return
    if not STAMP or not ((SMASK >> i) & 1 or force): return
    a("s_memtime s[94:95]")
    a("s_memrealtime s[92:93]")
    a("s_waitcnt lgkmcnt(0)")
    a("s_sub_u32 s94, s94, s98")
    a("v_writelane_b32 v255, s94, %d", i)
    a("v_writelane_b32 v255, s92, %d", i + 16)
def stamp_out():
    if not STAMP: return
    a("s_mov_b64 exec, -1")
    a("v_writelane_b32 v255, s96, 31")
    a("s_getreg_b32 s92, hwreg(HW_REG_XCC_ID)")
    a("s_getreg_b32 s93, hwreg(HW_REG_HW_ID)")
    a("s_and_b32 s92, s92, 15")
    a("s_lshl_b32 s93, s93, 4")
    a("s_or_b32 s92, s92, s93")
    a("v_writelane_b32 v255, s92, 15")
    a("s_lshl_b32 s92, s2, 3")
    a("s_add_u32 s92, s92, s3")
    a("s_lshl_b32 s92, s92, 7")
    a("s_add_u32 s92, s92, %d", WS_ST)
    a("v_mbcnt_lo_u32_b32 v254, -1, 0")
    a("v_mbcnt_hi_u32_b32 v254, -1, v254")
    a("v_lshlrev_b32 v253, 2, v254")
    a("s_mov_b64 exec, 0xffffffff")
    a("buffer_store_dword v255, v253, %s, s92 offen", sr(SWS, 4))

def cmul(d, x, y, plain):
    if plain:
        return ["v_mul_f32 v%d, v%d, v%d" % (d, x, y), "v_mul_f32 v%d, v%d, v%d" % (d + 1, x + 1, y),
                "v_fma_f32 v%d, -v%d, v%d, v%d" % (d, x + 1, y + 1, d), "v_fmac_f32 v%d, v%d, v%d" % (d + 1, x, y + 1)]
    return ["v_pk_mul_f32 %s, %s, %s op_sel_hi:[1,0]" % (vr(d, 2), vr(x, 2), vr(y, 2)),
            "v_pk_fma_f32 %s, %s, %s, %s op_sel:[1,1,0] op_sel_hi:[0,1,1] neg_lo:[1,0,0]" % (vr(d, 2), vr(x, 2), vr(y, 2), vr(d, 2))]
def il(x, y):
    o = []
    for i in range(max(len(x), len(y))):
        if i < len(x): o.append(x[i])
        if i < len(y): o.append(y[i])
    return o

VH = 240
VWD = 241
VR0 = 242
VSY = 243
VN = 250
PVA, PVB, PVC, PVY = 2, 3, 4, 5
KA, KBa, KW = 152, 153, 154
VZ = 235
KB = 160
KP = 204
KF = 160
KD = 236
VUL = 244

def kgen_setup():
    a("s_lshr_b32 s10, s3, 2")
    a("s_lshl_b32 s11, s2, 1")
    a("s_add_u32 s11, s11, s10")
    a("s_and_b32 s12, s3, 1")
    a("s_lshl_b32 s13, s11, 8")
    a("s_lshl_b32 s12, s12, 7")
    a("s_add_u32 s13, s13, s12")
    a("v_lshl_add_u32 v%d, v1, 1, s13", KB + 8)
    a("s_lshl_b32 s11, s11, 1")
    a("v_mov_b32 v%d, s11", KB + 9)
    for i in range(7): a("v_mov_b32 v%d, 0", KB + i)
    a("s_bitcmp1_b32 s3, 1")
    a("s_cselect_b64 s[14:15], -1, 0")
def kgen_loads():
    a("global_load_short_d16_hi v%d, v%d, %s", KB + 6, KB + 9, sr(P_LDT, 2))
    for i, p in enumerate([P_ARE, P_AIM, P_BRE, P_BIM, P_CRE, P_CIM]):
        a("global_load_short_d16_hi v%d, v%d, %s", KB + i, KB + 8, sr(p, 2))
    return 7
def rowpos(m): return 16 + (2 * m if m <= 7 else 2 * (m - 8) + 1)
def kgen_valu(plain_tail):
    L = []
    A_, B_, BR, BI, CR, CI, LD, T0, T1, T2 = [KB + i for i in range(10)]
    W, E1, E2, E4, E8, E128, E256, E512, P, X0, X1, R0, R1, RB, Y0, Z0 = [KB + 10 + 2 * i for i in range(16)]
    L.append("v_mul_f32 v%d, 0x3fb8aa3b, v%d" % (T0, LD))
    L.append("v_mov_b32 v%d, 0x3fb8aa3b" % T2)
    L.append("v_fma_f32 v%d, v%d, v%d, -v%d" % (T1, LD, T2, T0))
    L.append("v_fmac_f32 v%d, 0x32a57060, v%d" % (T1, LD))
    L.append("v_exp_f32 v%d, v%d" % (T0, T0))
    L.append("v_mul_f32 v%d, 0x3f317218, v%d" % (T1, T1))
    L.append("v_fmac_f32 v%d, v%d, v%d" % (T0, T0, T1))
    L.append("v_cvt_pk_bf16_f32 v%d, v%d, v%d" % (T0, T0, T0))
    L.append("v_and_b32 v%d, 0xffff0000, v%d" % (T0, T0))
    for r in (A_, B_, BR, BI):
        L.append("v_mul_f32 v%d, v%d, v%d" % (r, T0, r))
    L.append("v_mul_f32 v%d, 0x3fb8aa3b, v%d" % (A_, A_))
    L.append("v_mul_f32 v%d, 0.15915494, v%d" % (B_, B_))
    o1 = ["v_exp_f32 v%d, v%d" % (T0, A_), "v_fract_f32 v%d, v%d" % (T1, B_),
          "v_cos_f32 v%d, v%d" % (E1, T1), "v_sin_f32 v%d, v%d" % (E1 + 1, T1),
          "v_mul_f32 v%d, v%d, v%d" % (E1, T0, E1), "v_mul_f32 v%d, v%d, v%d" % (E1 + 1, T0, E1 + 1)]
    o2 = ["v_mul_f32 v%d, 0x43000000, v%d" % (T2, A_), "v_mul_f32 v%d, 0x43000000, v%d" % (LD, B_),
          "v_exp_f32 v%d, v%d" % (T2, T2), "v_fract_f32 v%d, v%d" % (LD, LD),
          "v_cos_f32 v%d, v%d" % (E128, LD), "v_sin_f32 v%d, v%d" % (E128 + 1, LD),
          "v_mul_f32 v%d, v%d, v%d" % (E128, T2, E128), "v_mul_f32 v%d, v%d, v%d" % (E128 + 1, T2, E128 + 1)]
    L += il(o2, o1 + cmul(W, CR, BR, False))
    L += il(cmul(E2, E1, E1, False) + cmul(E4, E2, E2, False) + cmul(E8, E4, E4, False),
            cmul(E256, E128, E128, False) + cmul(E512, E256, E256, False))
    L.append("v_cndmask_b32 v%d, v%d, v%d, s[14:15]" % (P, E1, E2))
    L.append("v_cndmask_b32 v%d, v%d, v%d, s[14:15]" % (P + 1, E1 + 1, E2 + 1))
    L.append("v_cndmask_b32 v%d, 1.0, v%d, s[14:15]" % (X0, E128))
    L.append("v_cndmask_b32 v%d, 0, v%d, s[14:15]" % (X0 + 1, E128 + 1))
    L.append("v_cndmask_b32 v%d, 1.0, v%d, s[14:15]" % (E256, E256))
    L.append("v_cndmask_b32 v%d, 0, v%d, s[14:15]" % (E256 + 1, E256 + 1))
    L += cmul(RB, W, E256, False)
    rows = [(None, RB, None)]
    cur = RB
    for j in range(1, 8):
        d = R0 if j % 2 else R1
        rows.append((d, cur, P)); cur = d
    Z2 = Y0
    rows += [(Y0, RB, E512), (R1, Y0, E4), (R0, Y0, E8), (Z0, Y0, E512), (R1, Z0, E8), (Z2, Z0, E512), (R0, Z2, E8)]
    cols = [(None, X0, None)]
    cur = X0
    for j in range(1, 16):
        d = X1 if j % 2 else X0
        cols.append((d, cur, E8)); cur = d
    LC, LR = [], []
    for j, (d, s, m) in enumerate(cols):
        if d is not None: LC += cmul(d, s, m, plain_tail)
        x = d if d is not None else s
        LC.append("v_cvt_pk_bf16_f32 v%d, v%d, v%d" % (KP + j, x, x + 1))
    for j, (d, s, m) in enumerate(rows):
        if d is not None: LR += cmul(d, s, m, plain_tail)
        x = d if d is not None else s
        LR.append("v_cvt_pk_bf16_f32 v%d, v%d, -v%d" % (KP + rowpos(j), x, x + 1))
    return L, il(LC, LR)
def kgen_writes():
    return ["ds_write_addtid_b32 v%d offset:%d" % (KP + j, L_TAB + j * TP) for j in range(31)]

def later_addrs(T0, T1, T2):
    a("s_lshr_b32 s10, s3, 1")
    a("s_mul_i32 s10, s10, %d", TPIECE)
    a("s_and_b32 s11, s3, 1")
    a("s_lshl_b32 s11, s11, 8")
    a("s_add_u32 s%d, s10, s11", S_TM0)
    a("s_add_u32 s10, s10, %d", L_TAB)
    a("v_bfe_u32 v%d, v1, 4, 1", T1)
    a("v_lshlrev_b32 v%d, 8, v%d", T1, T1)
    a("v_lshrrev_b32 v%d, 5, v1", T2)
    a("v_lshl_add_u32 v%d, v%d, 7, v%d", T1, T2, T1)
    a("v_and_b32 v%d, 15, v1", T0)
    a("v_mul_u32_u24 v%d, %d, v%d", T2, TP, T0)
    a("v_add3_u32 v%d, v%d, v%d, s10", KBa, T2, T1)
    def lut(v): return sum(x << (4 * i) for i, x in enumerate(v))
    m0 = [0, 1, 2, 3] + [0, 0, 1, 2] + [2, 2, 3, 4] + [4, 5, 6, 7]; h0 = 0x0ff0
    m1 = [8, 9, 10, 10] + [8, 9, 10, 10] + [11, 12, 13, 14] + [11, 12, 13, 14]; h1 = 0xf0f0
    p0 = [rowpos(m) - 16 for m in m0]; p1 = [rowpos(m) - 16 for m in m1]
    a("s_bitcmp1_b32 s3, 0")
    a("s_mov_b32 s11, 0x%x", lut(p0[:8]))
    a("s_cmov_b32 s11, 0x%x", lut(p1[:8]))
    a("s_mov_b32 s12, 0x%x", lut(p0[8:]))
    a("s_cmov_b32 s12, 0x%x", lut(p1[8:]))
    a("s_mov_b32 s13, 0x%x", h0)
    a("s_cmov_b32 s13, 0x%x", h1)
    a("v_cmp_lt_u32 vcc, 7, v%d", T0)
    a("v_mov_b32 v%d, s11", KA)
    a("v_mov_b32 v%d, s12", T2)
    a("v_cndmask_b32 v%d, v%d, v%d, vcc", KA, KA, T2)
    a("v_and_b32 v%d, 7, v1", T2)
    a("v_lshlrev_b32 v%d, 2, v%d", T2, T2)
    a("v_bfe_u32 v%d, v%d, v%d, 4", KA, KA, T2)
    a("v_bfe_u32 v%d, s13, v%d, 1", T2, T0)
    a("v_mad_u32_u24 v%d, v%d, 31, v%d", KA, T2, KA)
    a("v_mul_u32_u24 v%d, %d, v%d", KA, TP, KA)
    a("s_lshr_b32 s10, s3, 2")
    a("s_mul_i32 s11, s10, %d", 2 * TPIECE)
    a("s_add_u32 s11, s11, %d", L_TAB + 16 * TP)
    a("v_add3_u32 v%d, v%d, v%d, s11", KA, KA, T1)
    a("s_mul_i32 s10, s10, %d", KCH)
    a("s_and_b32 s11, s3, 2")
    a("s_lshl_b32 s11, s11, 7")
    a("s_add_u32 s10, s10, s11")
    a("s_add_u32 s10, s10, %d", L_K + 64)
    a("s_bitcmp1_b32 s3, 0")
    a("s_mov_b32 s11, 0x%x", 0 | (64 << 8) | (65 << 16) | (1 << 24))
    a("s_cmov_b32 s11, 0x%x", 0 | (64 << 8) | (128 << 16) | (192 << 24))
    a("s_cselect_b32 s12, 1024, 0")
    a("s_add_u32 s10, s10, s12")
    a("v_lshrrev_b32 v%d, 4, v1", T1)
    a("v_lshlrev_b32 v%d, 3, v%d", T1, T1)
    a("v_bfe_u32 v%d, s11, v%d, 8", T1, T1)
    a("v_lshlrev_b32 v%d, 4, v%d", T0, T0)
    a("v_lshl_add_u32 v%d, v%d, 3, v%d", T0, T1, T0)
    a("v_add_u32 v%d, s10, v%d", KW, T0)
def later_addrs2(T0, T1, T2):
    a("s_bfe_u32 s10, s3, 0x10001")
    a("v_lshrrev_b32 v%d, 5, v1", T0)
    a("v_lshlrev_b32 v%d, 6, v%d", PVA, T0)
    a("v_and_b32 v%d, 31, v1", T1)
    a("v_lshlrev_b32 v%d, 4, v%d", PVB, T1)
    a("v_sub_u32 v%d, v%d, v%d", PVB, PVB, PVA)
    a("v_and_b32 v%d, 1, v1", T2)
    a("v_lshl_add_u32 v%d, v%d, 5, v%d", PVA, T2, PVA)
    a("v_lshrrev_b32 v%d, 2, v%d", T1, T1)
    a("v_lshl_add_u32 v%d, v%d, 1, v%d", T1, T1, T0)
    a("v_lshlrev_b32 v%d, 5, v%d", PVY, T1)
    a("v_lshl_add_u32 v%d, v%d, 4, v%d", PVY, T2, PVY)
    a("s_mul_i32 s11, s10, %d", CYCH)
    a("s_add_u32 s11, s11, %d", L_CY)
    a("v_lshl_add_u32 v%d, v%d, 4, s11", PVC, T1)
    a("v_bfe_u32 v%d, v1, 4, 1", T2)
    a("v_lshl_add_u32 v%d, v%d, 4, v%d", PVA, T2, PVA)
    a("v_bfe_u32 v%d, v1, 1, 1", T2)
    a("v_lshl_add_u32 v%d, v%d, 3, v%d", PVA, T2, PVA)
    a("v_bfe_u32 v%d, v1, 2, 2", T2)
    a("v_lshlrev_b32 v%d, 3, v%d", T2, T2)
    a("v_sub_u32 v%d, v%d, v%d", PVA, PVA, T2)
    a("s_mul_i32 s11, s10, %d", KCH)
    a("s_add_u32 s11, s11, %d", L_K + 32)
    a("v_add_u32 v%d, s11, v%d", PVA, PVA)
    a("s_mul_i32 s11, s10, %d", UCH)
    a("s_add_u32 s11, s11, %d", L_U + 512 - 384)
    a("v_add_u32 v%d, s11, v%d", PVB, PVB)
    a("s_lshl_b32 s11, s2, 1")
    a("s_add_u32 s11, s11, s10")
    a("s_lshl_b32 s11, s11, 12")
    a("s_add_u32 s%d, s11, %d", S_YB, WS_Y)
def later_addrs3(T0, T1, T2):
    if opt("b84", 1):
        a("s_and_b32 s%d, s4, 6", S_TB)
        a("s_lshl_b32 s%d, s%d, 2", S_TB, S_TB)
        a("s_and_b32 s10, s5, 7")
        a("s_add_u32 s%d, s%d, s10", S_TB, S_TB)
        a("s_and_b32 s%d, s4, 1", S_DB)
        a("s_lshl_b32 s%d, s%d, 2", S_DB, S_DB)
        a("s_lshr_b32 s10, s5, 3")
        a("s_add_u32 s%d, s%d, s10", S_DB, S_DB)
    else:
        a("s_lshl_b32 s%d, s4, 2", S_TB)
        a("s_and_b32 s10, s5, 3")
        a("s_add_u32 s%d, s%d, s10", S_TB, S_TB)
        a("s_lshr_b32 s%d, s5, 2", S_DB)
    a("s_lshr_b32 s%d, s3, 2", S_KH)
    a("s_and_b32 s%d, s3, 3", S_TQ)
    a("s_lshl_b32 s10, s%d, 1", S_TB)
    a("s_and_b32 s13, s3, 1")
    a("s_add_u32 s10, s10, s13")
    a("s_mul_i32 s11, s10, 112")
    a("s_lshr_b32 s12, s3, 1")
    a("s_mul_i32 s%d, s12, %d", S_W0S, 448 * 1024)
    a("s_lshl_b32 s13, s13, 15")
    a("s_add_u32 s%d, s%d, s13", S_W0S, S_W0S)
    a("s_mul_i32 s13, s12, 28")
    a("s_add_u32 s11, s11, s13")
    a("s_lshl_b32 s%d, s11, 10", S_HB)
    a("s_lshl_b32 s%d, s10, 7", S_GOFF)
    a("s_add_u32 s%d, s%d, %d", S_GOFF, S_GOFF, WS_G)
    a("s_lshl_b32 s10, s10, 15")
    a("s_lshl_b32 s11, s%d, 7", S_DB)
    a("s_lshl_b32 s12, s12, 5")
    a("s_add_u32 s%d, s11, s12", S_DOFF)
    a("s_add_u32 s%d, s10, s%d", S_OB, S_DOFF)
    a("s_mul_i32 s%d, s%d, %d", S_WSO, S_TQ, 448 * 1024)
    a("s_lshl_b32 s%d, s%d, 13", S_WLD, S_TQ)
    seq = [i % 7 for i in range(16)]
    val = sum(x << (4 * i) for i, x in enumerate(seq))
    a("s_mov_b32 s44, 0x%x", val & 0xffffffff)
    a("s_mov_b32 s45, 0x%x", val >> 32)
    if opt("rot", 4) == 1:
        a("s_lshl_b32 s10, s%d, 2", S_DB)
        a("s_lshr_b64 s[44:45], s[44:45], s10")
    if opt("rot", 4) == 4:
        a("s_and_b32 s10, s5, 7")
        a("s_lshl_b32 s10, s10, 2")
        a("s_lshr_b64 s[44:45], s[44:45], s10")
    if opt("rot", 4) == 5:
        a("s_and_b32 s10, s5, 7")
        a("s_lshr_b32 s13, s5, 3")
        a("s_lshl_b32 s13, s13, 1")
        a("s_add_u32 s10, s10, s13")
        a("s_sub_u32 s13, s10, 7")
        a("s_min_u32 s10, s10, s13")
        a("s_lshl_b32 s10, s10, 2")
        a("s_lshr_b64 s[44:45], s[44:45], s10")
    if opt("rot", 4) == 3:
        a("s_and_b32 s10, s5, 1")
        a("s_lshl_b32 s10, s10, 4")
        a("s_lshr_b64 s[44:45], s[44:45], s10")
    if opt("rot", 4) == 2:
        a("s_and_b32 s10, s5, 3")
        a("s_lshl_b32 s10, s10, 3")
        a("s_lshr_b64 s[44:45], s[44:45], s10")
    for rd in range(7):
        a("s_bfe_u32 s10, s44, 0x%x", (3 << 16) | (4 * rd))
        a("s_lshl_b32 s%d, s10, 12", S_RT + rd)
    a("v_lshlrev_b32 v%d, 4, v1", VH)
    a("v_lshrrev_b32 v%d, 3, v1", T0)
    a("v_lshlrev_b32 v%d, 10, v%d", T0, T0)
    a("v_bfe_u32 v%d, v1, 4, 1", T1)
    a("v_lshlrev_b32 v%d, 2, v%d", T1, T1)
    a("v_and_b32 v%d, 7, v1", T2)
    a("v_xor_b32 v%d, v%d, v%d", T2, T2, T1)
    a("v_lshl_add_u32 v%d, v%d, 4, v%d", T0, T2, T0)
    a("v_add_u32 v%d, s11, v%d", VWD, T0)
    a("v_lshrrev_b32 v%d, 5, v1", T0)
    a("v_bfe_u32 v%d, v1, 2, 2", T1)
    a("v_lshl_add_u32 v%d, v%d, 2, v%d", T0, T0, T1)
    a("v_lshlrev_b32 v%d, 7, v%d", T0, T0)
    a("v_bfe_u32 v%d, v1, 3, 1", T1)
    a("v_lshl_add_u32 v%d, v%d, 6, v%d", T0, T1, T0)
    a("v_bfe_u32 v%d, v1, 4, 1", T1)
    a("v_lshl_add_u32 v%d, v%d, 5, v%d", T0, T1, T0)
    a("v_and_b32 v%d, 1, v1", T1)
    a("v_lshl_add_u32 v%d, v%d, 4, v%d", T0, T1, T0)
    a("v_bfe_u32 v%d, v1, 1, 1", T1)
    a("v_lshl_add_u32 v%d, v%d, 3, v%d", T0, T1, T0)
    a("v_xor_b32 v%d, s12, v%d", T0, T0)
    a("s_lshl_b32 s12, s12, 8")
    a("v_add_u32 v%d, s12, v%d", VR0, T0)
    a("s_lshl_b32 s10, s3, 2")
    a("s_add_u32 s10, s10, %d", L_SY)
    a("v_mov_b32 v%d, s10", VSY)

def kreads():
    L = []
    for ks in range(8):
        L.append(("ds_read_b128 %s, v%d offset:%d" % (vr(KF + 8 * ks, 4), KA, ks * 16), ("k", ks)))
        L.append(("ds_read_b128 %s, v%d offset:%d" % (vr(KF + 8 * ks + 4, 4), KBa, ks * 16), ("k", ks)))
    return L
def run_kmfma(lg, fill, per):
    for ks in range(8):
        lg.need([("k", ks)])
        d = vr(KD, 4)
        a("v_mfma_f32_16x16x32_bf16 %s, %s, %s, %s", d, vr(KF + 8 * ks, 4), vr(KF + 8 * ks + 4, 4), d if ks else "0")
        for _ in range(per):
            if fill: lg.run(fill.pop(0))
    for f in fill: lg.run(f)
def kmfma_finish():
    lb = a.label("Lkm1"); le = a.label("Lkme")
    T = KF
    a("s_bitcmp1_b32 s3, 0")
    a("s_cbranch_scc1 %s", lb)
    a("v_cvt_pk_bf16_f32 v%d, v%d, v%d", T, KD, KD + 1)
    a("v_cvt_pk_bf16_f32 v%d, v%d, v%d", T + 1, KD + 2, KD + 3)
    a("ds_write_b64 v%d, %s", KW, vr(T, 2))
    a("s_branch %s", le)
    a(lb + ":")
    a("s_nop 7")
    a("s_mov_b32 s14, 0xaaaaaaaa")
    a("s_mov_b32 s15, 0xaaaaaaaa")
    a("v_cndmask_b32 v%d, v%d, v%d, s[14:15]", T + 12, KD, KD + 1)
    a("v_cndmask_b32 v%d, v%d, v%d, s[14:15]", T + 13, KD + 2, KD + 3)
    a("v_cvt_pk_bf16_f32 v%d, v%d, v%d", T, KD, KD)
    a("v_cvt_pk_bf16_f32 v%d, v%d, v%d", T + 1, KD, KD)
    a("v_cvt_pk_bf16_f32 v%d, v%d, v%d", T + 2, T + 12, KD + 1)
    a("v_cvt_pk_bf16_f32 v%d, v%d, v%d", T + 3, KD + 1, KD + 1)
    a("v_cvt_pk_bf16_f32 v%d, v%d, v%d", T + 4, KD + 2, KD + 2)
    a("v_cvt_pk_bf16_f32 v%d, v%d, v%d", T + 5, KD + 2, KD + 2)
    a("v_cvt_pk_bf16_f32 v%d, v%d, v%d", T + 6, T + 13, KD + 3)
    a("v_cvt_pk_bf16_f32 v%d, v%d, v%d", T + 7, KD + 3, KD + 3)
    a("s_mov_b64 exec, 0xffffffff")
    a("v_cvt_pk_bf16_f32 v%d, v%d, v%d", T + 1, KD, KD + 1)
    a("v_mov_b32 v%d, v%d", T + 2, T + 3)
    a("v_mov_b32 v%d, v%d", T + 3, T + 4)
    a("s_not_b64 exec, exec")
    a("ds_write_b128 v%d, %s offset:1024", KW, vr(T + 4, 4))
    a("s_mov_b64 exec, -1")
    a("ds_write_b128 v%d, %s", KW, vr(T, 4))
    a(le + ":")

def zero_pads_k():
    T = KF + 16
    a("v_mov_b32 v%d, 0", T)
    a("v_bfe_u32 v%d, v1, 4, 1", T + 1)
    a("v_and_b32 v%d, 15, v1", T + 2)
    a("v_mul_u32_u24 v%d, %d, v%d", T + 3, KCH, T + 1)
    a("v_lshl_add_u32 v%d, v%d, 2, v%d", T + 3, T + 2, T + 3)
    a("v_mul_u32_u24 v%d, %d, v%d", T + 4, CYCH, T + 1)
    a("v_lshl_add_u32 v%d, v%d, 2, v%d", T + 4, T + 2, T + 4)
    a("v_lshlrev_b32 v%d, 2, v1", T + 5)
    a("s_mov_b64 exec, 0xffffffff")
    a("ds_write_b32 v%d, v%d offset:%d", T + 3, T, L_K)
    a("ds_write_b32 v%d, v%d offset:%d", T + 4, T, L_CY)
    a("ds_write_b32 v%d, v%d offset:%d", T + 5, T, L_SY)
    a("s_mov_b64 exec, -1")
def zero_pads_u():
    T = KD
    for i in range(4): a("v_mov_b32 v%d, 0", T + i)
    a("v_and_b32 v%d, 31, v1", 233)
    a("v_lshlrev_b32 v%d, 4, v%d", 233, 233)
    a("v_lshrrev_b32 v%d, 5, v1", 234)
    a("v_mul_u32_u24 v%d, %d, v%d", 234, UCH, 234)
    a("v_add_u32 v%d, v%d, v%d", 233, 233, 234)
    a("ds_write_b128 v%d, %s offset:%d", 233, vr(T, 4), L_U)
def sig(vaddr, off):
    a("s_mov_b64 exec, 1")
    a("ds_write_b32 v%d, v6 offset:%d", vaddr, off)
    a("s_mov_b64 exec, -1")
VUL2 = 156
def u_load():
    a("v_lshlrev_b32 v%d, 5, v1", VUL + 4)
    a("s_lshl_b32 s10, s2, 13")
    a("s_lshl_b32 s11, s%d, 11", S_TQ)
    a("s_add_u32 s10, s10, s11")
    a("s_add_u32 s10, s10, %d", WS_UT)
    a("buffer_load_dwordx4 %s, v%d, %s, s10 offen sc1", vr(VUL, 4), VUL + 4, sr(SWS, 4))
    a("buffer_load_dwordx4 %s, v%d, %s, s10 offen offset:16 sc1", vr(VUL2, 4), VUL + 4, sr(SWS, 4))
def u_write():
    a("s_lshl_b32 s11, s%d, 10", S_TQ)
    a("v_add_u32 v%d, s11, v%d", VUL + 4, VH)
    a("ds_write_b128 v%d, %s offset:%d", VUL + 4, vr(VUL, 4), L_U + 512)
    a("ds_write_b128 v%d, %s offset:%d", VUL + 4, vr(VUL2, 4), L_U + UCH + 512)
def onwave(w, fn):
    lb = a.label("Low")
    a("s_cmp_lg_u32 s3, %d", w)
    a("s_cbranch_scc1 %s", lb)
    fn()
    a(lb + ":")
def role(lo, hi):
    l1 = a.label("Lr1"); l2 = a.label("Lr2")
    a("s_cmp_ge_u32 s3, 4")
    a("s_cbranch_scc1 %s", l1)
    if lo is None:
        a.lines[-1] = a.lines[-1].replace("scc1", "scc0")
        hi()
        a(l1 + ":")
        return
    if lo: lo()
    if hi:
        a("s_branch %s", l2)
        a(l1 + ":")
        hi()
        a(l2 + ":")
    else:
        a(l1 + ":")

def nonce_issue():
    a("global_load_dwordx2 %s, v%d, %s sc1", vr(VN, 2), VZ, sr(P_DBG, 2))
slow = []
def nonce_check():
    ok = a.label("Lnok"); lp = a.label("Lnlp")
    a(ok + "r:")
    a("v_readfirstlane_b32 s10, v%d", VN + 1)
    a("v_readfirstlane_b32 s%d, v%d", S_NONCE, VN)
    a("s_cmp_lg_u32 s10, 1")
    a("s_cbranch_scc1 %s", lp)
    a(ok + ":")
    def sp():
        a(lp + ":")
        a("s_add_u32 s%d, s%d, 1", S_SPIN, S_SPIN)
        a("s_cmp_ge_u32 s%d, %d", S_SPIN, SPINMAX)
        a("s_cbranch_scc1 %s", ok)
        a("s_sleep 2")
        a("global_load_dwordx2 %s, v%d, %s sc1", vr(VN, 2), VZ, sr(P_DBG, 2))
        a("s_waitcnt vmcnt(0)")
        a("s_branch %sr", ok)
    slow.append(sp)
def poll_issue(n):
    a("v_min_u32 v%d, %d, v1", VN + 2, n - 1)
    a("v_lshlrev_b32 v%d, 2, v%d", VN + 2, VN + 2)
    a("buffer_load_dword v%d, v%d, %s, s%d offen sc1", VN - 1, VN + 2, sr(SWS, 4), S_PB)
def poll_check(sleep=2):
    ok = a.label("Lpok"); lp = a.label("Lplp")
    a(ok + "r:")
    a("v_cmp_ne_u32 vcc, s%d, v%d", S_NONCE, VN - 1)
    a("s_cmp_lg_u64 vcc, 0")
    a("s_cbranch_scc1 %s", lp)
    a(ok + ":")
    def sp():
        a(lp + ":")
        a("s_add_u32 s%d, s%d, 1", S_SPIN, S_SPIN)
        a("s_cmp_ge_u32 s%d, %d", S_SPIN, SPINMAX)
        a("s_cbranch_scc1 %s", ok)
        if sleep: a("s_sleep %d", sleep)
        a("buffer_load_dword v%d, v%d, %s, s%d offen sc1", VN - 1, VN + 2, sr(SWS, 4), S_PB)
        a("s_waitcnt vmcnt(0)")
        a("s_branch %sr", ok)
    slow.append(sp)
def flag_store(sbase):
    if opt("sflag", 2) & 1:
        a("s_mov_b32 s11, s%d", S_NONCE)
        a("s_buffer_atomic_swap s11, %s, %s", sr(SWS, 4), sbase)
        return
    a("v_mov_b32 v%d, 0", VN)
    a("v_mov_b32 v%d, s%d", VN + 1, S_NONCE)
    a("s_mov_b64 exec, 1")
    a("buffer_store_dword v%d, v%d, %s, %s offen sc1", VN + 1, VN, sr(SWS, 4), sbase)
    a("s_mov_b64 exec, -1")
def lds_wait(vaddr, off, vtmp, sleep=1):
    lp = a.label("Llw"); ok = a.label("Llok")
    a(lp + ":")
    a("ds_read_b32 v%d, v%d offset:%d", vtmp, vaddr, off)
    a("s_add_u32 s%d, s%d, 1", S_SPIN, S_SPIN)
    a("s_waitcnt lgkmcnt(0)")
    a("v_cmp_eq_u32 vcc, 0, v%d", vtmp)
    a("s_cmp_eq_u64 vcc, 0")
    a("s_cbranch_scc1 %s", ok)
    if sleep: a("s_sleep %d", sleep)
    a("s_cmp_lt_u32 s%d, %d", S_SPIN, SPINMAX * 16)
    a("s_cbranch_scc1 %s", lp)
    a(ok + ":")

a("s_cmp_ge_u32 s2, 256")
a("s_cbranch_scc1 L_end")
if STAMP:
    a("s_memrealtime s[96:97]")
    a("s_memtime s[98:99]")
a("s_load_dwordx16 s[16:31], s[0:1], 0")
a("s_load_dwordx16 s[32:47], s[0:1], 64")
a("s_load_dwordx2 s[48:49], s[0:1], 128")
a("v_lshrrev_b32 v2, 6, v0")
a("s_lshr_b32 s5, s2, 3")
if opt("cpf", 1):
    a("s_getpc_b64 s[10:11]")
    a("L_pc:")
    a("s_lshl_b32 s12, s5, 10")
    a("v_lshl_add_u32 v3, v2, 7, s12")
    a("v_and_b32 v4, 1, v0")
    a("v_lshl_add_u32 v3, v4, 6, v3")
    a("v_min_u32 v3, L_end-L_pc, v3")
    a("global_load_dword v19, v3, s[10:11]")
a("v_and_b32 v1, 63, v0")
a("v_readfirstlane_b32 s3, v2")
a("s_and_b32 s4, s2, 7")
kgen_setup()
PRE_WAIT = opt("prewait", 0)
if not PRE_WAIT:
    a("s_waitcnt lgkmcnt(0)")
    kgen_loads()
a("s_mov_b32 s%d, 0", S_SPIN)
a("v_mov_b32 v%d, 0", VZ)
a("v_mov_b32 v%d, 0", VN + 2)
if STAMP: a("v_mov_b32 v255, 0")
a("s_lshr_b32 s6, s4, 1")
a("s_lshl_b32 s6, s6, 2")
a("s_and_b32 s7, s5, 3")
a("s_add_u32 s6, s6, s7")
a("s_and_b32 s7, s4, 1")
a("s_mul_i32 s7, s7, 7")
a("s_lshr_b32 s8, s5, 2")
a("s_add_u32 s7, s7, s8")
a("s_sub_u32 s7, s7, 1")
a("s_and_b32 s8, s3, 1")
a("s_lshr_b32 s9, s3, 1")
VX0, VX1, VW0, VW1 = 4, 5, 6, 7
VXR = 8
VWA, VWB = 12, 13
T0, T1, T2, T3 = 14, 15, 16, 17
a("s_lshl_b32 s10, s6, 7")
a("s_lshl_b32 s11, s3, 4")
a("s_add_u32 s10, s10, s11")
a("s_lshl_b32 s10, s10, 10")
a("v_lshrrev_b32 v%d, 3, v1", T0)
a("v_lshlrev_b32 v%d, 10, v%d", T0, T0)
a("v_lshrrev_b32 v%d, 4, v1", T1)
a("v_and_b32 v%d, 7, v1", T2)
a("v_xor_b32 v%d, v%d, v%d", T2, T2, T1)
a("v_lshl_add_u32 v%d, v%d, 4, v%d", T0, T2, T0)
a("v_add_u32 v%d, s10, v%d", VX0, T0)
a("v_xor_b32 v%d, 64, v%d", VX1, VX0)
a("v_add_u32 v%d, 0x2000, v%d", VX1, VX1)
a("s_and_b32 s12, s3, 3")
a("s_mul_i32 s10, s12, %d", 4 * 3584)
a("s_lshl_b32 s11, s7, 8")
a("s_add_u32 s10, s10, s11")
a("v_mul_u32_u24 v%d, 3584, v%d", T0, T1)
if G16:
    a("s_and_b32 s11, s3, 2")
    a("s_lshl_b32 s11, s11, 2")
    a("v_lshl_or_b32 v%d, v%d, 1, s11", T2, T1)
else:
    a("v_lshlrev_b32 v%d, 2, v%d", T2, T1)
a("v_and_b32 v%d, 15, v1", T3)
a("v_xor_b32 v%d, v%d, v%d", T2, T2, T3)
a("v_lshl_add_u32 v%d, v%d, 4, v%d", T0, T2, T0)
a("v_add_u32 v%d, s10, v%d", VW0, T0)
S_RO, S_LO = 60, 80
S_LO = 20
for j in range(4):
    a("s_add_u32 s10, s5, %d", j if opt("share", 1) else 0) if opt("share", 1) else a("s_mov_b32 s10, %d", j)
    a("s_and_b32 s10, s10, 3")
    a("s_mul_i32 s%d, s10, %d", S_RO + j, 16 * 3584)
a("s_lshl_b32 s%d, s3, 11", S_W2K)
CC = opt("cc", 8)
S_KO = 99 if not STAMP else 93
if CC < 8:
    NR = 8 - CC
    a("s_and_b32 s10, s5, 3")
    a("s_mul_i32 s10, s10, %d", opt("rm", 2))
    a("s_lshr_b32 s11, s5, 2")
    a("s_add_u32 s10, s10, s11")
    a("s_mul_i32 s11, s10, %d", (65536 + NR - 1) // NR)
    a("s_lshr_b32 s11, s11, 16")
    a("s_mul_i32 s11, s11, %d", NR)
    a("s_sub_u32 s10, s10, s11")
    seq = [CC + (i % NR) for i in range(16)]
    val = sum(x << (4 * i) for i, x in enumerate(seq))
    a("s_mov_b32 s12, 0x%x", val & 0xffffffff)
    a("s_mov_b32 s13, 0x%x", val >> 32)
    a("s_lshl_b32 s10, s10, 2")
    a("s_lshr_b64 s[12:13], s[12:13], s10")
    a("s_lshl_b32 s12, s12, %d", 4 * CC) if CC else None
    a("s_or_b32 s%d, s12, 0x%x", S_KO, sum(i << (4 * i) for i in range(CC)))
else:
    a("s_mov_b32 s%d, 0x76543210", S_KO)
a("s_and_b32 s10, s4, %d", opt("krot", 6))
a("s_mul_i32 s10, s10, 0x11111111")
a("s_add_u32 s%d, s%d, s10", S_KO, S_KO)
for r, n in ((SX, 2048 * 1024), (SG, 512 * 3584), (SWS, WS_BYTES), (SW, 1792 * 1024), (SO, 2048 * 1024)):
    a("s_mov_b32 s%d, 0x%x", r + 2, n)
    a("s_mov_b32 s%d, 0x20000", r + 3)
a("s_cmp_lt_u32 s5, 4")
a("s_cselect_b32 s%d, 1, 0", S_ISAUX)
if PRE_WAIT:
    a("s_waitcnt lgkmcnt(0)")
    kgen_loads()
def srd_base(r, p):
    a("s_mov_b32 s%d, s%d", r, p)
    a("s_and_b32 s%d, s%d, 0xffff", r + 1, p + 1)
srd_base(SX, P_U)
a("s_mov_b32 s%d, s%d", S_KR, S_KO)
a("s_cmp_lg_u32 s%d, 0", S_ISAUX)
a("s_cbranch_scc1 L_aux")

vm = []
def vmwait(tags):
    idx = [i for i, t in enumerate(vm) if t in tags]
    return len(vm) - 1 - max(idx)
def dma1(stage, j, m0r=None):
    slot = stage % 3
    if j == 0 or (j == 3 and stage < 2):
        a("s_bfe_u32 s%d, s%d, 0x%x", S_T, S_KR, (3 << 16) | (4 * stage))
        a("s_mul_i32 s%d, s%d, %d", S_T2, S_T, 64 * 3584)
        a("s_lshl_b32 s%d, s%d, 7", S_T, S_T)
    if j in (1, 2):
        a("s_add_u32 m0, s%d, %d", S_W2K, XB[slot] * BLK + (j - 1) * 1024)
        a("buffer_load_dwordx4 v%d, %s, s%d offen lds", VX0 + j - 1, sr(SX, 4), S_T)
    else:
        p = 0 if j == 0 else j - 2
        a("s_add_u32 m0, s%d, %d", S_LO + p, GB[slot] * BLK)
        a("s_add_u32 s%d, s%d, s%d", S_T3, S_T2, S_RO + p)
        a("buffer_load_dwordx4 v%d, %s, s%d offen lds", VW0, sr(SG, 4), S_T3)
    if m0r is not None: a("s_mov_b32 m0, s%d", m0r)
    vm.append(("G1", stage))
S_T3 = 24
vm += [("KP", 0)] * 7
a("s_cmp_ge_u32 s3, 4")
a("s_cselect_b32 s%d, s%d, s%d", SG, P_WU, P_WG)
a("s_cselect_b32 s%d, s%d, s%d", SG + 1, P_WU + 1, P_WG + 1)
a("s_and_b32 s%d, s%d, 0xffff", SG + 1, SG + 1)
a("s_lshr_b32 s10, s3, 2")
a("s_lshl_b32 s10, s10, 14")
a("s_and_b32 s11, s3, 3")
a("s_lshl_b32 s11, s11, 10")
a("s_add_u32 s10, s10, s11")
for j in range(4):
    a("s_add_u32 s11, s5, %d", j) if opt("share", 1) else a("s_mov_b32 s11, %d", j)
    a("s_and_b32 s11, s11, 3")
    a("s_lshl_b32 s11, s11, 12")
    a("s_add_u32 s%d, s10, s11", S_LO + j)
    if j == 0: dma1(0, 0); dma1(0, 1); dma1(0, 2)
stamp(11)
def common_srds():
    srd_base(SWS, P_WS); srd_base(SW, P_WD); srd_base(SO, P_OUT)
later_addrs(T0, T1, T2)
for j in range(3): dma1(1, j)
def g1_read_addrs():
    t0, t1, t2 = 18, 19, 20
    a("v_and_b32 v%d, 15, v1", t0)
    a("v_lshrrev_b32 v%d, 4, v1", t1)
    a("v_bfe_u32 v%d, v1, 1, 3", t2)
    a("v_xor_b32 v%d, v%d, v%d", t2, t2, t1)
    a("v_lshlrev_b32 v%d, 7, v%d", t0, t0)
    a("v_lshl_add_u32 v%d, v%d, 4, v%d", t0, t2, t0)
    a("s_lshl_b32 s10, s8, 13")
    a("v_add_u32 v%d, s10, v%d", VXR, t0)
    a("v_xor_b32 v%d, 64, v%d", VXR + 1, VXR)
    a("v_bfe_u32 v%d, v1, 2, 2", t0)
    a("v_lshl_add_u32 v%d, v%d, 3, v%d", t0, t1, t0)
    a("v_lshlrev_b32 v%d, 8, v%d", t0, t0)
    a("v_bfe_u32 v%d, v1, 2, 3", t2)
    a("s_and_b32 s10, s3, 2")
    a("s_lshl_b32 s10, s10, 1")
    a("v_xor_b32 v%d, s10, v%d", t2, t2)
    a("v_lshl_add_u32 v%d, v%d, 5, v%d", t0, t2, t0)
    a("v_and_b32 v%d, 3, v1", t2)
    a("v_lshl_add_u32 v%d, v%d, 3, v%d", t0, t2, t0)
    a("v_add_u32 v10, %d, v%d", 4 * BLK, t0)
    for m in range(1, 4): a("v_xor_b32 v%d, %d, v10", 10 + m, m << 5)
    for m in range(4): a("v_add_u32 v%d, %d, v%d", 14 + m, 4 * BLK, 10 + m)
def late_setup(comp, T0, T1, T2):
    common_srds()
    if comp:
        a("s_lshl_b32 s10, s6, 2")
        a("s_lshl_b32 s11, s8, 1")
        a("s_add_u32 s10, s10, s11")
        a("s_mul_i32 s10, s10, 112")
        a("s_lshl_b32 s11, s7, 3")
        a("s_add_u32 s10, s10, s11")
        a("s_lshl_b32 s11, s9, 2")
        a("s_add_u32 s10, s10, s11")
        a("s_lshl_b32 s%d, s10, 10", S_HST)
        a("s_mul_i32 s10, s6, %d", FSTR * (16 if PCF else 1))
        a("s_lshl_b32 s11, s7, 2")
        a("s_add_u32 s10, s10, s11")
        a("s_add_u32 s%d, s10, %d", S_FH, F_H2)
    later_addrs3(T0, T1, T2)
FX = 20
FA = 52
NAR = 10
ACC = 92
AORD = [(gu, m) for m in range(4) for gu in range(2)]
def xreads(step):
    st, ks = step // 2, step % 2
    return [("ds_read_b128 %s, v%d offset:%d" % (vr(FX + (step % 2) * 16 + 4 * tt, 4), VXR + ks, XB[st % 3] * BLK + tt * 2048), (step, "x", tt)) for tt in range(4)]
def areads(n):
    step, i = n // 8, n % 8
    st, ks = step // 2, step % 2
    gu, m = AORD[i]
    blk = GB[st % 3] + gu
    reg, rel = (10, blk - 4) if blk < 8 else (14, blk - 8)
    return [("ds_read_b64_tr_b16 %s, v%d offset:%d" % (vr(FA + 4 * (n % NAR) + 2 * hf, 2), reg + m, rel * BLK + ks * 8192 + hf * 1024), ("a", n)) for hf in range(2)]
def kgen_all(dmas):
    khead, ktail = kgen_valu(False)
    for i in khead: a(i)
    if opt("diag1", 0): stamp(7, True)
    a("s_mov_b32 m0, s%d", S_TM0)
    wr = {w_.split()[1]: w_ for w_ in kgen_writes()}
    q = []
    n = len(ktail); k = 0
    for n_, i in enumerate(ktail):
        a(i)
        if q and n_ % 1 == 0 and len(q) > 1: a(q.pop(0))
        if i.startswith("v_cvt"): q.append(wr[i.split()[1].rstrip(",")])
        if dmas and n_ >= opt("d1start", 40) and (n_ - opt("d1start", 40)) % opt("d1step", 20) == 0: dmas.pop(0)()
    for w_ in q: a(w_)
    for d in dmas: d()
def touch(stage):
    a("s_bfe_u32 s10, s%d, 0x%x", S_KR, (3 << 16) | (4 * stage))
    a("s_mul_i32 s10, s10, %d", 64 * 3584)
    a("s_add_u32 s10, s10, s%d", S_RO)
    a("buffer_load_dwordx4 v[52:55], v%d, %s, s10 offen", VW0, sr(SG, 4))
    vm.append(("T", 0))
if opt("stub", 1):
    for k_ in (0, 2):
        a("s_cmp_eq_u32 s3, %d", k_)
        a("s_cbranch_scc1 L_st%d", k_)
a("L_stret:")
a("s_waitcnt vmcnt(%d)", vmwait([("KP", 0)]))
stamp(0)
kgen_all([(lambda j=j: dma1(0, j, S_TM0)) for j in range(3, 6)])
stamp(14)
a("s_waitcnt lgkmcnt(0)")
a("s_barrier")
stamp(12)
lg = Lg()
for r in kreads(): lg.issue(*r)
a.srd(28, P_WG, 512 * 3584)
def ld_setup():
    a("v_subrev_u32 v8, 0x10000, v%d", VX0)
    a("v_subrev_u32 v9, 0x10000, v%d", VX1)
if opt("s1early", 1):
    for j in range(3, 6): dma1(1, j)
role(g1_read_addrs, ld_setup)
run_kmfma(lg, [], 0)
if not opt("s1early", 1):
    for j in range(3, 6): dma1(1, j)
a("s_waitcnt vmcnt(%d)", vmwait([("G1", 0)]))
a("s_barrier")
stamp(1)
class Raw:
    def __init__(self, f): self.f = f
a("s_cmp_ge_u32 s3, 4")
a("s_cbranch_scc1 L_load")
WST = 144
WSTO = {5: 0, 4: 32, 6: 64}
W4T = opt("w4t", 0)
W2T = opt("w2t", 0)
W1T = opt("w1t", 1)
def stage_w(rd, i0=0, n=8):
    a("s_lshl_b32 s13, s%d, 4", S_RT + rd)
    a("s_add_u32 s13, s13, s%d", S_WSO)
    if i0: a("s_add_u32 s13, s13, %d", i0 * 8192)
    for i in range(i0, i0 + n):
        a("buffer_load_dwordx4 %s, v%d, %s, s13 offen", vr(WST + WSTO[rd] + 4 * i, 4), VWD, sr(SW, 4))
        if i < i0 + n - 1: a("s_add_u32 s13, s13, 8192")
EUD = 244
def eops_load(EU=56, ED=60, t1=64, t2=65, t3=66):
    a("v_and_b32 v%d, 31, v1", t1)
    a("v_lshrrev_b32 v%d, 5, v1", t2)
    a("v_lshlrev_b32 v%d, 4, v%d", t3, t2)
    a("v_lshl_add_u32 v%d, v%d, 10, v%d", t1, t1, t3)
    a("buffer_load_dwordx4 %s, v%d, %s, s%d offen", vr(EU, 4), t1, sr(SX, 4), S_OB)
    a("v_add_u32 v%d, s%d, v%d", t3, S_DOFF, t3)
    a("global_load_dwordx4 %s, v%d, %s", vr(ED, 4), t3, sr(P_DSK, 2))
def eops_calc(EU=56, ED=60, t1=64, t2=65, t3=66):
    for j in range(4):
        a("v_lshlrev_b32 v%d, 16, v%d", t1, EU + j)
        a("v_lshlrev_b32 v%d, 16, v%d", t2, ED + j)
        a("v_and_b32 v%d, 0xffff0000, v%d", EU + j, EU + j)
        a("v_and_b32 v%d, 0xffff0000, v%d", ED + j, ED + j)
        a("v_mul_f32 v%d, v%d, v%d", t1, t1, t2)
        a("v_mul_f32 v%d, v%d, v%d", t2, EU + j, ED + j)
        a("v_cvt_pk_bf16_f32 v%d, v%d, v%d", EUD + j, t1, t2)
def dma_w(rd, i):
    a("s_lshl_b32 s10, s3, 12")
    a("s_add_u32 m0, s10, %d", WB[rd] * BLK + i * 1024)
    a("s_lshl_b32 s10, s%d, 4", S_RT + rd)
    a("s_add_u32 s10, s10, s%d", S_W0S)
    a("s_add_u32 s10, s10, %d", i * 8192)
    a("buffer_load_dwordx4 v%d, %s, s10 offen lds", VWD, sr(SW, 4))
    vm.append(("W0", 0))
S_PFI = 101
if opt("cprio", 2): a("s_setprio %d", opt("cprio", 2))
lg = Lg()
for r in areads(0) + xreads(0): lg.issue(*r)
for n in range(1, 8):
    for r in areads(n): lg.issue(*r)
    if n == 3: kmfma_finish()
a("s_waitcnt lgkmcnt(8)") if False else None
kv = a.capture(late_setup, True, 18, 19, 7)
ECT = dict(EU=220, ED=224, t1=228, t2=229, t3=230)
def epilogue(p):
    for tt in range(4):
        dst = (FX if p == 0 else FX + 16) + 4 * tt
        for m in (2 * p, 2 * p + 1):
            g = ACC + (m * 4 + tt) * 4; u = ACC + ((4 + m) * 4 + tt) * 4
            if (opt("eplain", 3) >> p) & 1:
                for q_ in range(4): a("v_mul_f32 v%d, v%d, v%d", g + q_, g + q_, u + q_)
            else:
                for q_ in range(2): a("v_pk_mul_f32 %s, %s, %s", vr(g + 2 * q_, 2), vr(g + 2 * q_, 2), vr(u + 2 * q_, 2))
        for m in (2 * p, 2 * p + 1):
            g = ACC + (m * 4 + tt) * 4
            for q_ in range(2): a("v_cvt_pk_bf16_f32 v%d, v%d, v%d", dst + 2 * (m & 1) + q_, g + 2 * q_, g + 2 * q_ + 1)
        a("buffer_store_dwordx4 %s, v18, %s, s%d offen offset:%d sc1", vr(dst, 4), sr(SWS, 4), S_HST if tt < 2 else 10, 2048 * p + 256 * (tt & 1))
epi = [a.capture(epilogue, 0), a.capture(epilogue, 1)]
AHEAD = 8
for step in range(16):
    st, ks = step // 2, step % 2
    q = []
    if step < 15:
        sched = {}
        for i in range(8):
            g_ = max(0, 4 * (i - (NAR - 8)) + 3)
            sched.setdefault(g_, []).extend(areads((step + 1) * 8 + i))
        xq = xreads(step + 1)
    order = [(i, tt if (i % 2 == 0 or not opt("snake", 0)) else 3 - tt) for i in range(8) for tt in range(4)]
    for g, (i, tt) in enumerate(order):
        gu, m = AORD[i]
        n = step * 8 + i
        d = vr(ACC + ((gu * 4 + m) * 4 + tt) * 4, 4)
        lg.need([("a", n), (step, "x", tt)])
        a("v_mfma_f32_16x16x32_bf16 %s, %s, %s, %s", d, vr(FA + 4 * (n % NAR), 4), vr(FX + (step % 2) * 16 + 4 * tt, 4), d if step else "0")
        if step < 15: q += sched.pop(g, [])
        if step == 15 and g >= 18:
            assert not kv
            for _ in range(opt("epg", 3)):
                if epi[0]: a(epi[0].pop(0))
        if q: lg.issue(*q.pop(0))
        elif step < 15 and xq: lg.issue(*xq.pop(0))
        elif kv:
            k_ = kv.pop(0)
            k_() if callable(k_) else a(k_)
            if kv and not callable(k_) and k_.startswith("s_") and not callable(kv[0]) and opt("s2", 1): a(kv.pop(0))
    assert not q and (step == 15 or not xq)
    if ks == 0:
        a("s_waitcnt %slgkmcnt(0)", "vmcnt(0) " if st == 0 else ""); lg.drained()
        a("s_barrier")
        if opt("stg", 0): stamp([4, 5, 6, 7, 8, 10, 13, 14][st], True)
        if st == 5:
            assert not kv, len(kv)
            kv = a.capture(eops_load, *[ECT[k] for k in ("EU", "ED", "t1", "t2", "t3")])
        if st == 6:
            kv = ["s_waitcnt vmcnt(0)"] + a.capture(eops_calc, *[ECT[k] for k in ("EU", "ED", "t1", "t2", "t3")])
        if st == 7:
            kv += ["ds_read_b32 v%d, v%d offset:%d" % (VN, VZ, L_SY + 100), "v_lshrrev_b32 v18, 4, v1", "v_lshlrev_b32 v18, 9, v18",
                   "v_and_b32 v19, 15, v1", "v_lshl_add_u32 v18, v19, 4, v18", "s_add_u32 s10, s%d, %d" % (S_HST, 112 * 1024)]
assert not kv
stamp(2)
for k_ in epi[0] + epi[1]: a(k_)
a("s_waitcnt lgkmcnt(0)")
a("v_readfirstlane_b32 s%d, v%d", S_NONCE, VN)

def loader():
    SG2 = 28
    VX2 = 8
    a("L_load:")
    def stage(s_, part=3):
        slot = s_ % 3
        a("s_bfe_u32 s%d, s%d, 0x%x", S_T, S_KR, (3 << 16) | (4 * s_))
        a("s_mul_i32 s%d, s%d, %d", S_T2, S_T, 64 * 3584)
        a("s_lshl_b32 s%d, s%d, 7", S_T, S_T)
        def wp(p):
            a("s_add_u32 s%d, s%d, s%d", S_T3, S_T2, S_RO + p)
            for m in range(2):
                a("s_add_u32 m0, s%d, %d", S_LO + p, (GB[slot] - 1 + m) * BLK)
                a("buffer_load_dwordx4 v%d, %s, s%d offen lds", VW0, sr([SG2, SG][m], 4), S_T3)
                vm.append(("G1", s_))
        if part & 1: wp(0)
        for h_ in range(2 if part & 1 else 0):
            for i in range(2):
                a("s_add_u32 m0, s%d, %d", S_W2K, (XB[slot] * BLK + i * 1024 - (1 - h_) * 8192) & 0xffffffff)
                a("buffer_load_dwordx4 v%d, %s, s%d offen lds", [VX2, VX0][h_] + i, sr(SX, 4), S_T)
                vm.append(("G1", s_))
        if part & 2:
            for p in range(1, 4): wp(p)
    wl = hl_list(True)
    def wloads(n):
        for _ in range(n):
            wl.pop(0)(); vm.append(("W", 0))
    SP = opt("sp", 2)
    stage(2, 1 if SP else 3)
    kmfma_finish()
    ls = a.capture(late_setup, False, T0, T1, T2)
    for st in range(8):
        if st < 7: a("s_waitcnt vmcnt(%d) lgkmcnt(0)", vmwait([("G1", st + 1)]))
        else: a("s_waitcnt lgkmcnt(0)")
        a("s_barrier")
        if st < SP and st + 2 <= 7: stage(st + 2, 2)
        if st + 3 <= 7: stage(st + 3, 1 if st + 1 < SP else 3)
        if st == 0: onwave(4, zero_pads_k)
        if 1 <= st <= 3:
            n_ = (len(ls) + 3 - st) // (4 - st)
            for k_ in ls[:n_]: a(k_)
            ls = ls[n_:]
        if st == 4:
            later_addrs2(T0, T1, T2)
            conv_prelude()
            if UE:
                a("s_mov_b32 s%d, %d", S_PB, F_A)
                poll_issue(32); vm.append(("X", 0))
                nonce_issue(); vm.append(("X", 0))
        def ucheck():
            a("s_waitcnt vmcnt(%d)", vmwait([("X", 0)]))
            nonce_check()
            def wn():
                a("s_mov_b64 exec, 1")
                a("ds_write_b32 v%d, v%d offset:%d", VZ, VN, L_SY + 100)
                a("s_mov_b64 exec, -1")
            onwave(4, wn)
            poll_check(16)
            u_load(); vm.append(("U", 0)); vm.append(("U", 0))
        if st == 5:
            eops_load(); vm.append(("E", 0)); vm.append(("E", 0))
            onwave(5, zero_pads_u)
            if UE: ucheck()
            else:
                a("s_mov_b32 s%d, %d", S_PB, F_A)
                poll_issue(32); vm.append(("X", 0))
                nonce_issue(); vm.append(("X", 0))
            wloads(NW[1])
        if st == 6:
            if not UE: ucheck()
            else:
                a("s_waitcnt vmcnt(%d)", vmwait([("U", 0)]))
                u_write()
                eops_calc()
            wloads(NW[2])
    stamp(2)
    wloads(min(NW[3], 8))
    if not UE:
        a("s_waitcnt vmcnt(%d)", vmwait([("U", 0)]))
        u_write()
        sig(VSY, 0)
        wloads(NW[3] - min(NW[3], 8))
        eops_calc()
        a("v_and_b32 v19, 3, v1")
        a("v_lshlrev_b32 v19, 2, v19")
        lds_wait(19, L_SY + 16, 18, 0)
    if opt("hold", 0): lds_wait(7, 104, 18, 1)
UE = opt("ue", 0)
def conv_prelude():
    a("v_mov_b32 v6, 1")
    a("v_mov_b32 v7, %d", L_SY)
    a("s_lshl_b32 s10, s%d, 4", S_TQ)
    a("s_add_u32 s10, s10, %d", L_SY + 32)
    a("v_mov_b32 v108, s10")
    a("v_xor_b32 v109, 16, v108")
NW = [0, opt("nw5", 8), opt("nw6", 8), opt("nw7", 0)]
AUX0 = len(a.lines)
HIST0 = list(a.hist)
a("L_aux:")
common_srds()
a("s_lshl_b32 s6, s4, 2")
a("s_add_u32 s6, s6, s5")
PITCH = 1040
LA = 6 * BLK - 1024
LGW = 0
a("v_lshlrev_b32 v4, 4, v1")
a("v_mov_b32 v10, 0")
a("s_mov_b32 s9, %d", F_E)
a("buffer_load_dword v12, v10, %s, s9 offen sc1", sr(SWS, 4))
a("s_lshl_b32 s7, s6, 16")
a("s_lshl_b32 s8, s3, 13")
a("s_add_u32 s7, s7, s8")
a("s_mul_i32 s8, s3, %d", 8 * PITCH)
for j in range(8):
    a("s_add_u32 m0, s8, %d", LA + j * PITCH)
    a("s_add_u32 s11, s7, %d", j * 1024)
    a("buffer_load_dwordx4 v4, %s, s11 offen lds", sr(SX, 4))
a("global_load_dwordx4 v[28:31], v4, %s", sr(P_GW, 2))
a("s_or_b32 s10, s2, s3")
a("s_cmp_lg_u32 s10, 0")
a("s_cbranch_scc1 L_nononce")
a("s_mov_b32 s10, 0x9e3779b1")
a("s_waitcnt vmcnt(9)")
a("v_mul_lo_u32 v12, v12, s10")
a("v_add_u32 v12, 0x7f4a7c15, v12")
a("v_mov_b32 v13, 1")
a("s_mov_b64 exec, 1")
a("global_store_dwordx2 v10, v[12:13], %s sc1", sr(P_DBG, 2))
a("buffer_store_dword v12, v10, %s, s9 offen sc1", sr(SWS, 4))
a("s_mov_b64 exec, -1")
a("L_nononce:")
a("v_and_b32 v5, 7, v0")
a("v_lshlrev_b32 v5, 4, v5")
a("v_lshrrev_b32 v6, 4, v1")
a("v_bfe_u32 v7, v1, 2, 2")
a("v_lshl_add_u32 v7, v7, 2, v6")
a("v_mul_u32_u24 v7, %d, v7", PITCH)
a("v_and_b32 v8, 3, v1")
a("v_lshl_add_u32 v7, v8, 3, v7")
a("s_and_b32 s9, s3, 1")
a("s_mul_i32 s10, s9, %d", 32 * PITCH)
a("s_lshr_b32 s11, s3, 1")
a("s_lshl_b32 s12, s11, 8")
a("s_add_u32 s10, s10, s12")
a("s_add_u32 s10, s10, %d", LA)
a("v_add_u32 v7, s10, v7")
a("v_bfe_u32 v8, v1, 1, 3")
a("v_lshlrev_b32 v8, 13, v8")
a("v_lshl_add_u32 v8, v6, 5, v8")
a("v_and_b32 v9, 1, v1")
a("v_lshl_add_u32 v8, v9, 4, v8")
a("s_lshl_b32 s12, s11, 19")
a("s_lshl_b32 s13, s6, 1")
a("s_add_u32 s13, s13, s9")
a("s_lshl_b32 s13, s13, 7")
a("s_add_u32 s12, s12, s13")
a("s_add_u32 s12, s12, %d", WS_UT)
a("v_lshrrev_b32 v9, 3, v0")
a("v_mul_u32_u24 v10, %d, v9", PITCH)
a("v_add_u32 v10, v10, v5")
a("v_add_u32 v10, %d, v10", LA)
a("s_waitcnt vmcnt(0)")
a("ds_write_b128 v4, v[28:31] offset:%d", LGW)
a("s_waitcnt lgkmcnt(0)")
a("s_barrier")
stamp(0)
for j in range(8):
    for hf in range(2):
        a("ds_read_b64_tr_b16 %s, v7 offset:%d", vr(64 + 4 * j + 2 * hf, 2), hf * 16 * PITCH + j * 32)
nonce_issue()
for j in range(8):
    a("s_waitcnt lgkmcnt(%d)", 14 - 2 * j)
    a("s_add_u32 s13, s12, %d", j * 65536)
    a("buffer_store_dwordx4 %s, v8, %s, s13 offen sc1", vr(64 + 4 * j, 4), sr(SWS, 4))
for j in range(8):
    a("ds_read_b128 %s, v10 offset:%d", vr(96 + 4 * j, 4), j * 128)
    a("ds_read_b128 %s, v5 offset:%d", vr(32 + 4 * j, 4), LGW + j * 128)
a("v_mov_b32 v11, 0")
a("v_mov_b32 v12, 0")
a("s_waitcnt lgkmcnt(0)")
for j in range(32):
    a("v_dot2_f32_bf16 v%d, v%d, v%d, v%d", 11 + j % 2, 32 + j, 96 + j, 11 + j % 2)
a("v_add_f32 v11, v11, v12")
a("v_add_f32_dpp v11, v11, v11 quad_perm:[1,0,3,2] row_mask:0xf bank_mask:0xf")
a("v_add_f32_dpp v11, v11, v11 quad_perm:[2,3,0,1] row_mask:0xf bank_mask:0xf")
a("v_add_f32_dpp v11, v11, v11 row_half_mirror row_mask:0xf bank_mask:0xf")
a("v_mul_f32 v11, 0xbfb8aa3b, v11")
a("v_exp_f32 v11, v11")
a("v_add_f32 v11, 1.0, v11")
a("v_rcp_f32 v11, v11")
a("v_lshlrev_b32 v9, 2, v9")
a("s_waitcnt vmcnt(0)")
nonce_check()
a("s_barrier")
a("s_cmp_lg_u32 s3, 0")
a("s_cbranch_scc1 L_auxnf")
a("s_lshl_b32 s10, s6, 2")
a("s_add_u32 s10, s10, %d", F_A)
flag_store("s10")
a("L_auxnf:")
stamp(1)
a("s_lshl_b32 s13, s6, 8")
a("s_add_u32 s13, s13, %d", WS_G)
a("v_cmp_eq_u32 vcc, 0, v5")
a("s_mov_b64 exec, vcc")
a("buffer_store_dword v11, v9, %s, s13 offen sc1", sr(SWS, 4))
a("s_mov_b64 exec, -1")
later_addrs(T0, T1, T2)
later_addrs2(T0, T1, T2)
later_addrs3(T0, T1, T2)
if opt("apf", 1) == 1:
    a("s_lshl_b32 s10, s6, 13")
    a("s_lshl_b32 s11, s3, 10")
    a("s_add_u32 s10, s10, s11")
    for k_ in range(7):
        a("buffer_load_dwordx4 v[52:55], v%d, %s, s10 offen", VH, sr(SW, 4))
        a("s_add_u32 s10, s10, %d", 256 * 1024)
if opt("apf", 1) == 2:
    a("s_lshr_b32 s10, s4, 1")
    a("s_mul_i32 s10, s10, %d", 448 * 1024)
    a("s_lshl_b32 s11, s5, 3")
    a("s_add_u32 s11, s11, s3")
    a("s_lshl_b32 s11, s11, 11")
    a("s_add_u32 s10, s10, s11")
    a("s_and_b32 s11, s4, 1")
    a("s_lshl_b32 s11, s11, 9")
    a("s_add_u32 s10, s10, s11")
    a("v_lshrrev_b32 v18, 5, v1")
    a("v_lshl_add_u32 v18, v18, 9, v%d", VH)
    for k_ in range(7):
        a("buffer_load_dwordx4 v[52:55], v18, %s, s10 offen", sr(SW, 4))
        a("s_add_u32 s10, s10, 65536")
kgen_all([])
a("s_waitcnt lgkmcnt(0)")
a("s_barrier")
lg = Lg()
for r in kreads(): lg.issue(*r)
run_kmfma(lg, [], 0)
def p_():
    a("s_mov_b32 s%d, %d", S_PB, F_A)
    poll_issue(32)
    a("s_waitcnt vmcnt(0)")
    poll_check(16)
onwave(0, p_)
a("s_waitcnt vmcnt(0)")
a("s_barrier")
role(u_load, None)
eops_load()
kmfma_finish()
onwave(0, zero_pads_k)
onwave(1, zero_pads_u)
def p_():
    a("s_lshl_b32 s10, s6, 2")
    a("s_add_u32 s10, s10, %d", F_G)
    flag_store("s10")
onwave(4, p_)
a("s_waitcnt vmcnt(0)")
role(u_write, None)
eops_calc()
AUXW = len(a.lines)
a("s_waitcnt lgkmcnt(0)")
a("s_barrier")
stamp(2)

conv_prelude()
a("s_cmp_ge_u32 s3, 4")
a("s_cbranch_scc1 L_conv")
a("s_branch L_help")
aux_lines = a.lines[AUX0:]
a.lines = a.lines[:AUX0]
a.hist = HIST0
VA, VB, VC, VY = 2, 3, 4, 5
HF = 80
HRING = 16
VO = 14
HFC = 112
def hload(j0, n, vml, HF=HF):
    for j in range(j0, j0 + n):
        if j % 4 == 0 or j == j0:
            a("s_add_u32 s%d, s%d, s%d", S_T, S_HB, S_RT + j // 4)
        a("buffer_load_dwordx4 %s, v%d, %s, s%d offen offset:%d%s", vr(HF + 4 * (j % HRING), 4), VH, sr(SWS, 4), S_T, (j % 4) * 1024, "" if opt("hplain", 0) else " sc1")
        vml.append(("H", j))

WORD = {0: [0, 1, 4, 5, 6, 2, 3], 8: [0, 1, 2, 4, 5, 6, 3], 16: [0, 1, 2, 3, 4, 5, 6]}[opt('nw7', 0)]
def hl_list(all_=False):
    L = []
    for rd in WORD:
        for i in range(8):
            def f(rd=rd, i=i):
                if rd < 4:
                    a("s_add_u32 m0, s%d, %d", S_WLD, WB[rd] * BLK + i * 1024)
                if i == 0:
                    a("s_lshl_b32 s13, s%d, 4", S_RT + rd)
                    a("s_add_u32 s13, s13, s%d", S_WSO)
                else:
                    a("s_add_u32 s13, s13, 8192")
                if rd < 4:
                    a("buffer_load_dwordx4 v%d, %s, s13 offen lds", VWD, sr(SW, 4))
                else:
                    a("buffer_load_dwordx4 %s, v%d, %s, s13 offen", vr(WST + WSTO[rd] + 4 * i, 4), VWD, sr(SW, 4))
            L.append(f)
    return L if all_ else L[sum(NW):]
assert all(x % 8 == 0 for x in NW) and NW[0] <= 8 and NW[0] + NW[1] <= 16
BC0 = len(a.lines)
a("L_st2:"); a("s_branch L_stret")
loader()
a("L_conv:")
stamp(3)
if opt("prio", 0): a("s_setprio %d", opt("prio", 0))
a("s_mov_b32 s14, 0x11111111")
a("s_mov_b32 s15, 0x11111111")
a("s_mov_b64 vcc, s[14:15]")
a("s_mov_b32 s12, 0x33333333")
a("s_mov_b32 s13, 0x33333333")
a("s_bitcmp1_b32 s3, 0")
a("s_cbranch_scc1 L_set1")
BF = 112
AF = 8
AC = 28
C1POS = opt("c1pos", 26)
LOOK = opt("look", 6)
NC0 = opt("nc0", 6)
FPG = opt("fpg", 4)
vmc = None
VCF, VCP = 108, 109
DONE = {}
def done_pos(jt):
    CM = opt("cm", 0)
    for tiles in ([0, 3, 4, 7], [1, 2, 5, 6]):
        if jt in tiles:
            groups = {0: [[0, 1, 2, 3]], 1: [[0], [1], [2], [3]], 2: [[0, 1], [2, 3]], 3: [[0, 1, 2], [3]]}[CM]
            sc = [tiles[ti] for g_ in groups for dl in range(4 * tiles[g_[-1]] + 4) for ti in g_ if dl <= 4 * tiles[ti] + 3]
            return max(p for p, x in enumerate(sc) if x == jt)
for si, tiles in enumerate([[0, 3, 4, 7], [1, 2, 5, 6]]):
    if si == 1:
        a("L_st0:"); a("s_branch L_stret")
        a("L_set1:")
    other = [[1, 2, 5, 6], [0, 3, 4, 7]][si]
    lg = Lg()
    CM = opt("cm", 0)
    groups = {0: [[0, 1, 2, 3]], 1: [[0], [1], [2], [3]], 2: [[0, 1], [2, 3]], 3: [[0, 1, 2], [3]]}[CM]
    sched = []; aid = []; adl = []
    for g_ in groups:
        for dl in range(4 * tiles[g_[-1]] + 4):
            adl.append(dl)
            for ti in g_:
                if dl <= 4 * tiles[ti] + 3:
                    sched.append((dl, ti, tiles[ti])); aid.append(len(adl) - 1)
    NA = 5
    lastuse = {}
    for pos in range(len(sched)): lastuse[aid[pos]] = pos
    loads = []; seenB = set(); seenA = set()
    for pos, (dl, ti, jt) in enumerate(sched):
        if aid[pos] not in seenA: seenA.add(aid[pos]); loads.append(("A", aid[pos], pos))
        e = 4 * jt - dl
        if e not in seenB: seenB.add(e); loads.append(("B", e, pos))
    done_at = {jt: max(p for p, x in enumerate(sched) if x[2] == jt) for jt in tiles}
    DONE.update(done_at)
    def ld_instrs(kind, idx):
        if kind == "A":
            r = AF + 4 * (idx % NA); dl_ = adl[idx]
            return ["ds_read_b64_tr_b16 %s, v%d offset:%d" % (vr(r + 2 * hf, 2), VA, 128 * dl_ + 32 * (1 - hf)) for hf in range(2)]
        return ["ds_read_b128 %s, v%d offset:%d" % (vr(BF + 4 * (idx + 3), 4), VB, 128 * (idx + 3))]
    nys = [0]
    ystores = []
    def post(ti, jt):
        b = AC + 20 * ti
        L = []
        q1 = "quad_perm:[1,1,3,3] row_mask:0xf bank_mask:0xf"; q2 = "quad_perm:[2,2,2,2] row_mask:0xf bank_mask:0xf"
        q0 = "quad_perm:[0,0,0,0] row_mask:0xf bank_mask:0xf"
        L.append("v_mov_b32_dpp v%d, v%d %s" % (b + 16, b + 15, q1))
        for q in range(15, 0, -1):
            L.append("v_add_f32_dpp v%d, v%d, v%d %s" % (b + q, b + q - 1, b + q, q1))
        L.append("v_mov_b32_dpp v%d, v%d %s" % (b + 18, b + 16, q2))
        L.append("v_mov_b32_dpp v%d, v%d %s" % (b + 17, b + 15, q2))
        L.append("v_add_f32_dpp v%d, v%d, v%d %s" % (b + 16, b + 14, b + 16, q2))
        def cw():
            a("s_mov_b64 exec, vcc")
            lg.issue("ds_write_b128 v%d, %s offset:%d" % (VC, vr(b + 16, 4), 256 * jt + 16))
            if jt + 1 in other:
                a("s_mov_b64 exec, 1")
                lg.issue("ds_write_b32 v%d, v6 offset:%d" % (VCF, 4 * ti))
            a("s_mov_b64 exec, -1")
        L.append(cw)
        for q in range(15, 1, -1):
            L.append("v_add_f32_dpp v%d, v%d, v%d %s" % (b + q, b + q - 2, b + q, q2))
        for q in range(2, 8):
            L.append("v_cvt_pk_bf16_f32 v%d, v%d, v%d" % (b + 16 + (q - 2) if q < 4 else b + q, b + 2 * q, b + 2 * q + 1))
        L = [(0, x) for x in L]
        part = (jt - 1) in other
        mp = done_pos(jt - 1) + opt("cmarg", 22) if part else 0
        def rd():
            if part: lg.issue("ds_read_b32 v%d, v%d offset:%d" % (b + 12, VCP, 4 * other.index(jt - 1)), ("cf", ti))
            lg.issue("ds_read_b128 %s, v%d offset:%d" % (vr(b + 8, 4), VC, 256 * jt), ("cy", ti))
        L.append((mp, rd))
        def chk():
            lg.need([("cy", ti)])
            if part:
                ok = a.label("Lcok"); sl = a.label("Lcsl")
                a("v_readfirstlane_b32 s10, v%d", b + 12)
                a("s_cmp_eq_u32 s10, 0")
                a("s_cbranch_scc1 %s", sl)
                a(ok + ":")
                def sp(ok=ok, sl=sl, oi=other.index(jt - 1)):
                    a(sl + ":")
                    lds_wait(VCP, 4 * oi, b + 12, 0)
                    a("s_mov_b64 vcc, s[14:15]")
                    a("ds_read_b128 %s, v%d offset:%d", vr(b + 8, 4), VC, 256 * jt)
                    a("s_waitcnt lgkmcnt(0)")
                    a("s_branch %s", ok)
                slow.append(sp)
        L.append((-3, chk))
        for q in range(3):
            L.append((0, "v_add_f32 v%d, v%d, v%d" % (b + q, b + q, b + 8 + q)))
        L.append((0, "v_cvt_pk_bf16_f32 v%d, v%d, v%d" % (b, b, b + 1)))
        L.append((0, "v_cvt_pk_bf16_f32 v%d, v%d, v%d" % (b + 1, b + 2, b + 3)))
        L.append((0, "v_cndmask_b32_dpp v%d, v%d, v%d, vcc %s" % (b + 2, b + 6, b + 16, q0)))
        L.append((0, "v_cndmask_b32_dpp v%d, v%d, v%d, vcc %s" % (b + 3, b + 7, b + 17, q0)))
        L.append((0, "v_cndmask_b32_dpp v%d, v%d, v%d, vcc %s" % (b, b + 4, b, q0)))
        L.append((0, "v_cndmask_b32_dpp v%d, v%d, v%d, vcc %s" % (b + 1, b + 5, b + 1, q0)))
        def st_():
            a("s_mov_b64 exec, s[12:13]")
            a("buffer_store_dwordx4 %s, v%d, %s, s%d offen offset:%d sc1", vr(b, 4), VY, sr(SWS, 4), S_YB, 512 * jt)
            a("s_mov_b64 exec, -1")
            nys[0] += 1
        if opt("ydefer", 1): ystores.append(st_)
        else: L.append((0, st_))
        return L
    li = 0; queues = []
    def emit(x): a(x) if isinstance(x, str) else x()
    for pos, (dl, ti, jt) in enumerate(sched):
        for ld in list(loads):
            kind, idx, fp = ld
            if fp <= pos + LOOK and not (kind == "A" and idx >= NA and lastuse[idx - NA] >= pos):
                for ins in ld_instrs(kind, idx): lg.issue(ins, (kind, idx))
                loads.remove(ld)
        e = 4 * jt - dl
        lg.need([("A", aid[pos]), ("B", e)])
        d = vr(AC + 20 * ti, 16)
        a("v_mfma_f32_32x32x16_bf16 %s, %s, %s, %s", d, vr(AF + 4 * (aid[pos] % NA), 4), vr(BF + 4 * (e + 3), 4), d if dl else "0")
        if opt("diag2", 0) and pos in (15, 39):
            stamp({15: 11, 39: 12}[pos], True); lg.drained()
        bud = FPG
        for qu in queues:
            while bud and qu[0] and pos >= qu[1]:
                mp, x = qu[0][0]
                if mp > pos: break
                if mp < 0:
                    qu[0][0] = (pos - mp, x); break
                qu[0].pop(0); emit(x); bud -= 1
        if dl == 4 * jt + 3: queues.append([post(ti, jt), pos + 3])
    stamp(4)
    def upto(qu, name, incl):
        names = [getattr(x, "__name__", "") for mp, x in qu[0]]
        if name not in names: return
        n_ = names.index(name) + (1 if incl else 0)
        for mp, x in qu[0][:n_]: emit(x)
        qu[0] = qu[0][n_:]
    for qu in queues[:-1]: upto(qu, "cw", True)
    upto(queues[-1], "cw", True)
    for qu in queues[:-1]: upto(qu, "rd", True)
    upto(queues[-1], "rd", True)
    for qu in queues[:-1]:
        for mp, x in qu[0]: emit(x)
    for mp, x in queues[-1][0]: emit(x)
    for x in ystores: x()
    stamp(5)
    if si == 0: a("s_branch L_g2c")

BH0 = len(a.lines)
a.hist = HIST0
a("v_mov_b32 v6, 1")
a("v_mov_b32 v7, %d", L_SY)
if opt("hold", 0): onwave(3, lambda: sig(7, 104))
a("s_setprio 0")
a("L_help:")
stamp(3)
NPRE = opt("npre", 8)
for f in hl_list()[:NPRE]: f()
a("s_waitcnt vmcnt(%d)", NPRE)
sig(VSY, 0)
stamp(10)
a("s_cmp_lg_u32 s3, 0")
a("s_cbranch_scc1 L_hdma")
a("s_cmp_lg_u32 s%d, 0", S_ISAUX)
a("s_cbranch_scc1 L_hdma")
a("v_and_b32 v2, 3, v1")
a("v_lshl_add_u32 v2, v2, 2, v7")
rest = hl_list()[NPRE:]
SEG = opt("seg", 2)
NSEG = opt("nseg", 6)
for k in range(NSEG):
    a("ds_read_b32 v3, v2")
    a("s_waitcnt lgkmcnt(0)")
    a("v_cmp_eq_u32 vcc, 0, v3")
    a("s_cmp_eq_u64 vcc, 0")
    a("s_cbranch_scc1 L_pub%d", k)
    for f in rest[k * SEG:(k + 1) * SEG]: f()
lds_wait(2, 0, 3, 0)
for k in range(NSEG, -1, -1):
    a("L_pub%d:" % k)
    a("s_mov_b32 s11, s%d", S_NONCE)
    a("s_buffer_atomic_swap s11, %s, s%d", sr(SWS, 4), S_FH)
    if STAMP and k == 0: pass
    if k: a("s_branch L_seg%d", k)
a("L_hdma:")
for n_, f in enumerate(rest):
    if n_ and n_ % SEG == 0 and n_ // SEG <= NSEG: a("L_seg%d:" % (n_ // SEG))
    f()
stamp(6)
NH0 = opt("nh0", 6)
def hpoll():
    if PCF:
        a("s_lshl_b32 s%d, s%d, 3", S_PB, S_TB)
        a("s_add_u32 s%d, s%d, s%d", S_PB, S_PB, S_DB)
    else:
        a("s_lshr_b32 s%d, s%d, 1", S_PB, S_TB)
    a("s_mul_i32 s%d, s%d, %d", S_PB, S_PB, FSTR)
    a("s_add_u32 s%d, s%d, %d", S_PB, S_PB, F_H2)
    a("s_mov_b32 s8, s%d", S_NONCE)
    a("s_mov_b32 s9, s%d", S_NONCE)
    a("s_mov_b32 s12, 0")
    a("L_sp:")
    a("s_buffer_load_dwordx16 s[16:31], %s, s%d glc", sr(SWS, 4), S_PB)
    a("s_add_u32 s12, s12, 1")
    a("s_waitcnt lgkmcnt(0)")
    a("s_xor_b64 s[10:11], s[16:17], s[8:9]")
    for i in range(1, 7):
        a("s_xor_b64 s[14:15], s[%d:%d], s[8:9]", 16 + 2 * i, 17 + 2 * i)
        a("s_or_b64 s[10:11], s[10:11], s[14:15]")
    a("s_cbranch_scc0 L_fnd")
    a("s_cmp_lt_u32 s12, %d", opt("spn", 64))
    a("s_cbranch_scc1 L_sp")
    poll_issue(14)
    a("s_waitcnt vmcnt(0)")
    poll_check(1)
    a("L_fnd:")
    sig(7, 96)
def ypublish():
    a("s_waitcnt vmcnt(0)")
    sig(VSY, 96)
    def p_():
        a("v_and_b32 v2, 3, v1")
        a("v_lshl_add_u32 v2, v2, 2, v7")
        lds_wait(2, 112, 3, 0)
        a("s_lshl_b32 s10, s2, 2")
        a("s_add_u32 s10, s10, %d", F_Y)
        flag_store("s10")
    onwave(4, p_)
    stamp(6)
vmh = []; vmc = []

def gemm2(role_, vml):
    helper = role_ == "h"
    HFR = HF if helper else HFC
    R = 8
    VYR, EG = 15, 16
    EY = 176
    VWW = 76
    t0, t1, t2, t3 = 2, 3, 4, 5
    AFR = 20
    AC2 = 44
    YL = 180
    A0 = 188
    RR = 16
    def vw(tags):
        idx = [i for i, t in enumerate(vml) if t in tags]
        if opt("g2nowait", 0) and tags[0][0] in "HW": return 63
        if not idx: return 63
        return min(63, len(vml) - 1 - max(idx))
    a("v_mov_b32 v%d, v%d", R, VR0)
    a("v_xor_b32 v%d, 64, v%d", R + 1, VR0)
    for m in range(2):
        a("v_add_u32 v%d, %d, v%d", R + 2 + m, 4 * BLK, R + m)
        a("v_add_u32 v%d, %d, v%d", R + 4 + m, 8 * BLK, R + m)
    if helper and opt("pollpre", 1): onwave(opt("pollw", 1), hpoll)
    a("s_waitcnt vmcnt(%d)", 0 if helper else 4)
    if not helper and opt("pollpre", 1) and not opt("ylate", 1): ypublish()
    a("s_barrier")
    stamp(7)
    if opt("g2prio", 0) and not helper: a("s_setprio 1")
    def reads(step):
        rd, ks = step // 4, step % 4
        blk = WB[rd]
        f = AFR + (step % 3) * 8
        L = []
        for m in range(2):
            for hf in range(2):
                L.append(("ds_read_b64_tr_b16 %s, v%d offset:%d" % (vr(f + 4 * m + 2 * hf, 2), R + 2 * (blk // 4) + m, (blk % 4) * BLK + ((ks >> 1) * 4096 + (ks & 1) * 1024 + hf * 2048 if G16 else ks * 2048 + hf * 1024)), (step, m)))
        return L
    def ypoll_issue():
        a("s_lshl_b32 s10, s%d, 7", S_DB)
        a("v_lshl_add_u32 v%d, v1, 2, s10", VN + 2)
        a("s_lshl_b32 s10, s%d, 2", S_TB)
        a("s_add_u32 s10, s10, %d", F_G - F_Y)
        a("v_mov_b32 v%d, s10", t0)
        a("v_cmp_lt_u32 vcc, 31, v1")
        a("v_cndmask_b32 v%d, v%d, v%d, vcc", VN + 2, VN + 2, t0)
        a("s_mov_b32 s%d, %d", S_PB, F_Y)
        a("buffer_load_dword v%d, v%d, %s, s%d offen sc1", VN - 1, VN + 2, sr(SWS, 4), S_PB)
        vml.append(("PY", 0))
    def yload():
        poll_check(1)
        a("v_lshrrev_b32 v%d, 3, v1", t0)
        a("v_lshlrev_b32 v%d, 12, v%d", t0, t0)
        a("v_and_b32 v%d, 7, v1", t1)
        a("v_lshl_add_u32 v%d, v%d, 4, v%d", t0, t1, t0)
        a("s_lshl_b32 s12, s%d, 3", S_DB)
        a("s_add_u32 s12, s12, s3")
        a("s_lshl_b32 s12, s12, 15")
        a("s_lshl_b32 s13, s%d, 7", S_TB)
        a("s_add_u32 s12, s12, s13")
        a("s_add_u32 s12, s12, %d", WS_Y)
        a("buffer_load_dwordx4 %s, v%d, %s, s12 offen sc1", vr(YL, 4), t0, sr(SWS, 4))
        vml.append(("Y", 0))
        a("v_and_b32 v%d, 31, v1", t1)
        a("v_lshlrev_b32 v%d, 2, v%d", t1, t1)
        a("buffer_load_dword v%d, v%d, %s, s%d offen sc1", EG, t1, sr(SWS, 4), S_GOFF)
        vml.append(("Y", 0))
    lg = Lg()
    for r in reads(0) + reads(1): lg.issue(*r)
    pend = []
    def wwrite(rd, i):
        if opt("xnoww", 0): return
        if i == 0: a("v_add_u32 v%d, %d, v%d", VWW, WB[rd] * BLK, VWW + 1)
        lg.issue("ds_write_b128 v%d, %s offset:%d" % (VWW, vr(WST + WSTO[rd] + 4 * i, 4), i * 1024), ("ww", rd))
    if helper:
        a("v_add_u32 v%d, s%d, v%d", VWW + 1, S_WLD, VH)
    if opt("pollpre", 1):
        hload(0, NH0 if helper else NC0, vml, HFR)
        if helper:
            for i in range(8): wwrite(4, i)
    else:
        assert False
        if helper:
            for i in range(7): wwrite(4, i)
            onwave(opt("pollw", 1), hpoll)
        else:
            ypublish()
        lds_wait(7, 96, 3, 0); lg.drained()
        stamp(13)
        hload(0, NH0 if helper else NC0, vml, HFR)
    vfill = []
    nh = NH0 if helper else NC0
    YPS = opt("yps", 12)
    for step in range(28):
        rd, ks = step // 4, step % 4
        f = AFR + (step % 3) * 8
        nxt = reads(step + 2) if step < 26 else []
        for m in range(2):
            d = vr(AC2 + 16 * m, 16)
            lg.need([(step, m)], "vmcnt(%d) " % vw([("H", step)]) if m == 0 else "")
            a("v_mfma_f32_32x32x16_bf16 %s, %s, %s, %s", d, vr(f + 4 * m, 4), vr(HFR + 4 * (step % HRING), 4), d if step else "0")
            for r in nxt[2 * m:2 * m + 2]: lg.issue(*r)
            if nh < 28 and (m == 0 or nh < step + opt("hd", 0)) and not opt("xnoh", 0):
                hload(nh, 1, vml, HFR); nh += 1
            if m == 0 and step == opt("yls", 21):
                a("s_waitcnt vmcnt(%d)", vw([("PY", 0)]))
                yload()
            if m == 1 and step == YPS: ypoll_issue()
            if pend: pend.pop(0)()
            for _ in range(5):
                if vfill: lg.run(vfill.pop(0))
        if opt("stg2", 0) and ks == 3 and rd < 5:
            stamp(10 + rd); lg.drained()
        if step == 20:
            for j in range(4):
                vfill.append("v_lshlrev_b32 v%d, 16, v%d" % (A0 + 2 * j, EUD + j))
                vfill.append("v_and_b32 v%d, 0xffff0000, v%d" % (A0 + 2 * j + 1, EUD + j))
            vfill += ["v_and_b32 v%d, 31, v1" % t2, "v_lshrrev_b32 v%d, 5, v1" % t3, "v_lshlrev_b32 v%d, 4, v%d" % (t3, t3),
                      "v_lshl_add_u32 v%d, v%d, 10, v%d" % (VO, t2, t3)]
        if step == opt("ybar", 0) and opt("ylate", 1):
            a("s_barrier")
            if not helper:
                def yf():
                    a("s_lshl_b32 s10, s2, 2")
                    a("s_add_u32 s10, s10, %d", F_Y)
                    flag_store("s10")
                onwave(4, yf)
        if ks == 1 and 1 <= rd < 6:
            if opt("fewbar", 1):
                if rd == 2:
                    a("s_barrier")
                    if helper:
                        pend = [(lambda i=i, r=r: wwrite(r, i)) for r in (5, 6) for i in range(8)]
                if rd == 4:
                    if helper:
                        assert not pend
                        lg.need([("ww", 6)])
                    a("s_barrier")
            else:
                if helper and rd >= 3: lg.need([("ww", rd + 1)])
                a("s_barrier")
                if helper and rd <= 2:
                    assert not pend
                    pend = [(lambda i=i, r=rd + 4: wwrite(r, i)) for i in range(8)]
            if rd == 5:
                vfill += ["v_lshrrev_b32 v%d, 5, v1" % VYR,
                          "v_bfe_u32 v%d, v1, 2, 2" % t2,
                          "v_lshl_add_u32 v%d, v%d, 3, v%d" % (VYR, VYR, t2),
                          "v_lshlrev_b32 v%d, 7, v%d" % (VYR, VYR),
                          "v_bfe_u32 v%d, v1, 4, 1" % t2,
                          "v_lshl_add_u32 v%d, v%d, 5, v%d" % (VYR, t2, VYR),
                          "v_and_b32 v%d, 3, v1" % t2,
                          "v_lshl_add_u32 v%d, v%d, 3, v%d" % (VYR, t2, VYR),
                          "s_lshr_b32 s10, s3, 1", "s_lshl_b32 s10, s10, 11", "s_and_b32 s11, s3, 1", "s_lshl_b32 s11, s11, 6",
                          "s_add_u32 s10, s10, s11", "s_add_u32 s10, s10, %d" % L_Y,
                          "v_add_u32 v%d, s10, v%d" % (VYR, VYR),
                          "s_lshl_b32 s10, s3, 10", "s_add_u32 s10, s10, %d" % L_Y,
                          "v_add_u32 v%d, s10, v%d" % (YL + 4, VH)]
                for j in range(4):
                    hi_ = (0 if helper else 1) ^ (j >> 1)
                    vfill.append("s_xor_b32 s10, s%d, %d" % (S_TQ, (2 * j) & 3))
                    vfill.append("s_mul_i32 s10, s10, 6144")
                    vfill.append("s_add_u32 s10, s10, %d" % (L_R[hi_] + max(j - 1, 0) * 2048))
                    vfill.append("v_add_u32 v%d, s10, v%d" % (VWW if j == 0 else RR + j, VH))
    assert not pend
    stamp(8)
    for f_ in vfill: lg.run(f_)
    a("s_waitcnt vmcnt(0)")
    if opt("diag3", 0): stamp(10, True)
    a("ds_write_b128 v%d, %s", YL + 4, vr(YL, 4))
    for j in range(1, 4):
        for b in range(2):
            a("ds_write_b128 v%d, %s offset:%d", VWW, vr(AC2 + 8 * j + 4 * b, 4), (j - 1) * 2048 + b * 1024)
    for q in range(8):
        a("v_sub_f32 v%d, v%d, v%d", A0 + q, A0 + q, AC2 + q)
        a("v_fmac_f32 v%d, v%d, v%d", AC2 + q, EG, A0 + q)
    a("v_sub_f32 v%d, 1.0, v%d", t1, EG)
    a("s_waitcnt lgkmcnt(0)")
    if opt("diag3", 0): stamp(11, True)
    a("s_barrier")
    if opt("diag3", 0): stamp(12, True)
    for hf in range(2):
        a("ds_read_b64_tr_b16 %s, v%d offset:%d", vr(EY + 2 * hf, 2), VYR, hf * 512)
    for j in range(1, 4):
        for b in range(2):
            a("ds_read_b128 %s, v%d offset:%d", vr(AC2 + 8 * j + 4 * b, 4), RR + j, b * 1024)
    a("s_waitcnt lgkmcnt(6)")
    for j in range(4):
        a("v_lshlrev_b32 v%d, 16, v%d", t2, EY + j)
        a("v_and_b32 v%d, 0xffff0000, v%d", t3, EY + j)
        a("v_fmac_f32 v%d, v%d, v%d", AC2 + 2 * j, EG, t2)
        a("v_fmac_f32 v%d, v%d, v%d", AC2 + 2 * j + 1, EG, t3)
    for j in range(1, 4):
        a("s_waitcnt lgkmcnt(%d)", 2 * (3 - j))
        for q in range(8):
            a("v_fmac_f32 v%d, v%d, v%d", AC2 + q, t1, AC2 + 8 * j + q)
    for j in range(4):
        a("v_cvt_pk_bf16_f32 v%d, v%d, v%d", A0 + j, AC2 + 2 * j, AC2 + 2 * j + 1)
    a("buffer_store_dwordx4 %s, v%d, %s, s%d offen%s", vr(A0, 4), VO, sr(SO, 4), S_OB, ["", " sc1", " nt", " sc0 sc1"][opt("ost", 0)])
    if opt("diag3", 0): stamp(13, True)
    if STAMP: a("s_waitcnt vmcnt(0)")
    stamp(9)
    stamp_out()
    a("s_endpgm")

gemm2("h", vmh)
BG0 = len(a.lines)
a.lines = a.lines[:BC0] + a.lines[BH0:BG0] + a.lines[BC0:BH0]
a("L_g2c:")
gemm2("c", vmc)
n0_ = len(a.lines)
def auxw():
    for f in hl_list(True)[:sum(NW)]: f()
role(None, auxw)
auxw_lines = a.lines[n0_:]; a.lines = a.lines[:n0_]
a.lines += aux_lines[:AUXW - AUX0] + auxw_lines + aux_lines[AUXW - AUX0:]
for sp in slow: sp()
a("L_end:")
a("s_endpgm")

hdr = open("gated_mix__ssm_conv_s4__glu_gated_bilinear__prompt.s.ref").read().split("\n")
hdr = [l for l in hdr if l.startswith(";") and "@launch" not in l]
print(wrap(hdr + ["; @launch grid=(256,1,1) block=(512,1,1) lds=163840"], [(NAME, a, 256, 102, 256)]))
sys.stderr.write("nops: %d\n" % a.nops)
```

```python
import sys
from asmlib import *

STAMP = "--stamp" in sys.argv
def opt(name, default):
    for x in sys.argv:
        if x.startswith("--%s=" % name): return int(x.split("=")[1])
    return default

WS_H = 0
WS_UT = 8 << 20
WS_Y = 10 << 20
WS_G = 12 << 20
WS_F = (12 << 20) + 0x10000
F_H2 = (12 << 20) + 0x80000
WS_ST = 13 << 20
WS_BYTES = 14 << 20
F_A, F_H, F_Y, F_G, F_E = WS_F, WS_F + 0x1000, WS_F + 0x2000, WS_F + 0x3000, WS_F + 0x4000

P_U, P_ARE, P_AIM, P_BRE, P_BIM, P_CRE, P_CIM, P_LDT = 16, 18, 20, 22, 24, 26, 28, 30
P_DSK, P_BX, P_WG, P_WU, P_WD, P_GW, P_OUT, P_DBG, P_WS = 32, 34, 36, 38, 40, 42, 44, 46, 48
SX, SG, SU, SWS, SW, SO = 52, 56, 60, 64, 68, 72
S_NONCE, S_ISAUX, S_SPIN, S_PB = 76, 77, 78, 79
S_TB, S_DB, S_KH, S_TQ, S_HB, S_OB = 80, 81, 82, 83, 84, 85
S_W0S = 100
S_RT = 36
S_KR, S_T2 = 0, 1
S_W2K, S_T, S_TM0, S_YB = 86, 87, 88, 89
S_DOFF, S_GOFF = 50, 51
S_WSO, S_WLD = 90, 91
S_HST = 34
S_FH = 35
PCF = opt('pcf', 0)
FSTR = opt('fstr', 1280)
G16 = 1
SPINMAX = opt("spin", 2000000)

BLK = 16384
XB = [0, 1, 2]
GB = [6, 8, 4]
L_TAB = 2 * BLK
TP = 528
TPIECE = 31 * TP
L_U = 2 * BLK
UCH = 512 + 4096
L_K = 3 * BLK
KCH = 64 + 4096
L_CY = L_K + 2 * KCH
CYCH = 129 * 16
L_SY = 4 * BLK - 128
assert L_SY % 32 == 0 and L_SY + 128 <= 4 * BLK
WB = [4, 6, 8, 0, 2, 4, 6]
L_Y = 8 * BLK + 24576
L_R = [8 * BLK, 0]

a = Asm()

class Lg:
    def __init__(self): self.q = []; self.done = 0
    def issue(self, ins, tag=None):
        a(ins); self.q.append(tag)
    def need(self, tags, extra=""):
        idx = [i for i, t in enumerate(self.q) if t in tags]
        last = max(idx) if idx else -1
        if last >= self.done:
            cnt = min(len(self.q) - 1 - last, 15)
            a("s_waitcnt %slgkmcnt(%d)", extra, cnt)
            self.done = len(self.q) - cnt
        elif extra:
            a("s_waitcnt %s", extra)
    def drained(self): self.done = len(self.q)
    def run(self, p):
        n0 = len(a.lines)
        a(p) if isinstance(p, str) else p()
        for ln in a.lines[n0:]:
            if ln.strip().startswith("ds_"): self.q.append(None)

SMASK = opt("smask", 0x7fff)
def stamp(i, force=False):
    if opt("stg", 0) == 2:
        if not force or not (SMASK >> i) & 1: return
    if not STAMP or not ((SMASK >> i) & 1 or force): return
    a("s_memtime s[94:95]")
    a("s_memrealtime s[92:93]")
    a("s_waitcnt lgkmcnt(0)")
    a("s_sub_u32 s94, s94, s98")
    a("v_writelane_b32 v255, s94, %d", i)
    a("v_writelane_b32 v255, s92, %d", i + 16)
def stamp_out():
    if not STAMP: return
    a("s_mov_b64 exec, -1")
    a("v_writelane_b32 v255, s96, 31")
    a("s_getreg_b32 s92, hwreg(HW_REG_XCC_ID)")
    a("s_getreg_b32 s93, hwreg(HW_REG_HW_ID)")
    a("s_and_b32 s92, s92, 15")
    a("s_lshl_b32 s93, s93, 4")
    a("s_or_b32 s92, s92, s93")
    a("v_writelane_b32 v255, s92, 15")
    a("s_lshl_b32 s92, s2, 3")
    a("s_add_u32 s92, s92, s3")
    a("s_lshl_b32 s92, s92, 7")
    a("s_add_u32 s92, s92, %d", WS_ST)
    a("v_mbcnt_lo_u32_b32 v254, -1, 0")
    a("v_mbcnt_hi_u32_b32 v254, -1, v254")
    a("v_lshlrev_b32 v253, 2, v254")
    a("s_mov_b64 exec, 0xffffffff")
    a("buffer_store_dword v255, v253, %s, s92 offen", sr(SWS, 4))

def cmul(d, x, y, plain):
    if plain:
        return ["v_mul_f32 v%d, v%d, v%d" % (d, x, y), "v_mul_f32 v%d, v%d, v%d" % (d + 1, x + 1, y),
                "v_fma_f32 v%d, -v%d, v%d, v%d" % (d, x + 1, y + 1, d), "v_fmac_f32 v%d, v%d, v%d" % (d + 1, x, y + 1)]
    return ["v_pk_mul_f32 %s, %s, %s op_sel_hi:[1,0]" % (vr(d, 2), vr(x, 2), vr(y, 2)),
            "v_pk_fma_f32 %s, %s, %s, %s op_sel:[1,1,0] op_sel_hi:[0,1,1] neg_lo:[1,0,0]" % (vr(d, 2), vr(x, 2), vr(y, 2), vr(d, 2))]
def il(x, y):
    o = []
    for i in range(max(len(x), len(y))):
        if i < len(x): o.append(x[i])
        if i < len(y): o.append(y[i])
    return o

VH = 240
VWD = 241
VR0 = 242
VSY = 243
VN = 250
PVA, PVB, PVC, PVY = 2, 3, 4, 5
KA, KBa, KW = 152, 153, 154
VZ = 235
KB = 160
KP = 204
KF = 160
KD = 236
VUL = 244

def kgen_setup():
    a("s_lshr_b32 s10, s3, 2")
    a("s_lshl_b32 s11, s2, 1")
    a("s_add_u32 s11, s11, s10")
    a("s_and_b32 s12, s3, 1")
    a("s_lshl_b32 s13, s11, 8")
    a("s_lshl_b32 s12, s12, 7")
    a("s_add_u32 s13, s13, s12")
    a("v_lshl_add_u32 v%d, v1, 1, s13", KB + 8)
    a("s_lshl_b32 s11, s11, 1")
    a("v_mov_b32 v%d, s11", KB + 9)
    for i in range(7): a("v_mov_b32 v%d, 0", KB + i)
    a("s_bitcmp1_b32 s3, 1")
    a("s_cselect_b64 s[14:15], -1, 0")
def kgen_loads():
    a("global_load_short_d16_hi v%d, v%d, %s", KB + 6, KB + 9, sr(P_LDT, 2))
    for i, p in enumerate([P_ARE, P_AIM, P_BRE, P_BIM, P_CRE, P_CIM]):
        a("global_load_short_d16_hi v%d, v%d, %s", KB + i, KB + 8, sr(p, 2))
    return 7
def rowpos(m): return 16 + (2 * m if m <= 7 else 2 * (m - 8) + 1)
def kgen_valu(plain_tail):
    L = []
    A_, B_, BR, BI, CR, CI, LD, T0, T1, T2 = [KB + i for i in range(10)]
    W, E1, E2, E4, E8, E128, E256, E512, P, X0, X1, R0, R1, RB, Y0, Z0 = [KB + 10 + 2 * i for i in range(16)]
    L.append("v_mul_f32 v%d, 0x3fb8aa3b, v%d" % (T0, LD))
    L.append("v_mov_b32 v%d, 0x3fb8aa3b" % T2)
    L.append("v_fma_f32 v%d, v%d, v%d, -v%d" % (T1, LD, T2, T0))
    L.append("v_fmac_f32 v%d, 0x32a57060, v%d" % (T1, LD))
    L.append("v_exp_f32 v%d, v%d" % (T0, T0))
    L.append("v_mul_f32 v%d, 0x3f317218, v%d" % (T1, T1))
    L.append("v_fmac_f32 v%d, v%d, v%d" % (T0, T0, T1))
    L.append("v_cvt_pk_bf16_f32 v%d, v%d, v%d" % (T0, T0, T0))
    L.append("v_and_b32 v%d, 0xffff0000, v%d" % (T0, T0))
    for r in (A_, B_, BR, BI):
        L.append("v_mul_f32 v%d, v%d, v%d" % (r, T0, r))
    L.append("v_mul_f32 v%d, 0x3fb8aa3b, v%d" % (A_, A_))
    L.append("v_mul_f32 v%d, 0.15915494, v%d" % (B_, B_))
    o1 = ["v_exp_f32 v%d, v%d" % (T0, A_), "v_fract_f32 v%d, v%d" % (T1, B_),
          "v_cos_f32 v%d, v%d" % (E1, T1), "v_sin_f32 v%d, v%d" % (E1 + 1, T1),
          "v_mul_f32 v%d, v%d, v%d" % (E1, T0, E1), "v_mul_f32 v%d, v%d, v%d" % (E1 + 1, T0, E1 + 1)]
    o2 = ["v_mul_f32 v%d, 0x43000000, v%d" % (T2, A_), "v_mul_f32 v%d, 0x43000000, v%d" % (LD, B_),
          "v_exp_f32 v%d, v%d" % (T2, T2), "v_fract_f32 v%d, v%d" % (LD, LD),
          "v_cos_f32 v%d, v%d" % (E128, LD), "v_sin_f32 v%d, v%d" % (E128 + 1, LD),
          "v_mul_f32 v%d, v%d, v%d" % (E128, T2, E128), "v_mul_f32 v%d, v%d, v%d" % (E128 + 1, T2, E128 + 1)]
    L += il(o2, o1 + cmul(W, CR, BR, False))
    L += il(cmul(E2, E1, E1, False) + cmul(E4, E2, E2, False) + cmul(E8, E4, E4, False),
            cmul(E256, E128, E128, False) + cmul(E512, E256, E256, False))
    L.append("v_cndmask_b32 v%d, v%d, v%d, s[14:15]" % (P, E1, E2))
    L.append("v_cndmask_b32 v%d, v%d, v%d, s[14:15]" % (P + 1, E1 + 1, E2 + 1))
    L.append("v_cndmask_b32 v%d, 1.0, v%d, s[14:15]" % (X0, E128))
    L.append("v_cndmask_b32 v%d, 0, v%d, s[14:15]" % (X0 + 1, E128 + 1))
    L.append("v_cndmask_b32 v%d, 1.0, v%d, s[14:15]" % (E256, E256))
    L.append("v_cndmask_b32 v%d, 0, v%d, s[14:15]" % (E256 + 1, E256 + 1))
    L += cmul(RB, W, E256, False)
    rows = [(None, RB, None)]
    cur = RB
    for j in range(1, 8):
        d = R0 if j % 2 else R1
        rows.append((d, cur, P)); cur = d
    Z2 = Y0
    rows += [(Y0, RB, E512), (R1, Y0, E4), (R0, Y0, E8), (Z0, Y0, E512), (R1, Z0, E8), (Z2, Z0, E512), (R0, Z2, E8)]
    cols = [(None, X0, None)]
    cur = X0
    for j in range(1, 16):
        d = X1 if j % 2 else X0
        cols.append((d, cur, E8)); cur = d
    LC, LR = [], []
    for j, (d, s, m) in enumerate(cols):
        if d is not None: LC += cmul(d, s, m, plain_tail)
        x = d if d is not None else s
        LC.append("v_cvt_pk_bf16_f32 v%d, v%d, v%d" % (KP + j, x, x + 1))
    for j, (d, s, m) in enumerate(rows):
        if d is not None: LR += cmul(d, s, m, plain_tail)
        x = d if d is not None else s
        LR.append("v_cvt_pk_bf16_f32 v%d, v%d, -v%d" % (KP + rowpos(j), x, x + 1))
    return L, il(LC, LR)
def kgen_writes():
    return ["ds_write_addtid_b32 v%d offset:%d" % (KP + j, L_TAB + j * TP) for j in range(31)]

def later_addrs(T0, T1, T2):
    a("s_lshr_b32 s10, s3, 1")
    a("s_mul_i32 s10, s10, %d", TPIECE)
    a("s_and_b32 s11, s3, 1")
    a("s_lshl_b32 s11, s11, 8")
    a("s_add_u32 s%d, s10, s11", S_TM0)
    a("s_add_u32 s10, s10, %d", L_TAB)
    a("v_bfe_u32 v%d, v1, 4, 1", T1)
    a("v_lshlrev_b32 v%d, 8, v%d", T1, T1)
    a("v_lshrrev_b32 v%d, 5, v1", T2)
    a("v_lshl_add_u32 v%d, v%d, 7, v%d", T1, T2, T1)
    a("v_and_b32 v%d, 15, v1", T0)
    a("v_mul_u32_u24 v%d, %d, v%d", T2, TP, T0)
    a("v_add3_u32 v%d, v%d, v%d, s10", KBa, T2, T1)
    def lut(v): return sum(x << (4 * i) for i, x in enumerate(v))
    m0 = [0, 1, 2, 3] + [0, 0, 1, 2] + [2, 2, 3, 4] + [4, 5, 6, 7]; h0 = 0x0ff0
    m1 = [8, 9, 10, 10] + [8, 9, 10, 10] + [11, 12, 13, 14] + [11, 12, 13, 14]; h1 = 0xf0f0
    p0 = [rowpos(m) - 16 for m in m0]; p1 = [rowpos(m) - 16 for m in m1]
    a("s_bitcmp1_b32 s3, 0")
    a("s_mov_b32 s11, 0x%x", lut(p0[:8]))
    a("s_cmov_b32 s11, 0x%x", lut(p1[:8]))
    a("s_mov_b32 s12, 0x%x", lut(p0[8:]))
    a("s_cmov_b32 s12, 0x%x", lut(p1[8:]))
    a("s_mov_b32 s13, 0x%x", h0)
    a("s_cmov_b32 s13, 0x%x", h1)
    a("v_cmp_lt_u32 vcc, 7, v%d", T0)
    a("v_mov_b32 v%d, s11", KA)
    a("v_mov_b32 v%d, s12", T2)
    a("v_cndmask_b32 v%d, v%d, v%d, vcc", KA, KA, T2)
    a("v_and_b32 v%d, 7, v1", T2)
    a("v_lshlrev_b32 v%d, 2, v%d", T2, T2)
    a("v_bfe_u32 v%d, v%d, v%d, 4", KA, KA, T2)
    a("v_bfe_u32 v%d, s13, v%d, 1", T2, T0)
    a("v_mad_u32_u24 v%d, v%d, 31, v%d", KA, T2, KA)
    a("v_mul_u32_u24 v%d, %d, v%d", KA, TP, KA)
    a("s_lshr_b32 s10, s3, 2")
    a("s_mul_i32 s11, s10, %d", 2 * TPIECE)
    a("s_add_u32 s11, s11, %d", L_TAB + 16 * TP)
    a("v_add3_u32 v%d, v%d, v%d, s11", KA, KA, T1)
    a("s_mul_i32 s10, s10, %d", KCH)
    a("s_and_b32 s11, s3, 2")
    a("s_lshl_b32 s11, s11, 7")
    a("s_add_u32 s10, s10, s11")
    a("s_add_u32 s10, s10, %d", L_K + 64)
    a("s_bitcmp1_b32 s3, 0")
    a("s_mov_b32 s11, 0x%x", 0 | (64 << 8) | (65 << 16) | (1 << 24))
    a("s_cmov_b32 s11, 0x%x", 0 | (64 << 8) | (128 << 16) | (192 << 24))
    a("s_cselect_b32 s12, 1024, 0")
    a("s_add_u32 s10, s10, s12")
    a("v_lshrrev_b32 v%d, 4, v1", T1)
    a("v_lshlrev_b32 v%d, 3, v%d", T1, T1)
    a("v_bfe_u32 v%d, s11, v%d, 8", T1, T1)
    a("v_lshlrev_b32 v%d, 4, v%d", T0, T0)
    a("v_lshl_add_u32 v%d, v%d, 3, v%d", T0, T1, T0)
    a("v_add_u32 v%d, s10, v%d", KW, T0)
def later_addrs2(T0, T1, T2):
    a("s_bfe_u32 s10, s3, 0x10001")
    a("v_lshrrev_b32 v%d, 5, v1", T0)
    a("v_lshlrev_b32 v%d, 6, v%d", PVA, T0)
    a("v_and_b32 v%d, 31, v1", T1)
    a("v_lshlrev_b32 v%d, 4, v%d", PVB, T1)
    a("v_sub_u32 v%d, v%d, v%d", PVB, PVB, PVA)
    a("v_and_b32 v%d, 1, v1", T2)
    a("v_lshl_add_u32 v%d, v%d, 5, v%d", PVA, T2, PVA)
    a("v_lshrrev_b32 v%d, 2, v%d", T1, T1)
    a("v_lshl_add_u32 v%d, v%d, 1, v%d", T1, T1, T0)
    a("v_lshlrev_b32 v%d, 5, v%d", PVY, T1)
    a("v_lshl_add_u32 v%d, v%d, 4, v%d", PVY, T2, PVY)
    a("s_mul_i32 s11, s10, %d", CYCH)
    a("s_add_u32 s11, s11, %d", L_CY)
    a("v_lshl_add_u32 v%d, v%d, 4, s11", PVC, T1)
    a("v_bfe_u32 v%d, v1, 4, 1", T2)
    a("v_lshl_add_u32 v%d, v%d, 4, v%d", PVA, T2, PVA)
    a("v_bfe_u32 v%d, v1, 1, 1", T2)
    a("v_lshl_add_u32 v%d, v%d, 3, v%d", PVA, T2, PVA)
    a("v_bfe_u32 v%d, v1, 2, 2", T2)
    a("v_lshlrev_b32 v%d, 3, v%d", T2, T2)
    a("v_sub_u32 v%d, v%d, v%d", PVA, PVA, T2)
    a("s_mul_i32 s11, s10, %d", KCH)
    a("s_add_u32 s11, s11, %d", L_K + 32)
    a("v_add_u32 v%d, s11, v%d", PVA, PVA)
    a("s_mul_i32 s11, s10, %d", UCH)
    a("s_add_u32 s11, s11, %d", L_U + 512 - 384)
    a("v_add_u32 v%d, s11, v%d", PVB, PVB)
    a("s_lshl_b32 s11, s2, 1")
    a("s_add_u32 s11, s11, s10")
    a("s_lshl_b32 s11, s11, 12")
    a("s_add_u32 s%d, s11, %d", S_YB, WS_Y)
def later_addrs3(T0, T1, T2):
    if opt("b84", 1):
        a("s_and_b32 s%d, s4, 6", S_TB)
        a("s_lshl_b32 s%d, s%d, 2", S_TB, S_TB)
        a("s_and_b32 s10, s5, 7")
        a("s_add_u32 s%d, s%d, s10", S_TB, S_TB)
        a("s_and_b32 s%d, s4, 1", S_DB)
        a("s_lshl_b32 s%d, s%d, 2", S_DB, S_DB)
        a("s_lshr_b32 s10, s5, 3")
        a("s_add_u32 s%d, s%d, s10", S_DB, S_DB)
    else:
        a("s_lshl_b32 s%d, s4, 2", S_TB)
        a("s_and_b32 s10, s5, 3")
        a("s_add_u32 s%d, s%d, s10", S_TB, S_TB)
        a("s_lshr_b32 s%d, s5, 2", S_DB)
    a("s_lshr_b32 s%d, s3, 2", S_KH)
    a("s_and_b32 s%d, s3, 3", S_TQ)
    a("s_lshl_b32 s10, s%d, 1", S_TB)
    a("s_and_b32 s13, s3, 1")
    a("s_add_u32 s10, s10, s13")
    a("s_mul_i32 s11, s10, 112")
    a("s_lshr_b32 s12, s3, 1")
    a("s_mul_i32 s%d, s12, %d", S_W0S, 448 * 1024)
    a("s_lshl_b32 s13, s13, 15")
    a("s_add_u32 s%d, s%d, s13", S_W0S, S_W0S)
    a("s_mul_i32 s13, s12, 28")
    a("s_add_u32 s11, s11, s13")
    a("s_lshl_b32 s%d, s11, 10", S_HB)
    a("s_lshl_b32 s%d, s10, 7", S_GOFF)
    a("s_add_u32 s%d, s%d, %d", S_GOFF, S_GOFF, WS_G)
    a("s_lshl_b32 s10, s10, 15")
    a("s_lshl_b32 s11, s%d, 7", S_DB)
    a("s_lshl_b32 s12, s12, 5")
    a("s_add_u32 s%d, s11, s12", S_DOFF)
    a("s_add_u32 s%d, s10, s%d", S_OB, S_DOFF)
    a("s_mul_i32 s%d, s%d, %d", S_WSO, S_TQ, 448 * 1024)
    a("s_lshl_b32 s%d, s%d, 13", S_WLD, S_TQ)
    seq = [i % 7 for i in range(16)]
    val = sum(x << (4 * i) for i, x in enumerate(seq))
    a("s_mov_b32 s44, 0x%x", val & 0xffffffff)
    a("s_mov_b32 s45, 0x%x", val >> 32)
    if opt("rot", 4) == 1:
        a("s_lshl_b32 s10, s%d, 2", S_DB)
        a("s_lshr_b64 s[44:45], s[44:45], s10")
    if opt("rot", 4) == 4:
        a("s_and_b32 s10, s5, 7")
        a("s_lshl_b32 s10, s10, 2")
        a("s_lshr_b64 s[44:45], s[44:45], s10")
    if opt("rot", 4) == 5:
        a("s_and_b32 s10, s5, 7")
        a("s_lshr_b32 s13, s5, 3")
        a("s_lshl_b32 s13, s13, 1")
        a("s_add_u32 s10, s10, s13")
        a("s_sub_u32 s13, s10, 7")
        a("s_min_u32 s10, s10, s13")
        a("s_lshl_b32 s10, s10, 2")
        a("s_lshr_b64 s[44:45], s[44:45], s10")
    if opt("rot", 4) == 3:
        a("s_and_b32 s10, s5, 1")
        a("s_lshl_b32 s10, s10, 4")
        a("s_lshr_b64 s[44:45], s[44:45], s10")
    if opt("rot", 4) == 2:
        a("s_and_b32 s10, s5, 3")
        a("s_lshl_b32 s10, s10, 3")
        a("s_lshr_b64 s[44:45], s[44:45], s10")
    for rd in range(7):
        a("s_bfe_u32 s10, s44, 0x%x", (3 << 16) | (4 * rd))
        a("s_lshl_b32 s%d, s10, 12", S_RT + rd)
    a("v_lshlrev_b32 v%d, 4, v1", VH)
    a("v_lshrrev_b32 v%d, 3, v1", T0)
    a("v_lshlrev_b32 v%d, 10, v%d", T0, T0)
    a("v_bfe_u32 v%d, v1, 4, 1", T1)
    a("v_lshlrev_b32 v%d, 2, v%d", T1, T1)
    a("v_and_b32 v%d, 7, v1", T2)
    a("v_xor_b32 v%d, v%d, v%d", T2, T2, T1)
    a("v_lshl_add_u32 v%d, v%d, 4, v%d", T0, T2, T0)
    a("v_add_u32 v%d, s11, v%d", VWD, T0)
    a("v_lshrrev_b32 v%d, 5, v1", T0)
    a("v_bfe_u32 v%d, v1, 2, 2", T1)
    a("v_lshl_add_u32 v%d, v%d, 2, v%d", T0, T0, T1)
    a("v_lshlrev_b32 v%d, 7, v%d", T0, T0)
    a("v_bfe_u32 v%d, v1, 3, 1", T1)
    a("v_lshl_add_u32 v%d, v%d, 6, v%d", T0, T1, T0)
    a("v_bfe_u32 v%d, v1, 4, 1", T1)
    a("v_lshl_add_u32 v%d, v%d, 5, v%d", T0, T1, T0)
    a("v_and_b32 v%d, 1, v1", T1)
    a("v_lshl_add_u32 v%d, v%d, 4, v%d", T0, T1, T0)
    a("v_bfe_u32 v%d, v1, 1, 1", T1)
    a("v_lshl_add_u32 v%d, v%d, 3, v%d", T0, T1, T0)
    a("v_xor_b32 v%d, s12, v%d", T0, T0)
    a("s_lshl_b32 s12, s12, 8")
    a("v_add_u32 v%d, s12, v%d", VR0, T0)
    a("s_lshl_b32 s10, s3, 2")
    a("s_add_u32 s10, s10, %d", L_SY)
    a("v_mov_b32 v%d, s10", VSY)

def kreads():
    L = []
    for ks in range(8):
        L.append(("ds_read_b128 %s, v%d offset:%d" % (vr(KF + 8 * ks, 4), KA, ks * 16), ("k", ks)))
        L.append(("ds_read_b128 %s, v%d offset:%d" % (vr(KF + 8 * ks + 4, 4), KBa, ks * 16), ("k", ks)))
    return L
def run_kmfma(lg, fill, per):
    for ks in range(8):
        lg.need([("k", ks)])
        d = vr(KD, 4)
        a("v_mfma_f32_16x16x32_bf16 %s, %s, %s, %s", d, vr(KF + 8 * ks, 4), vr(KF + 8 * ks + 4, 4), d if ks else "0")
        for _ in range(per):
            if fill: lg.run(fill.pop(0))
    for f in fill: lg.run(f)
def kmfma_finish():
    lb = a.label("Lkm1"); le = a.label("Lkme")
    T = KF
    a("s_bitcmp1_b32 s3, 0")
    a("s_cbranch_scc1 %s", lb)
    a("v_cvt_pk_bf16_f32 v%d, v%d, v%d", T, KD, KD + 1)
    a("v_cvt_pk_bf16_f32 v%d, v%d, v%d", T + 1, KD + 2, KD + 3)
    a("ds_write_b64 v%d, %s", KW, vr(T, 2))
    a("s_branch %s", le)
    a(lb + ":")
    a("s_nop 7")
    a("s_mov_b32 s14, 0xaaaaaaaa")
    a("s_mov_b32 s15, 0xaaaaaaaa")
    a("v_cndmask_b32 v%d, v%d, v%d, s[14:15]", T + 12, KD, KD + 1)
    a("v_cndmask_b32 v%d, v%d, v%d, s[14:15]", T + 13, KD + 2, KD + 3)
    a("v_cvt_pk_bf16_f32 v%d, v%d, v%d", T, KD, KD)
    a("v_cvt_pk_bf16_f32 v%d, v%d, v%d", T + 1, KD, KD)
    a("v_cvt_pk_bf16_f32 v%d, v%d, v%d", T + 2, T + 12, KD + 1)
    a("v_cvt_pk_bf16_f32 v%d, v%d, v%d", T + 3, KD + 1, KD + 1)
    a("v_cvt_pk_bf16_f32 v%d, v%d, v%d", T + 4, KD + 2, KD + 2)
    a("v_cvt_pk_bf16_f32 v%d, v%d, v%d", T + 5, KD + 2, KD + 2)
    a("v_cvt_pk_bf16_f32 v%d, v%d, v%d", T + 6, T + 13, KD + 3)
    a("v_cvt_pk_bf16_f32 v%d, v%d, v%d", T + 7, KD + 3, KD + 3)
    a("s_mov_b64 exec, 0xffffffff")
    a("v_cvt_pk_bf16_f32 v%d, v%d, v%d", T + 1, KD, KD + 1)
    a("v_mov_b32 v%d, v%d", T + 2, T + 3)
    a("v_mov_b32 v%d, v%d", T + 3, T + 4)
    a("s_not_b64 exec, exec")
    a("ds_write_b128 v%d, %s offset:1024", KW, vr(T + 4, 4))
    a("s_mov_b64 exec, -1")
    a("ds_write_b128 v%d, %s", KW, vr(T, 4))
    a(le + ":")

def zero_pads_k():
    T = KF + 16
    a("v_mov_b32 v%d, 0", T)
    a("v_bfe_u32 v%d, v1, 4, 1", T + 1)
    a("v_and_b32 v%d, 15, v1", T + 2)
    a("v_mul_u32_u24 v%d, %d, v%d", T + 3, KCH, T + 1)
    a("v_lshl_add_u32 v%d, v%d, 2, v%d", T + 3, T + 2, T + 3)
    a("v_mul_u32_u24 v%d, %d, v%d", T + 4, CYCH, T + 1)
    a("v_lshl_add_u32 v%d, v%d, 2, v%d", T + 4, T + 2, T + 4)
    a("v_lshlrev_b32 v%d, 2, v1", T + 5)
    a("s_mov_b64 exec, 0xffffffff")
    a("ds_write_b32 v%d, v%d offset:%d", T + 3, T, L_K)
    a("ds_write_b32 v%d, v%d offset:%d", T + 4, T, L_CY)
    a("ds_write_b32 v%d, v%d offset:%d", T + 5, T, L_SY)
    a("s_mov_b64 exec, -1")
def zero_pads_u():
    T = KD
    for i in range(4): a("v_mov_b32 v%d, 0", T + i)
    a("v_and_b32 v%d, 31, v1", 233)
    a("v_lshlrev_b32 v%d, 4, v%d", 233, 233)
    a("v_lshrrev_b32 v%d, 5, v1", 234)
    a("v_mul_u32_u24 v%d, %d, v%d", 234, UCH, 234)
    a("v_add_u32 v%d, v%d, v%d", 233, 233, 234)
    a("ds_write_b128 v%d, %s offset:%d", 233, vr(T, 4), L_U)
def sig(vaddr, off):
    a("s_mov_b64 exec, 1")
    a("ds_write_b32 v%d, v6 offset:%d", vaddr, off)
    a("s_mov_b64 exec, -1")
VUL2 = 156
def u_load():
    a("v_lshlrev_b32 v%d, 5, v1", VUL + 4)
    a("s_lshl_b32 s10, s2, 13")
    a("s_lshl_b32 s11, s%d, 11", S_TQ)
    a("s_add_u32 s10, s10, s11")
    a("s_add_u32 s10, s10, %d", WS_UT)
    a("buffer_load_dwordx4 %s, v%d, %s, s10 offen sc1", vr(VUL, 4), VUL + 4, sr(SWS, 4))
    a("buffer_load_dwordx4 %s, v%d, %s, s10 offen offset:16 sc1", vr(VUL2, 4), VUL + 4, sr(SWS, 4))
def u_write():
    a("s_lshl_b32 s11, s%d, 10", S_TQ)
    a("v_add_u32 v%d, s11, v%d", VUL + 4, VH)
    a("ds_write_b128 v%d, %s offset:%d", VUL + 4, vr(VUL, 4), L_U + 512)
    a("ds_write_b128 v%d, %s offset:%d", VUL + 4, vr(VUL2, 4), L_U + UCH + 512)
def onwave(w, fn):
    lb = a.label("Low")
    a("s_cmp_lg_u32 s3, %d", w)
    a("s_cbranch_scc1 %s", lb)
    fn()
    a(lb + ":")
def role(lo, hi):
    l1 = a.label("Lr1"); l2 = a.label("Lr2")
    a("s_cmp_ge_u32 s3, 4")
    a("s_cbranch_scc1 %s", l1)
    if lo is None:
        a.lines[-1] = a.lines[-1].replace("scc1", "scc0")
        hi()
        a(l1 + ":")
        return
    if lo: lo()
    if hi:
        a("s_branch %s", l2)
        a(l1 + ":")
        hi()
        a(l2 + ":")
    else:
        a(l1 + ":")

def nonce_issue():
    a("global_load_dwordx2 %s, v%d, %s sc1", vr(VN, 2), VZ, sr(P_DBG, 2))
slow = []
def nonce_check():
    ok = a.label("Lnok"); lp = a.label("Lnlp")
    a(ok + "r:")
    a("v_readfirstlane_b32 s10, v%d", VN + 1)
    a("v_readfirstlane_b32 s%d, v%d", S_NONCE, VN)
    a("s_cmp_lg_u32 s10, 1")
    a("s_cbranch_scc1 %s", lp)
    a(ok + ":")
    def sp():
        a(lp + ":")
        a("s_add_u32 s%d, s%d, 1", S_SPIN, S_SPIN)
        a("s_cmp_ge_u32 s%d, %d", S_SPIN, SPINMAX)
        a("s_cbranch_scc1 %s", ok)
        a("s_sleep 2")
        a("global_load_dwordx2 %s, v%d, %s sc1", vr(VN, 2), VZ, sr(P_DBG, 2))
        a("s_waitcnt vmcnt(0)")
        a("s_branch %sr", ok)
    slow.append(sp)
def poll_issue(n):
    a("v_min_u32 v%d, %d, v1", VN + 2, n - 1)
    a("v_lshlrev_b32 v%d, 2, v%d", VN + 2, VN + 2)
    a("buffer_load_dword v%d, v%d, %s, s%d offen sc1", VN - 1, VN + 2, sr(SWS, 4), S_PB)
def poll_check(sleep=2):
    ok = a.label("Lpok"); lp = a.label("Lplp")
    a(ok + "r:")
    a("v_cmp_ne_u32 vcc, s%d, v%d", S_NONCE, VN - 1)
    a("s_cmp_lg_u64 vcc, 0")
    a("s_cbranch_scc1 %s", lp)
    a(ok + ":")
    def sp():
        a(lp + ":")
        a("s_add_u32 s%d, s%d, 1", S_SPIN, S_SPIN)
        a("s_cmp_ge_u32 s%d, %d", S_SPIN, SPINMAX)
        a("s_cbranch_scc1 %s", ok)
        if sleep: a("s_sleep %d", sleep)
        a("buffer_load_dword v%d, v%d, %s, s%d offen sc1", VN - 1, VN + 2, sr(SWS, 4), S_PB)
        a("s_waitcnt vmcnt(0)")
        a("s_branch %sr", ok)
    slow.append(sp)
def flag_store(sbase):
    if opt("sflag", 2) & 1:
        a("s_mov_b32 s11, s%d", S_NONCE)
        a("s_buffer_atomic_swap s11, %s, %s", sr(SWS, 4), sbase)
        return
    a("v_mov_b32 v%d, 0", VN)
    a("v_mov_b32 v%d, s%d", VN + 1, S_NONCE)
    a("s_mov_b64 exec, 1")
    a("buffer_store_dword v%d, v%d, %s, %s offen sc1", VN + 1, VN, sr(SWS, 4), sbase)
    a("s_mov_b64 exec, -1")
def lds_wait(vaddr, off, vtmp, sleep=1):
    lp = a.label("Llw"); ok = a.label("Llok")
    a(lp + ":")
    a("ds_read_b32 v%d, v%d offset:%d", vtmp, vaddr, off)
    a("s_add_u32 s%d, s%d, 1", S_SPIN, S_SPIN)
    a("s_waitcnt lgkmcnt(0)")
    a("v_cmp_eq_u32 vcc, 0, v%d", vtmp)
    a("s_cmp_eq_u64 vcc, 0")
    a("s_cbranch_scc1 %s", ok)
    if sleep: a("s_sleep %d", sleep)
    a("s_cmp_lt_u32 s%d, %d", S_SPIN, SPINMAX * 16)
    a("s_cbranch_scc1 %s", lp)
    a(ok + ":")

a("s_cmp_ge_u32 s2, 256")
a("s_cbranch_scc1 L_end")
if STAMP:
    a("s_memrealtime s[96:97]")
    a("s_memtime s[98:99]")
a("s_load_dwordx16 s[16:31], s[0:1], 0")
a("s_load_dwordx16 s[32:47], s[0:1], 64")
a("s_load_dwordx2 s[48:49], s[0:1], 128")
a("v_lshrrev_b32 v2, 6, v0")
a("s_lshr_b32 s5, s2, 3")
if opt("cpf", 1):
    a("s_getpc_b64 s[10:11]")
    a("L_pc:")
    a("s_lshl_b32 s12, s5, 10")
    a("v_lshl_add_u32 v3, v2, 7, s12")
    a("v_and_b32 v4, 1, v0")
    a("v_lshl_add_u32 v3, v4, 6, v3")
    a("v_min_u32 v3, L_end-L_pc, v3")
    a("global_load_dword v19, v3, s[10:11]")
a("v_and_b32 v1, 63, v0")
a("v_readfirstlane_b32 s3, v2")
a("s_and_b32 s4, s2, 7")
kgen_setup()
PRE_WAIT = opt("prewait", 0)
if not PRE_WAIT:
    a("s_waitcnt lgkmcnt(0)")
    kgen_loads()
a("s_mov_b32 s%d, 0", S_SPIN)
a("v_mov_b32 v%d, 0", VZ)
a("v_mov_b32 v%d, 0", VN + 2)
if STAMP: a("v_mov_b32 v255, 0")
a("s_lshr_b32 s6, s4, 1")
a("s_lshl_b32 s6, s6, 2")
a("s_and_b32 s7, s5, 3")
a("s_add_u32 s6, s6, s7")
a("s_and_b32 s7, s4, 1")
a("s_mul_i32 s7, s7, 7")
a("s_lshr_b32 s8, s5, 2")
a("s_add_u32 s7, s7, s8")
a("s_sub_u32 s7, s7, 1")
a("s_and_b32 s8, s3, 1")
a("s_lshr_b32 s9, s3, 1")
VX0, VX1, VW0, VW1 = 4, 5, 6, 7
VXR = 8
VWA, VWB = 12, 13
T0, T1, T2, T3 = 14, 15, 16, 17
a("s_lshl_b32 s10, s6, 7")
a("s_lshl_b32 s11, s3, 4")
a("s_add_u32 s10, s10, s11")
a("s_lshl_b32 s10, s10, 10")
a("v_lshrrev_b32 v%d, 3, v1", T0)
a("v_lshlrev_b32 v%d, 10, v%d", T0, T0)
a("v_lshrrev_b32 v%d, 4, v1", T1)
a("v_and_b32 v%d, 7, v1", T2)
a("v_xor_b32 v%d, v%d, v%d", T2, T2, T1)
a("v_lshl_add_u32 v%d, v%d, 4, v%d", T0, T2, T0)
a("v_add_u32 v%d, s10, v%d", VX0, T0)
a("v_xor_b32 v%d, 64, v%d", VX1, VX0)
a("v_add_u32 v%d, 0x2000, v%d", VX1, VX1)
a("s_and_b32 s12, s3, 3")
a("s_mul_i32 s10, s12, %d", 4 * 3584)
a("s_lshl_b32 s11, s7, 8")
a("s_add_u32 s10, s10, s11")
a("v_mul_u32_u24 v%d, 3584, v%d", T0, T1)
if G16:
    a("s_and_b32 s11, s3, 2")
    a("s_lshl_b32 s11, s11, 2")
    a("v_lshl_or_b32 v%d, v%d, 1, s11", T2, T1)
else:
    a("v_lshlrev_b32 v%d, 2, v%d", T2, T1)
a("v_and_b32 v%d, 15, v1", T3)
a("v_xor_b32 v%d, v%d, v%d", T2, T2, T3)
a("v_lshl_add_u32 v%d, v%d, 4, v%d", T0, T2, T0)
a("v_add_u32 v%d, s10, v%d", VW0, T0)
S_RO, S_LO = 60, 80
S_LO = 20
for j in range(4):
    a("s_add_u32 s10, s5, %d", j if opt("share", 1) else 0) if opt("share", 1) else a("s_mov_b32 s10, %d", j)
    a("s_and_b32 s10, s10, 3")
    a("s_mul_i32 s%d, s10, %d", S_RO + j, 16 * 3584)
a("s_lshl_b32 s%d, s3, 11", S_W2K)
CC = opt("cc", 8)
S_KO = 99 if not STAMP else 93
if CC < 8:
    NR = 8 - CC
    a("s_and_b32 s10, s5, 3")
    a("s_mul_i32 s10, s10, %d", opt("rm", 2))
    a("s_lshr_b32 s11, s5, 2")
    a("s_add_u32 s10, s10, s11")
    a("s_mul_i32 s11, s10, %d", (65536 + NR - 1) // NR)
    a("s_lshr_b32 s11, s11, 16")
    a("s_mul_i32 s11, s11, %d", NR)
    a("s_sub_u32 s10, s10, s11")
    seq = [CC + (i % NR) for i in range(16)]
    val = sum(x << (4 * i) for i, x in enumerate(seq))
    a("s_mov_b32 s12, 0x%x", val & 0xffffffff)
    a("s_mov_b32 s13, 0x%x", val >> 32)
    a("s_lshl_b32 s10, s10, 2")
    a("s_lshr_b64 s[12:13], s[12:13], s10")
    a("s_lshl_b32 s12, s12, %d", 4 * CC) if CC else None
    a("s_or_b32 s%d, s12, 0x%x", S_KO, sum(i << (4 * i) for i in range(CC)))
else:
    a("s_mov_b32 s%d, 0x76543210", S_KO)
a("s_and_b32 s10, s4, %d", opt("krot", 6))
a("s_mul_i32 s10, s10, 0x11111111")
a("s_add_u32 s%d, s%d, s10", S_KO, S_KO)
for r, n in ((SX, 2048 * 1024), (SG, 512 * 3584), (SWS, WS_BYTES), (SW, 1792 * 1024), (SO, 2048 * 1024)):
    a("s_mov_b32 s%d, 0x%x", r + 2, n)
    a("s_mov_b32 s%d, 0x20000", r + 3)
a("s_cmp_lt_u32 s5, 4")
a("s_cselect_b32 s%d, 1, 0", S_ISAUX)
if PRE_WAIT:
    a("s_waitcnt lgkmcnt(0)")
    kgen_loads()
def srd_base(r, p):
    a("s_mov_b32 s%d, s%d", r, p)
    a("s_and_b32 s%d, s%d, 0xffff", r + 1, p + 1)
srd_base(SX, P_U)
a("s_mov_b32 s%d, s%d", S_KR, S_KO)
a("s_cmp_lg_u32 s%d, 0", S_ISAUX)
a("s_cbranch_scc1 L_aux")

vm = []
def vmwait(tags):
    idx = [i for i, t in enumerate(vm) if t in tags]
    return len(vm) - 1 - max(idx)
def dma1(stage, j, m0r=None):
    slot = stage % 3
    if j == 0 or (j == 3 and stage < 2):
        a("s_bfe_u32 s%d, s%d, 0x%x", S_T, S_KR, (3 << 16) | (4 * stage))
        a("s_mul_i32 s%d, s%d, %d", S_T2, S_T, 64 * 3584)
        a("s_lshl_b32 s%d, s%d, 7", S_T, S_T)
    if j in (1, 2):
        a("s_add_u32 m0, s%d, %d", S_W2K, XB[slot] * BLK + (j - 1) * 1024)
        a("buffer_load_dwordx4 v%d, %s, s%d offen lds", VX0 + j - 1, sr(SX, 4), S_T)
    else:
        p = 0 if j == 0 else j - 2
        a("s_add_u32 m0, s%d, %d", S_LO + p, GB[slot] * BLK)
        a("s_add_u32 s%d, s%d, s%d", S_T3, S_T2, S_RO + p)
        a("buffer_load_dwordx4 v%d, %s, s%d offen lds", VW0, sr(SG, 4), S_T3)
    if m0r is not None: a("s_mov_b32 m0, s%d", m0r)
    vm.append(("G1", stage))
S_T3 = 24
vm += [("KP", 0)] * 7
a("s_cmp_ge_u32 s3, 4")
a("s_cselect_b32 s%d, s%d, s%d", SG, P_WU, P_WG)
a("s_cselect_b32 s%d, s%d, s%d", SG + 1, P_WU + 1, P_WG + 1)
a("s_and_b32 s%d, s%d, 0xffff", SG + 1, SG + 1)
a("s_lshr_b32 s10, s3, 2")
a("s_lshl_b32 s10, s10, 14")
a("s_and_b32 s11, s3, 3")
a("s_lshl_b32 s11, s11, 10")
a("s_add_u32 s10, s10, s11")
for j in range(4):
    a("s_add_u32 s11, s5, %d", j) if opt("share", 1) else a("s_mov_b32 s11, %d", j)
    a("s_and_b32 s11, s11, 3")
    a("s_lshl_b32 s11, s11, 12")
    a("s_add_u32 s%d, s10, s11", S_LO + j)
    if j == 0: dma1(0, 0); dma1(0, 1); dma1(0, 2)
stamp(11)
def common_srds():
    srd_base(SWS, P_WS); srd_base(SW, P_WD); srd_base(SO, P_OUT)
later_addrs(T0, T1, T2)
for j in range(3): dma1(1, j)
def g1_read_addrs():
    t0, t1, t2 = 18, 19, 20
    a("v_and_b32 v%d, 15, v1", t0)
    a("v_lshrrev_b32 v%d, 4, v1", t1)
    a("v_bfe_u32 v%d, v1, 1, 3", t2)
    a("v_xor_b32 v%d, v%d, v%d", t2, t2, t1)
    a("v_lshlrev_b32 v%d, 7, v%d", t0, t0)
    a("v_lshl_add_u32 v%d, v%d, 4, v%d", t0, t2, t0)
    a("s_lshl_b32 s10, s8, 13")
    a("v_add_u32 v%d, s10, v%d", VXR, t0)
    a("v_xor_b32 v%d, 64, v%d", VXR + 1, VXR)
    a("v_bfe_u32 v%d, v1, 2, 2", t0)
    a("v_lshl_add_u32 v%d, v%d, 3, v%d", t0, t1, t0)
    a("v_lshlrev_b32 v%d, 8, v%d", t0, t0)
    a("v_bfe_u32 v%d, v1, 2, 3", t2)
    a("s_and_b32 s10, s3, 2")
    a("s_lshl_b32 s10, s10, 1")
    a("v_xor_b32 v%d, s10, v%d", t2, t2)
    a("v_lshl_add_u32 v%d, v%d, 5, v%d", t0, t2, t0)
    a("v_and_b32 v%d, 3, v1", t2)
    a("v_lshl_add_u32 v%d, v%d, 3, v%d", t0, t2, t0)
    a("v_add_u32 v10, %d, v%d", 4 * BLK, t0)
    for m in range(1, 4): a("v_xor_b32 v%d, %d, v10", 10 + m, m << 5)
    for m in range(4): a("v_add_u32 v%d, %d, v%d", 14 + m, 4 * BLK, 10 + m)
def late_setup(comp, T0, T1, T2):
    common_srds()
    if comp:
        a("s_lshl_b32 s10, s6, 2")
        a("s_lshl_b32 s11, s8, 1")
        a("s_add_u32 s10, s10, s11")
        a("s_mul_i32 s10, s10, 112")
        a("s_lshl_b32 s11, s7, 3")
        a("s_add_u32 s10, s10, s11")
        a("s_lshl_b32 s11, s9, 2")
        a("s_add_u32 s10, s10, s11")
        a("s_lshl_b32 s%d, s10, 10", S_HST)
        a("s_mul_i32 s10, s6, %d", FSTR * (16 if PCF else 1))
        a("s_lshl_b32 s11, s7, 2")
        a("s_add_u32 s10, s10, s11")
        a("s_add_u32 s%d, s10, %d", S_FH, F_H2)
    later_addrs3(T0, T1, T2)
FX = 20
FA = 52
NAR = 10
ACC = 92
AORD = [(gu, m) for m in range(4) for gu in range(2)]
def xreads(step):
    st, ks = step // 2, step % 2
    return [("ds_read_b128 %s, v%d offset:%d" % (vr(FX + (step % 2) * 16 + 4 * tt, 4), VXR + ks, XB[st % 3] * BLK + tt * 2048), (step, "x", tt)) for tt in range(4)]
def TS(n):
    if n >= 112 and opt("psplit", 1):
        k = n - 112
        return 14 + ((k >> 2) & 1), (k & 3) + 4 * (k >> 3)
    return n // 8, n % 8
def areads(n):
    step, i = TS(n)
    st, ks = step // 2, step % 2
    gu, m = AORD[i]
    blk = GB[st % 3] + gu
    reg, rel = (10, blk - 4) if blk < 8 else (14, blk - 8)
    return [("ds_read_b64_tr_b16 %s, v%d offset:%d" % (vr(FA + 4 * (n % NAR) + 2 * hf, 2), reg + m, rel * BLK + ks * 8192 + hf * 1024), ("a", n)) for hf in range(2)]
def kgen_all(dmas):
    khead, ktail = kgen_valu(False)
    for i in khead: a(i)
    if opt("diag1", 0): stamp(7, True)
    a("s_mov_b32 m0, s%d", S_TM0)
    wr = {w_.split()[1]: w_ for w_ in kgen_writes()}
    q = []
    n = len(ktail); k = 0
    for n_, i in enumerate(ktail):
        a(i)
        if q and n_ % 1 == 0 and len(q) > 1: a(q.pop(0))
        if i.startswith("v_cvt"): q.append(wr[i.split()[1].rstrip(",")])
        if dmas and n_ >= opt("d1start", 40) and (n_ - opt("d1start", 40)) % opt("d1step", 20) == 0: dmas.pop(0)()
    for w_ in q: a(w_)
    for d in dmas: d()
def touch(stage):
    a("s_bfe_u32 s10, s%d, 0x%x", S_KR, (3 << 16) | (4 * stage))
    a("s_mul_i32 s10, s10, %d", 64 * 3584)
    a("s_add_u32 s10, s10, s%d", S_RO)
    a("buffer_load_dwordx4 v[52:55], v%d, %s, s10 offen", VW0, sr(SG, 4))
    vm.append(("T", 0))
if opt("stub", 1):
    for k_ in (0, 2):
        a("s_cmp_eq_u32 s3, %d", k_)
        a("s_cbranch_scc1 L_st%d", k_)
a("L_stret:")
a("s_waitcnt vmcnt(%d)", vmwait([("KP", 0)]))
stamp(0)
kgen_all([(lambda j=j: dma1(0, j, S_TM0)) for j in range(3, 6)])
stamp(14)
a("s_waitcnt lgkmcnt(0)")
a("s_barrier")
stamp(12)
lg = Lg()
for r in kreads(): lg.issue(*r)
a.srd(28, P_WG, 512 * 3584)
def ld_setup():
    a("v_subrev_u32 v8, 0x10000, v%d", VX0)
    a("v_subrev_u32 v9, 0x10000, v%d", VX1)
if opt("s1early", 1):
    for j in range(3, 6): dma1(1, j)
role(g1_read_addrs, ld_setup)
run_kmfma(lg, [], 0)
if not opt("s1early", 1):
    for j in range(3, 6): dma1(1, j)
a("s_waitcnt vmcnt(%d)", vmwait([("G1", 0)]))
a("s_barrier")
stamp(1)
class Raw:
    def __init__(self, f): self.f = f
a("s_cmp_ge_u32 s3, 4")
a("s_cbranch_scc1 L_load")
WST = 144
WSTO = {5: 0, 4: 32, 6: 64}
W4T = opt("w4t", 0)
W2T = opt("w2t", 0)
W1T = opt("w1t", 1)
def stage_w(rd, i0=0, n=8):
    a("s_lshl_b32 s13, s%d, 4", S_RT + rd)
    a("s_add_u32 s13, s13, s%d", S_WSO)
    if i0: a("s_add_u32 s13, s13, %d", i0 * 8192)
    for i in range(i0, i0 + n):
        a("buffer_load_dwordx4 %s, v%d, %s, s13 offen", vr(WST + WSTO[rd] + 4 * i, 4), VWD, sr(SW, 4))
        if i < i0 + n - 1: a("s_add_u32 s13, s13, 8192")
EUD = 244
def eops_load(EU=56, ED=60, t1=64, t2=65, t3=66):
    a("v_and_b32 v%d, 31, v1", t1)
    a("v_lshrrev_b32 v%d, 5, v1", t2)
    a("v_lshlrev_b32 v%d, 4, v%d", t3, t2)
    a("v_lshl_add_u32 v%d, v%d, 10, v%d", t1, t1, t3)
    a("buffer_load_dwordx4 %s, v%d, %s, s%d offen", vr(EU, 4), t1, sr(SX, 4), S_OB)
    a("v_add_u32 v%d, s%d, v%d", t3, S_DOFF, t3)
    a("global_load_dwordx4 %s, v%d, %s", vr(ED, 4), t3, sr(P_DSK, 2))
def eops_calc(EU=56, ED=60, t1=64, t2=65, t3=66):
    for j in range(4):
        a("v_lshlrev_b32 v%d, 16, v%d", t1, EU + j)
        a("v_lshlrev_b32 v%d, 16, v%d", t2, ED + j)
        a("v_and_b32 v%d, 0xffff0000, v%d", EU + j, EU + j)
        a("v_and_b32 v%d, 0xffff0000, v%d", ED + j, ED + j)
        a("v_mul_f32 v%d, v%d, v%d", t1, t1, t2)
        a("v_mul_f32 v%d, v%d, v%d", t2, EU + j, ED + j)
        a("v_cvt_pk_bf16_f32 v%d, v%d, v%d", EUD + j, t1, t2)
def dma_w(rd, i):
    a("s_lshl_b32 s10, s3, 12")
    a("s_add_u32 m0, s10, %d", WB[rd] * BLK + i * 1024)
    a("s_lshl_b32 s10, s%d, 4", S_RT + rd)
    a("s_add_u32 s10, s10, s%d", S_W0S)
    a("s_add_u32 s10, s10, %d", i * 8192)
    a("buffer_load_dwordx4 v%d, %s, s10 offen lds", VWD, sr(SW, 4))
    vm.append(("W0", 0))
S_PFI = 101
if opt("cprio", 2): a("s_setprio %d", opt("cprio", 2))
lg = Lg()
for r in areads(0) + xreads(0): lg.issue(*r)
for n in range(1, 8):
    for r in areads(n): lg.issue(*r)
    if n == 3: kmfma_finish()
a("s_waitcnt lgkmcnt(8)") if False else None
kv = a.capture(late_setup, True, 18, 19, 7)
ECT = dict(EU=220, ED=224, t1=228, t2=229, t3=230)
def epilogue(p):
    for tt in range(4):
        dst = ACC + ((4 + 2 * p) * 4 + tt) * 4
        for m in (2 * p, 2 * p + 1):
            g = ACC + (m * 4 + tt) * 4; u = ACC + ((4 + m) * 4 + tt) * 4
            if (opt("eplain", 3) >> p) & 1:
                for q_ in range(4): a("v_mul_f32 v%d, v%d, v%d", g + q_, g + q_, u + q_)
            else:
                for q_ in range(2): a("v_pk_mul_f32 %s, %s, %s", vr(g + 2 * q_, 2), vr(g + 2 * q_, 2), vr(u + 2 * q_, 2))
        for m in (2 * p, 2 * p + 1):
            g = ACC + (m * 4 + tt) * 4
            for q_ in range(2): a("v_cvt_pk_bf16_f32 v%d, v%d, v%d", dst + 2 * (m & 1) + q_, g + 2 * q_, g + 2 * q_ + 1)
        a("buffer_store_dwordx4 %s, v18, %s, s%d offen offset:%d sc1", vr(dst, 4), sr(SWS, 4), S_HST if tt < 2 else 10, 2048 * p + 256 * (tt & 1))
epi = [a.capture(epilogue, 0), a.capture(epilogue, 1)]
AHEAD = 8
for step in range(16):
    st, ks = step // 2, step % 2
    q = []
    if step < 15:
        sched = {}
        for i in range(8):
            g_ = max(0, 4 * (i - (NAR - 8)) + 3)
            sched.setdefault(g_, []).extend(areads((step + 1) * 8 + i))
        xq = xreads(step + 1)
    order = [(i, tt if (i % 2 == 0 or not opt("snake", 0)) else 3 - tt) for i in range(8) for tt in range(4)]
    for g, (i, tt) in enumerate(order):
        n = step * 8 + i
        rs, ri = TS(n)
        gu, m = AORD[ri]
        d = vr(ACC + ((gu * 4 + m) * 4 + tt) * 4, 4)
        lg.need([("a", n), (rs, "x", tt)])
        a("v_mfma_f32_16x16x32_bf16 %s, %s, %s, %s", d, vr(FA + 4 * (n % NAR), 4), vr(FX + (rs % 2) * 16 + 4 * tt, 4), d if step else "0")
        if step < 15: q += sched.pop(g, [])
        if step == 15 and g >= (2 if opt("psplit", 1) else 18) and not kv:
            for _ in range(opt("epg", 2 if opt("psplit", 1) else 3)):
                if epi[0]: a(epi[0].pop(0))
        if q: lg.issue(*q.pop(0))
        elif step < 15 and xq: lg.issue(*xq.pop(0))
        elif kv:
            k_ = kv.pop(0)
            k_() if callable(k_) else a(k_)
            if kv and not callable(k_) and k_.startswith("s_") and not callable(kv[0]) and opt("s2", 1): a(kv.pop(0))
    assert not q and (step == 15 or not xq)
    if ks == 0:
        a("s_waitcnt %slgkmcnt(0)", "vmcnt(0) " if st == 0 else ""); lg.drained()
        a("s_barrier")
        if opt("stg", 0): stamp([4, 5, 6, 7, 8, 10, 13, 14][st], True)
        if st == 5:
            assert not kv, len(kv)
            kv = a.capture(eops_load, *[ECT[k] for k in ("EU", "ED", "t1", "t2", "t3")])
            kv += ["v_lshrrev_b32 v18, 4, v1", "v_lshlrev_b32 v18, 9, v18", "v_and_b32 v19, 15, v1", "v_lshl_add_u32 v18, v19, 4, v18",
                   "s_add_u32 s10, s%d, %d" % (S_HST, 112 * 1024)]
        if st == 6:
            kv = ["s_waitcnt vmcnt(0)"] + a.capture(eops_calc, *[ECT[k] for k in ("EU", "ED", "t1", "t2", "t3")])
        if st == 7:
            a("ds_read_b32 v%d, v%d offset:%d", VN, VZ, L_SY + 100)
assert not kv
stamp(2)
for k_ in epi[0] + epi[1]: a(k_)
a("s_waitcnt lgkmcnt(0)")
a("v_readfirstlane_b32 s%d, v%d", S_NONCE, VN)

def loader():
    SG2 = 28
    VX2 = 8
    a("L_load:")
    def stage(s_, part=3):
        slot = s_ % 3
        a("s_bfe_u32 s%d, s%d, 0x%x", S_T, S_KR, (3 << 16) | (4 * s_))
        a("s_mul_i32 s%d, s%d, %d", S_T2, S_T, 64 * 3584)
        a("s_lshl_b32 s%d, s%d, 7", S_T, S_T)
        def wp(p):
            a("s_add_u32 s%d, s%d, s%d", S_T3, S_T2, S_RO + p)
            for m in range(2):
                a("s_add_u32 m0, s%d, %d", S_LO + p, (GB[slot] - 1 + m) * BLK)
                a("buffer_load_dwordx4 v%d, %s, s%d offen lds", VW0, sr([SG2, SG][m], 4), S_T3)
                vm.append(("G1", s_))
        if part & 1: wp(0)
        for h_ in range(2 if part & 1 else 0):
            for i in range(2):
                a("s_add_u32 m0, s%d, %d", S_W2K, (XB[slot] * BLK + i * 1024 - (1 - h_) * 8192) & 0xffffffff)
                a("buffer_load_dwordx4 v%d, %s, s%d offen lds", [VX2, VX0][h_] + i, sr(SX, 4), S_T)
                vm.append(("G1", s_))
        if part & 2:
            for p in range(1, 4): wp(p)
    wl = hl_list(True)
    def wloads(n):
        for _ in range(n):
            wl.pop(0)(); vm.append(("W", 0))
    SP = opt("sp", 2)
    stage(2, 1 if SP else 3)
    kmfma_finish()
    ls = a.capture(late_setup, False, T0, T1, T2)
    for st in range(8):
        if st < 7: a("s_waitcnt vmcnt(%d) lgkmcnt(0)", vmwait([("G1", st + 1)]))
        else: a("s_waitcnt lgkmcnt(0)")
        a("s_barrier")
        if st < SP and st + 2 <= 7: stage(st + 2, 2)
        if st + 3 <= 7: stage(st + 3, 1 if st + 1 < SP else 3)
        if st == 0: onwave(4, zero_pads_k)
        if 1 <= st <= 3:
            n_ = (len(ls) + 3 - st) // (4 - st)
            for k_ in ls[:n_]: a(k_)
            ls = ls[n_:]
        if st == 4:
            later_addrs2(T0, T1, T2)
            conv_prelude()
            if UE:
                a("s_mov_b32 s%d, %d", S_PB, F_A)
                poll_issue(32); vm.append(("X", 0))
                nonce_issue(); vm.append(("X", 0))
        def ucheck():
            a("s_waitcnt vmcnt(%d)", vmwait([("X", 0)]))
            nonce_check()
            def wn():
                a("s_mov_b64 exec, 1")
                a("ds_write_b32 v%d, v%d offset:%d", VZ, VN, L_SY + 100)
                a("s_mov_b64 exec, -1")
            onwave(4, wn)
            poll_check(16)
            u_load(); vm.append(("U", 0)); vm.append(("U", 0))
        if st == 5:
            eops_load(); vm.append(("E", 0)); vm.append(("E", 0))
            onwave(5, zero_pads_u)
            if UE: ucheck()
            else:
                a("s_mov_b32 s%d, %d", S_PB, F_A)
                poll_issue(32); vm.append(("X", 0))
                nonce_issue(); vm.append(("X", 0))
            wloads(NW[1])
        if st == 6:
            if not UE: ucheck()
            else:
                a("s_waitcnt vmcnt(%d)", vmwait([("U", 0)]))
                u_write()
                eops_calc()
            wloads(NW[2])
    stamp(2)
    wloads(min(NW[3], 8))
    if not UE:
        a("s_waitcnt vmcnt(%d)", vmwait([("U", 0)]))
        u_write()
        sig(VSY, 0)
        wloads(NW[3] - min(NW[3], 8))
        eops_calc()
        a("v_and_b32 v19, 3, v1")
        a("v_lshlrev_b32 v19, 2, v19")
        lds_wait(19, L_SY + 16, 18, 0)
    if opt("hold", 0): lds_wait(7, 104, 18, 1)
UE = opt("ue", 0)
def conv_prelude():
    a("v_mov_b32 v6, 1")
    a("v_mov_b32 v7, %d", L_SY)
    a("s_lshl_b32 s10, s%d, 4", S_TQ)
    a("s_add_u32 s10, s10, %d", L_SY + 32)
    a("v_mov_b32 v108, s10")
    a("v_xor_b32 v109, 16, v108")
NW = [0, opt("nw5", 8), opt("nw6", 8), opt("nw7", 0)]
AUX0 = len(a.lines)
HIST0 = list(a.hist)
a("L_aux:")
common_srds()
a("s_lshl_b32 s6, s4, 2")
a("s_add_u32 s6, s6, s5")
PITCH = 1040
GRP = 16 * PITCH
LA1 = 6 * BLK - GRP
LGW = GRP
a("v_lshlrev_b32 v20, 4, v1")
a("s_mov_b32 s9, %d", F_E)
a("buffer_load_dword v12, v%d, %s, s9 offen sc1", VZ, sr(SWS, 4))
a("s_lshl_b32 s7, s6, 16")
a("s_lshl_b32 s8, s3, 13")
a("s_add_u32 s7, s7, s8")
a("s_mul_i32 s8, s3, %d", 8 * PITCH)
a("s_cmp_ge_u32 s3, 2")
a("s_cselect_b32 s10, %d, 0", LA1)
a("s_add_u32 s8, s8, s10")
def xall():
    a("s_and_b32 s11, s3, 3")
    a("s_lshl_b32 s24, s6, 16")
    a("s_lshl_b32 s12, s11, 14")
    a("s_add_u32 s24, s24, s12")
    a("s_mul_i32 s12, s11, %d", GRP)
    a("s_cmp_lg_u32 s11, 0")
    a("s_cselect_b32 s10, %d, 0", LA1)
    a("s_add_u32 m0, s12, s10")
    for j in range(16):
        a("buffer_load_dwordx4 v20, %s, s24 offen lds", sr(SX, 4))
        if j < 15:
            a("s_add_u32 m0, m0, %d", PITCH)
            a("s_add_u32 s24, s24, 1024")
role(None, xall)
later_addrs(T0, T1, T2)
role(lambda: a("s_waitcnt vmcnt(0)"), lambda: a("s_waitcnt vmcnt(16)"))
a("s_or_b32 s10, s2, s3")
a("s_cmp_lg_u32 s10, 0")
a("s_cbranch_scc1 L_nononce")
a("s_mov_b32 s10, 0x9e3779b1")
a("v_mul_lo_u32 v12, v12, s10")
a("v_add_u32 v12, 0x7f4a7c15, v12")
a("v_mov_b32 v13, 1")
a("s_mov_b64 exec, 1")
a("global_store_dwordx2 v%d, v[12:13], %s sc1", VZ, sr(P_DBG, 2))
a("buffer_store_dword v12, v%d, %s, s9 offen sc1", VZ, sr(SWS, 4))
a("s_mov_b64 exec, -1")
a("L_nononce:")
kgen_all([])
a("global_load_dwordx4 v[28:31], v20, %s", sr(P_GW, 2))
a("s_waitcnt lgkmcnt(0)")
a("s_barrier")
lg = Lg()
for r in kreads(): lg.issue(*r)
a("v_and_b32 v21, 7, v0")
a("v_lshlrev_b32 v21, 4, v21")
a("v_lshrrev_b32 v22, 4, v1")
a("v_bfe_u32 v23, v1, 2, 2")
a("v_lshl_add_u32 v23, v23, 2, v22")
a("v_mul_u32_u24 v23, %d, v23", PITCH)
a("v_and_b32 v8, 3, v1")
a("v_lshl_add_u32 v23, v8, 3, v23")
a("s_lshr_b32 s11, s3, 1")
a("s_lshl_b32 s12, s11, 8")
a("s_and_b32 s9, s3, 1")
a("s_cselect_b32 s10, %d, 0", LA1 + 2 * GRP)
a("s_mov_b32 s13, %d", LA1 + GRP)
a("s_cmov_b32 s13, %d", LA1 + 3 * GRP)
a("s_add_u32 s10, s10, s12")
a("s_add_u32 s13, s13, s12")
a("v_add_u32 v11, s13, v23")
a("v_add_u32 v23, s10, v23")
a("v_bfe_u32 v8, v1, 1, 3")
a("v_lshlrev_b32 v8, 13, v8")
a("v_lshl_add_u32 v8, v22, 5, v8")
a("v_and_b32 v9, 1, v1")
a("v_lshl_add_u32 v8, v9, 4, v8")
a("s_lshl_b32 s25, s11, 19")
a("s_lshl_b32 s13, s6, 1")
a("s_add_u32 s13, s13, s9")
a("s_lshl_b32 s13, s13, 7")
a("s_add_u32 s25, s25, s13")
a("s_add_u32 s25, s25, %d", WS_UT)
a("v_lshrrev_b32 v9, 3, v1")
a("v_mul_u32_u24 v10, %d, v9", PITCH)
a("v_add3_u32 v10, v10, v21, s8")
a("v_lshrrev_b32 v9, 3, v0")
run_kmfma(lg, [], 0)
a("s_waitcnt vmcnt(0)")
onwave(0, lambda: a("ds_write_b128 v20, v[28:31] offset:%d", LGW))
a("s_waitcnt lgkmcnt(0)")
a("s_barrier")
stamp(0)
nonce_issue()
for j in range(8):
    for hf in range(2):
        a("ds_read_b64_tr_b16 %s, v%d offset:%d", vr(64 + 4 * j + 2 * hf, 2), [23, 11][hf], j * 32)
for j in range(8):
    a("s_waitcnt lgkmcnt(%d)", 14 - 2 * j)
    a("s_add_u32 s13, s25, %d", j * 65536)
    a("buffer_store_dwordx4 %s, v8, %s, s13 offen sc1", vr(64 + 4 * j, 4), sr(SWS, 4))
for j in range(8):
    a("ds_read_b128 %s, v10 offset:%d", vr(96 + 4 * j, 4), j * 128)
    a("ds_read_b128 %s, v21 offset:%d", vr(24 + 4 * j, 4), LGW + j * 128)
kmfma_finish()
onwave(0, zero_pads_k)
onwave(1, zero_pads_u)
a("v_mov_b32 v11, 0")
a("v_mov_b32 v12, 0")
a("s_waitcnt lgkmcnt(0)")
for j in range(32):
    a("v_dot2_f32_bf16 v%d, v%d, v%d, v%d", 11 + j % 2, 24 + j, 96 + j, 11 + j % 2)
a("v_add_f32 v11, v11, v12")
a("v_add_f32_dpp v11, v11, v11 quad_perm:[1,0,3,2] row_mask:0xf bank_mask:0xf")
a("v_add_f32_dpp v11, v11, v11 quad_perm:[2,3,0,1] row_mask:0xf bank_mask:0xf")
a("v_add_f32_dpp v11, v11, v11 row_half_mirror row_mask:0xf bank_mask:0xf")
a("v_mul_f32 v11, 0xbfb8aa3b, v11")
a("v_exp_f32 v11, v11")
a("v_add_f32 v11, 1.0, v11")
a("v_rcp_f32 v11, v11")
a("v_lshlrev_b32 v9, 2, v9")
a("s_waitcnt vmcnt(0)")
nonce_check()
a("s_barrier")
def sflag(base):
    a("s_lshl_b32 s10, s6, 2")
    a("s_add_u32 s10, s10, %d", base)
    a("s_mov_b32 s11, s%d", S_NONCE)
    a("s_buffer_atomic_swap s11, %s, s10", sr(SWS, 4))
onwave(1, lambda: sflag(F_A))
stamp(1)
a("s_lshl_b32 s13, s6, 8")
a("s_add_u32 s13, s13, %d", WS_G)
a("v_cmp_eq_u32 vcc, 0, v21")
a("s_mov_b64 exec, vcc")
a("buffer_store_dword v11, v9, %s, s13 offen sc1", sr(SWS, 4))
a("s_mov_b64 exec, -1")
a("s_lshl_b32 s%d, s6, 13", S_PFI)
a("s_lshl_b32 s11, s3, 10")
a("s_add_u32 s%d, s%d, s11", S_PFI, S_PFI)
for k_ in range(7):
    a("buffer_load_dwordx4 v[52:55], v20, %s, s%d offen", sr(SW, 4), S_PFI)
    a("s_add_u32 s%d, s%d, %d", S_PFI, S_PFI, 256 * 1024)
    if k_ == 4:
        later_addrs2(T0, T1, T2)
        later_addrs3(T0, T1, T2)
def p_():
    a("s_mov_b32 s%d, %d", S_PB, F_A)
    poll_issue(32)
    a("s_waitcnt vmcnt(0)")
    poll_check(8)
onwave(0, p_)
a("s_waitcnt vmcnt(7)")
a("s_barrier")
onwave(1, lambda: sflag(F_G))
role(None, u_load)
eops_load()
a("s_waitcnt vmcnt(0)")
role(None, u_write)
eops_calc()
a("s_waitcnt lgkmcnt(0)")
a("s_barrier")
stamp(2)
conv_prelude()
a("s_cmp_ge_u32 s3, 4")
a("s_cbranch_scc1 L_conv")
AUXW = len(a.lines)
a("s_branch L_help")
aux_lines = a.lines[AUX0:]
a.lines = a.lines[:AUX0]
a.hist = HIST0
VA, VB, VC, VY = 2, 3, 4, 5
HF = 80
HRING = 16
VO = 14
HFC = 112
def hload(j0, n, vml, HF=HF):
    for j in range(j0, j0 + n):
        if j % 4 == 0 or j == j0:
            a("s_add_u32 s%d, s%d, s%d", S_T, S_HB, S_RT + j // 4)
        a("buffer_load_dwordx4 %s, v%d, %s, s%d offen offset:%d%s", vr(HF + 4 * (j % HRING), 4), VH, sr(SWS, 4), S_T, (j % 4) * 1024, "" if opt("hplain", 0) else " sc1")
        vml.append(("H", j))

WORD = {0: [0, 1, 4, 5, 6, 2, 3], 8: [0, 1, 2, 4, 5, 6, 3], 16: [0, 1, 2, 3, 4, 5, 6]}[opt('nw7', 0)]
def hl_list(all_=False):
    L = []
    for rd in WORD:
        for i in range(8):
            def f(rd=rd, i=i):
                if rd < 4:
                    a("s_add_u32 m0, s%d, %d", S_WLD, WB[rd] * BLK + i * 1024)
                if i == 0:
                    a("s_lshl_b32 s13, s%d, 4", S_RT + rd)
                    a("s_add_u32 s13, s13, s%d", S_WSO)
                else:
                    a("s_add_u32 s13, s13, 8192")
                if rd < 4:
                    a("buffer_load_dwordx4 v%d, %s, s13 offen lds", VWD, sr(SW, 4))
                else:
                    a("buffer_load_dwordx4 %s, v%d, %s, s13 offen", vr(WST + WSTO[rd] + 4 * i, 4), VWD, sr(SW, 4))
            L.append(f)
    return L if all_ else L[sum(NW):]
assert all(x % 8 == 0 for x in NW) and NW[0] <= 8 and NW[0] + NW[1] <= 16
BC0 = len(a.lines)
a("L_st2:"); a("s_branch L_stret")
loader()
a("L_conv:")
stamp(3)
if opt("prio", 0): a("s_setprio %d", opt("prio", 0))
a("s_mov_b32 s14, 0x11111111")
a("s_mov_b32 s15, 0x11111111")
a("s_mov_b64 vcc, s[14:15]")
a("s_mov_b32 s12, 0x33333333")
a("s_mov_b32 s13, 0x33333333")
a("s_bitcmp1_b32 s3, 0")
a("s_cbranch_scc1 L_set1")
BF = 112
AF = 8
AC = 28
C1POS = opt("c1pos", 26)
LOOK = opt("look", 6)
NC0 = opt("nc0", 6)
FPG = opt("fpg", 4)
vmc = None
VCF, VCP = 108, 109
DONE = {}
def done_pos(jt):
    CM = opt("cm", 0)
    for tiles in ([0, 3, 4, 7], [1, 2, 5, 6]):
        if jt in tiles:
            groups = {0: [[0, 1, 2, 3]], 1: [[0], [1], [2], [3]], 2: [[0, 1], [2, 3]], 3: [[0, 1, 2], [3]]}[CM]
            sc = [tiles[ti] for g_ in groups for dl in range(4 * tiles[g_[-1]] + 4) for ti in g_ if dl <= 4 * tiles[ti] + 3]
            return max(p for p, x in enumerate(sc) if x == jt)
for si, tiles in enumerate([[0, 3, 4, 7], [1, 2, 5, 6]]):
    if si == 1:
        a("L_st0:"); a("s_branch L_stret")
        a("L_set1:")
    other = [[1, 2, 5, 6], [0, 3, 4, 7]][si]
    lg = Lg()
    CM = opt("cm", 0)
    groups = {0: [[0, 1, 2, 3]], 1: [[0], [1], [2], [3]], 2: [[0, 1], [2, 3]], 3: [[0, 1, 2], [3]]}[CM]
    sched = []; aid = []; adl = []
    for g_ in groups:
        for dl in range(4 * tiles[g_[-1]] + 4):
            adl.append(dl)
            for ti in g_:
                if dl <= 4 * tiles[ti] + 3:
                    sched.append((dl, ti, tiles[ti])); aid.append(len(adl) - 1)
    NA = 5
    lastuse = {}
    for pos in range(len(sched)): lastuse[aid[pos]] = pos
    loads = []; seenB = set(); seenA = set()
    for pos, (dl, ti, jt) in enumerate(sched):
        if aid[pos] not in seenA: seenA.add(aid[pos]); loads.append(("A", aid[pos], pos))
        e = 4 * jt - dl
        if e not in seenB: seenB.add(e); loads.append(("B", e, pos))
    done_at = {jt: max(p for p, x in enumerate(sched) if x[2] == jt) for jt in tiles}
    DONE.update(done_at)
    def ld_instrs(kind, idx):
        if kind == "A":
            r = AF + 4 * (idx % NA); dl_ = adl[idx]
            return ["ds_read_b64_tr_b16 %s, v%d offset:%d" % (vr(r + 2 * hf, 2), VA, 128 * dl_ + 32 * (1 - hf)) for hf in range(2)]
        return ["ds_read_b128 %s, v%d offset:%d" % (vr(BF + 4 * (idx + 3), 4), VB, 128 * (idx + 3))]
    nys = [0]
    ystores = []
    def post(ti, jt):
        b = AC + 20 * ti
        L = []
        q1 = "quad_perm:[1,1,3,3] row_mask:0xf bank_mask:0xf"; q2 = "quad_perm:[2,2,2,2] row_mask:0xf bank_mask:0xf"
        q0 = "quad_perm:[0,0,0,0] row_mask:0xf bank_mask:0xf"
        L.append("v_mov_b32_dpp v%d, v%d %s" % (b + 16, b + 15, q1))
        for q in range(15, 0, -1):
            L.append("v_add_f32_dpp v%d, v%d, v%d %s" % (b + q, b + q - 1, b + q, q1))
        L.append("v_mov_b32_dpp v%d, v%d %s" % (b + 18, b + 16, q2))
        L.append("v_mov_b32_dpp v%d, v%d %s" % (b + 17, b + 15, q2))
        L.append("v_add_f32_dpp v%d, v%d, v%d %s" % (b + 16, b + 14, b + 16, q2))
        def cw():
            a("s_mov_b64 exec, vcc")
            lg.issue("ds_write_b128 v%d, %s offset:%d" % (VC, vr(b + 16, 4), 256 * jt + 16))
            if jt + 1 in other:
                a("s_mov_b64 exec, 1")
                lg.issue("ds_write_b32 v%d, v6 offset:%d" % (VCF, 4 * ti))
            a("s_mov_b64 exec, -1")
        L.append(cw)
        for q in range(15, 1, -1):
            L.append("v_add_f32_dpp v%d, v%d, v%d %s" % (b + q, b + q - 2, b + q, q2))
        for q in range(2, 8):
            L.append("v_cvt_pk_bf16_f32 v%d, v%d, v%d" % (b + 16 + (q - 2) if q < 4 else b + q, b + 2 * q, b + 2 * q + 1))
        L = [(0, x) for x in L]
        part = (jt - 1) in other
        mp = done_pos(jt - 1) + opt("cmarg", 22) if part else 0
        def rd():
            if part: lg.issue("ds_read_b32 v%d, v%d offset:%d" % (b + 12, VCP, 4 * other.index(jt - 1)), ("cf", ti))
            lg.issue("ds_read_b128 %s, v%d offset:%d" % (vr(b + 8, 4), VC, 256 * jt), ("cy", ti))
        L.append((mp, rd))
        def chk():
            lg.need([("cy", ti)])
            if part:
                ok = a.label("Lcok"); sl = a.label("Lcsl")
                a("v_readfirstlane_b32 s10, v%d", b + 12)
                a("s_cmp_eq_u32 s10, 0")
                a("s_cbranch_scc1 %s", sl)
                a(ok + ":")
                def sp(ok=ok, sl=sl, oi=other.index(jt - 1)):
                    a(sl + ":")
                    lds_wait(VCP, 4 * oi, b + 12, 0)
                    a("s_mov_b64 vcc, s[14:15]")
                    a("ds_read_b128 %s, v%d offset:%d", vr(b + 8, 4), VC, 256 * jt)
                    a("s_waitcnt lgkmcnt(0)")
                    a("s_branch %s", ok)
                slow.append(sp)
        L.append((-3, chk))
        for q in range(3):
            L.append((0, "v_add_f32 v%d, v%d, v%d" % (b + q, b + q, b + 8 + q)))
        L.append((0, "v_cvt_pk_bf16_f32 v%d, v%d, v%d" % (b, b, b + 1)))
        L.append((0, "v_cvt_pk_bf16_f32 v%d, v%d, v%d" % (b + 1, b + 2, b + 3)))
        L.append((0, "v_cndmask_b32_dpp v%d, v%d, v%d, vcc %s" % (b + 2, b + 6, b + 16, q0)))
        L.append((0, "v_cndmask_b32_dpp v%d, v%d, v%d, vcc %s" % (b + 3, b + 7, b + 17, q0)))
        L.append((0, "v_cndmask_b32_dpp v%d, v%d, v%d, vcc %s" % (b, b + 4, b, q0)))
        L.append((0, "v_cndmask_b32_dpp v%d, v%d, v%d, vcc %s" % (b + 1, b + 5, b + 1, q0)))
        def st_():
            a("s_mov_b64 exec, s[12:13]")
            a("buffer_store_dwordx4 %s, v%d, %s, s%d offen offset:%d sc1", vr(b, 4), VY, sr(SWS, 4), S_YB, 512 * jt)
            a("s_mov_b64 exec, -1")
            nys[0] += 1
        if opt("ydefer", 1): ystores.append(st_)
        else: L.append((0, st_))
        return L
    li = 0; queues = []
    def emit(x): a(x) if isinstance(x, str) else x()
    for pos, (dl, ti, jt) in enumerate(sched):
        for ld in list(loads):
            kind, idx, fp = ld
            if fp <= pos + LOOK and not (kind == "A" and idx >= NA and lastuse[idx - NA] >= pos):
                for ins in ld_instrs(kind, idx): lg.issue(ins, (kind, idx))
                loads.remove(ld)
        e = 4 * jt - dl
        lg.need([("A", aid[pos]), ("B", e)])
        d = vr(AC + 20 * ti, 16)
        a("v_mfma_f32_32x32x16_bf16 %s, %s, %s, %s", d, vr(AF + 4 * (aid[pos] % NA), 4), vr(BF + 4 * (e + 3), 4), d if dl else "0")
        if opt("diag2", 0) and pos in (15, 39):
            stamp({15: 11, 39: 12}[pos], True); lg.drained()
        bud = FPG
        for qu in queues:
            while bud and qu[0] and pos >= qu[1]:
                mp, x = qu[0][0]
                if mp > pos: break
                if mp < 0:
                    qu[0][0] = (pos - mp, x); break
                qu[0].pop(0); emit(x); bud -= 1
        if dl == 4 * jt + 3: queues.append([post(ti, jt), pos + 3])
    stamp(4)
    def upto(qu, name, incl):
        names = [getattr(x, "__name__", "") for mp, x in qu[0]]
        if name not in names: return
        n_ = names.index(name) + (1 if incl else 0)
        for mp, x in qu[0][:n_]: emit(x)
        qu[0] = qu[0][n_:]
    for qu in queues[:-1]: upto(qu, "cw", True)
    upto(queues[-1], "cw", True)
    for qu in queues[:-1]: upto(qu, "rd", True)
    upto(queues[-1], "rd", True)
    for qu in queues[:-1]:
        for mp, x in qu[0]: emit(x)
    for mp, x in queues[-1][0]: emit(x)
    for x in ystores: x()
    stamp(5)
    if si == 0: a("s_branch L_g2c")

BH0 = len(a.lines)
a.hist = HIST0
a("v_mov_b32 v6, 1")
a("v_mov_b32 v7, %d", L_SY)
if opt("hold", 0): onwave(3, lambda: sig(7, 104))
a("s_setprio 0")
a("L_help:")
stamp(3)
NPRE = opt("npre", 8)
for f in hl_list()[:NPRE]: f()
a("s_waitcnt vmcnt(%d)", NPRE)
sig(VSY, 0)
stamp(10)
a("s_cmp_lg_u32 s3, 0")
a("s_cbranch_scc1 L_hdma")
a("s_cmp_lg_u32 s%d, 0", S_ISAUX)
a("s_cbranch_scc1 L_hdma")
a("v_and_b32 v2, 3, v1")
a("v_lshl_add_u32 v2, v2, 2, v7")
rest = hl_list()[NPRE:]
SEG = opt("seg", 2)
NSEG = opt("nseg", 6)
for k in range(NSEG):
    a("ds_read_b32 v3, v2")
    a("s_waitcnt lgkmcnt(0)")
    a("v_cmp_eq_u32 vcc, 0, v3")
    a("s_cmp_eq_u64 vcc, 0")
    a("s_cbranch_scc1 L_pub%d", k)
    for f in rest[k * SEG:(k + 1) * SEG]: f()
lds_wait(2, 0, 3, 0)
for k in range(NSEG, -1, -1):
    a("L_pub%d:" % k)
    a("s_mov_b32 s11, s%d", S_NONCE)
    a("s_buffer_atomic_swap s11, %s, s%d", sr(SWS, 4), S_FH)
    if STAMP and k == 0: pass
    if k: a("s_branch L_seg%d", k)
a("L_hdma:")
for n_, f in enumerate(rest):
    if n_ and n_ % SEG == 0 and n_ // SEG <= NSEG: a("L_seg%d:" % (n_ // SEG))
    f()
stamp(6)
NH0 = opt("nh0", 6)
def hpoll():
    if PCF:
        a("s_lshl_b32 s%d, s%d, 3", S_PB, S_TB)
        a("s_add_u32 s%d, s%d, s%d", S_PB, S_PB, S_DB)
    else:
        a("s_lshr_b32 s%d, s%d, 1", S_PB, S_TB)
    a("s_mul_i32 s%d, s%d, %d", S_PB, S_PB, FSTR)
    a("s_add_u32 s%d, s%d, %d", S_PB, S_PB, F_H2)
    a("s_mov_b32 s8, s%d", S_NONCE)
    a("s_mov_b32 s9, s%d", S_NONCE)
    a("s_mov_b32 s12, 0")
    a("L_sp:")
    a("s_buffer_load_dwordx16 s[16:31], %s, s%d glc", sr(SWS, 4), S_PB)
    a("s_add_u32 s12, s12, 1")
    a("s_waitcnt lgkmcnt(0)")
    a("s_xor_b64 s[10:11], s[16:17], s[8:9]")
    for i in range(1, 7):
        a("s_xor_b64 s[14:15], s[%d:%d], s[8:9]", 16 + 2 * i, 17 + 2 * i)
        a("s_or_b64 s[10:11], s[10:11], s[14:15]")
    a("s_cbranch_scc0 L_fnd")
    a("s_cmp_lt_u32 s12, %d", opt("spn", 64))
    a("s_cbranch_scc1 L_sp")
    poll_issue(14)
    a("s_waitcnt vmcnt(0)")
    poll_check(1)
    a("L_fnd:")
    sig(7, 96)
def ypublish():
    a("s_waitcnt vmcnt(0)")
    sig(VSY, 96)
    def p_():
        a("v_and_b32 v2, 3, v1")
        a("v_lshl_add_u32 v2, v2, 2, v7")
        lds_wait(2, 112, 3, 0)
        a("s_lshl_b32 s10, s2, 2")
        a("s_add_u32 s10, s10, %d", F_Y)
        flag_store("s10")
    onwave(4, p_)
    stamp(6)
vmh = []; vmc = []

def gemm2(role_, vml):
    helper = role_ == "h"
    HFR = HF if helper else HFC
    R = 8
    VYR, EG = 15, 16
    EY = 176
    VWW = 76
    t0, t1, t2, t3 = 2, 3, 4, 5
    AFR = 20
    AC2 = 44
    YL = 180
    A0 = 188
    RR = 16
    def vw(tags):
        idx = [i for i, t in enumerate(vml) if t in tags]
        if opt("g2nowait", 0) and tags[0][0] in "HW": return 63
        if not idx: return 63
        return min(63, len(vml) - 1 - max(idx))
    a("v_mov_b32 v%d, v%d", R, VR0)
    a("v_xor_b32 v%d, 64, v%d", R + 1, VR0)
    for m in range(2):
        a("v_add_u32 v%d, %d, v%d", R + 2 + m, 4 * BLK, R + m)
        a("v_add_u32 v%d, %d, v%d", R + 4 + m, 8 * BLK, R + m)
    if helper and opt("pollpre", 1): onwave(opt("pollw", 1), hpoll)
    a("s_waitcnt vmcnt(%d)", 0 if helper else 4)
    if not helper and opt("pollpre", 1) and not opt("ylate", 1): ypublish()
    a("s_barrier")
    stamp(7)
    if opt("g2prio", 0) and not helper: a("s_setprio 1")
    def reads(step):
        rd, ks = step // 4, step % 4
        blk = WB[rd]
        f = AFR + (step % 3) * 8
        L = []
        for m in range(2):
            for hf in range(2):
                L.append(("ds_read_b64_tr_b16 %s, v%d offset:%d" % (vr(f + 4 * m + 2 * hf, 2), R + 2 * (blk // 4) + m, (blk % 4) * BLK + ((ks >> 1) * 4096 + (ks & 1) * 1024 + hf * 2048 if G16 else ks * 2048 + hf * 1024)), (step, m)))
        return L
    def ypoll_issue():
        a("s_lshl_b32 s10, s%d, 7", S_DB)
        a("v_lshl_add_u32 v%d, v1, 2, s10", VN + 2)
        a("s_lshl_b32 s10, s%d, 2", S_TB)
        a("s_add_u32 s10, s10, %d", F_G - F_Y)
        a("v_mov_b32 v%d, s10", t0)
        a("v_cmp_lt_u32 vcc, 31, v1")
        a("v_cndmask_b32 v%d, v%d, v%d, vcc", VN + 2, VN + 2, t0)
        a("s_mov_b32 s%d, %d", S_PB, F_Y)
        a("buffer_load_dword v%d, v%d, %s, s%d offen sc1", VN - 1, VN + 2, sr(SWS, 4), S_PB)
        vml.append(("PY", 0))
    def yload():
        poll_check(1)
        a("v_lshrrev_b32 v%d, 3, v1", t0)
        a("v_lshlrev_b32 v%d, 12, v%d", t0, t0)
        a("v_and_b32 v%d, 7, v1", t1)
        a("v_lshl_add_u32 v%d, v%d, 4, v%d", t0, t1, t0)
        a("s_lshl_b32 s12, s%d, 3", S_DB)
        a("s_add_u32 s12, s12, s3")
        a("s_lshl_b32 s12, s12, 15")
        a("s_lshl_b32 s13, s%d, 7", S_TB)
        a("s_add_u32 s12, s12, s13")
        a("s_add_u32 s12, s12, %d", WS_Y)
        a("buffer_load_dwordx4 %s, v%d, %s, s12 offen sc1", vr(YL, 4), t0, sr(SWS, 4))
        vml.append(("Y", 0))
        a("v_and_b32 v%d, 31, v1", t1)
        a("v_lshlrev_b32 v%d, 2, v%d", t1, t1)
        a("buffer_load_dword v%d, v%d, %s, s%d offen sc1", EG, t1, sr(SWS, 4), S_GOFF)
        vml.append(("Y", 0))
    lg = Lg()
    for r in reads(0) + reads(1): lg.issue(*r)
    pend = []
    def wwrite(rd, i):
        if opt("xnoww", 0): return
        if i == 0: a("v_add_u32 v%d, %d, v%d", VWW, WB[rd] * BLK, VWW + 1)
        lg.issue("ds_write_b128 v%d, %s offset:%d" % (VWW, vr(WST + WSTO[rd] + 4 * i, 4), i * 1024), ("ww", rd))
    if helper:
        a("v_add_u32 v%d, s%d, v%d", VWW + 1, S_WLD, VH)
    if opt("pollpre", 1):
        hload(0, NH0 if helper else NC0, vml, HFR)
        if helper:
            for i in range(8): wwrite(4, i)
    else:
        assert False
        if helper:
            for i in range(7): wwrite(4, i)
            onwave(opt("pollw", 1), hpoll)
        else:
            ypublish()
        lds_wait(7, 96, 3, 0); lg.drained()
        stamp(13)
        hload(0, NH0 if helper else NC0, vml, HFR)
    vfill = []
    nh = NH0 if helper else NC0
    YPS = opt("yps", 15)
    for step in range(28):
        rd, ks = step // 4, step % 4
        f = AFR + (step % 3) * 8
        nxt = reads(step + 2) if step < 26 else []
        for m in range(2):
            d = vr(AC2 + 16 * m, 16)
            lg.need([(step, m)], "vmcnt(%d) " % vw([("H", step)]) if m == 0 else "")
            a("v_mfma_f32_32x32x16_bf16 %s, %s, %s, %s", d, vr(f + 4 * m, 4), vr(HFR + 4 * (step % HRING), 4), d if step else "0")
            for r in nxt[2 * m:2 * m + 2]: lg.issue(*r)
            if nh < 28 and (m == 0 or nh < step + opt("hd", 0)) and not opt("xnoh", 0):
                hload(nh, 1, vml, HFR); nh += 1
            if m == 0 and step == opt("yls", 22):
                a("s_waitcnt vmcnt(%d)", vw([("PY", 0)]))
                yload()
            if m == 1 and step == YPS: ypoll_issue()
            if pend: pend.pop(0)()
            for _ in range(5):
                if vfill: lg.run(vfill.pop(0))
        if opt("stg2", 0) and ks == 3 and rd < 5:
            stamp(10 + rd); lg.drained()
        if step == 20:
            for j in range(4):
                vfill.append("v_lshlrev_b32 v%d, 16, v%d" % (A0 + 2 * j, EUD + j))
                vfill.append("v_and_b32 v%d, 0xffff0000, v%d" % (A0 + 2 * j + 1, EUD + j))
            vfill += ["v_and_b32 v%d, 31, v1" % t2, "v_lshrrev_b32 v%d, 5, v1" % t3, "v_lshlrev_b32 v%d, 4, v%d" % (t3, t3),
                      "v_lshl_add_u32 v%d, v%d, 10, v%d" % (VO, t2, t3)]
        if step == opt("ybar", 0) and opt("ylate", 1):
            a("s_barrier")
            if not helper:
                def yf():
                    a("s_lshl_b32 s10, s2, 2")
                    a("s_add_u32 s10, s10, %d", F_Y)
                    flag_store("s10")
                onwave(4, yf)
        if ks == 1 and 1 <= rd < 6:
            if opt("fewbar", 1):
                if rd == 2:
                    a("s_barrier")
                    if helper:
                        pend = [(lambda i=i, r=r: wwrite(r, i)) for r in (5, 6) for i in range(8)]
                if rd == 4:
                    if helper:
                        assert not pend
                        lg.need([("ww", 6)])
                    a("s_barrier")
            else:
                if helper and rd >= 3: lg.need([("ww", rd + 1)])
                a("s_barrier")
                if helper and rd <= 2:
                    assert not pend
                    pend = [(lambda i=i, r=rd + 4: wwrite(r, i)) for i in range(8)]
            if rd == 5:
                vfill += ["v_lshrrev_b32 v%d, 5, v1" % VYR,
                          "v_bfe_u32 v%d, v1, 2, 2" % t2,
                          "v_lshl_add_u32 v%d, v%d, 3, v%d" % (VYR, VYR, t2),
                          "v_lshlrev_b32 v%d, 7, v%d" % (VYR, VYR),
                          "v_bfe_u32 v%d, v1, 4, 1" % t2,
                          "v_lshl_add_u32 v%d, v%d, 5, v%d" % (VYR, t2, VYR),
                          "v_and_b32 v%d, 3, v1" % t2,
                          "v_lshl_add_u32 v%d, v%d, 3, v%d" % (VYR, t2, VYR),
                          "s_lshr_b32 s10, s3, 1", "s_lshl_b32 s10, s10, 11", "s_and_b32 s11, s3, 1", "s_lshl_b32 s11, s11, 6",
                          "s_add_u32 s10, s10, s11", "s_add_u32 s10, s10, %d" % L_Y,
                          "v_add_u32 v%d, s10, v%d" % (VYR, VYR),
                          "s_lshl_b32 s10, s3, 10", "s_add_u32 s10, s10, %d" % L_Y,
                          "v_add_u32 v%d, s10, v%d" % (YL + 4, VH)]
                for j in range(4):
                    hi_ = (0 if helper else 1) ^ (j >> 1)
                    vfill.append("s_xor_b32 s10, s%d, %d" % (S_TQ, (2 * j) & 3))
                    vfill.append("s_mul_i32 s10, s10, 6144")
                    vfill.append("s_add_u32 s10, s10, %d" % (L_R[hi_] + max(j - 1, 0) * 2048))
                    vfill.append("v_add_u32 v%d, s10, v%d" % (VWW if j == 0 else RR + j, VH))
    assert not pend
    stamp(8)
    for f_ in vfill: lg.run(f_)
    a("s_waitcnt vmcnt(0)")
    if opt("diag3", 0): stamp(10, True)
    a("ds_write_b128 v%d, %s", YL + 4, vr(YL, 4))
    for j in range(1, 4):
        for b in range(2):
            a("ds_write_b128 v%d, %s offset:%d", VWW, vr(AC2 + 8 * j + 4 * b, 4), (j - 1) * 2048 + b * 1024)
    for q in range(8):
        a("v_sub_f32 v%d, v%d, v%d", A0 + q, A0 + q, AC2 + q)
        a("v_fmac_f32 v%d, v%d, v%d", AC2 + q, EG, A0 + q)
    a("v_sub_f32 v%d, 1.0, v%d", t1, EG)
    a("s_waitcnt lgkmcnt(0)")
    if opt("diag3", 0): stamp(11, True)
    a("s_barrier")
    if opt("diag3", 0): stamp(12, True)
    for hf in range(2):
        a("ds_read_b64_tr_b16 %s, v%d offset:%d", vr(EY + 2 * hf, 2), VYR, hf * 512)
    for j in range(1, 4):
        for b in range(2):
            a("ds_read_b128 %s, v%d offset:%d", vr(AC2 + 8 * j + 4 * b, 4), RR + j, b * 1024)
    a("s_waitcnt lgkmcnt(6)")
    for j in range(4):
        a("v_lshlrev_b32 v%d, 16, v%d", t2, EY + j)
        a("v_and_b32 v%d, 0xffff0000, v%d", t3, EY + j)
        a("v_fmac_f32 v%d, v%d, v%d", AC2 + 2 * j, EG, t2)
        a("v_fmac_f32 v%d, v%d, v%d", AC2 + 2 * j + 1, EG, t3)
    for j in range(1, 4):
        a("s_waitcnt lgkmcnt(%d)", 2 * (3 - j))
        for q in range(8):
            a("v_fmac_f32 v%d, v%d, v%d", AC2 + q, t1, AC2 + 8 * j + q)
    for j in range(4):
        a("v_cvt_pk_bf16_f32 v%d, v%d, v%d", A0 + j, AC2 + 2 * j, AC2 + 2 * j + 1)
    a("buffer_store_dwordx4 %s, v%d, %s, s%d offen%s", vr(A0, 4), VO, sr(SO, 4), S_OB, ["", " sc1", " nt", " sc0 sc1"][opt("ost", 0)])
    if opt("diag3", 0): stamp(13, True)
    if STAMP: a("s_waitcnt vmcnt(0)")
    stamp(9)
    stamp_out()
    a("s_endpgm")

gemm2("h", vmh)
BG0 = len(a.lines)
a.lines = a.lines[:BC0] + a.lines[BH0:BG0] + a.lines[BC0:BH0]
a("L_g2c:")
gemm2("c", vmc)
n0_ = len(a.lines)
def auxw():
    for f in hl_list(True)[:sum(NW)]: f()
auxw()
auxw_lines = a.lines[n0_:]; a.lines = a.lines[:n0_]
a.lines += aux_lines[:AUXW - AUX0] + auxw_lines + aux_lines[AUXW - AUX0:]
for sp in slow: sp()
a("L_end:")
a("s_endpgm")

hdr = open("gated_mix__ssm_conv_s4__glu_gated_bilinear__prompt.s.ref").read().split("\n")
hdr = [l for l in hdr if l.startswith(";") and "@launch" not in l]
print(wrap(hdr + ["; @launch grid=(256,1,1) block=(512,1,1) lds=163840"], [(NAME, a, 256, 102, 256)]))
sys.stderr.write("nops: %d\n" % a.nops)
```

```python
import sys
from asmlib import *

STAMP = "--stamp" in sys.argv
def opt(name, default):
    for x in sys.argv:
        if x.startswith("--%s=" % name): return int(x.split("=")[1])
    return default

WS_H = 0
WS_UT = 8 << 20
WS_Y = 10 << 20
WS_G = 12 << 20
WS_F = (12 << 20) + 0x10000
F_H2 = (12 << 20) + 0x80000
WS_ST = 13 << 20
WS_BYTES = 14 << 20
F_A, F_H, F_Y, F_G, F_E = WS_F, WS_F + 0x1000, WS_F + 0x2000, WS_F + 0x3000, WS_F + 0x4000

P_U, P_ARE, P_AIM, P_BRE, P_BIM, P_CRE, P_CIM, P_LDT = 16, 18, 20, 22, 24, 26, 28, 30
P_DSK, P_BX, P_WG, P_WU, P_WD, P_GW, P_OUT, P_DBG, P_WS = 32, 34, 36, 38, 40, 42, 44, 46, 48
SX, SG, SU, SWS, SW, SO = 52, 56, 60, 64, 68, 72
S_NONCE, S_ISAUX, S_SPIN, S_PB = 76, 77, 78, 79
S_TB, S_DB, S_KH, S_TQ, S_HB, S_OB = 80, 81, 82, 83, 84, 85
S_W0S = 100
S_RT = 36
S_KR, S_T2 = 0, 1
S_W2K, S_T, S_TM0, S_YB = 86, 87, 88, 89
S_DOFF, S_GOFF = 50, 51
S_WSO, S_WLD = 90, 91
S_HST = 34
S_FH = 35
PCF = opt('pcf', 0)
FSTR = opt('fstr', 1280)
G16 = 1
SPINMAX = opt("spin", 2000000)

BLK = 16384
XB = [0, 1, 2]
GB = [6, 8, 4]
L_TAB = 2 * BLK
TP = 528
TPIECE = 31 * TP
L_U = 2 * BLK
UCH = 512 + 4096
L_K = 3 * BLK
KCH = 64 + 4096
L_CY = L_K + 2 * KCH
CYCH = 129 * 16
L_SY = 4 * BLK - 128
assert L_SY % 32 == 0 and L_SY + 128 <= 4 * BLK
WB = [4, 6, 8, 0, 2, 4, 6]
L_Y = 8 * BLK + 24576
L_R = [8 * BLK, 0]

a = Asm()

class Lg:
    def __init__(self): self.q = []; self.done = 0
    def issue(self, ins, tag=None):
        a(ins); self.q.append(tag)
    def need(self, tags, extra=""):
        idx = [i for i, t in enumerate(self.q) if t in tags]
        last = max(idx) if idx else -1
        if last >= self.done:
            cnt = min(len(self.q) - 1 - last, 15)
            a("s_waitcnt %slgkmcnt(%d)", extra, cnt)
            self.done = len(self.q) - cnt
        elif extra:
            a("s_waitcnt %s", extra)
    def drained(self): self.done = len(self.q)
    def run(self, p):
        n0 = len(a.lines)
        a(p) if isinstance(p, str) else p()
        for ln in a.lines[n0:]:
            if ln.strip().startswith("ds_"): self.q.append(None)

SMASK = opt("smask", 0x7fff)
def stamp(i, force=False):
    if opt("stg", 0) == 2:
        if not force or not (SMASK >> i) & 1: return
    if not STAMP or not ((SMASK >> i) & 1 or force): return
    a("s_memtime s[94:95]")
    a("s_memrealtime s[92:93]")
    a("s_waitcnt lgkmcnt(0)")
    a("s_sub_u32 s94, s94, s98")
    a("v_writelane_b32 v255, s94, %d", i)
    a("v_writelane_b32 v255, s92, %d", i + 16)
def stamp_out():
    if not STAMP: return
    a("s_mov_b64 exec, -1")
    a("v_writelane_b32 v255, s96, 31")
    a("s_getreg_b32 s92, hwreg(HW_REG_XCC_ID)")
    a("s_getreg_b32 s93, hwreg(HW_REG_HW_ID)")
    a("s_and_b32 s92, s92, 15")
    a("s_lshl_b32 s93, s93, 4")
    a("s_or_b32 s92, s92, s93")
    a("v_writelane_b32 v255, s92, 15")
    a("s_lshl_b32 s92, s2, 3")
    a("s_add_u32 s92, s92, s3")
    a("s_lshl_b32 s92, s92, 7")
    a("s_add_u32 s92, s92, %d", WS_ST)
    a("v_mbcnt_lo_u32_b32 v254, -1, 0")
    a("v_mbcnt_hi_u32_b32 v254, -1, v254")
    a("v_lshlrev_b32 v253, 2, v254")
    a("s_mov_b64 exec, 0xffffffff")
    a("buffer_store_dword v255, v253, %s, s92 offen", sr(SWS, 4))

def cmul(d, x, y, plain):
    if plain:
        return ["v_mul_f32 v%d, v%d, v%d" % (d, x, y), "v_mul_f32 v%d, v%d, v%d" % (d + 1, x + 1, y),
                "v_fma_f32 v%d, -v%d, v%d, v%d" % (d, x + 1, y + 1, d), "v_fmac_f32 v%d, v%d, v%d" % (d + 1, x, y + 1)]
    return ["v_pk_mul_f32 %s, %s, %s op_sel_hi:[1,0]" % (vr(d, 2), vr(x, 2), vr(y, 2)),
            "v_pk_fma_f32 %s, %s, %s, %s op_sel:[1,1,0] op_sel_hi:[0,1,1] neg_lo:[1,0,0]" % (vr(d, 2), vr(x, 2), vr(y, 2), vr(d, 2))]
def il(x, y):
    o = []
    for i in range(max(len(x), len(y))):
        if i < len(x): o.append(x[i])
        if i < len(y): o.append(y[i])
    return o

VH = 240
VWD = 241
VR0 = 242
VSY = 243
VN = 250
PVA, PVB, PVC, PVY = 2, 3, 4, 5
KA, KBa, KW = 152, 153, 154
VZ = 235
KB = 160
KP = 204
KF = 160
KD = 236
VUL = 244

def kgen_setup():
    a("s_lshr_b32 s10, s3, 2")
    a("s_lshl_b32 s11, s2, 1")
    a("s_add_u32 s11, s11, s10")
    a("s_and_b32 s12, s3, 1")
    a("s_lshl_b32 s13, s11, 8")
    a("s_lshl_b32 s12, s12, 7")
    a("s_add_u32 s13, s13, s12")
    a("v_lshl_add_u32 v%d, v1, 1, s13", KB + 8)
    a("s_lshl_b32 s11, s11, 1")
    a("v_mov_b32 v%d, s11", KB + 9)
    for i in range(7): a("v_mov_b32 v%d, 0", KB + i)
    a("s_bitcmp1_b32 s3, 1")
    a("s_cselect_b64 s[14:15], -1, 0")
def kgen_loads():
    a("global_load_short_d16_hi v%d, v%d, %s", KB + 6, KB + 9, sr(P_LDT, 2))
    for i, p in enumerate([P_ARE, P_AIM, P_BRE, P_BIM, P_CRE, P_CIM]):
        a("global_load_short_d16_hi v%d, v%d, %s", KB + i, KB + 8, sr(p, 2))
    return 7
def rowpos(m): return 16 + (2 * m if m <= 7 else 2 * (m - 8) + 1)
def kgen_valu(plain_tail):
    L = []
    A_, B_, BR, BI, CR, CI, LD, T0, T1, T2 = [KB + i for i in range(10)]
    W, E1, E2, E4, E8, E128, E256, E512, P, X0, X1, R0, R1, RB, Y0, Z0 = [KB + 10 + 2 * i for i in range(16)]
    L.append("v_mul_f32 v%d, 0x3fb8aa3b, v%d" % (T0, LD))
    L.append("v_mov_b32 v%d, 0x3fb8aa3b" % T2)
    L.append("v_fma_f32 v%d, v%d, v%d, -v%d" % (T1, LD, T2, T0))
    L.append("v_fmac_f32 v%d, 0x32a57060, v%d" % (T1, LD))
    L.append("v_exp_f32 v%d, v%d" % (T0, T0))
    L.append("v_mul_f32 v%d, 0x3f317218, v%d" % (T1, T1))
    L.append("v_fmac_f32 v%d, v%d, v%d" % (T0, T0, T1))
    L.append("v_cvt_pk_bf16_f32 v%d, v%d, v%d" % (T0, T0, T0))
    L.append("v_and_b32 v%d, 0xffff0000, v%d" % (T0, T0))
    for r in (A_, B_, BR, BI):
        L.append("v_mul_f32 v%d, v%d, v%d" % (r, T0, r))
    L.append("v_mul_f32 v%d, 0x3fb8aa3b, v%d" % (A_, A_))
    L.append("v_mul_f32 v%d, 0.15915494, v%d" % (B_, B_))
    o1 = ["v_exp_f32 v%d, v%d" % (T0, A_), "v_fract_f32 v%d, v%d" % (T1, B_),
          "v_cos_f32 v%d, v%d" % (E1, T1), "v_sin_f32 v%d, v%d" % (E1 + 1, T1),
          "v_mul_f32 v%d, v%d, v%d" % (E1, T0, E1), "v_mul_f32 v%d, v%d, v%d" % (E1 + 1, T0, E1 + 1)]
    o2 = ["v_mul_f32 v%d, 0x43000000, v%d" % (T2, A_), "v_mul_f32 v%d, 0x43000000, v%d" % (LD, B_),
          "v_exp_f32 v%d, v%d" % (T2, T2), "v_fract_f32 v%d, v%d" % (LD, LD),
          "v_cos_f32 v%d, v%d" % (E128, LD), "v_sin_f32 v%d, v%d" % (E128 + 1, LD),
          "v_mul_f32 v%d, v%d, v%d" % (E128, T2, E128), "v_mul_f32 v%d, v%d, v%d" % (E128 + 1, T2, E128 + 1)]
    L += il(o2, o1 + cmul(W, CR, BR, False))
    L += il(cmul(E2, E1, E1, False) + cmul(E4, E2, E2, False) + cmul(E8, E4, E4, False),
            cmul(E256, E128, E128, False) + cmul(E512, E256, E256, False))
    L.append("v_cndmask_b32 v%d, v%d, v%d, s[14:15]" % (P, E1, E2))
    L.append("v_cndmask_b32 v%d, v%d, v%d, s[14:15]" % (P + 1, E1 + 1, E2 + 1))
    L.append("v_cndmask_b32 v%d, 1.0, v%d, s[14:15]" % (X0, E128))
    L.append("v_cndmask_b32 v%d, 0, v%d, s[14:15]" % (X0 + 1, E128 + 1))
    L.append("v_cndmask_b32 v%d, 1.0, v%d, s[14:15]" % (E256, E256))
    L.append("v_cndmask_b32 v%d, 0, v%d, s[14:15]" % (E256 + 1, E256 + 1))
    L += cmul(RB, W, E256, False)
    rows = [(None, RB, None)]
    cur = RB
    for j in range(1, 8):
        d = R0 if j % 2 else R1
        rows.append((d, cur, P)); cur = d
    Z2 = Y0
    rows += [(Y0, RB, E512), (R1, Y0, E4), (R0, Y0, E8), (Z0, Y0, E512), (R1, Z0, E8), (Z2, Z0, E512), (R0, Z2, E8)]
    cols = [(None, X0, None)]
    cur = X0
    for j in range(1, 16):
        d = X1 if j % 2 else X0
        cols.append((d, cur, E8)); cur = d
    LC, LR = [], []
    for j, (d, s, m) in enumerate(cols):
        if d is not None: LC += cmul(d, s, m, plain_tail)
        x = d if d is not None else s
        LC.append("v_cvt_pk_bf16_f32 v%d, v%d, v%d" % (KP + j, x, x + 1))
    for j, (d, s, m) in enumerate(rows):
        if d is not None: LR += cmul(d, s, m, plain_tail)
        x = d if d is not None else s
        LR.append("v_cvt_pk_bf16_f32 v%d, v%d, -v%d" % (KP + rowpos(j), x, x + 1))
    return L, il(LC, LR)
def kgen_writes():
    return ["ds_write_addtid_b32 v%d offset:%d" % (KP + j, L_TAB + j * TP) for j in range(31)]

def later_addrs(T0, T1, T2):
    a("s_lshr_b32 s10, s3, 1")
    a("s_mul_i32 s10, s10, %d", TPIECE)
    a("s_and_b32 s11, s3, 1")
    a("s_lshl_b32 s11, s11, 8")
    a("s_add_u32 s%d, s10, s11", S_TM0)
    a("s_add_u32 s10, s10, %d", L_TAB)
    a("v_bfe_u32 v%d, v1, 4, 1", T1)
    a("v_lshlrev_b32 v%d, 8, v%d", T1, T1)
    a("v_lshrrev_b32 v%d, 5, v1", T2)
    a("v_lshl_add_u32 v%d, v%d, 7, v%d", T1, T2, T1)
    a("v_and_b32 v%d, 15, v1", T0)
    a("v_mul_u32_u24 v%d, %d, v%d", T2, TP, T0)
    a("v_add3_u32 v%d, v%d, v%d, s10", KBa, T2, T1)
    def lut(v): return sum(x << (4 * i) for i, x in enumerate(v))
    m0 = [0, 1, 2, 3] + [0, 0, 1, 2] + [2, 2, 3, 4] + [4, 5, 6, 7]; h0 = 0x0ff0
    m1 = [8, 9, 10, 10] + [8, 9, 10, 10] + [11, 12, 13, 14] + [11, 12, 13, 14]; h1 = 0xf0f0
    p0 = [rowpos(m) - 16 for m in m0]; p1 = [rowpos(m) - 16 for m in m1]
    a("s_bitcmp1_b32 s3, 0")
    a("s_mov_b32 s11, 0x%x", lut(p0[:8]))
    a("s_cmov_b32 s11, 0x%x", lut(p1[:8]))
    a("s_mov_b32 s12, 0x%x", lut(p0[8:]))
    a("s_cmov_b32 s12, 0x%x", lut(p1[8:]))
    a("s_mov_b32 s13, 0x%x", h0)
    a("s_cmov_b32 s13, 0x%x", h1)
    a("v_cmp_lt_u32 vcc, 7, v%d", T0)
    a("v_mov_b32 v%d, s11", KA)
    a("v_mov_b32 v%d, s12", T2)
    a("v_cndmask_b32 v%d, v%d, v%d, vcc", KA, KA, T2)
    a("v_and_b32 v%d, 7, v1", T2)
    a("v_lshlrev_b32 v%d, 2, v%d", T2, T2)
    a("v_bfe_u32 v%d, v%d, v%d, 4", KA, KA, T2)
    a("v_bfe_u32 v%d, s13, v%d, 1", T2, T0)
    a("v_mad_u32_u24 v%d, v%d, 31, v%d", KA, T2, KA)
    a("v_mul_u32_u24 v%d, %d, v%d", KA, TP, KA)
    a("s_lshr_b32 s10, s3, 2")
    a("s_mul_i32 s11, s10, %d", 2 * TPIECE)
    a("s_add_u32 s11, s11, %d", L_TAB + 16 * TP)
    a("v_add3_u32 v%d, v%d, v%d, s11", KA, KA, T1)
    a("s_mul_i32 s10, s10, %d", KCH)
    a("s_and_b32 s11, s3, 2")
    a("s_lshl_b32 s11, s11, 7")
    a("s_add_u32 s10, s10, s11")
    a("s_add_u32 s10, s10, %d", L_K + 64)
    a("s_bitcmp1_b32 s3, 0")
    a("s_mov_b32 s11, 0x%x", 0 | (64 << 8) | (65 << 16) | (1 << 24))
    a("s_cmov_b32 s11, 0x%x", 0 | (64 << 8) | (128 << 16) | (192 << 24))
    a("s_cselect_b32 s12, 1024, 0")
    a("s_add_u32 s10, s10, s12")
    a("v_lshrrev_b32 v%d, 4, v1", T1)
    a("v_lshlrev_b32 v%d, 3, v%d", T1, T1)
    a("v_bfe_u32 v%d, s11, v%d, 8", T1, T1)
    a("v_lshlrev_b32 v%d, 4, v%d", T0, T0)
    a("v_lshl_add_u32 v%d, v%d, 3, v%d", T0, T1, T0)
    a("v_add_u32 v%d, s10, v%d", KW, T0)
def later_addrs2(T0, T1, T2):
    a("s_bfe_u32 s10, s3, 0x10001")
    a("v_lshrrev_b32 v%d, 5, v1", T0)
    a("v_lshlrev_b32 v%d, 6, v%d", PVA, T0)
    a("v_and_b32 v%d, 31, v1", T1)
    a("v_lshlrev_b32 v%d, 4, v%d", PVB, T1)
    a("v_sub_u32 v%d, v%d, v%d", PVB, PVB, PVA)
    a("v_and_b32 v%d, 1, v1", T2)
    a("v_lshl_add_u32 v%d, v%d, 5, v%d", PVA, T2, PVA)
    a("v_lshrrev_b32 v%d, 2, v%d", T1, T1)
    a("v_lshl_add_u32 v%d, v%d, 1, v%d", T1, T1, T0)
    a("v_lshlrev_b32 v%d, 5, v%d", PVY, T1)
    a("v_lshl_add_u32 v%d, v%d, 4, v%d", PVY, T2, PVY)
    a("s_mul_i32 s11, s10, %d", CYCH)
    a("s_add_u32 s11, s11, %d", L_CY)
    a("v_lshl_add_u32 v%d, v%d, 4, s11", PVC, T1)
    a("v_bfe_u32 v%d, v1, 4, 1", T2)
    a("v_lshl_add_u32 v%d, v%d, 4, v%d", PVA, T2, PVA)
    a("v_bfe_u32 v%d, v1, 1, 1", T2)
    a("v_lshl_add_u32 v%d, v%d, 3, v%d", PVA, T2, PVA)
    a("v_bfe_u32 v%d, v1, 2, 2", T2)
    a("v_lshlrev_b32 v%d, 3, v%d", T2, T2)
    a("v_sub_u32 v%d, v%d, v%d", PVA, PVA, T2)
    a("s_mul_i32 s11, s10, %d", KCH)
    a("s_add_u32 s11, s11, %d", L_K + 32)
    a("v_add_u32 v%d, s11, v%d", PVA, PVA)
    a("s_mul_i32 s11, s10, %d", UCH)
    a("s_add_u32 s11, s11, %d", L_U + 512 - 384)
    a("v_add_u32 v%d, s11, v%d", PVB, PVB)
    a("s_lshl_b32 s11, s2, 1")
    a("s_add_u32 s11, s11, s10")
    a("s_lshl_b32 s11, s11, 12")
    a("s_add_u32 s%d, s11, %d", S_YB, WS_Y)
def later_addrs3(T0, T1, T2):
    if opt("b84", 1):
        a("s_and_b32 s%d, s4, 6", S_TB)
        a("s_lshl_b32 s%d, s%d, 2", S_TB, S_TB)
        a("s_and_b32 s10, s5, 7")
        a("s_add_u32 s%d, s%d, s10", S_TB, S_TB)
        a("s_and_b32 s%d, s4, 1", S_DB)
        a("s_lshl_b32 s%d, s%d, 2", S_DB, S_DB)
        a("s_lshr_b32 s10, s5, 3")
        a("s_add_u32 s%d, s%d, s10", S_DB, S_DB)
    else:
        a("s_lshl_b32 s%d, s4, 2", S_TB)
        a("s_and_b32 s10, s5, 3")
        a("s_add_u32 s%d, s%d, s10", S_TB, S_TB)
        a("s_lshr_b32 s%d, s5, 2", S_DB)
    a("s_lshr_b32 s%d, s3, 2", S_KH)
    a("s_and_b32 s%d, s3, 3", S_TQ)
    a("s_lshl_b32 s10, s%d, 1", S_TB)
    a("s_and_b32 s13, s3, 1")
    a("s_add_u32 s10, s10, s13")
    a("s_mul_i32 s11, s10, 112")
    a("s_lshr_b32 s12, s3, 1")
    a("s_mul_i32 s%d, s12, %d", S_W0S, 448 * 1024)
    a("s_lshl_b32 s13, s13, 15")
    a("s_add_u32 s%d, s%d, s13", S_W0S, S_W0S)
    a("s_mul_i32 s13, s12, 28")
    a("s_add_u32 s11, s11, s13")
    a("s_lshl_b32 s%d, s11, 10", S_HB)
    a("s_lshl_b32 s%d, s10, 7", S_GOFF)
    a("s_add_u32 s%d, s%d, %d", S_GOFF, S_GOFF, WS_G)
    a("s_lshl_b32 s10, s10, 15")
    a("s_lshl_b32 s11, s%d, 7", S_DB)
    a("s_lshl_b32 s12, s12, 5")
    a("s_add_u32 s%d, s11, s12", S_DOFF)
    a("s_add_u32 s%d, s10, s%d", S_OB, S_DOFF)
    a("s_mul_i32 s%d, s%d, %d", S_WSO, S_TQ, 448 * 1024)
    a("s_lshl_b32 s%d, s%d, 13", S_WLD, S_TQ)
    seq = [i % 7 for i in range(16)]
    val = sum(x << (4 * i) for i, x in enumerate(seq))
    a("s_mov_b32 s44, 0x%x", val & 0xffffffff)
    a("s_mov_b32 s45, 0x%x", val >> 32)
    if opt("rot", 4) == 1:
        a("s_lshl_b32 s10, s%d, 2", S_DB)
        a("s_lshr_b64 s[44:45], s[44:45], s10")
    if opt("rot", 4) == 4:
        a("s_and_b32 s10, s5, 7")
        a("s_lshl_b32 s10, s10, 2")
        a("s_lshr_b64 s[44:45], s[44:45], s10")
    if opt("rot", 4) == 5:
        a("s_and_b32 s10, s5, 7")
        a("s_lshr_b32 s13, s5, 3")
        a("s_lshl_b32 s13, s13, 1")
        a("s_add_u32 s10, s10, s13")
        a("s_sub_u32 s13, s10, 7")
        a("s_min_u32 s10, s10, s13")
        a("s_lshl_b32 s10, s10, 2")
        a("s_lshr_b64 s[44:45], s[44:45], s10")
    if opt("rot", 4) == 3:
        a("s_and_b32 s10, s5, 1")
        a("s_lshl_b32 s10, s10, 4")
        a("s_lshr_b64 s[44:45], s[44:45], s10")
    if opt("rot", 4) == 2:
        a("s_and_b32 s10, s5, 3")
        a("s_lshl_b32 s10, s10, 3")
        a("s_lshr_b64 s[44:45], s[44:45], s10")
    for rd in range(7):
        a("s_bfe_u32 s10, s44, 0x%x", (3 << 16) | (4 * rd))
        a("s_lshl_b32 s%d, s10, 12", S_RT + rd)
    a("v_lshlrev_b32 v%d, 4, v1", VH)
    a("v_lshrrev_b32 v%d, 3, v1", T0)
    a("v_lshlrev_b32 v%d, 10, v%d", T0, T0)
    a("v_bfe_u32 v%d, v1, 4, 1", T1)
    a("v_lshlrev_b32 v%d, 2, v%d", T1, T1)
    a("v_and_b32 v%d, 7, v1", T2)
    a("v_xor_b32 v%d, v%d, v%d", T2, T2, T1)
    a("v_lshl_add_u32 v%d, v%d, 4, v%d", T0, T2, T0)
    a("v_add_u32 v%d, s11, v%d", VWD, T0)
    a("v_lshrrev_b32 v%d, 5, v1", T0)
    a("v_bfe_u32 v%d, v1, 2, 2", T1)
    a("v_lshl_add_u32 v%d, v%d, 2, v%d", T0, T0, T1)
    a("v_lshlrev_b32 v%d, 7, v%d", T0, T0)
    a("v_bfe_u32 v%d, v1, 3, 1", T1)
    a("v_lshl_add_u32 v%d, v%d, 6, v%d", T0, T1, T0)
    a("v_bfe_u32 v%d, v1, 4, 1", T1)
    a("v_lshl_add_u32 v%d, v%d, 5, v%d", T0, T1, T0)
    a("v_and_b32 v%d, 1, v1", T1)
    a("v_lshl_add_u32 v%d, v%d, 4, v%d", T0, T1, T0)
    a("v_bfe_u32 v%d, v1, 1, 1", T1)
    a("v_lshl_add_u32 v%d, v%d, 3, v%d", T0, T1, T0)
    a("v_xor_b32 v%d, s12, v%d", T0, T0)
    a("s_lshl_b32 s12, s12, 8")
    a("v_add_u32 v%d, s12, v%d", VR0, T0)
    a("s_lshl_b32 s10, s3, 2")
    a("s_add_u32 s10, s10, %d", L_SY)
    a("v_mov_b32 v%d, s10", VSY)

def kreads():
    L = []
    for ks in range(8):
        L.append(("ds_read_b128 %s, v%d offset:%d" % (vr(KF + 8 * ks, 4), KA, ks * 16), ("k", ks)))
        L.append(("ds_read_b128 %s, v%d offset:%d" % (vr(KF + 8 * ks + 4, 4), KBa, ks * 16), ("k", ks)))
    return L
def run_kmfma(lg, fill, per):
    for ks in range(8):
        lg.need([("k", ks)])
        d = vr(KD, 4)
        a("v_mfma_f32_16x16x32_bf16 %s, %s, %s, %s", d, vr(KF + 8 * ks, 4), vr(KF + 8 * ks + 4, 4), d if ks else "0")
        for _ in range(per):
            if fill: lg.run(fill.pop(0))
    for f in fill: lg.run(f)
def kmfma_finish():
    lb = a.label("Lkm1"); le = a.label("Lkme")
    T = KF
    a("s_bitcmp1_b32 s3, 0")
    a("s_cbranch_scc1 %s", lb)
    a("v_cvt_pk_bf16_f32 v%d, v%d, v%d", T, KD, KD + 1)
    a("v_cvt_pk_bf16_f32 v%d, v%d, v%d", T + 1, KD + 2, KD + 3)
    a("ds_write_b64 v%d, %s", KW, vr(T, 2))
    a("s_branch %s", le)
    a(lb + ":")
    a("s_nop 7")
    a("s_mov_b32 s14, 0xaaaaaaaa")
    a("s_mov_b32 s15, 0xaaaaaaaa")
    a("v_cndmask_b32 v%d, v%d, v%d, s[14:15]", T + 12, KD, KD + 1)
    a("v_cndmask_b32 v%d, v%d, v%d, s[14:15]", T + 13, KD + 2, KD + 3)
    a("v_cvt_pk_bf16_f32 v%d, v%d, v%d", T, KD, KD)
    a("v_cvt_pk_bf16_f32 v%d, v%d, v%d", T + 1, KD, KD)
    a("v_cvt_pk_bf16_f32 v%d, v%d, v%d", T + 2, T + 12, KD + 1)
    a("v_cvt_pk_bf16_f32 v%d, v%d, v%d", T + 3, KD + 1, KD + 1)
    a("v_cvt_pk_bf16_f32 v%d, v%d, v%d", T + 4, KD + 2, KD + 2)
    a("v_cvt_pk_bf16_f32 v%d, v%d, v%d", T + 5, KD + 2, KD + 2)
    a("v_cvt_pk_bf16_f32 v%d, v%d, v%d", T + 6, T + 13, KD + 3)
    a("v_cvt_pk_bf16_f32 v%d, v%d, v%d", T + 7, KD + 3, KD + 3)
    a("s_mov_b64 exec, 0xffffffff")
    a("v_cvt_pk_bf16_f32 v%d, v%d, v%d", T + 1, KD, KD + 1)
    a("v_mov_b32 v%d, v%d", T + 2, T + 3)
    a("v_mov_b32 v%d, v%d", T + 3, T + 4)
    a("s_not_b64 exec, exec")
    a("ds_write_b128 v%d, %s offset:1024", KW, vr(T + 4, 4))
    a("s_mov_b64 exec, -1")
    a("ds_write_b128 v%d, %s", KW, vr(T, 4))
    a(le + ":")

def zero_pads_k():
    T = KF + 16
    a("v_mov_b32 v%d, 0", T)
    a("v_bfe_u32 v%d, v1, 4, 1", T + 1)
    a("v_and_b32 v%d, 15, v1", T + 2)
    a("v_mul_u32_u24 v%d, %d, v%d", T + 3, KCH, T + 1)
    a("v_lshl_add_u32 v%d, v%d, 2, v%d", T + 3, T + 2, T + 3)
    a("v_mul_u32_u24 v%d, %d, v%d", T + 4, CYCH, T + 1)
    a("v_lshl_add_u32 v%d, v%d, 2, v%d", T + 4, T + 2, T + 4)
    a("v_lshlrev_b32 v%d, 2, v1", T + 5)
    a("s_mov_b64 exec, 0xffffffff")
    a("ds_write_b32 v%d, v%d offset:%d", T + 3, T, L_K)
    a("ds_write_b32 v%d, v%d offset:%d", T + 4, T, L_CY)
    a("ds_write_b32 v%d, v%d offset:%d", T + 5, T, L_SY)
    a("s_mov_b64 exec, -1")
def zero_pads_u():
    T = KD
    for i in range(4): a("v_mov_b32 v%d, 0", T + i)
    a("v_and_b32 v%d, 31, v1", 233)
    a("v_lshlrev_b32 v%d, 4, v%d", 233, 233)
    a("v_lshrrev_b32 v%d, 5, v1", 234)
    a("v_mul_u32_u24 v%d, %d, v%d", 234, UCH, 234)
    a("v_add_u32 v%d, v%d, v%d", 233, 233, 234)
    a("ds_write_b128 v%d, %s offset:%d", 233, vr(T, 4), L_U)
def sig(vaddr, off):
    a("s_mov_b64 exec, 1")
    a("ds_write_b32 v%d, v6 offset:%d", vaddr, off)
    a("s_mov_b64 exec, -1")
VUL2 = 156
def u_load():
    a("v_lshlrev_b32 v%d, 5, v1", VUL + 4)
    a("s_lshl_b32 s10, s2, 13")
    a("s_lshl_b32 s11, s%d, 11", S_TQ)
    a("s_add_u32 s10, s10, s11")
    a("s_add_u32 s10, s10, %d", WS_UT)
    a("buffer_load_dwordx4 %s, v%d, %s, s10 offen sc1", vr(VUL, 4), VUL + 4, sr(SWS, 4))
    a("buffer_load_dwordx4 %s, v%d, %s, s10 offen offset:16 sc1", vr(VUL2, 4), VUL + 4, sr(SWS, 4))
def u_write():
    a("s_lshl_b32 s11, s%d, 10", S_TQ)
    a("v_add_u32 v%d, s11, v%d", VUL + 4, VH)
    a("ds_write_b128 v%d, %s offset:%d", VUL + 4, vr(VUL, 4), L_U + 512)
    a("ds_write_b128 v%d, %s offset:%d", VUL + 4, vr(VUL2, 4), L_U + UCH + 512)
def onwave(w, fn):
    lb = a.label("Low")
    a("s_cmp_lg_u32 s3, %d", w)
    a("s_cbranch_scc1 %s", lb)
    fn()
    a(lb + ":")
def role(lo, hi):
    l1 = a.label("Lr1"); l2 = a.label("Lr2")
    a("s_cmp_ge_u32 s3, 4")
    a("s_cbranch_scc1 %s", l1)
    if lo is None:
        a.lines[-1] = a.lines[-1].replace("scc1", "scc0")
        hi()
        a(l1 + ":")
        return
    if lo: lo()
    if hi:
        a("s_branch %s", l2)
        a(l1 + ":")
        hi()
        a(l2 + ":")
    else:
        a(l1 + ":")

def nonce_issue():
    a("global_load_dwordx2 %s, v%d, %s sc1", vr(VN, 2), VZ, sr(P_DBG, 2))
slow = []
def nonce_check():
    ok = a.label("Lnok"); lp = a.label("Lnlp")
    a(ok + "r:")
    a("v_readfirstlane_b32 s10, v%d", VN + 1)
    a("v_readfirstlane_b32 s%d, v%d", S_NONCE, VN)
    a("s_cmp_lg_u32 s10, 1")
    a("s_cbranch_scc1 %s", lp)
    a(ok + ":")
    def sp():
        a(lp + ":")
        a("s_add_u32 s%d, s%d, 1", S_SPIN, S_SPIN)
        a("s_cmp_ge_u32 s%d, %d", S_SPIN, SPINMAX)
        a("s_cbranch_scc1 %s", ok)
        a("s_sleep 2")
        a("global_load_dwordx2 %s, v%d, %s sc1", vr(VN, 2), VZ, sr(P_DBG, 2))
        a("s_waitcnt vmcnt(0)")
        a("s_branch %sr", ok)
    slow.append(sp)
def poll_issue(n):
    a("v_min_u32 v%d, %d, v1", VN + 2, n - 1)
    a("v_lshlrev_b32 v%d, 2, v%d", VN + 2, VN + 2)
    a("buffer_load_dword v%d, v%d, %s, s%d offen sc1", VN - 1, VN + 2, sr(SWS, 4), S_PB)
def poll_check(sleep=2):
    ok = a.label("Lpok"); lp = a.label("Lplp")
    a(ok + "r:")
    a("v_cmp_ne_u32 vcc, s%d, v%d", S_NONCE, VN - 1)
    a("s_cmp_lg_u64 vcc, 0")
    a("s_cbranch_scc1 %s", lp)
    a(ok + ":")
    def sp():
        a(lp + ":")
        a("s_add_u32 s%d, s%d, 1", S_SPIN, S_SPIN)
        a("s_cmp_ge_u32 s%d, %d", S_SPIN, SPINMAX)
        a("s_cbranch_scc1 %s", ok)
        if sleep: a("s_sleep %d", sleep)
        a("buffer_load_dword v%d, v%d, %s, s%d offen sc1", VN - 1, VN + 2, sr(SWS, 4), S_PB)
        a("s_waitcnt vmcnt(0)")
        a("s_branch %sr", ok)
    slow.append(sp)
def flag_store(sbase):
    if opt("sflag", 2) & 1:
        a("s_mov_b32 s11, s%d", S_NONCE)
        a("s_buffer_atomic_swap s11, %s, %s", sr(SWS, 4), sbase)
        return
    a("v_mov_b32 v%d, 0", VN)
    a("v_mov_b32 v%d, s%d", VN + 1, S_NONCE)
    a("s_mov_b64 exec, 1")
    a("buffer_store_dword v%d, v%d, %s, %s offen sc1", VN + 1, VN, sr(SWS, 4), sbase)
    a("s_mov_b64 exec, -1")
def lds_wait(vaddr, off, vtmp, sleep=1):
    lp = a.label("Llw"); ok = a.label("Llok")
    a(lp + ":")
    a("ds_read_b32 v%d, v%d offset:%d", vtmp, vaddr, off)
    a("s_add_u32 s%d, s%d, 1", S_SPIN, S_SPIN)
    a("s_waitcnt lgkmcnt(0)")
    a("v_cmp_eq_u32 vcc, 0, v%d", vtmp)
    a("s_cmp_eq_u64 vcc, 0")
    a("s_cbranch_scc1 %s", ok)
    if sleep: a("s_sleep %d", sleep)
    a("s_cmp_lt_u32 s%d, %d", S_SPIN, SPINMAX * 16)
    a("s_cbranch_scc1 %s", lp)
    a(ok + ":")

a("s_cmp_ge_u32 s2, 256")
a("s_cbranch_scc1 L_end")
if STAMP:
    a("s_memrealtime s[96:97]")
    a("s_memtime s[98:99]")
a("s_load_dwordx16 s[16:31], s[0:1], 0")
a("s_load_dwordx16 s[32:47], s[0:1], 64")
a("s_load_dwordx2 s[48:49], s[0:1], 128")
a("v_lshrrev_b32 v2, 6, v0")
a("s_lshr_b32 s5, s2, 3")
if opt("cpf", 1):
    a("s_getpc_b64 s[10:11]")
    a("L_pc:")
    a("s_lshl_b32 s12, s5, 10")
    a("v_lshl_add_u32 v3, v2, 7, s12")
    a("v_and_b32 v4, 1, v0")
    a("v_lshl_add_u32 v3, v4, 6, v3")
    a("v_min_u32 v3, L_end-L_pc, v3")
    a("global_load_dword v19, v3, s[10:11]")
a("v_and_b32 v1, 63, v0")
a("v_readfirstlane_b32 s3, v2")
a("s_and_b32 s4, s2, 7")
kgen_setup()
PRE_WAIT = opt("prewait", 0)
if not PRE_WAIT:
    a("s_waitcnt lgkmcnt(0)")
    kgen_loads()
a("s_mov_b32 s%d, 0", S_SPIN)
a("v_mov_b32 v%d, 0", VZ)
a("v_mov_b32 v%d, 0", VN + 2)
if STAMP: a("v_mov_b32 v255, 0")
a("s_lshr_b32 s6, s4, 1")
a("s_lshl_b32 s6, s6, 2")
a("s_and_b32 s7, s5, 3")
a("s_add_u32 s6, s6, s7")
a("s_and_b32 s7, s4, 1")
a("s_mul_i32 s7, s7, 7")
a("s_lshr_b32 s8, s5, 2")
a("s_add_u32 s7, s7, s8")
a("s_sub_u32 s7, s7, 1")
a("s_and_b32 s8, s3, 1")
a("s_lshr_b32 s9, s3, 1")
VX0, VX1, VW0, VW1 = 4, 5, 6, 7
VXR = 8
VWA, VWB = 12, 13
T0, T1, T2, T3 = 14, 15, 16, 17
a("s_lshl_b32 s10, s6, 7")
a("s_lshl_b32 s11, s3, 4")
a("s_add_u32 s10, s10, s11")
a("s_lshl_b32 s10, s10, 10")
a("v_lshrrev_b32 v%d, 3, v1", T0)
a("v_lshlrev_b32 v%d, 10, v%d", T0, T0)
a("v_lshrrev_b32 v%d, 4, v1", T1)
a("v_and_b32 v%d, 7, v1", T2)
a("v_xor_b32 v%d, v%d, v%d", T2, T2, T1)
a("v_lshl_add_u32 v%d, v%d, 4, v%d", T0, T2, T0)
a("v_add_u32 v%d, s10, v%d", VX0, T0)
a("v_xor_b32 v%d, 64, v%d", VX1, VX0)
a("v_add_u32 v%d, 0x2000, v%d", VX1, VX1)
a("s_and_b32 s12, s3, 3")
a("s_mul_i32 s10, s12, %d", 4 * 3584)
a("s_lshl_b32 s11, s7, 8")
a("s_add_u32 s10, s10, s11")
a("v_mul_u32_u24 v%d, 3584, v%d", T0, T1)
if G16:
    a("s_and_b32 s11, s3, 2")
    a("s_lshl_b32 s11, s11, 2")
    a("v_lshl_or_b32 v%d, v%d, 1, s11", T2, T1)
else:
    a("v_lshlrev_b32 v%d, 2, v%d", T2, T1)
a("v_and_b32 v%d, 15, v1", T3)
a("v_xor_b32 v%d, v%d, v%d", T2, T2, T3)
a("v_lshl_add_u32 v%d, v%d, 4, v%d", T0, T2, T0)
a("v_add_u32 v%d, s10, v%d", VW0, T0)
S_RO, S_LO = 60, 80
S_LO = 20
for j in range(4):
    a("s_add_u32 s10, s5, %d", j if opt("share", 1) else 0) if opt("share", 1) else a("s_mov_b32 s10, %d", j)
    a("s_and_b32 s10, s10, 3")
    a("s_mul_i32 s%d, s10, %d", S_RO + j, 16 * 3584)
a("s_lshl_b32 s%d, s3, 11", S_W2K)
CC = opt("cc", 8)
S_KO = 99 if not STAMP else 93
if CC < 8:
    NR = 8 - CC
    a("s_and_b32 s10, s5, 3")
    a("s_mul_i32 s10, s10, %d", opt("rm", 2))
    a("s_lshr_b32 s11, s5, 2")
    a("s_add_u32 s10, s10, s11")
    a("s_mul_i32 s11, s10, %d", (65536 + NR - 1) // NR)
    a("s_lshr_b32 s11, s11, 16")
    a("s_mul_i32 s11, s11, %d", NR)
    a("s_sub_u32 s10, s10, s11")
    seq = [CC + (i % NR) for i in range(16)]
    val = sum(x << (4 * i) for i, x in enumerate(seq))
    a("s_mov_b32 s12, 0x%x", val & 0xffffffff)
    a("s_mov_b32 s13, 0x%x", val >> 32)
    a("s_lshl_b32 s10, s10, 2")
    a("s_lshr_b64 s[12:13], s[12:13], s10")
    a("s_lshl_b32 s12, s12, %d", 4 * CC) if CC else None
    a("s_or_b32 s%d, s12, 0x%x", S_KO, sum(i << (4 * i) for i in range(CC)))
else:
    a("s_mov_b32 s%d, 0x76543210", S_KO)
a("s_and_b32 s10, s4, %d", opt("krot", 6))
a("s_mul_i32 s10, s10, 0x11111111")
a("s_add_u32 s%d, s%d, s10", S_KO, S_KO)
for r, n in ((SX, 2048 * 1024), (SG, 512 * 3584), (SWS, WS_BYTES), (SW, 1792 * 1024), (SO, 2048 * 1024)):
    a("s_mov_b32 s%d, 0x%x", r + 2, n)
    a("s_mov_b32 s%d, 0x20000", r + 3)
a("s_cmp_lt_u32 s5, 4")
a("s_cselect_b32 s%d, 1, 0", S_ISAUX)
if PRE_WAIT:
    a("s_waitcnt lgkmcnt(0)")
    kgen_loads()
def srd_base(r, p):
    a("s_mov_b32 s%d, s%d", r, p)
    a("s_and_b32 s%d, s%d, 0xffff", r + 1, p + 1)
srd_base(SX, P_U)
a("s_mov_b32 s%d, s%d", S_KR, S_KO)
a("s_cmp_lg_u32 s%d, 0", S_ISAUX)
a("s_cbranch_scc1 L_aux")

vm = []
def vmwait(tags):
    idx = [i for i, t in enumerate(vm) if t in tags]
    return len(vm) - 1 - max(idx)
def dma1(stage, j, m0r=None):
    slot = stage % 3
    if j == 0 or (j == 3 and stage < 2):
        a("s_bfe_u32 s%d, s%d, 0x%x", S_T, S_KR, (3 << 16) | (4 * stage))
        a("s_mul_i32 s%d, s%d, %d", S_T2, S_T, 64 * 3584)
        a("s_lshl_b32 s%d, s%d, 7", S_T, S_T)
    if j in (1, 2):
        a("s_add_u32 m0, s%d, %d", S_W2K, XB[slot] * BLK + (j - 1) * 1024)
        a("buffer_load_dwordx4 v%d, %s, s%d offen lds", VX0 + j - 1, sr(SX, 4), S_T)
    else:
        p = 0 if j == 0 else j - 2
        a("s_add_u32 m0, s%d, %d", S_LO + p, GB[slot] * BLK)
        a("s_add_u32 s%d, s%d, s%d", S_T3, S_T2, S_RO + p)
        a("buffer_load_dwordx4 v%d, %s, s%d offen lds", VW0, sr(SG, 4), S_T3)
    if m0r is not None: a("s_mov_b32 m0, s%d", m0r)
    vm.append(("G1", stage))
S_T3 = 24
vm += [("KP", 0)] * 7
a("s_cmp_ge_u32 s3, 4")
a("s_cselect_b32 s%d, s%d, s%d", SG, P_WU, P_WG)
a("s_cselect_b32 s%d, s%d, s%d", SG + 1, P_WU + 1, P_WG + 1)
a("s_and_b32 s%d, s%d, 0xffff", SG + 1, SG + 1)
a("s_lshr_b32 s10, s3, 2")
a("s_lshl_b32 s10, s10, 14")
a("s_and_b32 s11, s3, 3")
a("s_lshl_b32 s11, s11, 10")
a("s_add_u32 s10, s10, s11")
for j in range(4):
    a("s_add_u32 s11, s5, %d", j) if opt("share", 1) else a("s_mov_b32 s11, %d", j)
    a("s_and_b32 s11, s11, 3")
    a("s_lshl_b32 s11, s11, 12")
    a("s_add_u32 s%d, s10, s11", S_LO + j)
    if j == 0: dma1(0, 0); dma1(0, 1); dma1(0, 2)
stamp(11)
def common_srds():
    srd_base(SWS, P_WS); srd_base(SW, P_WD); srd_base(SO, P_OUT)
later_addrs(T0, T1, T2)
for j in range(3): dma1(1, j)
def g1_read_addrs():
    t0, t1, t2 = 18, 19, 20
    a("v_and_b32 v%d, 15, v1", t0)
    a("v_lshrrev_b32 v%d, 4, v1", t1)
    a("v_bfe_u32 v%d, v1, 1, 3", t2)
    a("v_xor_b32 v%d, v%d, v%d", t2, t2, t1)
    a("v_lshlrev_b32 v%d, 7, v%d", t0, t0)
    a("v_lshl_add_u32 v%d, v%d, 4, v%d", t0, t2, t0)
    a("s_lshl_b32 s10, s8, 13")
    a("v_add_u32 v%d, s10, v%d", VXR, t0)
    a("v_xor_b32 v%d, 64, v%d", VXR + 1, VXR)
    a("v_bfe_u32 v%d, v1, 2, 2", t0)
    a("v_lshl_add_u32 v%d, v%d, 3, v%d", t0, t1, t0)
    a("v_lshlrev_b32 v%d, 8, v%d", t0, t0)
    a("v_bfe_u32 v%d, v1, 2, 3", t2)
    a("s_and_b32 s10, s3, 2")
    a("s_lshl_b32 s10, s10, 1")
    a("v_xor_b32 v%d, s10, v%d", t2, t2)
    a("v_lshl_add_u32 v%d, v%d, 5, v%d", t0, t2, t0)
    a("v_and_b32 v%d, 3, v1", t2)
    a("v_lshl_add_u32 v%d, v%d, 3, v%d", t0, t2, t0)
    a("v_add_u32 v10, %d, v%d", 4 * BLK, t0)
    for m in range(1, 4): a("v_xor_b32 v%d, %d, v10", 10 + m, m << 5)
    for m in range(4): a("v_add_u32 v%d, %d, v%d", 14 + m, 4 * BLK, 10 + m)
def late_setup(comp, T0, T1, T2):
    common_srds()
    if comp:
        a("s_lshl_b32 s10, s6, 2")
        a("s_lshl_b32 s11, s8, 1")
        a("s_add_u32 s10, s10, s11")
        a("s_mul_i32 s10, s10, 112")
        a("s_lshl_b32 s11, s7, 3")
        a("s_add_u32 s10, s10, s11")
        a("s_lshl_b32 s11, s9, 2")
        a("s_add_u32 s10, s10, s11")
        a("s_lshl_b32 s%d, s10, 10", S_HST)
        a("s_mul_i32 s10, s6, %d", FSTR * (16 if PCF else 1))
        a("s_lshl_b32 s11, s7, 2")
        a("s_add_u32 s10, s10, s11")
        a("s_add_u32 s%d, s10, %d", S_FH, F_H2)
    later_addrs3(T0, T1, T2)
FX = 20
FA = 52
NAR = 10
ACC = 92
AORD = [(gu, m) for m in range(4) for gu in range(2)]
def xreads(step):
    st, ks = step // 2, step % 2
    return [("ds_read_b128 %s, v%d offset:%d" % (vr(FX + (step % 2) * 16 + 4 * tt, 4), VXR + ks, XB[st % 3] * BLK + tt * 2048), (step, "x", tt)) for tt in range(4)]
def TS(n):
    if n >= 112 and opt("psplit", 1):
        k = n - 112
        return 14 + ((k >> 2) & 1), (k & 3) + 4 * (k >> 3)
    return n // 8, n % 8
def areads(n):
    step, i = TS(n)
    st, ks = step // 2, step % 2
    gu, m = AORD[i]
    blk = GB[st % 3] + gu
    reg, rel = (10, blk - 4) if blk < 8 else (14, blk - 8)
    return [("ds_read_b64_tr_b16 %s, v%d offset:%d" % (vr(FA + 4 * (n % NAR) + 2 * hf, 2), reg + m, rel * BLK + ks * 8192 + hf * 1024), ("a", n)) for hf in range(2)]
def kgen_all(dmas):
    khead, ktail = kgen_valu(False)
    for i in khead: a(i)
    if opt("diag1", 0): stamp(7, True)
    a("s_mov_b32 m0, s%d", S_TM0)
    wr = {w_.split()[1]: w_ for w_ in kgen_writes()}
    q = []
    n = len(ktail); k = 0
    for n_, i in enumerate(ktail):
        a(i)
        if q and n_ % 1 == 0 and len(q) > 1: a(q.pop(0))
        if i.startswith("v_cvt"): q.append(wr[i.split()[1].rstrip(",")])
        if dmas and n_ >= opt("d1start", 40) and (n_ - opt("d1start", 40)) % opt("d1step", 20) == 0: dmas.pop(0)()
    for w_ in q: a(w_)
    for d in dmas: d()
def touch(stage):
    a("s_bfe_u32 s10, s%d, 0x%x", S_KR, (3 << 16) | (4 * stage))
    a("s_mul_i32 s10, s10, %d", 64 * 3584)
    a("s_add_u32 s10, s10, s%d", S_RO)
    a("buffer_load_dwordx4 v[52:55], v%d, %s, s10 offen", VW0, sr(SG, 4))
    vm.append(("T", 0))
if opt("stub", 1):
    for k_ in (0, 2):
        a("s_cmp_eq_u32 s3, %d", k_)
        a("s_cbranch_scc1 L_st%d", k_)
a("L_stret:")
a("s_waitcnt vmcnt(%d)", vmwait([("KP", 0)]))
stamp(0)
kgen_all([(lambda j=j: dma1(0, j, S_TM0)) for j in range(3, 6)])
stamp(14)
a("s_waitcnt lgkmcnt(0)")
a("s_barrier")
stamp(12)
lg = Lg()
for r in kreads(): lg.issue(*r)
a.srd(28, P_WG, 512 * 3584)
def ld_setup():
    a("v_subrev_u32 v8, 0x10000, v%d", VX0)
    a("v_subrev_u32 v9, 0x10000, v%d", VX1)
if opt("s1early", 1):
    for j in range(3, 6): dma1(1, j)
role(g1_read_addrs, ld_setup)
run_kmfma(lg, [], 0)
if not opt("s1early", 1):
    for j in range(3, 6): dma1(1, j)
a("s_waitcnt vmcnt(%d)", vmwait([("G1", 0)]))
a("s_barrier")
stamp(1)
class Raw:
    def __init__(self, f): self.f = f
a("s_cmp_ge_u32 s3, 4")
a("s_cbranch_scc1 L_load")
WST = 144
WSTO = {5: 0, 4: 32, 6: 64}
W4T = opt("w4t", 0)
W2T = opt("w2t", 0)
W1T = opt("w1t", 1)
def stage_w(rd, i0=0, n=8):
    a("s_lshl_b32 s13, s%d, 4", S_RT + rd)
    a("s_add_u32 s13, s13, s%d", S_WSO)
    if i0: a("s_add_u32 s13, s13, %d", i0 * 8192)
    for i in range(i0, i0 + n):
        a("buffer_load_dwordx4 %s, v%d, %s, s13 offen", vr(WST + WSTO[rd] + 4 * i, 4), VWD, sr(SW, 4))
        if i < i0 + n - 1: a("s_add_u32 s13, s13, 8192")
EUD = 244
def eops_load(EU=56, ED=60, t1=64, t2=65, t3=66):
    a("v_and_b32 v%d, 31, v1", t1)
    a("v_lshrrev_b32 v%d, 5, v1", t2)
    a("v_lshlrev_b32 v%d, 4, v%d", t3, t2)
    a("v_lshl_add_u32 v%d, v%d, 10, v%d", t1, t1, t3)
    a("buffer_load_dwordx4 %s, v%d, %s, s%d offen", vr(EU, 4), t1, sr(SX, 4), S_OB)
    a("v_add_u32 v%d, s%d, v%d", t3, S_DOFF, t3)
    a("global_load_dwordx4 %s, v%d, %s", vr(ED, 4), t3, sr(P_DSK, 2))
def eops_calc(EU=56, ED=60, t1=64, t2=65, t3=66):
    for j in range(4):
        a("v_lshlrev_b32 v%d, 16, v%d", t1, EU + j)
        a("v_lshlrev_b32 v%d, 16, v%d", t2, ED + j)
        a("v_and_b32 v%d, 0xffff0000, v%d", EU + j, EU + j)
        a("v_and_b32 v%d, 0xffff0000, v%d", ED + j, ED + j)
        a("v_mul_f32 v%d, v%d, v%d", t1, t1, t2)
        a("v_mul_f32 v%d, v%d, v%d", t2, EU + j, ED + j)
        a("v_cvt_pk_bf16_f32 v%d, v%d, v%d", EUD + j, t1, t2)
def dma_w(rd, i):
    a("s_lshl_b32 s10, s3, 12")
    a("s_add_u32 m0, s10, %d", WB[rd] * BLK + i * 1024)
    a("s_lshl_b32 s10, s%d, 4", S_RT + rd)
    a("s_add_u32 s10, s10, s%d", S_W0S)
    a("s_add_u32 s10, s10, %d", i * 8192)
    a("buffer_load_dwordx4 v%d, %s, s10 offen lds", VWD, sr(SW, 4))
    vm.append(("W0", 0))
S_PFI = 101
if opt("cprio", 2): a("s_setprio %d", opt("cprio", 2))
lg = Lg()
for r in areads(0) + xreads(0): lg.issue(*r)
for n in range(1, 8):
    for r in areads(n): lg.issue(*r)
    if n == 3: kmfma_finish()
a("s_waitcnt lgkmcnt(8)") if False else None
kv = a.capture(late_setup, True, 18, 19, 7)
ECT = dict(EU=220, ED=224, t1=228, t2=229, t3=230)
def epilogue(p):
    for tt in range(4):
        dst = ACC + ((4 + 2 * p) * 4 + tt) * 4
        for m in (2 * p, 2 * p + 1):
            g = ACC + (m * 4 + tt) * 4; u = ACC + ((4 + m) * 4 + tt) * 4
            if (opt("eplain", 3) >> p) & 1:
                for q_ in range(4): a("v_mul_f32 v%d, v%d, v%d", g + q_, g + q_, u + q_)
            else:
                for q_ in range(2): a("v_pk_mul_f32 %s, %s, %s", vr(g + 2 * q_, 2), vr(g + 2 * q_, 2), vr(u + 2 * q_, 2))
        for m in (2 * p, 2 * p + 1):
            g = ACC + (m * 4 + tt) * 4
            for q_ in range(2): a("v_cvt_pk_bf16_f32 v%d, v%d, v%d", dst + 2 * (m & 1) + q_, g + 2 * q_, g + 2 * q_ + 1)
        a("buffer_store_dwordx4 %s, v18, %s, s%d offen offset:%d sc1", vr(dst, 4), sr(SWS, 4), S_HST if tt < 2 else 10, 2048 * p + 256 * (tt & 1))
epi = [a.capture(epilogue, 0), a.capture(epilogue, 1)]
AHEAD = 8
for step in range(16):
    st, ks = step // 2, step % 2
    q = []
    if step < 15:
        sched = {}
        for i in range(8):
            g_ = max(0, 4 * (i - (NAR - 8)) + 3)
            sched.setdefault(g_, []).extend(areads((step + 1) * 8 + i))
        xq = xreads(step + 1)
    order = [(i, tt if (i % 2 == 0 or not opt("snake", 0)) else 3 - tt) for i in range(8) for tt in range(4)]
    for g, (i, tt) in enumerate(order):
        n = step * 8 + i
        rs, ri = TS(n)
        gu, m = AORD[ri]
        d = vr(ACC + ((gu * 4 + m) * 4 + tt) * 4, 4)
        lg.need([("a", n), (rs, "x", tt)])
        a("v_mfma_f32_16x16x32_bf16 %s, %s, %s, %s", d, vr(FA + 4 * (n % NAR), 4), vr(FX + (rs % 2) * 16 + 4 * tt, 4), d if step else "0")
        if step < 15: q += sched.pop(g, [])
        if step == 15 and g >= (2 if opt("psplit", 1) else 18) and not kv:
            for _ in range(opt("epg", 2 if opt("psplit", 1) else 3)):
                if epi[0]: a(epi[0].pop(0))
        if q: lg.issue(*q.pop(0))
        elif step < 15 and xq: lg.issue(*xq.pop(0))
        elif kv:
            k_ = kv.pop(0)
            k_() if callable(k_) else a(k_)
            if kv and not callable(k_) and k_.startswith("s_") and not callable(kv[0]) and opt("s2", 1): a(kv.pop(0))
    assert not q and (step == 15 or not xq)
    if ks == 0:
        a("s_waitcnt %slgkmcnt(0)", "vmcnt(0) " if st == 0 else ""); lg.drained()
        a("s_barrier")
        if opt("stg", 0): stamp([4, 5, 6, 7, 8, 10, 13, 14][st], True)
        if st == 5:
            assert not kv, len(kv)
            kv = a.capture(eops_load, *[ECT[k] for k in ("EU", "ED", "t1", "t2", "t3")])
            kv += ["v_lshrrev_b32 v18, 4, v1", "v_lshlrev_b32 v18, 9, v18", "v_and_b32 v19, 15, v1", "v_lshl_add_u32 v18, v19, 4, v18",
                   "s_add_u32 s10, s%d, %d" % (S_HST, 112 * 1024)]
        if st == 6:
            kv = ["s_waitcnt vmcnt(0)"] + a.capture(eops_calc, *[ECT[k] for k in ("EU", "ED", "t1", "t2", "t3")])
        if st == 7:
            a("ds_read_b32 v%d, v%d offset:%d", VN, VZ, L_SY + 100)
assert not kv
stamp(2)
for k_ in epi[0] + epi[1]: a(k_)
a("s_waitcnt lgkmcnt(0)")
a("v_readfirstlane_b32 s%d, v%d", S_NONCE, VN)

def loader():
    SG2 = 28
    VX2 = 8
    a("L_load:")
    def stage(s_, part=3):
        slot = s_ % 3
        a("s_bfe_u32 s%d, s%d, 0x%x", S_T, S_KR, (3 << 16) | (4 * s_))
        a("s_mul_i32 s%d, s%d, %d", S_T2, S_T, 64 * 3584)
        a("s_lshl_b32 s%d, s%d, 7", S_T, S_T)
        def wp(p):
            a("s_add_u32 s%d, s%d, s%d", S_T3, S_T2, S_RO + p)
            for m in range(2):
                a("s_add_u32 m0, s%d, %d", S_LO + p, (GB[slot] - 1 + m) * BLK)
                a("buffer_load_dwordx4 v%d, %s, s%d offen lds", VW0, sr([SG2, SG][m], 4), S_T3)
                vm.append(("G1", s_))
        if part & 1: wp(0)
        for h_ in range(2 if part & 1 else 0):
            for i in range(2):
                a("s_add_u32 m0, s%d, %d", S_W2K, (XB[slot] * BLK + i * 1024 - (1 - h_) * 8192) & 0xffffffff)
                a("buffer_load_dwordx4 v%d, %s, s%d offen lds", [VX2, VX0][h_] + i, sr(SX, 4), S_T)
                vm.append(("G1", s_))
        if part & 2:
            for p in range(1, 4): wp(p)
    wl = hl_list(True)
    def wloads(n):
        for _ in range(n):
            wl.pop(0)(); vm.append(("W", 0))
    SP = opt("sp", 2)
    stage(2, 1 if SP else 3)
    kmfma_finish()
    ls = a.capture(late_setup, False, T0, T1, T2)
    for st in range(8):
        if st < 7: a("s_waitcnt vmcnt(%d) lgkmcnt(0)", vmwait([("G1", st + 1)]))
        else: a("s_waitcnt lgkmcnt(0)")
        a("s_barrier")
        if st < SP and st + 2 <= 7: stage(st + 2, 2)
        if st + 3 <= 7: stage(st + 3, 1 if st + 1 < SP else 3)
        if st == 0: onwave(4, zero_pads_k)
        if 1 <= st <= 3:
            n_ = (len(ls) + 3 - st) // (4 - st)
            for k_ in ls[:n_]: a(k_)
            ls = ls[n_:]
        if st == 4:
            later_addrs2(T0, T1, T2)
            conv_prelude()
            if UE:
                a("s_mov_b32 s%d, %d", S_PB, F_A)
                poll_issue(32); vm.append(("X", 0))
                nonce_issue(); vm.append(("X", 0))
        def ucheck():
            a("s_waitcnt vmcnt(%d)", vmwait([("X", 0)]))
            nonce_check()
            def wn():
                a("s_mov_b64 exec, 1")
                a("ds_write_b32 v%d, v%d offset:%d", VZ, VN, L_SY + 100)
                a("s_mov_b64 exec, -1")
            onwave(4, wn)
            a("v_cmp_ne_u32 vcc, s%d, v%d", S_NONCE, VN - 1)
            a("s_cmp_lg_u64 vcc, 0")
            a("s_cselect_b32 s%d, 1, 0", S_PFI)
            a("s_cbranch_scc1 L_udef")
            u_load()
            a("L_udef:")
            vm.append(("U", 0))
        if st == 5:
            eops_load(); vm.append(("E", 0)); vm.append(("E", 0))
            onwave(5, zero_pads_u)
            if UE: ucheck()
            else:
                a("s_mov_b32 s%d, %d", S_PB, F_A)
                poll_issue(32); vm.append(("X", 0))
                nonce_issue(); vm.append(("X", 0))
            wloads(NW[1])
        if st == 6:
            if not UE: ucheck()
            else:
                a("s_waitcnt vmcnt(%d)", vmwait([("U", 0)]))
                u_write()
                eops_calc()
            wloads(NW[2])
    stamp(2)
    wloads(min(NW[3], 8))
    if not UE:
        a("s_cmp_eq_u32 s%d, 0", S_PFI)
        a("s_cbranch_scc1 L_uok")
        poll_check(4)
        u_load()
        a("s_waitcnt vmcnt(0)")
        a("L_uok:")
        a("s_waitcnt vmcnt(%d)", vmwait([("U", 0)]))
        u_write()
        sig(VSY, 0)
        wloads(NW[3] - min(NW[3], 8))
        eops_calc()
        a("v_and_b32 v19, 3, v1")
        a("v_lshlrev_b32 v19, 2, v19")
        lds_wait(19, L_SY + 16, 18, 0)
    if opt("hold", 0): lds_wait(7, 104, 18, 1)
UE = opt("ue", 0)
def conv_prelude():
    a("v_mov_b32 v6, 1")
    a("v_mov_b32 v7, %d", L_SY)
    a("s_lshl_b32 s10, s%d, 4", S_TQ)
    a("s_add_u32 s10, s10, %d", L_SY + 32)
    a("v_mov_b32 v108, s10")
    a("v_xor_b32 v109, 16, v108")
NW = [0, opt("nw5", 8), opt("nw6", 8), opt("nw7", 0)]
AUX0 = len(a.lines)
HIST0 = list(a.hist)
a("L_aux:")
common_srds()
a("s_lshl_b32 s6, s4, 2")
a("s_add_u32 s6, s6, s5")
PITCH = 1040
GRP = 16 * PITCH
LA1 = 6 * BLK - GRP
LGW = GRP
a("v_lshlrev_b32 v20, 4, v1")
a("s_mov_b32 s9, %d", F_E)
a("buffer_load_dword v12, v%d, %s, s9 offen sc1", VZ, sr(SWS, 4))
a("s_lshl_b32 s7, s6, 16")
a("s_lshl_b32 s8, s3, 13")
a("s_add_u32 s7, s7, s8")
a("s_mul_i32 s8, s3, %d", 8 * PITCH)
a("s_cmp_ge_u32 s3, 2")
a("s_cselect_b32 s10, %d, 0", LA1)
a("s_add_u32 s8, s8, s10")
def xall():
    a("s_and_b32 s11, s3, 3")
    a("s_lshl_b32 s24, s6, 16")
    a("s_lshl_b32 s12, s11, 12")
    a("s_add_u32 s24, s24, s12")
    a("s_mul_i32 s12, s11, %d", 4 * PITCH)
    for g in range(4):
        for j in range(4):
            a("s_add_u32 m0, s12, %d", (LA1 + g * GRP if g else 0) + j * PITCH)
            a("s_add_u32 s13, s24, %d", (16 * g + j) * 1024)
            a("buffer_load_dwordx4 v20, %s, s13 offen lds", sr(SX, 4))
onwave(4, lambda: a("global_load_dwordx4 v[28:31], v20, %s", sr(P_GW, 2)))
role(None, xall)
later_addrs(T0, T1, T2)
a("v_lshrrev_b32 v22, 4, v1")
a("v_bfe_u32 v23, v1, 2, 2")
a("v_lshl_add_u32 v23, v23, 2, v22")
a("v_mul_u32_u24 v23, %d, v23", PITCH)
a("v_and_b32 v8, 3, v1")
a("v_lshl_add_u32 v23, v8, 3, v23")
a("v_bfe_u32 v8, v1, 1, 3")
a("v_lshlrev_b32 v8, 13, v8")
a("v_lshl_add_u32 v8, v22, 5, v8")
a("v_and_b32 v9, 1, v1")
a("v_lshl_add_u32 v8, v9, 4, v8")
a("s_lshl_b32 s25, s6, 8")
a("s_add_u32 s25, s25, %d", WS_UT)
def ut_part(aa, n, sh):
    a("s_lshl_b32 s10, s3, %d", sh + 5)
    a("s_add_u32 s11, s10, %d", LA1 + 2 * GRP if aa else 0)
    a("v_add_u32 v10, s11, v23")
    a("s_add_u32 s11, s10, %d", LA1 + (2 * aa + 1) * GRP)
    a("v_add_u32 v11, s11, v23")
    for j in range(n):
        for hf in range(2):
            a("ds_read_b64_tr_b16 %s, v%d offset:%d", vr(64 + 4 * j + 2 * hf, 2), 10 + hf, j * 32)
    a("s_lshl_b32 s10, s3, %d", sh + 16)
    a("s_add_u32 s10, s10, s25")
    for j in range(n):
        a("s_waitcnt lgkmcnt(%d)", 2 * (n - 1 - j))
        a("s_add_u32 s13, s10, %d", j * 65536 + aa * 128)
        a("buffer_store_dwordx4 %s, v8, %s, s13 offen sc1", vr(64 + 4 * j, 4), sr(SWS, 4))
a("s_cmp_ge_u32 s3, 4")
a("s_cbranch_scc1 L_auxhi")
a("s_waitcnt vmcnt(0)")
a("s_or_b32 s10, s2, s3")
a("s_cmp_lg_u32 s10, 0")
a("s_cbranch_scc1 L_auxk")
a("s_mov_b32 s10, 0x9e3779b1")
a("v_mul_lo_u32 v12, v12, s10")
a("v_add_u32 v12, 0x7f4a7c15, v12")
a("v_mov_b32 v13, 1")
a("s_mov_b64 exec, 1")
a("global_store_dwordx2 v%d, v[12:13], %s sc1", VZ, sr(P_DBG, 2))
a("buffer_store_dword v12, v%d, %s, s9 offen sc1", VZ, sr(SWS, 4))
a("s_mov_b64 exec, -1")
a("s_branch L_auxk")
a("L_auxhi:")
a("s_waitcnt vmcnt(8)")
a("s_barrier")
a("L_auxk:")
kgen_all([])
def lo():
    a("s_waitcnt lgkmcnt(0)")
    a("s_barrier")
    ut_part(0, 8, 3)
role(lo, None)
a("s_waitcnt lgkmcnt(0)")
a("s_barrier")
lg = Lg()
for r in kreads(): lg.issue(*r)
a("v_and_b32 v21, 7, v0")
a("v_lshlrev_b32 v21, 4, v21")
run_kmfma(lg, [], 0)
def hi():
    a("s_waitcnt vmcnt(0)")
    onwave(4, lambda: a("ds_write_b128 v20, v[28:31] offset:%d", LGW))
    a("s_waitcnt lgkmcnt(0)")
role(None, hi)
a("s_barrier")
stamp(0)
nonce_issue()
ut_part(1, 4, 2)
a("v_lshrrev_b32 v9, 3, v1")
a("v_mul_u32_u24 v10, %d, v9", PITCH)
a("v_add3_u32 v10, v10, v21, s8")
a("v_lshrrev_b32 v9, 3, v0")
for j in range(8):
    a("ds_read_b128 %s, v10 offset:%d", vr(96 + 4 * j, 4), j * 128)
    a("ds_read_b128 %s, v21 offset:%d", vr(24 + 4 * j, 4), LGW + j * 128)
kmfma_finish()
onwave(0, zero_pads_k)
onwave(1, zero_pads_u)
a("v_mov_b32 v11, 0")
a("v_mov_b32 v12, 0")
a("s_waitcnt lgkmcnt(0)")
for j in range(32):
    a("v_dot2_f32_bf16 v%d, v%d, v%d, v%d", 11 + j % 2, 24 + j, 96 + j, 11 + j % 2)
a("v_add_f32 v11, v11, v12")
a("v_add_f32_dpp v11, v11, v11 quad_perm:[1,0,3,2] row_mask:0xf bank_mask:0xf")
a("v_add_f32_dpp v11, v11, v11 quad_perm:[2,3,0,1] row_mask:0xf bank_mask:0xf")
a("v_add_f32_dpp v11, v11, v11 row_half_mirror row_mask:0xf bank_mask:0xf")
a("v_mul_f32 v11, 0xbfb8aa3b, v11")
a("v_exp_f32 v11, v11")
a("v_add_f32 v11, 1.0, v11")
a("v_rcp_f32 v11, v11")
a("v_lshlrev_b32 v9, 2, v9")
a("s_waitcnt vmcnt(0)")
nonce_check()
a("s_barrier")
def sflag(base):
    a("s_lshl_b32 s10, s6, 2")
    a("s_add_u32 s10, s10, %d", base)
    a("s_mov_b32 s11, s%d", S_NONCE)
    a("s_buffer_atomic_swap s11, %s, s10", sr(SWS, 4))
onwave(1, lambda: sflag(F_A))
stamp(1)
a("s_lshl_b32 s13, s6, 8")
a("s_add_u32 s13, s13, %d", WS_G)
a("v_cmp_eq_u32 vcc, 0, v21")
a("s_mov_b64 exec, vcc")
a("buffer_store_dword v11, v9, %s, s13 offen sc1", sr(SWS, 4))
a("s_mov_b64 exec, -1")
a("s_lshl_b32 s%d, s6, 13", S_PFI)
a("s_lshl_b32 s11, s3, 10")
a("s_add_u32 s%d, s%d, s11", S_PFI, S_PFI)
for k_ in range(7):
    a("buffer_load_dwordx4 v[52:55], v20, %s, s%d offen", sr(SW, 4), S_PFI)
    a("s_add_u32 s%d, s%d, %d", S_PFI, S_PFI, 256 * 1024)
    if k_ == 4:
        later_addrs2(T0, T1, T2)
        later_addrs3(T0, T1, T2)
def p_():
    a("s_mov_b32 s%d, %d", S_PB, F_A)
    poll_issue(32)
    a("s_waitcnt vmcnt(0)")
    poll_check(8)
onwave(0, p_)
a("s_waitcnt vmcnt(7)")
a("s_barrier")
onwave(1, lambda: sflag(F_G))
role(None, u_load)
eops_load()
a("s_waitcnt vmcnt(0)")
role(None, u_write)
eops_calc()
a("s_waitcnt lgkmcnt(0)")
a("s_barrier")
stamp(2)
conv_prelude()
a("s_cmp_ge_u32 s3, 4")
a("s_cbranch_scc1 L_conv")
AUXW = len(a.lines)
a("s_branch L_help")
aux_lines = a.lines[AUX0:]
a.lines = a.lines[:AUX0]
a.hist = HIST0
VA, VB, VC, VY = 2, 3, 4, 5
HF = 80
HRING = 16
VO = 14
HFC = 112
def hload(j0, n, vml, HF=HF):
    for j in range(j0, j0 + n):
        if j % 4 == 0 or j == j0:
            a("s_add_u32 s%d, s%d, s%d", S_T, S_HB, S_RT + j // 4)
        a("buffer_load_dwordx4 %s, v%d, %s, s%d offen offset:%d%s", vr(HF + 4 * (j % HRING), 4), VH, sr(SWS, 4), S_T, (j % 4) * 1024, "" if opt("hplain", 0) else " sc1")
        vml.append(("H", j))

WORD = {0: [0, 1, 4, 5, 6, 2, 3], 8: [0, 1, 2, 4, 5, 6, 3], 16: [0, 1, 2, 3, 4, 5, 6]}[opt('nw7', 0)]
W6D = opt("w6d", 0)
if W6D: WORD.remove(6)
def hl_list(all_=False):
    L = []
    for rd in WORD:
        for i in range(8):
            def f(rd=rd, i=i):
                if rd < 4:
                    a("s_add_u32 m0, s%d, %d", S_WLD, WB[rd] * BLK + i * 1024)
                if i == 0:
                    a("s_lshl_b32 s13, s%d, 4", S_RT + rd)
                    a("s_add_u32 s13, s13, s%d", S_WSO)
                else:
                    a("s_add_u32 s13, s13, 8192")
                if rd < 4:
                    a("buffer_load_dwordx4 v%d, %s, s13 offen lds", VWD, sr(SW, 4))
                else:
                    a("buffer_load_dwordx4 %s, v%d, %s, s13 offen", vr(WST + WSTO[rd] + 4 * i, 4), VWD, sr(SW, 4))
            L.append(f)
    return L if all_ else L[sum(NW):]
assert all(x % 8 == 0 for x in NW) and NW[0] <= 8 and NW[0] + NW[1] <= 16
BC0 = len(a.lines)
a("L_st2:"); a("s_branch L_stret")
loader()
a("L_conv:")
stamp(3)
if opt("prio", 0): a("s_setprio %d", opt("prio", 0))
a("s_mov_b32 s14, 0x11111111")
a("s_mov_b32 s15, 0x11111111")
a("s_mov_b64 vcc, s[14:15]")
a("s_mov_b32 s12, 0x33333333")
a("s_mov_b32 s13, 0x33333333")
a("s_bitcmp1_b32 s3, 0")
a("s_cbranch_scc1 L_set1")
BF = 112
AF = 8
AC = 28
C1POS = opt("c1pos", 26)
LOOK = opt("look", 6)
NC0 = opt("nc0", 6)
FPG = opt("fpg", 4)
vmc = None
VCF, VCP = 108, 109
DONE = {}
def done_pos(jt):
    CM = opt("cm", 0)
    for tiles in ([0, 3, 4, 7], [1, 2, 5, 6]):
        if jt in tiles:
            groups = {0: [[0, 1, 2, 3]], 1: [[0], [1], [2], [3]], 2: [[0, 1], [2, 3]], 3: [[0, 1, 2], [3]]}[CM]
            sc = [tiles[ti] for g_ in groups for dl in range(4 * tiles[g_[-1]] + 4) for ti in g_ if dl <= 4 * tiles[ti] + 3]
            return max(p for p, x in enumerate(sc) if x == jt)
for si, tiles in enumerate([[0, 3, 4, 7], [1, 2, 5, 6]]):
    if si == 1:
        a("L_st0:"); a("s_branch L_stret")
        a("L_set1:")
    other = [[1, 2, 5, 6], [0, 3, 4, 7]][si]
    lg = Lg()
    CM = opt("cm", 0)
    groups = {0: [[0, 1, 2, 3]], 1: [[0], [1], [2], [3]], 2: [[0, 1], [2, 3]], 3: [[0, 1, 2], [3]]}[CM]
    sched = []; aid = []; adl = []
    for g_ in groups:
        for dl in range(4 * tiles[g_[-1]] + 4):
            adl.append(dl)
            for ti in g_:
                if dl <= 4 * tiles[ti] + 3:
                    sched.append((dl, ti, tiles[ti])); aid.append(len(adl) - 1)
    NA = 5
    lastuse = {}
    for pos in range(len(sched)): lastuse[aid[pos]] = pos
    loads = []; seenB = set(); seenA = set()
    for pos, (dl, ti, jt) in enumerate(sched):
        if aid[pos] not in seenA: seenA.add(aid[pos]); loads.append(("A", aid[pos], pos))
        e = 4 * jt - dl
        if e not in seenB: seenB.add(e); loads.append(("B", e, pos))
    done_at = {jt: max(p for p, x in enumerate(sched) if x[2] == jt) for jt in tiles}
    DONE.update(done_at)
    def ld_instrs(kind, idx):
        if kind == "A":
            r = AF + 4 * (idx % NA); dl_ = adl[idx]
            return ["ds_read_b64_tr_b16 %s, v%d offset:%d" % (vr(r + 2 * hf, 2), VA, 128 * dl_ + 32 * (1 - hf)) for hf in range(2)]
        return ["ds_read_b128 %s, v%d offset:%d" % (vr(BF + 4 * (idx + 3), 4), VB, 128 * (idx + 3))]
    nys = [0]
    ystores = []
    def post(ti, jt):
        b = AC + 20 * ti
        L = []
        q1 = "quad_perm:[1,1,3,3] row_mask:0xf bank_mask:0xf"; q2 = "quad_perm:[2,2,2,2] row_mask:0xf bank_mask:0xf"
        q0 = "quad_perm:[0,0,0,0] row_mask:0xf bank_mask:0xf"
        L.append("v_mov_b32_dpp v%d, v%d %s" % (b + 16, b + 15, q1))
        for q in range(15, 0, -1):
            L.append("v_add_f32_dpp v%d, v%d, v%d %s" % (b + q, b + q - 1, b + q, q1))
        L.append("v_mov_b32_dpp v%d, v%d %s" % (b + 18, b + 16, q2))
        L.append("v_mov_b32_dpp v%d, v%d %s" % (b + 17, b + 15, q2))
        L.append("v_add_f32_dpp v%d, v%d, v%d %s" % (b + 16, b + 14, b + 16, q2))
        def cw():
            a("s_mov_b64 exec, vcc")
            lg.issue("ds_write_b128 v%d, %s offset:%d" % (VC, vr(b + 16, 4), 256 * jt + 16))
            if jt + 1 in other:
                a("s_mov_b64 exec, 1")
                lg.issue("ds_write_b32 v%d, v6 offset:%d" % (VCF, 4 * ti))
            a("s_mov_b64 exec, -1")
        L.append(cw)
        for q in range(15, 1, -1):
            L.append("v_add_f32_dpp v%d, v%d, v%d %s" % (b + q, b + q - 2, b + q, q2))
        for q in range(2, 8):
            L.append("v_cvt_pk_bf16_f32 v%d, v%d, v%d" % (b + 16 + (q - 2) if q < 4 else b + q, b + 2 * q, b + 2 * q + 1))
        L = [(0, x) for x in L]
        part = (jt - 1) in other
        mp = done_pos(jt - 1) + opt("cmarg", 22) if part else 0
        def rd():
            if part: lg.issue("ds_read_b32 v%d, v%d offset:%d" % (b + 12, VCP, 4 * other.index(jt - 1)), ("cf", ti))
            lg.issue("ds_read_b128 %s, v%d offset:%d" % (vr(b + 8, 4), VC, 256 * jt), ("cy", ti))
        L.append((mp, rd))
        def chk():
            lg.need([("cy", ti)])
            if part:
                ok = a.label("Lcok"); sl = a.label("Lcsl")
                a("v_readfirstlane_b32 s10, v%d", b + 12)
                a("s_cmp_eq_u32 s10, 0")
                a("s_cbranch_scc1 %s", sl)
                a(ok + ":")
                def sp(ok=ok, sl=sl, oi=other.index(jt - 1)):
                    a(sl + ":")
                    lds_wait(VCP, 4 * oi, b + 12, 0)
                    a("s_mov_b64 vcc, s[14:15]")
                    a("ds_read_b128 %s, v%d offset:%d", vr(b + 8, 4), VC, 256 * jt)
                    a("s_waitcnt lgkmcnt(0)")
                    a("s_branch %s", ok)
                slow.append(sp)
        L.append((-3, chk))
        for q in range(3):
            L.append((0, "v_add_f32 v%d, v%d, v%d" % (b + q, b + q, b + 8 + q)))
        L.append((0, "v_cvt_pk_bf16_f32 v%d, v%d, v%d" % (b, b, b + 1)))
        L.append((0, "v_cvt_pk_bf16_f32 v%d, v%d, v%d" % (b + 1, b + 2, b + 3)))
        L.append((0, "v_cndmask_b32_dpp v%d, v%d, v%d, vcc %s" % (b + 2, b + 6, b + 16, q0)))
        L.append((0, "v_cndmask_b32_dpp v%d, v%d, v%d, vcc %s" % (b + 3, b + 7, b + 17, q0)))
        L.append((0, "v_cndmask_b32_dpp v%d, v%d, v%d, vcc %s" % (b, b + 4, b, q0)))
        L.append((0, "v_cndmask_b32_dpp v%d, v%d, v%d, vcc %s" % (b + 1, b + 5, b + 1, q0)))
        def st_():
            a("s_mov_b64 exec, s[12:13]")
            a("buffer_store_dwordx4 %s, v%d, %s, s%d offen offset:%d sc1", vr(b, 4), VY, sr(SWS, 4), S_YB, 512 * jt)
            a("s_mov_b64 exec, -1")
            nys[0] += 1
        if opt("ydefer", 1): ystores.append(st_)
        else: L.append((0, st_))
        return L
    li = 0; queues = []
    def emit(x): a(x) if isinstance(x, str) else x()
    for pos, (dl, ti, jt) in enumerate(sched):
        for ld in list(loads):
            kind, idx, fp = ld
            if fp <= pos + LOOK and not (kind == "A" and idx >= NA and lastuse[idx - NA] >= pos):
                for ins in ld_instrs(kind, idx): lg.issue(ins, (kind, idx))
                loads.remove(ld)
        e = 4 * jt - dl
        lg.need([("A", aid[pos]), ("B", e)])
        d = vr(AC + 20 * ti, 16)
        a("v_mfma_f32_32x32x16_bf16 %s, %s, %s, %s", d, vr(AF + 4 * (aid[pos] % NA), 4), vr(BF + 4 * (e + 3), 4), d if dl else "0")
        if opt("diag2", 0) and pos in (15, 39):
            stamp({15: 11, 39: 12}[pos], True); lg.drained()
        bud = FPG
        for qu in queues:
            while bud and qu[0] and pos >= qu[1]:
                mp, x = qu[0][0]
                if mp > pos: break
                if mp < 0:
                    qu[0][0] = (pos - mp, x); break
                qu[0].pop(0); emit(x); bud -= 1
        if dl == 4 * jt + 3: queues.append([post(ti, jt), pos + 3])
    stamp(4)
    def upto(qu, name, incl):
        names = [getattr(x, "__name__", "") for mp, x in qu[0]]
        if name not in names: return
        n_ = names.index(name) + (1 if incl else 0)
        for mp, x in qu[0][:n_]: emit(x)
        qu[0] = qu[0][n_:]
    for qu in queues[:-1]: upto(qu, "cw", True)
    upto(queues[-1], "cw", True)
    for qu in queues[:-1]: upto(qu, "rd", True)
    upto(queues[-1], "rd", True)
    for qu in queues[:-1]:
        for mp, x in qu[0]: emit(x)
    for mp, x in queues[-1][0]: emit(x)
    for x in ystores: x()
    stamp(5)
    if si == 0: a("s_branch L_g2c")

BH0 = len(a.lines)
a.hist = HIST0
a("v_mov_b32 v6, 1")
a("v_mov_b32 v7, %d", L_SY)
if opt("hold", 0): onwave(3, lambda: sig(7, 104))
a("s_setprio 0")
a("L_help:")
stamp(3)
NPRE = opt("npre", 8)
for f in hl_list()[:NPRE]: f()
a("s_waitcnt vmcnt(%d)", NPRE)
sig(VSY, 0)
stamp(10)
a("s_cmp_lg_u32 s3, 0")
a("s_cbranch_scc1 L_hdma")
a("s_cmp_lg_u32 s%d, 0", S_ISAUX)
a("s_cbranch_scc1 L_hdma")
a("v_and_b32 v2, 3, v1")
a("v_lshl_add_u32 v2, v2, 2, v7")
rest = hl_list()[NPRE:]
SEG = opt("seg", 2)
NSEG = opt("nseg", 6)
for k in range(NSEG):
    a("ds_read_b32 v3, v2")
    a("s_waitcnt lgkmcnt(0)")
    a("v_cmp_eq_u32 vcc, 0, v3")
    a("s_cmp_eq_u64 vcc, 0")
    a("s_cbranch_scc1 L_pub%d", k)
    for f in rest[k * SEG:(k + 1) * SEG]: f()
lds_wait(2, 0, 3, 0)
for k in range(NSEG, -1, -1):
    a("L_pub%d:" % k)
    a("s_mov_b32 s11, s%d", S_NONCE)
    a("s_buffer_atomic_swap s11, %s, s%d", sr(SWS, 4), S_FH)
    if STAMP and k == 0: pass
    if k: a("s_branch L_seg%d", k)
def hpoll_setup():
    a("s_lshr_b32 s%d, s%d, 1", S_PB, S_TB)
    a("s_mul_i32 s%d, s%d, %d", S_PB, S_PB, FSTR)
    a("s_add_u32 s%d, s%d, %d", S_PB, S_PB, F_H2)
    a("s_mov_b32 s8, s%d", S_NONCE)
    a("s_mov_b32 s9, s%d", S_NONCE)
    a("s_mov_b32 s12, 0")
a("L_hdma:")
for n_, f in enumerate(rest):
    if n_ and n_ % SEG == 0 and n_ // SEG <= NSEG: a("L_seg%d:" % (n_ // SEG))
    if opt("epoll", 0) and n_ == len(rest) - opt("epoll", 0):
        assert n_ >= SEG * NSEG
        def ep():
            hpoll_setup()
            a("s_buffer_load_dwordx16 s[16:31], %s, s%d glc", sr(SWS, 4), S_PB)
        onwave(opt("pollw", 1), ep)
    f()
stamp(6)
NH0 = opt("nh0", 6)
def hpoll():
    if not opt("epoll", 0): hpoll_setup()
    else: a("s_branch L_sp1")
    a("L_sp:")
    a("s_buffer_load_dwordx16 s[16:31], %s, s%d glc", sr(SWS, 4), S_PB)
    a("L_sp1:")
    a("s_add_u32 s12, s12, 1")
    a("s_waitcnt lgkmcnt(0)")
    a("s_xor_b64 s[10:11], s[16:17], s[8:9]")
    for i in range(1, 7):
        a("s_xor_b64 s[14:15], s[%d:%d], s[8:9]", 16 + 2 * i, 17 + 2 * i)
        a("s_or_b64 s[10:11], s[10:11], s[14:15]")
    a("s_cbranch_scc0 L_fnd")
    a("s_cmp_lt_u32 s12, %d", opt("spn", 64))
    a("s_cbranch_scc1 L_sp")
    poll_issue(14)
    a("s_waitcnt vmcnt(0)")
    poll_check(1)
    a("L_fnd:")
    stamp(5)
def ypublish():
    a("s_waitcnt vmcnt(0)")
    sig(VSY, 96)
    def p_():
        a("v_and_b32 v2, 3, v1")
        a("v_lshl_add_u32 v2, v2, 2, v7")
        lds_wait(2, 112, 3, 0)
        a("s_lshl_b32 s10, s2, 2")
        a("s_add_u32 s10, s10, %d", F_Y)
        flag_store("s10")
    onwave(4, p_)
    stamp(6)
vmh = []; vmc = []

def gemm2(role_, vml):
    helper = role_ == "h"
    HFR = HF if helper else HFC
    R = 8
    VYR, EG = 15, 16
    EY = 176
    VWW = 76
    VRW, VYW, VYG, VGG = 78, 79, 6, 7
    S_YG = 6
    t0, t1, t2, t3 = 2, 3, 4, 5
    AFR = 20
    AC2 = 44
    YL = 180
    A0 = 188
    RR = 16
    def vw(tags):
        idx = [i for i, t in enumerate(vml) if t in tags]
        if not idx: return 63
        return min(63, len(vml) - 1 - max(idx))
    a("v_mov_b32 v%d, v%d", R, VR0)
    a("v_xor_b32 v%d, 64, v%d", R + 1, VR0)
    for m in range(2):
        a("v_add_u32 v%d, %d, v%d", R + 2 + m, 4 * BLK, R + m)
        a("v_add_u32 v%d, %d, v%d", R + 4 + m, 8 * BLK, R + m)
    if helper:
        a("v_add_u32 v%d, s%d, v%d", VWW + 1, S_WLD, VH)
        onwave(opt("pollw", 1), hpoll)
    a("s_waitcnt vmcnt(%d)", 0 if helper else 4)
    stamp(13)
    a("s_barrier")
    stamp(7)
    def reads(step):
        rd, ks = step // 4, step % 4
        blk = WB[rd]
        f = AFR + (step % 3) * 8
        L = []
        for m in range(2):
            for hf in range(2):
                L.append(("ds_read_b64_tr_b16 %s, v%d offset:%d" % (vr(f + 4 * m + 2 * hf, 2), R + 2 * (blk // 4) + m, (blk % 4) * BLK + (ks >> 1) * 4096 + (ks & 1) * 1024 + hf * 2048), (step, m)))
        return L
    def setup():
        a("s_lshl_b32 s10, s%d, 7", S_DB)
        a("v_lshl_add_u32 v%d, v1, 2, s10", VN + 2)
        a("s_lshl_b32 s10, s%d, 2", S_TB)
        a("s_add_u32 s10, s10, %d", F_G - F_Y)
        a("v_mov_b32 v%d, s10", t0)
        a("v_cmp_lt_u32 vcc, 31, v1")
        a("s_mov_b32 s%d, %d", S_PB, F_Y)
        a("v_lshrrev_b32 v%d, 3, v1", VYG)
        a("v_cndmask_b32 v%d, v%d, v%d, vcc", VN + 2, VN + 2, t0)
        a("v_lshlrev_b32 v%d, 12, v%d", VYG, VYG)
        a("v_and_b32 v%d, 7, v1", t1)
        a("v_lshl_add_u32 v%d, v%d, 4, v%d", VYG, t1, VYG)
        a("s_lshl_b32 s%d, s%d, 3", S_YG, S_DB)
        a("s_add_u32 s%d, s%d, s3", S_YG, S_YG)
        a("s_lshl_b32 s%d, s%d, 15", S_YG, S_YG)
        a("s_lshl_b32 s10, s%d, 7", S_TB)
        a("s_add_u32 s%d, s%d, s10", S_YG, S_YG)
        a("s_add_u32 s%d, s%d, %d", S_YG, S_YG, WS_Y)
        a("v_and_b32 v%d, 31, v1", t2)
        a("v_lshlrev_b32 v%d, 2, v%d", VGG, t2)
        a("v_lshrrev_b32 v%d, 5, v1", VYR)
        a("v_lshlrev_b32 v%d, 4, v%d", t3, VYR)
        a("v_lshl_add_u32 v%d, v%d, 10, v%d", VO, t2, t3)
        a("v_bfe_u32 v%d, v1, 2, 2", t2)
        a("v_lshl_add_u32 v%d, v%d, 3, v%d", VYR, VYR, t2)
        a("v_lshlrev_b32 v%d, 7, v%d", VYR, VYR)
        a("v_bfe_u32 v%d, v1, 4, 1", t2)
        a("v_lshl_add_u32 v%d, v%d, 5, v%d", VYR, t2, VYR)
        a("v_and_b32 v%d, 3, v1", t2)
        a("v_lshl_add_u32 v%d, v%d, 3, v%d", VYR, t2, VYR)
        a("s_lshr_b32 s10, s3, 1")
        a("s_lshl_b32 s10, s10, 11")
        a("s_and_b32 s11, s3, 1")
        a("s_lshl_b32 s11, s11, 6")
        a("s_add_u32 s10, s10, s11")
        a("s_add_u32 s10, s10, %d", L_Y)
        a("v_add_u32 v%d, s10, v%d", VYR, VYR)
        a("s_lshl_b32 s10, s3, 10")
        a("s_add_u32 s10, s10, %d", L_Y)
        a("v_add_u32 v%d, s10, v%d", VYW, VH)
        for j in range(4):
            hi_ = (0 if helper else 1) ^ (j >> 1)
            a("s_xor_b32 s10, s%d, %d", S_TQ, (2 * j) & 3)
            a("s_mul_i32 s10, s10, 6144")
            a("s_add_u32 s10, s10, %d", L_R[hi_] + max(j - 1, 0) * 2048)
            a("v_add_u32 v%d, s10, v%d", VRW if j == 0 else RR + j, VH)
    lg = Lg()
    def wwrite(rd, i):
        if i == 0: a("v_add_u32 v%d, %d, v%d", VWW, WB[rd] * BLK, VWW + 1)
        lg.issue("ds_write_b128 v%d, %s offset:%d" % (VWW, vr(WST + WSTO[rd] + 4 * i, 4), i * 1024), ("ww", rd))
    def wdma(rd, i):
        a("s_add_u32 m0, s%d, %d", S_WLD, WB[rd] * BLK + i * 1024)
        if i == 0:
            a("s_lshl_b32 s13, s%d, 4", S_RT + rd)
            a("s_add_u32 s13, s13, s%d", S_WSO)
        else:
            a("s_add_u32 s13, s13, 8192")
        a("buffer_load_dwordx4 v%d, %s, s13 offen lds", VWD, sr(SW, 4))
        vml.append(("W", rd))
    nh = NH0 if helper else NC0
    N1 = opt("n1", 3)
    hload(0, N1, vml, HFR)
    for r in reads(0) + reads(1): lg.issue(*r)
    pend = []
    NW4 = opt("nw4i", 4)
    if helper:
        for i in range(NW4 // 2): wwrite(4, i)
        hload(N1, nh - N1, vml, HFR)
        for i in range(NW4 // 2, NW4): wwrite(4, i)
        pend = [(lambda i=i: wwrite(4, i)) for i in range(NW4, 8)]
        vfill = a.capture(setup)
    else:
        setup()
        hload(N1, nh - N1, vml, HFR)
        vfill = []
    YPS = opt("yps", 15)
    for step in range(28):
        rd, ks = step // 4, step % 4
        f = AFR + (step % 3) * 8
        nxt = reads(step + 2) if step < 26 else []
        for m in range(2):
            d = vr(AC2 + 16 * m, 16)
            lg.need([(step, m)], "vmcnt(%d) " % vw([("H", step)]) if m == 0 else "")
            a("v_mfma_f32_32x32x16_bf16 %s, %s, %s, %s", d, vr(f + 4 * m, 4), vr(HFR + 4 * (step % HRING), 4), d if step else "0")
            for r in nxt[2 * m:2 * m + 2]: lg.issue(*r)
            if nh < 28 and m == 0:
                hload(nh, 1, vml, HFR); nh += 1
            if m == 0 and step == opt("yls", 22):
                a("s_waitcnt vmcnt(%d)", vw([("PY", 0)]))
                poll_check(1)
                a("buffer_load_dwordx4 %s, v%d, %s, s%d offen sc1", vr(YL, 4), VYG, sr(SWS, 4), S_YG)
                a("buffer_load_dword v%d, v%d, %s, s%d offen sc1", EG, VGG, sr(SWS, 4), S_GOFF)
                vml += [("Y", 0), ("Y", 0)]
            if m == 1 and step == YPS:
                assert not vfill
                a("buffer_load_dword v%d, v%d, %s, s%d offen sc1", VN - 1, VN + 2, sr(SWS, 4), S_PB)
                vml.append(("PY", 0))
            if pend and (m == 1 or not W6D): pend.pop(0)()
            for _ in range(4):
                if vfill: lg.run(vfill.pop(0))
        if opt("stg2", 0) and ks == 3 and rd < 5:
            stamp(10 + rd); lg.drained()
        if step == 18:
            for j in range(4):
                vfill.append("v_lshlrev_b32 v%d, 16, v%d" % (A0 + 2 * j, EUD + j))
                vfill.append("v_and_b32 v%d, 0xffff0000, v%d" % (A0 + 2 * j + 1, EUD + j))
        if step == opt("ybar", 1):
            a("s_barrier")
            if not helper:
                def yf():
                    a("s_lshl_b32 s10, s2, 2")
                    a("s_add_u32 s10, s10, %d", F_Y)
                    flag_store("s10")
                onwave(4, yf)
        if step == 9:
            assert not pend
            if helper: lg.need([("ww", 4)])
            a("s_barrier")
            if helper: pend = [(lambda i=i, r=r: wwrite(r, i)) for r in ((5,) if W6D else (5, 6)) for i in range(8)]
            elif W6D: pend = [(lambda i=i: wdma(6, i)) for i in range(8)]
        if step == 17:
            assert not pend
            if helper: lg.need([("ww", 5), ("ww", 6)])
            a("s_barrier")
        if step == 21 and W6D:
            if not helper: a("s_waitcnt vmcnt(%d)", vw([("W", 6)]))
            a("s_barrier")
    assert not pend and not vfill
    stamp(8)
    a("s_waitcnt vmcnt(0)")
    if opt("diag3", 0): stamp(10, True)
    a("ds_write_b128 v%d, %s", VYW, vr(YL, 4))
    for j in range(1, 4):
        for b in range(2):
            a("ds_write_b128 v%d, %s offset:%d", VRW, vr(AC2 + 8 * j + 4 * b, 4), (j - 1) * 2048 + b * 1024)
    for q in range(8):
        a("v_sub_f32 v%d, v%d, v%d", A0 + q, A0 + q, AC2 + q)
        a("v_fmac_f32 v%d, v%d, v%d", AC2 + q, EG, A0 + q)
    a("v_sub_f32 v%d, 1.0, v%d", t1, EG)
    a("s_waitcnt lgkmcnt(0)")
    if opt("diag3", 0): stamp(11, True)
    a("s_barrier")
    if opt("diag3", 0): stamp(12, True)
    for hf in range(2):
        a("ds_read_b64_tr_b16 %s, v%d offset:%d", vr(EY + 2 * hf, 2), VYR, hf * 512)
    for j in range(1, 4):
        for b in range(2):
            a("ds_read_b128 %s, v%d offset:%d", vr(AC2 + 8 * j + 4 * b, 4), RR + j, b * 1024)
    a("s_waitcnt lgkmcnt(6)")
    for j in range(4):
        a("v_lshlrev_b32 v%d, 16, v%d", t2, EY + j)
        a("v_and_b32 v%d, 0xffff0000, v%d", t3, EY + j)
        a("v_fmac_f32 v%d, v%d, v%d", AC2 + 2 * j, EG, t2)
        a("v_fmac_f32 v%d, v%d, v%d", AC2 + 2 * j + 1, EG, t3)
    for j in range(1, 4):
        a("s_waitcnt lgkmcnt(%d)", 2 * (3 - j))
        for q in range(8):
            a("v_fmac_f32 v%d, v%d, v%d", AC2 + q, t1, AC2 + 8 * j + q)
    for j in range(4):
        a("v_cvt_pk_bf16_f32 v%d, v%d, v%d", A0 + j, AC2 + 2 * j, AC2 + 2 * j + 1)
    a("buffer_store_dwordx4 %s, v%d, %s, s%d offen%s", vr(A0, 4), VO, sr(SO, 4), S_OB, ["", " sc1", " nt", " sc0 sc1"][opt("ost", 0)])
    if opt("diag3", 0): stamp(13, True)
    if STAMP: a("s_waitcnt vmcnt(0)")
    stamp(9)
    stamp_out()
    a("s_endpgm")

gemm2("h", vmh)
BG0 = len(a.lines)
a.lines = a.lines[:BC0] + a.lines[BH0:BG0] + a.lines[BC0:BH0]
a("L_g2c:")
gemm2("c", vmc)
n0_ = len(a.lines)
def auxw():
    for f in hl_list(True)[:sum(NW)]: f()
auxw()
auxw_lines = a.lines[n0_:]; a.lines = a.lines[:n0_]
a.lines += aux_lines[:AUXW - AUX0] + auxw_lines + aux_lines[AUXW - AUX0:]
for sp in slow: sp()
a("L_end:")
a("s_endpgm")

hdr = open("gated_mix__ssm_conv_s4__glu_gated_bilinear__prompt.s.ref").read().split("\n")
hdr = [l for l in hdr if l.startswith(";") and "@launch" not in l]
print(wrap(hdr + ["; @launch grid=(256,1,1) block=(512,1,1) lds=163840"], [(NAME, a, 256, 102, 256)]))
sys.stderr.write("nops: %d\n" % a.nops)
```

```python
import sys
from asmlib import *

STAMP = "--stamp" in sys.argv
def opt(name, default):
    for x in sys.argv:
        if x.startswith("--%s=" % name): return int(x.split("=")[1])
    return default

WS_H = 0
WS_UT = 8 << 20
WS_Y = 10 << 20
WS_G = 12 << 20
WS_F = (12 << 20) + 0x10000
F_H2 = (12 << 20) + 0x80000
WS_ST = 13 << 20
WS_BYTES = 14 << 20
F_A, F_H, F_Y, F_G, F_E = WS_F, WS_F + 0x1000, WS_F + 0x2000, WS_F + 0x3000, WS_F + 0x4000

P_U, P_ARE, P_AIM, P_BRE, P_BIM, P_CRE, P_CIM, P_LDT = 16, 18, 20, 22, 24, 26, 28, 30
P_DSK, P_BX, P_WG, P_WU, P_WD, P_GW, P_OUT, P_DBG, P_WS = 32, 34, 36, 38, 40, 42, 44, 46, 48
SX, SG, SU, SWS, SW, SO = 52, 56, 60, 64, 68, 72
S_NONCE, S_ISAUX, S_SPIN, S_PB = 76, 77, 78, 79
S_TB, S_DB, S_KH, S_TQ, S_HB, S_OB = 80, 81, 82, 83, 84, 85
S_W0S = 100
S_RT = 36
S_KR, S_T2 = 0, 1
S_W2K, S_T, S_TM0, S_YB = 86, 87, 88, 89
S_DOFF, S_GOFF = 50, 51
S_WSO, S_WLD = 90, 91
S_HST = 34
S_FH = 35
PCF = opt('pcf', 0)
FSTR = opt('fstr', 1280)
G16 = 1
SPINMAX = opt("spin", 2000000)

BLK = 16384
XB = [0, 1, 2]
GB = [6, 8, 4]
L_TAB = 2 * BLK
TP = 528
TPIECE = 31 * TP
L_U = 2 * BLK
UCH = 512 + 4096
L_K = 3 * BLK
KCH = 64 + 4096
L_CY = L_K + 2 * KCH
CYCH = 129 * 16
L_SY = 4 * BLK - 128
assert L_SY % 32 == 0 and L_SY + 128 <= 4 * BLK
WB = [4, 6, 8, 0, 2, 4, 6]
L_Y = 8 * BLK + 24576
L_R = [8 * BLK, 0]

a = Asm()

class Lg:
    def __init__(self): self.q = []; self.done = 0
    def issue(self, ins, tag=None):
        a(ins); self.q.append(tag)
    def need(self, tags, extra=""):
        idx = [i for i, t in enumerate(self.q) if t in tags]
        last = max(idx) if idx else -1
        if last >= self.done:
            cnt = min(len(self.q) - 1 - last, 15)
            a("s_waitcnt %slgkmcnt(%d)", extra, cnt)
            self.done = len(self.q) - cnt
        elif extra:
            a("s_waitcnt %s", extra)
    def drained(self): self.done = len(self.q)
    def run(self, p):
        n0 = len(a.lines)
        a(p) if isinstance(p, str) else p()
        for ln in a.lines[n0:]:
            if ln.strip().startswith("ds_"): self.q.append(None)

SMASK = opt("smask", 0x7fff)
def stamp(i, force=False):
    if opt("stg", 0) == 2:
        if not force or not (SMASK >> i) & 1: return
    if not STAMP or not ((SMASK >> i) & 1 or force): return
    a("s_memtime s[94:95]")
    a("s_memrealtime s[92:93]")
    a("s_waitcnt lgkmcnt(0)")
    a("s_sub_u32 s94, s94, s98")
    a("v_writelane_b32 v255, s94, %d", i)
    a("v_writelane_b32 v255, s92, %d", i + 16)
def stamp_out():
    if not STAMP: return
    a("s_mov_b64 exec, -1")
    a("v_writelane_b32 v255, s96, 31")
    a("s_getreg_b32 s92, hwreg(HW_REG_XCC_ID)")
    a("s_getreg_b32 s93, hwreg(HW_REG_HW_ID)")
    a("s_and_b32 s92, s92, 15")
    a("s_lshl_b32 s93, s93, 4")
    a("s_or_b32 s92, s92, s93")
    a("v_writelane_b32 v255, s92, 15")
    a("s_lshl_b32 s92, s2, 3")
    a("s_add_u32 s92, s92, s3")
    a("s_lshl_b32 s92, s92, 7")
    a("s_add_u32 s92, s92, %d", WS_ST)
    a("v_mbcnt_lo_u32_b32 v254, -1, 0")
    a("v_mbcnt_hi_u32_b32 v254, -1, v254")
    a("v_lshlrev_b32 v253, 2, v254")
    a("s_mov_b64 exec, 0xffffffff")
    a("buffer_store_dword v255, v253, %s, s92 offen", sr(SWS, 4))

def cmul(d, x, y, plain):
    if plain:
        return ["v_mul_f32 v%d, v%d, v%d" % (d, x, y), "v_mul_f32 v%d, v%d, v%d" % (d + 1, x + 1, y),
                "v_fma_f32 v%d, -v%d, v%d, v%d" % (d, x + 1, y + 1, d), "v_fmac_f32 v%d, v%d, v%d" % (d + 1, x, y + 1)]
    return ["v_pk_mul_f32 %s, %s, %s op_sel_hi:[1,0]" % (vr(d, 2), vr(x, 2), vr(y, 2)),
            "v_pk_fma_f32 %s, %s, %s, %s op_sel:[1,1,0] op_sel_hi:[0,1,1] neg_lo:[1,0,0]" % (vr(d, 2), vr(x, 2), vr(y, 2), vr(d, 2))]
def il(x, y):
    o = []
    for i in range(max(len(x), len(y))):
        if i < len(x): o.append(x[i])
        if i < len(y): o.append(y[i])
    return o

VH = 240
VWD = 241
VR0 = 242
VSY = 243
VN = 250
PVA, PVB, PVC, PVY = 2, 3, 4, 5
KA, KBa, KW = 152, 153, 154
VZ = 235
KB = 160
KP = 204
KF = 160
KD = 236
VUL = 244

def kgen_setup():
    a("s_lshr_b32 s10, s3, 2")
    a("s_lshl_b32 s11, s2, 1")
    a("s_add_u32 s11, s11, s10")
    a("s_and_b32 s12, s3, 1")
    a("s_lshl_b32 s13, s11, 8")
    a("s_lshl_b32 s12, s12, 7")
    a("s_add_u32 s13, s13, s12")
    a("v_lshl_add_u32 v%d, v1, 1, s13", KB + 8)
    a("s_lshl_b32 s11, s11, 1")
    a("v_mov_b32 v%d, s11", KB + 9)
    for i in range(7): a("v_mov_b32 v%d, 0", KB + i)
    a("s_bitcmp1_b32 s3, 1")
    a("s_cselect_b64 s[14:15], -1, 0")
def kgen_loads():
    a("global_load_short_d16_hi v%d, v%d, %s", KB + 6, KB + 9, sr(P_LDT, 2))
    for i, p in enumerate([P_ARE, P_AIM, P_BRE, P_BIM, P_CRE, P_CIM]):
        a("global_load_short_d16_hi v%d, v%d, %s%s", KB + i, KB + 8, sr(p, 2), " nt" if opt("pnt", 1) else "")
    return 7
def rowpos(m): return 16 + (2 * m if m <= 7 else 2 * (m - 8) + 1)
def kgen_valu(plain_tail):
    L = []
    A_, B_, BR, BI, CR, CI, LD, T0, T1, T2 = [KB + i for i in range(10)]
    W, E1, E2, E4, E8, E128, E256, E512, P, X0, X1, R0, R1, RB, Y0, Z0 = [KB + 10 + 2 * i for i in range(16)]
    L.append("v_mul_f32 v%d, 0x3fb8aa3b, v%d" % (T0, LD))
    L.append("v_mov_b32 v%d, 0x3fb8aa3b" % T2)
    L.append("v_fma_f32 v%d, v%d, v%d, -v%d" % (T1, LD, T2, T0))
    L.append("v_fmac_f32 v%d, 0x32a57060, v%d" % (T1, LD))
    L.append("v_exp_f32 v%d, v%d" % (T0, T0))
    L.append("v_mul_f32 v%d, 0x3f317218, v%d" % (T1, T1))
    L.append("v_fmac_f32 v%d, v%d, v%d" % (T0, T0, T1))
    L.append("v_cvt_pk_bf16_f32 v%d, v%d, v%d" % (T0, T0, T0))
    L.append("v_and_b32 v%d, 0xffff0000, v%d" % (T0, T0))
    for r in (A_, B_, BR, BI):
        L.append("v_mul_f32 v%d, v%d, v%d" % (r, T0, r))
    L.append("v_mul_f32 v%d, 0x3fb8aa3b, v%d" % (A_, A_))
    L.append("v_mul_f32 v%d, 0.15915494, v%d" % (B_, B_))
    o1 = ["v_exp_f32 v%d, v%d" % (T0, A_), "v_fract_f32 v%d, v%d" % (T1, B_),
          "v_cos_f32 v%d, v%d" % (E1, T1), "v_sin_f32 v%d, v%d" % (E1 + 1, T1),
          "v_mul_f32 v%d, v%d, v%d" % (E1, T0, E1), "v_mul_f32 v%d, v%d, v%d" % (E1 + 1, T0, E1 + 1)]
    o2 = ["v_mul_f32 v%d, 0x43000000, v%d" % (T2, A_), "v_mul_f32 v%d, 0x43000000, v%d" % (LD, B_),
          "v_exp_f32 v%d, v%d" % (T2, T2), "v_fract_f32 v%d, v%d" % (LD, LD),
          "v_cos_f32 v%d, v%d" % (E128, LD), "v_sin_f32 v%d, v%d" % (E128 + 1, LD),
          "v_mul_f32 v%d, v%d, v%d" % (E128, T2, E128), "v_mul_f32 v%d, v%d, v%d" % (E128 + 1, T2, E128 + 1)]
    L += il(o2, o1 + cmul(W, CR, BR, False))
    L += il(cmul(E2, E1, E1, False) + cmul(E4, E2, E2, False) + cmul(E8, E4, E4, False),
            cmul(E256, E128, E128, False) + cmul(E512, E256, E256, False))
    L.append("v_cndmask_b32 v%d, v%d, v%d, s[14:15]" % (P, E1, E2))
    L.append("v_cndmask_b32 v%d, v%d, v%d, s[14:15]" % (P + 1, E1 + 1, E2 + 1))
    L.append("v_cndmask_b32 v%d, 1.0, v%d, s[14:15]" % (X0, E128))
    L.append("v_cndmask_b32 v%d, 0, v%d, s[14:15]" % (X0 + 1, E128 + 1))
    L.append("v_cndmask_b32 v%d, 1.0, v%d, s[14:15]" % (E256, E256))
    L.append("v_cndmask_b32 v%d, 0, v%d, s[14:15]" % (E256 + 1, E256 + 1))
    L += cmul(RB, W, E256, False)
    rows = [(None, RB, None)]
    cur = RB
    for j in range(1, 8):
        d = R0 if j % 2 else R1
        rows.append((d, cur, P)); cur = d
    Z2 = Y0
    rows += [(Y0, RB, E512), (R1, Y0, E4), (R0, Y0, E8), (Z0, Y0, E512), (R1, Z0, E8), (Z2, Z0, E512), (R0, Z2, E8)]
    cols = [(None, X0, None)]
    cur = X0
    for j in range(1, 16):
        d = X1 if j % 2 else X0
        cols.append((d, cur, E8)); cur = d
    LC, LR = [], []
    for j, (d, s, m) in enumerate(cols):
        if d is not None: LC += cmul(d, s, m, plain_tail)
        x = d if d is not None else s
        LC.append("v_cvt_pk_bf16_f32 v%d, v%d, v%d" % (KP + j, x, x + 1))
    for j, (d, s, m) in enumerate(rows):
        if d is not None: LR += cmul(d, s, m, plain_tail)
        x = d if d is not None else s
        LR.append("v_cvt_pk_bf16_f32 v%d, v%d, -v%d" % (KP + rowpos(j), x, x + 1))
    return L, il(LC, LR)
def kgen_writes():
    return ["ds_write_addtid_b32 v%d offset:%d" % (KP + j, L_TAB + j * TP) for j in range(31)]

def later_addrs(T0, T1, T2):
    a("s_lshr_b32 s10, s3, 1")
    a("s_mul_i32 s10, s10, %d", TPIECE)
    a("s_and_b32 s11, s3, 1")
    a("s_lshl_b32 s11, s11, 8")
    a("s_add_u32 s%d, s10, s11", S_TM0)
    a("s_add_u32 s10, s10, %d", L_TAB)
    a("v_bfe_u32 v%d, v1, 4, 1", T1)
    a("v_lshlrev_b32 v%d, 8, v%d", T1, T1)
    a("v_lshrrev_b32 v%d, 5, v1", T2)
    a("v_lshl_add_u32 v%d, v%d, 7, v%d", T1, T2, T1)
    a("v_and_b32 v%d, 15, v1", T0)
    a("v_mul_u32_u24 v%d, %d, v%d", T2, TP, T0)
    a("v_add3_u32 v%d, v%d, v%d, s10", KBa, T2, T1)
    def lut(v): return sum(x << (4 * i) for i, x in enumerate(v))
    m0 = [0, 1, 2, 3] + [0, 0, 1, 2] + [2, 2, 3, 4] + [4, 5, 6, 7]; h0 = 0x0ff0
    m1 = [8, 9, 10, 10] + [8, 9, 10, 10] + [11, 12, 13, 14] + [11, 12, 13, 14]; h1 = 0xf0f0
    p0 = [rowpos(m) - 16 for m in m0]; p1 = [rowpos(m) - 16 for m in m1]
    a("s_bitcmp1_b32 s3, 0")
    a("s_mov_b32 s11, 0x%x", lut(p0[:8]))
    a("s_cmov_b32 s11, 0x%x", lut(p1[:8]))
    a("s_mov_b32 s12, 0x%x", lut(p0[8:]))
    a("s_cmov_b32 s12, 0x%x", lut(p1[8:]))
    a("s_mov_b32 s13, 0x%x", h0)
    a("s_cmov_b32 s13, 0x%x", h1)
    a("v_cmp_lt_u32 vcc, 7, v%d", T0)
    a("v_mov_b32 v%d, s11", KA)
    a("v_mov_b32 v%d, s12", T2)
    a("v_cndmask_b32 v%d, v%d, v%d, vcc", KA, KA, T2)
    a("v_and_b32 v%d, 7, v1", T2)
    a("v_lshlrev_b32 v%d, 2, v%d", T2, T2)
    a("v_bfe_u32 v%d, v%d, v%d, 4", KA, KA, T2)
    a("v_bfe_u32 v%d, s13, v%d, 1", T2, T0)
    a("v_mad_u32_u24 v%d, v%d, 31, v%d", KA, T2, KA)
    a("v_mul_u32_u24 v%d, %d, v%d", KA, TP, KA)
    a("s_lshr_b32 s10, s3, 2")
    a("s_mul_i32 s11, s10, %d", 2 * TPIECE)
    a("s_add_u32 s11, s11, %d", L_TAB + 16 * TP)
    a("v_add3_u32 v%d, v%d, v%d, s11", KA, KA, T1)
    a("s_mul_i32 s10, s10, %d", KCH)
    a("s_and_b32 s11, s3, 2")
    a("s_lshl_b32 s11, s11, 7")
    a("s_add_u32 s10, s10, s11")
    a("s_add_u32 s10, s10, %d", L_K + 64)
    a("s_bitcmp1_b32 s3, 0")
    a("s_mov_b32 s11, 0x%x", 0 | (64 << 8) | (65 << 16) | (1 << 24))
    a("s_cmov_b32 s11, 0x%x", 0 | (64 << 8) | (128 << 16) | (192 << 24))
    a("s_cselect_b32 s12, 1024, 0")
    a("s_add_u32 s10, s10, s12")
    a("v_lshrrev_b32 v%d, 4, v1", T1)
    a("v_lshlrev_b32 v%d, 3, v%d", T1, T1)
    a("v_bfe_u32 v%d, s11, v%d, 8", T1, T1)
    a("v_lshlrev_b32 v%d, 4, v%d", T0, T0)
    a("v_lshl_add_u32 v%d, v%d, 3, v%d", T0, T1, T0)
    a("v_add_u32 v%d, s10, v%d", KW, T0)
def later_addrs2(T0, T1, T2):
    a("s_bfe_u32 s10, s3, 0x10001")
    a("v_lshrrev_b32 v%d, 5, v1", T0)
    a("v_lshlrev_b32 v%d, 6, v%d", PVA, T0)
    a("v_and_b32 v%d, 31, v1", T1)
    a("v_lshlrev_b32 v%d, 4, v%d", PVB, T1)
    a("v_sub_u32 v%d, v%d, v%d", PVB, PVB, PVA)
    a("v_and_b32 v%d, 1, v1", T2)
    a("v_lshl_add_u32 v%d, v%d, 5, v%d", PVA, T2, PVA)
    a("v_lshrrev_b32 v%d, 2, v%d", T1, T1)
    a("v_lshl_add_u32 v%d, v%d, 1, v%d", T1, T1, T0)
    a("v_lshlrev_b32 v%d, 5, v%d", PVY, T1)
    a("v_lshl_add_u32 v%d, v%d, 4, v%d", PVY, T2, PVY)
    a("s_mul_i32 s11, s10, %d", CYCH)
    a("s_add_u32 s11, s11, %d", L_CY)
    a("v_lshl_add_u32 v%d, v%d, 4, s11", PVC, T1)
    a("v_bfe_u32 v%d, v1, 4, 1", T2)
    a("v_lshl_add_u32 v%d, v%d, 4, v%d", PVA, T2, PVA)
    a("v_bfe_u32 v%d, v1, 1, 1", T2)
    a("v_lshl_add_u32 v%d, v%d, 3, v%d", PVA, T2, PVA)
    a("v_bfe_u32 v%d, v1, 2, 2", T2)
    a("v_lshlrev_b32 v%d, 3, v%d", T2, T2)
    a("v_sub_u32 v%d, v%d, v%d", PVA, PVA, T2)
    a("s_mul_i32 s11, s10, %d", KCH)
    a("s_add_u32 s11, s11, %d", L_K + 32)
    a("v_add_u32 v%d, s11, v%d", PVA, PVA)
    a("s_mul_i32 s11, s10, %d", UCH)
    a("s_add_u32 s11, s11, %d", L_U + 512 - 384)
    a("v_add_u32 v%d, s11, v%d", PVB, PVB)
    a("s_lshl_b32 s11, s2, 1")
    a("s_add_u32 s11, s11, s10")
    a("s_lshl_b32 s11, s11, 12")
    a("s_add_u32 s%d, s11, %d", S_YB, WS_Y)
def later_addrs3(T0, T1, T2):
    if opt("b84", 1):
        a("s_and_b32 s%d, s4, 6", S_TB)
        a("s_lshl_b32 s%d, s%d, 2", S_TB, S_TB)
        a("s_and_b32 s10, s5, 7")
        a("s_add_u32 s%d, s%d, s10", S_TB, S_TB)
        a("s_and_b32 s%d, s4, 1", S_DB)
        a("s_lshl_b32 s%d, s%d, 2", S_DB, S_DB)
        a("s_lshr_b32 s10, s5, 3")
        a("s_add_u32 s%d, s%d, s10", S_DB, S_DB)
    else:
        a("s_lshl_b32 s%d, s4, 2", S_TB)
        a("s_and_b32 s10, s5, 3")
        a("s_add_u32 s%d, s%d, s10", S_TB, S_TB)
        a("s_lshr_b32 s%d, s5, 2", S_DB)
    a("s_lshr_b32 s%d, s3, 2", S_KH)
    a("s_and_b32 s%d, s3, 3", S_TQ)
    a("s_lshl_b32 s10, s%d, 1", S_TB)
    a("s_and_b32 s13, s3, 1")
    a("s_add_u32 s10, s10, s13")
    a("s_mul_i32 s11, s10, 112")
    a("s_lshr_b32 s12, s3, 1")
    a("s_mul_i32 s%d, s12, %d", S_W0S, 448 * 1024)
    a("s_lshl_b32 s13, s13, 15")
    a("s_add_u32 s%d, s%d, s13", S_W0S, S_W0S)
    a("s_mul_i32 s13, s12, 28")
    a("s_add_u32 s11, s11, s13")
    a("s_lshl_b32 s%d, s11, 10", S_HB)
    a("s_lshl_b32 s%d, s10, 7", S_GOFF)
    a("s_add_u32 s%d, s%d, %d", S_GOFF, S_GOFF, WS_G)
    a("s_lshl_b32 s10, s10, 15")
    a("s_lshl_b32 s11, s%d, 7", S_DB)
    a("s_lshl_b32 s12, s12, 5")
    a("s_add_u32 s%d, s11, s12", S_DOFF)
    a("s_add_u32 s%d, s10, s%d", S_OB, S_DOFF)
    a("s_mul_i32 s%d, s%d, %d", S_WSO, S_TQ, 448 * 1024)
    a("s_lshl_b32 s%d, s%d, 13", S_WLD, S_TQ)
    seq = [i % 7 for i in range(16)]
    val = sum(x << (4 * i) for i, x in enumerate(seq))
    a("s_mov_b32 s44, 0x%x", val & 0xffffffff)
    a("s_mov_b32 s45, 0x%x", val >> 32)
    if opt("rot", 4) == 1:
        a("s_lshl_b32 s10, s%d, 2", S_DB)
        a("s_lshr_b64 s[44:45], s[44:45], s10")
    if opt("rot", 4) == 4:
        a("s_and_b32 s10, s5, 7")
        a("s_lshl_b32 s10, s10, 2")
        a("s_lshr_b64 s[44:45], s[44:45], s10")
    if opt("rot", 4) == 5:
        a("s_and_b32 s10, s5, 7")
        a("s_lshr_b32 s13, s5, 3")
        a("s_lshl_b32 s13, s13, 1")
        a("s_add_u32 s10, s10, s13")
        a("s_sub_u32 s13, s10, 7")
        a("s_min_u32 s10, s10, s13")
        a("s_lshl_b32 s10, s10, 2")
        a("s_lshr_b64 s[44:45], s[44:45], s10")
    if opt("rot", 4) == 3:
        a("s_and_b32 s10, s5, 1")
        a("s_lshl_b32 s10, s10, 4")
        a("s_lshr_b64 s[44:45], s[44:45], s10")
    if opt("rot", 4) == 2:
        a("s_and_b32 s10, s5, 3")
        a("s_lshl_b32 s10, s10, 3")
        a("s_lshr_b64 s[44:45], s[44:45], s10")
    for rd in range(7):
        a("s_bfe_u32 s10, s44, 0x%x", (3 << 16) | (4 * rd))
        a("s_lshl_b32 s%d, s10, 12", S_RT + rd)
    a("v_lshlrev_b32 v%d, 4, v1", VH)
    a("v_lshrrev_b32 v%d, 3, v1", T0)
    a("v_lshlrev_b32 v%d, 10, v%d", T0, T0)
    a("v_bfe_u32 v%d, v1, 4, 1", T1)
    a("v_lshlrev_b32 v%d, 2, v%d", T1, T1)
    a("v_and_b32 v%d, 7, v1", T2)
    a("v_xor_b32 v%d, v%d, v%d", T2, T2, T1)
    a("v_lshl_add_u32 v%d, v%d, 4, v%d", T0, T2, T0)
    a("v_add_u32 v%d, s11, v%d", VWD, T0)
    a("v_lshrrev_b32 v%d, 5, v1", T0)
    a("v_bfe_u32 v%d, v1, 2, 2", T1)
    a("v_lshl_add_u32 v%d, v%d, 2, v%d", T0, T0, T1)
    a("v_lshlrev_b32 v%d, 7, v%d", T0, T0)
    a("v_bfe_u32 v%d, v1, 3, 1", T1)
    a("v_lshl_add_u32 v%d, v%d, 6, v%d", T0, T1, T0)
    a("v_bfe_u32 v%d, v1, 4, 1", T1)
    a("v_lshl_add_u32 v%d, v%d, 5, v%d", T0, T1, T0)
    a("v_and_b32 v%d, 1, v1", T1)
    a("v_lshl_add_u32 v%d, v%d, 4, v%d", T0, T1, T0)
    a("v_bfe_u32 v%d, v1, 1, 1", T1)
    a("v_lshl_add_u32 v%d, v%d, 3, v%d", T0, T1, T0)
    a("v_xor_b32 v%d, s12, v%d", T0, T0)
    a("s_lshl_b32 s12, s12, 8")
    a("v_add_u32 v%d, s12, v%d", VR0, T0)
    a("s_lshl_b32 s10, s3, 2")
    a("s_add_u32 s10, s10, %d", L_SY)
    a("v_mov_b32 v%d, s10", VSY)

def kreads():
    L = []
    for ks in range(8):
        L.append(("ds_read_b128 %s, v%d offset:%d" % (vr(KF + 8 * ks, 4), KA, ks * 16), ("k", ks)))
        L.append(("ds_read_b128 %s, v%d offset:%d" % (vr(KF + 8 * ks + 4, 4), KBa, ks * 16), ("k", ks)))
    return L
def run_kmfma(lg, fill, per):
    for ks in range(8):
        lg.need([("k", ks)])
        d = vr(KD, 4)
        a("v_mfma_f32_16x16x32_bf16 %s, %s, %s, %s", d, vr(KF + 8 * ks, 4), vr(KF + 8 * ks + 4, 4), d if ks else "0")
        for _ in range(per):
            if fill: lg.run(fill.pop(0))
    for f in fill: lg.run(f)
def kmfma_finish():
    lb = a.label("Lkm1"); le = a.label("Lkme")
    T = KF
    a("s_bitcmp1_b32 s3, 0")
    a("s_cbranch_scc1 %s", lb)
    a("v_cvt_pk_bf16_f32 v%d, v%d, v%d", T, KD, KD + 1)
    a("v_cvt_pk_bf16_f32 v%d, v%d, v%d", T + 1, KD + 2, KD + 3)
    a("ds_write_b64 v%d, %s", KW, vr(T, 2))
    a("s_branch %s", le)
    a(lb + ":")
    a("s_nop 7")
    a("s_mov_b32 s14, 0xaaaaaaaa")
    a("s_mov_b32 s15, 0xaaaaaaaa")
    a("v_cndmask_b32 v%d, v%d, v%d, s[14:15]", T + 12, KD, KD + 1)
    a("v_cndmask_b32 v%d, v%d, v%d, s[14:15]", T + 13, KD + 2, KD + 3)
    a("v_cvt_pk_bf16_f32 v%d, v%d, v%d", T, KD, KD)
    a("v_cvt_pk_bf16_f32 v%d, v%d, v%d", T + 1, KD, KD)
    a("v_cvt_pk_bf16_f32 v%d, v%d, v%d", T + 2, T + 12, KD + 1)
    a("v_cvt_pk_bf16_f32 v%d, v%d, v%d", T + 3, KD + 1, KD + 1)
    a("v_cvt_pk_bf16_f32 v%d, v%d, v%d", T + 4, KD + 2, KD + 2)
    a("v_cvt_pk_bf16_f32 v%d, v%d, v%d", T + 5, KD + 2, KD + 2)
    a("v_cvt_pk_bf16_f32 v%d, v%d, v%d", T + 6, T + 13, KD + 3)
    a("v_cvt_pk_bf16_f32 v%d, v%d, v%d", T + 7, KD + 3, KD + 3)
    a("s_mov_b64 exec, 0xffffffff")
    a("v_cvt_pk_bf16_f32 v%d, v%d, v%d", T + 1, KD, KD + 1)
    a("v_mov_b32 v%d, v%d", T + 2, T + 3)
    a("v_mov_b32 v%d, v%d", T + 3, T + 4)
    a("s_not_b64 exec, exec")
    a("ds_write_b128 v%d, %s offset:1024", KW, vr(T + 4, 4))
    a("s_mov_b64 exec, -1")
    a("ds_write_b128 v%d, %s", KW, vr(T, 4))
    a(le + ":")

def zero_pads_k():
    T = KF + 16
    a("v_mov_b32 v%d, 0", T)
    a("v_bfe_u32 v%d, v1, 4, 1", T + 1)
    a("v_and_b32 v%d, 15, v1", T + 2)
    a("v_mul_u32_u24 v%d, %d, v%d", T + 3, KCH, T + 1)
    a("v_lshl_add_u32 v%d, v%d, 2, v%d", T + 3, T + 2, T + 3)
    a("v_mul_u32_u24 v%d, %d, v%d", T + 4, CYCH, T + 1)
    a("v_lshl_add_u32 v%d, v%d, 2, v%d", T + 4, T + 2, T + 4)
    a("v_lshlrev_b32 v%d, 2, v1", T + 5)
    a("s_mov_b64 exec, 0xffffffff")
    a("ds_write_b32 v%d, v%d offset:%d", T + 3, T, L_K)
    a("ds_write_b32 v%d, v%d offset:%d", T + 4, T, L_CY)
    a("ds_write_b32 v%d, v%d offset:%d", T + 5, T, L_SY)
    a("s_mov_b64 exec, -1")
def zero_pads_u():
    T = KD
    for i in range(4): a("v_mov_b32 v%d, 0", T + i)
    a("v_and_b32 v%d, 31, v1", 233)
    a("v_lshlrev_b32 v%d, 4, v%d", 233, 233)
    a("v_lshrrev_b32 v%d, 5, v1", 234)
    a("v_mul_u32_u24 v%d, %d, v%d", 234, UCH, 234)
    a("v_add_u32 v%d, v%d, v%d", 233, 233, 234)
    a("ds_write_b128 v%d, %s offset:%d", 233, vr(T, 4), L_U)
def sig(vaddr, off):
    a("s_mov_b64 exec, 1")
    a("ds_write_b32 v%d, v6 offset:%d", vaddr, off)
    a("s_mov_b64 exec, -1")
VUL2 = 156
def u_load():
    a("v_lshlrev_b32 v%d, 5, v1", VUL + 4)
    a("s_lshl_b32 s10, s2, 13")
    a("s_lshl_b32 s11, s%d, 11", S_TQ)
    a("s_add_u32 s10, s10, s11")
    a("s_add_u32 s10, s10, %d", WS_UT)
    a("buffer_load_dwordx4 %s, v%d, %s, s10 offen sc1", vr(VUL, 4), VUL + 4, sr(SWS, 4))
    a("buffer_load_dwordx4 %s, v%d, %s, s10 offen offset:16 sc1", vr(VUL2, 4), VUL + 4, sr(SWS, 4))
def u_write():
    a("s_lshl_b32 s11, s%d, 10", S_TQ)
    a("v_add_u32 v%d, s11, v%d", VUL + 4, VH)
    a("ds_write_b128 v%d, %s offset:%d", VUL + 4, vr(VUL, 4), L_U + 512)
    a("ds_write_b128 v%d, %s offset:%d", VUL + 4, vr(VUL2, 4), L_U + UCH + 512)
def onwave(w, fn):
    lb = a.label("Low")
    a("s_cmp_lg_u32 s3, %d", w)
    a("s_cbranch_scc1 %s", lb)
    fn()
    a(lb + ":")
def role(lo, hi):
    l1 = a.label("Lr1"); l2 = a.label("Lr2")
    a("s_cmp_ge_u32 s3, 4")
    a("s_cbranch_scc1 %s", l1)
    if lo is None:
        a.lines[-1] = a.lines[-1].replace("scc1", "scc0")
        hi()
        a(l1 + ":")
        return
    if lo: lo()
    if hi:
        a("s_branch %s", l2)
        a(l1 + ":")
        hi()
        a(l2 + ":")
    else:
        a(l1 + ":")

def nonce_issue():
    a("global_load_dwordx2 %s, v%d, %s sc1", vr(VN, 2), VZ, sr(P_DBG, 2))
slow = []
def nonce_check():
    ok = a.label("Lnok"); lp = a.label("Lnlp")
    a(ok + "r:")
    a("v_readfirstlane_b32 s10, v%d", VN + 1)
    a("v_readfirstlane_b32 s%d, v%d", S_NONCE, VN)
    a("s_cmp_lg_u32 s10, 1")
    a("s_cbranch_scc1 %s", lp)
    a(ok + ":")
    def sp():
        a(lp + ":")
        a("s_add_u32 s%d, s%d, 1", S_SPIN, S_SPIN)
        a("s_cmp_ge_u32 s%d, %d", S_SPIN, SPINMAX)
        a("s_cbranch_scc1 %s", ok)
        a("s_sleep 2")
        a("global_load_dwordx2 %s, v%d, %s sc1", vr(VN, 2), VZ, sr(P_DBG, 2))
        a("s_waitcnt vmcnt(0)")
        a("s_branch %sr", ok)
    slow.append(sp)
def poll_issue(n):
    a("v_min_u32 v%d, %d, v1", VN + 2, n - 1)
    a("v_lshlrev_b32 v%d, 2, v%d", VN + 2, VN + 2)
    a("buffer_load_dword v%d, v%d, %s, s%d offen sc1", VN - 1, VN + 2, sr(SWS, 4), S_PB)
def poll_check(sleep=2):
    ok = a.label("Lpok"); lp = a.label("Lplp")
    a(ok + "r:")
    a("v_cmp_ne_u32 vcc, s%d, v%d", S_NONCE, VN - 1)
    a("s_cmp_lg_u64 vcc, 0")
    a("s_cbranch_scc1 %s", lp)
    a(ok + ":")
    def sp():
        a(lp + ":")
        a("s_add_u32 s%d, s%d, 1", S_SPIN, S_SPIN)
        a("s_cmp_ge_u32 s%d, %d", S_SPIN, SPINMAX)
        a("s_cbranch_scc1 %s", ok)
        if sleep: a("s_sleep %d", sleep)
        a("buffer_load_dword v%d, v%d, %s, s%d offen sc1", VN - 1, VN + 2, sr(SWS, 4), S_PB)
        a("s_waitcnt vmcnt(0)")
        a("s_branch %sr", ok)
    slow.append(sp)
def flag_store(sbase):
    if opt("sflag", 2) & 1:
        a("s_mov_b32 s11, s%d", S_NONCE)
        a("s_buffer_atomic_swap s11, %s, %s", sr(SWS, 4), sbase)
        return
    a("v_mov_b32 v%d, 0", VN)
    a("v_mov_b32 v%d, s%d", VN + 1, S_NONCE)
    a("s_mov_b64 exec, 1")
    a("buffer_store_dword v%d, v%d, %s, %s offen sc1", VN + 1, VN, sr(SWS, 4), sbase)
    a("s_mov_b64 exec, -1")
def lds_wait(vaddr, off, vtmp, sleep=1):
    lp = a.label("Llw"); ok = a.label("Llok")
    a(lp + ":")
    a("ds_read_b32 v%d, v%d offset:%d", vtmp, vaddr, off)
    a("s_add_u32 s%d, s%d, 1", S_SPIN, S_SPIN)
    a("s_waitcnt lgkmcnt(0)")
    a("v_cmp_eq_u32 vcc, 0, v%d", vtmp)
    a("s_cmp_eq_u64 vcc, 0")
    a("s_cbranch_scc1 %s", ok)
    if sleep: a("s_sleep %d", sleep)
    a("s_cmp_lt_u32 s%d, %d", S_SPIN, SPINMAX * 16)
    a("s_cbranch_scc1 %s", lp)
    a(ok + ":")

a("s_cmp_ge_u32 s2, 256")
a("s_cbranch_scc1 L_end")
if STAMP:
    a("s_memrealtime s[96:97]")
    a("s_memtime s[98:99]")
a("s_load_dwordx16 s[16:31], s[0:1], 0")
a("s_load_dwordx16 s[32:47], s[0:1], 64")
a("s_load_dwordx2 s[48:49], s[0:1], 128")
a("v_lshrrev_b32 v2, 6, v0")
a("s_lshr_b32 s5, s2, 3")
if opt("cpf", 1):
    a("s_getpc_b64 s[10:11]")
    a("L_pc:")
    a("s_lshl_b32 s12, s5, 10")
    a("v_lshl_add_u32 v3, v2, 7, s12")
    a("v_and_b32 v4, 1, v0")
    a("v_lshl_add_u32 v3, v4, 6, v3")
    a("v_min_u32 v3, L_end-L_pc, v3")
    a("global_load_dword v19, v3, s[10:11]")
a("v_and_b32 v1, 63, v0")
a("v_readfirstlane_b32 s3, v2")
a("s_and_b32 s4, s2, 7")
kgen_setup()
PRE_WAIT = opt("prewait", 0)
if not PRE_WAIT:
    a("s_waitcnt lgkmcnt(0)")
    kgen_loads()
a("s_mov_b32 s%d, 0", S_SPIN)
a("v_mov_b32 v%d, 0", VZ)
a("v_mov_b32 v%d, 0", VN + 2)
if STAMP: a("v_mov_b32 v255, 0")
a("s_lshr_b32 s6, s4, 1")
a("s_lshl_b32 s6, s6, 2")
a("s_and_b32 s7, s5, 3")
a("s_add_u32 s6, s6, s7")
a("s_and_b32 s7, s4, 1")
a("s_mul_i32 s7, s7, 7")
a("s_lshr_b32 s8, s5, 2")
a("s_add_u32 s7, s7, s8")
a("s_sub_u32 s7, s7, 1")
a("s_and_b32 s8, s3, 1")
a("s_lshr_b32 s9, s3, 1")
VX0, VX1, VW0, VW1 = 4, 5, 6, 7
VXR = 8
VWA, VWB = 12, 13
T0, T1, T2, T3 = 14, 15, 16, 17
a("s_lshl_b32 s10, s6, 7")
a("s_lshl_b32 s11, s3, 4")
a("s_add_u32 s10, s10, s11")
a("s_lshl_b32 s10, s10, 10")
a("v_lshrrev_b32 v%d, 3, v1", T0)
a("v_lshlrev_b32 v%d, 10, v%d", T0, T0)
a("v_lshrrev_b32 v%d, 4, v1", T1)
a("v_and_b32 v%d, 7, v1", T2)
a("v_xor_b32 v%d, v%d, v%d", T2, T2, T1)
a("v_lshl_add_u32 v%d, v%d, 4, v%d", T0, T2, T0)
a("v_add_u32 v%d, s10, v%d", VX0, T0)
a("v_xor_b32 v%d, 64, v%d", VX1, VX0)
a("v_add_u32 v%d, 0x2000, v%d", VX1, VX1)
a("s_and_b32 s12, s3, 3")
a("s_mul_i32 s10, s12, %d", 4 * 3584)
a("s_lshl_b32 s11, s7, 8")
a("s_add_u32 s10, s10, s11")
a("v_mul_u32_u24 v%d, 3584, v%d", T0, T1)
if G16:
    a("s_and_b32 s11, s3, 2")
    a("s_lshl_b32 s11, s11, 2")
    a("v_lshl_or_b32 v%d, v%d, 1, s11", T2, T1)
else:
    a("v_lshlrev_b32 v%d, 2, v%d", T2, T1)
a("v_and_b32 v%d, 15, v1", T3)
a("v_xor_b32 v%d, v%d, v%d", T2, T2, T3)
a("v_lshl_add_u32 v%d, v%d, 4, v%d", T0, T2, T0)
a("v_add_u32 v%d, s10, v%d", VW0, T0)
S_RO, S_LO = 60, 80
S_LO = 20
for j in range(4):
    a("s_add_u32 s10, s5, %d", j if opt("share", 1) else 0) if opt("share", 1) else a("s_mov_b32 s10, %d", j)
    a("s_and_b32 s10, s10, 3")
    a("s_mul_i32 s%d, s10, %d", S_RO + j, 16 * 3584)
a("s_lshl_b32 s%d, s3, 11", S_W2K)
CC = opt("cc", 8)
S_KO = 99 if not STAMP else 93
if CC < 8:
    NR = 8 - CC
    a("s_and_b32 s10, s5, 3")
    a("s_mul_i32 s10, s10, %d", opt("rm", 2))
    a("s_lshr_b32 s11, s5, 2")
    a("s_add_u32 s10, s10, s11")
    a("s_mul_i32 s11, s10, %d", (65536 + NR - 1) // NR)
    a("s_lshr_b32 s11, s11, 16")
    a("s_mul_i32 s11, s11, %d", NR)
    a("s_sub_u32 s10, s10, s11")
    seq = [CC + (i % NR) for i in range(16)]
    val = sum(x << (4 * i) for i, x in enumerate(seq))
    a("s_mov_b32 s12, 0x%x", val & 0xffffffff)
    a("s_mov_b32 s13, 0x%x", val >> 32)
    a("s_lshl_b32 s10, s10, 2")
    a("s_lshr_b64 s[12:13], s[12:13], s10")
    a("s_lshl_b32 s12, s12, %d", 4 * CC) if CC else None
    a("s_or_b32 s%d, s12, 0x%x", S_KO, sum(i << (4 * i) for i in range(CC)))
else:
    a("s_mov_b32 s%d, 0x76543210", S_KO)
a("s_and_b32 s10, s4, %d", opt("krot", 6))
a("s_mul_i32 s10, s10, 0x11111111")
a("s_add_u32 s%d, s%d, s10", S_KO, S_KO)
for r, n in ((SX, 2048 * 1024), (SG, 512 * 3584), (SWS, WS_BYTES), (SW, 1792 * 1024), (SO, 2048 * 1024)):
    a("s_mov_b32 s%d, 0x%x", r + 2, n)
    a("s_mov_b32 s%d, 0x20000", r + 3)
a("s_cmp_lt_u32 s5, 4")
a("s_cselect_b32 s%d, 1, 0", S_ISAUX)
if PRE_WAIT:
    a("s_waitcnt lgkmcnt(0)")
    kgen_loads()
def srd_base(r, p):
    a("s_mov_b32 s%d, s%d", r, p)
    a("s_and_b32 s%d, s%d, 0xffff", r + 1, p + 1)
srd_base(SX, P_U)
a("s_mov_b32 s%d, s%d", S_KR, S_KO)
a("s_cmp_lg_u32 s%d, 0", S_ISAUX)
a("s_cbranch_scc1 L_aux")

vm = []
def vmwait(tags):
    idx = [i for i, t in enumerate(vm) if t in tags]
    return len(vm) - 1 - max(idx)
def dma1(stage, j, m0r=None):
    slot = stage % 3
    if j == 0 or (j == 3 and stage < 2):
        a("s_bfe_u32 s%d, s%d, 0x%x", S_T, S_KR, (3 << 16) | (4 * stage))
        a("s_mul_i32 s%d, s%d, %d", S_T2, S_T, 64 * 3584)
        a("s_lshl_b32 s%d, s%d, 7", S_T, S_T)
    if j in (1, 2):
        a("s_add_u32 m0, s%d, %d", S_W2K, XB[slot] * BLK + (j - 1) * 1024)
        a("buffer_load_dwordx4 v%d, %s, s%d offen lds", VX0 + j - 1, sr(SX, 4), S_T)
    else:
        p = 0 if j == 0 else j - 2
        a("s_add_u32 m0, s%d, %d", S_LO + p, GB[slot] * BLK)
        a("s_add_u32 s%d, s%d, s%d", S_T3, S_T2, S_RO + p)
        a("buffer_load_dwordx4 v%d, %s, s%d offen%s lds", VW0, sr(SG, 4), S_T3, " nt" if opt("wnt", 0) else "")
    if m0r is not None: a("s_mov_b32 m0, s%d", m0r)
    vm.append(("G1", stage))
S_T3 = 24
vm += [("KP", 0)] * 7
a("s_cmp_ge_u32 s3, 4")
a("s_cselect_b32 s%d, s%d, s%d", SG, P_WU, P_WG)
a("s_cselect_b32 s%d, s%d, s%d", SG + 1, P_WU + 1, P_WG + 1)
a("s_and_b32 s%d, s%d, 0xffff", SG + 1, SG + 1)
a("s_lshr_b32 s10, s3, 2")
a("s_lshl_b32 s10, s10, 14")
a("s_and_b32 s11, s3, 3")
a("s_lshl_b32 s11, s11, 10")
a("s_add_u32 s10, s10, s11")
for j in range(4):
    a("s_add_u32 s11, s5, %d", j) if opt("share", 1) else a("s_mov_b32 s11, %d", j)
    a("s_and_b32 s11, s11, 3")
    a("s_lshl_b32 s11, s11, 12")
    a("s_add_u32 s%d, s10, s11", S_LO + j)
    if j == 0: dma1(0, 0); dma1(0, 1); dma1(0, 2)
stamp(11)
def common_srds():
    srd_base(SWS, P_WS); srd_base(SW, P_WD); srd_base(SO, P_OUT)
later_addrs(T0, T1, T2)
for j in range(3): dma1(1, j)
def g1_read_addrs():
    t0, t1, t2 = 18, 19, 20
    a("v_and_b32 v%d, 15, v1", t0)
    a("v_lshrrev_b32 v%d, 4, v1", t1)
    a("v_bfe_u32 v%d, v1, 1, 3", t2)
    a("v_xor_b32 v%d, v%d, v%d", t2, t2, t1)
    a("v_lshlrev_b32 v%d, 7, v%d", t0, t0)
    a("v_lshl_add_u32 v%d, v%d, 4, v%d", t0, t2, t0)
    a("s_lshl_b32 s10, s8, 13")
    a("v_add_u32 v%d, s10, v%d", VXR, t0)
    a("v_xor_b32 v%d, 64, v%d", VXR + 1, VXR)
    a("v_bfe_u32 v%d, v1, 2, 2", t0)
    a("v_lshl_add_u32 v%d, v%d, 3, v%d", t0, t1, t0)
    a("v_lshlrev_b32 v%d, 8, v%d", t0, t0)
    a("v_bfe_u32 v%d, v1, 2, 3", t2)
    a("s_and_b32 s10, s3, 2")
    a("s_lshl_b32 s10, s10, 1")
    a("v_xor_b32 v%d, s10, v%d", t2, t2)
    a("v_lshl_add_u32 v%d, v%d, 5, v%d", t0, t2, t0)
    a("v_and_b32 v%d, 3, v1", t2)
    a("v_lshl_add_u32 v%d, v%d, 3, v%d", t0, t2, t0)
    a("v_add_u32 v10, %d, v%d", 4 * BLK, t0)
    for m in range(1, 4): a("v_xor_b32 v%d, %d, v10", 10 + m, m << 5)
    for m in range(4): a("v_add_u32 v%d, %d, v%d", 14 + m, 4 * BLK, 10 + m)
def late_setup(comp, T0, T1, T2):
    common_srds()
    if comp:
        a("s_lshl_b32 s10, s6, 2")
        a("s_lshl_b32 s11, s8, 1")
        a("s_add_u32 s10, s10, s11")
        a("s_mul_i32 s10, s10, 112")
        a("s_lshl_b32 s11, s7, 3")
        a("s_add_u32 s10, s10, s11")
        a("s_lshl_b32 s11, s9, 2")
        a("s_add_u32 s10, s10, s11")
        a("s_lshl_b32 s%d, s10, 10", S_HST)
        a("s_mul_i32 s10, s6, %d", FSTR * (16 if PCF else 1))
        a("s_lshl_b32 s11, s7, 2")
        a("s_add_u32 s10, s10, s11")
        a("s_add_u32 s%d, s10, %d", S_FH, F_H2)
    later_addrs3(T0, T1, T2)
FX = 20
FA = 52
NAR = 10
ACC = 92
AORD = [(gu, m) for m in range(4) for gu in range(2)]
def xreads(step):
    st, ks = step // 2, step % 2
    return [("ds_read_b128 %s, v%d offset:%d" % (vr(FX + (step % 2) * 16 + 4 * tt, 4), VXR + ks, XB[st % 3] * BLK + tt * 2048), (step, "x", tt)) for tt in range(4)]
def TS(n):
    if n >= 112 and opt("psplit", 1):
        k = n - 112
        return 14 + ((k >> 2) & 1), (k & 3) + 4 * (k >> 3)
    return n // 8, n % 8
def areads(n):
    step, i = TS(n)
    st, ks = step // 2, step % 2
    gu, m = AORD[i]
    blk = GB[st % 3] + gu
    reg, rel = (10, blk - 4) if blk < 8 else (14, blk - 8)
    return [("ds_read_b64_tr_b16 %s, v%d offset:%d" % (vr(FA + 4 * (n % NAR) + 2 * hf, 2), reg + m, rel * BLK + ks * 8192 + hf * 1024), ("a", n)) for hf in range(2)]
def kgen_all(dmas):
    khead, ktail = kgen_valu(False)
    for i in khead: a(i)
    if opt("diag1", 0): stamp(7, True)
    a("s_mov_b32 m0, s%d", S_TM0)
    wr = {w_.split()[1]: w_ for w_ in kgen_writes()}
    q = []
    n = len(ktail); k = 0
    for n_, i in enumerate(ktail):
        a(i)
        if q and n_ % 1 == 0 and len(q) > 1: a(q.pop(0))
        if i.startswith("v_cvt"): q.append(wr[i.split()[1].rstrip(",")])
        if dmas and n_ >= opt("d1start", 40) and (n_ - opt("d1start", 40)) % opt("d1step", 20) == 0: dmas.pop(0)()
    for w_ in q: a(w_)
    for d in dmas: d()
def touch(stage):
    a("s_bfe_u32 s10, s%d, 0x%x", S_KR, (3 << 16) | (4 * stage))
    a("s_mul_i32 s10, s10, %d", 64 * 3584)
    a("s_add_u32 s10, s10, s%d", S_RO)
    a("buffer_load_dwordx4 v[52:55], v%d, %s, s10 offen", VW0, sr(SG, 4))
    vm.append(("T", 0))
if opt("stub", 1):
    for k_ in (0, 2):
        a("s_cmp_eq_u32 s3, %d", k_)
        a("s_cbranch_scc1 L_st%d", k_)
a("L_stret:")
a("s_waitcnt vmcnt(%d)", vmwait([("KP", 0)]))
stamp(0)
kgen_all([(lambda j=j: dma1(0, j, S_TM0)) for j in range(3, 6)])
stamp(14)
a("s_waitcnt lgkmcnt(0)")
a("s_barrier")
stamp(12)
lg = Lg()
for r in kreads(): lg.issue(*r)
a.srd(28, P_WG, 512 * 3584)
def ld_setup():
    a("v_subrev_u32 v8, 0x10000, v%d", VX0)
    a("v_subrev_u32 v9, 0x10000, v%d", VX1)
if opt("s1early", 1):
    for j in range(3, 6): dma1(1, j)
role(g1_read_addrs, ld_setup)
run_kmfma(lg, [], 0)
if not opt("s1early", 1):
    for j in range(3, 6): dma1(1, j)
a("s_waitcnt vmcnt(%d)", vmwait([("G1", 0)]))
a("s_barrier")
stamp(1)
class Raw:
    def __init__(self, f): self.f = f
a("s_cmp_ge_u32 s3, 4")
a("s_cbranch_scc1 L_load")
WST = 144
WSTO = {5: 0, 4: 32, 6: 64}
W4T = opt("w4t", 0)
W2T = opt("w2t", 0)
W1T = opt("w1t", 1)
def stage_w(rd, i0=0, n=8):
    a("s_lshl_b32 s13, s%d, 4", S_RT + rd)
    a("s_add_u32 s13, s13, s%d", S_WSO)
    if i0: a("s_add_u32 s13, s13, %d", i0 * 8192)
    for i in range(i0, i0 + n):
        a("buffer_load_dwordx4 %s, v%d, %s, s13 offen", vr(WST + WSTO[rd] + 4 * i, 4), VWD, sr(SW, 4))
        if i < i0 + n - 1: a("s_add_u32 s13, s13, 8192")
EUD = 244
def eops_load(EU=56, ED=60, t1=64, t2=65, t3=66):
    a("v_and_b32 v%d, 31, v1", t1)
    a("v_lshrrev_b32 v%d, 5, v1", t2)
    a("v_lshlrev_b32 v%d, 4, v%d", t3, t2)
    a("v_lshl_add_u32 v%d, v%d, 10, v%d", t1, t1, t3)
    a("buffer_load_dwordx4 %s, v%d, %s, s%d offen", vr(EU, 4), t1, sr(SX, 4), S_OB)
    a("v_add_u32 v%d, s%d, v%d", t3, S_DOFF, t3)
    a("global_load_dwordx4 %s, v%d, %s", vr(ED, 4), t3, sr(P_DSK, 2))
def eops_calc(EU=56, ED=60, t1=64, t2=65, t3=66):
    for j in range(4):
        a("v_lshlrev_b32 v%d, 16, v%d", t1, EU + j)
        a("v_lshlrev_b32 v%d, 16, v%d", t2, ED + j)
        a("v_and_b32 v%d, 0xffff0000, v%d", EU + j, EU + j)
        a("v_and_b32 v%d, 0xffff0000, v%d", ED + j, ED + j)
        a("v_mul_f32 v%d, v%d, v%d", t1, t1, t2)
        a("v_mul_f32 v%d, v%d, v%d", t2, EU + j, ED + j)
        a("v_cvt_pk_bf16_f32 v%d, v%d, v%d", EUD + j, t1, t2)
def dma_w(rd, i):
    a("s_lshl_b32 s10, s3, 12")
    a("s_add_u32 m0, s10, %d", WB[rd] * BLK + i * 1024)
    a("s_lshl_b32 s10, s%d, 4", S_RT + rd)
    a("s_add_u32 s10, s10, s%d", S_W0S)
    a("s_add_u32 s10, s10, %d", i * 8192)
    a("buffer_load_dwordx4 v%d, %s, s10 offen lds", VWD, sr(SW, 4))
    vm.append(("W0", 0))
S_PFI = 101
if opt("cprio", 2): a("s_setprio %d", opt("cprio", 2))
lg = Lg()
for r in areads(0) + xreads(0): lg.issue(*r)
for n in range(1, 8):
    for r in areads(n): lg.issue(*r)
    if n == 3: kmfma_finish()
a("s_waitcnt lgkmcnt(8)") if False else None
kv = a.capture(late_setup, True, 18, 19, 7)
ECT = dict(EU=220, ED=224, t1=228, t2=229, t3=230)
def epilogue(p):
    for tt in range(4):
        dst = ACC + ((4 + 2 * p) * 4 + tt) * 4
        for m in (2 * p, 2 * p + 1):
            g = ACC + (m * 4 + tt) * 4; u = ACC + ((4 + m) * 4 + tt) * 4
            if (opt("eplain", 3) >> p) & 1:
                for q_ in range(4): a("v_mul_f32 v%d, v%d, v%d", g + q_, g + q_, u + q_)
            else:
                for q_ in range(2): a("v_pk_mul_f32 %s, %s, %s", vr(g + 2 * q_, 2), vr(g + 2 * q_, 2), vr(u + 2 * q_, 2))
        for m in (2 * p, 2 * p + 1):
            g = ACC + (m * 4 + tt) * 4
            for q_ in range(2): a("v_cvt_pk_bf16_f32 v%d, v%d, v%d", dst + 2 * (m & 1) + q_, g + 2 * q_, g + 2 * q_ + 1)
        a("buffer_store_dwordx4 %s, v18, %s, s%d offen offset:%d sc1", vr(dst, 4), sr(SWS, 4), S_HST if tt < 2 else 10, 2048 * p + 256 * (tt & 1))
epi = [a.capture(epilogue, 0), a.capture(epilogue, 1)]
AHEAD = 8
for step in range(16):
    st, ks = step // 2, step % 2
    q = []
    if step < 15:
        sched = {}
        for i in range(8):
            g_ = max(0, 4 * (i - (NAR - 8)) + 3)
            sched.setdefault(g_, []).extend(areads((step + 1) * 8 + i))
        xq = xreads(step + 1)
    order = [(i, tt if (i % 2 == 0 or not opt("snake", 0)) else 3 - tt) for i in range(8) for tt in range(4)]
    for g, (i, tt) in enumerate(order):
        n = step * 8 + i
        rs, ri = TS(n)
        gu, m = AORD[ri]
        d = vr(ACC + ((gu * 4 + m) * 4 + tt) * 4, 4)
        lg.need([("a", n), (rs, "x", tt)])
        a("v_mfma_f32_16x16x32_bf16 %s, %s, %s, %s", d, vr(FA + 4 * (n % NAR), 4), vr(FX + (rs % 2) * 16 + 4 * tt, 4), d if step else "0")
        if step < 15: q += sched.pop(g, [])
        if step == 15 and g >= (2 if opt("psplit", 1) else 18) and not kv:
            for _ in range(opt("epg", 2 if opt("psplit", 1) else 3)):
                if epi[0]: a(epi[0].pop(0))
        if q: lg.issue(*q.pop(0))
        elif step < 15 and xq: lg.issue(*xq.pop(0))
        elif kv:
            k_ = kv.pop(0)
            k_() if callable(k_) else a(k_)
            if kv and not callable(k_) and k_.startswith("s_") and not callable(kv[0]) and opt("s2", 1): a(kv.pop(0))
    assert not q and (step == 15 or not xq)
    if ks == 0:
        a("s_waitcnt %slgkmcnt(0)", "vmcnt(0) " if st == 0 else ""); lg.drained()
        a("s_barrier")
        if opt("stg", 0): stamp([4, 5, 6, 7, 8, 10, 13, 14][st], True)
        if st == 5:
            assert not kv, len(kv)
            kv = a.capture(eops_load, *[ECT[k] for k in ("EU", "ED", "t1", "t2", "t3")])
            kv += ["v_lshrrev_b32 v18, 4, v1", "v_lshlrev_b32 v18, 9, v18", "v_and_b32 v19, 15, v1", "v_lshl_add_u32 v18, v19, 4, v18",
                   "s_add_u32 s10, s%d, %d" % (S_HST, 112 * 1024)]
        if st == 6:
            kv = ["s_waitcnt vmcnt(0)"] + a.capture(eops_calc, *[ECT[k] for k in ("EU", "ED", "t1", "t2", "t3")])
        if st == 7:
            a("ds_read_b32 v%d, v%d offset:%d", VN, VZ, L_SY + 100)
assert not kv
stamp(2)
for k_ in epi[0] + epi[1]: a(k_)
a("s_waitcnt lgkmcnt(0)")
a("v_readfirstlane_b32 s%d, v%d", S_NONCE, VN)

def loader():
    SG2 = 28
    VX2 = 8
    a("L_load:")
    def stage(s_, part=3):
        slot = s_ % 3
        a("s_bfe_u32 s%d, s%d, 0x%x", S_T, S_KR, (3 << 16) | (4 * s_))
        a("s_mul_i32 s%d, s%d, %d", S_T2, S_T, 64 * 3584)
        a("s_lshl_b32 s%d, s%d, 7", S_T, S_T)
        def wp(p):
            a("s_add_u32 s%d, s%d, s%d", S_T3, S_T2, S_RO + p)
            for m in range(2):
                a("s_add_u32 m0, s%d, %d", S_LO + p, (GB[slot] - 1 + m) * BLK)
                a("buffer_load_dwordx4 v%d, %s, s%d offen lds", VW0, sr([SG2, SG][m], 4), S_T3)
                vm.append(("G1", s_))
        if part & 1: wp(0)
        for h_ in range(2 if part & 1 else 0):
            for i in range(2):
                a("s_add_u32 m0, s%d, %d", S_W2K, (XB[slot] * BLK + i * 1024 - (1 - h_) * 8192) & 0xffffffff)
                a("buffer_load_dwordx4 v%d, %s, s%d offen lds", [VX2, VX0][h_] + i, sr(SX, 4), S_T)
                vm.append(("G1", s_))
        if part & 2:
            for p in range(1, 4): wp(p)
    wl = hl_list(True)
    def wloads(n):
        for _ in range(n):
            wl.pop(0)(); vm.append(("W", 0))
    SP = opt("sp", 2)
    stage(2, 1 if SP else 3)
    kmfma_finish()
    ls = a.capture(late_setup, False, T0, T1, T2)
    for st in range(8):
        if st < 7: a("s_waitcnt vmcnt(%d) lgkmcnt(0)", vmwait([("G1", st + 1)]))
        else: a("s_waitcnt lgkmcnt(0)")
        a("s_barrier")
        if st < SP and st + 2 <= 7: stage(st + 2, 2)
        if st + 3 <= 7: stage(st + 3, 1 if st + 1 < SP else 3)
        if st == 0: onwave(4, zero_pads_k)
        if 1 <= st <= 3:
            n_ = (len(ls) + 3 - st) // (4 - st)
            for k_ in ls[:n_]: a(k_)
            ls = ls[n_:]
        if st == 4:
            later_addrs2(T0, T1, T2)
            conv_prelude()
            if UE:
                a("s_mov_b32 s%d, %d", S_PB, F_A)
                poll_issue(32); vm.append(("X", 0))
                nonce_issue(); vm.append(("X", 0))
        def ucheck():
            a("s_waitcnt vmcnt(%d)", vmwait([("X", 0)]))
            nonce_check()
            def wn():
                a("s_mov_b64 exec, 1")
                a("ds_write_b32 v%d, v%d offset:%d", VZ, VN, L_SY + 100)
                a("s_mov_b64 exec, -1")
            onwave(4, wn)
            a("v_cmp_ne_u32 vcc, s%d, v%d", S_NONCE, VN - 1)
            a("s_cmp_lg_u64 vcc, 0")
            a("s_cselect_b32 s%d, 1, 0", S_PFI)
            a("s_cbranch_scc1 L_udef")
            u_load()
            a("L_udef:")
            vm.append(("U", 0))
        if st == 5:
            eops_load(); vm.append(("E", 0)); vm.append(("E", 0))
            onwave(5, zero_pads_u)
            if UE: ucheck()
            else:
                a("s_mov_b32 s%d, %d", S_PB, F_A)
                poll_issue(32); vm.append(("X", 0))
                nonce_issue(); vm.append(("X", 0))
            wloads(NW[1])
        if st == 6:
            if not UE: ucheck()
            else:
                a("s_waitcnt vmcnt(%d)", vmwait([("U", 0)]))
                u_write()
                eops_calc()
            wloads(NW[2])
    stamp(2)
    wloads(min(NW[3], 8))
    if not UE:
        a("s_cmp_eq_u32 s%d, 0", S_PFI)
        a("s_cbranch_scc1 L_uok")
        poll_check(4)
        u_load()
        a("s_waitcnt vmcnt(0)")
        a("L_uok:")
        a("s_waitcnt vmcnt(%d)", vmwait([("U", 0)]))
        u_write()
        sig(VSY, 0)
        wloads(NW[3] - min(NW[3], 8))
        eops_calc()
        a("v_and_b32 v19, 3, v1")
        a("v_lshlrev_b32 v19, 2, v19")
        lds_wait(19, L_SY + 16, 18, 0)
    if opt("hold", 0): lds_wait(7, 104, 18, 1)
UE = opt("ue", 0)
def conv_prelude():
    a("v_mov_b32 v6, 1")
    a("v_mov_b32 v7, %d", L_SY)
    a("s_lshl_b32 s10, s%d, 4", S_TQ)
    a("s_add_u32 s10, s10, %d", L_SY + 32)
    a("v_mov_b32 v108, s10")
    a("v_xor_b32 v109, 16, v108")
NW = [0, opt("nw5", 8), opt("nw6", 8), opt("nw7", 0)]
AUX0 = len(a.lines)
HIST0 = list(a.hist)
a("L_aux:")
common_srds()
a("s_lshl_b32 s6, s4, 2")
a("s_add_u32 s6, s6, s5")
PITCH = 1040
GRP = 16 * PITCH
LA1 = 6 * BLK - GRP
LGW = GRP
a("v_lshlrev_b32 v20, 4, v1")
a("s_mov_b32 s9, %d", F_E)
a("buffer_load_dword v12, v%d, %s, s9 offen sc1", VZ, sr(SWS, 4))
a("s_lshl_b32 s7, s6, 16")
a("s_lshl_b32 s8, s3, 13")
a("s_add_u32 s7, s7, s8")
a("s_mul_i32 s8, s3, %d", 8 * PITCH)
a("s_cmp_ge_u32 s3, 2")
a("s_cselect_b32 s10, %d, 0", LA1)
a("s_add_u32 s8, s8, s10")
def xall():
    a("s_and_b32 s11, s3, 3")
    a("s_lshl_b32 s24, s6, 16")
    a("s_lshl_b32 s12, s11, 12")
    a("s_add_u32 s24, s24, s12")
    a("s_mul_i32 s12, s11, %d", 4 * PITCH)
    for g in range(4):
        for j in range(4):
            a("s_add_u32 m0, s12, %d", (LA1 + g * GRP if g else 0) + j * PITCH)
            a("s_add_u32 s13, s24, %d", (16 * g + j) * 1024)
            a("buffer_load_dwordx4 v20, %s, s13 offen lds", sr(SX, 4))
onwave(4, lambda: a("global_load_dwordx4 v[28:31], v20, %s", sr(P_GW, 2)))
role(None, xall)
later_addrs(T0, T1, T2)
a("v_lshrrev_b32 v22, 4, v1")
a("v_bfe_u32 v23, v1, 2, 2")
a("v_lshl_add_u32 v23, v23, 2, v22")
a("v_mul_u32_u24 v23, %d, v23", PITCH)
a("v_and_b32 v8, 3, v1")
a("v_lshl_add_u32 v23, v8, 3, v23")
a("v_bfe_u32 v8, v1, 1, 3")
a("v_lshlrev_b32 v8, 13, v8")
a("v_lshl_add_u32 v8, v22, 5, v8")
a("v_and_b32 v9, 1, v1")
a("v_lshl_add_u32 v8, v9, 4, v8")
a("s_lshl_b32 s25, s6, 8")
a("s_add_u32 s25, s25, %d", WS_UT)
def ut_part(aa, n, sh):
    a("s_lshl_b32 s10, s3, %d", sh + 5)
    a("s_add_u32 s11, s10, %d", LA1 + 2 * GRP if aa else 0)
    a("v_add_u32 v10, s11, v23")
    a("s_add_u32 s11, s10, %d", LA1 + (2 * aa + 1) * GRP)
    a("v_add_u32 v11, s11, v23")
    for j in range(n):
        for hf in range(2):
            a("ds_read_b64_tr_b16 %s, v%d offset:%d", vr(64 + 4 * j + 2 * hf, 2), 10 + hf, j * 32)
    a("s_lshl_b32 s10, s3, %d", sh + 16)
    a("s_add_u32 s10, s10, s25")
    for j in range(n):
        a("s_waitcnt lgkmcnt(%d)", 2 * (n - 1 - j))
        a("s_add_u32 s13, s10, %d", j * 65536 + aa * 128)
        a("buffer_store_dwordx4 %s, v8, %s, s13 offen sc1", vr(64 + 4 * j, 4), sr(SWS, 4))
a("s_cmp_ge_u32 s3, 4")
a("s_cbranch_scc1 L_auxhi")
a("s_waitcnt vmcnt(0)")
a("s_or_b32 s10, s2, s3")
a("s_cmp_lg_u32 s10, 0")
a("s_cbranch_scc1 L_auxk")
a("s_mov_b32 s10, 0x9e3779b1")
a("v_mul_lo_u32 v12, v12, s10")
a("v_add_u32 v12, 0x7f4a7c15, v12")
a("v_mov_b32 v13, 1")
a("s_mov_b64 exec, 1")
a("global_store_dwordx2 v%d, v[12:13], %s sc1", VZ, sr(P_DBG, 2))
a("buffer_store_dword v12, v%d, %s, s9 offen sc1", VZ, sr(SWS, 4))
a("s_mov_b64 exec, -1")
a("s_branch L_auxk")
a("L_auxhi:")
a("s_waitcnt vmcnt(8)")
a("s_barrier")
a("L_auxk:")
kgen_all([])
def lo():
    a("s_waitcnt lgkmcnt(0)")
    a("s_barrier")
    ut_part(0, 8, 3)
role(lo, None)
a("s_waitcnt lgkmcnt(0)")
a("s_barrier")
lg = Lg()
for r in kreads(): lg.issue(*r)
a("v_and_b32 v21, 7, v0")
a("v_lshlrev_b32 v21, 4, v21")
run_kmfma(lg, [], 0)
def hi():
    a("s_waitcnt vmcnt(0)")
    onwave(4, lambda: a("ds_write_b128 v20, v[28:31] offset:%d", LGW))
    a("s_waitcnt lgkmcnt(0)")
role(None, hi)
a("s_barrier")
stamp(0)
nonce_issue()
ut_part(1, 4, 2)
a("v_lshrrev_b32 v9, 3, v1")
a("v_mul_u32_u24 v10, %d, v9", PITCH)
a("v_add3_u32 v10, v10, v21, s8")
a("v_lshrrev_b32 v9, 3, v0")
for j in range(8):
    a("ds_read_b128 %s, v10 offset:%d", vr(96 + 4 * j, 4), j * 128)
    a("ds_read_b128 %s, v21 offset:%d", vr(24 + 4 * j, 4), LGW + j * 128)
kmfma_finish()
onwave(0, zero_pads_k)
onwave(1, zero_pads_u)
a("v_mov_b32 v11, 0")
a("v_mov_b32 v12, 0")
a("s_waitcnt lgkmcnt(0)")
for j in range(32):
    a("v_dot2_f32_bf16 v%d, v%d, v%d, v%d", 11 + j % 2, 24 + j, 96 + j, 11 + j % 2)
a("v_add_f32 v11, v11, v12")
a("v_add_f32_dpp v11, v11, v11 quad_perm:[1,0,3,2] row_mask:0xf bank_mask:0xf")
a("v_add_f32_dpp v11, v11, v11 quad_perm:[2,3,0,1] row_mask:0xf bank_mask:0xf")
a("v_add_f32_dpp v11, v11, v11 row_half_mirror row_mask:0xf bank_mask:0xf")
a("v_mul_f32 v11, 0xbfb8aa3b, v11")
a("v_exp_f32 v11, v11")
a("v_add_f32 v11, 1.0, v11")
a("v_rcp_f32 v11, v11")
a("v_lshlrev_b32 v9, 2, v9")
a("s_waitcnt vmcnt(0)")
nonce_check()
a("s_barrier")
def sflag(base):
    a("s_lshl_b32 s10, s6, 2")
    a("s_add_u32 s10, s10, %d", base)
    a("s_buffer_atomic_swap s%d, %s, s10", S_NONCE, sr(SWS, 4))
onwave(1, lambda: sflag(F_A))
stamp(1)
a("s_lshl_b32 s13, s6, 8")
a("s_add_u32 s13, s13, %d", WS_G)
a("v_cmp_eq_u32 vcc, 0, v21")
a("s_mov_b64 exec, vcc")
a("buffer_store_dword v11, v9, %s, s13 offen sc1", sr(SWS, 4))
a("s_mov_b64 exec, -1")
a("s_lshl_b32 s%d, s6, 13", S_PFI)
a("s_lshl_b32 s11, s3, 10")
a("s_add_u32 s%d, s%d, s11", S_PFI, S_PFI)
for k_ in range(7):
    a("buffer_load_dwordx4 v[52:55], v20, %s, s%d offen", sr(SW, 4), S_PFI)
    a("s_add_u32 s%d, s%d, %d", S_PFI, S_PFI, 256 * 1024)
    if k_ == 4:
        later_addrs2(T0, T1, T2)
        later_addrs3(T0, T1, T2)
def p_():
    a("s_mov_b32 s%d, %d", S_PB, F_A)
    poll_issue(32)
    a("s_waitcnt vmcnt(0)")
    poll_check(8)
onwave(0, p_)
a("s_waitcnt vmcnt(7)")
a("s_barrier")
onwave(1, lambda: sflag(F_G))
role(None, u_load)
eops_load()
a("s_waitcnt vmcnt(0)")
role(None, u_write)
eops_calc()
a("s_waitcnt lgkmcnt(0)")
a("s_barrier")
stamp(2)
conv_prelude()
a("s_cmp_ge_u32 s3, 4")
a("s_cbranch_scc1 L_conv")
AUXW = len(a.lines)
a("s_branch L_help")
aux_lines = a.lines[AUX0:]
a.lines = a.lines[:AUX0]
a.hist = HIST0
VA, VB, VC, VY = 2, 3, 4, 5
HF = 80
HRING = 16
VO = 14
HFC = 112
def hload(j0, n, vml, HF=HF):
    for j in range(j0, j0 + n):
        if j % 4 == 0 or j == j0:
            a("s_add_u32 s%d, s%d, s%d", S_T, S_HB, S_RT + j // 4)
        a("buffer_load_dwordx4 %s, v%d, %s, s%d offen offset:%d%s", vr(HF + 4 * (j % HRING), 4), VH, sr(SWS, 4), S_T, (j % 4) * 1024, "" if opt("hplain", 0) else " sc1")
        vml.append(("H", j))

WORD = {0: [0, 1, 4, 5, 6, 2, 3], 8: [0, 1, 2, 4, 5, 6, 3], 16: [0, 1, 2, 3, 4, 5, 6]}[opt('nw7', 0)]
W6D = opt("w6d", 1)
if W6D: WORD.remove(6)
W5D = opt("w5d", 0)
if W5D: WORD.remove(5)
def hl_list(all_=False):
    L = []
    for rd in WORD:
        for i in range(8):
            def f(rd=rd, i=i):
                if rd < 4:
                    a("s_add_u32 m0, s%d, %d", S_WLD, WB[rd] * BLK + i * 1024)
                if i == 0:
                    a("s_lshl_b32 s13, s%d, 4", S_RT + rd)
                    a("s_add_u32 s13, s13, s%d", S_WSO)
                else:
                    a("s_add_u32 s13, s13, 8192")
                if rd < 4:
                    a("buffer_load_dwordx4 v%d, %s, s13 offen lds", VWD, sr(SW, 4))
                else:
                    a("buffer_load_dwordx4 %s, v%d, %s, s13 offen", vr(WST + WSTO[rd] + 4 * i, 4), VWD, sr(SW, 4))
            L.append(f)
    return L if all_ else L[sum(NW):]
assert all(x % 8 == 0 for x in NW) and NW[0] <= 8 and NW[0] + NW[1] <= 16
BC0 = len(a.lines)
a("L_st2:"); a("s_branch L_stret")
loader()
a("L_conv:")
stamp(3)
if opt("prio", 0): a("s_setprio %d", opt("prio", 0))
a("s_mov_b32 s14, 0x11111111")
a("s_mov_b32 s15, 0x11111111")
a("s_mov_b64 vcc, s[14:15]")
a("s_mov_b32 s12, 0x33333333")
a("s_mov_b32 s13, 0x33333333")
a("s_bitcmp1_b32 s3, 0")
a("s_cbranch_scc1 L_set1")
BF = 112
AF = 8
AC = 28
C1POS = opt("c1pos", 26)
LOOK = opt("look", 6)
NC0 = opt("nc0", 6)
FPG = opt("fpg", 4)
vmc = None
VCF, VCP = 108, 109
DONE = {}
def done_pos(jt):
    CM = opt("cm", 0)
    for tiles in ([0, 3, 4, 7], [1, 2, 5, 6]):
        if jt in tiles:
            groups = {0: [[0, 1, 2, 3]], 1: [[0], [1], [2], [3]], 2: [[0, 1], [2, 3]], 3: [[0, 1, 2], [3]]}[CM]
            sc = [tiles[ti] for g_ in groups for dl in range(4 * tiles[g_[-1]] + 4) for ti in g_ if dl <= 4 * tiles[ti] + 3]
            return max(p for p, x in enumerate(sc) if x == jt)
for si, tiles in enumerate([[0, 3, 4, 7], [1, 2, 5, 6]]):
    if si == 1:
        a("L_st0:"); a("s_branch L_stret")
        a("L_set1:")
    other = [[1, 2, 5, 6], [0, 3, 4, 7]][si]
    lg = Lg()
    CM = opt("cm", 0)
    groups = {0: [[0, 1, 2, 3]], 1: [[0], [1], [2], [3]], 2: [[0, 1], [2, 3]], 3: [[0, 1, 2], [3]]}[CM]
    sched = []; aid = []; adl = []
    for g_ in groups:
        for dl in range(4 * tiles[g_[-1]] + 4):
            adl.append(dl)
            for ti in g_:
                if dl <= 4 * tiles[ti] + 3:
                    sched.append((dl, ti, tiles[ti])); aid.append(len(adl) - 1)
    NA = 5
    lastuse = {}
    for pos in range(len(sched)): lastuse[aid[pos]] = pos
    loads = []; seenB = set(); seenA = set()
    for pos, (dl, ti, jt) in enumerate(sched):
        if aid[pos] not in seenA: seenA.add(aid[pos]); loads.append(("A", aid[pos], pos))
        e = 4 * jt - dl
        if e not in seenB: seenB.add(e); loads.append(("B", e, pos))
    done_at = {jt: max(p for p, x in enumerate(sched) if x[2] == jt) for jt in tiles}
    DONE.update(done_at)
    def ld_instrs(kind, idx):
        if kind == "A":
            r = AF + 4 * (idx % NA); dl_ = adl[idx]
            return ["ds_read_b64_tr_b16 %s, v%d offset:%d" % (vr(r + 2 * hf, 2), VA, 128 * dl_ + 32 * (1 - hf)) for hf in range(2)]
        return ["ds_read_b128 %s, v%d offset:%d" % (vr(BF + 4 * (idx + 3), 4), VB, 128 * (idx + 3))]
    nys = [0]
    ystores = []
    def post(ti, jt):
        b = AC + 20 * ti
        L = []
        q1 = "quad_perm:[1,1,3,3] row_mask:0xf bank_mask:0xf"; q2 = "quad_perm:[2,2,2,2] row_mask:0xf bank_mask:0xf"
        q0 = "quad_perm:[0,0,0,0] row_mask:0xf bank_mask:0xf"
        L.append("v_mov_b32_dpp v%d, v%d %s" % (b + 16, b + 15, q1))
        for q in range(15, 0, -1):
            L.append("v_add_f32_dpp v%d, v%d, v%d %s" % (b + q, b + q - 1, b + q, q1))
        L.append("v_mov_b32_dpp v%d, v%d %s" % (b + 18, b + 16, q2))
        L.append("v_mov_b32_dpp v%d, v%d %s" % (b + 17, b + 15, q2))
        L.append("v_add_f32_dpp v%d, v%d, v%d %s" % (b + 16, b + 14, b + 16, q2))
        def cw():
            a("s_mov_b64 exec, vcc")
            lg.issue("ds_write_b128 v%d, %s offset:%d" % (VC, vr(b + 16, 4), 256 * jt + 16))
            if jt + 1 in other:
                a("s_mov_b64 exec, 1")
                lg.issue("ds_write_b32 v%d, v6 offset:%d" % (VCF, 4 * ti))
            a("s_mov_b64 exec, -1")
        L.append(cw)
        for q in range(15, 1, -1):
            L.append("v_add_f32_dpp v%d, v%d, v%d %s" % (b + q, b + q - 2, b + q, q2))
        for q in range(2, 8):
            L.append("v_cvt_pk_bf16_f32 v%d, v%d, v%d" % (b + 16 + (q - 2) if q < 4 else b + q, b + 2 * q, b + 2 * q + 1))
        L = [(0, x) for x in L]
        part = (jt - 1) in other
        mp = done_pos(jt - 1) + opt("cmarg", 22) if part else 0
        def rd():
            if part: lg.issue("ds_read_b32 v%d, v%d offset:%d" % (b + 12, VCP, 4 * other.index(jt - 1)), ("cf", ti))
            lg.issue("ds_read_b128 %s, v%d offset:%d" % (vr(b + 8, 4), VC, 256 * jt), ("cy", ti))
        L.append((mp, rd))
        def chk():
            lg.need([("cy", ti)])
            if part:
                ok = a.label("Lcok"); sl = a.label("Lcsl")
                a("v_readfirstlane_b32 s10, v%d", b + 12)
                a("s_cmp_eq_u32 s10, 0")
                a("s_cbranch_scc1 %s", sl)
                a(ok + ":")
                def sp(ok=ok, sl=sl, oi=other.index(jt - 1)):
                    a(sl + ":")
                    lds_wait(VCP, 4 * oi, b + 12, 0)
                    a("s_mov_b64 vcc, s[14:15]")
                    a("ds_read_b128 %s, v%d offset:%d", vr(b + 8, 4), VC, 256 * jt)
                    a("s_waitcnt lgkmcnt(0)")
                    a("s_branch %s", ok)
                slow.append(sp)
        L.append((-3, chk))
        for q in range(3):
            L.append((0, "v_add_f32 v%d, v%d, v%d" % (b + q, b + q, b + 8 + q)))
        L.append((0, "v_cvt_pk_bf16_f32 v%d, v%d, v%d" % (b, b, b + 1)))
        L.append((0, "v_cvt_pk_bf16_f32 v%d, v%d, v%d" % (b + 1, b + 2, b + 3)))
        L.append((0, "v_cndmask_b32_dpp v%d, v%d, v%d, vcc %s" % (b + 2, b + 6, b + 16, q0)))
        L.append((0, "v_cndmask_b32_dpp v%d, v%d, v%d, vcc %s" % (b + 3, b + 7, b + 17, q0)))
        L.append((0, "v_cndmask_b32_dpp v%d, v%d, v%d, vcc %s" % (b, b + 4, b, q0)))
        L.append((0, "v_cndmask_b32_dpp v%d, v%d, v%d, vcc %s" % (b + 1, b + 5, b + 1, q0)))
        def st_():
            a("s_mov_b64 exec, s[12:13]")
            a("buffer_store_dwordx4 %s, v%d, %s, s%d offen offset:%d sc1", vr(b, 4), VY, sr(SWS, 4), S_YB, 512 * jt)
            a("s_mov_b64 exec, -1")
            nys[0] += 1
        if opt("ydefer", 1): ystores.append(st_)
        else: L.append((0, st_))
        return L
    li = 0; queues = []
    def emit(x): a(x) if isinstance(x, str) else x()
    for pos, (dl, ti, jt) in enumerate(sched):
        for ld in list(loads):
            kind, idx, fp = ld
            if fp <= pos + LOOK and not (kind == "A" and idx >= NA and lastuse[idx - NA] >= pos):
                for ins in ld_instrs(kind, idx): lg.issue(ins, (kind, idx))
                loads.remove(ld)
        e = 4 * jt - dl
        lg.need([("A", aid[pos]), ("B", e)])
        d = vr(AC + 20 * ti, 16)
        a("v_mfma_f32_32x32x16_bf16 %s, %s, %s, %s", d, vr(AF + 4 * (aid[pos] % NA), 4), vr(BF + 4 * (e + 3), 4), d if dl else "0")
        if opt("diag2", 0) and pos in (15, 39):
            stamp({15: 11, 39: 12}[pos], True); lg.drained()
        bud = FPG
        for qu in queues:
            while bud and qu[0] and pos >= qu[1]:
                mp, x = qu[0][0]
                if mp > pos: break
                if mp < 0:
                    qu[0][0] = (pos - mp, x); break
                qu[0].pop(0); emit(x); bud -= 1
        if dl == 4 * jt + 3: queues.append([post(ti, jt), pos + 3])
    stamp(4)
    def upto(qu, name, incl):
        names = [getattr(x, "__name__", "") for mp, x in qu[0]]
        if name not in names: return
        n_ = names.index(name) + (1 if incl else 0)
        for mp, x in qu[0][:n_]: emit(x)
        qu[0] = qu[0][n_:]
    for qu in queues[:-1]: upto(qu, "cw", True)
    upto(queues[-1], "cw", True)
    for qu in queues[:-1]: upto(qu, "rd", True)
    upto(queues[-1], "rd", True)
    for qu in queues[:-1]:
        for mp, x in qu[0]: emit(x)
    for mp, x in queues[-1][0]: emit(x)
    for x in ystores: x()
    stamp(5)
    if si == 0: a("s_branch L_g2c")

BH0 = len(a.lines)
a.hist = HIST0
a("v_mov_b32 v6, 1")
a("v_mov_b32 v7, %d", L_SY)
if opt("hold", 0): onwave(3, lambda: sig(7, 104))
a("s_setprio 0")
a("L_help:")
stamp(3)
NPRE = opt("npre", 8)
for f in hl_list()[:NPRE]: f()
a("s_waitcnt vmcnt(%d)", NPRE)
sig(VSY, 0)
stamp(10)
a("s_cmp_lg_u32 s3, 0")
a("s_cbranch_scc1 L_hdma")
a("s_cmp_lg_u32 s%d, 0", S_ISAUX)
a("s_cbranch_scc1 L_hdma")
a("v_and_b32 v2, 3, v1")
a("v_lshl_add_u32 v2, v2, 2, v7")
rest = hl_list()[NPRE:]
SEG = opt("seg", 2)
NSEG = opt("nseg", 6)
for k in range(NSEG):
    a("ds_read_b32 v3, v2")
    a("s_waitcnt lgkmcnt(0)")
    a("v_cmp_eq_u32 vcc, 0, v3")
    a("s_cmp_eq_u64 vcc, 0")
    a("s_cbranch_scc1 L_pub%d", k)
    for f in rest[k * SEG:(k + 1) * SEG]: f()
lds_wait(2, 0, 3, 0)
for k in range(NSEG, -1, -1):
    a("L_pub%d:" % k)
    a("s_buffer_atomic_swap s%d, %s, s%d", S_NONCE, sr(SWS, 4), S_FH)
    if STAMP and k == 0: pass
    if k: a("s_branch L_seg%d", k)
def hpoll_setup():
    a("s_lshr_b32 s%d, s%d, 1", S_PB, S_TB)
    a("s_mul_i32 s%d, s%d, %d", S_PB, S_PB, FSTR)
    a("s_add_u32 s%d, s%d, %d", S_PB, S_PB, F_H2)
    a("s_mov_b32 s8, s%d", S_NONCE)
    a("s_mov_b32 s9, s%d", S_NONCE)
    a("s_mov_b32 s12, 0")
a("L_hdma:")
for n_, f in enumerate(rest):
    if n_ and n_ % SEG == 0 and n_ // SEG <= NSEG: a("L_seg%d:" % (n_ // SEG))
    if opt("epoll", 0) and n_ == len(rest) - opt("epoll", 0):
        assert n_ >= SEG * NSEG
        def ep():
            hpoll_setup()
            a("s_buffer_load_dwordx16 s[16:31], %s, s%d glc", sr(SWS, 4), S_PB)
        onwave(opt("pollw", 1), ep)
    f()
stamp(6)
NH0 = opt("nh0", 6)
def hpoll():
    if not opt("epoll", 0): hpoll_setup()
    else: a("s_branch L_sp1")
    a("L_sp:")
    a("s_buffer_load_dwordx16 s[16:31], %s, s%d glc", sr(SWS, 4), S_PB)
    a("L_sp1:")
    a("s_add_u32 s12, s12, 1")
    a("s_waitcnt lgkmcnt(0)")
    a("s_xor_b64 s[10:11], s[16:17], s[8:9]")
    for i in range(1, 7):
        a("s_xor_b64 s[14:15], s[%d:%d], s[8:9]", 16 + 2 * i, 17 + 2 * i)
        a("s_or_b64 s[10:11], s[10:11], s[14:15]")
    a("s_cbranch_scc0 L_fnd")
    a("s_cmp_lt_u32 s12, %d", opt("spn", 64))
    a("s_cbranch_scc1 L_sp")
    poll_issue(14)
    a("s_waitcnt vmcnt(0)")
    poll_check(1)
    a("L_fnd:")
    stamp(5)
def ypublish():
    a("s_waitcnt vmcnt(0)")
    sig(VSY, 96)
    def p_():
        a("v_and_b32 v2, 3, v1")
        a("v_lshl_add_u32 v2, v2, 2, v7")
        lds_wait(2, 112, 3, 0)
        a("s_lshl_b32 s10, s2, 2")
        a("s_add_u32 s10, s10, %d", F_Y)
        flag_store("s10")
    onwave(4, p_)
    stamp(6)
vmh = []; vmc = []

def gemm2(role_, vml):
    helper = role_ == "h"
    HFR = HF if helper else HFC
    R = 8
    VYR, EG = 15, 16
    EY = 176
    VWW = 76
    VRW, VYW, VYG, VGG = 78, 79, 6, 7
    S_YG = 6
    t0, t1, t2, t3 = 2, 3, 4, 5
    AFR = 20
    AC2 = 44
    YL = 180
    A0 = 188
    RR = 16
    def vw(tags):
        idx = [i for i, t in enumerate(vml) if t in tags]
        if not idx: return 63
        return min(63, len(vml) - 1 - max(idx))
    a("v_mov_b32 v%d, v%d", R, VR0)
    a("v_xor_b32 v%d, 64, v%d", R + 1, VR0)
    for m in range(2):
        a("v_add_u32 v%d, %d, v%d", R + 2 + m, 4 * BLK, R + m)
        a("v_add_u32 v%d, %d, v%d", R + 4 + m, 8 * BLK, R + m)
    if helper:
        a("v_add_u32 v%d, s%d, v%d", VWW + 1, S_WLD, VH)
        onwave(opt("pollw", 1), hpoll)
    a("s_waitcnt vmcnt(%d)", 0 if helper else 4)
    stamp(13)
    a("s_barrier")
    stamp(7)
    def reads(step):
        rd, ks = step // 4, step % 4
        blk = WB[rd]
        f = AFR + (step % 3) * 8
        L = []
        for m in range(2):
            for hf in range(2):
                L.append(("ds_read_b64_tr_b16 %s, v%d offset:%d" % (vr(f + 4 * m + 2 * hf, 2), R + 2 * (blk // 4) + m, (blk % 4) * BLK + (ks >> 1) * 4096 + (ks & 1) * 1024 + hf * 2048), (step, m)))
        return L
    def setup():
        a("s_lshl_b32 s10, s%d, 7", S_DB)
        a("v_lshl_add_u32 v%d, v1, 2, s10", VN + 2)
        a("s_lshl_b32 s10, s%d, 2", S_TB)
        a("s_add_u32 s10, s10, %d", F_G - F_Y)
        a("v_mov_b32 v%d, s10", t0)
        a("v_cmp_lt_u32 vcc, 31, v1")
        a("s_mov_b32 s%d, %d", S_PB, F_Y)
        a("v_lshrrev_b32 v%d, 3, v1", VYG)
        a("v_cndmask_b32 v%d, v%d, v%d, vcc", VN + 2, VN + 2, t0)
        a("v_lshlrev_b32 v%d, 12, v%d", VYG, VYG)
        a("v_and_b32 v%d, 7, v1", t1)
        a("v_lshl_add_u32 v%d, v%d, 4, v%d", VYG, t1, VYG)
        a("s_lshl_b32 s%d, s%d, 3", S_YG, S_DB)
        a("s_add_u32 s%d, s%d, s3", S_YG, S_YG)
        a("s_lshl_b32 s%d, s%d, 15", S_YG, S_YG)
        a("s_lshl_b32 s10, s%d, 7", S_TB)
        a("s_add_u32 s%d, s%d, s10", S_YG, S_YG)
        a("s_add_u32 s%d, s%d, %d", S_YG, S_YG, WS_Y)
        a("v_and_b32 v%d, 31, v1", t2)
        a("v_lshlrev_b32 v%d, 2, v%d", VGG, t2)
        a("v_lshrrev_b32 v%d, 5, v1", VYR)
        a("v_lshlrev_b32 v%d, 4, v%d", t3, VYR)
        a("v_lshl_add_u32 v%d, v%d, 10, v%d", VO, t2, t3)
        a("v_bfe_u32 v%d, v1, 2, 2", t2)
        a("v_lshl_add_u32 v%d, v%d, 3, v%d", VYR, VYR, t2)
        a("v_lshlrev_b32 v%d, 7, v%d", VYR, VYR)
        a("v_bfe_u32 v%d, v1, 4, 1", t2)
        a("v_lshl_add_u32 v%d, v%d, 5, v%d", VYR, t2, VYR)
        a("v_and_b32 v%d, 3, v1", t2)
        a("v_lshl_add_u32 v%d, v%d, 3, v%d", VYR, t2, VYR)
        a("s_lshr_b32 s10, s3, 1")
        a("s_lshl_b32 s10, s10, 11")
        a("s_and_b32 s11, s3, 1")
        a("s_lshl_b32 s11, s11, 6")
        a("s_add_u32 s10, s10, s11")
        a("s_add_u32 s10, s10, %d", L_Y)
        a("v_add_u32 v%d, s10, v%d", VYR, VYR)
        a("s_lshl_b32 s10, s3, 10")
        a("s_add_u32 s10, s10, %d", L_Y)
        a("v_add_u32 v%d, s10, v%d", VYW, VH)
        for j in range(4):
            hi_ = (0 if helper else 1) ^ (j >> 1)
            a("s_xor_b32 s10, s%d, %d", S_TQ, (2 * j) & 3)
            a("s_mul_i32 s10, s10, 6144")
            a("s_add_u32 s10, s10, %d", L_R[hi_] + max(j - 1, 0) * 2048)
            a("v_add_u32 v%d, s10, v%d", VRW if j == 0 else RR + j, VH)
    lg = Lg()
    def wwrite(rd, i):
        if i == 0: a("v_add_u32 v%d, %d, v%d", VWW, WB[rd] * BLK, VWW + 1)
        lg.issue("ds_write_b128 v%d, %s offset:%d" % (VWW, vr(WST + WSTO[rd] + 4 * i, 4), i * 1024), ("ww", rd))
    def wdma(rd, i):
        a("s_add_u32 m0, s%d, %d", S_WLD, WB[rd] * BLK + i * 1024)
        if i == 0:
            a("s_lshl_b32 s13, s%d, 4", S_RT + rd)
            a("s_add_u32 s13, s13, s%d", S_WSO)
        else:
            a("s_add_u32 s13, s13, 8192")
        a("buffer_load_dwordx4 v%d, %s, s13 offen lds", VWD, sr(SW, 4))
        vml.append(("W", rd))
    nh = NH0 if helper else NC0
    N1 = opt("n1", 3)
    hload(0, N1, vml, HFR)
    for r in reads(0) + reads(1): lg.issue(*r)
    pend = []
    NW4 = opt("nw4i", 4)
    if helper:
        for i in range(NW4 // 2): wwrite(4, i)
        hload(N1, nh - N1, vml, HFR)
        for i in range(NW4 // 2, NW4): wwrite(4, i)
        pend = [(lambda i=i: wwrite(4, i)) for i in range(NW4, 8)]
        vfill = a.capture(setup)
    else:
        setup()
        hload(N1, nh - N1, vml, HFR)
        vfill = []
    YPS = opt("yps", 15)
    for step in range(28):
        rd, ks = step // 4, step % 4
        f = AFR + (step % 3) * 8
        nxt = reads(step + 2) if step < 26 else []
        for m in range(2):
            d = vr(AC2 + 16 * m, 16)
            lg.need([(step, m)], "vmcnt(%d) " % vw([("H", step)]) if m == 0 else "")
            a("v_mfma_f32_32x32x16_bf16 %s, %s, %s, %s", d, vr(f + 4 * m, 4), vr(HFR + 4 * (step % HRING), 4), d if step else "0")
            for r in nxt[2 * m:2 * m + 2]: lg.issue(*r)
            if nh < 28 and m == 0:
                hload(nh, 1, vml, HFR); nh += 1
            if m == 0 and step == opt("yls", 22):
                a("s_waitcnt vmcnt(%d)", vw([("PY", 0)]))
                poll_check(1)
                a("buffer_load_dwordx4 %s, v%d, %s, s%d offen sc1", vr(YL, 4), VYG, sr(SWS, 4), S_YG)
                a("buffer_load_dword v%d, v%d, %s, s%d offen sc1", EG, VGG, sr(SWS, 4), S_GOFF)
                vml += [("Y", 0), ("Y", 0)]
            if m == 1 and step == YPS:
                assert not vfill
                a("buffer_load_dword v%d, v%d, %s, s%d offen sc1", VN - 1, VN + 2, sr(SWS, 4), S_PB)
                vml.append(("PY", 0))
            if pend and (m == 1 or not W6D): pend.pop(0)()
            for _ in range(4):
                if vfill: lg.run(vfill.pop(0))
        if opt("stg2", 0) and ks == 3 and rd < 5:
            stamp(10 + rd); lg.drained()
        if step == 18:
            for j in range(4):
                vfill.append("v_lshlrev_b32 v%d, 16, v%d" % (A0 + 2 * j, EUD + j))
                vfill.append("v_and_b32 v%d, 0xffff0000, v%d" % (A0 + 2 * j + 1, EUD + j))
        if step == opt("ybar", 1):
            a("s_barrier")
            if not helper:
                def yf():
                    a("s_lshl_b32 s10, s2, 2")
                    a("s_add_u32 s10, s10, %d", F_Y)
                    flag_store("s10")
                onwave(4, yf)
        if step == 9:
            assert not pend
            if helper: lg.need([("ww", 4)])
            a("s_barrier")
            if helper and W5D: pend = [(lambda i=i: (wdma(5, 2 * i), wdma(5, 2 * i + 1))) for i in range(4)]
            elif helper: pend = [(lambda i=i, r=r: wwrite(r, i)) for r in ((5,) if W6D else (5, 6)) for i in range(8)]
            elif W6D: pend = [(lambda i=i: wdma(6, i)) for i in range(8)]
        if step == 17:
            assert not pend
            if helper: lg.need([("ww", 5), ("ww", 6)])
            if helper and W5D: a("s_waitcnt vmcnt(%d)", vw([("W", 5)]))
            a("s_barrier")
        if step == 21 and W6D:
            if not helper: a("s_waitcnt vmcnt(%d)", vw([("W", 6)]))
            a("s_barrier")
    assert not pend and not vfill
    stamp(8)
    a("s_waitcnt vmcnt(0)")
    if opt("diag3", 0): stamp(10, True)
    a("ds_write_b128 v%d, %s", VYW, vr(YL, 4))
    for j in range(1, 4):
        for b in range(2):
            a("ds_write_b128 v%d, %s offset:%d", VRW, vr(AC2 + 8 * j + 4 * b, 4), (j - 1) * 2048 + b * 1024)
    for q in range(8):
        a("v_sub_f32 v%d, v%d, v%d", A0 + q, A0 + q, AC2 + q)
        a("v_fmac_f32 v%d, v%d, v%d", AC2 + q, EG, A0 + q)
    a("v_sub_f32 v%d, 1.0, v%d", t1, EG)
    a("s_waitcnt lgkmcnt(0)")
    if opt("diag3", 0): stamp(11, True)
    a("s_barrier")
    if opt("diag3", 0): stamp(12, True)
    for hf in range(2):
        a("ds_read_b64_tr_b16 %s, v%d offset:%d", vr(EY + 2 * hf, 2), VYR, hf * 512)
    for j in range(1, 4):
        for b in range(2):
            a("ds_read_b128 %s, v%d offset:%d", vr(AC2 + 8 * j + 4 * b, 4), RR + j, b * 1024)
    a("s_waitcnt lgkmcnt(6)")
    for j in range(4):
        a("v_lshlrev_b32 v%d, 16, v%d", t2, EY + j)
        a("v_and_b32 v%d, 0xffff0000, v%d", t3, EY + j)
        a("v_fmac_f32 v%d, v%d, v%d", AC2 + 2 * j, EG, t2)
        a("v_fmac_f32 v%d, v%d, v%d", AC2 + 2 * j + 1, EG, t3)
    for j in range(1, 4):
        a("s_waitcnt lgkmcnt(%d)", 2 * (3 - j))
        for q in range(8):
            a("v_fmac_f32 v%d, v%d, v%d", AC2 + q, t1, AC2 + 8 * j + q)
    for j in range(4):
        a("v_cvt_pk_bf16_f32 v%d, v%d, v%d", A0 + j, AC2 + 2 * j, AC2 + 2 * j + 1)
    a("buffer_store_dwordx4 %s, v%d, %s, s%d offen%s", vr(A0, 4), VO, sr(SO, 4), S_OB, ["", " sc1", " nt", " sc0 sc1"][opt("ost", 0)])
    if opt("diag3", 0): stamp(13, True)
    if STAMP: a("s_waitcnt vmcnt(0)")
    stamp(9)
    stamp_out()
    a("s_endpgm")

gemm2("h", vmh)
BG0 = len(a.lines)
a.lines = a.lines[:BC0] + a.lines[BH0:BG0] + a.lines[BC0:BH0]
a("L_g2c:")
gemm2("c", vmc)
n0_ = len(a.lines)
def auxw():
    for f in hl_list(True)[:sum(NW)]: f()
auxw()
auxw_lines = a.lines[n0_:]; a.lines = a.lines[:n0_]
a.lines += aux_lines[:AUXW - AUX0] + auxw_lines + aux_lines[AUXW - AUX0:]
for sp in slow: sp()
a("L_end:")
a("s_endpgm")

hdr = open("gated_mix__ssm_conv_s4__glu_gated_bilinear__prompt.s.ref").read().split("\n")
hdr = [l for l in hdr if l.startswith(";") and "@launch" not in l]
print(wrap(hdr + ["; @launch grid=(256,1,1) block=(512,1,1) lds=163840"], [(NAME, a, 256, 102, 256)]))
sys.stderr.write("nops: %d\n" % a.nops)
```

```python
import sys
from asmlib import *

STAMP = "--stamp" in sys.argv
def opt(name, default):
    for x in sys.argv:
        if x.startswith("--%s=" % name): return int(x.split("=")[1])
    return default

WS_H = 0
WS_UT = 8 << 20
WS_Y = 10 << 20
WS_G = 12 << 20
WS_F = (12 << 20) + 0x10000
F_H2 = (12 << 20) + 0x80000
WS_ST = 13 << 20
WS_BYTES = 14 << 20
F_A, F_H, F_Y, F_G, F_E = WS_F, WS_F + 0x1000, WS_F + 0x2000, WS_F + 0x3000, WS_F + 0x4000

P_U, P_ARE, P_AIM, P_BRE, P_BIM, P_CRE, P_CIM, P_LDT = 16, 18, 20, 22, 24, 26, 28, 30
P_DSK, P_BX, P_WG, P_WU, P_WD, P_GW, P_OUT, P_DBG, P_WS = 32, 34, 36, 38, 40, 42, 44, 46, 48
SX, SG, SU, SWS, SW, SO = 52, 56, 60, 64, 68, 72
S_NONCE, S_ISAUX, S_SPIN, S_PB = 76, 77, 78, 79
S_TB, S_DB, S_KH, S_TQ, S_HB, S_OB = 80, 81, 82, 83, 84, 85
S_W0S = 100
S_RT = 36
S_KR, S_T2 = 0, 1
S_W2K, S_T, S_TM0, S_YB = 86, 87, 88, 89
S_DOFF, S_GOFF = 50, 51
S_WSO, S_WLD = 90, 91
S_HST = 34
S_FH = 35
PCF = opt('pcf', 0)
FSTR = opt('fstr', 1280)
G16 = 1
SPINMAX = opt("spin", 2000000)

BLK = 16384
XB = [0, 1, 2]
GB = [6, 8, 4]
L_TAB = 2 * BLK
TP = 528
TPIECE = 31 * TP
L_U = 2 * BLK
UCH = 512 + 4096
L_K = 3 * BLK
KCH = 64 + 4096
L_CY = L_K + 2 * KCH
CYCH = 129 * 16
L_SY = 4 * BLK - 128
assert L_SY % 32 == 0 and L_SY + 128 <= 4 * BLK
WB = [4, 6, 8, 0, 2, 4, 6]
L_Y = 8 * BLK + 24576
L_R = [8 * BLK, 0]

a = Asm()

class Lg:
    def __init__(self): self.q = []; self.done = 0
    def issue(self, ins, tag=None):
        a(ins); self.q.append(tag)
    def need(self, tags, extra=""):
        idx = [i for i, t in enumerate(self.q) if t in tags]
        last = max(idx) if idx else -1
        if last >= self.done:
            cnt = min(len(self.q) - 1 - last, 15)
            a("s_waitcnt %slgkmcnt(%d)", extra, cnt)
            self.done = len(self.q) - cnt
        elif extra:
            a("s_waitcnt %s", extra)
    def drained(self): self.done = len(self.q)
    def run(self, p):
        n0 = len(a.lines)
        a(p) if isinstance(p, str) else p()
        for ln in a.lines[n0:]:
            if ln.strip().startswith("ds_"): self.q.append(None)

SMASK = opt("smask", 0x7fff)
def stamp(i, force=False):
    if opt("stg", 0) == 2:
        if not force or not (SMASK >> i) & 1: return
    if not STAMP or not ((SMASK >> i) & 1 or force): return
    a("s_memtime s[94:95]")
    a("s_memrealtime s[92:93]")
    a("s_waitcnt lgkmcnt(0)")
    a("s_sub_u32 s94, s94, s98")
    a("v_writelane_b32 v255, s94, %d", i)
    a("v_writelane_b32 v255, s92, %d", i + 16)
def stamp_out():
    if not STAMP: return
    a("s_mov_b64 exec, -1")
    a("v_writelane_b32 v255, s96, 31")
    a("s_getreg_b32 s92, hwreg(HW_REG_XCC_ID)")
    a("s_getreg_b32 s93, hwreg(HW_REG_HW_ID)")
    a("s_and_b32 s92, s92, 15")
    a("s_lshl_b32 s93, s93, 4")
    a("s_or_b32 s92, s92, s93")
    a("v_writelane_b32 v255, s92, 15")
    a("s_lshl_b32 s92, s2, 3")
    a("s_add_u32 s92, s92, s3")
    a("s_lshl_b32 s92, s92, 7")
    a("s_add_u32 s92, s92, %d", WS_ST)
    a("v_mbcnt_lo_u32_b32 v254, -1, 0")
    a("v_mbcnt_hi_u32_b32 v254, -1, v254")
    a("v_lshlrev_b32 v253, 2, v254")
    a("s_mov_b64 exec, 0xffffffff")
    a("buffer_store_dword v255, v253, %s, s92 offen", sr(SWS, 4))

def cmul(d, x, y, plain):
    if plain:
        return ["v_mul_f32 v%d, v%d, v%d" % (d, x, y), "v_mul_f32 v%d, v%d, v%d" % (d + 1, x + 1, y),
                "v_fma_f32 v%d, -v%d, v%d, v%d" % (d, x + 1, y + 1, d), "v_fmac_f32 v%d, v%d, v%d" % (d + 1, x, y + 1)]
    return ["v_pk_mul_f32 %s, %s, %s op_sel_hi:[1,0]" % (vr(d, 2), vr(x, 2), vr(y, 2)),
            "v_pk_fma_f32 %s, %s, %s, %s op_sel:[1,1,0] op_sel_hi:[0,1,1] neg_lo:[1,0,0]" % (vr(d, 2), vr(x, 2), vr(y, 2), vr(d, 2))]
def il(x, y):
    o = []
    for i in range(max(len(x), len(y))):
        if i < len(x): o.append(x[i])
        if i < len(y): o.append(y[i])
    return o

VH = 240
VWD = 241
VR0 = 242
VSY = 243
VN = 250
PVA, PVB, PVC, PVY = 2, 3, 4, 5
KA, KBa, KW = 152, 153, 154
VZ = 235
KB = 160
KP = 204
KF = 160
KD = 236
VUL = 244

def kgen_setup():
    a("s_lshr_b32 s10, s3, 2")
    a("s_lshl_b32 s11, s2, 1")
    a("s_add_u32 s11, s11, s10")
    a("s_and_b32 s12, s3, 1")
    a("s_lshl_b32 s13, s11, 8")
    a("s_lshl_b32 s12, s12, 7")
    a("s_add_u32 s13, s13, s12")
    a("v_lshl_add_u32 v%d, v1, 1, s13", KB + 8)
    a("s_lshl_b32 s11, s11, 1")
    a("v_mov_b32 v%d, s11", KB + 9)
    for i in range(7): a("v_mov_b32 v%d, 0", KB + i)
    a("s_bitcmp1_b32 s3, 1")
    a("s_cselect_b64 s[14:15], -1, 0")
def kgen_loads():
    a("global_load_short_d16_hi v%d, v%d, %s", KB + 6, KB + 9, sr(P_LDT, 2))
    for i, p in enumerate([P_ARE, P_AIM, P_BRE, P_BIM, P_CRE, P_CIM]):
        a("global_load_short_d16_hi v%d, v%d, %s%s", KB + i, KB + 8, sr(p, 2), " nt" if opt("pnt", 1) else "")
    return 7
def rowpos(m): return 16 + (2 * m if m <= 7 else 2 * (m - 8) + 1)
def kgen_valu(plain_tail):
    L = []
    A_, B_, BR, BI, CR, CI, LD, T0, T1, T2 = [KB + i for i in range(10)]
    W, E1, E2, E4, E8, E128, E256, E512, P, X0, X1, R0, R1, RB, Y0, Z0 = [KB + 10 + 2 * i for i in range(16)]
    L.append("v_mul_f32 v%d, 0x3fb8aa3b, v%d" % (T0, LD))
    L.append("v_mov_b32 v%d, 0x3fb8aa3b" % T2)
    L.append("v_fma_f32 v%d, v%d, v%d, -v%d" % (T1, LD, T2, T0))
    L.append("v_fmac_f32 v%d, 0x32a57060, v%d" % (T1, LD))
    L.append("v_exp_f32 v%d, v%d" % (T0, T0))
    L.append("v_mul_f32 v%d, 0x3f317218, v%d" % (T1, T1))
    L.append("v_fmac_f32 v%d, v%d, v%d" % (T0, T0, T1))
    L.append("v_cvt_pk_bf16_f32 v%d, v%d, v%d" % (T0, T0, T0))
    L.append("v_and_b32 v%d, 0xffff0000, v%d" % (T0, T0))
    for r in (A_, B_, BR, BI):
        L.append("v_mul_f32 v%d, v%d, v%d" % (r, T0, r))
    L.append("v_mul_f32 v%d, 0x3fb8aa3b, v%d" % (A_, A_))
    L.append("v_mul_f32 v%d, 0.15915494, v%d" % (B_, B_))
    o1 = ["v_exp_f32 v%d, v%d" % (T0, A_), "v_fract_f32 v%d, v%d" % (T1, B_),
          "v_cos_f32 v%d, v%d" % (E1, T1), "v_sin_f32 v%d, v%d" % (E1 + 1, T1),
          "v_mul_f32 v%d, v%d, v%d" % (E1, T0, E1), "v_mul_f32 v%d, v%d, v%d" % (E1 + 1, T0, E1 + 1)]
    o2 = ["v_mul_f32 v%d, 0x43000000, v%d" % (T2, A_), "v_mul_f32 v%d, 0x43000000, v%d" % (LD, B_),
          "v_exp_f32 v%d, v%d" % (T2, T2), "v_fract_f32 v%d, v%d" % (LD, LD),
          "v_cos_f32 v%d, v%d" % (E128, LD), "v_sin_f32 v%d, v%d" % (E128 + 1, LD),
          "v_mul_f32 v%d, v%d, v%d" % (E128, T2, E128), "v_mul_f32 v%d, v%d, v%d" % (E128 + 1, T2, E128 + 1)]
    L += il(o2, o1 + cmul(W, CR, BR, False))
    L += il(cmul(E2, E1, E1, False) + cmul(E4, E2, E2, False) + cmul(E8, E4, E4, False),
            cmul(E256, E128, E128, False) + cmul(E512, E256, E256, False))
    L.append("v_cndmask_b32 v%d, v%d, v%d, s[14:15]" % (P, E1, E2))
    L.append("v_cndmask_b32 v%d, v%d, v%d, s[14:15]" % (P + 1, E1 + 1, E2 + 1))
    L.append("v_cndmask_b32 v%d, 1.0, v%d, s[14:15]" % (X0, E128))
    L.append("v_cndmask_b32 v%d, 0, v%d, s[14:15]" % (X0 + 1, E128 + 1))
    L.append("v_cndmask_b32 v%d, 1.0, v%d, s[14:15]" % (E256, E256))
    L.append("v_cndmask_b32 v%d, 0, v%d, s[14:15]" % (E256 + 1, E256 + 1))
    L += cmul(RB, W, E256, False)
    rows = [(None, RB, None)]
    cur = RB
    for j in range(1, 8):
        d = R0 if j % 2 else R1
        rows.append((d, cur, P)); cur = d
    Z2 = Y0
    rows += [(Y0, RB, E512), (R1, Y0, E4), (R0, Y0, E8), (Z0, Y0, E512), (R1, Z0, E8), (Z2, Z0, E512), (R0, Z2, E8)]
    cols = [(None, X0, None)]
    cur = X0
    for j in range(1, 16):
        d = X1 if j % 2 else X0
        cols.append((d, cur, E8)); cur = d
    LC, LR = [], []
    for j, (d, s, m) in enumerate(cols):
        if d is not None: LC += cmul(d, s, m, plain_tail)
        x = d if d is not None else s
        LC.append("v_cvt_pk_bf16_f32 v%d, v%d, v%d" % (KP + j, x, x + 1))
    for j, (d, s, m) in enumerate(rows):
        if d is not None: LR += cmul(d, s, m, plain_tail)
        x = d if d is not None else s
        LR.append("v_cvt_pk_bf16_f32 v%d, v%d, -v%d" % (KP + rowpos(j), x, x + 1))
    return L, il(LC, LR)
def kgen_writes():
    return ["ds_write_addtid_b32 v%d offset:%d" % (KP + j, L_TAB + j * TP) for j in range(31)]

def later_addrs(T0, T1, T2):
    a("s_lshr_b32 s10, s3, 1")
    a("s_mul_i32 s10, s10, %d", TPIECE)
    a("s_and_b32 s11, s3, 1")
    a("s_lshl_b32 s11, s11, 8")
    a("s_add_u32 s%d, s10, s11", S_TM0)
    a("s_and_b32 s10, s3, 3")
    a("s_mul_i32 s10, s10, %d", TPIECE)
    a("s_add_u32 s10, s10, %d", L_TAB)
    a("v_bfe_u32 v%d, v1, 4, 1", T1)
    a("v_lshlrev_b32 v%d, 8, v%d", T1, T1)
    a("v_lshrrev_b32 v%d, 5, v1", T2)
    a("v_lshl_add_u32 v%d, v%d, 7, v%d", T1, T2, T1)
    a("v_and_b32 v%d, 15, v1", T0)
    a("v_mul_u32_u24 v%d, %d, v%d", T2, TP, T0)
    a("v_add3_u32 v%d, v%d, v%d, s10", KBa, T2, T1)
    def lut(v): return sum(x << (4 * i) for i, x in enumerate(v))
    m0 = [0, 1, 2, 3] + [0, 0, 1, 2] + [2, 2, 3, 4] + [4, 5, 6, 7]; h0 = 0x0ff0
    m1 = [8, 9, 10, 10] + [8, 9, 10, 10] + [11, 12, 13, 14] + [11, 12, 13, 14]; h1 = 0xf0f0
    p0 = [rowpos(m) - 16 for m in m0]; p1 = [rowpos(m) - 16 for m in m1]
    a("s_bitcmp1_b32 s3, 2")
    a("s_mov_b32 s11, 0x%x", lut(p0[:8]))
    a("s_cmov_b32 s11, 0x%x", lut(p1[:8]))
    a("s_mov_b32 s12, 0x%x", lut(p0[8:]))
    a("s_cmov_b32 s12, 0x%x", lut(p1[8:]))
    a("s_mov_b32 s13, 0x%x", h0)
    a("s_cmov_b32 s13, 0x%x", h1)
    a("v_cmp_lt_u32 vcc, 7, v%d", T0)
    a("v_mov_b32 v%d, s11", KA)
    a("v_mov_b32 v%d, s12", T2)
    a("v_cndmask_b32 v%d, v%d, v%d, vcc", KA, KA, T2)
    a("v_and_b32 v%d, 7, v1", T2)
    a("v_lshlrev_b32 v%d, 2, v%d", T2, T2)
    a("v_bfe_u32 v%d, v%d, v%d, 4", KA, KA, T2)
    a("v_bfe_u32 v%d, s13, v%d, 1", T2, T0)
    a("v_mad_u32_u24 v%d, v%d, 31, v%d", KA, T2, KA)
    a("v_mul_u32_u24 v%d, %d, v%d", KA, TP, KA)
    a("s_bfe_u32 s10, s3, 0x10001")
    a("s_mul_i32 s11, s10, %d", 2 * TPIECE)
    a("s_add_u32 s11, s11, %d", L_TAB + 16 * TP)
    a("v_add3_u32 v%d, v%d, v%d, s11", KA, KA, T1)
    a("s_mul_i32 s10, s10, %d", KCH)
    a("s_and_b32 s11, s3, 1")
    a("s_lshl_b32 s11, s11, 8")
    a("s_add_u32 s10, s10, s11")
    a("s_add_u32 s10, s10, %d", L_K + 64)
    a("s_bitcmp1_b32 s3, 2")
    a("s_mov_b32 s11, 0x%x", 0 | (64 << 8) | (65 << 16) | (1 << 24))
    a("s_cmov_b32 s11, 0x%x", 0 | (64 << 8) | (128 << 16) | (192 << 24))
    a("s_cselect_b32 s12, 1024, 0")
    a("s_add_u32 s10, s10, s12")
    a("v_lshrrev_b32 v%d, 4, v1", T1)
    a("v_lshlrev_b32 v%d, 3, v%d", T1, T1)
    a("v_bfe_u32 v%d, s11, v%d, 8", T1, T1)
    a("v_lshlrev_b32 v%d, 4, v%d", T0, T0)
    a("v_lshl_add_u32 v%d, v%d, 3, v%d", T0, T1, T0)
    a("v_add_u32 v%d, s10, v%d", KW, T0)
def later_addrs2(T0, T1, T2):
    a("s_bfe_u32 s10, s3, 0x10001")
    a("v_lshrrev_b32 v%d, 5, v1", T0)
    a("v_lshlrev_b32 v%d, 6, v%d", PVA, T0)
    a("v_and_b32 v%d, 31, v1", T1)
    a("v_lshlrev_b32 v%d, 4, v%d", PVB, T1)
    a("v_sub_u32 v%d, v%d, v%d", PVB, PVB, PVA)
    a("v_and_b32 v%d, 1, v1", T2)
    a("v_lshl_add_u32 v%d, v%d, 5, v%d", PVA, T2, PVA)
    a("v_lshrrev_b32 v%d, 2, v%d", T1, T1)
    a("v_lshl_add_u32 v%d, v%d, 1, v%d", T1, T1, T0)
    a("v_lshlrev_b32 v%d, 5, v%d", PVY, T1)
    a("v_lshl_add_u32 v%d, v%d, 4, v%d", PVY, T2, PVY)
    a("s_mul_i32 s11, s10, %d", CYCH)
    a("s_add_u32 s11, s11, %d", L_CY)
    a("v_lshl_add_u32 v%d, v%d, 4, s11", PVC, T1)
    a("v_bfe_u32 v%d, v1, 4, 1", T2)
    a("v_lshl_add_u32 v%d, v%d, 4, v%d", PVA, T2, PVA)
    a("v_bfe_u32 v%d, v1, 1, 1", T2)
    a("v_lshl_add_u32 v%d, v%d, 3, v%d", PVA, T2, PVA)
    a("v_bfe_u32 v%d, v1, 2, 2", T2)
    a("v_lshlrev_b32 v%d, 3, v%d", T2, T2)
    a("v_sub_u32 v%d, v%d, v%d", PVA, PVA, T2)
    a("s_mul_i32 s11, s10, %d", KCH)
    a("s_add_u32 s11, s11, %d", L_K + 32)
    a("v_add_u32 v%d, s11, v%d", PVA, PVA)
    a("s_mul_i32 s11, s10, %d", UCH)
    a("s_add_u32 s11, s11, %d", L_U + 512 - 384)
    a("v_add_u32 v%d, s11, v%d", PVB, PVB)
    a("s_lshl_b32 s11, s2, 1")
    a("s_add_u32 s11, s11, s10")
    a("s_lshl_b32 s11, s11, 12")
    a("s_add_u32 s%d, s11, %d", S_YB, WS_Y)
def later_addrs3(T0, T1, T2):
    if opt("b84", 1):
        a("s_and_b32 s%d, s4, 6", S_TB)
        a("s_lshl_b32 s%d, s%d, 2", S_TB, S_TB)
        a("s_and_b32 s10, s5, 7")
        a("s_add_u32 s%d, s%d, s10", S_TB, S_TB)
        a("s_and_b32 s%d, s4, 1", S_DB)
        a("s_lshl_b32 s%d, s%d, 2", S_DB, S_DB)
        a("s_lshr_b32 s10, s5, 3")
        a("s_add_u32 s%d, s%d, s10", S_DB, S_DB)
    else:
        a("s_lshl_b32 s%d, s4, 2", S_TB)
        a("s_and_b32 s10, s5, 3")
        a("s_add_u32 s%d, s%d, s10", S_TB, S_TB)
        a("s_lshr_b32 s%d, s5, 2", S_DB)
    a("s_lshr_b32 s%d, s3, 2", S_KH)
    a("s_and_b32 s%d, s3, 3", S_TQ)
    a("s_lshl_b32 s10, s%d, 1", S_TB)
    a("s_and_b32 s13, s3, 1")
    a("s_add_u32 s10, s10, s13")
    a("s_mul_i32 s11, s10, 112")
    a("s_lshr_b32 s12, s3, 1")
    a("s_mul_i32 s%d, s12, %d", S_W0S, 448 * 1024)
    a("s_lshl_b32 s13, s13, 15")
    a("s_add_u32 s%d, s%d, s13", S_W0S, S_W0S)
    a("s_mul_i32 s13, s12, 28")
    a("s_add_u32 s11, s11, s13")
    a("s_lshl_b32 s%d, s11, 10", S_HB)
    a("s_lshl_b32 s%d, s10, 7", S_GOFF)
    a("s_add_u32 s%d, s%d, %d", S_GOFF, S_GOFF, WS_G)
    a("s_lshl_b32 s10, s10, 15")
    a("s_lshl_b32 s11, s%d, 7", S_DB)
    a("s_lshl_b32 s12, s12, 5")
    a("s_add_u32 s%d, s11, s12", S_DOFF)
    a("s_add_u32 s%d, s10, s%d", S_OB, S_DOFF)
    a("s_mul_i32 s%d, s%d, %d", S_WSO, S_TQ, 448 * 1024)
    a("s_lshl_b32 s%d, s%d, 13", S_WLD, S_TQ)
    seq = [i % 7 for i in range(16)]
    val = sum(x << (4 * i) for i, x in enumerate(seq))
    a("s_mov_b32 s44, 0x%x", val & 0xffffffff)
    a("s_mov_b32 s45, 0x%x", val >> 32)
    if opt("rot", 4) == 1:
        a("s_lshl_b32 s10, s%d, 2", S_DB)
        a("s_lshr_b64 s[44:45], s[44:45], s10")
    if opt("rot", 4) == 4:
        a("s_and_b32 s10, s5, 7")
        a("s_lshl_b32 s10, s10, 2")
        a("s_lshr_b64 s[44:45], s[44:45], s10")
    if opt("rot", 4) == 5:
        a("s_and_b32 s10, s5, 7")
        a("s_lshr_b32 s13, s5, 3")
        a("s_lshl_b32 s13, s13, 1")
        a("s_add_u32 s10, s10, s13")
        a("s_sub_u32 s13, s10, 7")
        a("s_min_u32 s10, s10, s13")
        a("s_lshl_b32 s10, s10, 2")
        a("s_lshr_b64 s[44:45], s[44:45], s10")
    if opt("rot", 4) == 3:
        a("s_and_b32 s10, s5, 1")
        a("s_lshl_b32 s10, s10, 4")
        a("s_lshr_b64 s[44:45], s[44:45], s10")
    if opt("rot", 4) == 2:
        a("s_and_b32 s10, s5, 3")
        a("s_lshl_b32 s10, s10, 3")
        a("s_lshr_b64 s[44:45], s[44:45], s10")
    for rd in range(7):
        a("s_bfe_u32 s10, s44, 0x%x", (3 << 16) | (4 * rd))
        a("s_lshl_b32 s%d, s10, 12", S_RT + rd)
    a("v_lshlrev_b32 v%d, 4, v1", VH)
    a("v_lshrrev_b32 v%d, 3, v1", T0)
    a("v_lshlrev_b32 v%d, 10, v%d", T0, T0)
    a("v_bfe_u32 v%d, v1, 4, 1", T1)
    a("v_lshlrev_b32 v%d, 2, v%d", T1, T1)
    a("v_and_b32 v%d, 7, v1", T2)
    a("v_xor_b32 v%d, v%d, v%d", T2, T2, T1)
    a("v_lshl_add_u32 v%d, v%d, 4, v%d", T0, T2, T0)
    a("v_add_u32 v%d, s11, v%d", VWD, T0)
    a("v_lshrrev_b32 v%d, 5, v1", T0)
    a("v_bfe_u32 v%d, v1, 2, 2", T1)
    a("v_lshl_add_u32 v%d, v%d, 2, v%d", T0, T0, T1)
    a("v_lshlrev_b32 v%d, 7, v%d", T0, T0)
    a("v_bfe_u32 v%d, v1, 3, 1", T1)
    a("v_lshl_add_u32 v%d, v%d, 6, v%d", T0, T1, T0)
    a("v_bfe_u32 v%d, v1, 4, 1", T1)
    a("v_lshl_add_u32 v%d, v%d, 5, v%d", T0, T1, T0)
    a("v_and_b32 v%d, 1, v1", T1)
    a("v_lshl_add_u32 v%d, v%d, 4, v%d", T0, T1, T0)
    a("v_bfe_u32 v%d, v1, 1, 1", T1)
    a("v_lshl_add_u32 v%d, v%d, 3, v%d", T0, T1, T0)
    a("v_xor_b32 v%d, s12, v%d", T0, T0)
    a("s_lshl_b32 s12, s12, 8")
    a("v_add_u32 v%d, s12, v%d", VR0, T0)
    a("s_lshl_b32 s10, s3, 2")
    a("s_add_u32 s10, s10, %d", L_SY)
    a("v_mov_b32 v%d, s10", VSY)

def kreads():
    L = []
    for ks in range(8):
        L.append(("ds_read_b128 %s, v%d offset:%d" % (vr(KF + 8 * ks, 4), KA, ks * 16), ("k", ks)))
        L.append(("ds_read_b128 %s, v%d offset:%d" % (vr(KF + 8 * ks + 4, 4), KBa, ks * 16), ("k", ks)))
    return L
def run_kmfma(lg, fill, per):
    for ks in range(8):
        lg.need([("k", ks)])
        d = vr(KD, 4)
        a("v_mfma_f32_16x16x32_bf16 %s, %s, %s, %s", d, vr(KF + 8 * ks, 4), vr(KF + 8 * ks + 4, 4), d if ks else "0")
        for _ in range(per):
            if fill: lg.run(fill.pop(0))
    for f in fill: lg.run(f)
def kmfma_finish(): role(kfin0, kfin1)
def kfin0():
    T = KF
    a("v_cvt_pk_bf16_f32 v%d, v%d, v%d", T, KD, KD + 1)
    a("v_cvt_pk_bf16_f32 v%d, v%d, v%d", T + 1, KD + 2, KD + 3)
    a("ds_write_b64 v%d, %s", KW, vr(T, 2))
def kfin1():
    T = KF
    a("s_mov_b32 s14, 0xaaaaaaaa")
    a("s_mov_b32 s15, 0xaaaaaaaa")
    a("v_cndmask_b32 v%d, v%d, v%d, s[14:15]", T + 12, KD, KD + 1)
    a("v_cndmask_b32 v%d, v%d, v%d, s[14:15]", T + 13, KD + 2, KD + 3)
    a("v_cvt_pk_bf16_f32 v%d, v%d, v%d", T, KD, KD)
    a("v_cvt_pk_bf16_f32 v%d, v%d, v%d", T + 1, KD, KD)
    a("v_cvt_pk_bf16_f32 v%d, v%d, v%d", T + 2, T + 12, KD + 1)
    a("v_cvt_pk_bf16_f32 v%d, v%d, v%d", T + 3, KD + 1, KD + 1)
    a("v_cvt_pk_bf16_f32 v%d, v%d, v%d", T + 4, KD + 2, KD + 2)
    a("v_cvt_pk_bf16_f32 v%d, v%d, v%d", T + 5, KD + 2, KD + 2)
    a("v_cvt_pk_bf16_f32 v%d, v%d, v%d", T + 6, T + 13, KD + 3)
    a("v_cvt_pk_bf16_f32 v%d, v%d, v%d", T + 7, KD + 3, KD + 3)
    a("s_mov_b64 exec, 0xffffffff")
    a("v_cvt_pk_bf16_f32 v%d, v%d, v%d", T + 1, KD, KD + 1)
    a("v_mov_b32 v%d, v%d", T + 2, T + 3)
    a("v_mov_b32 v%d, v%d", T + 3, T + 4)
    a("s_not_b64 exec, exec")
    a("ds_write_b128 v%d, %s offset:1024", KW, vr(T + 4, 4))
    a("s_mov_b64 exec, -1")
    a("ds_write_b128 v%d, %s", KW, vr(T, 4))

def zero_pads_k():
    T = KF + 16
    a("v_mov_b32 v%d, 0", T)
    a("v_bfe_u32 v%d, v1, 4, 1", T + 1)
    a("v_and_b32 v%d, 15, v1", T + 2)
    a("v_mul_u32_u24 v%d, %d, v%d", T + 3, KCH, T + 1)
    a("v_lshl_add_u32 v%d, v%d, 2, v%d", T + 3, T + 2, T + 3)
    a("v_mul_u32_u24 v%d, %d, v%d", T + 4, CYCH, T + 1)
    a("v_lshl_add_u32 v%d, v%d, 2, v%d", T + 4, T + 2, T + 4)
    a("v_lshlrev_b32 v%d, 2, v1", T + 5)
    a("s_mov_b64 exec, 0xffffffff")
    a("ds_write_b32 v%d, v%d offset:%d", T + 3, T, L_K)
    a("ds_write_b32 v%d, v%d offset:%d", T + 4, T, L_CY)
    a("ds_write_b32 v%d, v%d offset:%d", T + 5, T, L_SY)
    a("s_mov_b64 exec, -1")
def zero_pads_u():
    T = KD
    for i in range(4): a("v_mov_b32 v%d, 0", T + i)
    a("v_and_b32 v%d, 31, v1", 233)
    a("v_lshlrev_b32 v%d, 4, v%d", 233, 233)
    a("v_lshrrev_b32 v%d, 5, v1", 234)
    a("v_mul_u32_u24 v%d, %d, v%d", 234, UCH, 234)
    a("v_add_u32 v%d, v%d, v%d", 233, 233, 234)
    a("ds_write_b128 v%d, %s offset:%d", 233, vr(T, 4), L_U)
def sig(vaddr, off):
    a("s_mov_b64 exec, 1")
    a("ds_write_b32 v%d, v6 offset:%d", vaddr, off)
    a("s_mov_b64 exec, -1")
VUL2 = 156
def u_load():
    a("v_lshlrev_b32 v%d, 5, v1", VUL + 4)
    a("s_lshl_b32 s10, s2, 13")
    a("s_lshl_b32 s11, s%d, 11", S_TQ)
    a("s_add_u32 s10, s10, s11")
    a("s_add_u32 s10, s10, %d", WS_UT)
    a("buffer_load_dwordx4 %s, v%d, %s, s10 offen sc1", vr(VUL, 4), VUL + 4, sr(SWS, 4))
    a("buffer_load_dwordx4 %s, v%d, %s, s10 offen offset:16 sc1", vr(VUL2, 4), VUL + 4, sr(SWS, 4))
def u_write():
    a("s_lshl_b32 s11, s%d, 10", S_TQ)
    a("v_add_u32 v%d, s11, v%d", VUL + 4, VH)
    a("ds_write_b128 v%d, %s offset:%d", VUL + 4, vr(VUL, 4), L_U + 512)
    a("ds_write_b128 v%d, %s offset:%d", VUL + 4, vr(VUL2, 4), L_U + UCH + 512)
def onwave(w, fn):
    lb = a.label("Low")
    a("s_cmp_lg_u32 s3, %d", w)
    a("s_cbranch_scc1 %s", lb)
    fn()
    a(lb + ":")
def role(lo, hi):
    l1 = a.label("Lr1"); l2 = a.label("Lr2")
    a("s_cmp_ge_u32 s3, 4")
    a("s_cbranch_scc1 %s", l1)
    if lo is None:
        a.lines[-1] = a.lines[-1].replace("scc1", "scc0")
        hi()
        a(l1 + ":")
        return
    if lo: lo()
    if hi:
        a("s_branch %s", l2)
        a(l1 + ":")
        hi()
        a(l2 + ":")
    else:
        a(l1 + ":")

def nonce_issue():
    a("global_load_dwordx2 %s, v%d, %s sc1", vr(VN, 2), VZ, sr(P_DBG, 2))
slow = []
def nonce_check():
    ok = a.label("Lnok"); lp = a.label("Lnlp")
    a(ok + "r:")
    a("v_readfirstlane_b32 s10, v%d", VN + 1)
    a("v_readfirstlane_b32 s%d, v%d", S_NONCE, VN)
    a("s_cmp_lg_u32 s10, 1")
    a("s_cbranch_scc1 %s", lp)
    a(ok + ":")
    def sp():
        a(lp + ":")
        a("s_add_u32 s%d, s%d, 1", S_SPIN, S_SPIN)
        a("s_cmp_ge_u32 s%d, %d", S_SPIN, SPINMAX)
        a("s_cbranch_scc1 %s", ok)
        a("s_sleep 2")
        a("global_load_dwordx2 %s, v%d, %s sc1", vr(VN, 2), VZ, sr(P_DBG, 2))
        a("s_waitcnt vmcnt(0)")
        a("s_branch %sr", ok)
    slow.append(sp)
def poll_issue(n):
    a("v_min_u32 v%d, %d, v1", VN + 2, n - 1)
    a("v_lshlrev_b32 v%d, 2, v%d", VN + 2, VN + 2)
    a("buffer_load_dword v%d, v%d, %s, s%d offen sc1", VN - 1, VN + 2, sr(SWS, 4), S_PB)
def poll_check(sleep=2):
    ok = a.label("Lpok"); lp = a.label("Lplp")
    a(ok + "r:")
    a("v_cmp_ne_u32 vcc, s%d, v%d", S_NONCE, VN - 1)
    a("s_cmp_lg_u64 vcc, 0")
    a("s_cbranch_scc1 %s", lp)
    a(ok + ":")
    def sp():
        a(lp + ":")
        a("s_add_u32 s%d, s%d, 1", S_SPIN, S_SPIN)
        a("s_cmp_ge_u32 s%d, %d", S_SPIN, SPINMAX)
        a("s_cbranch_scc1 %s", ok)
        if sleep: a("s_sleep %d", sleep)
        a("buffer_load_dword v%d, v%d, %s, s%d offen sc1", VN - 1, VN + 2, sr(SWS, 4), S_PB)
        a("s_waitcnt vmcnt(0)")
        a("s_branch %sr", ok)
    slow.append(sp)
def flag_store(sbase):
    if opt("sflag", 2) & 1:
        a("s_mov_b32 s11, s%d", S_NONCE)
        a("s_buffer_atomic_swap s11, %s, %s", sr(SWS, 4), sbase)
        return
    a("v_mov_b32 v%d, 0", VN)
    a("v_mov_b32 v%d, s%d", VN + 1, S_NONCE)
    a("s_mov_b64 exec, 1")
    a("buffer_store_dword v%d, v%d, %s, %s offen sc1", VN + 1, VN, sr(SWS, 4), sbase)
    a("s_mov_b64 exec, -1")
def lds_wait(vaddr, off, vtmp, sleep=1):
    lp = a.label("Llw"); ok = a.label("Llok")
    a(lp + ":")
    a("ds_read_b32 v%d, v%d offset:%d", vtmp, vaddr, off)
    a("s_add_u32 s%d, s%d, 1", S_SPIN, S_SPIN)
    a("s_waitcnt lgkmcnt(0)")
    a("v_cmp_eq_u32 vcc, 0, v%d", vtmp)
    a("s_cmp_eq_u64 vcc, 0")
    a("s_cbranch_scc1 %s", ok)
    if sleep: a("s_sleep %d", sleep)
    a("s_cmp_lt_u32 s%d, %d", S_SPIN, SPINMAX * 16)
    a("s_cbranch_scc1 %s", lp)
    a(ok + ":")

a("s_cmp_ge_u32 s2, 256")
a("s_cbranch_scc1 L_end")
if STAMP:
    a("s_memrealtime s[96:97]")
    a("s_memtime s[98:99]")
a("s_load_dwordx16 s[16:31], s[0:1], 0")
a("s_load_dwordx16 s[32:47], s[0:1], 64")
a("s_load_dwordx2 s[48:49], s[0:1], 128")
a("v_lshrrev_b32 v2, 6, v0")
a("s_lshr_b32 s5, s2, 3")
if opt("cpf", 1):
    a("s_getpc_b64 s[10:11]")
    a("L_pc:")
    a("s_lshl_b32 s12, s5, 10")
    a("v_lshl_add_u32 v3, v2, 7, s12")
    a("v_and_b32 v4, 1, v0")
    a("v_lshl_add_u32 v3, v4, 6, v3")
    a("v_and_b32 v4, 2, v0")
    a("v_lshl_add_u32 v3, v4, 14, v3")
    a("v_min_u32 v3, L_end-L_pc, v3")
    a("global_load_dword v19, v3, s[10:11]")
a("v_and_b32 v1, 63, v0")
a("v_readfirstlane_b32 s3, v2")
a("s_and_b32 s4, s2, 7")
kgen_setup()
if STAMP: a("v_mov_b32 v255, 0")
VX0, VX1, VW0, VW1 = 4, 5, 6, 7
VXR = 8
T0, T1, T2, T3 = 14, 15, 16, 17
S_RO, S_LO, S_T3 = 60, 20, 24
S_KO = 99 if not STAMP else 93
def srd_base(r, p):
    a("s_mov_b32 s%d, s%d", r, p)
    a("s_and_b32 s%d, s%d, 0xffff", r + 1, p + 1)
def srd_const(r, n):
    a("s_mov_b32 s%d, 0x%x", r + 2, n)
    a("s_mov_b32 s%d, 0x20000", r + 3)
def misc_init():
    a("s_mov_b32 s%d, 0", S_SPIN)
    a("v_mov_b32 v%d, 0", VZ)
    a("v_mov_b32 v%d, 0", VN + 2)
    for r, n in ((SWS, WS_BYTES), (SW, 1792 * 1024), (SO, 2048 * 1024)): srd_const(r, n)
a("s_and_b32 s10, s4, 6")
a("s_lshl_b32 s6, s10, 1")
a("s_and_b32 s7, s5, 3")
a("s_add_u32 s6, s6, s7")
a("s_and_b32 s10, s4, %d", opt("krot", 6))
a("s_lshl_b32 s%d, s10, 7", S_T)
a("s_mul_i32 s10, s10, 0x11111111")
a("s_add_u32 s%d, s10, 0x76543210", S_KO)
a("s_lshl_b32 s10, s6, 7")
a("s_lshl_b32 s11, s3, 4")
a("s_add_u32 s10, s10, s11")
a("s_lshl_b32 s10, s10, 10")
a("v_lshrrev_b32 v%d, 3, v1", T0)
a("v_lshlrev_b32 v%d, 10, v%d", T0, T0)
a("v_lshrrev_b32 v%d, 4, v1", T1)
a("v_and_b32 v%d, 7, v1", T2)
a("v_xor_b32 v%d, v%d, v%d", T2, T2, T1)
a("v_lshl_add_u32 v%d, v%d, 4, v%d", T0, T2, T0)
a("v_add_u32 v%d, s10, v%d", VX0, T0)
a("v_xor_b32 v%d, 64, v%d", VX1, VX0)
a("v_add_u32 v%d, 0x2000, v%d", VX1, VX1)
a("s_lshl_b32 s%d, s3, 11", S_W2K)
srd_const(SX, 2048 * 1024)
a("s_waitcnt lgkmcnt(0)")
kgen_loads()
srd_base(SX, P_U)
a("s_cmp_lt_u32 s5, 4")
a("s_cselect_b32 s%d, 1, 0", S_ISAUX)
a("s_cbranch_scc1 L_aux")

vm = []
def vmwait(tags):
    idx = [i for i, t in enumerate(vm) if t in tags]
    return len(vm) - 1 - max(idx)
def dma1(stage, j, m0r=None):
    slot = stage % 3
    if j == 0 or (j == 3 and stage < 2):
        a("s_bfe_u32 s%d, s%d, 0x%x", S_T, S_KR, (3 << 16) | (4 * stage))
        a("s_mul_i32 s%d, s%d, %d", S_T2, S_T, 64 * 3584)
        a("s_lshl_b32 s%d, s%d, 7", S_T, S_T)
    if j in (1, 2):
        a("s_add_u32 m0, s%d, %d", S_W2K, XB[slot] * BLK + (j - 1) * 1024)
        a("buffer_load_dwordx4 v%d, %s, s%d offen%s lds", VX0 + j - 1, sr(SX, 4), S_T, " nt" if (opt("xnt", 0) >> stage) & 1 else "")
    else:
        p = 0 if j == 0 else j - 2
        a("s_add_u32 m0, s%d, %d", S_LO + p, GB[slot] * BLK)
        a("s_add_u32 s%d, s%d, s%d", S_T3, S_T2, S_RO + p)
        a("buffer_load_dwordx4 v%d, %s, s%d offen%s lds", VW0, sr(SG, 4), S_T3, " nt" if (opt("wnt", 0) >> stage) & 1 else "")
    if m0r is not None: a("s_mov_b32 m0, s%d", m0r)
    vm.append(("G1", stage))
vm += [("KP", 0)] * 7
dma1(0, 1); dma1(0, 2)
a("s_mov_b32 s%d, s%d", S_KR, S_KO)
a("s_and_b32 s7, s4, 1")
a("s_mul_i32 s7, s7, 7")
a("s_lshr_b32 s8, s5, 2")
a("s_add_u32 s7, s7, s8")
a("s_sub_u32 s7, s7, 1")
a("s_and_b32 s12, s3, 3")
a("s_mul_i32 s10, s12, %d", 4 * 3584)
a("s_lshl_b32 s11, s7, 8")
a("s_add_u32 s10, s10, s11")
a("v_mul_u32_u24 v%d, 3584, v%d", T0, T1)
a("s_and_b32 s11, s3, 2")
a("s_lshl_b32 s11, s11, 2")
a("v_lshl_or_b32 v%d, v%d, 1, s11", T2, T1)
a("v_and_b32 v%d, 15, v1", T3)
a("v_xor_b32 v%d, v%d, v%d", T2, T2, T3)
a("v_lshl_add_u32 v%d, v%d, 4, v%d", T0, T2, T0)
a("v_add_u32 v%d, s10, v%d", VW0, T0)
a("s_cmp_ge_u32 s3, 4")
a("s_cselect_b32 s%d, s%d, s%d", SG, P_WU, P_WG)
a("s_cselect_b32 s%d, s%d, s%d", SG + 1, P_WU + 1, P_WG + 1)
a("s_cselect_b32 s10, %d, 0", BLK)
a("s_and_b32 s%d, s%d, 0xffff", SG + 1, SG + 1)
srd_const(SG, 512 * 3584)
a("s_lshl_b32 s12, s12, 10")
a("s_add_u32 s10, s10, s12")
for j in range(4):
    if j: a("s_add_u32 s11, s5, %d", j)
    a("s_and_b32 s11, %s, 3", "s11" if j else "s5")
    a("s_mul_i32 s%d, s11, %d", S_RO + j, 16 * 3584)
    a("s_lshl_b32 s11, s11, 12")
    a("s_add_u32 s%d, s10, s11", S_LO + j)
    if j == 0:
        dma1(0, 0)
        if opt("s1first", 1): dma1(1, 0)
a("s_and_b32 s8, s3, 1")
a("s_lshr_b32 s9, s3, 1")
misc_init()
stamp(11)
def common_srds():
    srd_base(SWS, P_WS); srd_base(SW, P_WD); srd_base(SO, P_OUT)
later_addrs(T0, T1, T2)
for j in range(1 if opt("s1first", 1) else 0, 3): dma1(1, j)
def g1_read_addrs():
    t0, t1, t2 = 18, 19, 20
    a("v_and_b32 v%d, 15, v1", t0)
    a("v_lshrrev_b32 v%d, 4, v1", t1)
    a("v_bfe_u32 v%d, v1, 1, 3", t2)
    a("v_xor_b32 v%d, v%d, v%d", t2, t2, t1)
    a("v_lshlrev_b32 v%d, 7, v%d", t0, t0)
    a("v_lshl_add_u32 v%d, v%d, 4, v%d", t0, t2, t0)
    a("s_lshl_b32 s10, s8, 13")
    a("v_add_u32 v%d, s10, v%d", VXR, t0)
    a("v_xor_b32 v%d, 64, v%d", VXR + 1, VXR)
    a("v_bfe_u32 v%d, v1, 2, 2", t0)
    a("v_lshl_add_u32 v%d, v%d, 3, v%d", t0, t1, t0)
    a("v_lshlrev_b32 v%d, 8, v%d", t0, t0)
    a("v_bfe_u32 v%d, v1, 2, 3", t2)
    a("s_and_b32 s10, s3, 2")
    a("s_lshl_b32 s10, s10, 1")
    a("v_xor_b32 v%d, s10, v%d", t2, t2)
    a("v_lshl_add_u32 v%d, v%d, 5, v%d", t0, t2, t0)
    a("v_and_b32 v%d, 3, v1", t2)
    a("v_lshl_add_u32 v%d, v%d, 3, v%d", t0, t2, t0)
    a("v_add_u32 v10, %d, v%d", 4 * BLK, t0)
    for m in range(1, 4): a("v_xor_b32 v%d, %d, v10", 10 + m, m << 5)
    for m in range(4): a("v_add_u32 v%d, %d, v%d", 14 + m, 4 * BLK, 10 + m)
def late_setup(comp, T0, T1, T2):
    common_srds()
    if comp:
        a("s_lshl_b32 s10, s6, 2")
        a("s_lshl_b32 s11, s8, 1")
        a("s_add_u32 s10, s10, s11")
        a("s_mul_i32 s10, s10, 112")
        a("s_lshl_b32 s11, s7, 3")
        a("s_add_u32 s10, s10, s11")
        a("s_lshl_b32 s11, s9, 2")
        a("s_add_u32 s10, s10, s11")
        a("s_lshl_b32 s%d, s10, 10", S_HST)
        a("s_mul_i32 s10, s6, %d", FSTR * (16 if PCF else 1))
        a("s_lshl_b32 s11, s7, 2")
        a("s_add_u32 s10, s10, s11")
        a("s_add_u32 s%d, s10, %d", S_FH, F_H2)
    later_addrs3(T0, T1, T2)
FX = 20
FA = 52
NAR = 10
ACC = 92
AORD = [(gu, m) for m in range(4) for gu in range(2)]
def xreads(step):
    st, ks = step // 2, step % 2
    return [("ds_read_b128 %s, v%d offset:%d" % (vr(FX + (step % 2) * 16 + 4 * tt, 4), VXR + ks, XB[st % 3] * BLK + tt * 2048), (step, "x", tt)) for tt in range(4)]
def TS(n):
    if n >= 112 and opt("psplit", 1):
        k = n - 112
        return 14 + ((k >> 2) & 1), (k & 3) + 4 * (k >> 3)
    return n // 8, n % 8
def areads(n):
    step, i = TS(n)
    st, ks = step // 2, step % 2
    gu, m = AORD[i]
    blk = GB[st % 3] + gu
    reg, rel = (10, blk - 4) if blk < 8 else (14, blk - 8)
    return [("ds_read_b64_tr_b16 %s, v%d offset:%d" % (vr(FA + 4 * (n % NAR) + 2 * hf, 2), reg + m, rel * BLK + ks * 8192 + hf * 1024), ("a", n)) for hf in range(2)]
def kgen_all(dmas):
    khead, ktail = kgen_valu(False)
    for i in khead: a(i)
    if opt("diag1", 0): stamp(7, True)
    a("s_mov_b32 m0, s%d", S_TM0)
    wr = {w_.split()[1]: w_ for w_ in kgen_writes()}
    q = []
    n = len(ktail); k = 0
    for n_, i in enumerate(ktail):
        a(i)
        if q and n_ % 1 == 0 and len(q) > 1: a(q.pop(0))
        if i.startswith("v_cvt"): q.append(wr[i.split()[1].rstrip(",")])
        if dmas and n_ >= opt("d1start", 40) and (n_ - opt("d1start", 40)) % opt("d1step", 20) == 0: dmas.pop(0)()
    for w_ in q: a(w_)
    for d in dmas: d()
def touch(stage):
    a("s_bfe_u32 s10, s%d, 0x%x", S_KR, (3 << 16) | (4 * stage))
    a("s_mul_i32 s10, s10, %d", 64 * 3584)
    a("s_add_u32 s10, s10, s%d", S_RO)
    a("buffer_load_dwordx4 v[52:55], v%d, %s, s10 offen", VW0, sr(SG, 4))
    vm.append(("T", 0))
if opt("stub", 1):
    for k_ in (0, 2):
        a("s_cmp_eq_u32 s3, %d", k_)
        a("s_cbranch_scc1 L_st%d", k_)
a("L_stret:")
a("s_waitcnt vmcnt(%d)", vmwait([("KP", 0)]))
stamp(0)
kgen_all([(lambda j=j: dma1(0, j, S_TM0)) for j in range(3, 6)])
stamp(14)
a("s_waitcnt lgkmcnt(0)")
a("s_barrier")
stamp(12)
lg = Lg()
for r in kreads(): lg.issue(*r)
a.srd(28, P_WG, 512 * 3584)
def ld_setup():
    a("v_subrev_u32 v8, 0x10000, v%d", VX0)
    a("v_subrev_u32 v9, 0x10000, v%d", VX1)
if opt("s1early", 1):
    for j in range(3, 6): dma1(1, j)
role(g1_read_addrs, ld_setup)
run_kmfma(lg, [], 0)
if not opt("s1early", 1):
    for j in range(3, 6): dma1(1, j)
a("s_waitcnt vmcnt(%d)", vmwait([("G1", 0)]))
a("s_barrier")
stamp(1)
class Raw:
    def __init__(self, f): self.f = f
a("s_cmp_ge_u32 s3, 4")
a("s_cbranch_scc1 L_load")
WST = 144
WSTO = {5: 0, 4: 32, 6: 64}
W4T = opt("w4t", 0)
W2T = opt("w2t", 0)
W1T = opt("w1t", 1)
def stage_w(rd, i0=0, n=8):
    a("s_lshl_b32 s13, s%d, 4", S_RT + rd)
    a("s_add_u32 s13, s13, s%d", S_WSO)
    if i0: a("s_add_u32 s13, s13, %d", i0 * 8192)
    for i in range(i0, i0 + n):
        a("buffer_load_dwordx4 %s, v%d, %s, s13 offen", vr(WST + WSTO[rd] + 4 * i, 4), VWD, sr(SW, 4))
        if i < i0 + n - 1: a("s_add_u32 s13, s13, 8192")
EUD = 244
def eops_load(EU=56, ED=60, t1=64, t2=65, t3=66):
    a("v_and_b32 v%d, 31, v1", t1)
    a("v_lshrrev_b32 v%d, 5, v1", t2)
    a("v_lshlrev_b32 v%d, 4, v%d", t3, t2)
    a("v_lshl_add_u32 v%d, v%d, 10, v%d", t1, t1, t3)
    a("buffer_load_dwordx4 %s, v%d, %s, s%d offen", vr(EU, 4), t1, sr(SX, 4), S_OB)
    a("v_add_u32 v%d, s%d, v%d", t3, S_DOFF, t3)
    a("global_load_dwordx4 %s, v%d, %s", vr(ED, 4), t3, sr(P_DSK, 2))
def eops_calc(EU=56, ED=60, t1=64, t2=65, t3=66):
    for j in range(4):
        a("v_lshlrev_b32 v%d, 16, v%d", t1, EU + j)
        a("v_lshlrev_b32 v%d, 16, v%d", t2, ED + j)
        a("v_and_b32 v%d, 0xffff0000, v%d", EU + j, EU + j)
        a("v_and_b32 v%d, 0xffff0000, v%d", ED + j, ED + j)
        a("v_mul_f32 v%d, v%d, v%d", t1, t1, t2)
        a("v_mul_f32 v%d, v%d, v%d", t2, EU + j, ED + j)
        a("v_cvt_pk_bf16_f32 v%d, v%d, v%d", EUD + j, t1, t2)
def dma_w(rd, i):
    a("s_lshl_b32 s10, s3, 12")
    a("s_add_u32 m0, s10, %d", WB[rd] * BLK + i * 1024)
    a("s_lshl_b32 s10, s%d, 4", S_RT + rd)
    a("s_add_u32 s10, s10, s%d", S_W0S)
    a("s_add_u32 s10, s10, %d", i * 8192)
    a("buffer_load_dwordx4 v%d, %s, s10 offen lds", VWD, sr(SW, 4))
    vm.append(("W0", 0))
S_PFI = 101
if opt("cprio", 2): a("s_setprio %d", opt("cprio", 2))
lg = Lg()
for r in areads(0) + xreads(0): lg.issue(*r)
for n in range(1, 8):
    for r in areads(n): lg.issue(*r)
    if n == 7: lg.run(kfin0)
a("s_waitcnt lgkmcnt(8)") if False else None
kv = a.capture(late_setup, True, 18, 19, 7)
EL = opt("elate", 0)
ECT = dict(EU=220, ED=224, t1=228, t2=229, t3=230)
def epilogue(p):
    for tt in range(4):
        dst = ACC + ((4 + 2 * p) * 4 + tt) * 4
        for m in (2 * p, 2 * p + 1):
            g = ACC + (m * 4 + tt) * 4; u = ACC + ((4 + m) * 4 + tt) * 4
            if (opt("eplain", 3) >> p) & 1:
                for q_ in range(4): a("v_mul_f32 v%d, v%d, v%d", g + q_, g + q_, u + q_)
            else:
                for q_ in range(2): a("v_pk_mul_f32 %s, %s, %s", vr(g + 2 * q_, 2), vr(g + 2 * q_, 2), vr(u + 2 * q_, 2))
        for m in (2 * p, 2 * p + 1):
            g = ACC + (m * 4 + tt) * 4
            for q_ in range(2): a("v_cvt_pk_bf16_f32 v%d, v%d, v%d", dst + 2 * (m & 1) + q_, g + 2 * q_, g + 2 * q_ + 1)
        a("buffer_store_dwordx4 %s, v18, %s, s%d offen offset:%d sc1", vr(dst, 4), sr(SWS, 4), S_HST if tt < 2 else 10, 2048 * p + 256 * (tt & 1))
epi = [a.capture(epilogue, 0), a.capture(epilogue, 1)]
AHEAD = 8
for step in range(16):
    st, ks = step // 2, step % 2
    q = []
    if step < 15:
        sched = {}
        for i in range(8):
            g_ = max(0, 4 * (i - (NAR - 8)) + 3) if opt("snake", 1) != 2 else max(0, 4 * ((i - (NAR - 8)) | 1) + 3)
            sched.setdefault(g_, []).extend(areads((step + 1) * 8 + i))
        xq = xreads(step + 1)
    order = [(i, tt if (i % 2 == 0 or not opt("snake", 1)) else 3 - tt) for i in range(8) for tt in range(4)]
    if opt("snake", 1) == 2:
        order = []
        for i2 in range(0, 8, 2):
            for tt in range(4):
                pr = [(i2, tt), (i2 + 1, tt)]
                order += pr if tt % 2 == 0 else pr[::-1]
    for g, (i, tt) in enumerate(order):
        n = step * 8 + i
        rs, ri = TS(n)
        gu, m = AORD[ri]
        d = vr(ACC + ((gu * 4 + m) * 4 + tt) * 4, 4)
        lg.need([("a", n), (rs, "x", tt)])
        a("v_mfma_f32_16x16x32_bf16 %s, %s, %s, %s", d, vr(FA + 4 * (n % NAR), 4), vr(FX + (rs % 2) * 16 + 4 * tt, 4), d if step else "0")
        if step < 15: q += sched.pop(g, [])
        if step == 15 and g >= (2 if opt("psplit", 1) else 18) and not kv:
            for _ in range(opt("epg", 2 if opt("psplit", 1) else 3)):
                if epi[0]: a(epi[0].pop(0))
        if q: lg.issue(*q.pop(0))
        elif step < 15 and xq: lg.issue(*xq.pop(0))
        elif kv:
            k_ = kv.pop(0)
            k_() if callable(k_) else a(k_)
            if kv and not callable(k_) and k_.startswith("s_") and not callable(kv[0]) and opt("s2", 1): a(kv.pop(0))
    assert not q and (step == 15 or not xq)
    if ks == 0:
        a("s_waitcnt %slgkmcnt(0)", "vmcnt(0) " if st == 0 else ""); lg.drained()
        a("s_barrier")
        if opt("stg", 0): stamp([4, 5, 6, 7, 8, 10, 13, 14][st], True)
        if st == 5:
            assert not kv, len(kv)
            kv = [] if EL else a.capture(eops_load, *[ECT[k] for k in ("EU", "ED", "t1", "t2", "t3")])
            kv += ["v_lshrrev_b32 v18, 4, v1", "v_lshlrev_b32 v18, 9, v18", "v_and_b32 v19, 15, v1", "v_lshl_add_u32 v18, v19, 4, v18",
                   "s_add_u32 s10, s%d, %d" % (S_HST, 112 * 1024)]
        if st == 6 and not EL:
            kv = ["s_waitcnt vmcnt(0)"] + a.capture(eops_calc, *[ECT[k] for k in ("EU", "ED", "t1", "t2", "t3")])
        if st == 7:
            a("ds_read_b32 v%d, v%d offset:%d", VN, VZ, L_SY + 100)
assert not kv
stamp(2)
for k_ in epi[0] + epi[1]: a(k_)
a("s_waitcnt lgkmcnt(0)")
a("v_readfirstlane_b32 s%d, v%d", S_NONCE, VN)

def loader():
    SG2 = 28
    VX2 = 8
    a("L_load:")
    def stage_list(s_):
        slot = s_ % 3
        def wp(p):
            if p == 0:
                a("s_bfe_u32 s%d, s%d, 0x%x", S_T, S_KR, (3 << 16) | (4 * s_))
                a("s_mul_i32 s%d, s%d, %d", S_T2, S_T, 64 * 3584)
                a("s_lshl_b32 s%d, s%d, 7", S_T, S_T)
            for m in range(2):
                a("s_add_u32 m0, s%d, %d", S_LO + p, (GB[slot] - 1 + m) * BLK)
                if m == 0: a("s_add_u32 s%d, s%d, s%d", S_T3, S_T2, S_RO + p)
                a("buffer_load_dwordx4 v%d, %s, s%d offen lds", VW0, sr([SG2, SG][m], 4), S_T3)
                vm.append(("G1", s_))
        def xp(h_):
            for i in range(2):
                a("s_add_u32 m0, s%d, %d", S_W2K, (XB[slot] * BLK + i * 1024 - (1 - h_) * 8192) & 0xffffffff)
                a("buffer_load_dwordx4 v%d, %s, s%d offen lds", [VX2, VX0][h_] + i, sr(SX, 4), S_T)
                vm.append(("G1", s_))
        return [(s_, f) for f in (lambda: wp(0), lambda: xp(0), lambda: xp(1), lambda: wp(1), lambda: wp(2), lambda: wp(3))]
    dl = sum([stage_list(s_) for s_ in range(2, 8)], [])
    CNT = [int(c, 16) for c in str(opt("cnt", 367776))]
    assert sum(CNT) == 36
    def issue(k):
        for _ in range(CNT[k]):
            s_, f = dl.pop(0)
            assert s_ <= k + 2
            f()
        assert not dl or dl[0][0] > k + 1
    wl = hl_list(True)
    def wloads(n):
        for _ in range(n):
            wl.pop(0)(); vm.append(("W", 0))
    issue(0)
    kfin1()
    ls = a.capture(late_setup, False, T0, T1, T2)
    for st in range(8):
        if st < 7: a("s_waitcnt vmcnt(%d) lgkmcnt(0)", vmwait([("G1", st + 1)]))
        else: a("s_waitcnt lgkmcnt(0)")
        a("s_barrier")
        if st <= 4: issue(st + 1)
        if st == 0: onwave(4, zero_pads_k)
        if 1 <= st <= 3:
            n_ = (len(ls) + 3 - st) // (4 - st)
            for k_ in ls[:n_]: a(k_)
            ls = ls[n_:]
        if st == 4:
            later_addrs2(T0, T1, T2)
            conv_prelude()
            if UE:
                a("s_mov_b32 s%d, %d", S_PB, F_A)
                poll_issue(32); vm.append(("X", 0))
                nonce_issue(); vm.append(("X", 0))
        def ucheck():
            a("s_waitcnt vmcnt(%d)", vmwait([("X", 0)]))
            nonce_check()
            def wn():
                a("s_mov_b64 exec, 1")
                a("ds_write_b32 v%d, v%d offset:%d", VZ, VN, L_SY + 100)
                a("s_mov_b64 exec, -1")
            onwave(4, wn)
            a("v_cmp_ne_u32 vcc, s%d, v%d", S_NONCE, VN - 1)
            a("s_cmp_lg_u64 vcc, 0")
            a("s_cselect_b32 s%d, 1, 0", S_PFI)
            a("s_cbranch_scc1 L_udef")
            u_load()
            a("L_udef:")
            vm.append(("U", 0))
        if st == 5:
            eops_load(); vm.append(("E", 0)); vm.append(("E", 0))
            onwave(5, zero_pads_u)
            if UE: ucheck()
            else:
                a("s_mov_b32 s%d, %d", S_PB, F_A)
                poll_issue(32); vm.append(("X", 0))
                nonce_issue(); vm.append(("X", 0))
            wloads(NW[1])
        if st == 6:
            if not UE: ucheck()
            else:
                a("s_waitcnt vmcnt(%d)", vmwait([("U", 0)]))
                u_write()
                eops_calc()
            wloads(NW[2])
    stamp(2)
    wloads(min(NW[3], 8))
    if not UE:
        a("s_cmp_eq_u32 s%d, 0", S_PFI)
        a("s_cbranch_scc1 L_uok")
        poll_check(4)
        u_load()
        a("s_waitcnt vmcnt(0)")
        a("L_uok:")
        a("s_waitcnt vmcnt(%d)", vmwait([("U", 0)]))
        u_write()
        sig(VSY, 0)
        wloads(NW[3] - min(NW[3], 8))
        eops_calc()
        a("v_and_b32 v19, 3, v1")
        a("v_lshlrev_b32 v19, 2, v19")
        lds_wait(19, L_SY + 16, 18, 0)
    if opt("hold", 0): lds_wait(7, 104, 18, 1)
UE = opt("ue", 0)
def conv_prelude():
    a("v_mov_b32 v6, 1")
    a("v_mov_b32 v7, %d", L_SY)
    a("s_lshl_b32 s10, s%d, 4", S_TQ)
    a("s_add_u32 s10, s10, %d", L_SY + 32)
    a("v_mov_b32 v108, s10")
    a("v_xor_b32 v109, 16, v108")
NW = [0, opt("nw5", 8), opt("nw6", 8), opt("nw7", 0)]
AUX0 = len(a.lines)
HIST0 = list(a.hist)
a("L_aux:")
misc_init()
common_srds()
a("s_lshl_b32 s6, s4, 2")
a("s_add_u32 s6, s6, s5")
PITCH = 1040
GRP = 16 * PITCH
LA1 = 6 * BLK - GRP
LGW = GRP
a("v_lshlrev_b32 v20, 4, v1")
a("s_mov_b32 s9, %d", F_E)
a("buffer_load_dword v12, v%d, %s, s9 offen sc1", VZ, sr(SWS, 4))
a("s_lshl_b32 s7, s6, 16")
a("s_lshl_b32 s8, s3, 13")
a("s_add_u32 s7, s7, s8")
a("s_mul_i32 s8, s3, %d", 8 * PITCH)
a("s_cmp_ge_u32 s3, 2")
a("s_cselect_b32 s10, %d, 0", LA1)
a("s_add_u32 s8, s8, s10")
def xall():
    a("s_and_b32 s11, s3, 3")
    a("s_lshl_b32 s24, s6, 16")
    a("s_lshl_b32 s12, s11, 12")
    a("s_add_u32 s24, s24, s12")
    a("s_mul_i32 s12, s11, %d", 4 * PITCH)
    for g in range(4):
        for j in range(4):
            a("s_add_u32 m0, s12, %d", (LA1 + g * GRP if g else 0) + j * PITCH)
            a("s_add_u32 s13, s24, %d", (16 * g + j) * 1024)
            a("buffer_load_dwordx4 v20, %s, s13 offen%s lds", sr(SX, 4), " nt" if opt("ant", 0) else "")
onwave(4, lambda: a("global_load_dwordx4 v[28:31], v20, %s", sr(P_GW, 2)))
role(None, xall)
later_addrs(T0, T1, T2)
a("v_lshrrev_b32 v22, 4, v1")
a("v_bfe_u32 v23, v1, 2, 2")
a("v_lshl_add_u32 v23, v23, 2, v22")
a("v_mul_u32_u24 v23, %d, v23", PITCH)
a("v_and_b32 v8, 3, v1")
a("v_lshl_add_u32 v23, v8, 3, v23")
a("v_bfe_u32 v8, v1, 1, 3")
a("v_lshlrev_b32 v8, 13, v8")
a("v_lshl_add_u32 v8, v22, 5, v8")
a("v_and_b32 v9, 1, v1")
a("v_lshl_add_u32 v8, v9, 4, v8")
a("s_lshl_b32 s25, s6, 8")
a("s_add_u32 s25, s25, %d", WS_UT)
def ut_part(aa, n, sh):
    a("s_lshl_b32 s10, s3, %d", sh + 5)
    a("s_add_u32 s11, s10, %d", LA1 + 2 * GRP if aa else 0)
    a("v_add_u32 v10, s11, v23")
    a("s_add_u32 s11, s10, %d", LA1 + (2 * aa + 1) * GRP)
    a("v_add_u32 v11, s11, v23")
    for j in range(n):
        for hf in range(2):
            a("ds_read_b64_tr_b16 %s, v%d offset:%d", vr(64 + 4 * j + 2 * hf, 2), 10 + hf, j * 32)
    a("s_lshl_b32 s10, s3, %d", sh + 16)
    a("s_add_u32 s10, s10, s25")
    for j in range(n):
        a("s_waitcnt lgkmcnt(%d)", 2 * (n - 1 - j))
        a("s_add_u32 s13, s10, %d", j * 65536 + aa * 128)
        a("buffer_store_dwordx4 %s, v8, %s, s13 offen sc1", vr(64 + 4 * j, 4), sr(SWS, 4))
a("s_cmp_ge_u32 s3, 4")
a("s_cbranch_scc1 L_auxhi")
a("s_waitcnt vmcnt(0)")
a("s_or_b32 s10, s2, s3")
a("s_cmp_lg_u32 s10, 0")
a("s_cbranch_scc1 L_auxk")
a("s_mov_b32 s10, 0x9e3779b1")
a("v_mul_lo_u32 v12, v12, s10")
a("v_add_u32 v12, 0x7f4a7c15, v12")
a("v_mov_b32 v13, 1")
a("s_mov_b64 exec, 1")
a("global_store_dwordx2 v%d, v[12:13], %s sc1", VZ, sr(P_DBG, 2))
a("buffer_store_dword v12, v%d, %s, s9 offen sc1", VZ, sr(SWS, 4))
a("s_mov_b64 exec, -1")
a("s_branch L_auxk")
a("L_auxhi:")
a("s_waitcnt vmcnt(8)")
a("s_barrier")
a("L_auxk:")
kgen_all([])
def lo():
    a("s_waitcnt lgkmcnt(0)")
    a("s_barrier")
    ut_part(0, 8, 3)
role(lo, None)
a("s_waitcnt lgkmcnt(0)")
a("s_barrier")
lg = Lg()
for r in kreads(): lg.issue(*r)
a("v_and_b32 v21, 7, v0")
a("v_lshlrev_b32 v21, 4, v21")
run_kmfma(lg, [], 0)
def hi():
    a("s_waitcnt vmcnt(0)")
    onwave(4, lambda: a("ds_write_b128 v20, v[28:31] offset:%d", LGW))
    a("s_waitcnt lgkmcnt(0)")
role(None, hi)
a("s_barrier")
stamp(0)
nonce_issue()
ut_part(1, 4, 2)
a("v_lshrrev_b32 v9, 3, v1")
a("v_mul_u32_u24 v10, %d, v9", PITCH)
a("v_add3_u32 v10, v10, v21, s8")
a("v_lshrrev_b32 v9, 3, v0")
for j in range(8):
    a("ds_read_b128 %s, v10 offset:%d", vr(96 + 4 * j, 4), j * 128)
    a("ds_read_b128 %s, v21 offset:%d", vr(24 + 4 * j, 4), LGW + j * 128)
kmfma_finish()
onwave(0, zero_pads_k)
onwave(1, zero_pads_u)
a("v_mov_b32 v11, 0")
a("v_mov_b32 v12, 0")
a("s_waitcnt lgkmcnt(0)")
for j in range(32):
    a("v_dot2_f32_bf16 v%d, v%d, v%d, v%d", 11 + j % 2, 24 + j, 96 + j, 11 + j % 2)
a("v_add_f32 v11, v11, v12")
a("v_add_f32_dpp v11, v11, v11 quad_perm:[1,0,3,2] row_mask:0xf bank_mask:0xf")
a("v_add_f32_dpp v11, v11, v11 quad_perm:[2,3,0,1] row_mask:0xf bank_mask:0xf")
a("v_add_f32_dpp v11, v11, v11 row_half_mirror row_mask:0xf bank_mask:0xf")
a("v_mul_f32 v11, 0xbfb8aa3b, v11")
a("v_exp_f32 v11, v11")
a("v_add_f32 v11, 1.0, v11")
a("v_rcp_f32 v11, v11")
a("v_lshlrev_b32 v9, 2, v9")
a("s_waitcnt vmcnt(0)")
nonce_check()
a("s_barrier")
def sflag(base):
    a("s_lshl_b32 s10, s6, 2")
    a("s_add_u32 s10, s10, %d", base)
    if opt("vflag", 3) & 1: flag_store("s10")
    else: a("s_buffer_atomic_swap s%d, %s, s10", S_NONCE, sr(SWS, 4))
onwave(1, lambda: sflag(F_A))
stamp(1)
a("s_lshl_b32 s13, s6, 8")
a("s_add_u32 s13, s13, %d", WS_G)
a("v_cmp_eq_u32 vcc, 0, v21")
a("s_mov_b64 exec, vcc")
a("buffer_store_dword v11, v9, %s, s13 offen sc1", sr(SWS, 4))
a("s_mov_b64 exec, -1")
a("s_lshl_b32 s%d, s6, 13", S_PFI)
a("s_lshl_b32 s11, s3, 10")
a("s_add_u32 s%d, s%d, s11", S_PFI, S_PFI)
for k_ in range(7):
    if opt("apf", 1): a("buffer_load_dwordx4 v[52:55], v20, %s, s%d offen", sr(SW, 4), S_PFI)
    else: a("buffer_load_dword v52, v%d, %s, 0 offen", VZ, sr(SW, 4))
    a("s_add_u32 s%d, s%d, %d", S_PFI, S_PFI, 256 * 1024)
    if k_ == 4:
        later_addrs2(T0, T1, T2)
        later_addrs3(T0, T1, T2)
def p_():
    a("s_mov_b32 s%d, %d", S_PB, F_A)
    poll_issue(32)
    a("s_waitcnt vmcnt(0)")
    poll_check(8)
onwave(0, p_)
a("s_waitcnt vmcnt(7)")
a("s_barrier")
onwave(1, lambda: sflag(F_G))
role(None, u_load)
eops_load()
a("s_waitcnt vmcnt(0)")
role(None, u_write)
eops_calc()
a("s_waitcnt lgkmcnt(0)")
a("s_barrier")
stamp(2)
conv_prelude()
a("s_cmp_ge_u32 s3, 4")
a("s_cbranch_scc1 L_conv")
AUXW = len(a.lines)
a("s_branch L_help")
aux_lines = a.lines[AUX0:]
a.lines = a.lines[:AUX0]
a.hist = HIST0
VA, VB, VC, VY = 2, 3, 4, 5
HF = 80
HRING = 16
VO = 14
HFC = 112
def hload(j0, n, vml, HF=HF):
    for j in range(j0, j0 + n):
        if j % 4 == 0 or j == j0:
            a("s_add_u32 s%d, s%d, s%d", S_T, S_HB, S_RT + j // 4)
        if opt("xl2", 0):
            if j % 4 == 0 or j == j0:
                a("s_and_b32 s%d, s%d, 0x3f000", S_T, S_T)
                a("s_and_b32 s101, s4, 6")
                a("s_lshl_b32 s101, s101, 18")
                a("s_add_u32 s%d, s%d, s101", S_T, S_T)
            a("buffer_load_dwordx4 %s, v%d, %s, s%d offen offset:%d sc1", vr(HF + 4 * (j % HRING), 4), VH, sr(SX, 4), S_T, (j % 4) * 1024)
            vml.append(("H", j)); continue
        a("buffer_load_dwordx4 %s, v%d, %s, s%d offen offset:%d%s", vr(HF + 4 * (j % HRING), 4), VH, sr(SWS, 4), S_T, (j % 4) * 1024, "" if opt("hplain", 0) else " sc1")
        vml.append(("H", j))

WORD = {0: [0, 1, 4, 5, 6, 2, 3], 8: [0, 1, 2, 4, 5, 6, 3], 16: [0, 1, 2, 3, 4, 5, 6]}[opt('nw7', 0)]
W6D = opt("w6d", 1)
if W6D: WORD.remove(6)
W5D = opt("w5d", 0)
if W5D: WORD.remove(5)
def hl_list(all_=False):
    L = []
    for rd in WORD:
        for i in range(8):
            def f(rd=rd, i=i):
                if rd < 4:
                    a("s_add_u32 m0, s%d, %d", S_WLD, WB[rd] * BLK + i * 1024)
                if i == 0:
                    a("s_lshl_b32 s13, s%d, 4", S_RT + rd)
                    a("s_add_u32 s13, s13, s%d", S_WSO)
                else:
                    a("s_add_u32 s13, s13, 8192")
                if rd < 4:
                    a("buffer_load_dwordx4 v%d, %s, s13 offen%s lds", VWD, sr(SW, 4), " nt" if rd == 0 and opt("dnt", 0) else "")
                else:
                    a("buffer_load_dwordx4 %s, v%d, %s, s13 offen", vr(WST + WSTO[rd] + 4 * i, 4), VWD, sr(SW, 4))
            L.append(f)
    return L if all_ else L[sum(NW):]
assert all(x % 8 == 0 for x in NW) and NW[0] <= 8 and NW[0] + NW[1] <= 16
BC0 = len(a.lines)
a("L_st2:"); a("s_branch L_stret")
loader()
a("L_conv:")
stamp(3)
if opt("prio", 0): a("s_setprio %d", opt("prio", 0))
a("s_mov_b32 s14, 0x11111111")
a("s_mov_b32 s15, 0x11111111")
a("s_mov_b64 vcc, s[14:15]")
a("s_mov_b32 s12, 0x33333333")
a("s_mov_b32 s13, 0x33333333")
a("s_bitcmp1_b32 s3, 0")
a("s_cbranch_scc1 L_set1")
BF = 112
AF = 8
AC = 28
C1POS = opt("c1pos", 26)
LOOK = opt("look", 6)
NC0 = opt("nc0", 6)
FPG = opt("fpg", 4)
vmc = None
VCF, VCP = 108, 109
DONE = {}
def done_pos(jt):
    CM = opt("cm", 0)
    for tiles in ([0, 3, 4, 7], [1, 2, 5, 6]):
        if jt in tiles:
            groups = {0: [[0, 1, 2, 3]], 1: [[0], [1], [2], [3]], 2: [[0, 1], [2, 3]], 3: [[0, 1, 2], [3]]}[CM]
            sc = [tiles[ti] for g_ in groups for dl in range(4 * tiles[g_[-1]] + 4) for ti in g_ if dl <= 4 * tiles[ti] + 3]
            return max(p for p, x in enumerate(sc) if x == jt)
for si, tiles in enumerate([[0, 3, 4, 7], [1, 2, 5, 6]]):
    if si == 1:
        a("L_st0:"); a("s_branch L_stret")
        a("L_set1:")
    other = [[1, 2, 5, 6], [0, 3, 4, 7]][si]
    lg = Lg()
    CM = opt("cm", 0)
    groups = {0: [[0, 1, 2, 3]], 1: [[0], [1], [2], [3]], 2: [[0, 1], [2, 3]], 3: [[0, 1, 2], [3]]}[CM]
    sched = []; aid = []; adl = []
    for g_ in groups:
        for dl in range(4 * tiles[g_[-1]] + 4):
            adl.append(dl)
            for ti in g_:
                if dl <= 4 * tiles[ti] + 3:
                    sched.append((dl, ti, tiles[ti])); aid.append(len(adl) - 1)
    NA = 5
    lastuse = {}
    for pos in range(len(sched)): lastuse[aid[pos]] = pos
    loads = []; seenB = set(); seenA = set()
    for pos, (dl, ti, jt) in enumerate(sched):
        if aid[pos] not in seenA: seenA.add(aid[pos]); loads.append(("A", aid[pos], pos))
        e = 4 * jt - dl
        if e not in seenB: seenB.add(e); loads.append(("B", e, pos))
    done_at = {jt: max(p for p, x in enumerate(sched) if x[2] == jt) for jt in tiles}
    DONE.update(done_at)
    def ld_instrs(kind, idx):
        if kind == "A":
            r = AF + 4 * (idx % NA); dl_ = adl[idx]
            return ["ds_read_b64_tr_b16 %s, v%d offset:%d" % (vr(r + 2 * hf, 2), VA, 128 * dl_ + 32 * (1 - hf)) for hf in range(2)]
        return ["ds_read_b128 %s, v%d offset:%d" % (vr(BF + 4 * (idx + 3), 4), VB, 128 * (idx + 3))]
    nys = [0]
    ystores = []
    def post(ti, jt):
        b = AC + 20 * ti
        L = []
        q1 = "quad_perm:[1,1,3,3] row_mask:0xf bank_mask:0xf"; q2 = "quad_perm:[2,2,2,2] row_mask:0xf bank_mask:0xf"
        q0 = "quad_perm:[0,0,0,0] row_mask:0xf bank_mask:0xf"
        L.append("v_mov_b32_dpp v%d, v%d %s" % (b + 16, b + 15, q1))
        for q in range(15, 0, -1):
            L.append("v_add_f32_dpp v%d, v%d, v%d %s" % (b + q, b + q - 1, b + q, q1))
        L.append("v_mov_b32_dpp v%d, v%d %s" % (b + 18, b + 16, q2))
        L.append("v_mov_b32_dpp v%d, v%d %s" % (b + 17, b + 15, q2))
        L.append("v_add_f32_dpp v%d, v%d, v%d %s" % (b + 16, b + 14, b + 16, q2))
        def cw():
            a("s_mov_b64 exec, vcc")
            lg.issue("ds_write_b128 v%d, %s offset:%d" % (VC, vr(b + 16, 4), 256 * jt + 16))
            if jt + 1 in other:
                a("s_mov_b64 exec, 1")
                lg.issue("ds_write_b32 v%d, v6 offset:%d" % (VCF, 4 * ti))
            a("s_mov_b64 exec, -1")
        L.append(cw)
        for q in range(15, 1, -1):
            L.append("v_add_f32_dpp v%d, v%d, v%d %s" % (b + q, b + q - 2, b + q, q2))
        for q in range(2, 8):
            L.append("v_cvt_pk_bf16_f32 v%d, v%d, v%d" % (b + 16 + (q - 2) if q < 4 else b + q, b + 2 * q, b + 2 * q + 1))
        L = [(0, x) for x in L]
        part = (jt - 1) in other
        mp = done_pos(jt - 1) + opt("cmarg", 22) if part else 0
        def rd():
            if part: lg.issue("ds_read_b32 v%d, v%d offset:%d" % (b + 12, VCP, 4 * other.index(jt - 1)), ("cf", ti))
            lg.issue("ds_read_b128 %s, v%d offset:%d" % (vr(b + 8, 4), VC, 256 * jt), ("cy", ti))
        L.append((mp, rd))
        def chk():
            lg.need([("cy", ti)])
            if part:
                ok = a.label("Lcok"); sl = a.label("Lcsl")
                a("v_readfirstlane_b32 s10, v%d", b + 12)
                a("s_cmp_eq_u32 s10, 0")
                a("s_cbranch_scc1 %s", sl)
                a(ok + ":")
                def sp(ok=ok, sl=sl, oi=other.index(jt - 1)):
                    a(sl + ":")
                    lds_wait(VCP, 4 * oi, b + 12, 0)
                    a("s_mov_b64 vcc, s[14:15]")
                    a("ds_read_b128 %s, v%d offset:%d", vr(b + 8, 4), VC, 256 * jt)
                    a("s_waitcnt lgkmcnt(0)")
                    a("s_branch %s", ok)
                slow.append(sp)
        L.append((-3, chk))
        for q in range(3):
            L.append((0, "v_add_f32 v%d, v%d, v%d" % (b + q, b + q, b + 8 + q)))
        L.append((0, "v_cvt_pk_bf16_f32 v%d, v%d, v%d" % (b, b, b + 1)))
        L.append((0, "v_cvt_pk_bf16_f32 v%d, v%d, v%d" % (b + 1, b + 2, b + 3)))
        L.append((0, "v_cndmask_b32_dpp v%d, v%d, v%d, vcc %s" % (b + 2, b + 6, b + 16, q0)))
        L.append((0, "v_cndmask_b32_dpp v%d, v%d, v%d, vcc %s" % (b + 3, b + 7, b + 17, q0)))
        L.append((0, "v_cndmask_b32_dpp v%d, v%d, v%d, vcc %s" % (b, b + 4, b, q0)))
        L.append((0, "v_cndmask_b32_dpp v%d, v%d, v%d, vcc %s" % (b + 1, b + 5, b + 1, q0)))
        def st_():
            a("s_mov_b64 exec, s[12:13]")
            a("buffer_store_dwordx4 %s, v%d, %s, s%d offen offset:%d sc1", vr(b, 4), VY, sr(SWS, 4), S_YB, 512 * jt)
            a("s_mov_b64 exec, -1")
            nys[0] += 1
        if opt("ydefer", 1): ystores.append(st_)
        else: L.append((0, st_))
        return L
    li = 0; queues = []
    def emit(x): a(x) if isinstance(x, str) else x()
    for pos, (dl, ti, jt) in enumerate(sched):
        for ld in list(loads):
            kind, idx, fp = ld
            if fp <= pos + LOOK and not (kind == "A" and idx >= NA and lastuse[idx - NA] >= pos):
                for ins in ld_instrs(kind, idx): lg.issue(ins, (kind, idx))
                loads.remove(ld)
        e = 4 * jt - dl
        lg.need([("A", aid[pos]), ("B", e)])
        d = vr(AC + 20 * ti, 16)
        a("v_mfma_f32_32x32x16_bf16 %s, %s, %s, %s", d, vr(AF + 4 * (aid[pos] % NA), 4), vr(BF + 4 * (e + 3), 4), d if dl else "0")
        if opt("diag2", 0) and pos in (15, 39):
            stamp({15: 11, 39: 12}[pos], True); lg.drained()
        bud = FPG
        for qu in queues:
            while bud and qu[0] and pos >= qu[1]:
                mp, x = qu[0][0]
                if mp > pos: break
                if mp < 0:
                    qu[0][0] = (pos - mp, x); break
                qu[0].pop(0); emit(x); bud -= 1
        if dl == 4 * jt + 3: queues.append([post(ti, jt), pos + 3])
    stamp(4)
    def upto(qu, name, incl):
        names = [getattr(x, "__name__", "") for mp, x in qu[0]]
        if name not in names: return
        n_ = names.index(name) + (1 if incl else 0)
        for mp, x in qu[0][:n_]: emit(x)
        qu[0] = qu[0][n_:]
    for qu in queues[:-1]: upto(qu, "cw", True)
    upto(queues[-1], "cw", True)
    for qu in queues[:-1]: upto(qu, "rd", True)
    upto(queues[-1], "rd", True)
    for qu in queues[:-1]:
        for mp, x in qu[0]: emit(x)
    for mp, x in queues[-1][0]: emit(x)
    for x in ystores:
        if opt("xnoy", 0) < 2: x()
    stamp(5)
    if si == 0: a("s_branch L_g2c")

BH0 = len(a.lines)
a.hist = HIST0
a("v_mov_b32 v6, 1")
a("v_mov_b32 v7, %d", L_SY)
if opt("hold", 0): onwave(3, lambda: sig(7, 104))
a("s_setprio 0")
a("L_help:")
stamp(3)
NPRE = opt("npre", 8)
for f in hl_list()[:NPRE]: f()
a("s_waitcnt vmcnt(%d)", NPRE)
sig(VSY, 0)
stamp(10)
a("s_cmp_lg_u32 s3, 0")
a("s_cbranch_scc1 L_hdma")
a("s_cmp_lg_u32 s%d, 0", S_ISAUX)
a("s_cbranch_scc1 L_hdma")
a("v_and_b32 v2, 3, v1")
a("v_lshl_add_u32 v2, v2, 2, v7")
rest = hl_list()[NPRE:]
SEG = opt("seg", 2)
NSEG = opt("nseg", 6)
for k in range(NSEG):
    a("ds_read_b32 v3, v2")
    a("s_waitcnt lgkmcnt(0)")
    a("v_cmp_eq_u32 vcc, 0, v3")
    a("s_cmp_eq_u64 vcc, 0")
    a("s_cbranch_scc1 L_pub%d", k)
    for f in rest[k * SEG:(k + 1) * SEG]: f()
lds_wait(2, 0, 3, 0)
for k in range(NSEG, -1, -1):
    a("L_pub%d:" % k)
    if opt("vflag", 3) & 2: flag_store("s%d" % S_FH)
    else: a("s_buffer_atomic_swap s%d, %s, s%d", S_NONCE, sr(SWS, 4), S_FH)
    if STAMP and k == 0: pass
    if k: a("s_branch L_seg%d", k)
def hpoll_setup():
    a("s_lshr_b32 s%d, s%d, 1", S_PB, S_TB)
    a("s_mul_i32 s%d, s%d, %d", S_PB, S_PB, FSTR)
    a("s_add_u32 s%d, s%d, %d", S_PB, S_PB, F_H2)
    a("s_mov_b32 s8, s%d", S_NONCE)
    a("s_mov_b32 s9, s%d", S_NONCE)
    a("s_mov_b32 s12, 0")
a("L_hdma:")
for n_, f in enumerate(rest):
    if n_ and n_ % SEG == 0 and n_ // SEG <= NSEG: a("L_seg%d:" % (n_ // SEG))
    if opt("epoll", 0) and n_ == len(rest) - opt("epoll", 0):
        assert n_ >= SEG * NSEG
        def ep():
            hpoll_setup()
            a("s_buffer_load_dwordx16 s[16:31], %s, s%d glc", sr(SWS, 4), S_PB)
        onwave(opt("pollw", 1), ep)
    f()
if EL: eops_load(20, 24, 28, 29, 30)
stamp(6)
NH0 = opt("nh0", 6)
def hpoll():
    if opt("vpoll", 0):
        hpoll_setup()
        poll_issue(14)
        a("s_waitcnt vmcnt(0)")
        poll_check(opt("vpoll", 0) - 1)
        return
    if not opt("epoll", 0): hpoll_setup()
    else: a("s_branch L_sp1")
    a("L_sp:")
    a("s_buffer_load_dwordx16 s[16:31], %s, s%d glc", sr(SWS, 4), S_PB)
    a("L_sp1:")
    a("s_add_u32 s12, s12, 1")
    a("s_waitcnt lgkmcnt(0)")
    a("s_xor_b64 s[10:11], s[16:17], s[8:9]")
    for i in range(1, 7):
        a("s_xor_b64 s[14:15], s[%d:%d], s[8:9]", 16 + 2 * i, 17 + 2 * i)
        a("s_or_b64 s[10:11], s[10:11], s[14:15]")
    a("s_cbranch_scc0 L_fnd")
    a("s_cmp_lt_u32 s12, %d", opt("spn", 64))
    a("s_cbranch_scc1 L_sp")
    poll_issue(14)
    a("s_waitcnt vmcnt(0)")
    poll_check(1)
    a("L_fnd:")
    stamp(5)
def ypublish():
    a("s_waitcnt vmcnt(0)")
    sig(VSY, 96)
    def p_():
        a("v_and_b32 v2, 3, v1")
        a("v_lshl_add_u32 v2, v2, 2, v7")
        lds_wait(2, 112, 3, 0)
        a("s_lshl_b32 s10, s2, 2")
        a("s_add_u32 s10, s10, %d", F_Y)
        flag_store("s10")
    onwave(4, p_)
    stamp(6)
vmh = []; vmc = []

def gemm2(role_, vml):
    helper = role_ == "h"
    HFR = HF if helper else HFC
    R = 8
    VYR, EG = 15, 16
    EY = 176
    VWW = 76
    VRW, VYW, VYG, VGG = 78, 79, 6, 7
    S_YG = 6
    t0, t1, t2, t3 = 2, 3, 4, 5
    AFR = 20
    AC2 = 44
    YL = 180
    A0 = 188
    RR = 16
    def vw(tags):
        idx = [i for i, t in enumerate(vml) if t in tags]
        if not idx: return 63
        return min(63, len(vml) - 1 - max(idx))
    a("v_mov_b32 v%d, v%d", R, VR0)
    a("v_xor_b32 v%d, 64, v%d", R + 1, VR0)
    for m in range(2):
        a("v_add_u32 v%d, %d, v%d", R + 2 + m, 4 * BLK, R + m)
        a("v_add_u32 v%d, %d, v%d", R + 4 + m, 8 * BLK, R + m)
    if helper:
        a("v_add_u32 v%d, s%d, v%d", VWW + 1, S_WLD, VH)
        onwave(opt("pollw", 1), hpoll)
    a("s_waitcnt vmcnt(%d)", 0 if helper else 4)
    if helper and EL: eops_calc(20, 24, 28, 29, 30)
    stamp(13)
    a("s_barrier")
    stamp(7)
    def reads(step):
        rd, ks = step // 4, step % 4
        blk = WB[rd]
        f = AFR + (step % 3) * 8
        L = []
        for m in range(2):
            for hf in range(2):
                L.append(("ds_read_b64_tr_b16 %s, v%d offset:%d" % (vr(f + 4 * m + 2 * hf, 2), R + 2 * (blk // 4) + m, (blk % 4) * BLK + (ks >> 1) * 4096 + (ks & 1) * 1024 + hf * 2048), (step, m)))
        return L
    def setup():
        a("s_lshl_b32 s10, s%d, 7", S_DB)
        a("v_lshl_add_u32 v%d, v1, 2, s10", VN + 2)
        a("s_lshl_b32 s10, s%d, 2", S_TB)
        a("s_add_u32 s10, s10, %d", F_G - F_Y)
        a("v_mov_b32 v%d, s10", t0)
        a("v_cmp_lt_u32 vcc, 31, v1")
        a("s_mov_b32 s%d, %d", S_PB, F_Y)
        a("v_lshrrev_b32 v%d, 3, v1", VYG)
        a("v_cndmask_b32 v%d, v%d, v%d, vcc", VN + 2, VN + 2, t0)
        a("v_lshlrev_b32 v%d, 12, v%d", VYG, VYG)
        a("v_and_b32 v%d, 7, v1", t1)
        a("v_lshl_add_u32 v%d, v%d, 4, v%d", VYG, t1, VYG)
        a("s_lshl_b32 s%d, s%d, 3", S_YG, S_DB)
        a("s_add_u32 s%d, s%d, s3", S_YG, S_YG)
        a("s_lshl_b32 s%d, s%d, 15", S_YG, S_YG)
        a("s_lshl_b32 s10, s%d, 7", S_TB)
        a("s_add_u32 s%d, s%d, s10", S_YG, S_YG)
        a("s_add_u32 s%d, s%d, %d", S_YG, S_YG, WS_Y)
        a("v_and_b32 v%d, 31, v1", t2)
        a("v_lshlrev_b32 v%d, 2, v%d", VGG, t2)
        a("v_lshrrev_b32 v%d, 5, v1", VYR)
        a("v_lshlrev_b32 v%d, 4, v%d", t3, VYR)
        a("v_lshl_add_u32 v%d, v%d, 10, v%d", VO, t2, t3)
        a("v_bfe_u32 v%d, v1, 2, 2", t2)
        a("v_lshl_add_u32 v%d, v%d, 3, v%d", VYR, VYR, t2)
        a("v_lshlrev_b32 v%d, 7, v%d", VYR, VYR)
        a("v_bfe_u32 v%d, v1, 4, 1", t2)
        a("v_lshl_add_u32 v%d, v%d, 5, v%d", VYR, t2, VYR)
        a("v_and_b32 v%d, 3, v1", t2)
        a("v_lshl_add_u32 v%d, v%d, 3, v%d", VYR, t2, VYR)
        a("s_lshr_b32 s10, s3, 1")
        a("s_lshl_b32 s10, s10, 11")
        a("s_and_b32 s11, s3, 1")
        a("s_lshl_b32 s11, s11, 6")
        a("s_add_u32 s10, s10, s11")
        a("s_add_u32 s10, s10, %d", L_Y)
        a("v_add_u32 v%d, s10, v%d", VYR, VYR)
        a("s_lshl_b32 s10, s3, 10")
        a("s_add_u32 s10, s10, %d", L_Y)
        a("v_add_u32 v%d, s10, v%d", VYW, VH)
        for j in range(4):
            hi_ = (0 if helper else 1) ^ (j >> 1)
            a("s_xor_b32 s10, s%d, %d", S_TQ, (2 * j) & 3)
            a("s_mul_i32 s10, s10, 6144")
            a("s_add_u32 s10, s10, %d", L_R[hi_] + max(j - 1, 0) * 2048)
            a("v_add_u32 v%d, s10, v%d", VRW if j == 0 else RR + j, VH)
    lg = Lg()
    def wwrite(rd, i):
        if i == 0: a("v_add_u32 v%d, %d, v%d", VWW, WB[rd] * BLK, VWW + 1)
        lg.issue("ds_write_b128 v%d, %s offset:%d" % (VWW, vr(WST + WSTO[rd] + 4 * i, 4), i * 1024), ("ww", rd))
    def wdma(rd, i):
        a("s_add_u32 m0, s%d, %d", S_WLD, WB[rd] * BLK + i * 1024)
        if i == 0:
            a("s_lshl_b32 s13, s%d, 4", S_RT + rd)
            a("s_add_u32 s13, s13, s%d", S_WSO)
        else:
            a("s_add_u32 s13, s13, 8192")
        a("buffer_load_dwordx4 v%d, %s, s13 offen lds", VWD, sr(SW, 4))
        vml.append(("W", rd))
    nh = NH0 if helper else NC0
    N1 = opt("n1", 3)
    hload(0, N1, vml, HFR)
    for r in reads(0) + reads(1): lg.issue(*r)
    pend = []
    NW4 = opt("nw4i", 4)
    if helper:
        for i in range(NW4 // 2): wwrite(4, i)
        hload(N1, nh - N1, vml, HFR)
        for i in range(NW4 // 2, NW4): wwrite(4, i)
        pend = [(lambda i=i: wwrite(4, i)) for i in range(NW4, 8)]
        vfill = a.capture(setup)
    else:
        setup()
        hload(N1, nh - N1, vml, HFR)
        vfill = []
    YPS = opt("yps", 15)
    for step in range(28):
        rd, ks = step // 4, step % 4
        f = AFR + (step % 3) * 8
        nxt = reads(step + 2) if step < 26 else []
        for m in range(2):
            d = vr(AC2 + 16 * m, 16)
            lg.need([(step, m)], "vmcnt(%d) " % vw([("H", step)]) if m == 0 else "")
            a("v_mfma_f32_32x32x16_bf16 %s, %s, %s, %s", d, vr(f + 4 * m, 4), vr(HFR + 4 * (step % HRING), 4), d if step else "0")
            for r in nxt[2 * m:2 * m + 2]: lg.issue(*r)
            if nh < 28 and m == 0 and not opt("xnoh", 0):
                hload(nh, 1, vml, HFR); nh += 1
            if m == 0 and step == opt("yls", 22):
                a("s_waitcnt vmcnt(%d)", vw([("PY", 0)]))
                if not opt("xnoy", 0): poll_check(1)
                a("buffer_load_dwordx4 %s, v%d, %s, s%d offen sc1", vr(YL, 4), VYG, sr(SWS, 4), S_YG)
                a("buffer_load_dword v%d, v%d, %s, s%d offen sc1", EG, VGG, sr(SWS, 4), S_GOFF)
                vml += [("Y", 0), ("Y", 0)]
            if m == 1 and step == YPS:
                assert not vfill
                a("buffer_load_dword v%d, v%d, %s, s%d offen sc1", VN - 1, VN + 2, sr(SWS, 4), S_PB)
                vml.append(("PY", 0))
            if pend and (m == 1 or not W6D): pend.pop(0)()
            for _ in range(4):
                if vfill: lg.run(vfill.pop(0))
        if opt("stg2", 0) and ks == 3 and rd < 5:
            stamp(10 + rd); lg.drained()
        if step == 18:
            for j in range(4):
                vfill.append("v_lshlrev_b32 v%d, 16, v%d" % (A0 + 2 * j, EUD + j))
                vfill.append("v_and_b32 v%d, 0xffff0000, v%d" % (A0 + 2 * j + 1, EUD + j))
        if step == opt("ybar", 1):
            a("s_barrier")
            if not helper:
                def yf():
                    a("s_lshl_b32 s10, s2, 2")
                    a("s_add_u32 s10, s10, %d", F_Y)
                    flag_store("s10")
                if not opt("xnoy", 0): onwave(4, yf)
        if step == 9:
            assert not pend
            if helper: lg.need([("ww", 4)])
            a("s_barrier")
            if helper and W5D: pend = [(lambda i=i: (wdma(5, 2 * i), wdma(5, 2 * i + 1))) for i in range(4)]
            elif helper: pend = [(lambda i=i, r=r: wwrite(r, i)) for r in ((5,) if W6D else (5, 6)) for i in range(8)]
            elif W6D: pend = [(lambda i=i: wdma(6, i)) for i in range(8)]
        if step == 17:
            assert not pend
            if helper: lg.need([("ww", 5), ("ww", 6)])
            if helper and W5D: a("s_waitcnt vmcnt(%d)", vw([("W", 5)]))
            a("s_barrier")
        if step == 21 and W6D:
            if not helper: a("s_waitcnt vmcnt(%d)", vw([("W", 6)]))
            a("s_barrier")
    assert not pend and not vfill
    stamp(8)
    a("s_waitcnt vmcnt(0)")
    if opt("diag3", 0): stamp(10, True)
    a("ds_write_b128 v%d, %s", VYW, vr(YL, 4))
    XB16 = opt("xb16", 0)
    for j in range(1, 4):
        if XB16:
            for q in range(4):
                a("v_cvt_pk_bf16_f32 v%d, v%d, v%d", AC2 + 8 * j + q, AC2 + 8 * j + 2 * q, AC2 + 8 * j + 2 * q + 1)
        for b in range(1 if XB16 else 2):
            a("ds_write_b128 v%d, %s offset:%d", VRW, vr(AC2 + 8 * j + 4 * b, 4), (j - 1) * 2048 + b * 1024)
    for q in range(8):
        a("v_sub_f32 v%d, v%d, v%d", A0 + q, A0 + q, AC2 + q)
        a("v_fmac_f32 v%d, v%d, v%d", AC2 + q, EG, A0 + q)
    a("v_sub_f32 v%d, 1.0, v%d", t1, EG)
    a("s_waitcnt lgkmcnt(0)")
    a("s_barrier")
    for hf in range(2):
        a("ds_read_b64_tr_b16 %s, v%d offset:%d", vr(EY + 2 * hf, 2), VYR, hf * 512)
    NB = 1 if XB16 else 2
    for j in range(1, 4):
        for b in range(NB):
            a("ds_read_b128 %s, v%d offset:%d", vr(AC2 + 8 * j + 4 * b, 4), RR + j, b * 1024)
    a("s_waitcnt lgkmcnt(%d)", 3 * NB)
    def unp(src, mul):
        for j in range(4):
            a("v_lshlrev_b32 v%d, 16, v%d", t2, src + j)
            a("v_and_b32 v%d, 0xffff0000, v%d", t3, src + j)
            a("v_fmac_f32 v%d, v%d, v%d", AC2 + 2 * j, mul, t2)
            a("v_fmac_f32 v%d, v%d, v%d", AC2 + 2 * j + 1, mul, t3)
    unp(EY, EG)
    for j in range(1, 4):
        a("s_waitcnt lgkmcnt(%d)", NB * (3 - j))
        if XB16: unp(AC2 + 8 * j, t1)
        else:
            for q in range(8):
                a("v_fmac_f32 v%d, v%d, v%d", AC2 + q, t1, AC2 + 8 * j + q)
    for j in range(4):
        a("v_cvt_pk_bf16_f32 v%d, v%d, v%d", A0 + j, AC2 + 2 * j, AC2 + 2 * j + 1)
    a("buffer_store_dwordx4 %s, v%d, %s, s%d offen%s", vr(A0, 4), VO, sr(SO, 4), S_OB, ["", " sc1", " nt", " sc0 sc1"][opt("ost", 0)])
    if opt("diag3", 0): stamp(13, True)
    if STAMP: a("s_waitcnt vmcnt(0)")
    stamp(9)
    stamp_out()
    a("s_endpgm")

gemm2("h", vmh)
BG0 = len(a.lines)
a.lines = a.lines[:BC0] + a.lines[BH0:BG0] + a.lines[BC0:BH0]
a("L_g2c:")
gemm2("c", vmc)
n0_ = len(a.lines)
def auxw():
    for f in hl_list(True)[:sum(NW)]: f()
auxw()
auxw_lines = a.lines[n0_:]; a.lines = a.lines[:n0_]
a.lines += aux_lines[:AUXW - AUX0] + auxw_lines + aux_lines[AUXW - AUX0:]
for sp in slow: sp()
a("L_end:")
a("s_endpgm")

hdr = open("gated_mix__ssm_conv_s4__glu_gated_bilinear__prompt.s.ref").read().split("\n")
hdr = [l for l in hdr if l.startswith(";") and "@launch" not in l]
doc = """;
; Single persistent launch, 256 workgroups x 8 waves, one workgroup per CU (generated by a Python script).
;  - 224 workgroups: h = (x Wg) * (x Wu) for a 128 x 128 tile (waves 0-3 MFMA, waves 4-7 LDS-DMA loaders);
;    32 workgroups: polyphase transpose of u and the sigmoid gate.
;  - every workgroup: SSM kernel K for 2 channels (exp factor tables + MFMA, expanded over the bf16-rounded
;    time index), causal convolution as Toeplitz MFMA, then a 64 x 64 tile of h Wd and the final mix.
;  - hand-offs between workgroups go through d_ws: write-through stores, drained, then a flag holding this
;    launch's tag (derived from an epoch word in d_ws, broadcast through d_debug).""".split("\n")
print(wrap(hdr + ["; @launch grid=(256,1,1) block=(512,1,1) lds=163840"] + doc, [(NAME, a, 256, 102, 256)]))
sys.stderr.write("nops: %d\n" % a.nops)
```
